```python
import torch

def _softmax(x, axis=-1):
    return torch.softmax(x, dim=axis)

def _gelu(x):
    return torch.nn.functional.gelu(x, approximate='tanh')

def _silu(x):
    return torch.nn.functional.silu(x)

def _sigmoid(x):
    return torch.sigmoid(x)

def _layernorm(x, axis=-1, eps=1e-05):
    m = x.mean(dim=axis, keepdim=True)
    v = x.var(dim=axis, keepdim=True, unbiased=False)
    return (x - m) / torch.sqrt(v + eps)

def _scatter_add(tgt, idx, src, axis=0):
    return tgt.clone().index_add_(axis, idx, src)

def _segment_sum(src, seg, n):
    out = torch.zeros((n,) + src.shape[1:], dtype=src.dtype)
    return out.index_add_(0, seg, src)

def _pad(x, pw):
    flat = tuple((v for pair in reversed(pw) for v in pair))
    return torch.nn.functional.pad(x, flat)
kernel_name = 'parallel_sum__spectral_fnet__mixer_gmlp__prompt'

def setup_inputs():

    _w = lambda a: (lambda t: t.to(torch.bfloat16) if t.is_floating_point() else t)(torch.as_tensor(a))

    def _A_setup():
        B, S, D = (1, 2048, 640)
        ns = torch.arange(S)[:, None] * torch.arange(S)[None, :]
        nd = torch.arange(D)[:, None] * torch.arange(D)[None, :]
        Ws_re = torch.cos(-2.0 * torch.pi * ns / S).to(float)
        Ws_im = torch.sin(-2.0 * torch.pi * ns / S).to(float)
        Wd_re = torch.cos(-2.0 * torch.pi * nd / D).to(float)
        Wd_im = torch.sin(-2.0 * torch.pi * nd / D).to(float)
        return {'x': _w((lambda *s: torch.randn(*s, dtype=torch.bfloat16) * 0.05)(B, S, D)), 'dft_seq_re': _w(Ws_re), 'dft_seq_im': _w(Ws_im), 'dft_hid_re': _w(Wd_re), 'dft_hid_im': _w(Wd_im)}
    _A_in = _A_setup()

    def _B_setup():
        B, S, D, F = (1, 2048, 640, 1728)
        Fh = F // 2
        return {'x': _w((lambda *s: torch.randn(*s, dtype=torch.bfloat16) * 0.05)(B, S, D)), 'w_in': _w((lambda *s: torch.randn(*s, dtype=torch.bfloat16) * 0.8)(D, 2 * Fh)), 'w_sp': _w(0.01 * (lambda *s: torch.randn(*s, dtype=torch.bfloat16) * 0.8)(S, S)), 'b_sp': _w(1.0 + 0.01 * (lambda *s: torch.randn(*s, dtype=torch.bfloat16) * 0.8)(S)), 'w_out': _w((lambda *s: torch.randn(*s, dtype=torch.bfloat16) * 0.8)(Fh, D))}
    _B_in = _B_setup()
    return {'A_x': _A_in['x'], 'A_dft_seq_re': _A_in['dft_seq_re'], 'A_dft_seq_im': _A_in['dft_seq_im'], 'A_dft_hid_re': _A_in['dft_hid_re'], 'A_dft_hid_im': _A_in['dft_hid_im'], 'B_x': _B_in['x'], 'B_w_in': _B_in['w_in'], 'B_w_sp': _B_in['w_sp'], 'B_b_sp': _B_in['b_sp'], 'B_w_out': _B_in['w_out']}

def reference(A_x, A_dft_seq_re, A_dft_seq_im, A_dft_hid_re, A_dft_hid_im, B_x, B_w_in, B_w_sp, B_b_sp, B_w_out):

    def _A_ref(x, dft_seq_re, dft_seq_im, dft_hid_re, dft_hid_im):
        a = torch.einsum('bsd,ed->bse', x, dft_hid_re)
        b = torch.einsum('bsd,ed->bse', x, dft_hid_im)
        y = torch.einsum('ts,bse->bte', dft_seq_re, a) - torch.einsum('ts,bse->bte', dft_seq_im, b)
        return y

    def _B_ref(x, w_in, w_sp, b_sp, w_out):
        B, S, D = x.shape
        F = w_in.shape[-1]
        Fh = F // 2
        z = _gelu(torch.einsum('bsd,df->bsf', x, w_in))
        z1 = z[..., :Fh].clone()
        z2 = _layernorm(z[..., Fh:], axis=-1)
        g = torch.einsum('ts,bsf->btf', w_sp, z2) + b_sp[None, :, None]
        return torch.einsum('bsf,fd->bsd', z1 * g, w_out)
    x = A_x
    xn = _layernorm(x, axis=-1)
    return x + _A_ref(xn, A_dft_seq_re, A_dft_seq_im, A_dft_hid_re, A_dft_hid_im) + _B_ref(xn, B_w_in, B_w_sp, B_b_sp, B_w_out)
```

```python
from gen_common import *
import gen_common as gc
import struct
def f2u(f): return struct.unpack('<I',struct.pack('<f',f))[0]
WS_GR = 0x08D0000
NS=4
S_WAVE=32; S_XCD=33; S_J=34; S_G=35; S_HALF=36; S_RB=37; S_CT=38; S_PW=39; S_H=40
S_I=41; S_SLI=42; S_SLC=43; S_KX=44; S_KW=45; S_T=46; S_SO=47; S_T0=48; S_T1=49; S_T2=50; S_T3=51; S_SO2=52; S_PAR=53
S_EX=54
EXP={}
STF=''

def srd(a,d,lo,hi,size):
    a('s_mov_b32 s%d, s%d'%(d,lo)); a('s_mov_b32 s%d, s%d'%(d+1,hi))
    if isinstance(size,int): a('s_mov_b32 s%d, 0x%x'%(d+2,size))
    else: a('s_mov_b32 s%d, %s'%(d+2,size))
    a('s_mov_b32 s%d, 0x00020000'%(d+3))
def add64(a,dlo,slo,off):
    o = off if isinstance(off,str) else '0x%x'%off
    a('s_add_u32 s%d, s%d, %s'%(dlo,slo,o)); a('s_addc_u32 s%d, s%d, 0'%(dlo+1,slo+1))
def slot_advance(a,s,SL,ns=NS):
    a('s_add_u32 s%d, s%d, %d'%(s,s,SL)); a('s_cmp_eq_u32 s%d, %d'%(s,ns*SL)); a('s_cselect_b32 s%d, 0, s%d'%(s,s))

def dma_producer(a,name,n,c,issue):
    gc.stamp(a,1)
    issue(); issue()
    gc.stamp(a,2)
    a('s_waitcnt vmcnt(%d)'%c); gc.stamp(a,3); a('s_barrier')
    issue(); issue()
    a('s_mov_b32 s%d, 1'%S_I)
    a.lab(name+'_loop')
    a('s_cmp_lt_u32 s%d, %d'%(S_I,n-2)); a('s_cbranch_scc0 %s_w1'%name)
    a('s_waitcnt vmcnt(%d)'%(2*c)); a('s_branch %s_wd'%name)
    a.lab(name+'_w1')
    a('s_cmp_eq_u32 s%d, %d'%(S_I,n-2)); a('s_cbranch_scc0 %s_w0'%name)
    a('s_waitcnt vmcnt(%d)'%c); a('s_branch %s_wd'%name)
    a.lab(name+'_w0')
    a('s_waitcnt vmcnt(0)')
    a.lab(name+'_wd')
    a('s_barrier')
    a('s_cmp_lt_u32 s%d, %d'%(S_I,n-3)); a('s_cbranch_scc0 %s_ni'%name)
    issue()
    a.lab(name+'_ni')
    a('s_add_u32 s%d, s%d, 1'%(S_I,S_I)); a('s_cmp_lt_u32 s%d, %d'%(S_I,n)); a('s_cbranch_scc1 %s_loop'%name)
    gc.stamp(a,4)

def consumer_loop(a,name,SL,n,addr_regs,reads,mfmas,ns=NS):
    def block(mset,rset,rsub):
        R=(reads(rset,rsub) if rset is not None else [])
        M=mfmas(mset)
        if EXP.get('noread'): R=[]
        if EXP.get('nomfma'): M=[]
        if EXP.get('ilv'):
            for x in interleave(M,R,lead=EXP['ilv']): a(x)
        else:
            for x in R: a(x)
            for x in M: a(x)
    gc.stamp(a,1)
    a('s_barrier')
    gc.stamp(a,2)
    for x in reads(0,0): a(x)
    a('s_mov_b32 s%d, 0'%S_I); a('s_mov_b32 s%d, 0'%S_SLC)
    a.lab(name+'_loop')
    a('s_waitcnt lgkmcnt(0)')
    block(0,1,1)
    a('s_waitcnt lgkmcnt(0)')
    a('s_cmp_eq_u32 s%d, %d'%(S_I,n-1)); a('s_cbranch_scc1 %s_last'%name)
    a('s_mov_b32 s%d, s%d'%(S_T0,S_SLC))
    slot_advance(a,S_SLC,SL,ns)
    a('s_sub_u32 s%d, s%d, s%d'%(S_T0,S_SLC,S_T0))
    for r in addr_regs: a('v_add_u32 v%d, s%d, v%d'%(r,S_T0,r))
    a('s_add_u32 s%d, s%d, 1'%(S_I,S_I))
    a('s_barrier')
    block(1,0,0)
    a('s_branch %s_loop'%name)
    a.lab(name+'_last')
    block(1,None,None)
    gc.stamp(a,3)

GC0=-2.0*0.7978845608028654*1.4426950408889634
GC1=GC0*0.044715
def gelu_pairs(a,pre,tmp,C0,C1,ONE):
    n=len(pre)
    for k in range(n): a('v_pk_mul_f32 %s, %s, %s'%(vr(tmp[k],2),vr(pre[k],2),vr(pre[k],2)))
    for k in range(n): a('v_pk_fma_f32 %s, %s, %s, %s'%(vr(tmp[k],2),vr(tmp[k],2),vr(C1,2),vr(C0,2)))
    for k in range(n): a('v_pk_mul_f32 %s, %s, %s'%(vr(tmp[k],2),vr(tmp[k],2),vr(pre[k],2)))
    for k in range(n):
        a('v_exp_f32 v%d, v%d'%(tmp[k],tmp[k])); a('v_exp_f32 v%d, v%d'%(tmp[k]+1,tmp[k]+1))
    for k in range(n): a('v_pk_add_f32 %s, %s, %s'%(vr(tmp[k],2),vr(tmp[k],2),vr(ONE,2)))
    for k in range(n):
        a('v_rcp_f32 v%d, v%d'%(tmp[k],tmp[k])); a('v_rcp_f32 v%d, v%d'%(tmp[k]+1,tmp[k]+1))
    for k in range(n): a('v_pk_mul_f32 %s, %s, %s'%(vr(pre[k],2),vr(pre[k],2),vr(tmp[k],2)))
def kernel_head(a,kname,pre,nwg=256):
    a.raw('.p2align 8'); a.raw('.type %s,@function'%kname); a.lab(kname)
    a('s_cmp_ge_u32 s2, %d'%nwg); a('s_cbranch_scc1 %s_exit'%pre); gc.stamp_init(a)
def kernel_tail(a,pre,kidx,s_ws):
    a.lab(pre+'_end'); gc.stamp_dump(a,kidx,s_ws,S_WAVE); a.lab(pre+'_exit'); a('s_endpgm')
```

```python
from g2_common import *
import g2_common as g2
SLZ=34816; SLA=36864
TB=NS*SLA
T_R=TB; T_NMR=TB+512; T_CS0=TB+1024; T_CS1=TB+1664; T_W2=TB+2304
K1_LDS=TB+2304+2048
NK1=10
S_X=4; S_WS=6; S_WDRE=8; S_WDIM=10; S_WIN=12; S_DBG=14
SRD_X=16; SRD_W=20; SRD_O=24; SRD_O2=28; SRD_G=56; SRD_D=60
POLL_BOUND=4000

def stats_final(a,SUM,SQ,t,n,rout,nmrout):
    for k in range(1,len(SUM)): a('v_add_f32 v%d, v%d, v%d'%(SUM[0],SUM[0],SUM[k])); a('v_add_f32 v%d, v%d, v%d'%(SQ[0],SQ[0],SQ[k]))
    a('s_nop 1')
    a('v_add_f32_dpp v%d, v%d, v%d quad_perm:[1,0,3,2] row_mask:0xf bank_mask:0xf'%(t,SUM[0],SUM[0]))
    a('v_add_f32_dpp v%d, v%d, v%d quad_perm:[1,0,3,2] row_mask:0xf bank_mask:0xf'%(t+1,SQ[0],SQ[0]))
    a('v_mul_f32 v%d, 0x%x, v%d'%(t,f2u(1.0/n),t)); a('v_mul_f32 v%d, 0x%x, v%d'%(t+1,f2u(1.0/n),t+1))
    a('v_fma_f32 v%d, -v%d, v%d, v%d'%(t+1,t,t,t+1)); a('v_max_f32 v%d, 0, v%d'%(t+1,t+1)); a('v_add_f32 v%d, 0x%x, v%d'%(t+1,f2u(1e-5),t+1))
    a('v_rsq_f32 v%d, v%d'%(rout,t+1)); a('s_nop 0')
    a('v_mul_f32 v%d, v%d, v%d'%(nmrout,t,rout)); a('v_sub_f32 v%d, 0, v%d'%(nmrout,nmrout))

def worker(a,name,SL,colsum):
    n=NK1
    SA=[10,11,12,13]; CA=14; VT=15; ONE=2
    D=[16,32]; CF=[48,68]; CACC=88; ONES=108; SUM=[112,113]; SQ=[114,115]
    a('v_lshrrev_b32 v20, 1, v0'); a('s_lshl_b32 s%d, s%d, 5'%(S_T0,S_PW)); a('v_add_u32 v20, s%d, v20'%S_T0); a('v_lshlrev_b32 v20, 7, v20')
    a('v_and_b32 v21, 1, v0'); a('v_lshl_add_u32 v20, v21, 6, v20'); a('v_bfe_u32 v21, v0, 2, 2'); a('v_lshl_add_u32 v%d, v21, 4, v20'%SA[0])
    for k in range(1,4): a('v_xor_b32 v%d, %d, v%d'%(SA[k],16*k,SA[0]))
    a('v_mov_b32 v%d, 0x3f803f80'%ONE)
    for r in SUM+SQ: a('v_mov_b32 v%d, 0'%r)
    for k in range(32): a('v_mov_b32 v%d, 0'%(D[0]+k))
    if colsum:
        a('v_and_b32 v120, 15, v0'); a('v_lshrrev_b32 v121, 4, v0'); a('v_lshrrev_b32 v122, 2, v120'); a('v_lshl_add_u32 v122, v121, 2, v122')
        a('v_mul_u32_u24 v122, 288, v122'); a('v_and_b32 v120, 3, v120'); a('v_lshl_add_u32 v122, v120, 3, v122')
        a('s_and_b32 s%d, s%d, 1'%(S_T0,S_PW)); a('s_mul_i32 s%d, s%d, 9216'%(S_T0,S_T0)); a('s_cmp_lt_u32 s%d, 2'%S_PW); a('s_cselect_b32 s%d, 160, 0'%S_T1)
        a('s_add_u32 s%d, s%d, s%d'%(S_T0,S_T0,S_T1)); a('s_add_u32 s%d, s%d, 16384'%(S_T0,S_T0)); a('v_add_u32 v%d, s%d, v122'%(CA,S_T0))
        for k in range(4): a('v_mov_b32 v%d, 0x3f803f80'%(ONES+k))
        for k in range(20): a('v_mov_b32 v%d, 0'%(CACC+k))
        for k in range(40): a('v_mov_b32 v%d, 0'%(CF[0]+k))
    def reads(st):
        for k in range(4):
            a('v_add_u32 v%d, s%d, v%d'%(VT,S_SLC,SA[k])); a('ds_read_b128 %s, v%d'%(vr(D[st]+4*k,4),VT))
        if colsum:
            a('v_add_u32 v%d, s%d, v%d'%(VT,S_SLC,CA))
            lab=a.newlab(name+'_c')
            for j in range(5):
                if j==4: a('s_cmp_lt_u32 s%d, 2'%S_PW); a('s_cbranch_scc1 %s'%lab)
                for b in range(2): a('ds_read_b64_tr_b16 %s, v%d offset:%d'%(vr(CF[st]+4*j+2*b,2),VT,b*4608+j*32))
            a.lab(lab)
    def compute(st):
        if colsum:
            for j in range(5):
                a('v_mfma_f32_16x16x32_bf16 %s, %s, %s, %s'%(vr(CACC+4*j,4),vr(ONES,4),vr(CF[st]+4*j,4),vr(CACC+4*j,4)))
        for k in range(16):
            a('v_dot2_f32_bf16 v%d, v%d, v%d, v%d'%(SQ[k&1],D[st]+k,D[st]+k,SQ[k&1]))
            a('v_dot2_f32_bf16 v%d, v%d, v%d, v%d'%(SUM[k&1],D[st]+k,ONE,SUM[k&1]))
    a('s_mov_b32 s%d, 0'%S_I); a('s_mov_b32 s%d, 0'%S_SLC)
    a.lab(name+'_loop')
    for st in range(2):
        a('s_barrier')
        reads(st)
        compute(st^1)
        a('s_waitcnt lgkmcnt(0)')
        slot_advance(a,S_SLC,SL)
    a('s_add_u32 s%d, s%d, 2'%(S_I,S_I)); a('s_cmp_lt_u32 s%d, %d'%(S_I,n)); a('s_cbranch_scc1 %s_loop'%name)
    compute(1)
    gc.stamp(a,3)
    a('s_nop 3')
    stats_final(a,SUM,SQ,20,640,24,25)
    a('v_lshrrev_b32 v26, 1, v0'); a('s_lshl_b32 s%d, s%d, 5'%(S_T0,S_PW)); a('v_add_u32 v26, s%d, v26'%S_T0); a('v_lshlrev_b32 v26, 2, v26'); a('v_add_u32 v26, %d, v26'%T_R)
    a('ds_write_b32 v26, v24'); a('ds_write_b32 v26, v25 offset:512')
    if colsum:
        a('s_and_b32 s%d, s%d, 1'%(S_T0,S_PW)); a('s_mul_i32 s%d, s%d, 640'%(S_T0,S_T0)); a('s_cmp_lt_u32 s%d, 2'%S_PW); a('s_cselect_b32 s%d, 320, 0'%S_T1)
        a('s_add_u32 s%d, s%d, s%d'%(S_T0,S_T0,S_T1)); a('v_and_b32 v26, 15, v0'); a('v_lshlrev_b32 v26, 2, v26'); a('v_add_u32 v26, s%d, v26'%S_T0); a('v_add_u32 v26, %d, v26'%T_CS0)
        a('s_nop 4')
        lab=a.newlab(name+'_f')
        for j in range(5):
            if j==4: a('s_cmp_lt_u32 s%d, 2'%S_PW); a('s_cbranch_scc1 %s'%lab)
            a('ds_write_b32 v26, v%d offset:%d'%(CACC+4*j,j*64))
        a.lab(lab)

def gen_k1(a,kname):
    kernel_head(a,kname,'K1')
    a('s_load_dwordx2 s[%d:%d], s[0:1], 0'%(S_X,S_X+1))
    a('s_load_dwordx4 s[%d:%d], s[0:1], 24'%(S_WDRE,S_WDRE+3))
    a('s_load_dwordx2 s[%d:%d], s[0:1], 48'%(S_WIN,S_WIN+1))
    a('s_load_dwordx2 s[%d:%d], s[0:1], 88'%(S_DBG,S_DBG+1))
    a('s_load_dwordx2 s[%d:%d], s[0:1], 96'%(S_WS,S_WS+1))
    a('v_lshrrev_b32 v1, 6, v0'); a('v_and_b32 v0, 63, v0'); a('s_nop 0')
    a('v_readfirstlane_b32 s%d, v1'%S_WAVE)
    a('s_and_b32 s%d, s2, 7'%S_XCD); a('s_lshr_b32 s%d, s2, 3'%S_J)
    a('s_lshr_b32 s%d, s%d, 1'%(S_G,S_XCD)); a('s_and_b32 s%d, s%d, 1'%(S_HALF,S_XCD))
    a('s_cmp_ge_u32 s%d, 24'%S_J); a('s_cbranch_scc1 K1A_entry')
    a('s_mul_i32 s%d, s%d, 43'%(S_T0,S_J)); a('s_lshr_b32 s%d, s%d, 8'%(S_T0,S_T0))
    a('s_mul_i32 s%d, s%d, 6'%(S_T1,S_T0)); a('s_sub_u32 s%d, s%d, s%d'%(S_T1,S_J,S_T1))
    a('s_and_b32 s%d, s%d, 1'%(S_PAR,S_T1)); a('s_lshr_b32 s%d, s%d, 1'%(S_T1,S_T1)); a('s_mul_i32 s%d, s%d, 3'%(S_CT,S_HALF)); a('s_add_u32 s%d, s%d, s%d'%(S_CT,S_CT,S_T1))
    a('s_lshl_b32 s%d, s%d, 1'%(S_T1,S_G)); a('s_add_u32 s%d, s%d, s%d'%(S_T2,S_T1,S_T0))
    a('s_sub_u32 s%d, s%d, s%d'%(S_T3,S_T0,S_T1)); a('s_add_u32 s%d, s%d, 12'%(S_T3,S_T3))
    a('s_cmp_lt_u32 s%d, 2'%S_T0); a('s_cselect_b32 s%d, s%d, s%d'%(S_RB,S_T2,S_T3))
    a('s_cmp_ge_u32 s%d, 12'%S_WAVE); a('s_cbranch_scc1 K1Z_work')
    a('s_cmp_ge_u32 s%d, 8'%S_WAVE); a('s_cbranch_scc1 K1Z_prod')
    ACC=16; FA=56; FB=84; XA=[112,113,114,115]; WA=116
    a('s_and_b32 s%d, s%d, 3'%(S_PW,S_WAVE)); a('s_lshr_b32 s%d, s%d, 2'%(S_H,S_WAVE))
    a('v_and_b32 v1, 15, v0'); a('v_lshrrev_b32 v2, 4, v0')
    a('s_lshl_b32 s%d, s%d, 5'%(S_T0,S_PW)); a('v_add_u32 v3, s%d, v1'%S_T0); a('v_lshlrev_b32 v3, 7, v3')
    a('v_lshrrev_b32 v4, 1, v1'); a('v_lshrrev_b32 v5, 1, v2'); a('v_xor_b32 v4, v4, v5')
    a('v_lshl_add_u32 v3, v4, 4, v3'); a('v_and_b32 v5, 1, v2'); a('v_lshl_add_u32 v%d, v5, 3, v3'%XA[0])
    for k in range(1,4): a('v_xor_b32 v%d, %d, v%d'%(XA[k],32*k,XA[0]))
    a('v_lshrrev_b32 v3, 2, v1'); a('v_lshl_add_u32 v3, v2, 2, v3'); a('v_mul_u32_u24 v3, 288, v3'); a('v_and_b32 v4, 3, v1'); a('v_lshl_add_u32 v3, v4, 3, v3')
    a('s_mul_i32 s%d, s%d, 160'%(S_T0,S_H)); a('v_add_u32 v%d, s%d, v3'%(WA,S_T0))
    for k in range(40): a('v_mov_b32 v%d, 0'%(ACC+k))
    def acc(i,j): return ACC+(j*2+i)*4
    a('s_cmp_eq_u32 s%d, s%d'%(S_H,S_PAR)); a('s_cselect_b32 s%d, 0, 2'%S_T0); a('s_add_u32 s%d, s%d, s%d'%(S_T0,S_T0,S_H))
    for t,lab in ((1,'K1c_z2_1'),(2,'K1c_z1_0'),(3,'K1c_z1_1')):
        a('s_cmp_eq_u32 s%d, %d'%(S_T0,t)); a('s_cbranch_scc1 %s'%lab)
    for role in ('z2','z1'):
      for h in range(2):
        nj=5-h; nm='K1c_%s_%d'%(role,h)
        a.lab(nm)
        def rd(st,sub,nj=nj):
            F=FA if st==0 else FB; m=[]
            for i in range(2):
                for b in range(2): m.append('ds_read_b64 %s, v%d offset:%d'%(vr(F+i*4+b*2,2),XA[sub*2+b],i*2048))
            for j in range(nj):
                for b in range(2): m.append('ds_read_b64_tr_b16 %s, v%d offset:%d'%(vr(F+8+j*4+b*2,2),WA,16384+sub*9216+b*4608+j*32))
            return m
        def mf(st,role=role,nj=nj):
            F=FA if st==0 else FB; m=[]
            for j in range(nj):
                for i in range(2):
                    x=vr(F+i*4,4); w=vr(F+8+j*4,4); c=vr(acc(i,j),4)
                    m.append('v_mfma_f32_16x16x32_bf16 %s, %s, %s, %s'%((c,x,w,c) if role=='z2' else (c,w,x,c)))
            return m
        consumer_loop(a,nm+'L',SLZ,NK1,XA+[WA],rd,mf)
        a('s_barrier')
        gc.stamp(a,4)
        C0=112;C1=114;ONE=116
        a('v_mov_b32 v%d, 0x%x'%(C0,f2u(GC0))); a('v_mov_b32 v%d, 0x%x'%(C0+1,f2u(GC0)))
        a('v_mov_b32 v%d, 0x%x'%(C1,f2u(GC1))); a('v_mov_b32 v%d, 0x%x'%(C1+1,f2u(GC1)))
        a('v_mov_b32 v%d, 1.0'%ONE); a('v_mov_b32 v%d, 1.0'%(ONE+1))
        TMP=[56,58,60,62]; prs=[(i,p) for i in range(2) for p in range(2)]
        if role=='z2':
            RR=64; NM=72; CS=80; CSb=86; SUM=92; SQ=100; GRN=56; VO=118; PK=108
            a('s_lshl_b32 s%d, s%d, 7'%(S_T0,S_PW)); a('v_lshlrev_b32 v3, 4, v2'); a('v_add_u32 v3, s%d, v3'%S_T0); a('v_add_u32 v3, %d, v3'%T_R)
            for i in range(2):
                a('ds_read_b128 %s, v3 offset:%d'%(vr(RR+4*i,4),i*64)); a('ds_read_b128 %s, v3 offset:%d'%(vr(NM+4*i,4),512+i*64))
            a('v_lshlrev_b32 v4, 2, v1'); a('v_add_u32 v4, %d, v4'%(T_CS0+h*320))
            for j in range(nj):
                a('ds_read_b32 v%d, v4 offset:%d'%(CS+j,j*64)); a('ds_read_b32 v%d, v4 offset:%d'%(CSb+j,640+j*64))
            for k in range(8): a('v_mov_b32 v%d, 0'%(SUM+k)); a('v_mov_b32 v%d, 0'%(SQ+k))
            add64(a,S_T2,S_WS,WS_GR); srd(a,SRD_G,S_T2,S_T2+1,16*12288)
            a('s_mul_i32 s%d, s%d, 12288'%(S_SO,S_RB))
            a('s_lshl_b32 s%d, s%d, 1'%(S_T0,S_CT)); a('s_add_u32 s%d, s%d, %d'%(S_T0,S_T0,h)); a('s_lshl_b32 s%d, s%d, 10'%(S_T0,S_T0))
            a('s_lshl_b32 s%d, s%d, 8'%(S_T1,S_PW)); a('s_add_u32 s%d, s%d, s%d'%(S_T0,S_T0,S_T1)); a('s_add_u32 s%d, s%d, s%d'%(S_SO2,S_SO,S_T0))
            a('s_waitcnt lgkmcnt(0)')
            for j in range(nj): a('v_add_f32 v%d, v%d, v%d'%(CS+j,CS+j,CSb+j))
            for j in range(nj):
                csr=CS+j; cspair=vr(csr&~1,2); sel=csr&1
                for k,(i,p) in enumerate(prs): a('v_pk_mul_f32 %s, %s, %s op_sel:[0,%d] op_sel_hi:[1,%d]'%(vr(TMP[k],2),vr(NM+4*i+2*p,2),cspair,sel,sel))
                for k,(i,p) in enumerate(prs):
                    r=acc(i,j)+2*p; a('v_pk_fma_f32 %s, %s, %s, %s'%(vr(r,2),vr(r,2),vr(RR+4*i+2*p,2),vr(TMP[k],2)))
                gelu_pairs(a,[acc(i,j)+2*p for (i,p) in prs],TMP,C0,C1,ONE)
                for k,(i,p) in enumerate(prs):
                    r=acc(i,j)+2*p
                    a('v_pk_add_f32 %s, %s, %s'%(vr(SUM+4*i+2*p,2),vr(SUM+4*i+2*p,2),vr(r,2)))
                    a('v_pk_fma_f32 %s, %s, %s, %s'%(vr(SQ+4*i+2*p,2),vr(r,2),vr(r,2),vr(SQ+4*i+2*p,2)))
            gc.stamp(a,5) if False else None
            for sh in (8,4,2):
                for k in range(8): a('v_add_f32_dpp v%d, v%d, v%d row_ror:%d row_mask:0xf bank_mask:0xf'%(SUM+k,SUM+k,SUM+k,sh))
                for k in range(8): a('v_add_f32_dpp v%d, v%d, v%d row_ror:%d row_mask:0xf bank_mask:0xf'%(SQ+k,SQ+k,SQ+k,sh))
            for k in range(8): a('v_add_f32_dpp v%d, v%d, v%d row_ror:1 row_mask:0xf bank_mask:0xf'%(GRN+2*k,SUM+k,SUM+k))
            for k in range(8): a('v_add_f32_dpp v%d, v%d, v%d row_ror:1 row_mask:0xf bank_mask:0xf'%(GRN+2*k+1,SQ+k,SQ+k))
            a('v_lshlrev_b32 v3, 5, v2'); a('v_cmp_eq_u32 vcc, 0, v1'); a('s_and_saveexec_b64 s[%d:%d], vcc'%(S_EX,S_EX+1))
            for i in range(2):
                for p in range(2): a('buffer_store_dwordx4 %s, v3, s[%d:%d], s%d offen offset:%d sc1'%(vr(GRN+8*i+4*p,4),SRD_G,SRD_G+3,S_SO2,i*128+p*16))
            a('s_mov_b64 exec, s[%d:%d]'%(S_EX,S_EX+1))
            PL=72
            a('v_and_b32 v4, 31, v0'); a('v_lshrrev_b32 v5, 5, v0'); a('v_mul_u32_u24 v5, 6144, v5'); a('v_lshl_add_u32 v4, v4, 3, v5')
            a('s_lshl_b32 s%d, s%d, 8'%(S_T1,S_PW)); a('v_add_u32 v4, s%d, v4'%S_T1); a('v_add_u32 v5, 4096, v4')
            a('s_mov_b32 s%d, 0'%S_I)
            a.lab(nm+'_poll')
            for k in range(6): a('buffer_load_dwordx2 %s, v%d, s[%d:%d], s%d offen offset:%d sc1'%(vr(PL+2*k,2),4 if k<4 else 5,SRD_G,SRD_G+3,S_SO,(k%4)*1024))
            a('s_waitcnt vmcnt(0)')
            a('v_max3_u32 v6, v%d, v%d, v%d'%(PL,PL+1,PL+2))
            for k in range(3,12,2):
                a('v_max3_u32 v6, v6, v%d, v%d'%(PL+k,PL+k+1) if k+1<12 else 'v_max_u32 v6, v6, v%d'%(PL+k))
            a('v_cmp_eq_u32 s[%d:%d], -1, v6'%(S_EX,S_EX+1)); a('s_nop 1'); a('s_cmp_eq_u64 s[%d:%d], 0'%(S_EX,S_EX+1)); a('s_cbranch_scc1 %s_rdy'%nm)
            a('s_add_u32 s%d, s%d, 1'%(S_I,S_I)); a('s_cmp_lt_u32 s%d, %d'%(S_I,POLL_BOUND)); a('s_cbranch_scc1 %s_poll'%nm)
            a.lab(nm+'_rdy')
            gc.stamp(a,5) if False else None
            a('v_pk_add_f32 %s, %s, %s'%(vr(PL,2),vr(PL,2),vr(PL+2,2))); a('v_pk_add_f32 %s, %s, %s'%(vr(PL+4,2),vr(PL+4,2),vr(PL+6,2))); a('v_pk_add_f32 %s, %s, %s'%(vr(PL+8,2),vr(PL+8,2),vr(PL+10,2)))
            a('v_pk_add_f32 %s, %s, %s'%(vr(PL,2),vr(PL,2),vr(PL+4,2))); a('v_pk_add_f32 %s, %s, %s'%(vr(PL,2),vr(PL,2),vr(PL+8,2)))
            a('v_mov_b32 v%d, v%d'%(PL+2,PL)); a('v_mov_b32 v%d, v%d'%(PL+3,PL+1)); a('s_nop 1')
            a('v_permlane32_swap_b32 v%d, v%d'%(PL,PL+2)); a('v_permlane32_swap_b32 v%d, v%d'%(PL+1,PL+3)); a('s_nop 1')
            a('v_pk_add_f32 %s, %s, %s'%(vr(PL,2),vr(PL,2),vr(PL+2,2)))
            a('v_mul_f32 v%d, 0x%x, v%d'%(PL,f2u(1.0/864),PL)); a('v_mul_f32 v%d, 0x%x, v%d'%(PL+1,f2u(1.0/864),PL+1))
            a('v_fma_f32 v%d, -v%d, v%d, v%d'%(PL+1,PL,PL,PL+1)); a('v_max_f32 v%d, 0, v%d'%(PL+1,PL+1)); a('v_add_f32 v%d, 0x%x, v%d'%(PL+1,f2u(1e-5),PL+1))
            a('v_rsq_f32 v%d, v%d'%(PL+2,PL+1)); a('s_nop 0'); a('v_mul_f32 v%d, v%d, v%d'%(PL+3,PL,PL+2)); a('v_sub_f32 v%d, 0, v%d'%(PL+3,PL+3))
            a('s_lshl_b32 s%d, s%d, 8'%(S_T0,S_WAVE)); a('s_add_u32 s%d, s%d, %d'%(S_T0,S_T0,T_W2))
            a('v_and_b32 v4, 31, v0'); a('v_lshlrev_b32 v4, 2, v4'); a('v_add_u32 v4, s%d, v4'%S_T0)
            a('ds_write_b32 v4, v%d'%(PL+2)); a('ds_write_b32 v4, v%d offset:128'%(PL+3))
            a('v_lshlrev_b32 v5, 4, v2'); a('v_add_u32 v5, s%d, v5'%S_T0)
            a('s_waitcnt lgkmcnt(0)')
            for i in range(2):
                a('ds_read_b128 %s, v5 offset:%d'%(vr(RR+4*i,4),i*64)); a('ds_read_b128 %s, v5 offset:%d'%(vr(84+4*i,4),128+i*64))
            NM2=84
            a('s_mul_i32 s%d, s%d, %d'%(S_T0,S_CT,Z2_CT)); a('s_lshl_b32 s%d, s%d, 1'%(S_T1,S_RB)); a('s_lshr_b32 s%d, s%d, 1'%(S_T2,S_PW))
            a('s_add_u32 s%d, s%d, s%d'%(S_T1,S_T1,S_T2)); a('s_mul_i32 s%d, s%d, 18432'%(S_T1,S_T1)); a('s_add_u32 s%d, s%d, s%d'%(S_T0,S_T0,S_T1))
            a('s_and_b32 s%d, s%d, 1'%(S_T1,S_PW)); a('s_mul_i32 s%d, s%d, 9216'%(S_T1,S_T1)); a('s_add_u32 s%d, s%d, s%d'%(S_T0,S_T0,S_T1))
            a('s_add_u32 s%d, s%d, %d'%(S_SO,S_T0,5120*h))
            srd(a,SRD_O,S_WS,S_WS+1,6*Z2_CT)
            a('v_lshlrev_b32 v%d, 4, v0'%VO)
            a('s_waitcnt lgkmcnt(0)')
            for j in range(nj):
                for k,(i,p) in enumerate(prs):
                    r=acc(i,j)+2*p; a('v_pk_fma_f32 %s, %s, %s, %s'%(vr(r,2),vr(r,2),vr(RR+4*i+2*p,2),vr(NM2+4*i+2*p,2)))
                o=PK+4*(j&1)
                for k,(i,p) in enumerate(prs):
                    r=acc(i,j)+2*p; a('v_cvt_pk_bf16_f32 v%d, v%d, v%d'%(o+k,r,r+1))
                a('s_nop 1')
                a('v_permlane32_swap_b32 v%d, v%d'%(o,o+2)); a('v_permlane32_swap_b32 v%d, v%d'%(o+1,o+3)); a('s_nop 1')
                a('v_permlane16_swap_b32 v%d, v%d'%(o,o+2)); a('v_permlane16_swap_b32 v%d, v%d'%(o+1,o+3))
                if j<4: a('buffer_store_dwordx4 %s, v%d, s[%d:%d], s%d offen offset:%d%s'%(vr(o,4),VO,SRD_O,SRD_O+3,S_SO,j*1024,g2.STF))
                else:
                    a('s_add_u32 s%d, s%d, 4096'%(S_SO,S_SO)); a('buffer_store_dwordx4 %s, v%d, s[%d:%d], s%d offen%s'%(vr(o,4),VO,SRD_O,SRD_O+3,S_SO,g2.STF))
            a('s_branch K1_end')
        else:
            RR=64; NM=66; CS=68; CSb=88; PK=100; VO=118
            a('s_lshl_b32 s%d, s%d, 7'%(S_T0,S_PW)); a('v_lshlrev_b32 v3, 2, v1'); a('v_add_u32 v3, s%d, v3'%S_T0); a('v_add_u32 v3, %d, v3'%T_R)
            for i in range(2):
                a('ds_read_b32 v%d, v3 offset:%d'%(RR+i,i*64)); a('ds_read_b32 v%d, v3 offset:%d'%(NM+i,512+i*64))
            a('v_lshlrev_b32 v4, 4, v2'); a('v_add_u32 v4, %d, v4'%(T_CS0+320*h))
            for j in range(nj):
                a('ds_read_b128 %s, v4 offset:%d'%(vr(CS+4*j,4),j*64)); a('ds_read_b128 %s, v4 offset:%d'%(vr(CSb+4*j,4),640+j*64))
            a('s_mul_i32 s%d, s%d, 6'%(S_T0,S_RB)); a('s_add_u32 s%d, s%d, s%d'%(S_T0,S_T0,S_CT)); a('s_lshl_b32 s%d, s%d, 3'%(S_T0,S_T0))
            a('s_add_u32 s%d, s%d, s%d'%(S_T0,S_T0,S_WAVE)); a('s_mul_i32 s%d, s%d, 5120'%(S_SO,S_T0))
            add64(a,S_T2,S_WS,WS_Z1); srd(a,SRD_O,S_T2,S_T2+1,96*40960)
            a('v_lshlrev_b32 v%d, 4, v0'%VO)
            a('s_waitcnt lgkmcnt(0)')
            for j in range(nj):
                for p in range(2): a('v_pk_add_f32 %s, %s, %s'%(vr(CS+4*j+2*p,2),vr(CS+4*j+2*p,2),vr(CSb+4*j+2*p,2)))
            for j in range(nj):
                for k,(i,p) in enumerate(prs): a('v_pk_mul_f32 %s, %s, %s op_sel:[0,%d] op_sel_hi:[1,%d]'%(vr(TMP[k],2),vr(CS+4*j+2*p,2),vr(NM,2),i,i))
                for k,(i,p) in enumerate(prs):
                    r=acc(i,j)+2*p; a('v_pk_fma_f32 %s, %s, %s, %s op_sel:[0,%d,0] op_sel_hi:[1,%d,1]'%(vr(r,2),vr(r,2),vr(RR,2),vr(TMP[k],2),i,i))
                gelu_pairs(a,[acc(i,j)+2*p for (i,p) in prs],TMP,C0,C1,ONE)
                o=PK+4*(j&1)
                for k,(i,p) in enumerate(prs):
                    r=acc(i,j)+2*p; a('v_cvt_pk_bf16_f32 v%d, v%d, v%d'%(o+k,r,r+1))
                if j<4: a('buffer_store_dwordx4 %s, v%d, s[%d:%d], s%d offen offset:%d%s'%(vr(o,4),VO,SRD_O,SRD_O+3,S_SO,j*1024,g2.STF))
                else:
                    a('s_add_u32 s%d, s%d, 4096'%(S_SO,S_SO)); a('buffer_store_dwordx4 %s, v%d, s[%d:%d], s%d offen%s'%(vr(o,4),VO,SRD_O,SRD_O+3,S_SO,g2.STF))
            a('s_branch K1_end')
    a.lab('K1Z_prod')
    XO=[2,3]; WO=[4,5,6,7,8]
    a('s_sub_u32 s%d, s%d, 8'%(S_PW,S_WAVE))
    a('v_lshrrev_b32 v20, 3, v0'); a('s_lshl_b32 s%d, s%d, 5'%(S_T0,S_PW)); a('v_add_u32 v21, s%d, v20'%S_T0); a('v_mul_u32_u24 v21, 1280, v21')
    a('v_and_b32 v22, 7, v0'); a('v_lshrrev_b32 v23, 4, v0'); a('v_xor_b32 v22, v22, v23')
    a('v_lshl_add_u32 v%d, v22, 4, v21'%XO[0]); a('v_xor_b32 v22, 4, v22'); a('v_lshl_add_u32 v%d, v22, 4, v21'%XO[1])
    a('s_mul_i32 s%d, s%d, 288'%(S_T0,S_CT)); a('s_cmp_eq_u32 s%d, 0'%S_PAR); a('s_cselect_b32 s%d, 1728, 0'%S_T1); a('s_cselect_b32 s%d, 0, 1728'%S_T2)
    a('s_add_u32 s%d, s%d, s%d'%(S_T1,S_T1,S_T0)); a('s_add_u32 s%d, s%d, s%d'%(S_T2,S_T2,S_T0))
    a('v_mov_b32 v24, s%d'%S_T1); a('v_mov_b32 v25, s%d'%S_T2)
    for i in range(5):
        a('s_lshl_b32 s%d, s%d, 6'%(S_T0,S_PW)); a('s_add_u32 s%d, s%d, %d'%(S_T0,S_T0,256*i)); a('v_add_u32 v20, s%d, v0'%S_T0)
        a('v_mul_u32_u24 v21, 3641, v20'); a('v_lshrrev_b32 v21, 16, v21')
        a('v_mul_u32_u24 v22, 18, v21'); a('v_sub_u32 v22, v20, v22'); a('v_cmp_gt_u32 vcc, 10, v22'); a('v_mul_u32_u24 v21, 3456, v21'); a('v_lshl_add_u32 v21, v22, 4, v21')
        a('v_cndmask_b32 v23, v25, v24, vcc'); a('v_add_u32 v%d, v21, v23'%WO[i])
    a('s_mov_b32 s%d, 0'%S_SLI); a('s_mov_b32 s%d, 0'%S_KX); a('s_mov_b32 s%d, 0'%S_KW)
    a('s_waitcnt lgkmcnt(0)')
    a('s_mul_i32 s%d, s%d, %d'%(S_T0,S_RB,128*1280)); add64(a,S_X,S_X,'s%d'%S_T0); srd(a,SRD_X,S_X,S_X+1,128*1280)
    srd(a,SRD_W,S_WIN,S_WIN+1,640*3456)
    def issueZ():
        a('s_lshl_b32 s%d, s%d, 12'%(S_T,S_PW)); a('s_add_u32 s%d, s%d, s%d'%(S_T,S_T,S_SLI))
        for j in range(4):
            a('s_add_u32 m0, s%d, %d'%(S_T,j*1024)); a('s_add_u32 s%d, s%d, %d'%(S_SO,S_KX,j*10240))
            a('buffer_load_dwordx4 v%d, s[%d:%d], s%d offen lds'%(XO[j&1],SRD_X,SRD_X+3,S_SO))
        a('s_lshl_b32 s%d, s%d, 10'%(S_T,S_PW)); a('s_add_u32 s%d, s%d, s%d'%(S_T,S_T,S_SLI))
        lab=a.newlab('K1Zp_s')
        for i in range(5):
            if i==4: a('s_cmp_lt_u32 s%d, 2'%S_PW); a('s_cbranch_scc0 %s'%lab)
            a('s_add_u32 m0, s%d, %d'%(S_T,16384+i*4096)); a('s_nop 0')
            a('buffer_load_dwordx4 v%d, s[%d:%d], s%d offen lds'%(WO[i],SRD_W,SRD_W+3,S_KW))
        a.lab(lab)
        slot_advance(a,S_SLI,SLZ); a('s_add_u32 s%d, s%d, 128'%(S_KX,S_KX)); a('s_add_u32 s%d, s%d, %d'%(S_KW,S_KW,64*3456))
    dma_producer(a,'K1Zp',NK1,8,issueZ)
    a('s_branch K1_end')
    a.lab('K1Z_work')
    a('s_sub_u32 s%d, s%d, 12'%(S_PW,S_WAVE))
    a('s_waitcnt lgkmcnt(0)')
    add64(a,S_T2,S_WS,WS_GR); srd(a,SRD_G,S_T2,S_T2+1,16*12288)
    srd(a,SRD_D,S_DBG,S_DBG+1,256)
    a('s_cmp_eq_u32 s%d, 0'%S_PW); a('s_cbranch_scc0 K1Zw_noclr')
    a('s_mul_i32 s%d, s%d, 12288'%(S_SO,S_RB)); a('s_lshl_b32 s%d, s%d, 1'%(S_T0,S_CT)); a('s_add_u32 s%d, s%d, s%d'%(S_T0,S_T0,S_PAR)); a('s_lshl_b32 s%d, s%d, 10'%(S_T0,S_T0))
    a('s_add_u32 s%d, s%d, s%d'%(S_SO,S_SO,S_T0))
    for k in range(4): a('v_mov_b32 v%d, -1'%(4+k))
    a('v_lshlrev_b32 v3, 4, v0')
    a('buffer_store_dwordx4 v[4:7], v3, s[%d:%d], s%d offen sc1'%(SRD_G,SRD_G+3,S_SO))
    a('s_waitcnt vmcnt(0)')
    a('v_mov_b32 v4, 1'); a('s_lshl_b32 s%d, s%d, 4'%(S_T0,S_RB)); a('v_mov_b32 v3, s%d'%S_T0)
    a('v_cmp_eq_u32 vcc, 0, v0'); a('s_and_saveexec_b64 s[%d:%d], vcc'%(S_EX,S_EX+1))
    a('buffer_atomic_add v4, v3, s[%d:%d], 0 offen sc1'%(SRD_D,SRD_D+3))
    a('s_mov_b64 exec, s[%d:%d]'%(S_EX,S_EX+1))
    a.lab('K1Zw_noclr')
    worker(a,'K1Zw',SLZ,True)
    a('s_cmp_eq_u32 s%d, 0'%S_PW); a('s_cbranch_scc0 K1Zw_nopoll')
    a('s_lshl_b32 s%d, s%d, 4'%(S_T0,S_RB)); a('v_mov_b32 v3, s%d'%S_T0); a('s_mov_b32 s%d, 0'%S_I)
    a.lab('K1Zw_poll')
    a('buffer_load_dword v4, v3, s[%d:%d], 0 offen sc1'%(SRD_D,SRD_D+3)); a('s_waitcnt vmcnt(0)')
    a('v_readfirstlane_b32 s%d, v4'%S_T1); a('s_nop 3'); a('s_cmp_ge_u32 s%d, 12'%S_T1); a('s_cbranch_scc1 K1Zw_nopoll')
    a('s_add_u32 s%d, s%d, 1'%(S_I,S_I)); a('s_cmp_lt_u32 s%d, %d'%(S_I,POLL_BOUND)); a('s_cbranch_scc1 K1Zw_poll')
    a.lab('K1Zw_nopoll')
    a('s_waitcnt lgkmcnt(0)'); a('s_barrier'); a('s_branch K1_end')

    a.lab('K1A_entry')
    a('s_sub_u32 s%d, s%d, 24'%(S_T0,S_J)); a('s_lshr_b32 s%d, s%d, 1'%(S_T1,S_T0)); a('s_and_b32 s%d, s%d, 1'%(S_CT,S_T0))
    a('s_lshl_b32 s%d, s%d, 2'%(S_RB,S_G)); a('s_add_u32 s%d, s%d, s%d'%(S_RB,S_RB,S_T1))
    a('s_cmp_ge_u32 s%d, 12'%S_WAVE); a('s_cbranch_scc1 K1A_work')
    a('s_cmp_ge_u32 s%d, 8'%S_WAVE); a('s_cbranch_scc1 K1A_prod')
    ACC=16; FA=56; FB=84; XA=[112,113]; WA2=[114,115]
    a('s_and_b32 s%d, s%d, 3'%(S_PW,S_WAVE)); a('s_lshr_b32 s%d, s%d, 2'%(S_H,S_WAVE))
    a('v_and_b32 v1, 15, v0'); a('v_lshrrev_b32 v2, 4, v0'); a('v_and_b32 v3, 7, v0'); a('v_xor_b32 v3, v3, v2'); a('v_lshlrev_b32 v3, 4, v3')
    a('v_lshl_add_u32 v3, v1, 7, v3')
    a('s_lshl_b32 s%d, s%d, 11'%(S_T0,S_PW)); a('v_add_u32 v%d, s%d, v3'%(XA[0],S_T0)); a('v_xor_b32 v%d, 64, v%d'%(XA[1],XA[0]))
    a('s_mul_i32 s%d, s%d, %d'%(S_T0,S_H,80*128)); a('s_add_u32 s%d, s%d, 16384'%(S_T0,S_T0)); a('v_add_u32 v%d, s%d, v3'%(WA2[0],S_T0)); a('v_xor_b32 v%d, 64, v%d'%(WA2[1],WA2[0]))
    for k in range(40): a('v_mov_b32 v%d, 0'%(ACC+k))
    def accA(tb,j): return ACC+(j*2+tb)*4
    def rdA(st,sub):
        F=FA if st==0 else FB; m=[]
        for tb in range(2): m.append('ds_read_b128 %s, v%d offset:%d'%(vr(F+tb*4,4),XA[sub],tb*8192))
        for j in range(5): m.append('ds_read_b128 %s, v%d offset:%d'%(vr(F+8+j*4,4),WA2[sub],j*2048))
        return m
    def mfA(st):
        F=FA if st==0 else FB; m=[]
        for j in range(5):
            for tb in range(2):
                c=vr(accA(tb,j),4); m.append('v_mfma_f32_16x16x32_bf16 %s, %s, %s, %s'%(c,vr(F+tb*4,4),vr(F+8+j*4,4),c))
        return m
    consumer_loop(a,'K1A',SLA,NK1,XA+WA2,rdA,mfA)
    a('s_barrier')
    gc.stamp(a,4)
    RT=56; RB_=60; RO=64; T4=[66,68]; PK=70; VO=76
    a('s_lshl_b32 s%d, s%d, 6'%(S_T0,S_PW)); a('v_lshlrev_b32 v3, 4, v2'); a('v_add_u32 v3, s%d, v3'%S_T0); a('v_add_u32 v3, %d, v3'%T_R)
    a('ds_read_b128 %s, v3'%vr(RT,4)); a('ds_read_b128 %s, v3 offset:256'%vr(RB_,4))
    a('s_mul_i32 s%d, s%d, %d'%(S_T0,S_HALF,AE_MAT)); a('s_lshl_b32 s%d, s%d, 1'%(S_T1,S_CT)); a('s_add_u32 s%d, s%d, s%d'%(S_T1,S_T1,S_H))
    a('s_mul_i32 s%d, s%d, 163840'%(S_T1,S_T1)); a('s_add_u32 s%d, s%d, s%d'%(S_T0,S_T0,S_T1)); a('s_mul_i32 s%d, s%d, 10240'%(S_T1,S_RB))
    a('s_add_u32 s%d, s%d, s%d'%(S_T0,S_T0,S_T1)); a('s_lshr_b32 s%d, s%d, 1'%(S_T1,S_PW)); a('s_mul_i32 s%d, s%d, 5120'%(S_T1,S_T1)); a('s_add_u32 s%d, s%d, s%d'%(S_SO,S_T0,S_T1))
    add64(a,S_T2,S_WS,WS_AE); srd(a,SRD_O,S_T2,S_T2+1,2*AE_MAT)
    a('s_and_b32 s%d, s%d, 1'%(S_T0,S_PW)); a('s_lshl_b32 s%d, s%d, 9'%(S_T0,S_T0))
    a('v_lshrrev_b32 v3, 1, v2'); a('v_lshlrev_b32 v3, 8, v3'); a('v_lshl_add_u32 v3, v1, 4, v3'); a('v_and_b32 v4, 1, v2'); a('v_lshl_add_u32 v3, v4, 3, v3')
    a('v_add_u32 v%d, s%d, v3'%(VO,S_T0))
    a('s_waitcnt lgkmcnt(0)')
    a('s_or_b32 s%d, s%d, s%d'%(S_T0,S_RB,S_PW)); a('s_or_b32 s%d, s%d, s%d'%(S_T0,S_T0,S_HALF)); a('s_cmp_eq_u32 s%d, 0'%S_T0); a('s_cbranch_scc0 K1A_nosp')
    add64(a,S_T2,S_WS,WS_A1024); srd(a,SRD_O2,S_T2,S_T2+1,1280)
    a('s_mul_i32 s%d, s%d, 640'%(S_T0,S_CT)); a('s_mul_i32 s%d, s%d, 320'%(S_T1,S_H)); a('s_add_u32 s%d, s%d, s%d'%(S_T0,S_T0,S_T1))
    a('v_lshlrev_b32 v5, 2, v1')
    a('v_cmp_gt_u32 vcc, 16, v0'); a('s_and_saveexec_b64 s[%d:%d], vcc'%(S_EX,S_EX+1))
    for j in range(5):
        a('v_mul_f32 v%d, v%d, v%d'%(RO,accA(1,j),RB_))
        a('buffer_store_dword v%d, v5, s[%d:%d], s%d offen offset:%d%s'%(RO,SRD_O2,SRD_O2+3,S_T0,j*64,g2.STF)); a('s_nop 0')
    a('v_mov_b32 v%d, 0'%RB_)
    a('s_mov_b64 exec, s[%d:%d]'%(S_EX,S_EX+1))
    a.lab('K1A_nosp')
    a('s_cmp_eq_u32 s%d, 0'%S_HALF); a('s_cselect_b32 s%d, 1.0, -1.0'%S_T0)
    for k in range(4): a('v_mul_f32 v%d, s%d, v%d'%(RB_+k,S_T0,RB_+k))
    for j in range(5):
        for p in range(2): a('v_pk_mul_f32 %s, %s, %s'%(vr(T4[p],2),vr(accA(1,j)+2*p,2),vr(RB_+2*p,2)))
        for p in range(2): a('v_pk_fma_f32 %s, %s, %s, %s'%(vr(T4[p],2),vr(accA(0,j)+2*p,2),vr(RT+2*p,2),vr(T4[p],2)))
        for p in range(2): a('v_cvt_pk_bf16_f32 v%d, v%d, v%d'%(PK+p+2*(j&1),T4[p],T4[p]+1))
        if j<4: a('buffer_store_dwordx2 %s, v%d, s[%d:%d], s%d offen offset:%d%s'%(vr(PK+2*(j&1),2),VO,SRD_O,SRD_O+3,S_SO,j*1024,g2.STF))
        else:
            a('s_add_u32 s%d, s%d, 4096'%(S_SO,S_SO)); a('buffer_store_dwordx2 %s, v%d, s[%d:%d], s%d offen%s'%(vr(PK+2*(j&1),2),VO,SRD_O,SRD_O+3,S_SO,g2.STF))
    a('s_branch K1_end')
    a.lab('K1A_prod')
    XO4=[2,3,4,5]; WO1=6
    a('s_sub_u32 s%d, s%d, 8'%(S_PW,S_WAVE))
    a('v_lshrrev_b32 v20, 3, v0'); a('v_and_b32 v22, 7, v0'); a('v_xor_b32 v22, v22, v20'); a('v_lshlrev_b32 v22, 4, v22')
    a('s_lshl_b32 s%d, s%d, 6'%(S_T0,S_RB))
    a('s_cmp_lt_u32 s%d, 2'%S_PW); a('s_cbranch_scc0 K1Ap_bot')
    a('s_lshl_b32 s%d, s%d, 5'%(S_T1,S_PW)); a('s_add_u32 s%d, s%d, s%d'%(S_T1,S_T1,S_T0))
    for j in range(4):
        a('v_add_u32 v21, s%d, v20'%S_T1); a('v_add_u32 v21, %d, v21'%(8*j)); a('v_mul_u32_u24 v21, 1280, v21'); a('v_add_u32 v%d, v21, v22'%XO4[j])
    a('s_branch K1Ap_xd')
    a.lab('K1Ap_bot')
    a('s_sub_u32 s%d, s%d, 2'%(S_T1,S_PW)); a('s_lshl_b32 s%d, s%d, 5'%(S_T1,S_T1)); a('s_add_u32 s%d, s%d, s%d'%(S_T1,S_T1,S_T0)); a('s_sub_u32 s%d, 2048, s%d'%(S_T1,S_T1))
    for j in range(4):
        a('v_sub_u32 v21, s%d, v20'%S_T1); a('v_subrev_u32 v21, %d, v21'%(8*j))
        if j==0:
            a('v_cmp_eq_u32 vcc, 2048, v21'); a('v_mov_b32 v23, 1024'); a('s_nop 0'); a('v_cndmask_b32 v21, v21, v23, vcc')
        a('v_mul_u32_u24 v21, 1280, v21'); a('v_add_u32 v%d, v21, v22'%XO4[j])
    a.lab('K1Ap_xd')
    a('s_mul_i32 s%d, s%d, 40'%(S_T0,S_PW)); a('v_add_u32 v21, s%d, v20'%S_T0); a('v_mul_u32_u24 v21, 1280, v21'); a('v_add_u32 v%d, v21, v22'%WO1)
    a('s_mov_b32 s%d, 0'%S_SLI); a('s_mov_b32 s%d, 0'%S_KX)
    a('s_waitcnt lgkmcnt(0)')
    srd(a,SRD_X,S_X,S_X+1,2048*1280)
    a('s_cmp_eq_u32 s%d, 0'%S_HALF); a('s_cselect_b32 s%d, s%d, s%d'%(S_T2,S_WDRE,S_WDIM)); a('s_cselect_b32 s%d, s%d, s%d'%(S_T3,S_WDRE+1,S_WDIM+1))
    a('s_mul_i32 s%d, s%d, %d'%(S_T0,S_CT,160*1280)); a('s_add_u32 s%d, s%d, 1280'%(S_T0,S_T0)); add64(a,S_T2,S_T2,'s%d'%S_T0)
    srd(a,SRD_W,S_T2,S_T2+1,160*1280)
    def issueA():
        a('s_lshl_b32 s%d, s%d, 12'%(S_T,S_PW)); a('s_add_u32 s%d, s%d, s%d'%(S_T,S_T,S_SLI))
        for j in range(4):
            a('s_add_u32 m0, s%d, %d'%(S_T,j*1024)); a('s_nop 0')
            a('buffer_load_dwordx4 v%d, s[%d:%d], s%d offen lds'%(XO4[j],SRD_X,SRD_X+3,S_KX))
        a('s_mul_i32 s%d, s%d, 5120'%(S_T,S_PW)); a('s_add_u32 s%d, s%d, s%d'%(S_T,S_T,S_SLI))
        for j in range(5):
            a('s_add_u32 m0, s%d, %d'%(S_T,16384+j*1024)); a('s_add_u32 s%d, s%d, %d'%(S_SO,S_KX,j*10240))
            a('buffer_load_dwordx4 v%d, s[%d:%d], s%d offen lds'%(WO1,SRD_W,SRD_W+3,S_SO))
        slot_advance(a,S_SLI,SLA); a('s_add_u32 s%d, s%d, 128'%(S_KX,S_KX))
    dma_producer(a,'K1Ap',NK1,9,issueA)
    a('s_branch K1_end')
    a.lab('K1A_work')
    a('s_sub_u32 s%d, s%d, 12'%(S_PW,S_WAVE))
    a('s_waitcnt lgkmcnt(0)')
    worker(a,'K1Aw',SLA,False)
    a('s_waitcnt lgkmcnt(0)'); a('s_barrier')
    kernel_tail(a,'K1',0,S_WS)
```

```python
from g2_common import *
import g2_common as g2
SLG=34816; SLT=28672
K2_LDS=NS*SLG
NK2=16
S_WSP=4; S_WS=6; S_WSRE=8; S_WSIM=10; S_BSP=12
SRD_A=16; SRD_B=20; SRD_O=24; SRD_O2=28; SRD_C=56; SRD_D=60
S_KH=36; S_TB=37

def gen_k2(a,kname):
    kernel_head(a,kname,'K2')
    a('s_load_dwordx4 s[%d:%d], s[0:1], 8'%(S_WSRE,S_WSRE+3))
    a('s_load_dwordx2 s[%d:%d], s[0:1], 56'%(S_WSP,S_WSP+1))
    a('s_load_dwordx2 s[%d:%d], s[0:1], 64'%(S_BSP,S_BSP+1))
    a('s_load_dwordx2 s[%d:%d], s[0:1], 96'%(S_WS,S_WS+1))
    a('v_lshrrev_b32 v1, 6, v0'); a('v_and_b32 v0, 63, v0'); a('s_nop 0')
    a('v_readfirstlane_b32 s%d, v1'%S_WAVE)
    a('s_and_b32 s%d, s2, 7'%S_XCD); a('s_lshr_b32 s%d, s2, 3'%S_J)
    a('s_and_b32 s%d, s%d, 1'%(S_KH,S_XCD))
    a('s_cmp_ge_u32 s%d, 24'%S_J); a('s_cbranch_scc1 K2T_entry')
    a('s_mul_i32 s%d, s%d, 43'%(S_T0,S_J)); a('s_lshr_b32 s%d, s%d, 8'%(S_T0,S_T0))
    a('s_mul_i32 s%d, s%d, 6'%(S_T1,S_T0)); a('s_sub_u32 s%d, s%d, s%d'%(S_CT,S_J,S_T1))
    a('s_lshr_b32 s%d, s%d, 1'%(S_T1,S_XCD)); a('s_lshl_b32 s%d, s%d, 2'%(S_T1,S_T1)); a('s_add_u32 s%d, s%d, s%d'%(S_TB,S_T1,S_T0))
    a('s_cmp_ge_u32 s%d, 8'%S_WAVE); a('s_cbranch_scc1 K2G_prod')
    ACC=16; FA=56; FB=84; WA=[112,113]; ZA=114; Z1L=[2,6,10,116,120]; BB=124
    a('s_and_b32 s%d, s%d, 3'%(S_PW,S_WAVE)); a('s_lshr_b32 s%d, s%d, 2'%(S_H,S_WAVE))
    a('v_and_b32 v6, 15, v0'); a('v_lshrrev_b32 v7, 4, v0'); a('v_and_b32 v8, 7, v0'); a('v_xor_b32 v8, v8, v7'); a('v_lshlrev_b32 v8, 4, v8')
    a('v_lshl_add_u32 v8, v6, 7, v8'); a('s_lshl_b32 s%d, s%d, 12'%(S_T0,S_PW)); a('v_add_u32 v%d, s%d, v8'%(WA[0],S_T0)); a('v_xor_b32 v%d, 64, v%d'%(WA[1],WA[0]))
    a('s_mul_i32 s%d, s%d, 5120'%(S_T0,S_H)); a('s_add_u32 s%d, s%d, 16384'%(S_T0,S_T0)); a('v_lshlrev_b32 v14, 4, v0'); a('v_add_u32 v%d, s%d, v14'%(ZA,S_T0))
    for k in range(40): a('v_mov_b32 v%d, 0'%(ACC+k))
    a('s_mul_i32 s%d, s%d, 6'%(S_T0,S_TB)); a('s_add_u32 s%d, s%d, s%d'%(S_T0,S_T0,S_CT)); a('s_lshl_b32 s%d, s%d, 3'%(S_T0,S_T0))
    a('s_add_u32 s%d, s%d, s%d'%(S_T0,S_T0,S_WAVE)); a('s_mul_i32 s%d, s%d, 5120'%(S_SO,S_T0))
    a('s_lshl_b32 s%d, s%d, 7'%(S_T0,S_TB)); a('s_lshl_b32 s%d, s%d, 5'%(S_T1,S_PW)); a('s_add_u32 s%d, s%d, s%d'%(S_T0,S_T0,S_T1))
    a('v_add_u32 v15, s%d, v6'%S_T0); a('v_lshlrev_b32 v15, 1, v15')
    a('s_waitcnt lgkmcnt(0)')
    add64(a,S_T2,S_WS,WS_Z1); srd(a,SRD_C,S_T2,S_T2+1,96*40960)
    srd(a,SRD_O2,S_BSP,S_BSP+1,4096)
    def acc(i,j): return ACC+(j*2+i)*4
    a('s_cmp_eq_u32 s%d, 0'%S_H); a('s_cbranch_scc0 K2Gc_1')
    for h in range(2):
        nj=5-h; nm='K2Gc_%d'%h
        a.lab(nm)
        for j in range(min(nj,4)): a('buffer_load_dwordx4 %s, v14, s[%d:%d], s%d offen offset:%d'%(vr(Z1L[j],4),SRD_C,SRD_C+3,S_SO,j*1024))
        if nj==5:
            a('s_add_u32 s%d, s%d, 4096'%(S_SO,S_SO)); a('buffer_load_dwordx4 %s, v14, s[%d:%d], s%d offen'%(vr(Z1L[4],4),SRD_C,SRD_C+3,S_SO))
        a('buffer_load_ushort v%d, v15, s[%d:%d], 0 offen'%(BB,SRD_O2,SRD_O2+3)); a('buffer_load_ushort v%d, v15, s[%d:%d], 0 offen offset:32'%(BB+1,SRD_O2,SRD_O2+3))
        def rd(st,sub,nj=nj):
            F=FA if st==0 else FB; m=[]
            for i in range(2): m.append('ds_read_b128 %s, v%d offset:%d'%(vr(F+i*4,4),WA[sub],i*2048))
            for j in range(nj): m.append('ds_read_b128 %s, v%d offset:%d'%(vr(F+8+j*4,4),ZA,sub*9216+j*1024))
            return m
        def mf(st,nj=nj):
            F=FA if st==0 else FB; m=[]
            for j in range(nj):
                for i in range(2):
                    c=vr(acc(i,j),4); m.append('v_mfma_f32_16x16x32_bf16 %s, %s, %s, %s'%(c,vr(F+8+j*4,4),vr(F+i*4,4),c))
            return m
        consumer_loop(a,nm+'L',SLG,NK2,WA+[ZA],rd,mf)
        a('s_waitcnt vmcnt(0)')
        a('s_cmp_eq_u32 s%d, 0'%S_KH); a('s_cselect_b32 s%d, 1.0, 0'%S_T0)
        a('v_lshlrev_b32 v%d, 16, v%d'%(BB,BB)); a('v_lshlrev_b32 v%d, 16, v%d'%(BB+1,BB+1))
        a('v_mul_f32 v%d, s%d, v%d'%(BB,S_T0,BB)); a('v_mul_f32 v%d, s%d, v%d'%(BB+1,S_T0,BB+1))
        a('s_mul_i32 s%d, s%d, %d'%(S_T0,S_KH,H_VER)); add64(a,S_T2,S_WS,WS_H); add64(a,S_T2,S_T2,'s%d'%S_T0); srd(a,SRD_O,S_T2,S_T2+1,H_VER)
        a('s_lshl_b32 s%d, s%d, 3'%(S_T0,S_TB)); a('s_lshl_b32 s%d, s%d, 1'%(S_T1,S_PW)); a('s_add_u32 s%d, s%d, s%d'%(S_T0,S_T0,S_T1)); a('s_mul_i32 s%d, s%d, 27648'%(S_T0,S_T0))
        a('s_mul_i32 s%d, s%d, 9'%(S_T1,S_CT)); a('s_add_u32 s%d, s%d, %d'%(S_T1,S_T1,5*h)); a('s_lshl_b32 s%d, s%d, 9'%(S_T1,S_T1))
        a('s_add_u32 s%d, s%d, s%d'%(S_SO,S_T0,S_T1)); a('s_add_u32 s%d, s%d, 27648'%(S_SO2,S_SO))
        a('v_lshlrev_b32 v14, 3, v0')
        TZ=[56,58,60,62]; PK=64
        for j in range(nj):
            prs=[(i,p) for i in range(2) for p in range(2)]
            for k,(i,p) in enumerate(prs):
                z=Z1L[j]+2*i+p
                a('v_lshlrev_b32 v%d, 16, v%d'%(TZ[k],z)); a('v_and_b32 v%d, 0xffff0000, v%d'%(TZ[k]+1,z))
            for k,(i,p) in enumerate(prs):
                r=acc(i,j)+2*p; a('v_pk_add_f32 %s, %s, %s op_sel:[0,%d] op_sel_hi:[1,%d]'%(vr(r,2),vr(r,2),vr(BB,2),i,i))
            for k,(i,p) in enumerate(prs):
                r=acc(i,j)+2*p; a('v_pk_mul_f32 %s, %s, %s'%(vr(r,2),vr(r,2),vr(TZ[k],2)))
            o=PK+4*(j&1)
            for k,(i,p) in enumerate(prs):
                r=acc(i,j)+2*p; a('v_cvt_pk_bf16_f32 v%d, v%d, v%d'%(o+k,r,r+1))
            a('buffer_store_dwordx2 %s, v14, s[%d:%d], s%d offen offset:%d%s'%(vr(o,2),SRD_O,SRD_O+3,S_SO,j*512,g2.STF))
            a('buffer_store_dwordx2 %s, v14, s[%d:%d], s%d offen offset:%d%s'%(vr(o+2,2),SRD_O,SRD_O+3,S_SO2,j*512,g2.STF))
        a('s_branch K2_end')
    a.lab('K2G_prod')
    WO=2; ZO=3; S_ZO=S_PAR
    a('s_sub_u32 s%d, s%d, 8'%(S_PW,S_WAVE))
    a('v_lshrrev_b32 v20, 3, v0'); a('v_and_b32 v22, 7, v0'); a('v_xor_b32 v22, v22, v20'); a('v_lshlrev_b32 v22, 4, v22')
    a('s_lshl_b32 s%d, s%d, 4'%(S_T0,S_PW)); a('v_add_u32 v21, s%d, v20'%S_T0); a('v_lshlrev_b32 v21, 12, v21'); a('v_add_u32 v%d, v21, v22'%WO)
    a('s_mul_i32 s%d, s%d, 3'%(S_T0,S_PW)); a('s_lshl_b32 s%d, s%d, 1'%(S_T1,S_PW)); a('s_add_u32 s%d, s%d, 2'%(S_T1,S_T1))
    a('s_cmp_lt_u32 s%d, 2'%S_PW); a('s_cselect_b32 s%d, s%d, s%d'%(S_ZO,S_T0,S_T1)); a('s_lshl_b32 s%d, s%d, 10'%(S_ZO,S_ZO))
    a('v_lshlrev_b32 v20, 4, v0'); a('v_add_u32 v%d, s%d, v20'%(ZO,S_ZO))
    a('s_mov_b32 s%d, 0'%S_SLI); a('s_mov_b32 s%d, 0'%S_KX); a('s_mov_b32 s%d, 0'%S_KW)
    a('s_mul_i32 s%d, s%d, %d'%(S_T0,S_TB,128*4096)); a('s_lshl_b32 s%d, s%d, 11'%(S_T1,S_KH)); a('s_add_u32 s%d, s%d, s%d'%(S_T0,S_T0,S_T1))
    a('s_sub_u32 s%d, %d, s%d'%(S_T1,128*4096,S_T1))
    a('s_mul_i32 s%d, s%d, %d'%(S_T2,S_CT,Z2_CT)); a('s_mul_i32 s%d, s%d, %d'%(S_T3,S_KH,16*18432)); a('s_add_u32 s%d, s%d, s%d'%(S_SO2,S_T2,S_T3))
    a('s_waitcnt lgkmcnt(0)')
    add64(a,S_WSP,S_WSP,'s%d'%S_T0); srd(a,SRD_A,S_WSP,S_WSP+1,'s%d'%S_T1)
    add64(a,S_T2,S_WS,'s%d'%S_SO2); srd(a,SRD_B,S_T2,S_T2+1,16*18432)
    def issue():
        a('s_lshl_b32 s%d, s%d, 11'%(S_T,S_PW)); a('s_add_u32 s%d, s%d, s%d'%(S_T,S_T,S_SLI))
        for j in range(2):
            a('s_add_u32 m0, s%d, %d'%(S_T,j*1024)); a('s_add_u32 s%d, s%d, %d'%(S_SO,S_KX,j*32768))
            a(ld('buffer_load_dwordx4 v%d, s[%d:%d], s%d offen lds'%(WO,SRD_A,SRD_A+3,S_SO)))
        a('s_add_u32 s%d, s%d, s%d'%(S_T,S_SLI,S_ZO)); a('s_add_u32 m0, s%d, 16384'%S_T); a('s_nop 0')
        for j in range(2): a('buffer_load_dwordx4 v%d, s[%d:%d], s%d offen offset:%d lds'%(ZO,SRD_B,SRD_B+3,S_KW,j*1024))
        lab=a.newlab('K2Gp_t')
        a('s_cmp_lt_u32 s%d, 2'%S_PW); a('s_cbranch_scc0 %s'%lab)
        a('buffer_load_dwordx4 v%d, s[%d:%d], s%d offen offset:2048 lds'%(ZO,SRD_B,SRD_B+3,S_KW))
        a.lab(lab)
        slot_advance(a,S_SLI,SLG); a('s_add_u32 s%d, s%d, 128'%(S_KX,S_KX)); a('s_add_u32 s%d, s%d, 18432'%(S_KW,S_KW))
    dma_producer(a,'K2Gp',NK2,4,issue)
    a('s_branch K2_end')

    a.lab('K2T_entry')
    a('s_sub_u32 s%d, s%d, 24'%(S_T0,S_J)); a('s_and_b32 s%d, s%d, 3'%(S_CT,S_T0)); a('s_lshr_b32 s%d, s%d, 2'%(S_T0,S_T0))
    a('s_lshr_b32 s%d, s%d, 1'%(S_T1,S_XCD)); a('s_lshl_b32 s%d, s%d, 1'%(S_T1,S_T1)); a('s_add_u32 s%d, s%d, s%d'%(S_TB,S_T1,S_T0))
    a('s_cmp_ge_u32 s%d, 8'%S_WAVE); a('s_cbranch_scc1 K2T_prod')
    a('s_and_b32 s%d, s%d, 3'%(S_PW,S_WAVE)); a('s_lshr_b32 s%d, s%d, 2'%(S_H,S_WAVE))
    a('s_cmp_eq_u32 s%d, 3'%S_PW); a('s_cbranch_scc1 K2_exit')
    ACC=16; FA=56; FB=80; WA=[112,113]; AA=114; A1=116
    a('v_lshrrev_b32 v7, 4, v0'); a('v_lshlrev_b32 v5, 4, v7')
    a('v_and_b32 v6, 15, v0'); a('v_and_b32 v8, 7, v0'); a('v_xor_b32 v8, v8, v7'); a('v_lshlrev_b32 v8, 4, v8'); a('v_lshl_add_u32 v8, v6, 7, v8')
    a('s_mul_i32 s%d, s%d, %d'%(S_T0,S_PW,48*128)); a('v_add_u32 v%d, s%d, v8'%(WA[0],S_T0)); a('v_xor_b32 v%d, 64, v%d'%(WA[1],WA[0]))
    a('s_mul_i32 s%d, s%d, 3072'%(S_T0,S_H)); a('s_add_u32 s%d, s%d, 18432'%(S_T0,S_T0)); a('v_lshlrev_b32 v9, 4, v0'); a('v_add_u32 v%d, s%d, v9'%(AA,S_T0))
    for k in range(36): a('v_mov_b32 v%d, 0'%(ACC+k))
    a('s_mul_i32 s%d, s%d, 320'%(S_T0,S_CT)); a('s_mul_i32 s%d, s%d, 192'%(S_T1,S_H)); a('s_add_u32 s%d, s%d, s%d'%(S_SO,S_T0,S_T1))
    a('s_waitcnt lgkmcnt(0)')
    add64(a,S_T2,S_WS,WS_A1024); srd(a,SRD_C,S_T2,S_T2+1,1280)
    def accT(i,j): return ACC+(j*3+i)*4
    a('s_cmp_eq_u32 s%d, 0'%S_H); a('s_cbranch_scc0 K2Tc_1')
    for h in range(2):
        nj=3-h; nm='K2Tc_%d'%h
        a.lab(nm)
        for j in range(nj): a('buffer_load_dwordx4 %s, v5, s[%d:%d], s%d offen offset:%d'%(vr(A1+4*j,4),SRD_C,SRD_C+3,S_SO,j*64))
        def rdT(st,sub,nj=nj):
            F=FA if st==0 else FB; m=[]
            for i in range(3): m.append('ds_read_b128 %s, v%d offset:%d'%(vr(F+i*4,4),WA[sub],i*2048))
            for j in range(nj): m.append('ds_read_b128 %s, v%d offset:%d'%(vr(F+12+j*4,4),AA,sub*5120+j*1024))
            return m
        def mfT(st,nj=nj):
            F=FA if st==0 else FB; m=[]
            for j in range(nj):
                for i in range(3):
                    c=vr(accT(i,j),4); m.append('v_mfma_f32_16x16x32_bf16 %s, %s, %s, %s'%(c,vr(F+12+j*4,4),vr(F+i*4,4),c))
            return m
        consumer_loop(a,nm+'L',SLT,NK2,WA+[AA],rdT,mfT)
        a('s_waitcnt vmcnt(0)')
        a('s_cmp_eq_u32 s%d, 0'%S_KH); a('s_cselect_b32 s%d, 1.0, 0'%S_T0)
        a('v_and_b32 v5, 1, v0'); a('v_lshlrev_b32 v5, 31, v5'); a('v_xor_b32 v5, s%d, v5'%S_T0)
        a('s_mul_i32 s%d, s%d, %d'%(S_T0,S_KH,PQ_MAT)); add64(a,S_T2,S_WS,WS_PQ); add64(a,S_T2,S_T2,'s%d'%S_T0); srd(a,SRD_O,S_T2,S_T2+1,PQ_MAT)
        a('s_mul_i32 s%d, s%d, 144'%(S_T0,S_TB)); a('s_mul_i32 s%d, s%d, 48'%(S_T1,S_PW)); a('s_add_u32 s%d, s%d, s%d'%(S_T0,S_T0,S_T1)); a('s_mul_i32 s%d, s%d, 1280'%(S_T0,S_T0))
        a('s_mul_i32 s%d, s%d, 320'%(S_T1,S_CT)); a('s_add_u32 s%d, s%d, s%d'%(S_T0,S_T0,S_T1)); a('s_add_u32 s%d, s%d, %d'%(S_SO,S_T0,192*h))
        a('v_mul_u32_u24 v6, 1280, v6'); a('v_lshl_add_u32 v6, v7, 4, v6')
        for j in range(nj):
            for i in range(3):
                r=accT(i,j)
                for p in range(2): a('v_pk_fma_f32 %s, %s, %s, %s op_sel:[0,1,0] op_sel_hi:[1,1,1]'%(vr(r+2*p,2),vr(A1+4*j+2*p,2),vr(4,2),vr(r+2*p,2)))
            for i in range(3):
                a('s_add_u32 s%d, s%d, %d'%(S_SO2,S_SO,i*16*1280))
                a('buffer_store_dwordx4 %s, v6, s[%d:%d], s%d offen offset:%d%s'%(vr(accT(i,j),4),SRD_O,SRD_O+3,S_SO2,j*64,g2.STF))
        a('s_branch K2_end')
    a.lab('K2T_prod')
    WO=2; AO=3; S_U0=S_PAR
    a('s_sub_u32 s%d, s%d, 8'%(S_PW,S_WAVE))
    a('v_lshrrev_b32 v20, 3, v0'); a('v_and_b32 v22, 7, v0'); a('v_xor_b32 v22, v22, v20'); a('v_lshlrev_b32 v22, 4, v22'); a('v_lshl_add_u32 v%d, v20, 12, v22'%WO)
    a('s_lshl_b32 s%d, s%d, 1'%(S_T0,S_PW)); a('s_sub_u32 s%d, s%d, 2'%(S_T0,S_T0)); a('s_add_u32 s%d, s%d, 2'%(S_T1,S_PW))
    a('s_cmp_lt_u32 s%d, 4'%S_PW); a('s_cselect_b32 s%d, s%d, s%d'%(S_U0,S_T0,S_T1)); a('s_cmp_lt_u32 s%d, 2'%S_PW); a('s_cselect_b32 s%d, s%d, s%d'%(S_U0,S_PW,S_U0)); a('s_lshl_b32 s%d, s%d, 10'%(S_U0,S_U0))
    a('v_lshlrev_b32 v20, 4, v0'); a('v_add_u32 v%d, s%d, v20'%(AO,S_U0))
    a('s_mov_b32 s%d, 0'%S_SLI); a('s_mov_b32 s%d, 0'%S_KX); a('s_mov_b32 s%d, 0'%S_KW)
    a('s_mul_i32 s%d, s%d, %d'%(S_T0,S_KH,AE_MAT)); a('s_mul_i32 s%d, s%d, 163840'%(S_T1,S_CT)); a('s_add_u32 s%d, s%d, s%d'%(S_SO2,S_T0,S_T1))
    a('s_mul_i32 s%d, s%d, %d'%(S_T0,S_TB,144*4096))
    a('s_waitcnt lgkmcnt(0)')
    a('s_cmp_eq_u32 s%d, 0'%S_KH); a('s_cselect_b32 s%d, s%d, s%d'%(S_T2,S_WSRE,S_WSIM)); a('s_cselect_b32 s%d, s%d, s%d'%(S_T3,S_WSRE+1,S_WSIM+1))
    add64(a,S_T2,S_T2,'s%d'%S_T0); srd(a,SRD_A,S_T2,S_T2+1,144*4096)
    add64(a,S_T2,S_WS,WS_AE); add64(a,S_T2,S_T2,'s%d'%S_SO2); srd(a,SRD_B,S_T2,S_T2+1,163840)
    def issueT():
        a('s_lshl_b32 s%d, s%d, 10'%(S_T,S_PW)); a('s_add_u32 s%d, s%d, s%d'%(S_T,S_T,S_SLI))
        a('s_lshl_b32 s%d, s%d, 15'%(S_T0,S_PW)); a('s_add_u32 s%d, s%d, s%d'%(S_T0,S_T0,S_KX))
        for i in range(2):
            a('s_add_u32 m0, s%d, %d'%(S_T,i*8192)); a('s_add_u32 s%d, s%d, %d'%(S_SO,S_T0,i*8*32768))
            a(ld('buffer_load_dwordx4 v%d, s[%d:%d], s%d offen lds'%(WO,SRD_A,SRD_A+3,S_SO)))
        a('s_add_u32 s%d, s%d, s%d'%(S_T1,S_SLI,S_U0)); a('s_add_u32 m0, s%d, 18432'%S_T1); a('s_nop 0')
        a('buffer_load_dwordx4 v%d, s[%d:%d], s%d offen lds'%(AO,SRD_B,SRD_B+3,S_KW))
        l1=a.newlab('K2Tp_a'); l2=a.newlab('K2Tp_b')
        a('s_cmp_lt_u32 s%d, 2'%S_PW); a('s_cbranch_scc1 %s'%l1)
        a('s_cmp_lt_u32 s%d, 4'%S_PW); a('s_cbranch_scc0 %s'%l2)
        a('buffer_load_dwordx4 v%d, s[%d:%d], s%d offen offset:1024 lds'%(AO,SRD_B,SRD_B+3,S_KW)); a('s_branch %s'%l2)
        a.lab(l1)
        a('s_add_u32 m0, s%d, %d'%(S_T,2*8192)); a('s_add_u32 s%d, s%d, %d'%(S_SO,S_T0,2*8*32768))
        a(ld('buffer_load_dwordx4 v%d, s[%d:%d], s%d offen lds'%(WO,SRD_A,SRD_A+3,S_SO)))
        a.lab(l2)
        slot_advance(a,S_SLI,SLT); a('s_add_u32 s%d, s%d, 128'%(S_KX,S_KX)); a('s_add_u32 s%d, s%d, 10240'%(S_KW,S_KW))
    dma_producer(a,'K2Tp',NK2,3,issueT)
    kernel_tail(a,'K2',1,S_WS)
```

```python
from g2_common import *
import g2_common as g2
SL3=39936
K3_LDS=NS*SL3
NK3=9
S_X=4; S_WS=6; S_WOUT=8; S_OUT=10
SRD_A=16; SRD_B=20; SRD_O=24; SRD_C=56; SRD_D=60
S_TB=37; S_DT=38

def gen_k3(a,kname):
    kernel_head(a,kname,'K3')
    a('s_load_dwordx2 s[%d:%d], s[0:1], 0'%(S_X,S_X+1))
    a('s_load_dwordx4 s[%d:%d], s[0:1], 72'%(S_WOUT,S_WOUT+3))
    a('s_load_dwordx2 s[%d:%d], s[0:1], 96'%(S_WS,S_WS+1))
    a('v_lshrrev_b32 v1, 6, v0'); a('v_and_b32 v0, 63, v0'); a('s_nop 0')
    a('v_readfirstlane_b32 s%d, v1'%S_WAVE)
    a('s_and_b32 s%d, s2, 7'%S_XCD); a('s_lshr_b32 s%d, s2, 3'%S_J)
    a('s_lshr_b32 s%d, s%d, 3'%(S_T0,S_J)); a('s_lshl_b32 s%d, s%d, 2'%(S_TB,S_XCD)); a('s_add_u32 s%d, s%d, s%d'%(S_TB,S_TB,S_T0))
    a('s_and_b32 s%d, s%d, 7'%(S_DT,S_J))
    a('s_cmp_ge_u32 s%d, 8'%S_WAVE); a('s_cbranch_scc1 K3_prod')
    ACC=16; FS=[32,52,72]; WA=92; HA=93; PP=96; QQ=108; XX=120
    a('s_and_b32 s%d, s%d, 3'%(S_PW,S_WAVE)); a('s_lshr_b32 s%d, s%d, 2'%(S_H,S_WAVE))
    a('v_and_b32 v6, 15, v0'); a('v_lshrrev_b32 v7, 4, v0')
    a('s_lshl_b32 s%d, s%d, 6'%(S_T0,S_TB)); a('s_lshl_b32 s%d, s%d, 4'%(S_T1,S_PW)); a('s_add_u32 s%d, s%d, s%d'%(S_T0,S_T0,S_T1)); a('v_add_u32 v8, s%d, v6'%S_T0)
    a('s_mul_i32 s%d, s%d, 80'%(S_T0,S_DT)); a('s_mul_i32 s%d, s%d, 48'%(S_T1,S_H)); a('s_add_u32 s%d, s%d, s%d'%(S_T3,S_T0,S_T1))
    a('v_lshlrev_b32 v9, 2, v7'); a('v_add_u32 v9, s%d, v9'%S_T3)
    a('v_mul_u32_u24 v10, 1280, v8'); a('v_lshl_add_u32 v10, v9, 1, v10')
    a('s_cmp_lt_u32 s%d, 16'%S_TB); a('s_cbranch_scc1 K3_tdir'); a('v_sub_u32 v8, 2048, v8'); a.lab('K3_tdir')
    a('v_mul_u32_u24 v11, 1280, v8'); a('v_add_u32 v11, 64, v11')
    a('s_mul_i32 s%d, s%d, 3072'%(S_T0,S_PW)); a('v_lshlrev_b32 v12, 3, v0'); a('v_add_u32 v%d, s%d, v12'%(HA,S_T0))
    a('v_lshrrev_b32 v12, 2, v6'); a('v_lshl_add_u32 v12, v7, 2, v12'); a('v_mul_u32_u24 v12, 160, v12'); a('v_and_b32 v13, 3, v6'); a('v_lshl_add_u32 v12, v13, 3, v12')
    a('s_mul_i32 s%d, s%d, 96'%(S_T0,S_H)); a('s_add_u32 s%d, s%d, 24576'%(S_T0,S_T0)); a('v_add_u32 v%d, s%d, v12'%(WA,S_T0))
    for k in range(12): a('v_mov_b32 v%d, 0'%(ACC+k))
    a('s_waitcnt lgkmcnt(0)')
    srd(a,SRD_C,S_X,S_X+1,2048*1280)
    add64(a,S_T0,S_WS,WS_PQ-64); srd(a,SRD_D,S_T0,S_T0+1,2*PQ_MAT+64)
    a('s_mov_b32 s%d, %d'%(S_SO2,PQ_MAT))
    for j in range(3): a('buffer_load_dwordx2 %s, v10, s[%d:%d], 0 offen offset:%d'%(vr(XX+2*j,2),SRD_C,SRD_C+3,j*32))
    a('s_cmp_lt_u32 s%d, 4'%S_DT); a('s_cbranch_scc0 K3_emir')
    a('v_lshl_add_u32 v11, v9, 2, v11'); a('v_subrev_u32 v11, 4, v11')
    for j in range(3):
        a('buffer_load_dwordx4 %s, v11, s[%d:%d], 0 offen offset:%d'%(vr(PP+4*j,4),SRD_D,SRD_D+3,j*64))
        a('buffer_load_dwordx4 %s, v11, s[%d:%d], s%d offen offset:%d'%(vr(QQ+4*j,4),SRD_D,SRD_D+3,S_SO2,j*64))
    a('s_branch K3_pqd')
    a.lab('K3_emir')
    a('v_sub_u32 v12, %d, v9'%(636-32)); a('v_lshl_add_u32 v11, v12, 2, v11')
    for j in range(3):
        a('buffer_load_dwordx4 %s, v11, s[%d:%d], 0 offen offset:%d'%(vr(PP+4*j,4),SRD_D,SRD_D+3,(2-j)*64))
        a('buffer_load_dwordx4 %s, v11, s[%d:%d], s%d offen offset:%d'%(vr(QQ+4*j,4),SRD_D,SRD_D+3,S_SO2,(2-j)*64))
    a.lab('K3_pqd')
    a('s_cmp_eq_u32 s%d, 0'%S_H); a('s_cbranch_scc0 K3c_1')
    for h in range(2):
        nj=3-h; nm='K3c_%d'%h
        a.lab(nm)
        def rd(st,sub,nj=nj):
            F=FS[st]; m=[]
            for ver in range(2):
                for b in range(2): m.append('ds_read_b64 %s, v%d offset:%d'%(vr(F+ver*4+b*2,2),HA,ver*12288+(sub*2+b)*512))
            for j in range(nj):
                for b in range(2): m.append('ds_read_b64_tr_b16 %s, v%d offset:%d'%(vr(F+8+j*4+b*2,2),WA,sub*32*160+b*16*160+j*32))
            return m
        def mf(st,nj=nj):
            F=FS[st]; m=[]
            for ver in range(2):
                for j in range(nj):
                    c=vr(ACC+4*j,4); m.append('v_mfma_f32_16x16x32_bf16 %s, %s, %s, %s'%(c,vr(F+8+j*4,4),vr(F+ver*4,4),c))
            return m
        nrd=len(rd(0,0))
        gc.stamp(a,1)
        a('s_barrier')
        gc.stamp(a,2)
        for x in rd(0,0): a(x)
        a('s_mov_b32 s%d, 0'%S_I); a('s_mov_b32 s%d, 0'%S_SLC)
        a.lab(nm+'_loop')
        for x in rd(1,1): a(x)
        a('s_waitcnt lgkmcnt(%d)'%nrd)
        for x in rd(2,2)[:15-nrd]: a(x)
        for x in mf(0)[:2]: a(x)
        for x in rd(2,2)[15-nrd:]: a(x)
        for x in mf(0)[2:]: a(x)
        a('s_waitcnt lgkmcnt(%d)'%nrd)
        for x in mf(1): a(x)
        a('s_waitcnt lgkmcnt(0)')
        a('s_cmp_eq_u32 s%d, %d'%(S_I,NK3-1)); a('s_cbranch_scc1 %s_last'%nm)
        a('s_mov_b32 s%d, s%d'%(S_T0,S_SLC)); slot_advance(a,S_SLC,SL3); a('s_sub_u32 s%d, s%d, s%d'%(S_T0,S_SLC,S_T0))
        a('v_add_u32 v%d, s%d, v%d'%(WA,S_T0,WA)); a('v_add_u32 v%d, s%d, v%d'%(HA,S_T0,HA))
        a('s_add_u32 s%d, s%d, 1'%(S_I,S_I))
        a('s_barrier')
        for x in rd(0,0): a(x)
        for x in mf(2): a(x)
        a('s_branch %s_loop'%nm)
        a.lab(nm+'_last')
        for x in mf(2): a(x)
        gc.stamp(a,3)
        a('s_waitcnt vmcnt(0)')
        srd(a,SRD_O,S_OUT,S_OUT+1,2048*1280)
        a('s_cmp_lt_u32 s%d, 16'%S_TB); a('s_cselect_b32 s%d, 1, 0'%S_T0); a('s_cmp_lt_u32 s%d, 4'%S_DT); a('s_cselect_b32 s%d, 1, 0'%S_T1)
        a('s_cmp_eq_u32 s%d, s%d'%(S_T0,S_T1)); a('s_cselect_b32 s%d, -1.0, 1.0'%S_T0)
        a('v_mov_b32 v2, s%d'%S_T0); a('v_mov_b32 v3, s%d'%S_T0)
        for j in range(nj):
            for p in range(2): a('v_pk_fma_f32 %s, %s, %s, %s'%(vr(PP+4*j+2*p,2),vr(QQ+4*j+2*p,2),vr(2,2),vr(PP+4*j+2*p,2)))
        if h==0:
            a('s_cmp_eq_u32 s%d, 0'%S_DT); a('s_cbranch_scc0 K3_noz')
            a('v_cmp_gt_u32 vcc, 16, v0'); a('v_mov_b32 v4, 0'); a('s_nop 0'); a('v_cndmask_b32 v%d, v%d, v4, vcc'%(PP,PP))
            a.lab('K3_noz')
        a('s_cmp_lt_u32 s%d, 4'%S_DT); a('s_cbranch_scc0 %s_epm'%nm)
        for role in ('dir','mir'):
            if role=='mir': a.lab(nm+'_epm')
            for j in range(nj):
                c=ACC+4*j
                for r in range(4):
                    y=PP+4*j+(r if role=='dir' else 3-r)
                    a('v_add_f32 v%d, v%d, v%d'%(c+r,c+r,y))
                for p in range(2):
                    x=XX+2*j+p
                    a('v_lshlrev_b32 v%d, 16, v%d'%(4,x)); a('v_and_b32 v%d, 0xffff0000, v%d'%(5,x))
                    a('v_pk_add_f32 %s, %s, %s'%(vr(c+2*p,2),vr(c+2*p,2),vr(4,2)))
                o=12+2*(j&1)
                a('v_cvt_pk_bf16_f32 v%d, v%d, v%d'%(o,c,c+1)); a('v_cvt_pk_bf16_f32 v%d, v%d, v%d'%(o+1,c+2,c+3))
                a('buffer_store_dwordx2 %s, v10, s[%d:%d], 0 offen offset:%d'%(vr(o,2),SRD_O,SRD_O+3,j*32))
            a('s_branch K3_end')
    a.lab('K3_prod')
    HO=2; WO=[3,4]
    a('s_sub_u32 s%d, s%d, 8'%(S_PW,S_WAVE))
    a('s_and_b32 s%d, s%d, 3'%(S_T1,S_PW)); a('s_lshr_b32 s%d, s%d, 2'%(S_T2,S_PW))
    a('s_lshl_b32 s%d, s%d, 2'%(S_T0,S_TB)); a('s_add_u32 s%d, s%d, s%d'%(S_T0,S_T0,S_T1)); a('s_mul_i32 s%d, s%d, 27648'%(S_KX,S_T0))
    a('s_mul_i32 s%d, s%d, %d'%(S_T0,S_T2,H_VER)); a('s_add_u32 s%d, s%d, s%d'%(S_KX,S_KX,S_T0))
    a('s_mul_i32 s%d, s%d, 3072'%(S_T1,S_T1)); a('s_mul_i32 s%d, s%d, 12288'%(S_T2,S_T2)); a('s_add_u32 s%d, s%d, s%d'%(S_PAR,S_T1,S_T2))
    a('v_lshlrev_b32 v%d, 4, v0'%HO)
    for i in range(2):
        a('s_lshl_b32 s%d, s%d, 6'%(S_T0,S_PW)); a('s_add_u32 s%d, s%d, %d'%(S_T0,S_T0,512*i)); a('v_add_u32 v20, s%d, v0'%S_T0)
        a('v_mul_u32_u24 v21, 6554, v20'); a('v_lshrrev_b32 v21, 16, v21')
        a('v_mul_u32_u24 v22, 10, v21'); a('v_sub_u32 v22, v20, v22'); a('v_mul_u32_u24 v21, 1280, v21'); a('v_lshl_add_u32 v%d, v22, 4, v21'%WO[i])
    a('s_mov_b32 s%d, 0'%S_SLI); a('s_mov_b32 s%d, 0'%S_KW)
    a('s_mul_i32 s%d, s%d, 160'%(S_T2,S_DT)); a('s_sub_u32 s%d, %d, s%d'%(S_T3,864*1280,S_T2))
    a('s_waitcnt lgkmcnt(0)')
    add64(a,S_T0,S_WS,WS_H); srd(a,SRD_A,S_T0,S_T0+1,2*H_VER)
    add64(a,S_WOUT,S_WOUT,'s%d'%S_T2); srd(a,SRD_B,S_WOUT,S_WOUT+1,'s%d'%S_T3)
    def issue():
        a('s_add_u32 m0, s%d, s%d'%(S_SLI,S_PAR)); a('s_lshl_b32 s%d, s%d, 10'%(S_T,S_PW))
        for k in range(3): a('buffer_load_dwordx4 v%d, s[%d:%d], s%d offen offset:%d lds'%(HO,SRD_A,SRD_A+3,S_KX,k*1024))
        a('s_add_u32 s%d, s%d, s%d'%(S_T,S_T,S_SLI))
        lab=a.newlab('K3p_s')
        for i in range(2):
            if i==1: a('s_cmp_lt_u32 s%d, 7'%S_PW); a('s_cbranch_scc0 %s'%lab)
            a('s_add_u32 m0, s%d, %d'%(S_T,24576+i*8192)); a('s_nop 0')
            a(ld('buffer_load_dwordx4 v%d, s[%d:%d], s%d offen lds'%(WO[i],SRD_B,SRD_B+3,S_KW)))
        a.lab(lab)
        slot_advance(a,S_SLI,SL3); a('s_add_u32 s%d, s%d, 3072'%(S_KX,S_KX)); a('s_add_u32 s%d, s%d, %d'%(S_KW,S_KW,96*1280))
    dma_producer(a,'K3p',NK3,4,issue)
    kernel_tail(a,'K3',2,S_WS)
```

```python
class Asm:
    def __init__(s):
        s.L=[]; s.nlab=0
    def __call__(s,txt):
        s.L.append('    '+txt)
    def c(s,txt):
        s.L.append('    ; '+txt)
    def lab(s,name):
        s.L.append(name+':')
    def newlab(s,p='L'):
        s.nlab+=1; return '%s_%d'%(p,s.nlab)
    def raw(s,txt):
        s.L.append(txt)
    def text(s):
        return '\n'.join(s.L)+'\n'

def vr(b,n=1):
    return 'v%d'%b if n==1 else 'v[%d:%d]'%(b,b+n-1)
def sr(b,n=1):
    return 's%d'%b if n==1 else 's[%d:%d]'%(b,b+n-1)

def interleave(main, fill, lead=0, per=None):
    out=[]
    fill=list(fill)
    for _ in range(min(lead,len(fill))): out.append(fill.pop(0))
    n=len(main)
    for k,m in enumerate(main):
        out.append(m)
        if per is None:
            rem=n-k
            cnt=(len(fill)+rem-1)//rem if rem>0 else len(fill)
            cnt=min(cnt,2)
        else: cnt=per
        for _ in range(min(cnt,len(fill))): out.append(fill.pop(0))
    out+=fill
    return out

WS_Z2   = 0x0000000
WS_Z1   = 0x0380000
WS_ST   = 0x0760000
WS_AE   = 0x0780000
WS_A1024= 0x08C0000
WS_H    = 0x0900000
WS_PQ   = 0x1000000
WS_STAMP= 0x2000000
Z2_CT   = 32*18432
H_VER   = 128*54*512
PQ_MAT  = 1152*320*4
AE_MAT  = 4*16*10240

STAMPS=False
LIGHT=False
def stamp(a,k):
    if STAMPS and not LIGHT: a('s_memrealtime s[%d:%d]'%(64+2*k,65+2*k))
def stamp_dump(a,kidx,s_ws,s_wave):
    if not STAMPS: return
    a('s_memrealtime s[78:79]')
    a('s_memtime s[76:77]')
    a('s_waitcnt vmcnt(0) lgkmcnt(0)')
    a('s_sub_u32 s76, s76, s74'); a('s_subb_u32 s77, s77, s75')
    a('s_getreg_b32 s74, hwreg(HW_REG_XCC_ID)'); a('s_getreg_b32 s75, hwreg(HW_REG_HW_ID)')
    a('s_add_u32 s80, s%d, 0x%x'%(s_ws,WS_STAMP)); a('s_addc_u32 s81, s%d, 0'%(s_ws+1))
    a('s_mov_b32 s82, 0x1000000'); a('s_mov_b32 s83, 0x00020000')
    a('s_add_u32 s84, s2, %d'%(kidx*256)); a('s_mul_i32 s84, s84, 16'); a('s_add_u32 s84, s84, s%d'%s_wave); a('s_lshl_b32 s84, s84, 6')
    for k in range(8):
        a('v_mov_b32 v2, s%d'%(64+2*k)); a('v_mov_b32 v3, s%d'%(65+2*k)); a('v_mov_b32 v4, %d'%(8*k))
        a('buffer_store_dwordx2 v[2:3], v4, s[80:83], s84 offen')
        a('s_nop 1')
    a('s_waitcnt vmcnt(0)')
def stamp_init(a):
    if STAMPS:
        for k in range(8): a('s_mov_b64 s[%d:%d], 0'%(64+2*k,65+2*k))
        a('s_memrealtime s[64:65]')
        a('s_memtime s[74:75]')
```

```python
import sys
sys.path.insert(0,'dev')
from gen_common import *
import gen_common, g2_common
BASE='parallel_sum__spectral_fnet__mixer_gmlp__prompt'
def kd(name,vgpr,sgpr=100):
    return '''.amdhsa_kernel %s
  .amdhsa_next_free_vgpr %d
  .amdhsa_next_free_sgpr %d
  .amdhsa_accum_offset %d
  .amdhsa_group_segment_fixed_size 0
  .amdhsa_kernarg_size 104
  .amdhsa_user_sgpr_count 2
  .amdhsa_user_sgpr_kernarg_segment_ptr 1
  .amdhsa_system_sgpr_workgroup_id_x 1
  .amdhsa_float_denorm_mode_32 3
.end_amdhsa_kernel
'''%(name,vgpr,sgpr,vgpr)
DUP=False
def build(which=('k1','k2','k3')):
    import g2_k1,g2_k2,g2_k3
    hdr=open('cdna_kernels/%s.s.ref'%BASE).read().split('; Override launch')[0]
    launches=[]; kds=[]; body=g2_common.AsmF()
    if 'k1' in which:
        launches.append('; @launch kernel=fk1_kernel grid=(256,1,1) block=(1024,1,1) lds=%d'%g2_k1.K1_LDS)
        body.raw('.globl fk1_kernel'); g2_k1.gen_k1(body,'fk1_kernel'); kds.append(kd('fk1_kernel',128))
    if 'k2' in which:
        launches.append('; @launch kernel=fk2_kernel grid=(256,1,1) block=(1024,1,1) lds=%d'%g2_k2.K2_LDS)
        body.raw('.globl fk2_kernel'); g2_k2.gen_k2(body,'fk2_kernel'); kds.append(kd('fk2_kernel',128))
    if 'k3' in which:
        launches.append('; @launch kernel=fk3_kernel grid=(256,1,1) block=(1024,1,1) lds=%d'%g2_k3.K3_LDS)
        body.raw('.globl fk3_kernel'); g2_k3.gen_k3(body,'fk3_kernel'); kds.append(kd('fk3_kernel',128))
    if DUP: launches=[launches[0],launches[0],launches[1],launches[1],launches[2],launches[2]]
    return hdr+'\n'.join(launches)+'\n.amdgcn_target "amdgcn-amd-amdhsa--gfx950"\n.text\n'+body.text()+'.section .rodata,"a"\n'+''.join('.p2align 6\n'+k for k in kds)
if __name__=='__main__':
    opts=sys.argv[2:]
    if 'stamps' in opts: gen_common.STAMPS=True
    if 'dup' in opts: DUP=True
    for o in opts:
        if o.startswith('x:'):
            k,_,v=o[2:].partition('='); g2_common.EXP[k]=int(v) if v else 1
    for k in (1,2,3):
        if 'ldnt%d'%k in opts or 'ldnt' in opts: g2_common.LDK[k]=' nt'
    if 'sc1' in opts: g2_common.STF=' sc1'
    if 'nt' in opts: g2_common.STF=' nt'
    if 'sc01' in opts: g2_common.STF=' sc0 sc1'
    open(sys.argv[1],'w').write(build())
```

```python
from gen_common import *
import gen_common as gc
import struct
def f2u(f): return struct.unpack('<I',struct.pack('<f',f))[0]
WS_GR = 0x08D0000
NS=4
S_WAVE=32; S_XCD=33; S_J=34; S_G=35; S_HALF=36; S_RB=37; S_CT=38; S_PW=39; S_H=40
S_I=41; S_SLI=42; S_SLC=43; S_KX=44; S_KW=45; S_T=46; S_SO=47; S_T0=48; S_T1=49; S_T2=50; S_T3=51; S_SO2=52; S_PAR=53
S_EX=54
EXP={}
LDF=''
STF=''

def srd(a,d,lo,hi,size):
    a('s_mov_b32 s%d, s%d'%(d,lo)); a('s_mov_b32 s%d, s%d'%(d+1,hi))
    if isinstance(size,int): a('s_mov_b32 s%d, 0x%x'%(d+2,size))
    else: a('s_mov_b32 s%d, %s'%(d+2,size))
    a('s_mov_b32 s%d, 0x00020000'%(d+3))
def add64(a,dlo,slo,off):
    o = off if isinstance(off,str) else '0x%x'%off
    a('s_add_u32 s%d, s%d, %s'%(dlo,slo,o)); a('s_addc_u32 s%d, s%d, 0'%(dlo+1,slo+1))
def slot_advance(a,s,SL,ns=NS):
    a('s_add_u32 s%d, s%d, %d'%(s,s,SL)); a('s_cmp_eq_u32 s%d, %d'%(s,ns*SL)); a('s_cselect_b32 s%d, 0, s%d'%(s,s))

def dma_producer(a,name,n,c,issue):
    gc.stamp(a,1)
    issue(); issue()
    gc.stamp(a,2)
    a('s_waitcnt vmcnt(%d)'%c); gc.stamp(a,3); a('s_barrier')
    issue(); issue()
    a('s_mov_b32 s%d, 1'%S_I)
    a.lab(name+'_loop')
    a('s_cmp_lt_u32 s%d, %d'%(S_I,n-2)); a('s_cbranch_scc0 %s_w1'%name)
    a('s_waitcnt vmcnt(%d)'%(2*c)); a('s_branch %s_wd'%name)
    a.lab(name+'_w1')
    a('s_cmp_eq_u32 s%d, %d'%(S_I,n-2)); a('s_cbranch_scc0 %s_w0'%name)
    a('s_waitcnt vmcnt(%d)'%c); a('s_branch %s_wd'%name)
    a.lab(name+'_w0')
    a('s_waitcnt vmcnt(0)')
    a.lab(name+'_wd')
    a('s_barrier')
    a('s_cmp_lt_u32 s%d, %d'%(S_I,n-3)); a('s_cbranch_scc0 %s_ni'%name)
    issue()
    a.lab(name+'_ni')
    a('s_add_u32 s%d, s%d, 1'%(S_I,S_I)); a('s_cmp_lt_u32 s%d, %d'%(S_I,n)); a('s_cbranch_scc1 %s_loop'%name)
    gc.stamp(a,4)

def consumer_loop(a,name,SL,n,addr_regs,reads,mfmas,ns=NS):
    def block(mset,rset,rsub):
        R=(reads(rset,rsub) if rset is not None else [])
        M=mfmas(mset)
        if EXP.get('noread'): R=[]
        if EXP.get('nomfma'): M=[]
        if EXP.get('ilv'):
            for x in interleave(M,R,lead=EXP['ilv']): a(x)
        else:
            for x in R: a(x)
            for x in M: a(x)
    gc.stamp(a,1)
    a('s_barrier')
    gc.stamp(a,2)
    for x in reads(0,0): a(x)
    a('s_mov_b32 s%d, 0'%S_I); a('s_mov_b32 s%d, 0'%S_SLC)
    a.lab(name+'_loop')
    a('s_waitcnt lgkmcnt(0)')
    block(0,1,1)
    a('s_waitcnt lgkmcnt(0)')
    a('s_cmp_eq_u32 s%d, %d'%(S_I,n-1)); a('s_cbranch_scc1 %s_last'%name)
    a('s_mov_b32 s%d, s%d'%(S_T0,S_SLC))
    slot_advance(a,S_SLC,SL,ns)
    a('s_sub_u32 s%d, s%d, s%d'%(S_T0,S_SLC,S_T0))
    for r in addr_regs: a('v_add_u32 v%d, s%d, v%d'%(r,S_T0,r))
    a('s_add_u32 s%d, s%d, 1'%(S_I,S_I))
    a('s_barrier')
    block(1,0,0)
    a('s_branch %s_loop'%name)
    a.lab(name+'_last')
    block(1,None,None)
    gc.stamp(a,3)

GC0=-2.0*0.7978845608028654*1.4426950408889634
GC1=GC0*0.044715
def gelu_pairs(a,pre,tmp,C0,C1,ONE):
    n=len(pre)
    for k in range(n): a('v_pk_mul_f32 %s, %s, %s'%(vr(tmp[k],2),vr(pre[k],2),vr(pre[k],2)))
    for k in range(n): a('v_pk_fma_f32 %s, %s, %s, %s'%(vr(tmp[k],2),vr(tmp[k],2),vr(C1,2),vr(C0,2)))
    for k in range(n): a('v_pk_mul_f32 %s, %s, %s'%(vr(tmp[k],2),vr(tmp[k],2),vr(pre[k],2)))
    for k in range(n):
        a('v_exp_f32 v%d, v%d'%(tmp[k],tmp[k])); a('v_exp_f32 v%d, v%d'%(tmp[k]+1,tmp[k]+1))
    for k in range(n): a('v_pk_add_f32 %s, %s, %s'%(vr(tmp[k],2),vr(tmp[k],2),vr(ONE,2)))
    for k in range(n):
        a('v_rcp_f32 v%d, v%d'%(tmp[k],tmp[k])); a('v_rcp_f32 v%d, v%d'%(tmp[k]+1,tmp[k]+1))
    for k in range(n): a('v_pk_mul_f32 %s, %s, %s'%(vr(pre[k],2),vr(pre[k],2),vr(tmp[k],2)))
def kernel_head(a,kname,pre,nwg=256):
    KCUR[0]=int(pre[1])
    a.raw('.p2align 8'); a.raw('.type %s,@function'%kname); a.lab(kname)
    a('s_cmp_ge_u32 s2, %d'%nwg); a('s_cbranch_scc1 %s_exit'%pre); gc.stamp_init(a)
def kernel_tail(a,pre,kidx,s_ws):
    a.lab(pre+'_end'); gc.stamp_dump(a,kidx,s_ws,S_WAVE); a.lab(pre+'_exit'); a('s_endpgm')

KCUR=[1]
LDK={1:'',2:'',3:''}
def ld(txt):
    import g2_common as g
    return txt.replace(' lds', g.LDK[g.KCUR[0]]+' lds')
```

```python
from g2_common import *
import g2_common as g2
SLZ=34816; SLA=36864
TB=NS*SLA
T_R=TB; T_NMR=TB+512; T_CS0=TB+1024; T_CS1=TB+1664; T_W2=TB+2304
K1_LDS=TB+2304+2048
NK1=10
S_X=4; S_WS=6; S_WDRE=8; S_WDIM=10; S_WIN=12; S_DBG=14
SRD_X=16; SRD_W=20; SRD_O=24; SRD_O2=28; SRD_G=56; SRD_D=60
POLL_BOUND=4000

def stats_final(a,SUM,SQ,t,n,rout,nmrout):
    for k in range(1,len(SUM)): a('v_add_f32 v%d, v%d, v%d'%(SUM[0],SUM[0],SUM[k])); a('v_add_f32 v%d, v%d, v%d'%(SQ[0],SQ[0],SQ[k]))
    a('s_nop 1')
    a('v_add_f32_dpp v%d, v%d, v%d quad_perm:[1,0,3,2] row_mask:0xf bank_mask:0xf'%(t,SUM[0],SUM[0]))
    a('v_add_f32_dpp v%d, v%d, v%d quad_perm:[1,0,3,2] row_mask:0xf bank_mask:0xf'%(t+1,SQ[0],SQ[0]))
    a('v_mul_f32 v%d, 0x%x, v%d'%(t,f2u(1.0/n),t)); a('v_mul_f32 v%d, 0x%x, v%d'%(t+1,f2u(1.0/n),t+1))
    a('v_fma_f32 v%d, -v%d, v%d, v%d'%(t+1,t,t,t+1)); a('v_max_f32 v%d, 0, v%d'%(t+1,t+1)); a('v_add_f32 v%d, 0x%x, v%d'%(t+1,f2u(1e-5),t+1))
    a('v_rsq_f32 v%d, v%d'%(rout,t+1)); a('s_nop 0')
    a('v_mul_f32 v%d, v%d, v%d'%(nmrout,t,rout)); a('v_sub_f32 v%d, 0, v%d'%(nmrout,nmrout))

def worker(a,name,SL,colsum):
    n=NK1
    SA=[10,11,12,13]; CA=14; VT=15; ONE=2
    D=[16,32]; CF=[48,68]; CACC=88; ONES=108; SUM=[112,113]; SQ=[114,115]
    a('v_lshrrev_b32 v20, 1, v0'); a('s_lshl_b32 s%d, s%d, 5'%(S_T0,S_PW)); a('v_add_u32 v20, s%d, v20'%S_T0); a('v_lshlrev_b32 v20, 7, v20')
    a('v_and_b32 v21, 1, v0'); a('v_lshl_add_u32 v20, v21, 6, v20'); a('v_bfe_u32 v21, v0, 2, 2'); a('v_lshl_add_u32 v%d, v21, 4, v20'%SA[0])
    for k in range(1,4): a('v_xor_b32 v%d, %d, v%d'%(SA[k],16*k,SA[0]))
    a('v_mov_b32 v%d, 0x3f803f80'%ONE)
    for r in SUM+SQ: a('v_mov_b32 v%d, 0'%r)
    for k in range(32): a('v_mov_b32 v%d, 0'%(D[0]+k))
    if colsum:
        a('v_and_b32 v120, 15, v0'); a('v_lshrrev_b32 v121, 4, v0'); a('v_lshrrev_b32 v122, 2, v120'); a('v_lshl_add_u32 v122, v121, 2, v122')
        a('v_mul_u32_u24 v122, 288, v122'); a('v_and_b32 v120, 3, v120'); a('v_lshl_add_u32 v122, v120, 3, v122')
        a('s_and_b32 s%d, s%d, 1'%(S_T0,S_PW)); a('s_mul_i32 s%d, s%d, 9216'%(S_T0,S_T0)); a('s_cmp_lt_u32 s%d, 2'%S_PW); a('s_cselect_b32 s%d, 160, 0'%S_T1)
        a('s_add_u32 s%d, s%d, s%d'%(S_T0,S_T0,S_T1)); a('s_add_u32 s%d, s%d, 16384'%(S_T0,S_T0)); a('v_add_u32 v%d, s%d, v122'%(CA,S_T0))
        for k in range(4): a('v_mov_b32 v%d, 0x3f803f80'%(ONES+k))
        for k in range(20): a('v_mov_b32 v%d, 0'%(CACC+k))
        for k in range(40): a('v_mov_b32 v%d, 0'%(CF[0]+k))
    def reads(st):
        for k in range(4):
            a('v_add_u32 v%d, s%d, v%d'%(VT,S_SLC,SA[k])); a('ds_read_b128 %s, v%d'%(vr(D[st]+4*k,4),VT))
        if colsum:
            a('v_add_u32 v%d, s%d, v%d'%(VT,S_SLC,CA))
            lab=a.newlab(name+'_c')
            for j in range(5):
                if j==4: a('s_cmp_lt_u32 s%d, 2'%S_PW); a('s_cbranch_scc1 %s'%lab)
                for b in range(2): a('ds_read_b64_tr_b16 %s, v%d offset:%d'%(vr(CF[st]+4*j+2*b,2),VT,b*4608+j*32))
            a.lab(lab)
    def compute(st):
        if colsum:
            for j in range(5):
                a('v_mfma_f32_16x16x32_bf16 %s, %s, %s, %s'%(vr(CACC+4*j,4),vr(ONES,4),vr(CF[st]+4*j,4),vr(CACC+4*j,4)))
        for k in range(16):
            a('v_dot2_f32_bf16 v%d, v%d, v%d, v%d'%(SQ[k&1],D[st]+k,D[st]+k,SQ[k&1]))
            a('v_dot2_f32_bf16 v%d, v%d, v%d, v%d'%(SUM[k&1],D[st]+k,ONE,SUM[k&1]))
    a('s_mov_b32 s%d, 0'%S_I); a('s_mov_b32 s%d, 0'%S_SLC)
    a.lab(name+'_loop')
    for st in range(2):
        a('s_barrier')
        reads(st)
        compute(st^1)
        a('s_waitcnt lgkmcnt(0)')
        slot_advance(a,S_SLC,SL)
    a('s_add_u32 s%d, s%d, 2'%(S_I,S_I)); a('s_cmp_lt_u32 s%d, %d'%(S_I,n)); a('s_cbranch_scc1 %s_loop'%name)
    compute(1)
    gc.stamp(a,3)
    a('s_nop 3')
    stats_final(a,SUM,SQ,20,640,24,25)
    a('v_lshrrev_b32 v26, 1, v0'); a('s_lshl_b32 s%d, s%d, 5'%(S_T0,S_PW)); a('v_add_u32 v26, s%d, v26'%S_T0); a('v_lshlrev_b32 v26, 2, v26'); a('v_add_u32 v26, %d, v26'%T_R)
    a('ds_write_b32 v26, v24'); a('ds_write_b32 v26, v25 offset:512')
    if colsum:
        a('s_and_b32 s%d, s%d, 1'%(S_T0,S_PW)); a('s_mul_i32 s%d, s%d, 640'%(S_T0,S_T0)); a('s_cmp_lt_u32 s%d, 2'%S_PW); a('s_cselect_b32 s%d, 320, 0'%S_T1)
        a('s_add_u32 s%d, s%d, s%d'%(S_T0,S_T0,S_T1)); a('v_and_b32 v26, 15, v0'); a('v_lshlrev_b32 v26, 2, v26'); a('v_add_u32 v26, s%d, v26'%S_T0); a('v_add_u32 v26, %d, v26'%T_CS0)
        a('s_nop 4')
        lab=a.newlab(name+'_f')
        for j in range(5):
            if j==4: a('s_cmp_lt_u32 s%d, 2'%S_PW); a('s_cbranch_scc1 %s'%lab)
            a('ds_write_b32 v26, v%d offset:%d'%(CACC+4*j,j*64))
        a.lab(lab)

def gen_k1(a,kname):
    kernel_head(a,kname,'K1')
    a('s_load_dwordx2 s[%d:%d], s[0:1], 0'%(S_X,S_X+1))
    a('s_load_dwordx4 s[%d:%d], s[0:1], 24'%(S_WDRE,S_WDRE+3))
    a('s_load_dwordx2 s[%d:%d], s[0:1], 48'%(S_WIN,S_WIN+1))
    a('s_load_dwordx2 s[%d:%d], s[0:1], 88'%(S_DBG,S_DBG+1))
    a('s_load_dwordx2 s[%d:%d], s[0:1], 96'%(S_WS,S_WS+1))
    a('v_lshrrev_b32 v1, 6, v0'); a('v_and_b32 v0, 63, v0'); a('s_nop 0')
    a('v_readfirstlane_b32 s%d, v1'%S_WAVE)
    a('s_and_b32 s%d, s2, 7'%S_XCD); a('s_lshr_b32 s%d, s2, 3'%S_J)
    a('s_lshr_b32 s%d, s%d, 1'%(S_G,S_XCD)); a('s_and_b32 s%d, s%d, 1'%(S_HALF,S_XCD))
    a('s_cmp_ge_u32 s%d, 24'%S_J); a('s_cbranch_scc1 K1A_entry')
    a('s_mul_i32 s%d, s%d, 43'%(S_T0,S_J)); a('s_lshr_b32 s%d, s%d, 8'%(S_T0,S_T0))
    a('s_mul_i32 s%d, s%d, 6'%(S_T1,S_T0)); a('s_sub_u32 s%d, s%d, s%d'%(S_T1,S_J,S_T1))
    a('s_and_b32 s%d, s%d, 1'%(S_PAR,S_T1)); a('s_lshr_b32 s%d, s%d, 1'%(S_T1,S_T1)); a('s_mul_i32 s%d, s%d, 3'%(S_CT,S_HALF)); a('s_add_u32 s%d, s%d, s%d'%(S_CT,S_CT,S_T1))
    a('s_lshl_b32 s%d, s%d, 1'%(S_T1,S_G)); a('s_add_u32 s%d, s%d, s%d'%(S_T2,S_T1,S_T0))
    a('s_sub_u32 s%d, s%d, s%d'%(S_T3,S_T0,S_T1)); a('s_add_u32 s%d, s%d, 12'%(S_T3,S_T3))
    a('s_cmp_lt_u32 s%d, 2'%S_T0); a('s_cselect_b32 s%d, s%d, s%d'%(S_RB,S_T2,S_T3))
    a('s_cmp_ge_u32 s%d, 12'%S_WAVE); a('s_cbranch_scc1 K1Z_work')
    a('s_cmp_ge_u32 s%d, 8'%S_WAVE); a('s_cbranch_scc1 K1Z_prod')
    ACC=16; FA=56; FB=84; XA=[112,113,114,115]; WA=116
    a('s_and_b32 s%d, s%d, 3'%(S_PW,S_WAVE)); a('s_lshr_b32 s%d, s%d, 2'%(S_H,S_WAVE))
    a('v_and_b32 v1, 15, v0'); a('v_lshrrev_b32 v2, 4, v0')
    a('s_lshl_b32 s%d, s%d, 5'%(S_T0,S_PW)); a('v_add_u32 v3, s%d, v1'%S_T0); a('v_lshlrev_b32 v3, 7, v3')
    a('v_lshrrev_b32 v4, 1, v1'); a('v_lshrrev_b32 v5, 1, v2'); a('v_xor_b32 v4, v4, v5')
    a('v_lshl_add_u32 v3, v4, 4, v3'); a('v_and_b32 v5, 1, v2'); a('v_lshl_add_u32 v%d, v5, 3, v3'%XA[0])
    for k in range(1,4): a('v_xor_b32 v%d, %d, v%d'%(XA[k],32*k,XA[0]))
    a('v_lshrrev_b32 v3, 2, v1'); a('v_lshl_add_u32 v3, v2, 2, v3'); a('v_mul_u32_u24 v3, 288, v3'); a('v_and_b32 v4, 3, v1'); a('v_lshl_add_u32 v3, v4, 3, v3')
    a('s_mul_i32 s%d, s%d, 160'%(S_T0,S_H)); a('v_add_u32 v%d, s%d, v3'%(WA,S_T0))
    for k in range(40): a('v_mov_b32 v%d, 0'%(ACC+k))
    def acc(i,j): return ACC+(j*2+i)*4
    a('s_cmp_eq_u32 s%d, s%d'%(S_H,S_PAR)); a('s_cselect_b32 s%d, 0, 2'%S_T0); a('s_add_u32 s%d, s%d, s%d'%(S_T0,S_T0,S_H))
    for t,lab in ((1,'K1c_z2_1'),(2,'K1c_z1_0'),(3,'K1c_z1_1')):
        a('s_cmp_eq_u32 s%d, %d'%(S_T0,t)); a('s_cbranch_scc1 %s'%lab)
    for role in ('z2','z1'):
      for h in range(2):
        nj=5-h; nm='K1c_%s_%d'%(role,h)
        a.lab(nm)
        def rd(st,sub,nj=nj):
            F=FA if st==0 else FB; m=[]
            for i in range(2):
                for b in range(2): m.append('ds_read_b64 %s, v%d offset:%d'%(vr(F+i*4+b*2,2),XA[sub*2+b],i*2048))
            for j in range(nj):
                for b in range(2): m.append('ds_read_b64_tr_b16 %s, v%d offset:%d'%(vr(F+8+j*4+b*2,2),WA,16384+sub*9216+b*4608+j*32))
            return m
        def mf(st,role=role,nj=nj):
            F=FA if st==0 else FB; m=[]
            for j in range(nj):
                for i in range(2):
                    x=vr(F+i*4,4); w=vr(F+8+j*4,4); c=vr(acc(i,j),4)
                    m.append('v_mfma_f32_16x16x32_bf16 %s, %s, %s, %s'%((c,x,w,c) if role=='z2' else (c,w,x,c)))
            return m
        consumer_loop(a,nm+'L',SLZ,NK1,XA+[WA],rd,mf)
        a('s_barrier')
        gc.stamp(a,4)
        C0=112;C1=114;ONE=116
        a('v_mov_b32 v%d, 0x%x'%(C0,f2u(GC0))); a('v_mov_b32 v%d, 0x%x'%(C0+1,f2u(GC0)))
        a('v_mov_b32 v%d, 0x%x'%(C1,f2u(GC1))); a('v_mov_b32 v%d, 0x%x'%(C1+1,f2u(GC1)))
        a('v_mov_b32 v%d, 1.0'%ONE); a('v_mov_b32 v%d, 1.0'%(ONE+1))
        TMP=[56,58,60,62]; prs=[(i,p) for i in range(2) for p in range(2)]
        if role=='z2':
            RR=64; NM=72; CS=80; CSb=86; SUM=92; SQ=100; GRN=56; VO=118; PK=108
            a('s_lshl_b32 s%d, s%d, 7'%(S_T0,S_PW)); a('v_lshlrev_b32 v3, 4, v2'); a('v_add_u32 v3, s%d, v3'%S_T0); a('v_add_u32 v3, %d, v3'%T_R)
            for i in range(2):
                a('ds_read_b128 %s, v3 offset:%d'%(vr(RR+4*i,4),i*64)); a('ds_read_b128 %s, v3 offset:%d'%(vr(NM+4*i,4),512+i*64))
            a('v_lshlrev_b32 v4, 2, v1'); a('v_add_u32 v4, %d, v4'%(T_CS0+h*320))
            for j in range(nj):
                a('ds_read_b32 v%d, v4 offset:%d'%(CS+j,j*64)); a('ds_read_b32 v%d, v4 offset:%d'%(CSb+j,640+j*64))
            for k in range(8): a('v_mov_b32 v%d, 0'%(SUM+k)); a('v_mov_b32 v%d, 0'%(SQ+k))
            add64(a,S_T2,S_WS,WS_GR); srd(a,SRD_G,S_T2,S_T2+1,16*12288)
            a('s_mul_i32 s%d, s%d, 12288'%(S_SO,S_RB))
            a('s_lshl_b32 s%d, s%d, 1'%(S_T0,S_CT)); a('s_add_u32 s%d, s%d, %d'%(S_T0,S_T0,h)); a('s_lshl_b32 s%d, s%d, 10'%(S_T0,S_T0))
            a('s_lshl_b32 s%d, s%d, 8'%(S_T1,S_PW)); a('s_add_u32 s%d, s%d, s%d'%(S_T0,S_T0,S_T1)); a('s_add_u32 s%d, s%d, s%d'%(S_SO2,S_SO,S_T0))
            a('s_waitcnt lgkmcnt(0)')
            for j in range(nj): a('v_add_f32 v%d, v%d, v%d'%(CS+j,CS+j,CSb+j))
            for j in range(nj):
                csr=CS+j; cspair=vr(csr&~1,2); sel=csr&1
                for k,(i,p) in enumerate(prs): a('v_pk_mul_f32 %s, %s, %s op_sel:[0,%d] op_sel_hi:[1,%d]'%(vr(TMP[k],2),vr(NM+4*i+2*p,2),cspair,sel,sel))
                for k,(i,p) in enumerate(prs):
                    r=acc(i,j)+2*p; a('v_pk_fma_f32 %s, %s, %s, %s'%(vr(r,2),vr(r,2),vr(RR+4*i+2*p,2),vr(TMP[k],2)))
                gelu_pairs(a,[acc(i,j)+2*p for (i,p) in prs],TMP,C0,C1,ONE)
                for k,(i,p) in enumerate(prs):
                    r=acc(i,j)+2*p
                    a('v_pk_add_f32 %s, %s, %s'%(vr(SUM+4*i+2*p,2),vr(SUM+4*i+2*p,2),vr(r,2)))
                    a('v_pk_fma_f32 %s, %s, %s, %s'%(vr(SQ+4*i+2*p,2),vr(r,2),vr(r,2),vr(SQ+4*i+2*p,2)))
            gc.stamp(a,5) if False else None
            for sh in (8,4,2):
                for k in range(8): a('v_add_f32_dpp v%d, v%d, v%d row_ror:%d row_mask:0xf bank_mask:0xf'%(SUM+k,SUM+k,SUM+k,sh))
                for k in range(8): a('v_add_f32_dpp v%d, v%d, v%d row_ror:%d row_mask:0xf bank_mask:0xf'%(SQ+k,SQ+k,SQ+k,sh))
            for k in range(8): a('v_add_f32_dpp v%d, v%d, v%d row_ror:1 row_mask:0xf bank_mask:0xf'%(GRN+2*k,SUM+k,SUM+k))
            for k in range(8): a('v_add_f32_dpp v%d, v%d, v%d row_ror:1 row_mask:0xf bank_mask:0xf'%(GRN+2*k+1,SQ+k,SQ+k))
            a('v_lshlrev_b32 v3, 5, v2'); a('v_cmp_eq_u32 vcc, 0, v1'); a('s_and_saveexec_b64 s[%d:%d], vcc'%(S_EX,S_EX+1))
            for i in range(2):
                for p in range(2): a('buffer_store_dwordx4 %s, v3, s[%d:%d], s%d offen offset:%d sc1'%(vr(GRN+8*i+4*p,4),SRD_G,SRD_G+3,S_SO2,i*128+p*16))
            a('s_mov_b64 exec, s[%d:%d]'%(S_EX,S_EX+1))
            PL=72
            a('v_and_b32 v4, 31, v0'); a('v_lshrrev_b32 v5, 5, v0'); a('v_mul_u32_u24 v5, 6144, v5'); a('v_lshl_add_u32 v4, v4, 3, v5')
            a('s_lshl_b32 s%d, s%d, 8'%(S_T1,S_PW)); a('v_add_u32 v4, s%d, v4'%S_T1); a('v_add_u32 v5, 4096, v4')
            a('s_mov_b32 s%d, 0'%S_I)
            a.lab(nm+'_poll')
            for k in range(6): a('buffer_load_dwordx2 %s, v%d, s[%d:%d], s%d offen offset:%d sc1'%(vr(PL+2*k,2),4 if k<4 else 5,SRD_G,SRD_G+3,S_SO,(k%4)*1024))
            a('s_waitcnt vmcnt(0)')
            a('v_max3_u32 v6, v%d, v%d, v%d'%(PL,PL+1,PL+2))
            for k in range(3,12,2):
                a('v_max3_u32 v6, v6, v%d, v%d'%(PL+k,PL+k+1) if k+1<12 else 'v_max_u32 v6, v6, v%d'%(PL+k))
            a('v_cmp_eq_u32 s[%d:%d], -1, v6'%(S_EX,S_EX+1)); a('s_nop 1'); a('s_cmp_eq_u64 s[%d:%d], 0'%(S_EX,S_EX+1)); a('s_cbranch_scc1 %s_rdy'%nm)
            a('s_add_u32 s%d, s%d, 1'%(S_I,S_I)); a('s_cmp_lt_u32 s%d, %d'%(S_I,POLL_BOUND)); a('s_cbranch_scc1 %s_poll'%nm)
            a.lab(nm+'_rdy')
            gc.stamp(a,5) if False else None
            a('v_pk_add_f32 %s, %s, %s'%(vr(PL,2),vr(PL,2),vr(PL+2,2))); a('v_pk_add_f32 %s, %s, %s'%(vr(PL+4,2),vr(PL+4,2),vr(PL+6,2))); a('v_pk_add_f32 %s, %s, %s'%(vr(PL+8,2),vr(PL+8,2),vr(PL+10,2)))
            a('v_pk_add_f32 %s, %s, %s'%(vr(PL,2),vr(PL,2),vr(PL+4,2))); a('v_pk_add_f32 %s, %s, %s'%(vr(PL,2),vr(PL,2),vr(PL+8,2)))
            a('v_mov_b32 v%d, v%d'%(PL+2,PL)); a('v_mov_b32 v%d, v%d'%(PL+3,PL+1)); a('s_nop 1')
            a('v_permlane32_swap_b32 v%d, v%d'%(PL,PL+2)); a('v_permlane32_swap_b32 v%d, v%d'%(PL+1,PL+3)); a('s_nop 1')
            a('v_pk_add_f32 %s, %s, %s'%(vr(PL,2),vr(PL,2),vr(PL+2,2)))
            a('v_mul_f32 v%d, 0x%x, v%d'%(PL,f2u(1.0/864),PL)); a('v_mul_f32 v%d, 0x%x, v%d'%(PL+1,f2u(1.0/864),PL+1))
            a('v_fma_f32 v%d, -v%d, v%d, v%d'%(PL+1,PL,PL,PL+1)); a('v_max_f32 v%d, 0, v%d'%(PL+1,PL+1)); a('v_add_f32 v%d, 0x%x, v%d'%(PL+1,f2u(1e-5),PL+1))
            a('v_rsq_f32 v%d, v%d'%(PL+2,PL+1)); a('s_nop 0'); a('v_mul_f32 v%d, v%d, v%d'%(PL+3,PL,PL+2)); a('v_sub_f32 v%d, 0, v%d'%(PL+3,PL+3))
            a('s_lshl_b32 s%d, s%d, 8'%(S_T0,S_WAVE)); a('s_add_u32 s%d, s%d, %d'%(S_T0,S_T0,T_W2))
            a('v_and_b32 v4, 31, v0'); a('v_lshlrev_b32 v4, 2, v4'); a('v_add_u32 v4, s%d, v4'%S_T0)
            a('ds_write_b32 v4, v%d'%(PL+2)); a('ds_write_b32 v4, v%d offset:128'%(PL+3))
            a('v_lshlrev_b32 v5, 4, v2'); a('v_add_u32 v5, s%d, v5'%S_T0)
            a('s_waitcnt lgkmcnt(0)')
            for i in range(2):
                a('ds_read_b128 %s, v5 offset:%d'%(vr(RR+4*i,4),i*64)); a('ds_read_b128 %s, v5 offset:%d'%(vr(84+4*i,4),128+i*64))
            NM2=84
            a('s_mul_i32 s%d, s%d, %d'%(S_T0,S_CT,Z2_CT)); a('s_lshl_b32 s%d, s%d, 1'%(S_T1,S_RB)); a('s_lshr_b32 s%d, s%d, 1'%(S_T2,S_PW))
            a('s_add_u32 s%d, s%d, s%d'%(S_T1,S_T1,S_T2)); a('s_mul_i32 s%d, s%d, 18432'%(S_T1,S_T1)); a('s_add_u32 s%d, s%d, s%d'%(S_T0,S_T0,S_T1))
            a('s_and_b32 s%d, s%d, 1'%(S_T1,S_PW)); a('s_mul_i32 s%d, s%d, 9216'%(S_T1,S_T1)); a('s_add_u32 s%d, s%d, s%d'%(S_T0,S_T0,S_T1))
            a('s_add_u32 s%d, s%d, %d'%(S_SO,S_T0,5120*h))
            srd(a,SRD_O,S_WS,S_WS+1,6*Z2_CT)
            a('v_lshlrev_b32 v%d, 4, v0'%VO)
            a('s_waitcnt lgkmcnt(0)')
            for j in range(nj):
                for k,(i,p) in enumerate(prs):
                    r=acc(i,j)+2*p; a('v_pk_fma_f32 %s, %s, %s, %s'%(vr(r,2),vr(r,2),vr(RR+4*i+2*p,2),vr(NM2+4*i+2*p,2)))
                o=PK+4*(j&1)
                for k,(i,p) in enumerate(prs):
                    r=acc(i,j)+2*p; a('v_cvt_pk_bf16_f32 v%d, v%d, v%d'%(o+k,r,r+1))
                a('s_nop 1')
                a('v_permlane32_swap_b32 v%d, v%d'%(o,o+2)); a('v_permlane32_swap_b32 v%d, v%d'%(o+1,o+3)); a('s_nop 1')
                a('v_permlane16_swap_b32 v%d, v%d'%(o,o+2)); a('v_permlane16_swap_b32 v%d, v%d'%(o+1,o+3))
                if j<4: a('buffer_store_dwordx4 %s, v%d, s[%d:%d], s%d offen offset:%d%s'%(vr(o,4),VO,SRD_O,SRD_O+3,S_SO,j*1024,g2.STF))
                else:
                    a('s_add_u32 s%d, s%d, 4096'%(S_SO,S_SO)); a('buffer_store_dwordx4 %s, v%d, s[%d:%d], s%d offen%s'%(vr(o,4),VO,SRD_O,SRD_O+3,S_SO,g2.STF))
            a('s_branch K1_end')
        else:
            RR=64; NM=66; CS=68; CSb=88; PK=100; VO=118
            a('s_lshl_b32 s%d, s%d, 7'%(S_T0,S_PW)); a('v_lshlrev_b32 v3, 2, v1'); a('v_add_u32 v3, s%d, v3'%S_T0); a('v_add_u32 v3, %d, v3'%T_R)
            for i in range(2):
                a('ds_read_b32 v%d, v3 offset:%d'%(RR+i,i*64)); a('ds_read_b32 v%d, v3 offset:%d'%(NM+i,512+i*64))
            a('v_lshlrev_b32 v4, 4, v2'); a('v_add_u32 v4, %d, v4'%(T_CS0+320*h))
            for j in range(nj):
                a('ds_read_b128 %s, v4 offset:%d'%(vr(CS+4*j,4),j*64)); a('ds_read_b128 %s, v4 offset:%d'%(vr(CSb+4*j,4),640+j*64))
            a('s_mul_i32 s%d, s%d, 6'%(S_T0,S_RB)); a('s_add_u32 s%d, s%d, s%d'%(S_T0,S_T0,S_CT)); a('s_lshl_b32 s%d, s%d, 3'%(S_T0,S_T0))
            a('s_add_u32 s%d, s%d, s%d'%(S_T0,S_T0,S_WAVE)); a('s_mul_i32 s%d, s%d, 5120'%(S_SO,S_T0))
            add64(a,S_T2,S_WS,WS_Z1); srd(a,SRD_O,S_T2,S_T2+1,96*40960)
            a('v_lshlrev_b32 v%d, 4, v0'%VO)
            a('s_waitcnt lgkmcnt(0)')
            for j in range(nj):
                for p in range(2): a('v_pk_add_f32 %s, %s, %s'%(vr(CS+4*j+2*p,2),vr(CS+4*j+2*p,2),vr(CSb+4*j+2*p,2)))
            for j in range(nj):
                for k,(i,p) in enumerate(prs): a('v_pk_mul_f32 %s, %s, %s op_sel:[0,%d] op_sel_hi:[1,%d]'%(vr(TMP[k],2),vr(CS+4*j+2*p,2),vr(NM,2),i,i))
                for k,(i,p) in enumerate(prs):
                    r=acc(i,j)+2*p; a('v_pk_fma_f32 %s, %s, %s, %s op_sel:[0,%d,0] op_sel_hi:[1,%d,1]'%(vr(r,2),vr(r,2),vr(RR,2),vr(TMP[k],2),i,i))
                gelu_pairs(a,[acc(i,j)+2*p for (i,p) in prs],TMP,C0,C1,ONE)
                o=PK+4*(j&1)
                for k,(i,p) in enumerate(prs):
                    r=acc(i,j)+2*p; a('v_cvt_pk_bf16_f32 v%d, v%d, v%d'%(o+k,r,r+1))
                if j<4: a('buffer_store_dwordx4 %s, v%d, s[%d:%d], s%d offen offset:%d%s'%(vr(o,4),VO,SRD_O,SRD_O+3,S_SO,j*1024,g2.STF))
                else:
                    a('s_add_u32 s%d, s%d, 4096'%(S_SO,S_SO)); a('buffer_store_dwordx4 %s, v%d, s[%d:%d], s%d offen%s'%(vr(o,4),VO,SRD_O,SRD_O+3,S_SO,g2.STF))
            a('s_branch K1_end')
    a.lab('K1Z_prod')
    XO=[2,3]; WO=[4,5,6,7,8]
    a('s_sub_u32 s%d, s%d, 8'%(S_PW,S_WAVE))
    a('v_lshrrev_b32 v20, 3, v0'); a('s_lshl_b32 s%d, s%d, 5'%(S_T0,S_PW)); a('v_add_u32 v21, s%d, v20'%S_T0); a('v_mul_u32_u24 v21, 1280, v21')
    a('v_and_b32 v22, 7, v0'); a('v_lshrrev_b32 v23, 4, v0'); a('v_xor_b32 v22, v22, v23')
    a('v_lshl_add_u32 v%d, v22, 4, v21'%XO[0]); a('v_xor_b32 v22, 4, v22'); a('v_lshl_add_u32 v%d, v22, 4, v21'%XO[1])
    a('s_mul_i32 s%d, s%d, 288'%(S_T0,S_CT)); a('s_cmp_eq_u32 s%d, 0'%S_PAR); a('s_cselect_b32 s%d, 1728, 0'%S_T1); a('s_cselect_b32 s%d, 0, 1728'%S_T2)
    a('s_add_u32 s%d, s%d, s%d'%(S_T1,S_T1,S_T0)); a('s_add_u32 s%d, s%d, s%d'%(S_T2,S_T2,S_T0))
    a('v_mov_b32 v24, s%d'%S_T1); a('v_mov_b32 v25, s%d'%S_T2)
    for i in range(5):
        a('s_lshl_b32 s%d, s%d, 6'%(S_T0,S_PW)); a('s_add_u32 s%d, s%d, %d'%(S_T0,S_T0,256*i)); a('v_add_u32 v20, s%d, v0'%S_T0)
        a('v_mul_u32_u24 v21, 3641, v20'); a('v_lshrrev_b32 v21, 16, v21')
        a('v_mul_u32_u24 v22, 18, v21'); a('v_sub_u32 v22, v20, v22'); a('v_cmp_gt_u32 vcc, 10, v22'); a('v_mul_u32_u24 v21, 3456, v21'); a('v_lshl_add_u32 v21, v22, 4, v21')
        a('v_cndmask_b32 v23, v25, v24, vcc'); a('v_add_u32 v%d, v21, v23'%WO[i])
    a('s_mov_b32 s%d, 0'%S_SLI); a('s_mov_b32 s%d, 0'%S_KX); a('s_mov_b32 s%d, 0'%S_KW)
    a('s_waitcnt lgkmcnt(0)')
    a('s_mul_i32 s%d, s%d, %d'%(S_T0,S_RB,128*1280)); add64(a,S_X,S_X,'s%d'%S_T0); srd(a,SRD_X,S_X,S_X+1,128*1280)
    srd(a,SRD_W,S_WIN,S_WIN+1,640*3456)
    def issueZ():
        a('s_lshl_b32 s%d, s%d, 12'%(S_T,S_PW)); a('s_add_u32 s%d, s%d, s%d'%(S_T,S_T,S_SLI))
        for j in range(4):
            a('s_add_u32 m0, s%d, %d'%(S_T,j*1024)); a('s_add_u32 s%d, s%d, %d'%(S_SO,S_KX,j*10240))
            a(ld('buffer_load_dwordx4 v%d, s[%d:%d], s%d offen lds'%(XO[j&1],SRD_X,SRD_X+3,S_SO)))
        a('s_lshl_b32 s%d, s%d, 10'%(S_T,S_PW)); a('s_add_u32 s%d, s%d, s%d'%(S_T,S_T,S_SLI))
        lab=a.newlab('K1Zp_s')
        for i in range(5):
            if i==4: a('s_cmp_lt_u32 s%d, 2'%S_PW); a('s_cbranch_scc0 %s'%lab)
            a('s_add_u32 m0, s%d, %d'%(S_T,16384+i*4096)); a('s_nop 0')
            a(ld('buffer_load_dwordx4 v%d, s[%d:%d], s%d offen lds'%(WO[i],SRD_W,SRD_W+3,S_KW)))
        a.lab(lab)
        slot_advance(a,S_SLI,SLZ); a('s_add_u32 s%d, s%d, 128'%(S_KX,S_KX)); a('s_add_u32 s%d, s%d, %d'%(S_KW,S_KW,64*3456))
    dma_producer(a,'K1Zp',NK1,8,issueZ)
    a('s_branch K1_end')
    a.lab('K1Z_work')
    a('s_sub_u32 s%d, s%d, 12'%(S_PW,S_WAVE))
    a('s_waitcnt lgkmcnt(0)')
    add64(a,S_T2,S_WS,WS_GR); srd(a,SRD_G,S_T2,S_T2+1,16*12288)
    srd(a,SRD_D,S_DBG,S_DBG+1,256)
    a('s_cmp_eq_u32 s%d, 0'%S_PW); a('s_cbranch_scc0 K1Zw_noclr')
    a('s_mul_i32 s%d, s%d, 12288'%(S_SO,S_RB)); a('s_lshl_b32 s%d, s%d, 1'%(S_T0,S_CT)); a('s_add_u32 s%d, s%d, s%d'%(S_T0,S_T0,S_PAR)); a('s_lshl_b32 s%d, s%d, 10'%(S_T0,S_T0))
    a('s_add_u32 s%d, s%d, s%d'%(S_SO,S_SO,S_T0))
    for k in range(4): a('v_mov_b32 v%d, -1'%(4+k))
    a('v_lshlrev_b32 v3, 4, v0')
    a('buffer_store_dwordx4 v[4:7], v3, s[%d:%d], s%d offen sc1'%(SRD_G,SRD_G+3,S_SO))
    a('s_waitcnt vmcnt(0)')
    a('v_mov_b32 v4, 1'); a('s_lshl_b32 s%d, s%d, 4'%(S_T0,S_RB)); a('v_mov_b32 v3, s%d'%S_T0)
    a('v_cmp_eq_u32 vcc, 0, v0'); a('s_and_saveexec_b64 s[%d:%d], vcc'%(S_EX,S_EX+1))
    a('buffer_atomic_add v4, v3, s[%d:%d], 0 offen sc1'%(SRD_D,SRD_D+3))
    a('s_mov_b64 exec, s[%d:%d]'%(S_EX,S_EX+1))
    a.lab('K1Zw_noclr')
    worker(a,'K1Zw',SLZ,True)
    a('s_cmp_eq_u32 s%d, 0'%S_PW); a('s_cbranch_scc0 K1Zw_nopoll')
    a('s_lshl_b32 s%d, s%d, 4'%(S_T0,S_RB)); a('v_mov_b32 v3, s%d'%S_T0); a('s_mov_b32 s%d, 0'%S_I)
    a.lab('K1Zw_poll')
    a('buffer_load_dword v4, v3, s[%d:%d], 0 offen sc1'%(SRD_D,SRD_D+3)); a('s_waitcnt vmcnt(0)')
    a('v_readfirstlane_b32 s%d, v4'%S_T1); a('s_nop 3'); a('s_cmp_ge_u32 s%d, 12'%S_T1); a('s_cbranch_scc1 K1Zw_nopoll')
    a('s_add_u32 s%d, s%d, 1'%(S_I,S_I)); a('s_cmp_lt_u32 s%d, %d'%(S_I,POLL_BOUND)); a('s_cbranch_scc1 K1Zw_poll')
    a.lab('K1Zw_nopoll')
    a('s_waitcnt lgkmcnt(0)'); a('s_barrier'); a('s_branch K1_end')

    a.lab('K1A_entry')
    a('s_sub_u32 s%d, s%d, 24'%(S_T0,S_J)); a('s_lshr_b32 s%d, s%d, 1'%(S_T1,S_T0)); a('s_and_b32 s%d, s%d, 1'%(S_CT,S_T0))
    a('s_lshl_b32 s%d, s%d, 2'%(S_RB,S_G)); a('s_add_u32 s%d, s%d, s%d'%(S_RB,S_RB,S_T1))
    a('s_cmp_ge_u32 s%d, 12'%S_WAVE); a('s_cbranch_scc1 K1A_work')
    a('s_cmp_ge_u32 s%d, 8'%S_WAVE); a('s_cbranch_scc1 K1A_prod')
    ACC=16; FA=56; FB=84; XA=[112,113]; WA2=[114,115]
    a('s_and_b32 s%d, s%d, 3'%(S_PW,S_WAVE)); a('s_lshr_b32 s%d, s%d, 2'%(S_H,S_WAVE))
    a('v_and_b32 v1, 15, v0'); a('v_lshrrev_b32 v2, 4, v0'); a('v_and_b32 v3, 7, v0'); a('v_xor_b32 v3, v3, v2'); a('v_lshlrev_b32 v3, 4, v3')
    a('v_lshl_add_u32 v3, v1, 7, v3')
    a('s_lshl_b32 s%d, s%d, 11'%(S_T0,S_PW)); a('v_add_u32 v%d, s%d, v3'%(XA[0],S_T0)); a('v_xor_b32 v%d, 64, v%d'%(XA[1],XA[0]))
    a('s_mul_i32 s%d, s%d, %d'%(S_T0,S_H,80*128)); a('s_add_u32 s%d, s%d, 16384'%(S_T0,S_T0)); a('v_add_u32 v%d, s%d, v3'%(WA2[0],S_T0)); a('v_xor_b32 v%d, 64, v%d'%(WA2[1],WA2[0]))
    for k in range(40): a('v_mov_b32 v%d, 0'%(ACC+k))
    def accA(tb,j): return ACC+(j*2+tb)*4
    def rdA(st,sub):
        F=FA if st==0 else FB; m=[]
        for tb in range(2): m.append('ds_read_b128 %s, v%d offset:%d'%(vr(F+tb*4,4),XA[sub],tb*8192))
        for j in range(5): m.append('ds_read_b128 %s, v%d offset:%d'%(vr(F+8+j*4,4),WA2[sub],j*2048))
        return m
    def mfA(st):
        F=FA if st==0 else FB; m=[]
        for j in range(5):
            for tb in range(2):
                c=vr(accA(tb,j),4); m.append('v_mfma_f32_16x16x32_bf16 %s, %s, %s, %s'%(c,vr(F+tb*4,4),vr(F+8+j*4,4),c))
        return m
    consumer_loop(a,'K1A',SLA,NK1,XA+WA2,rdA,mfA)
    a('s_barrier')
    gc.stamp(a,4)
    RT=56; RB_=60; RO=64; T4=[66,68]; PK=70; VO=76
    a('s_lshl_b32 s%d, s%d, 6'%(S_T0,S_PW)); a('v_lshlrev_b32 v3, 4, v2'); a('v_add_u32 v3, s%d, v3'%S_T0); a('v_add_u32 v3, %d, v3'%T_R)
    a('ds_read_b128 %s, v3'%vr(RT,4)); a('ds_read_b128 %s, v3 offset:256'%vr(RB_,4))
    a('s_mul_i32 s%d, s%d, %d'%(S_T0,S_HALF,AE_MAT)); a('s_lshl_b32 s%d, s%d, 1'%(S_T1,S_CT)); a('s_add_u32 s%d, s%d, s%d'%(S_T1,S_T1,S_H))
    a('s_mul_i32 s%d, s%d, 163840'%(S_T1,S_T1)); a('s_add_u32 s%d, s%d, s%d'%(S_T0,S_T0,S_T1)); a('s_mul_i32 s%d, s%d, 10240'%(S_T1,S_RB))
    a('s_add_u32 s%d, s%d, s%d'%(S_T0,S_T0,S_T1)); a('s_lshr_b32 s%d, s%d, 1'%(S_T1,S_PW)); a('s_mul_i32 s%d, s%d, 5120'%(S_T1,S_T1)); a('s_add_u32 s%d, s%d, s%d'%(S_SO,S_T0,S_T1))
    add64(a,S_T2,S_WS,WS_AE); srd(a,SRD_O,S_T2,S_T2+1,2*AE_MAT)
    a('s_and_b32 s%d, s%d, 1'%(S_T0,S_PW)); a('s_lshl_b32 s%d, s%d, 9'%(S_T0,S_T0))
    a('v_lshrrev_b32 v3, 1, v2'); a('v_lshlrev_b32 v3, 8, v3'); a('v_lshl_add_u32 v3, v1, 4, v3'); a('v_and_b32 v4, 1, v2'); a('v_lshl_add_u32 v3, v4, 3, v3')
    a('v_add_u32 v%d, s%d, v3'%(VO,S_T0))
    a('s_waitcnt lgkmcnt(0)')
    a('s_or_b32 s%d, s%d, s%d'%(S_T0,S_RB,S_PW)); a('s_or_b32 s%d, s%d, s%d'%(S_T0,S_T0,S_HALF)); a('s_cmp_eq_u32 s%d, 0'%S_T0); a('s_cbranch_scc0 K1A_nosp')
    add64(a,S_T2,S_WS,WS_A1024); srd(a,SRD_O2,S_T2,S_T2+1,1280)
    a('s_mul_i32 s%d, s%d, 640'%(S_T0,S_CT)); a('s_mul_i32 s%d, s%d, 320'%(S_T1,S_H)); a('s_add_u32 s%d, s%d, s%d'%(S_T0,S_T0,S_T1))
    a('v_lshlrev_b32 v5, 2, v1')
    a('v_cmp_gt_u32 vcc, 16, v0'); a('s_and_saveexec_b64 s[%d:%d], vcc'%(S_EX,S_EX+1))
    for j in range(5):
        a('v_mul_f32 v%d, v%d, v%d'%(RO,accA(1,j),RB_))
        a('buffer_store_dword v%d, v5, s[%d:%d], s%d offen offset:%d%s'%(RO,SRD_O2,SRD_O2+3,S_T0,j*64,g2.STF)); a('s_nop 0')
    a('v_mov_b32 v%d, 0'%RB_)
    a('s_mov_b64 exec, s[%d:%d]'%(S_EX,S_EX+1))
    a.lab('K1A_nosp')
    a('s_cmp_eq_u32 s%d, 0'%S_HALF); a('s_cselect_b32 s%d, 1.0, -1.0'%S_T0)
    for k in range(4): a('v_mul_f32 v%d, s%d, v%d'%(RB_+k,S_T0,RB_+k))
    for j in range(5):
        for p in range(2): a('v_pk_mul_f32 %s, %s, %s'%(vr(T4[p],2),vr(accA(1,j)+2*p,2),vr(RB_+2*p,2)))
        for p in range(2): a('v_pk_fma_f32 %s, %s, %s, %s'%(vr(T4[p],2),vr(accA(0,j)+2*p,2),vr(RT+2*p,2),vr(T4[p],2)))
        for p in range(2): a('v_cvt_pk_bf16_f32 v%d, v%d, v%d'%(PK+p+2*(j&1),T4[p],T4[p]+1))
        if j<4: a('buffer_store_dwordx2 %s, v%d, s[%d:%d], s%d offen offset:%d%s'%(vr(PK+2*(j&1),2),VO,SRD_O,SRD_O+3,S_SO,j*1024,g2.STF))
        else:
            a('s_add_u32 s%d, s%d, 4096'%(S_SO,S_SO)); a('buffer_store_dwordx2 %s, v%d, s[%d:%d], s%d offen%s'%(vr(PK+2*(j&1),2),VO,SRD_O,SRD_O+3,S_SO,g2.STF))
    a('s_branch K1_end')
    a.lab('K1A_prod')
    XO4=[2,3,4,5]; WO1=6
    a('s_sub_u32 s%d, s%d, 8'%(S_PW,S_WAVE))
    a('v_lshrrev_b32 v20, 3, v0'); a('v_and_b32 v22, 7, v0'); a('v_xor_b32 v22, v22, v20'); a('v_lshlrev_b32 v22, 4, v22')
    a('s_lshl_b32 s%d, s%d, 6'%(S_T0,S_RB))
    a('s_cmp_lt_u32 s%d, 2'%S_PW); a('s_cbranch_scc0 K1Ap_bot')
    a('s_lshl_b32 s%d, s%d, 5'%(S_T1,S_PW)); a('s_add_u32 s%d, s%d, s%d'%(S_T1,S_T1,S_T0))
    for j in range(4):
        a('v_add_u32 v21, s%d, v20'%S_T1); a('v_add_u32 v21, %d, v21'%(8*j)); a('v_mul_u32_u24 v21, 1280, v21'); a('v_add_u32 v%d, v21, v22'%XO4[j])
    a('s_branch K1Ap_xd')
    a.lab('K1Ap_bot')
    a('s_sub_u32 s%d, s%d, 2'%(S_T1,S_PW)); a('s_lshl_b32 s%d, s%d, 5'%(S_T1,S_T1)); a('s_add_u32 s%d, s%d, s%d'%(S_T1,S_T1,S_T0)); a('s_sub_u32 s%d, 2048, s%d'%(S_T1,S_T1))
    for j in range(4):
        a('v_sub_u32 v21, s%d, v20'%S_T1); a('v_subrev_u32 v21, %d, v21'%(8*j))
        if j==0:
            a('v_cmp_eq_u32 vcc, 2048, v21'); a('v_mov_b32 v23, 1024'); a('s_nop 0'); a('v_cndmask_b32 v21, v21, v23, vcc')
        a('v_mul_u32_u24 v21, 1280, v21'); a('v_add_u32 v%d, v21, v22'%XO4[j])
    a.lab('K1Ap_xd')
    a('s_mul_i32 s%d, s%d, 40'%(S_T0,S_PW)); a('v_add_u32 v21, s%d, v20'%S_T0); a('v_mul_u32_u24 v21, 1280, v21'); a('v_add_u32 v%d, v21, v22'%WO1)
    a('s_mov_b32 s%d, 0'%S_SLI); a('s_mov_b32 s%d, 0'%S_KX)
    a('s_waitcnt lgkmcnt(0)')
    srd(a,SRD_X,S_X,S_X+1,2048*1280)
    a('s_cmp_eq_u32 s%d, 0'%S_HALF); a('s_cselect_b32 s%d, s%d, s%d'%(S_T2,S_WDRE,S_WDIM)); a('s_cselect_b32 s%d, s%d, s%d'%(S_T3,S_WDRE+1,S_WDIM+1))
    a('s_mul_i32 s%d, s%d, %d'%(S_T0,S_CT,160*1280)); a('s_add_u32 s%d, s%d, 1280'%(S_T0,S_T0)); add64(a,S_T2,S_T2,'s%d'%S_T0)
    srd(a,SRD_W,S_T2,S_T2+1,160*1280)
    def issueA():
        a('s_lshl_b32 s%d, s%d, 12'%(S_T,S_PW)); a('s_add_u32 s%d, s%d, s%d'%(S_T,S_T,S_SLI))
        for j in range(4):
            a('s_add_u32 m0, s%d, %d'%(S_T,j*1024)); a('s_nop 0')
            a(ld('buffer_load_dwordx4 v%d, s[%d:%d], s%d offen lds'%(XO4[j],SRD_X,SRD_X+3,S_KX)))
        a('s_mul_i32 s%d, s%d, 5120'%(S_T,S_PW)); a('s_add_u32 s%d, s%d, s%d'%(S_T,S_T,S_SLI))
        for j in range(5):
            a('s_add_u32 m0, s%d, %d'%(S_T,16384+j*1024)); a('s_add_u32 s%d, s%d, %d'%(S_SO,S_KX,j*10240))
            a(ld('buffer_load_dwordx4 v%d, s[%d:%d], s%d offen lds'%(WO1,SRD_W,SRD_W+3,S_SO)))
        slot_advance(a,S_SLI,SLA); a('s_add_u32 s%d, s%d, 128'%(S_KX,S_KX))
    dma_producer(a,'K1Ap',NK1,9,issueA)
    a('s_branch K1_end')
    a.lab('K1A_work')
    a('s_sub_u32 s%d, s%d, 12'%(S_PW,S_WAVE))
    a('s_waitcnt lgkmcnt(0)')
    worker(a,'K1Aw',SLA,False)
    a('s_waitcnt lgkmcnt(0)'); a('s_barrier')
    kernel_tail(a,'K1',0,S_WS)
```

```python
from gen_common import *
import gen_common as gc
import struct
def f2u(f): return struct.unpack('<I',struct.pack('<f',f))[0]
WS_GR = 0x08D0000
WS_LN1 = 0x08C8000
NS=4
S_WAVE=32; S_XCD=33; S_J=34; S_G=35; S_HALF=36; S_RB=37; S_CT=38; S_PW=39; S_H=40
S_I=41; S_SLI=42; S_SLC=43; S_KX=44; S_KW=45; S_T=46; S_SO=47; S_T0=48; S_T1=49; S_T2=50; S_T3=51; S_SO2=52; S_PAR=53
S_EX=54
EXP={}
LDF=''
STF=''

def srd(a,d,lo,hi,size):
    a('s_mov_b32 s%d, s%d'%(d,lo)); a('s_mov_b32 s%d, s%d'%(d+1,hi))
    if isinstance(size,int): a('s_mov_b32 s%d, 0x%x'%(d+2,size))
    else: a('s_mov_b32 s%d, %s'%(d+2,size))
    a('s_mov_b32 s%d, 0x00020000'%(d+3))
def add64(a,dlo,slo,off):
    o = off if isinstance(off,str) else '0x%x'%off
    a('s_add_u32 s%d, s%d, %s'%(dlo,slo,o)); a('s_addc_u32 s%d, s%d, 0'%(dlo+1,slo+1))
def slot_advance(a,s,SL,ns=NS):
    a('s_add_u32 s%d, s%d, %d'%(s,s,SL)); a('s_cmp_eq_u32 s%d, %d'%(s,ns*SL)); a('s_cselect_b32 s%d, 0, s%d'%(s,s))

def dma_producer(a,name,n,c,issue,tail=None):
    if EXP.get('pprio'): a('s_setprio %d'%EXP['pprio'])
    gc.stamp(a,1)
    issue(); issue()
    gc.stamp(a,2)
    a('s_waitcnt vmcnt(%d)'%c); gc.stamp(a,3); a('s_barrier')
    issue(); issue()
    a('s_mov_b32 s%d, %d'%(S_I,n-4))
    a.lab(name+'_loop')
    a('s_waitcnt vmcnt(%d)'%(2*c)); a('s_barrier')
    issue()
    a('s_sub_u32 s%d, s%d, 1'%(S_I,S_I)); a('s_cmp_lg_u32 s%d, 0'%S_I); a('s_cbranch_scc1 %s_loop'%name)
    a('s_waitcnt vmcnt(%d)'%(2*c)); a('s_barrier')
    a('s_waitcnt vmcnt(%d)'%c); a('s_barrier')
    a('s_waitcnt vmcnt(0)'); a('s_barrier')
    gc.stamp(a,4)

def consumer_loop(a,name,SL,n,addr_regs,reads,mfmas,ns=NS,hook=None,hook_at=2,lag=False,nsub=2):
    def R(s): return [] if EXP.get('noread') else reads(s,s)
    def M(s): return [] if EXP.get('nomfma') else mfmas(s)
    book=['s_mov_b32 s%d, s%d'%(S_T0,S_SLC),'s_add_u32 s%d, s%d, %d'%(S_SLC,S_SLC,SL),'s_cmp_eq_u32 s%d, %d'%(S_SLC,ns*SL),'s_cselect_b32 s%d, 0, s%d'%(S_SLC,S_SLC),
          's_sub_u32 s%d, s%d, s%d'%(S_T0,S_SLC,S_T0),'s_add_u32 s%d, s%d, 1'%(S_I,S_I)]
    upd=['v_add_u32 v%d, s%d, v%d'%(r,S_T0,r) for r in addr_regs]
    a('s_mov_b32 s%d, 0'%S_I); a('s_mov_b32 s%d, 0'%S_SLC)
    if EXP.get('fine') is None: gc.stamp(a,1)
    if not lag:
        a('s_barrier')
        if EXP.get('fine') is None: gc.stamp(a,2)
        a.lab(name+'_loop')
        fine(a,1,name)
        if not EXP.get('noprio'): a('s_setprio 1')
        for s_ in range(nsub):
            for x in R(s_): a(x)
        if not EXP.get('noprio'): a('s_setprio 0')
        fine(a,2,name)
        for x in book: a(x)
        for x in upd: a(x)
        if hook is not None:
            a('s_cmp_eq_u32 s%d, %d'%(S_I,hook_at)); a('s_cbranch_scc0 %s_nh'%name); hook(); a.lab(name+'_nh')
        if EXP.get('fine') is not None: a('s_sub_u32 s%d, s%d, 1'%(S_I,S_I))
        for s_ in range(nsub):
            later=sum(len(R(t)) for t in range(s_+1,nsub))
            a('s_waitcnt lgkmcnt(%d)'%(0 if EXP.get('fine') is not None else min(later,15)))
            if s_==0: fine(a,3,name)
            for x in M(s_): a(x)
        fine(a,4,name)
        if EXP.get('fine') is not None: a('s_add_u32 s%d, s%d, 1'%(S_I,S_I))
        a('s_cmp_lt_u32 s%d, %d'%(S_I,n))
        a('s_cbranch_scc0 %s_done'%name)
        a('s_barrier')
        a('s_branch %s_loop'%name)
        a.lab(name+'_done')
    else:
        a('s_barrier')
        if EXP.get('fine') is None: gc.stamp(a,2)
        for s_ in range(nsub):
            for x in R(s_): a(x)
        for x in book: a(x)
        for x in upd: a(x)
        a('s_waitcnt lgkmcnt(0)')
        a.lab(name+'_loop')
        a('s_barrier')
        fine(a,1,name)
        if EXP.get('noilv'):
            for s_ in range(nsub):
                for x in M(s_): a(x)
            fine(a,2,name)
            for s_ in range(nsub):
                for x in R(s_): a(x)
            fine(a,3,name)
        else:
            Ms=[M(s_) for s_ in range(nsub)]; allM=[m for x in Ms for m in x]
            ends=[sum(len(Ms[t]) for t in range(s_+1)) for s_ in range(nsub)]
            pend=[]; dly=EXP.get('dly',max(ends[0],len(allM)-len(R(0))-(len(R(1)) if nsub>2 else 0)*0)) if allM else 0
            per=EXP.get('per',1); nxt=0
            for k_,m in enumerate(allM):
                a(m)
                while nxt<nsub-1 and k_+1>=ends[nxt]:
                    pend+=R(nxt); nxt+=1
                if k_+1>=dly:
                    for _ in range(min(per,len(pend))): a(pend.pop(0))
            fine(a,2,name)
            for x in pend: a(x)
            for x in R(nsub-1): a(x)
            fine(a,3,name)
        for x in book: a(x)
        for x in upd: a(x)
        if hook is not None:
            a('s_cmp_eq_u32 s%d, %d'%(S_I,hook_at)); a('s_cbranch_scc0 %s_nh'%name); hook(); a.lab(name+'_nh')
        a('s_waitcnt lgkmcnt(0)')
        if EXP.get('fine') is not None:
            a('s_sub_u32 s%d, s%d, 1'%(S_I,S_I)); fine(a,4,name); a('s_add_u32 s%d, s%d, 1'%(S_I,S_I))
        a('s_cmp_lt_u32 s%d, %d'%(S_I,n))
        a('s_cbranch_scc1 %s_loop'%name)
        for s_ in range(nsub):
            for x in M(s_): a(x)
    if EXP.get('fine') is None: gc.stamp(a,3)

def fine(a,k,name):
    if EXP.get('fine') is not None and gc.STAMPS:
        l='%s_f%d'%(name,k)
        a('s_cmp_eq_u32 s%d, %d'%(S_I,EXP['fine'])); a('s_cbranch_scc0 %s'%l); a('s_memtime s[%d:%d]'%(64+2*k,65+2*k)); a.lab(l)
def mix(a,M,F,per=2,lead=0):
    F=list(F)
    for _ in range(min(lead,len(F))): a(F.pop(0))
    for m in M:
        a(m)
        for _ in range(min(per,len(F))): a(F.pop(0))
    for x in F: a(x)

GC0=-2.0*0.7978845608028654*1.4426950408889634
GC1=GC0*0.044715
def gelu_pairs(a,pre,tmp,C0,C1,ONE):
    n=len(pre)
    for k in range(n): a('v_pk_mul_f32 %s, %s, %s'%(vr(tmp[k],2),vr(pre[k],2),vr(pre[k],2)))
    for k in range(n): a('v_pk_fma_f32 %s, %s, %s, %s'%(vr(tmp[k],2),vr(tmp[k],2),vr(C1,2),vr(C0,2)))
    for k in range(n): a('v_pk_mul_f32 %s, %s, %s'%(vr(tmp[k],2),vr(tmp[k],2),vr(pre[k],2)))
    for k in range(n):
        a('v_exp_f32 v%d, v%d'%(tmp[k],tmp[k])); a('v_exp_f32 v%d, v%d'%(tmp[k]+1,tmp[k]+1))
    for k in range(n): a('v_pk_add_f32 %s, %s, %s'%(vr(tmp[k],2),vr(tmp[k],2),vr(ONE,2)))
    for k in range(n):
        a('v_rcp_f32 v%d, v%d'%(tmp[k],tmp[k])); a('v_rcp_f32 v%d, v%d'%(tmp[k]+1,tmp[k]+1))
    for k in range(n): a('v_pk_mul_f32 %s, %s, %s'%(vr(pre[k],2),vr(pre[k],2),vr(tmp[k],2)))
def kernel_head(a,kname,pre,nwg=256):
    KCUR[0]=int(pre[1])
    a.raw('.p2align 8'); a.raw('.type %s,@function'%kname); a.lab(kname)
    a('s_cmp_ge_u32 s2, %d'%nwg); a('s_cbranch_scc1 %s_exit'%pre); gc.stamp_init(a)
def kernel_tail(a,pre,kidx,s_ws):
    a.lab(pre+'_end'); gc.stamp_dump(a,kidx,s_ws,S_WAVE); a.lab(pre+'_exit'); a('s_endpgm')

KCUR=[1]
LDK={1:'',2:'',3:''}
class AsmF(Asm):
    def __call__(s,txt):
        import g2_common as g
        if g.EXP.get('nodma') and txt.startswith('buffer_load') and txt.rstrip().endswith('lds'): return
        Asm.__call__(s,txt)
def ld(txt):
    import g2_common as g
    return txt.replace(' lds', g.LDK[g.KCUR[0]]+' lds')

def pf_loop(a,name,n,pf,d1,d2,extra_barriers=0):
    D=EXP.get('pfd',7); pol=LDK[KCUR[0]]
    a('s_mov_b32 s%d, %d'%(S_KX,d1)); a('s_mov_b32 s%d, %d'%(S_KW,d2))
    for _ in range(min(D,n)-1): pf(pol)
    m=max(n-D,0)
    if m>0:
        a('s_mov_b32 s%d, %d'%(S_I,m))
        a.lab(name+'_loop')
        a('s_barrier'); pf(pol)
        a('s_sub_u32 s%d, s%d, 1'%(S_I,S_I)); a('s_cmp_lg_u32 s%d, 0'%S_I); a('s_cbranch_scc1 %s_loop'%name)
    for _ in range(n-m+extra_barriers): a('s_barrier')
```

```python
from g2_common import *
import g2_common as g2
SLZ=34816; SLA=36864
TB=NS*SLA
T_R=TB; T_NMR=TB+512; T_CS0=TB+1024; T_CS1=TB+1664; T_W2=TB+2304
K1_LDS=TB+2304+2048
NK1=10
S_X=4; S_WS=6; S_WDRE=8; S_WDIM=10; S_WIN=12; S_DBG=14
SRD_X=16; SRD_W=20; SRD_O=24; SRD_O2=28; SRD_G=56; SRD_D=60
POLL_BOUND=4000

def stats_final(a,SUM,SQ,t,n,rout,nmrout):
    for k in range(1,len(SUM)): a('v_add_f32 v%d, v%d, v%d'%(SUM[0],SUM[0],SUM[k])); a('v_add_f32 v%d, v%d, v%d'%(SQ[0],SQ[0],SQ[k]))
    a('s_nop 1')
    a('v_add_f32_dpp v%d, v%d, v%d quad_perm:[1,0,3,2] row_mask:0xf bank_mask:0xf'%(t,SUM[0],SUM[0]))
    a('v_add_f32_dpp v%d, v%d, v%d quad_perm:[1,0,3,2] row_mask:0xf bank_mask:0xf'%(t+1,SQ[0],SQ[0]))
    a('v_mul_f32 v%d, 0x%x, v%d'%(t,f2u(1.0/n),t)); a('v_mul_f32 v%d, 0x%x, v%d'%(t+1,f2u(1.0/n),t+1))
    a('v_fma_f32 v%d, -v%d, v%d, v%d'%(t+1,t,t,t+1)); a('v_max_f32 v%d, 0, v%d'%(t+1,t+1)); a('v_add_f32 v%d, 0x%x, v%d'%(t+1,f2u(1e-5),t+1))
    a('v_rsq_f32 v%d, v%d'%(rout,t+1)); a('s_nop 0')
    a('v_mul_f32 v%d, v%d, v%d'%(nmrout,t,rout)); a('v_sub_f32 v%d, 0, v%d'%(nmrout,nmrout))

S_WSP=62
def ln1_row(a):
    a('s_lshl_b32 s%d, s2, 3'%S_T0); a('s_add_u32 s%d, s%d, s%d'%(S_T0,S_T0,S_WAVE)); a('s_mul_i32 s%d, s%d, 1280'%(S_T1,S_T0))
    a('v_lshlrev_b32 v56, 4, v0'); a('v_mov_b32 v57, 0x3f803f80')
    for k in range(4): a('v_mov_b32 v%d, 0'%(68+k))
    a('s_waitcnt lgkmcnt(0)')
    add64(a,S_T2,S_X,'s%d'%S_T1); srd(a,SRD_O,S_T2,S_T2+1,1280)
    a('buffer_load_dwordx4 v[60:63], v56, s[%d:%d], 0 offen'%(SRD_O,SRD_O+3)); a('buffer_load_dwordx4 v[64:67], v56, s[%d:%d], 0 offen offset:1024'%(SRD_O,SRD_O+3))
    add64(a,S_T2,S_WS,WS_LN1); srd(a,SRD_O2,S_T2,S_T2+1,16384)
    a('s_lshl_b32 s%d, s%d, 3'%(S_SO,S_T0))
def ln1_row_finish(a):
    a('s_waitcnt vmcnt(0)')
    for k in range(8):
        a('v_dot2_f32_bf16 v%d, v%d, v%d, v%d'%(68+(k&1),60+k,60+k,68+(k&1))); a('v_dot2_f32_bf16 v%d, v%d, v57, v%d'%(70+(k&1),60+k,70+(k&1)))
    a('s_nop 3')
    a('v_add_f32 v68, v68, v69'); a('v_add_f32 v70, v70, v71'); a('s_nop 1')
    for d in ('quad_perm:[1,0,3,2]','quad_perm:[2,3,0,1]','row_half_mirror','row_mirror'):
        a('v_add_f32_dpp v68, v68, v68 %s row_mask:0xf bank_mask:0xf'%d); a('v_add_f32_dpp v70, v70, v70 %s row_mask:0xf bank_mask:0xf'%d); a('s_nop 0')
    for sw in ('v_permlane16_swap_b32','v_permlane32_swap_b32'):
        a('v_mov_b32 v69, v68'); a('v_mov_b32 v71, v70'); a('s_nop 1')
        a('%s v68, v69'%sw); a('%s v70, v71'%sw); a('s_nop 1')
        a('v_add_f32 v68, v68, v69'); a('v_add_f32 v70, v70, v71')
    a('v_mul_f32 v70, 0x%x, v70'%f2u(1.0/640)); a('v_mul_f32 v68, 0x%x, v68'%f2u(1.0/640))
    a('v_fma_f32 v68, -v70, v70, v68'); a('v_max_f32 v68, 0, v68'); a('v_add_f32 v68, 0x%x, v68'%f2u(1e-5))
    a('v_rsq_f32 v72, v68'); a('s_nop 0'); a('v_mul_f32 v73, v70, v72'); a('v_sub_f32 v73, 0, v73')
    a('v_mov_b32 v74, 0'); a('v_cmp_eq_u32 vcc, 0, v0'); a('s_and_saveexec_b64 s[%d:%d], vcc'%(S_EX,S_EX+1))
    a('buffer_store_dwordx2 v[72:73], v74, s[%d:%d], s%d offen sc1'%(SRD_O2,SRD_O2+3,S_SO))
    a('s_mov_b64 exec, s[%d:%d]'%(S_EX,S_EX+1))
def ln1_hook(a):
    return lambda: a('s_waitcnt vmcnt(0)')

def worker(a,name,SL,isZ):
    n=NK1
    CA=14; VT=15; CF=[48,68]; CACC=88; ONES=108
    srd(a,SRD_D,S_DBG,S_DBG+1,256)
    add64(a,S_T2,S_WS,WS_GR); srd(a,SRD_G,S_T2,S_T2+1,16*12288)
    if isZ:
        a('s_cmp_eq_u32 s%d, 0'%S_PW); a('s_cbranch_scc0 %s_nojob'%name)
        a('s_mul_i32 s%d, s%d, 12288'%(S_SO,S_RB)); a('s_lshl_b32 s%d, s%d, 1'%(S_T0,S_CT)); a('s_add_u32 s%d, s%d, s%d'%(S_T0,S_T0,S_PAR)); a('s_lshl_b32 s%d, s%d, 10'%(S_T0,S_T0))
        a('s_add_u32 s%d, s%d, s%d'%(S_SO,S_SO,S_T0))
        for k in range(4): a('v_mov_b32 v%d, -1'%(8+k))
        a('v_lshlrev_b32 v3, 4, v0')
        a('buffer_store_dwordx4 v[8:11], v3, s[%d:%d], s%d offen sc1'%(SRD_G,SRD_G+3,S_SO))
        a.lab(name+'_nojob')
    a('s_load_dwordx2 s[86:87], s[0:1], 56'); a('s_load_dwordx4 s[96:99], s[0:1], 8')
    a('v_lshrrev_b32 v4, 4, v0'); a('v_and_b32 v5, 15, v0'); a('v_lshlrev_b32 v5, 7, v5')
    a('s_lshl_b32 s%d, s%d, 9'%(S_T0,S_G)); a('s_lshl_b32 s%d, s%d, 4'%(S_T1,S_J)); a('s_add_u32 s%d, s%d, s%d'%(S_T0,S_T0,S_T1)); a('v_add_u32 v6, s%d, v4'%S_T0)
    a('v_lshlrev_b32 v6, 12, v6'); a('v_add_u32 v6, v6, v5'); a('s_lshl_b32 s%d, s%d, 11'%(S_T0,S_HALF)); a('v_add_u32 v6, s%d, v6'%S_T0)
    a('s_mul_i32 s%d, s%d, 288'%(S_T0,S_G)); a('s_mul_i32 s%d, s%d, 9'%(S_T1,S_J)); a('s_add_u32 s%d, s%d, s%d'%(S_T0,S_T0,S_T1)); a('v_add_u32 v7, s%d, v4'%S_T0)
    a('v_lshlrev_b32 v7, 12, v7'); a('v_add_u32 v7, v7, v5')
    a('v_and_b32 v21, 15, v0'); a('v_lshlrev_b32 v21, 4, v21'); a('v_mov_b32 v20, 0')
    for r in (16,17,18,19): a('v_mov_b32 v%d, 0'%r)
    a('s_waitcnt lgkmcnt(0)')
    srd(a,SRD_W,86,87,2048*4096)
    a('s_cmp_eq_u32 s%d, 0'%S_HALF); a('s_cselect_b32 s%d, s96, s98'%S_T2); a('s_cselect_b32 s%d, s97, s99'%S_T3); srd(a,SRD_O2,S_T2,S_T3,2048*4096)
    if isZ:
        a('v_and_b32 v120, 15, v0'); a('v_lshrrev_b32 v121, 4, v0'); a('v_lshrrev_b32 v122, 2, v120'); a('v_lshl_add_u32 v122, v121, 2, v122')
        a('v_mul_u32_u24 v122, 288, v122'); a('v_and_b32 v120, 3, v120'); a('v_lshl_add_u32 v122, v120, 3, v122')
        a('s_and_b32 s%d, s%d, 1'%(S_T0,S_PW)); a('s_mul_i32 s%d, s%d, 9216'%(S_T0,S_T0)); a('s_cmp_lt_u32 s%d, 2'%S_PW); a('s_cselect_b32 s%d, 160, 0'%S_T1)
        a('s_add_u32 s%d, s%d, s%d'%(S_T0,S_T0,S_T1)); a('s_add_u32 s%d, s%d, 16384'%(S_T0,S_T0)); a('v_add_u32 v%d, s%d, v122'%(CA,S_T0))
        for k in range(4): a('v_mov_b32 v%d, 0x3f803f80'%(ONES+k))
        for k in range(20): a('v_mov_b32 v%d, 0'%(CACC+k))
        for k in range(40): a('v_mov_b32 v%d, 0'%(CF[0]+k))
    def reads(st):
        a('v_add_u32 v%d, s%d, v%d'%(VT,S_SLC,CA))
        lab=a.newlab(name+'_c')
        for j in range(5):
            if j==4: a('s_cmp_lt_u32 s%d, 2'%S_PW); a('s_cbranch_scc1 %s'%lab)
            for b in range(2): a('ds_read_b64_tr_b16 %s, v%d offset:%d'%(vr(CF[st]+4*j+2*b,2),VT,b*4608+j*32))
        a.lab(lab)
    def compute(st):
        for j in range(5):
            a('v_mfma_f32_16x16x32_bf16 %s, %s, %s, %s'%(vr(CACC+4*j,4),vr(ONES,4),vr(CF[st]+4*j,4),vr(CACC+4*j,4)))
    TBL=16
    def side(i):
        pol=' nt' if not EXP.get('xpfdef') else ''
        if not (EXP.get('noxpf') or EXP.get('noxpf1')) and 2<=i<=8:
            l=a.newlab(name+'_p'); a('s_cmp_eq_u32 s%d, 1'%S_PW); a('s_cbranch_scc0 %s'%l)
            k=i-2
            if k<4:
                a('s_mov_b32 s%d, %d'%(S_SO,k*4*4096)); a('buffer_load_dword v10, v6, s[%d:%d], s%d offen%s'%(SRD_W,SRD_W+3,S_SO,pol))
            else:
                k-=4
                a('s_mov_b32 s%d, %d'%(S_SO,k*4*4096))
                if k==2: a('s_mov_b32 exec_hi, 0'); a('s_mov_b32 exec_lo, 0xffff')
                a('buffer_load_dword v10, v7, s[%d:%d], s%d offen%s'%(SRD_O2,SRD_O2+3,S_SO,pol))
                if k==2: a('s_mov_b64 exec, -1')
            a.lab(l)
        if i==2:
            l=a.newlab(name+'_a'); a('s_cmp_eq_u32 s%d, 0'%S_PW); a('s_cbranch_scc0 %s'%l)
            a('s_waitcnt vmcnt(0)')
            a('v_mov_b32 v4, 1'); a('s_and_b32 s%d, s2, 15'%S_T0); a('s_lshl_b32 s%d, s%d, 4'%(S_T0,S_T0)); a('v_mov_b32 v3, s%d'%S_T0)
            a('v_cmp_eq_u32 vcc, 0, v0'); a('s_and_saveexec_b64 s[%d:%d], vcc'%(S_EX,S_EX+1))
            a('buffer_atomic_add v4, v3, s[%d:%d], 0 offen sc1'%(SRD_D,SRD_D+3))
            a('s_mov_b64 exec, s[%d:%d]'%(S_EX,S_EX+1))
            a.lab(l)
        if i==5:
            l=a.newlab(name+'_q'); a('s_cmp_eq_u32 s%d, 0'%S_PW); a('s_cbranch_scc0 %s'%l)
            a('buffer_load_dword v20, v21, s[%d:%d], 0 offen sc1'%(SRD_D,SRD_D+3))
            a.lab(l)
        if i==7:
            l=a.newlab(name+'_r'); a('s_cmp_eq_u32 s%d, 0'%S_PW); a('s_cbranch_scc0 %s'%l)
            a('s_mov_b32 s%d, 0'%S_SO2)
            lp=a.newlab(name+'_pl'); ok=a.newlab(name+'_ok')
            a.lab(lp)
            a('s_waitcnt vmcnt(0)'); a('v_cmp_gt_u32 vcc, 16, v20'); a('s_nop 1'); a('s_cmp_eq_u64 vcc, 0'); a('s_cbranch_scc1 %s'%ok)
            a('buffer_load_dword v20, v21, s[%d:%d], 0 offen sc1'%(SRD_D,SRD_D+3))
            a('s_add_u32 s%d, s%d, 1'%(S_SO2,S_SO2)); a('s_cmp_lt_u32 s%d, %d'%(S_SO2,POLL_BOUND)); a('s_cbranch_scc1 %s'%lp)
            a.lab(ok)
            add64(a,S_T2,S_WS,WS_LN1); srd(a,SRD_O,S_T2,S_T2+1,16384)
            if isZ:
                a('s_lshl_b32 s%d, s%d, 7'%(S_T0,S_RB)); a('v_add_u32 v22, s%d, v0'%S_T0); a('v_add_u32 v23, 64, v22')
            else:
                a('s_lshl_b32 s%d, s%d, 6'%(S_T0,S_RB)); a('v_add_u32 v22, s%d, v0'%S_T0); a('v_sub_u32 v23, 2048, v22')
                a('v_cmp_eq_u32 vcc, 2048, v23'); a('v_mov_b32 v24, 1024'); a('s_nop 0'); a('v_cndmask_b32 v23, v23, v24, vcc')
            a('v_lshlrev_b32 v22, 3, v22'); a('v_lshlrev_b32 v23, 3, v23')
            a('buffer_load_dwordx2 v[16:17], v22, s[%d:%d], 0 offen sc1'%(SRD_O,SRD_O+3)); a('buffer_load_dwordx2 v[18:19], v23, s[%d:%d], 0 offen sc1'%(SRD_O,SRD_O+3))
            a.lab(l)
    a('s_mov_b32 s%d, 0'%S_SLC)
    for i in range(n):
        a('s_barrier')
        if isZ: reads(i&1)
        side(i)
        if isZ:
            compute((i&1)^1); a('s_waitcnt lgkmcnt(0)'); slot_advance(a,S_SLC,SL)
    if isZ: compute((n-1)&1)
    gc.stamp(a,3)
    l=a.newlab(name+'_w'); a('s_cmp_eq_u32 s%d, 0'%S_PW); a('s_cbranch_scc0 %s'%l)
    a('s_waitcnt vmcnt(0)'); a('v_lshlrev_b32 v26, 2, v0'); a('v_add_u32 v26, %d, v26'%T_R)
    a('ds_write_b32 v26, v16'); a('ds_write_b32 v26, v17 offset:512'); a('ds_write_b32 v26, v18 offset:256'); a('ds_write_b32 v26, v19 offset:768')
    a.lab(l)
    if isZ:
        a('s_and_b32 s%d, s%d, 1'%(S_T0,S_PW)); a('s_mul_i32 s%d, s%d, 640'%(S_T0,S_T0)); a('s_cmp_lt_u32 s%d, 2'%S_PW); a('s_cselect_b32 s%d, 320, 0'%S_T1)
        a('s_add_u32 s%d, s%d, s%d'%(S_T0,S_T0,S_T1)); a('v_and_b32 v26, 15, v0'); a('v_lshlrev_b32 v26, 2, v26'); a('v_add_u32 v26, s%d, v26'%S_T0); a('v_add_u32 v26, %d, v26'%T_CS0)
        a('s_nop 7')
        lab=a.newlab(name+'_f')
        for j in range(5):
            if j==4: a('s_cmp_lt_u32 s%d, 2'%S_PW); a('s_cbranch_scc1 %s'%lab)
            a('ds_write_b32 v26, v%d offset:%d'%(CACC+4*j,j*64))
        a.lab(lab)

def gen_k1(a,kname):
    kernel_head(a,kname,'K1')
    a('s_load_dwordx2 s[%d:%d], s[0:1], 0'%(S_X,S_X+1))
    a('s_load_dwordx4 s[%d:%d], s[0:1], 24'%(S_WDRE,S_WDRE+3))
    a('s_load_dwordx2 s[%d:%d], s[0:1], 48'%(S_WIN,S_WIN+1))
    a('s_load_dwordx2 s[%d:%d], s[0:1], 88'%(S_DBG,S_DBG+1))
    a('s_load_dwordx2 s[%d:%d], s[0:1], 96'%(S_WS,S_WS+1))
    a('v_lshrrev_b32 v1, 6, v0'); a('v_and_b32 v0, 63, v0'); a('s_nop 0')
    a('v_readfirstlane_b32 s%d, v1'%S_WAVE)
    a('s_and_b32 s%d, s2, 7'%S_XCD); a('s_lshr_b32 s%d, s2, 3'%S_J)
    a('s_lshr_b32 s%d, s%d, 1'%(S_G,S_XCD)); a('s_and_b32 s%d, s%d, 1'%(S_HALF,S_XCD))
    a('s_cmp_ge_u32 s%d, 24'%S_J); a('s_cbranch_scc1 K1A_entry')
    a('s_mul_i32 s%d, s%d, 43'%(S_T0,S_J)); a('s_lshr_b32 s%d, s%d, 8'%(S_T0,S_T0))
    a('s_mul_i32 s%d, s%d, 6'%(S_T1,S_T0)); a('s_sub_u32 s%d, s%d, s%d'%(S_T1,S_J,S_T1))
    a('s_and_b32 s%d, s%d, 1'%(S_PAR,S_T1)); a('s_lshr_b32 s%d, s%d, 1'%(S_T1,S_T1)); a('s_mul_i32 s%d, s%d, 3'%(S_CT,S_HALF)); a('s_add_u32 s%d, s%d, s%d'%(S_CT,S_CT,S_T1))
    a('s_lshl_b32 s%d, s%d, 1'%(S_T1,S_G)); a('s_add_u32 s%d, s%d, s%d'%(S_T2,S_T1,S_T0))
    a('s_sub_u32 s%d, s%d, s%d'%(S_T3,S_T0,S_T1)); a('s_add_u32 s%d, s%d, 12'%(S_T3,S_T3))
    a('s_cmp_lt_u32 s%d, 2'%S_T0); a('s_cselect_b32 s%d, s%d, s%d'%(S_RB,S_T2,S_T3))
    a('s_cmp_ge_u32 s%d, 12'%S_WAVE); a('s_cbranch_scc1 K1Z_work')
    a('s_cmp_ge_u32 s%d, 8'%S_WAVE); a('s_cbranch_scc1 K1Z_prod')
    ACC=16; FA=56; FB=84; XA=[112,113,114,115]; WA=116
    a('s_and_b32 s%d, s%d, 3'%(S_PW,S_WAVE)); a('s_lshr_b32 s%d, s%d, 2'%(S_H,S_WAVE))
    a('v_and_b32 v1, 15, v0'); a('v_lshrrev_b32 v2, 4, v0')
    a('s_lshl_b32 s%d, s%d, 5'%(S_T0,S_PW)); a('v_add_u32 v3, s%d, v1'%S_T0); a('v_lshlrev_b32 v3, 7, v3')
    a('v_lshrrev_b32 v4, 1, v1'); a('v_lshrrev_b32 v5, 1, v2'); a('v_xor_b32 v4, v4, v5')
    a('v_lshl_add_u32 v3, v4, 4, v3'); a('v_and_b32 v5, 1, v2'); a('v_lshl_add_u32 v%d, v5, 3, v3'%XA[0])
    for k in range(1,4): a('v_xor_b32 v%d, %d, v%d'%(XA[k],32*k,XA[0]))
    a('v_lshrrev_b32 v3, 2, v1'); a('v_lshl_add_u32 v3, v2, 2, v3'); a('v_mul_u32_u24 v3, 288, v3'); a('v_and_b32 v4, 3, v1'); a('v_lshl_add_u32 v3, v4, 3, v3')
    a('s_mul_i32 s%d, s%d, 160'%(S_T0,S_H)); a('v_add_u32 v%d, s%d, v3'%(WA,S_T0))
    ln1_row(a)
    for k in range(40): a('v_mov_b32 v%d, 0'%(ACC+k))
    ln1_row_finish(a)
    def acc(i,j): return ACC+(j*2+i)*4
    a('s_cmp_eq_u32 s%d, s%d'%(S_H,S_PAR)); a('s_cselect_b32 s%d, 0, 2'%S_T0); a('s_add_u32 s%d, s%d, s%d'%(S_T0,S_T0,S_H))
    for t,lab in ((1,'K1c_z2_1'),(2,'K1c_z1_0'),(3,'K1c_z1_1')):
        a('s_cmp_eq_u32 s%d, %d'%(S_T0,t)); a('s_cbranch_scc1 %s'%lab)
    for role in ('z2','z1'):
      for h in range(2):
        nj=5-h; nm='K1c_%s_%d'%(role,h)
        a.lab(nm)
        def rd(st,sub,nj=nj):
            F=FA if st==0 else FB; m=[]
            for i in range(2):
                for b in range(2): m.append('ds_read_b64 %s, v%d offset:%d'%(vr(F+i*4+b*2,2),XA[sub*2+b],i*2048))
            for j in range(nj):
                for b in range(2): m.append('ds_read_b64_tr_b16 %s, v%d offset:%d'%(vr(F+8+j*4+b*2,2),WA,16384+sub*9216+b*4608+j*32))
            return m
        def mf(st,role=role,nj=nj):
            F=FA if st==0 else FB; m=[]
            for j in range(nj):
                for i in range(2):
                    x=vr(F+i*4,4); w=vr(F+8+j*4,4); c=vr(acc(i,j),4)
                    m.append('v_mfma_f32_16x16x32_bf16 %s, %s, %s, %s'%((c,x,w,c) if role=='z2' else (c,w,x,c)))
            return m
        consumer_loop(a,nm+'L',SLZ,NK1,XA+[WA],rd,mf,lag=(h==0),hook=ln1_hook(a),hook_at=2)
        a('s_barrier')
        if EXP.get('fine') is None: gc.stamp(a,4)
        C0=112;C1=114;ONE=116
        a('v_mov_b32 v%d, 0x%x'%(C0,f2u(GC0))); a('v_mov_b32 v%d, 0x%x'%(C0+1,f2u(GC0)))
        a('v_mov_b32 v%d, 0x%x'%(C1,f2u(GC1))); a('v_mov_b32 v%d, 0x%x'%(C1+1,f2u(GC1)))
        a('v_mov_b32 v%d, 1.0'%ONE); a('v_mov_b32 v%d, 1.0'%(ONE+1))
        TMP=[56,58,60,62]; prs=[(i,p) for i in range(2) for p in range(2)]
        if role=='z2':
            RR=64; NM=72; CS=80; CSb=86; SUM=92; SQ=100; GRN=56; VO=118; PK=108
            a('s_lshl_b32 s%d, s%d, 7'%(S_T0,S_PW)); a('v_lshlrev_b32 v3, 4, v2'); a('v_add_u32 v3, s%d, v3'%S_T0); a('v_add_u32 v3, %d, v3'%T_R)
            for i in range(2):
                a('ds_read_b128 %s, v3 offset:%d'%(vr(RR+4*i,4),i*64)); a('ds_read_b128 %s, v3 offset:%d'%(vr(NM+4*i,4),512+i*64))
            a('v_lshlrev_b32 v4, 2, v1'); a('v_add_u32 v4, %d, v4'%(T_CS0+h*320))
            for j in range(nj):
                a('ds_read_b32 v%d, v4 offset:%d'%(CS+j,j*64)); a('ds_read_b32 v%d, v4 offset:%d'%(CSb+j,640+j*64))
            for k in range(8): a('v_mov_b32 v%d, 0'%(SUM+k)); a('v_mov_b32 v%d, 0'%(SQ+k))
            add64(a,S_T2,S_WS,WS_GR); srd(a,SRD_G,S_T2,S_T2+1,16*12288)
            a('s_mul_i32 s%d, s%d, 12288'%(S_SO,S_RB))
            a('s_lshl_b32 s%d, s%d, 1'%(S_T0,S_CT)); a('s_add_u32 s%d, s%d, %d'%(S_T0,S_T0,h)); a('s_lshl_b32 s%d, s%d, 10'%(S_T0,S_T0))
            a('s_lshl_b32 s%d, s%d, 8'%(S_T1,S_PW)); a('s_add_u32 s%d, s%d, s%d'%(S_T0,S_T0,S_T1)); a('s_add_u32 s%d, s%d, s%d'%(S_SO2,S_SO,S_T0))
            a('s_waitcnt lgkmcnt(0)')
            for j in range(nj): a('v_add_f32 v%d, v%d, v%d'%(CS+j,CS+j,CSb+j))
            for j in range(nj):
                csr=CS+j; cspair=vr(csr&~1,2); sel=csr&1
                for k,(i,p) in enumerate(prs): a('v_pk_mul_f32 %s, %s, %s op_sel:[0,%d] op_sel_hi:[1,%d]'%(vr(TMP[k],2),vr(NM+4*i+2*p,2),cspair,sel,sel))
                for k,(i,p) in enumerate(prs):
                    r=acc(i,j)+2*p; a('v_pk_fma_f32 %s, %s, %s, %s'%(vr(r,2),vr(r,2),vr(RR+4*i+2*p,2),vr(TMP[k],2)))
                gelu_pairs(a,[acc(i,j)+2*p for (i,p) in prs],TMP,C0,C1,ONE)
                for k,(i,p) in enumerate(prs):
                    r=acc(i,j)+2*p
                    a('v_pk_add_f32 %s, %s, %s'%(vr(SUM+4*i+2*p,2),vr(SUM+4*i+2*p,2),vr(r,2)))
                    a('v_pk_fma_f32 %s, %s, %s, %s'%(vr(SQ+4*i+2*p,2),vr(r,2),vr(r,2),vr(SQ+4*i+2*p,2)))
            gc.stamp(a,5) if False else None
            for sh in (8,4,2):
                for k in range(8): a('v_add_f32_dpp v%d, v%d, v%d row_ror:%d row_mask:0xf bank_mask:0xf'%(SUM+k,SUM+k,SUM+k,sh))
                for k in range(8): a('v_add_f32_dpp v%d, v%d, v%d row_ror:%d row_mask:0xf bank_mask:0xf'%(SQ+k,SQ+k,SQ+k,sh))
            for k in range(8): a('v_add_f32_dpp v%d, v%d, v%d row_ror:1 row_mask:0xf bank_mask:0xf'%(GRN+2*k,SUM+k,SUM+k))
            for k in range(8): a('v_add_f32_dpp v%d, v%d, v%d row_ror:1 row_mask:0xf bank_mask:0xf'%(GRN+2*k+1,SQ+k,SQ+k))
            a('v_lshlrev_b32 v3, 5, v2'); a('v_cmp_eq_u32 vcc, 0, v1'); a('s_and_saveexec_b64 s[%d:%d], vcc'%(S_EX,S_EX+1))
            for i in range(2):
                for p in range(2): a('buffer_store_dwordx4 %s, v3, s[%d:%d], s%d offen offset:%d sc1'%(vr(GRN+8*i+4*p,4),SRD_G,SRD_G+3,S_SO2,i*128+p*16))
            a('s_mov_b64 exec, s[%d:%d]'%(S_EX,S_EX+1))
            PL=72
            a('v_and_b32 v4, 31, v0'); a('v_lshrrev_b32 v5, 5, v0'); a('v_mul_u32_u24 v5, 6144, v5'); a('v_lshl_add_u32 v4, v4, 3, v5')
            a('s_lshl_b32 s%d, s%d, 8'%(S_T1,S_PW)); a('v_add_u32 v4, s%d, v4'%S_T1); a('v_add_u32 v5, 4096, v4')
            a('s_mov_b32 s%d, 0'%S_I)
            a.lab(nm+'_poll')
            for k in range(6): a('buffer_load_dwordx2 %s, v%d, s[%d:%d], s%d offen offset:%d sc1'%(vr(PL+2*k,2),4 if k<4 else 5,SRD_G,SRD_G+3,S_SO,(k%4)*1024))
            a('s_waitcnt vmcnt(0)')
            a('v_max3_u32 v6, v%d, v%d, v%d'%(PL,PL+1,PL+2))
            for k in range(3,12,2):
                a('v_max3_u32 v6, v6, v%d, v%d'%(PL+k,PL+k+1) if k+1<12 else 'v_max_u32 v6, v6, v%d'%(PL+k))
            a('v_cmp_eq_u32 s[%d:%d], -1, v6'%(S_EX,S_EX+1)); a('s_nop 1'); a('s_cmp_eq_u64 s[%d:%d], 0'%(S_EX,S_EX+1)); a('s_cbranch_scc1 %s_rdy'%nm)
            a('s_add_u32 s%d, s%d, 1'%(S_I,S_I)); a('s_cmp_lt_u32 s%d, %d'%(S_I,POLL_BOUND)); a('s_cbranch_scc1 %s_poll'%nm)
            a.lab(nm+'_rdy')
            gc.stamp(a,5) if False else None
            a('v_pk_add_f32 %s, %s, %s'%(vr(PL,2),vr(PL,2),vr(PL+2,2))); a('v_pk_add_f32 %s, %s, %s'%(vr(PL+4,2),vr(PL+4,2),vr(PL+6,2))); a('v_pk_add_f32 %s, %s, %s'%(vr(PL+8,2),vr(PL+8,2),vr(PL+10,2)))
            a('v_pk_add_f32 %s, %s, %s'%(vr(PL,2),vr(PL,2),vr(PL+4,2))); a('v_pk_add_f32 %s, %s, %s'%(vr(PL,2),vr(PL,2),vr(PL+8,2)))
            a('v_mov_b32 v%d, v%d'%(PL+2,PL)); a('v_mov_b32 v%d, v%d'%(PL+3,PL+1)); a('s_nop 1')
            a('v_permlane32_swap_b32 v%d, v%d'%(PL,PL+2)); a('v_permlane32_swap_b32 v%d, v%d'%(PL+1,PL+3)); a('s_nop 1')
            a('v_pk_add_f32 %s, %s, %s'%(vr(PL,2),vr(PL,2),vr(PL+2,2)))
            a('v_mul_f32 v%d, 0x%x, v%d'%(PL,f2u(1.0/864),PL)); a('v_mul_f32 v%d, 0x%x, v%d'%(PL+1,f2u(1.0/864),PL+1))
            a('v_fma_f32 v%d, -v%d, v%d, v%d'%(PL+1,PL,PL,PL+1)); a('v_max_f32 v%d, 0, v%d'%(PL+1,PL+1)); a('v_add_f32 v%d, 0x%x, v%d'%(PL+1,f2u(1e-5),PL+1))
            a('v_rsq_f32 v%d, v%d'%(PL+2,PL+1)); a('s_nop 0'); a('v_mul_f32 v%d, v%d, v%d'%(PL+3,PL,PL+2)); a('v_sub_f32 v%d, 0, v%d'%(PL+3,PL+3))
            a('s_lshl_b32 s%d, s%d, 8'%(S_T0,S_WAVE)); a('s_add_u32 s%d, s%d, %d'%(S_T0,S_T0,T_W2))
            a('v_and_b32 v4, 31, v0'); a('v_lshlrev_b32 v4, 2, v4'); a('v_add_u32 v4, s%d, v4'%S_T0)
            a('ds_write_b32 v4, v%d'%(PL+2)); a('ds_write_b32 v4, v%d offset:128'%(PL+3))
            a('v_lshlrev_b32 v5, 4, v2'); a('v_add_u32 v5, s%d, v5'%S_T0)
            a('s_waitcnt lgkmcnt(0)')
            for i in range(2):
                a('ds_read_b128 %s, v5 offset:%d'%(vr(RR+4*i,4),i*64)); a('ds_read_b128 %s, v5 offset:%d'%(vr(84+4*i,4),128+i*64))
            NM2=84
            a('s_mul_i32 s%d, s%d, %d'%(S_T0,S_CT,Z2_CT)); a('s_lshl_b32 s%d, s%d, 1'%(S_T1,S_RB)); a('s_lshr_b32 s%d, s%d, 1'%(S_T2,S_PW))
            a('s_add_u32 s%d, s%d, s%d'%(S_T1,S_T1,S_T2)); a('s_mul_i32 s%d, s%d, 18432'%(S_T1,S_T1)); a('s_add_u32 s%d, s%d, s%d'%(S_T0,S_T0,S_T1))
            a('s_and_b32 s%d, s%d, 1'%(S_T1,S_PW)); a('s_mul_i32 s%d, s%d, 9216'%(S_T1,S_T1)); a('s_add_u32 s%d, s%d, s%d'%(S_T0,S_T0,S_T1))
            a('s_add_u32 s%d, s%d, %d'%(S_SO,S_T0,5120*h))
            srd(a,SRD_O,S_WS,S_WS+1,6*Z2_CT)
            a('v_lshlrev_b32 v%d, 4, v0'%VO)
            a('s_waitcnt lgkmcnt(0)')
            for j in range(nj):
                for k,(i,p) in enumerate(prs):
                    r=acc(i,j)+2*p; a('v_pk_fma_f32 %s, %s, %s, %s'%(vr(r,2),vr(r,2),vr(RR+4*i+2*p,2),vr(NM2+4*i+2*p,2)))
                o=PK+4*(j&1)
                for k,(i,p) in enumerate(prs):
                    r=acc(i,j)+2*p; a('v_cvt_pk_bf16_f32 v%d, v%d, v%d'%(o+k,r,r+1))
                a('s_nop 1')
                a('v_permlane32_swap_b32 v%d, v%d'%(o,o+2)); a('v_permlane32_swap_b32 v%d, v%d'%(o+1,o+3)); a('s_nop 1')
                a('v_permlane16_swap_b32 v%d, v%d'%(o,o+2)); a('v_permlane16_swap_b32 v%d, v%d'%(o+1,o+3))
                if j<4: a('buffer_store_dwordx4 %s, v%d, s[%d:%d], s%d offen offset:%d%s'%(vr(o,4),VO,SRD_O,SRD_O+3,S_SO,j*1024,g2.STF))
                else:
                    a('s_add_u32 s%d, s%d, 4096'%(S_SO,S_SO)); a('buffer_store_dwordx4 %s, v%d, s[%d:%d], s%d offen%s'%(vr(o,4),VO,SRD_O,SRD_O+3,S_SO,g2.STF))
            a('s_branch K1_end')
        else:
            RR=64; NM=66; CS=68; CSb=88; PK=100; VO=118
            a('s_lshl_b32 s%d, s%d, 7'%(S_T0,S_PW)); a('v_lshlrev_b32 v3, 2, v1'); a('v_add_u32 v3, s%d, v3'%S_T0); a('v_add_u32 v3, %d, v3'%T_R)
            for i in range(2):
                a('ds_read_b32 v%d, v3 offset:%d'%(RR+i,i*64)); a('ds_read_b32 v%d, v3 offset:%d'%(NM+i,512+i*64))
            a('v_lshlrev_b32 v4, 4, v2'); a('v_add_u32 v4, %d, v4'%(T_CS0+320*h))
            for j in range(nj):
                a('ds_read_b128 %s, v4 offset:%d'%(vr(CS+4*j,4),j*64)); a('ds_read_b128 %s, v4 offset:%d'%(vr(CSb+4*j,4),640+j*64))
            a('s_mul_i32 s%d, s%d, 6'%(S_T0,S_RB)); a('s_add_u32 s%d, s%d, s%d'%(S_T0,S_T0,S_CT)); a('s_lshl_b32 s%d, s%d, 3'%(S_T0,S_T0))
            a('s_add_u32 s%d, s%d, s%d'%(S_T0,S_T0,S_WAVE)); a('s_mul_i32 s%d, s%d, 5120'%(S_SO,S_T0))
            add64(a,S_T2,S_WS,WS_Z1); srd(a,SRD_O,S_T2,S_T2+1,96*40960)
            a('v_lshlrev_b32 v%d, 4, v0'%VO)
            a('s_waitcnt lgkmcnt(0)')
            for j in range(nj):
                for p in range(2): a('v_pk_add_f32 %s, %s, %s'%(vr(CS+4*j+2*p,2),vr(CS+4*j+2*p,2),vr(CSb+4*j+2*p,2)))
            for j in range(nj):
                for k,(i,p) in enumerate(prs): a('v_pk_mul_f32 %s, %s, %s op_sel:[0,%d] op_sel_hi:[1,%d]'%(vr(TMP[k],2),vr(CS+4*j+2*p,2),vr(NM,2),i,i))
                for k,(i,p) in enumerate(prs):
                    r=acc(i,j)+2*p; a('v_pk_fma_f32 %s, %s, %s, %s op_sel:[0,%d,0] op_sel_hi:[1,%d,1]'%(vr(r,2),vr(r,2),vr(RR,2),vr(TMP[k],2),i,i))
                gelu_pairs(a,[acc(i,j)+2*p for (i,p) in prs],TMP,C0,C1,ONE)
                o=PK+4*(j&1)
                for k,(i,p) in enumerate(prs):
                    r=acc(i,j)+2*p; a('v_cvt_pk_bf16_f32 v%d, v%d, v%d'%(o+k,r,r+1))
                if j<4: a('buffer_store_dwordx4 %s, v%d, s[%d:%d], s%d offen offset:%d%s'%(vr(o,4),VO,SRD_O,SRD_O+3,S_SO,j*1024,g2.STF))
                else:
                    a('s_add_u32 s%d, s%d, 4096'%(S_SO,S_SO)); a('buffer_store_dwordx4 %s, v%d, s[%d:%d], s%d offen%s'%(vr(o,4),VO,SRD_O,SRD_O+3,S_SO,g2.STF))
            a('s_branch K1_end')
    a.lab('K1Z_prod')
    XO=[2,3]; WO=[4,5,6,7,8]
    if EXP.get('same'): a('s_mov_b32 s%d, 0'%S_RB); a('s_mov_b32 s%d, 0'%S_CT)
    a('s_sub_u32 s%d, s%d, 8'%(S_PW,S_WAVE))
    a('v_lshrrev_b32 v20, 3, v0'); a('s_lshl_b32 s%d, s%d, 5'%(S_T0,S_PW)); a('v_add_u32 v21, s%d, v20'%S_T0); a('v_mul_u32_u24 v21, 1280, v21')
    a('v_and_b32 v22, 7, v0'); a('v_lshrrev_b32 v23, 4, v0'); a('v_xor_b32 v22, v22, v23')
    a('v_lshl_add_u32 v%d, v22, 4, v21'%XO[0]); a('v_xor_b32 v22, 4, v22'); a('v_lshl_add_u32 v%d, v22, 4, v21'%XO[1])
    a('s_mul_i32 s%d, s%d, 288'%(S_T0,S_CT)); a('s_cmp_eq_u32 s%d, 0'%S_PAR); a('s_cselect_b32 s%d, 1728, 0'%S_T1); a('s_cselect_b32 s%d, 0, 1728'%S_T2)
    a('s_add_u32 s%d, s%d, s%d'%(S_T1,S_T1,S_T0)); a('s_add_u32 s%d, s%d, s%d'%(S_T2,S_T2,S_T0))
    a('v_mov_b32 v24, s%d'%S_T1); a('v_mov_b32 v25, s%d'%S_T2)
    for i in range(5):
        a('s_lshl_b32 s%d, s%d, 6'%(S_T0,S_PW)); a('s_add_u32 s%d, s%d, %d'%(S_T0,S_T0,256*i)); a('v_add_u32 v20, s%d, v0'%S_T0)
        a('v_mul_u32_u24 v21, 3641, v20'); a('v_lshrrev_b32 v21, 16, v21')
        a('v_mul_u32_u24 v22, 18, v21'); a('v_sub_u32 v22, v20, v22'); a('v_cmp_gt_u32 vcc, 10, v22'); a('v_mul_u32_u24 v21, 3456, v21'); a('v_lshl_add_u32 v21, v22, 4, v21')
        a('v_cndmask_b32 v23, v25, v24, vcc'); a('v_add_u32 v%d, v21, v23'%WO[i])
    a('s_mov_b32 s%d, 0'%S_SLI); a('s_mov_b32 s%d, 0'%S_KX); a('s_mov_b32 s%d, 0'%S_KW)
    a('s_waitcnt lgkmcnt(0)')
    a('s_mul_i32 s%d, s%d, %d'%(S_T0,S_RB,128*1280)); add64(a,S_X,S_X,'s%d'%S_T0); srd(a,SRD_X,S_X,S_X+1,128*1280)
    srd(a,SRD_W,S_WIN,S_WIN+1,640*3456)
    def issueZ():
        a('s_lshl_b32 s%d, s%d, 12'%(S_T,S_PW)); a('s_add_u32 s%d, s%d, s%d'%(S_T,S_T,S_SLI))
        for j in range(4):
            a('s_add_u32 m0, s%d, %d'%(S_T,j*1024)); a('s_add_u32 s%d, s%d, %d'%(S_SO,S_KX,j*10240))
            a(ld('buffer_load_dwordx4 v%d, s[%d:%d], s%d offen lds'%(XO[j&1],SRD_X,SRD_X+3,S_SO)))
        a('s_lshl_b32 s%d, s%d, 10'%(S_T,S_PW)); a('s_add_u32 s%d, s%d, s%d'%(S_T,S_T,S_SLI))
        lab=a.newlab('K1Zp_s')
        for i in range(5):
            if i==4: a('s_cmp_lt_u32 s%d, 2'%S_PW); a('s_cbranch_scc0 %s'%lab)
            a('s_add_u32 m0, s%d, %d'%(S_T,16384+i*4096)); a('s_nop 0')
            a(ld('buffer_load_dwordx4 v%d, s[%d:%d], s%d offen lds'%(WO[i],SRD_W,SRD_W+3,S_KW)))
        a.lab(lab)
        slot_advance(a,S_SLI,SLZ); a('s_add_u32 s%d, s%d, 128'%(S_KX,S_KX)); a('s_add_u32 s%d, s%d, %d'%(S_KW,S_KW,64*3456))
    dma_producer(a,'K1Zp',NK1,8,issueZ)
    a('s_branch K1_end')
    a.lab('K1Z_work')
    a('s_sub_u32 s%d, s%d, 12'%(S_PW,S_WAVE))
    a('s_waitcnt lgkmcnt(0)')
    worker(a,'K1Zw',SLZ,True)
    a('s_waitcnt lgkmcnt(0)'); a('s_barrier'); a('s_branch K1_end')

    a.lab('K1A_entry')
    a('s_sub_u32 s%d, s%d, 24'%(S_T0,S_J)); a('s_lshr_b32 s%d, s%d, 1'%(S_T1,S_T0)); a('s_and_b32 s%d, s%d, 1'%(S_CT,S_T0))
    a('s_lshl_b32 s%d, s%d, 2'%(S_RB,S_G)); a('s_add_u32 s%d, s%d, s%d'%(S_RB,S_RB,S_T1))
    a('s_cmp_ge_u32 s%d, 12'%S_WAVE); a('s_cbranch_scc1 K1A_work')
    a('s_cmp_ge_u32 s%d, 8'%S_WAVE); a('s_cbranch_scc1 K1A_prod')
    ACC=16; FA=56; FB=84; XA=[112,113]; WA2=[114,115]
    a('s_and_b32 s%d, s%d, 3'%(S_PW,S_WAVE)); a('s_lshr_b32 s%d, s%d, 2'%(S_H,S_WAVE))
    a('v_and_b32 v1, 15, v0'); a('v_lshrrev_b32 v2, 4, v0'); a('v_and_b32 v3, 7, v0'); a('v_xor_b32 v3, v3, v2'); a('v_lshlrev_b32 v3, 4, v3')
    a('v_lshl_add_u32 v3, v1, 7, v3')
    a('s_lshl_b32 s%d, s%d, 11'%(S_T0,S_PW)); a('v_add_u32 v%d, s%d, v3'%(XA[0],S_T0)); a('v_xor_b32 v%d, 64, v%d'%(XA[1],XA[0]))
    a('s_mul_i32 s%d, s%d, %d'%(S_T0,S_H,80*128)); a('s_add_u32 s%d, s%d, 16384'%(S_T0,S_T0)); a('v_add_u32 v%d, s%d, v3'%(WA2[0],S_T0)); a('v_xor_b32 v%d, 64, v%d'%(WA2[1],WA2[0]))
    ln1_row(a)
    for k in range(40): a('v_mov_b32 v%d, 0'%(ACC+k))
    ln1_row_finish(a)
    def accA(tb,j): return ACC+(j*2+tb)*4
    def rdA(st,sub):
        F=FA if st==0 else FB; m=[]
        for tb in range(2): m.append('ds_read_b128 %s, v%d offset:%d'%(vr(F+tb*4,4),XA[sub],tb*8192))
        for j in range(5): m.append('ds_read_b128 %s, v%d offset:%d'%(vr(F+8+j*4,4),WA2[sub],j*2048))
        return m
    def mfA(st):
        F=FA if st==0 else FB; m=[]
        for j in range(5):
            for tb in range(2):
                c=vr(accA(tb,j),4); m.append('v_mfma_f32_16x16x32_bf16 %s, %s, %s, %s'%(c,vr(F+tb*4,4),vr(F+8+j*4,4),c))
        return m
    a('s_cmp_eq_u32 s%d, 0'%S_H); a('s_cbranch_scc0 K1A_c1')
    consumer_loop(a,'K1A0',SLA,NK1,XA+WA2,rdA,mfA,lag=True,hook=ln1_hook(a),hook_at=2)
    a('s_branch K1A_cd')
    a.lab('K1A_c1')
    consumer_loop(a,'K1A1',SLA,NK1,XA+WA2,rdA,mfA,lag=False,hook=ln1_hook(a),hook_at=2)
    a.lab('K1A_cd')
    a('s_barrier')
    if EXP.get('fine') is None: gc.stamp(a,4)
    RT=56; RB_=60; RO=64; T4=[66,68]; PK=70; VO=76
    a('s_lshl_b32 s%d, s%d, 6'%(S_T0,S_PW)); a('v_lshlrev_b32 v3, 4, v2'); a('v_add_u32 v3, s%d, v3'%S_T0); a('v_add_u32 v3, %d, v3'%T_R)
    a('ds_read_b128 %s, v3'%vr(RT,4)); a('ds_read_b128 %s, v3 offset:256'%vr(RB_,4))
    a('s_mul_i32 s%d, s%d, %d'%(S_T0,S_HALF,AE_MAT)); a('s_lshl_b32 s%d, s%d, 1'%(S_T1,S_CT)); a('s_add_u32 s%d, s%d, s%d'%(S_T1,S_T1,S_H))
    a('s_mul_i32 s%d, s%d, 163840'%(S_T1,S_T1)); a('s_add_u32 s%d, s%d, s%d'%(S_T0,S_T0,S_T1)); a('s_mul_i32 s%d, s%d, 10240'%(S_T1,S_RB))
    a('s_add_u32 s%d, s%d, s%d'%(S_T0,S_T0,S_T1)); a('s_lshr_b32 s%d, s%d, 1'%(S_T1,S_PW)); a('s_mul_i32 s%d, s%d, 5120'%(S_T1,S_T1)); a('s_add_u32 s%d, s%d, s%d'%(S_SO,S_T0,S_T1))
    add64(a,S_T2,S_WS,WS_AE); srd(a,SRD_O,S_T2,S_T2+1,2*AE_MAT)
    a('s_and_b32 s%d, s%d, 1'%(S_T0,S_PW)); a('s_lshl_b32 s%d, s%d, 9'%(S_T0,S_T0))
    a('v_lshrrev_b32 v3, 1, v2'); a('v_lshlrev_b32 v3, 8, v3'); a('v_lshl_add_u32 v3, v1, 4, v3'); a('v_and_b32 v4, 1, v2'); a('v_lshl_add_u32 v3, v4, 3, v3')
    a('v_add_u32 v%d, s%d, v3'%(VO,S_T0))
    a('s_waitcnt lgkmcnt(0)')
    a('s_or_b32 s%d, s%d, s%d'%(S_T0,S_RB,S_PW)); a('s_or_b32 s%d, s%d, s%d'%(S_T0,S_T0,S_HALF)); a('s_cmp_eq_u32 s%d, 0'%S_T0); a('s_cbranch_scc0 K1A_nosp')
    add64(a,S_T2,S_WS,WS_A1024); srd(a,SRD_O2,S_T2,S_T2+1,1280)
    a('s_mul_i32 s%d, s%d, 640'%(S_T0,S_CT)); a('s_mul_i32 s%d, s%d, 320'%(S_T1,S_H)); a('s_add_u32 s%d, s%d, s%d'%(S_T0,S_T0,S_T1))
    a('v_lshlrev_b32 v5, 2, v1')
    a('v_cmp_gt_u32 vcc, 16, v0'); a('s_and_saveexec_b64 s[%d:%d], vcc'%(S_EX,S_EX+1))
    for j in range(5):
        a('v_mul_f32 v%d, v%d, v%d'%(RO,accA(1,j),RB_))
        a('buffer_store_dword v%d, v5, s[%d:%d], s%d offen offset:%d%s'%(RO,SRD_O2,SRD_O2+3,S_T0,j*64,g2.STF)); a('s_nop 0')
    a('v_mov_b32 v%d, 0'%RB_)
    a('s_mov_b64 exec, s[%d:%d]'%(S_EX,S_EX+1))
    a.lab('K1A_nosp')
    a('s_cmp_eq_u32 s%d, 0'%S_HALF); a('s_cselect_b32 s%d, 1.0, -1.0'%S_T0)
    for k in range(4): a('v_mul_f32 v%d, s%d, v%d'%(RB_+k,S_T0,RB_+k))
    for j in range(5):
        for p in range(2): a('v_pk_mul_f32 %s, %s, %s'%(vr(T4[p],2),vr(accA(1,j)+2*p,2),vr(RB_+2*p,2)))
        for p in range(2): a('v_pk_fma_f32 %s, %s, %s, %s'%(vr(T4[p],2),vr(accA(0,j)+2*p,2),vr(RT+2*p,2),vr(T4[p],2)))
        for p in range(2): a('v_cvt_pk_bf16_f32 v%d, v%d, v%d'%(PK+p+2*(j&1),T4[p],T4[p]+1))
        if j<4: a('buffer_store_dwordx2 %s, v%d, s[%d:%d], s%d offen offset:%d%s'%(vr(PK+2*(j&1),2),VO,SRD_O,SRD_O+3,S_SO,j*1024,g2.STF))
        else:
            a('s_add_u32 s%d, s%d, 4096'%(S_SO,S_SO)); a('buffer_store_dwordx2 %s, v%d, s[%d:%d], s%d offen%s'%(vr(PK+2*(j&1),2),VO,SRD_O,SRD_O+3,S_SO,g2.STF))
    a('s_branch K1_end')
    a.lab('K1A_prod')
    XO4=[2,3,4,5]; WO1=6
    if EXP.get('same'): a('s_mov_b32 s%d, 0'%S_RB); a('s_mov_b32 s%d, 0'%S_CT)
    a('s_sub_u32 s%d, s%d, 8'%(S_PW,S_WAVE))
    a('v_lshrrev_b32 v20, 3, v0'); a('v_and_b32 v22, 7, v0'); a('v_xor_b32 v22, v22, v20'); a('v_lshlrev_b32 v22, 4, v22')
    a('s_lshl_b32 s%d, s%d, 6'%(S_T0,S_RB))
    a('s_cmp_lt_u32 s%d, 2'%S_PW); a('s_cbranch_scc0 K1Ap_bot')
    a('s_lshl_b32 s%d, s%d, 5'%(S_T1,S_PW)); a('s_add_u32 s%d, s%d, s%d'%(S_T1,S_T1,S_T0))
    for j in range(4):
        a('v_add_u32 v21, s%d, v20'%S_T1); a('v_add_u32 v21, %d, v21'%(8*j)); a('v_mul_u32_u24 v21, 1280, v21'); a('v_add_u32 v%d, v21, v22'%XO4[j])
    a('s_branch K1Ap_xd')
    a.lab('K1Ap_bot')
    a('s_sub_u32 s%d, s%d, 2'%(S_T1,S_PW)); a('s_lshl_b32 s%d, s%d, 5'%(S_T1,S_T1)); a('s_add_u32 s%d, s%d, s%d'%(S_T1,S_T1,S_T0)); a('s_sub_u32 s%d, 2048, s%d'%(S_T1,S_T1))
    for j in range(4):
        a('v_sub_u32 v21, s%d, v20'%S_T1); a('v_subrev_u32 v21, %d, v21'%(8*j))
        if j==0:
            a('v_cmp_eq_u32 vcc, 2048, v21'); a('v_mov_b32 v23, 1024'); a('s_nop 0'); a('v_cndmask_b32 v21, v21, v23, vcc')
        a('v_mul_u32_u24 v21, 1280, v21'); a('v_add_u32 v%d, v21, v22'%XO4[j])
    a.lab('K1Ap_xd')
    a('s_mul_i32 s%d, s%d, 40'%(S_T0,S_PW)); a('v_add_u32 v21, s%d, v20'%S_T0); a('v_mul_u32_u24 v21, 1280, v21'); a('v_add_u32 v%d, v21, v22'%WO1)
    a('s_mov_b32 s%d, 0'%S_SLI); a('s_mov_b32 s%d, 0'%S_KX)
    a('s_waitcnt lgkmcnt(0)')
    srd(a,SRD_X,S_X,S_X+1,2048*1280)
    a('s_cmp_eq_u32 s%d, 0'%S_HALF); a('s_cselect_b32 s%d, s%d, s%d'%(S_T2,S_WDRE,S_WDIM)); a('s_cselect_b32 s%d, s%d, s%d'%(S_T3,S_WDRE+1,S_WDIM+1))
    a('s_mul_i32 s%d, s%d, %d'%(S_T0,S_CT,160*1280)); a('s_add_u32 s%d, s%d, 1280'%(S_T0,S_T0)); add64(a,S_T2,S_T2,'s%d'%S_T0)
    srd(a,SRD_W,S_T2,S_T2+1,160*1280)
    def issueA():
        a('s_lshl_b32 s%d, s%d, 12'%(S_T,S_PW)); a('s_add_u32 s%d, s%d, s%d'%(S_T,S_T,S_SLI))
        for j in range(4):
            a('s_add_u32 m0, s%d, %d'%(S_T,j*1024)); a('s_nop 0')
            a(ld('buffer_load_dwordx4 v%d, s[%d:%d], s%d offen lds'%(XO4[j],SRD_X,SRD_X+3,S_KX)))
        a('s_mul_i32 s%d, s%d, 5120'%(S_T,S_PW)); a('s_add_u32 s%d, s%d, s%d'%(S_T,S_T,S_SLI))
        for j in range(5):
            a('s_add_u32 m0, s%d, %d'%(S_T,16384+j*1024)); a('s_add_u32 s%d, s%d, %d'%(S_SO,S_KX,j*10240))
            a(ld('buffer_load_dwordx4 v%d, s[%d:%d], s%d offen lds'%(WO1,SRD_W,SRD_W+3,S_SO)))
        slot_advance(a,S_SLI,SLA); a('s_add_u32 s%d, s%d, 128'%(S_KX,S_KX))
    dma_producer(a,'K1Ap',NK1,9,issueA)
    a('s_branch K1_end')
    a.lab('K1A_work')
    a('s_sub_u32 s%d, s%d, 12'%(S_PW,S_WAVE))
    a('s_waitcnt lgkmcnt(0)')
    worker(a,'K1Aw',SLA,False)
    a('s_waitcnt lgkmcnt(0)'); a('s_barrier')
    kernel_tail(a,'K1',0,S_WS)
```

```python
from g2_common import *
import g2_common as g2
SLG=34816; SLT=28672
K2_LDS=NS*SLG
NK2=16
S_WSP=4; S_WS=6; S_WSRE=8; S_WSIM=10; S_BSP=12; S_WOUT=14
SRD_A=16; SRD_B=20; SRD_O=24; SRD_O2=28; SRD_C=56; SRD_D=60
S_KH=36; S_TB=37

def gen_k2(a,kname):
    kernel_head(a,kname,'K2')
    a('s_load_dwordx4 s[%d:%d], s[0:1], 8'%(S_WSRE,S_WSRE+3))
    a('s_load_dwordx2 s[%d:%d], s[0:1], 56'%(S_WSP,S_WSP+1))
    a('s_load_dwordx2 s[%d:%d], s[0:1], 64'%(S_BSP,S_BSP+1))
    a('s_load_dwordx2 s[%d:%d], s[0:1], 96'%(S_WS,S_WS+1))
    a('s_load_dwordx2 s[%d:%d], s[0:1], 72'%(S_WOUT,S_WOUT+1))
    a('v_lshrrev_b32 v1, 6, v0'); a('v_and_b32 v0, 63, v0'); a('s_nop 0')
    a('v_readfirstlane_b32 s%d, v1'%S_WAVE)
    a('s_and_b32 s%d, s2, 7'%S_XCD); a('s_lshr_b32 s%d, s2, 3'%S_J)
    a('s_and_b32 s%d, s%d, 1'%(S_KH,S_XCD))
    a('s_cmp_ge_u32 s%d, 24'%S_J); a('s_cbranch_scc1 K2T_entry')
    a('s_mul_i32 s%d, s%d, 43'%(S_T0,S_J)); a('s_lshr_b32 s%d, s%d, 8'%(S_T0,S_T0))
    a('s_mul_i32 s%d, s%d, 6'%(S_T1,S_T0)); a('s_sub_u32 s%d, s%d, s%d'%(S_CT,S_J,S_T1))
    a('s_lshr_b32 s%d, s%d, 1'%(S_T1,S_XCD)); a('s_lshl_b32 s%d, s%d, 2'%(S_T1,S_T1)); a('s_add_u32 s%d, s%d, s%d'%(S_TB,S_T1,S_T0))
    a('s_cmp_ge_u32 s%d, 8'%S_WAVE); a('s_cbranch_scc1 K2G_prod')
    ACC=16; FA=56; FB=84; WA=[112,113]; ZA=114; Z1L=[2,6,10,116,120]; BB=124
    a('s_and_b32 s%d, s%d, 3'%(S_PW,S_WAVE)); a('s_lshr_b32 s%d, s%d, 2'%(S_H,S_WAVE))
    a('v_and_b32 v6, 15, v0'); a('v_lshrrev_b32 v7, 4, v0'); a('v_and_b32 v8, 7, v0'); a('v_xor_b32 v8, v8, v7'); a('v_lshlrev_b32 v8, 4, v8')
    a('v_lshl_add_u32 v8, v6, 7, v8'); a('s_lshl_b32 s%d, s%d, 12'%(S_T0,S_PW)); a('v_add_u32 v%d, s%d, v8'%(WA[0],S_T0)); a('v_xor_b32 v%d, 64, v%d'%(WA[1],WA[0]))
    a('s_mul_i32 s%d, s%d, 5120'%(S_T0,S_H)); a('s_add_u32 s%d, s%d, 16384'%(S_T0,S_T0)); a('v_lshlrev_b32 v14, 4, v0'); a('v_add_u32 v%d, s%d, v14'%(ZA,S_T0))
    for k in range(40): a('v_mov_b32 v%d, 0'%(ACC+k))
    a('s_mul_i32 s%d, s%d, 6'%(S_T0,S_TB)); a('s_add_u32 s%d, s%d, s%d'%(S_T0,S_T0,S_CT)); a('s_lshl_b32 s%d, s%d, 3'%(S_T0,S_T0))
    a('s_add_u32 s%d, s%d, s%d'%(S_T0,S_T0,S_WAVE)); a('s_mul_i32 s%d, s%d, 5120'%(S_SO,S_T0))
    a('s_lshl_b32 s%d, s%d, 7'%(S_T0,S_TB)); a('s_lshl_b32 s%d, s%d, 5'%(S_T1,S_PW)); a('s_add_u32 s%d, s%d, s%d'%(S_T0,S_T0,S_T1))
    a('v_add_u32 v15, s%d, v6'%S_T0); a('v_lshlrev_b32 v15, 1, v15')
    a('s_waitcnt lgkmcnt(0)')
    add64(a,S_T2,S_WS,WS_Z1); srd(a,SRD_C,S_T2,S_T2+1,96*40960)
    srd(a,SRD_O2,S_BSP,S_BSP+1,4096)
    def acc(i,j): return ACC+(j*2+i)*4
    a('s_cmp_eq_u32 s%d, 0'%S_H); a('s_cbranch_scc0 K2Gc_1')
    for h in range(2):
        nj=5-h; nm='K2Gc_%d'%h
        a.lab(nm)
        def hk(nj=nj):
            for j in range(min(nj,4)): a('buffer_load_dwordx4 %s, v14, s[%d:%d], s%d offen offset:%d'%(vr(Z1L[j],4),SRD_C,SRD_C+3,S_SO,j*1024))
            if nj==5:
                a('s_add_u32 s%d, s%d, 4096'%(S_SO,S_SO)); a('buffer_load_dwordx4 %s, v14, s[%d:%d], s%d offen'%(vr(Z1L[4],4),SRD_C,SRD_C+3,S_SO))
            a('buffer_load_ushort v%d, v15, s[%d:%d], 0 offen'%(BB,SRD_O2,SRD_O2+3)); a('buffer_load_ushort v%d, v15, s[%d:%d], 0 offen offset:32'%(BB+1,SRD_O2,SRD_O2+3))
            if not (EXP.get('noxpf') or EXP.get('noxpf2')):
                srd(a,SRD_D,S_WOUT,S_WOUT+1,864*1280)
                a('s_lshl_b32 s%d, s%d, 3'%(S_T1,S_J)); a('s_add_u32 s%d, s%d, s%d'%(S_T1,S_T1,S_WAVE)); a('s_mul_i32 s%d, s%d, %d'%(S_T1,S_T1,45*128))
                a('v_lshlrev_b32 v1, 7, v0'); a('s_mov_b32 exec_hi, 0x1fff')
                a('buffer_load_dword v126, v1, s[%d:%d], s%d offen'%(SRD_D,SRD_D+3,S_T1))
                a('s_mov_b32 exec_hi, -1')
        def rd(st,sub,nj=nj):
            F=FA if st==0 else FB; m=[]
            for i in range(2): m.append('ds_read_b128 %s, v%d offset:%d'%(vr(F+i*4,4),WA[sub],i*2048))
            for j in range(nj): m.append('ds_read_b128 %s, v%d offset:%d'%(vr(F+8+j*4,4),ZA,sub*9216+j*1024))
            return m
        def mf(st,nj=nj):
            F=FA if st==0 else FB; m=[]
            for j in range(nj):
                for i in range(2):
                    c=vr(acc(i,j),4); m.append('v_mfma_f32_16x16x32_bf16 %s, %s, %s, %s'%(c,vr(F+8+j*4,4),vr(F+i*4,4),c))
            return m
        consumer_loop(a,nm+'L',SLG,NK2,WA+[ZA],rd,mf,hook=hk,hook_at=9,lag=(h==0))
        a('s_barrier')
        a('s_waitcnt vmcnt(0)')
        a('s_cmp_eq_u32 s%d, 0'%S_KH); a('s_cselect_b32 s%d, 1.0, 0'%S_T0)
        a('v_lshlrev_b32 v%d, 16, v%d'%(BB,BB)); a('v_lshlrev_b32 v%d, 16, v%d'%(BB+1,BB+1))
        a('v_mul_f32 v%d, s%d, v%d'%(BB,S_T0,BB)); a('v_mul_f32 v%d, s%d, v%d'%(BB+1,S_T0,BB+1))
        a('s_mul_i32 s%d, s%d, %d'%(S_T0,S_KH,H_VER)); add64(a,S_T2,S_WS,WS_H); add64(a,S_T2,S_T2,'s%d'%S_T0); srd(a,SRD_O,S_T2,S_T2+1,H_VER)
        a('s_lshl_b32 s%d, s%d, 3'%(S_T0,S_TB)); a('s_lshl_b32 s%d, s%d, 1'%(S_T1,S_PW)); a('s_add_u32 s%d, s%d, s%d'%(S_T0,S_T0,S_T1)); a('s_mul_i32 s%d, s%d, 27648'%(S_T0,S_T0))
        a('s_mul_i32 s%d, s%d, 9'%(S_T1,S_CT)); a('s_add_u32 s%d, s%d, %d'%(S_T1,S_T1,5*h)); a('s_lshl_b32 s%d, s%d, 9'%(S_T1,S_T1))
        a('s_add_u32 s%d, s%d, s%d'%(S_SO,S_T0,S_T1)); a('s_add_u32 s%d, s%d, 27648'%(S_SO2,S_SO))
        a('v_lshlrev_b32 v14, 3, v0')
        TZ=[56,58,60,62]; PK=64
        for j in range(nj):
            prs=[(i,p) for i in range(2) for p in range(2)]
            for k,(i,p) in enumerate(prs):
                z=Z1L[j]+2*i+p
                a('v_lshlrev_b32 v%d, 16, v%d'%(TZ[k],z)); a('v_and_b32 v%d, 0xffff0000, v%d'%(TZ[k]+1,z))
            for k,(i,p) in enumerate(prs):
                r=acc(i,j)+2*p; a('v_pk_add_f32 %s, %s, %s op_sel:[0,%d] op_sel_hi:[1,%d]'%(vr(r,2),vr(r,2),vr(BB,2),i,i))
            for k,(i,p) in enumerate(prs):
                r=acc(i,j)+2*p; a('v_pk_mul_f32 %s, %s, %s'%(vr(r,2),vr(r,2),vr(TZ[k],2)))
            o=PK+4*(j&1)
            for k,(i,p) in enumerate(prs):
                r=acc(i,j)+2*p; a('v_cvt_pk_bf16_f32 v%d, v%d, v%d'%(o+k,r,r+1))
            a('buffer_store_dwordx2 %s, v14, s[%d:%d], s%d offen offset:%d%s'%(vr(o,2),SRD_O,SRD_O+3,S_SO,j*512,g2.STF))
            a('buffer_store_dwordx2 %s, v14, s[%d:%d], s%d offen offset:%d%s'%(vr(o+2,2),SRD_O,SRD_O+3,S_SO2,j*512,g2.STF))
        a('s_branch K2_end')
    a.lab('K2G_prod')
    WO=2; ZO=3; S_ZO=S_PAR
    if EXP.get('same'): a('s_mov_b32 s%d, 0'%S_TB); a('s_mov_b32 s%d, 0'%S_CT); a('s_mov_b32 s%d, 0'%S_KH)
    a('s_sub_u32 s%d, s%d, 8'%(S_PW,S_WAVE))
    a('v_lshrrev_b32 v20, 3, v0'); a('v_and_b32 v22, 7, v0'); a('v_xor_b32 v22, v22, v20'); a('v_lshlrev_b32 v22, 4, v22')
    a('s_lshl_b32 s%d, s%d, 4'%(S_T0,S_PW)); a('v_add_u32 v21, s%d, v20'%S_T0); a('v_lshlrev_b32 v21, 12, v21'); a('v_add_u32 v%d, v21, v22'%WO)
    a('s_mul_i32 s%d, s%d, 3'%(S_T0,S_PW)); a('s_lshl_b32 s%d, s%d, 1'%(S_T1,S_PW)); a('s_add_u32 s%d, s%d, 2'%(S_T1,S_T1))
    a('s_cmp_lt_u32 s%d, 2'%S_PW); a('s_cselect_b32 s%d, s%d, s%d'%(S_ZO,S_T0,S_T1)); a('s_lshl_b32 s%d, s%d, 10'%(S_ZO,S_ZO))
    a('v_lshlrev_b32 v20, 4, v0'); a('v_add_u32 v%d, s%d, v20'%(ZO,S_ZO))
    a('s_mov_b32 s%d, 0'%S_SLI); a('s_mov_b32 s%d, 0'%S_KX); a('s_mov_b32 s%d, 0'%S_KW)
    a('s_mul_i32 s%d, s%d, %d'%(S_T0,S_TB,128*4096)); a('s_lshl_b32 s%d, s%d, 11'%(S_T1,S_KH)); a('s_add_u32 s%d, s%d, s%d'%(S_T0,S_T0,S_T1))
    a('s_sub_u32 s%d, %d, s%d'%(S_T1,128*4096,S_T1))
    a('s_mul_i32 s%d, s%d, %d'%(S_T2,S_CT,Z2_CT)); a('s_mul_i32 s%d, s%d, %d'%(S_T3,S_KH,16*18432)); a('s_add_u32 s%d, s%d, s%d'%(S_SO2,S_T2,S_T3))
    a('s_waitcnt lgkmcnt(0)')
    add64(a,S_WSP,S_WSP,'s%d'%S_T0); srd(a,SRD_A,S_WSP,S_WSP+1,'s%d'%S_T1)
    add64(a,S_T2,S_WS,'s%d'%S_SO2); srd(a,SRD_B,S_T2,S_T2+1,16*18432)
    def issue():
        a('s_lshl_b32 s%d, s%d, 11'%(S_T,S_PW)); a('s_add_u32 s%d, s%d, s%d'%(S_T,S_T,S_SLI))
        for j in range(2):
            a('s_add_u32 m0, s%d, %d'%(S_T,j*1024)); a('s_add_u32 s%d, s%d, %d'%(S_SO,S_KX,j*32768))
            a(ld('buffer_load_dwordx4 v%d, s[%d:%d], s%d offen lds'%(WO,SRD_A,SRD_A+3,S_SO)))
        a('s_add_u32 s%d, s%d, s%d'%(S_T,S_SLI,S_ZO)); a('s_add_u32 m0, s%d, 16384'%S_T); a('s_nop 0')
        for j in range(2): a('buffer_load_dwordx4 v%d, s[%d:%d], s%d offen offset:%d lds'%(ZO,SRD_B,SRD_B+3,S_KW,j*1024))
        lab=a.newlab('K2Gp_t')
        a('s_cmp_lt_u32 s%d, 2'%S_PW); a('s_cbranch_scc0 %s'%lab)
        a('buffer_load_dwordx4 v%d, s[%d:%d], s%d offen offset:2048 lds'%(ZO,SRD_B,SRD_B+3,S_KW))
        a.lab(lab)
        slot_advance(a,S_SLI,SLG); a('s_add_u32 s%d, s%d, 128'%(S_KX,S_KX)); a('s_add_u32 s%d, s%d, 18432'%(S_KW,S_KW))
    dma_producer(a,'K2Gp',NK2,4,issue)
    a('s_branch K2_end')

    a.lab('K2T_entry')
    a('s_sub_u32 s%d, s%d, 24'%(S_T0,S_J)); a('s_and_b32 s%d, s%d, 3'%(S_CT,S_T0)); a('s_lshr_b32 s%d, s%d, 2'%(S_T0,S_T0))
    a('s_lshr_b32 s%d, s%d, 1'%(S_T1,S_XCD)); a('s_lshl_b32 s%d, s%d, 1'%(S_T1,S_T1)); a('s_add_u32 s%d, s%d, s%d'%(S_TB,S_T1,S_T0))
    a('s_cmp_ge_u32 s%d, 8'%S_WAVE); a('s_cbranch_scc1 K2T_prod')
    a('s_and_b32 s%d, s%d, 3'%(S_PW,S_WAVE)); a('s_lshr_b32 s%d, s%d, 2'%(S_H,S_WAVE))
    a('s_cmp_eq_u32 s%d, 3'%S_PW); a('s_cbranch_scc1 K2_exit')
    ACC=16; FA=56; FB=80; WA=[112,113]; AA=114; A1=116
    a('v_lshrrev_b32 v7, 4, v0'); a('v_lshlrev_b32 v5, 4, v7')
    a('v_and_b32 v6, 15, v0'); a('v_and_b32 v8, 7, v0'); a('v_xor_b32 v8, v8, v7'); a('v_lshlrev_b32 v8, 4, v8'); a('v_lshl_add_u32 v8, v6, 7, v8')
    a('s_mul_i32 s%d, s%d, %d'%(S_T0,S_PW,48*128)); a('v_add_u32 v%d, s%d, v8'%(WA[0],S_T0)); a('v_xor_b32 v%d, 64, v%d'%(WA[1],WA[0]))
    a('s_mul_i32 s%d, s%d, 3072'%(S_T0,S_H)); a('s_add_u32 s%d, s%d, 18432'%(S_T0,S_T0)); a('v_lshlrev_b32 v9, 4, v0'); a('v_add_u32 v%d, s%d, v9'%(AA,S_T0))
    for k in range(36): a('v_mov_b32 v%d, 0'%(ACC+k))
    a('s_mul_i32 s%d, s%d, 320'%(S_T0,S_CT)); a('s_mul_i32 s%d, s%d, 192'%(S_T1,S_H)); a('s_add_u32 s%d, s%d, s%d'%(S_SO,S_T0,S_T1))
    a('s_waitcnt lgkmcnt(0)')
    add64(a,S_T2,S_WS,WS_A1024); srd(a,SRD_C,S_T2,S_T2+1,1280)
    def accT(i,j): return ACC+(j*3+i)*4
    a('s_cmp_eq_u32 s%d, 0'%S_H); a('s_cbranch_scc0 K2Tc_1')
    for h in range(2):
        nj=3-h; nm='K2Tc_%d'%h
        a.lab(nm)
        def hkT(nj=nj):
            for j in range(nj): a('buffer_load_dwordx4 %s, v5, s[%d:%d], s%d offen offset:%d'%(vr(A1+4*j,4),SRD_C,SRD_C+3,S_SO,j*64))
        def rdT(st,sub,nj=nj):
            F=FA if st==0 else FB; m=[]
            for i in range(3): m.append('ds_read_b128 %s, v%d offset:%d'%(vr(F+i*4,4),WA[sub],i*2048))
            for j in range(nj): m.append('ds_read_b128 %s, v%d offset:%d'%(vr(F+12+j*4,4),AA,sub*5120+j*1024))
            return m
        def mfT(st,nj=nj):
            F=FA if st==0 else FB; m=[]
            for j in range(nj):
                for i in range(3):
                    c=vr(accT(i,j),4); m.append('v_mfma_f32_16x16x32_bf16 %s, %s, %s, %s'%(c,vr(F+12+j*4,4),vr(F+i*4,4),c))
            return m
        consumer_loop(a,nm+'L',SLT,NK2,WA+[AA],rdT,mfT,hook=hkT,hook_at=4,lag=(h==0))
        a('s_barrier')
        a('s_waitcnt vmcnt(0)')
        a('s_cmp_eq_u32 s%d, 0'%S_KH); a('s_cselect_b32 s%d, 1.0, 0'%S_T0)
        a('v_and_b32 v5, 1, v0'); a('v_lshlrev_b32 v5, 31, v5'); a('v_xor_b32 v5, s%d, v5'%S_T0)
        a('s_mul_i32 s%d, s%d, %d'%(S_T0,S_KH,PQ_MAT)); add64(a,S_T2,S_WS,WS_PQ); add64(a,S_T2,S_T2,'s%d'%S_T0); srd(a,SRD_O,S_T2,S_T2+1,PQ_MAT)
        a('s_mul_i32 s%d, s%d, 144'%(S_T0,S_TB)); a('s_mul_i32 s%d, s%d, 48'%(S_T1,S_PW)); a('s_add_u32 s%d, s%d, s%d'%(S_T0,S_T0,S_T1)); a('s_mul_i32 s%d, s%d, 1280'%(S_T0,S_T0))
        a('s_mul_i32 s%d, s%d, 320'%(S_T1,S_CT)); a('s_add_u32 s%d, s%d, s%d'%(S_T0,S_T0,S_T1)); a('s_add_u32 s%d, s%d, %d'%(S_SO,S_T0,192*h))
        a('v_mul_u32_u24 v6, 1280, v6'); a('v_lshl_add_u32 v6, v7, 4, v6')
        if EXP.get('nopA'):
            for _ in range(EXP['nopA']): a('s_nop 15')
        for j in range(nj):
            for i in range(3):
                r=accT(i,j)
                if EXP.get('plain'):
                    for p in range(4): a('v_fma_f32 v%d, v%d, v5, v%d'%(r+p,A1+4*j+p,r+p))
                else:
                    for p in range(2): a('v_pk_fma_f32 %s, %s, %s, %s op_sel:[0,1,0] op_sel_hi:[1,1,1]'%(vr(r+2*p,2),vr(A1+4*j+2*p,2),vr(4,2),vr(r+2*p,2)))
            if EXP.get('nopB'): a('s_nop 7')
            for i in range(3):
                a('s_add_u32 s%d, s%d, %d'%(S_SO2,S_SO,i*16*1280))
                a('buffer_store_dwordx4 %s, v6, s[%d:%d], s%d offen offset:%d%s'%(vr(accT(i,j),4),SRD_O,SRD_O+3,S_SO2,j*64,g2.STF))
        a('s_branch K2_end')
    a.lab('K2T_prod')
    WO=2; AO=3; S_U0=S_PAR
    if EXP.get('same'): a('s_mov_b32 s%d, 0'%S_TB); a('s_mov_b32 s%d, 0'%S_CT); a('s_mov_b32 s%d, 0'%S_KH)
    a('s_sub_u32 s%d, s%d, 8'%(S_PW,S_WAVE))
    a('v_lshrrev_b32 v20, 3, v0'); a('v_and_b32 v22, 7, v0'); a('v_xor_b32 v22, v22, v20'); a('v_lshlrev_b32 v22, 4, v22'); a('v_lshl_add_u32 v%d, v20, 12, v22'%WO)
    a('s_lshl_b32 s%d, s%d, 1'%(S_T0,S_PW)); a('s_sub_u32 s%d, s%d, 2'%(S_T0,S_T0)); a('s_add_u32 s%d, s%d, 2'%(S_T1,S_PW))
    a('s_cmp_lt_u32 s%d, 4'%S_PW); a('s_cselect_b32 s%d, s%d, s%d'%(S_U0,S_T0,S_T1)); a('s_cmp_lt_u32 s%d, 2'%S_PW); a('s_cselect_b32 s%d, s%d, s%d'%(S_U0,S_PW,S_U0)); a('s_lshl_b32 s%d, s%d, 10'%(S_U0,S_U0))
    a('v_lshlrev_b32 v20, 4, v0'); a('v_add_u32 v%d, s%d, v20'%(AO,S_U0))
    a('s_mov_b32 s%d, 0'%S_SLI); a('s_mov_b32 s%d, 0'%S_KX); a('s_mov_b32 s%d, 0'%S_KW)
    a('s_mul_i32 s%d, s%d, %d'%(S_T0,S_KH,AE_MAT)); a('s_mul_i32 s%d, s%d, 163840'%(S_T1,S_CT)); a('s_add_u32 s%d, s%d, s%d'%(S_SO2,S_T0,S_T1))
    a('s_mul_i32 s%d, s%d, %d'%(S_T0,S_TB,144*4096))
    a('s_waitcnt lgkmcnt(0)')
    a('s_cmp_eq_u32 s%d, 0'%S_KH); a('s_cselect_b32 s%d, s%d, s%d'%(S_T2,S_WSRE,S_WSIM)); a('s_cselect_b32 s%d, s%d, s%d'%(S_T3,S_WSRE+1,S_WSIM+1))
    add64(a,S_T2,S_T2,'s%d'%S_T0); srd(a,SRD_A,S_T2,S_T2+1,144*4096)
    add64(a,S_T2,S_WS,WS_AE); add64(a,S_T2,S_T2,'s%d'%S_SO2); srd(a,SRD_B,S_T2,S_T2+1,163840)
    def issueT():
        a('s_lshl_b32 s%d, s%d, 10'%(S_T,S_PW)); a('s_add_u32 s%d, s%d, s%d'%(S_T,S_T,S_SLI))
        a('s_lshl_b32 s%d, s%d, 15'%(S_T0,S_PW)); a('s_add_u32 s%d, s%d, s%d'%(S_T0,S_T0,S_KX))
        for i in range(2):
            a('s_add_u32 m0, s%d, %d'%(S_T,i*8192)); a('s_add_u32 s%d, s%d, %d'%(S_SO,S_T0,i*8*32768))
            a(ld('buffer_load_dwordx4 v%d, s[%d:%d], s%d offen lds'%(WO,SRD_A,SRD_A+3,S_SO)))
        a('s_add_u32 s%d, s%d, s%d'%(S_T1,S_SLI,S_U0)); a('s_add_u32 m0, s%d, 18432'%S_T1); a('s_nop 0')
        a('buffer_load_dwordx4 v%d, s[%d:%d], s%d offen lds'%(AO,SRD_B,SRD_B+3,S_KW))
        l1=a.newlab('K2Tp_a'); l2=a.newlab('K2Tp_b')
        a('s_cmp_lt_u32 s%d, 2'%S_PW); a('s_cbranch_scc1 %s'%l1)
        a('s_cmp_lt_u32 s%d, 4'%S_PW); a('s_cbranch_scc0 %s'%l2)
        a('buffer_load_dwordx4 v%d, s[%d:%d], s%d offen offset:1024 lds'%(AO,SRD_B,SRD_B+3,S_KW)); a('s_branch %s'%l2)
        a.lab(l1)
        a('s_add_u32 m0, s%d, %d'%(S_T,2*8192)); a('s_add_u32 s%d, s%d, %d'%(S_SO,S_T0,2*8*32768))
        a(ld('buffer_load_dwordx4 v%d, s[%d:%d], s%d offen lds'%(WO,SRD_A,SRD_A+3,S_SO)))
        a.lab(l2)
        slot_advance(a,S_SLI,SLT); a('s_add_u32 s%d, s%d, 128'%(S_KX,S_KX)); a('s_add_u32 s%d, s%d, 10240'%(S_KW,S_KW))
    dma_producer(a,'K2Tp',NK2,3,issueT)
    kernel_tail(a,'K2',1,S_WS)
```

```python
from g2_common import *
import g2_common as g2
SL3=39936
K3_LDS=NS*SL3
NK3=9
S_X=4; S_WS=6; S_WOUT=8; S_OUT=10
SRD_A=16; SRD_B=20; SRD_O=24; SRD_C=56; SRD_D=60
S_TB=37; S_DT=38
AREA_P=1*SL3; AREA_X=1*SL3+20480; AREA_DUM=1*SL3+32768; AREA_Q=2*SL3

def gen_k3(a,kname):
    kernel_head(a,kname,'K3')
    a('s_load_dwordx2 s[%d:%d], s[0:1], 0'%(S_X,S_X+1))
    a('s_load_dwordx4 s[%d:%d], s[0:1], 72'%(S_WOUT,S_WOUT+3))
    a('s_load_dwordx2 s[%d:%d], s[0:1], 96'%(S_WS,S_WS+1))
    a('v_lshrrev_b32 v1, 6, v0'); a('v_and_b32 v0, 63, v0'); a('s_nop 0')
    a('v_readfirstlane_b32 s%d, v1'%S_WAVE)
    a('s_and_b32 s%d, s2, 7'%S_XCD); a('s_lshr_b32 s%d, s2, 3'%S_J)
    a('s_lshr_b32 s%d, s%d, 3'%(S_T0,S_J)); a('s_lshl_b32 s%d, s%d, 2'%(S_TB,S_XCD)); a('s_add_u32 s%d, s%d, s%d'%(S_TB,S_TB,S_T0))
    a('s_and_b32 s%d, s%d, 7'%(S_DT,S_J))
    a('s_cmp_ge_u32 s%d, 8'%S_WAVE); a('s_cbranch_scc1 K3_prod')
    ACC=16; FS=[32,52,72]; WA=92; HA=93; PP=96; QQ=108; XX=120
    a('s_and_b32 s%d, s%d, 3'%(S_PW,S_WAVE)); a('s_lshr_b32 s%d, s%d, 2'%(S_H,S_WAVE))
    a('v_and_b32 v6, 15, v0'); a('v_lshrrev_b32 v7, 4, v0')
    a('s_lshl_b32 s%d, s%d, 6'%(S_T0,S_TB)); a('s_lshl_b32 s%d, s%d, 4'%(S_T1,S_PW)); a('s_add_u32 s%d, s%d, s%d'%(S_T0,S_T0,S_T1)); a('v_add_u32 v8, s%d, v6'%S_T0)
    a('s_mul_i32 s%d, s%d, 80'%(S_T0,S_DT)); a('s_mul_i32 s%d, s%d, 48'%(S_T1,S_H)); a('s_add_u32 s%d, s%d, s%d'%(S_T3,S_T0,S_T1))
    a('v_lshlrev_b32 v9, 2, v7'); a('v_add_u32 v9, s%d, v9'%S_T3)
    a('v_mul_u32_u24 v10, 1280, v8'); a('v_lshl_add_u32 v10, v9, 1, v10')
    a('s_mul_i32 s%d, s%d, 3072'%(S_T0,S_PW)); a('v_lshlrev_b32 v12, 3, v0'); a('v_add_u32 v%d, s%d, v12'%(HA,S_T0))
    a('v_lshrrev_b32 v12, 2, v6'); a('v_lshl_add_u32 v12, v7, 2, v12'); a('v_mul_u32_u24 v12, 160, v12'); a('v_and_b32 v13, 3, v6'); a('v_lshl_add_u32 v12, v13, 3, v12')
    a('s_mul_i32 s%d, s%d, 96'%(S_T0,S_H)); a('s_add_u32 s%d, s%d, 24576'%(S_T0,S_T0)); a('v_add_u32 v%d, s%d, v12'%(WA,S_T0))
    for k in range(12): a('v_mov_b32 v%d, 0'%(ACC+k))
    a('s_cmp_eq_u32 s%d, 0'%S_H); a('s_cbranch_scc0 K3c_1')
    for h in range(2):
        nj=3-h; nm='K3c_%d'%h
        a.lab(nm)
        def rd(st,sub,nj=nj):
            F=FS[st]; m=[]
            for ver in range(2):
                for b in range(2): m.append('ds_read_b64 %s, v%d offset:%d'%(vr(F+ver*4+b*2,2),HA,ver*12288+(sub*2+b)*512))
            for j in range(nj):
                for b in range(2): m.append('ds_read_b64_tr_b16 %s, v%d offset:%d'%(vr(F+8+j*4+b*2,2),WA,sub*32*160+b*16*160+j*32))
            return m
        def mf(st,nj=nj):
            F=FS[st]; m=[]
            for ver in range(2):
                for j in range(nj):
                    c=vr(ACC+4*j,4); m.append('v_mfma_f32_16x16x32_bf16 %s, %s, %s, %s'%(c,vr(F+8+j*4,4),vr(F+ver*4,4),c))
            return m
        consumer_loop(a,nm+'L',SL3,NK3,[WA,HA],rd,mf,lag=(h==0),nsub=3)
        a('s_barrier')
        a('s_lshl_b32 s%d, s%d, 4'%(S_T0,S_PW)); a('v_add_u32 v11, s%d, v6'%S_T0)
        a('v_mul_u32_u24 v12, 320, v11'); a('v_mul_u32_u24 v13, 160, v11')
        a('v_lshlrev_b32 v14, 2, v7'); a('v_add_u32 v14, %d, v14'%(48*h))
        a('v_lshl_add_u32 v13, v14, 1, v13'); a('v_add_u32 v13, %d, v13'%(AREA_X))
        a('s_cmp_lt_u32 s%d, 4'%S_DT); a('s_cbranch_scc1 %s_rdir'%nm)
        a('v_sub_u32 v14, %d, v14'%(76-32))
        a('v_lshl_add_u32 v12, v14, 2, v12'); a('v_add_u32 v12, %d, v12'%(AREA_P))
        for j in range(nj):
            a('ds_read_b128 %s, v12 offset:%d'%(vr(PP+4*j,4),(2-j)*64)); a('ds_read_b128 %s, v12 offset:%d'%(vr(QQ+4*j,4),AREA_Q-AREA_P+(2-j)*64))
        a('s_branch %s_rdone'%nm)
        a.lab(nm+'_rdir')
        a('v_lshl_add_u32 v12, v14, 2, v12'); a('v_add_u32 v12, %d, v12'%(AREA_P))
        for j in range(nj):
            a('ds_read_b128 %s, v12 offset:%d'%(vr(PP+4*j,4),j*64)); a('ds_read_b128 %s, v12 offset:%d'%(vr(QQ+4*j,4),AREA_Q-AREA_P+j*64))
        a.lab(nm+'_rdone')
        for j in range(nj): a('ds_read_b64 %s, v13 offset:%d'%(vr(XX+2*j,2),j*32))
        srd(a,SRD_O,S_OUT,S_OUT+1,2048*1280)
        a('s_waitcnt lgkmcnt(0)')
        a('s_cmp_lt_u32 s%d, 16'%S_TB); a('s_cselect_b32 s%d, 1, 0'%S_T0); a('s_cmp_lt_u32 s%d, 4'%S_DT); a('s_cselect_b32 s%d, 1, 0'%S_T1)
        a('s_cmp_eq_u32 s%d, s%d'%(S_T0,S_T1)); a('s_cselect_b32 s%d, -1.0, 1.0'%S_T0)
        a('v_mov_b32 v2, s%d'%S_T0); a('v_mov_b32 v3, s%d'%S_T0)
        for j in range(nj):
            for p in range(2): a('v_pk_fma_f32 %s, %s, %s, %s'%(vr(PP+4*j+2*p,2),vr(QQ+4*j+2*p,2),vr(2,2),vr(PP+4*j+2*p,2)))
        if h==0:
            a('s_cmp_eq_u32 s%d, 0'%S_DT); a('s_cbranch_scc0 K3_noz')
            a('v_cmp_gt_u32 vcc, 16, v0'); a('v_mov_b32 v4, 0'); a('s_nop 0'); a('v_cndmask_b32 v%d, v%d, v4, vcc'%(PP,PP))
            a.lab('K3_noz')
        a('s_cmp_lt_u32 s%d, 4'%S_DT); a('s_cbranch_scc0 %s_epm'%nm)
        for role in ('dir','mir'):
            if role=='mir': a.lab(nm+'_epm')
            for j in range(nj):
                c=ACC+4*j
                for r in range(4):
                    y=PP+4*j+(r if role=='dir' else 3-r)
                    a('v_add_f32 v%d, v%d, v%d'%(c+r,c+r,y))
                for p in range(2):
                    x=XX+2*j+p
                    a('v_lshlrev_b32 v%d, 16, v%d'%(4,x)); a('v_and_b32 v%d, 0xffff0000, v%d'%(5,x))
                    a('v_pk_add_f32 %s, %s, %s'%(vr(c+2*p,2),vr(c+2*p,2),vr(4,2)))
                o=12+2*(j&1)
                a('v_cvt_pk_bf16_f32 v%d, v%d, v%d'%(o,c,c+1)); a('v_cvt_pk_bf16_f32 v%d, v%d, v%d'%(o+1,c+2,c+3))
                a('buffer_store_dwordx2 %s, v10, s[%d:%d], 0 offen offset:%d'%(vr(o,2),SRD_O,SRD_O+3,j*32))
            a('s_branch K3_end')
    a.lab('K3_prod')
    HO=2; WO=[3,4]
    if EXP.get('same'): a('s_mov_b32 s%d, 0'%S_TB); a('s_mov_b32 s%d, 0'%S_DT)
    a('s_sub_u32 s%d, s%d, 8'%(S_PW,S_WAVE))
    a('s_and_b32 s%d, s%d, 3'%(S_T1,S_PW)); a('s_lshr_b32 s%d, s%d, 2'%(S_T2,S_PW))
    a('s_lshl_b32 s%d, s%d, 2'%(S_T0,S_TB)); a('s_add_u32 s%d, s%d, s%d'%(S_T0,S_T0,S_T1)); a('s_mul_i32 s%d, s%d, 27648'%(S_KX,S_T0))
    a('s_mul_i32 s%d, s%d, %d'%(S_T0,S_T2,H_VER)); a('s_add_u32 s%d, s%d, s%d'%(S_KX,S_KX,S_T0))
    a('s_mul_i32 s%d, s%d, 3072'%(S_T1,S_T1)); a('s_mul_i32 s%d, s%d, 12288'%(S_T2,S_T2)); a('s_add_u32 s%d, s%d, s%d'%(S_PAR,S_T1,S_T2))
    a('v_lshlrev_b32 v%d, 4, v0'%HO)
    for i in range(2):
        a('s_lshl_b32 s%d, s%d, 6'%(S_T0,S_PW)); a('s_add_u32 s%d, s%d, %d'%(S_T0,S_T0,512*i)); a('v_add_u32 v20, s%d, v0'%S_T0)
        a('v_mul_u32_u24 v21, 6554, v20'); a('v_lshrrev_b32 v21, 16, v21')
        a('v_mul_u32_u24 v22, 10, v21'); a('v_sub_u32 v22, v20, v22'); a('v_mul_u32_u24 v21, 1280, v21'); a('v_lshl_add_u32 v%d, v22, 4, v21'%WO[i])
    PO=[6,7,8]; XO=[9,10]
    a('s_mul_i32 s%d, s%d, 80'%(S_T0,S_DT)); a('s_sub_u32 s%d, s%d, 1'%(S_T1,S_T0)); a('s_sub_u32 s%d, 560, s%d'%(S_T2,S_T0))
    a('s_cmp_lt_u32 s%d, 4'%S_DT); a('s_cselect_b32 s%d, s%d, s%d'%(S_T0,S_T1,S_T2)); a('s_lshl_b32 s%d, s%d, 2'%(S_T0,S_T0)); a('s_add_u32 s%d, s%d, 64'%(S_SO2,S_T0))
    a('s_lshl_b32 s%d, s%d, 6'%(S_T3,S_TB))
    for i in range(3):
        a('s_lshl_b32 s%d, s%d, 6'%(S_T0,S_PW)); a('s_add_u32 s%d, s%d, %d'%(S_T0,S_T0,512*i)); a('v_add_u32 v20, s%d, v0'%S_T0)
        a('v_mul_u32_u24 v21, 3277, v20'); a('v_lshrrev_b32 v21, 16, v21')
        a('v_mul_u32_u24 v22, 20, v21'); a('v_sub_u32 v22, v20, v22')
        a('v_add_u32 v21, s%d, v21'%S_T3)
        a('s_cmp_lt_u32 s%d, 16'%S_TB); l=a.newlab('K3p_m'); a('s_cbranch_scc1 %s'%l); a('v_sub_u32 v21, 2048, v21'); a.lab(l)
        a('v_mul_u32_u24 v21, 1280, v21'); a('v_lshl_add_u32 v21, v22, 4, v21'); a('v_add_u32 v%d, s%d, v21'%(PO[i],S_SO2))
    a('s_cmp_lt_u32 s%d, 4'%S_PW); l=a.newlab('K3p_d'); a('s_cbranch_scc1 %s'%l); a('v_mov_b32 v%d, 0x7fffff00'%PO[2]); a.lab(l)
    a('s_sub_u32 s%d, s%d, 4'%(S_T0,S_PW)); a('s_lshl_b32 s%d, s%d, 1'%(S_T0,S_T0)); a('s_add_u32 s%d, s%d, 8'%(S_T1,S_PW))
    a('s_cmp_lt_u32 s%d, 4'%S_PW); a('s_cselect_b32 s%d, s%d, s%d'%(S_G,S_T1,S_T0))
    for i in range(2):
        a('s_add_u32 s%d, s%d, %d'%(S_T0,S_G,i)); a('s_lshl_b32 s%d, s%d, 6'%(S_T0,S_T0)); a('v_add_u32 v20, s%d, v0'%S_T0)
        a('v_mul_u32_u24 v21, 6554, v20'); a('v_lshrrev_b32 v21, 16, v21'); a('v_mul_u32_u24 v22, 10, v21'); a('v_sub_u32 v22, v20, v22')
        a('v_add_u32 v21, s%d, v21'%S_T3); a('v_mul_u32_u24 v21, 1280, v21'); a('v_lshl_add_u32 v21, v22, 4, v21')
        a('s_mul_i32 s%d, s%d, 160'%(S_T0,S_DT)); a('v_add_u32 v%d, s%d, v21'%(XO[i],S_T0))
    a('s_mov_b32 s%d, 0'%S_SLI); a('s_mov_b32 s%d, 0'%S_KW)
    a('s_mul_i32 s%d, s%d, 160'%(S_T2,S_DT)); a('s_sub_u32 s%d, %d, s%d'%(S_T3,864*1280,S_T2))
    a('s_waitcnt lgkmcnt(0)')
    add64(a,S_T0,S_WS,WS_H); srd(a,SRD_A,S_T0,S_T0+1,2*H_VER)
    add64(a,S_WOUT,S_WOUT,'s%d'%S_T2); srd(a,SRD_B,S_WOUT,S_WOUT+1,'s%d'%S_T3)
    srd(a,SRD_C,S_X,S_X+1,2048*1280)
    add64(a,S_T0,S_WS,WS_PQ-64); srd(a,SRD_D,S_T0,S_T0+1,2*PQ_MAT+64)
    def issue():
        a('s_add_u32 m0, s%d, s%d'%(S_SLI,S_PAR)); a('s_lshl_b32 s%d, s%d, 10'%(S_T,S_PW))
        for k in range(3): a('buffer_load_dwordx4 v%d, s[%d:%d], s%d offen offset:%d lds'%(HO,SRD_A,SRD_A+3,S_KX,k*1024))
        a('s_add_u32 s%d, s%d, s%d'%(S_T,S_T,S_SLI))
        lab=a.newlab('K3p_s')
        for i in range(2):
            if i==1: a('s_cmp_lt_u32 s%d, 7'%S_PW); a('s_cbranch_scc0 %s'%lab)
            a('s_add_u32 m0, s%d, %d'%(S_T,24576+i*8192)); a('s_nop 0')
            a(ld('buffer_load_dwordx4 v%d, s[%d:%d], s%d offen lds'%(WO[i],SRD_B,SRD_B+3,S_KW)))
        a.lab(lab)
        slot_advance(a,S_SLI,SL3); a('s_add_u32 s%d, s%d, 3072'%(S_KX,S_KX)); a('s_add_u32 s%d, s%d, %d'%(S_KW,S_KW,96*1280))
    n=NK3; c=4
    if EXP.get('pprio'): a('s_setprio %d'%EXP['pprio'])
    gc.stamp(a,1)
    issue(); issue()
    gc.stamp(a,2)
    a('s_waitcnt vmcnt(%d)'%c); gc.stamp(a,3); a('s_barrier')
    issue(); issue()
    a('s_mov_b32 s%d, 1'%S_I)
    a.lab('K3p_loop')
    a('s_waitcnt vmcnt(%d)'%(2*c)); a('s_barrier'); issue()
    a('s_add_u32 s%d, s%d, 1'%(S_I,S_I)); a('s_cmp_lt_u32 s%d, %d'%(S_I,n-3)); a('s_cbranch_scc1 K3p_loop')
    a('s_waitcnt vmcnt(%d)'%(2*c)); a('s_barrier')
    a('s_lshl_b32 s%d, s%d, 10'%(S_T,S_PW))
    for i in range(2):
        a('s_add_u32 m0, s%d, %d'%(S_T,AREA_P+i*8192)); a('s_nop 0'); a('buffer_load_dwordx4 v%d, s[%d:%d], 0 offen lds'%(PO[i],SRD_D,SRD_D+3))
    l4=a.newlab('K3p_t4'); ld_=a.newlab('K3p_td')
    a('s_cmp_lt_u32 s%d, 4'%S_PW); a('s_cbranch_scc0 %s'%l4)
    a('s_add_u32 m0, s%d, %d'%(S_T,AREA_P+2*8192)); a('s_nop 0'); a('buffer_load_dwordx4 v%d, s[%d:%d], 0 offen lds'%(PO[2],SRD_D,SRD_D+3))
    a('s_lshl_b32 s%d, s%d, 10'%(S_T0,S_G)); a('s_add_u32 s%d, s%d, %d'%(S_T0,S_T0,AREA_X)); a('s_cmp_lt_u32 s%d, 2'%S_PW); a('s_cselect_b32 s%d, s%d, %d'%(S_T0,S_T0,AREA_DUM))
    lq=a.newlab('K3p_tx'); a('s_cbranch_scc1 %s'%lq); a('v_mov_b32 v%d, 0x7fffff00'%XO[0]); a.lab(lq)
    a('s_mov_b32 m0, s%d'%S_T0); a('s_nop 0'); a('buffer_load_dwordx4 v%d, s[%d:%d], 0 offen lds'%(XO[0],SRD_C,SRD_C+3)); a('s_branch %s'%ld_)
    a.lab(l4)
    a('s_lshl_b32 s%d, s%d, 10'%(S_T0,S_G))
    for i in range(2):
        a('s_add_u32 m0, s%d, %d'%(S_T0,AREA_X+i*1024)); a('s_nop 0'); a('buffer_load_dwordx4 v%d, s[%d:%d], 0 offen lds'%(XO[i],SRD_C,SRD_C+3))
    a.lab(ld_)
    a('s_waitcnt vmcnt(%d)'%(c+4)); a('s_barrier')
    a('s_mov_b32 s%d, %d'%(S_SO,PQ_MAT))
    for i in range(3):
        a('s_add_u32 m0, s%d, %d'%(S_T,AREA_Q+i*8192)); a('s_nop 0'); a('buffer_load_dwordx4 v%d, s[%d:%d], s%d offen lds'%(PO[i],SRD_D,SRD_D+3,S_SO))
    a('s_waitcnt vmcnt(7)'); a('s_barrier')
    gc.stamp(a,4)
    a('s_waitcnt vmcnt(0)'); a('s_barrier')
    kernel_tail(a,'K3',2,S_WS)
```

```python
from gen_common import *
import gen_common as gc
import struct
def f2u(f): return struct.unpack('<I',struct.pack('<f',f))[0]
WS_GR = 0x08D0000
WS_LN1 = 0x08C8000
NS=4
S_WAVE=32; S_XCD=33; S_J=34; S_G=35; S_HALF=36; S_RB=37; S_CT=38; S_PW=39; S_H=40
S_I=41; S_SLI=42; S_SLC=43; S_KX=44; S_KW=45; S_T=46; S_SO=47; S_T0=48; S_T1=49; S_T2=50; S_T3=51; S_SO2=52; S_PAR=53
S_EX=54
EXP={}
LDF=''
STF=''

def srd(a,d,lo,hi,size):
    a('s_mov_b32 s%d, s%d'%(d,lo)); a('s_mov_b32 s%d, s%d'%(d+1,hi))
    if isinstance(size,int): a('s_mov_b32 s%d, 0x%x'%(d+2,size))
    else: a('s_mov_b32 s%d, %s'%(d+2,size))
    a('s_mov_b32 s%d, 0x00020000'%(d+3))
def add64(a,dlo,slo,off):
    o = off if isinstance(off,str) else '0x%x'%off
    a('s_add_u32 s%d, s%d, %s'%(dlo,slo,o)); a('s_addc_u32 s%d, s%d, 0'%(dlo+1,slo+1))
def slot_advance(a,s,SL,ns=NS):
    a('s_add_u32 s%d, s%d, %d'%(s,s,SL)); a('s_cmp_eq_u32 s%d, %d'%(s,ns*SL)); a('s_cselect_b32 s%d, 0, s%d'%(s,s))

def dma_producer(a,name,n,c,issue,tail=None):
    if EXP.get('pprio'): a('s_setprio %d'%EXP['pprio'])
    D=EXP.get('depth',3)
    gc.stamp(a,1)
    issue(); issue()
    gc.stamp(a,2)
    a('s_waitcnt vmcnt(%d)'%c); gc.stamp(a,3); a('s_barrier')
    for _ in range(D-1): issue()
    a('s_mov_b32 s%d, %d'%(S_I,n-1-D))
    a.lab(name+'_loop')
    a('s_waitcnt vmcnt(%d)'%min(63,(D-1)*c)); a('s_barrier')
    issue()
    a('s_sub_u32 s%d, s%d, 1'%(S_I,S_I)); a('s_cmp_lg_u32 s%d, 0'%S_I); a('s_cbranch_scc1 %s_loop'%name)
    for r in range(D-1,-1,-1):
        a('s_waitcnt vmcnt(%d)'%min(63,r*c)); a('s_barrier')
    gc.stamp(a,4)

def consumer_loop(a,name,SL,n,addr_regs,reads,mfmas,ns=NS,hook=None,hook_at=2,lag=False,nsub=2,per=1,dly=None):
    def R(s): return [] if EXP.get('noread') else reads(s,s)
    def M(s): return [] if EXP.get('nomfma') else mfmas(s)
    book=['s_mov_b32 s%d, s%d'%(S_T0,S_SLC),'s_add_u32 s%d, s%d, %d'%(S_SLC,S_SLC,SL),'s_cmp_eq_u32 s%d, %d'%(S_SLC,ns*SL),'s_cselect_b32 s%d, 0, s%d'%(S_SLC,S_SLC),
          's_sub_u32 s%d, s%d, s%d'%(S_T0,S_SLC,S_T0),'s_add_u32 s%d, s%d, 1'%(S_I,S_I)]
    upd=['v_add_u32 v%d, s%d, v%d'%(r,S_T0,r) for r in addr_regs]
    a('s_mov_b32 s%d, 0'%S_I); a('s_mov_b32 s%d, 0'%S_SLC)
    if EXP.get('fine') is None: gc.stamp(a,1)
    if not lag:
        a('s_barrier')
        if EXP.get('fine') is None: gc.stamp(a,2)
        a.lab(name+'_loop')
        fine(a,1,name)
        if not EXP.get('noprio'): a('s_setprio 1')
        for s_ in range(nsub):
            for x in R(s_): a(x)
        if not EXP.get('noprio'): a('s_setprio 0')
        fine(a,2,name)
        for x in book: a(x)
        for x in upd: a(x)
        emit_hooks(a,name,hook,hook_at)
        if EXP.get('fine') is not None: a('s_sub_u32 s%d, s%d, 1'%(S_I,S_I))
        for s_ in range(nsub):
            later=sum(len(R(t)) for t in range(s_+1,nsub))
            a('s_waitcnt lgkmcnt(%d)'%(0 if EXP.get('fine') is not None else min(later,15)))
            if s_==0: fine(a,3,name)
            for x in M(s_): a(x)
        fine(a,4,name)
        if EXP.get('fine') is not None: a('s_add_u32 s%d, s%d, 1'%(S_I,S_I))
        a('s_cmp_lt_u32 s%d, %d'%(S_I,n))
        a('s_cbranch_scc0 %s_done'%name)
        a('s_barrier')
        a('s_branch %s_loop'%name)
        a.lab(name+'_done')
    else:
        a('s_barrier')
        if EXP.get('fine') is None: gc.stamp(a,2)
        for s_ in range(nsub):
            for x in R(s_): a(x)
        for x in book: a(x)
        for x in upd: a(x)
        if isinstance(hook,dict) and 1 in hook: hook[1]()
        a('s_waitcnt lgkmcnt(0)')
        a.lab(name+'_loop')
        a('s_barrier')
        fine(a,1,name)
        if EXP.get('noilv'):
            for s_ in range(nsub):
                for x in M(s_): a(x)
            fine(a,2,name)
            for s_ in range(nsub):
                for x in R(s_): a(x)
            fine(a,3,name)
        else:
            Ms=[M(s_) for s_ in range(nsub)]; allM=[m for x in Ms for m in x]
            ends=[sum(len(Ms[t]) for t in range(s_+1)) for s_ in range(nsub)]
            pend=[]
            if dly is None: dly=max(ends[0],len(allM)-len(R(0))) if allM else 0
            nxt=0
            for k_,m in enumerate(allM):
                a(m)
                while nxt<nsub-1 and k_+1>=ends[nxt]:
                    pend+=R(nxt); nxt+=1
                if k_+1>=dly:
                    for _ in range(min(per,len(pend))): a(pend.pop(0))
            fine(a,2,name)
            for x in pend: a(x)
            for x in R(nsub-1): a(x)
            fine(a,3,name)
        for x in book: a(x)
        for x in upd: a(x)
        emit_hooks(a,name,({k_:v_ for k_,v_ in hook.items() if k_!=1} if isinstance(hook,dict) else hook),hook_at)
        a('s_waitcnt lgkmcnt(0)')
        if EXP.get('fine') is not None:
            a('s_sub_u32 s%d, s%d, 1'%(S_I,S_I)); fine(a,4,name); a('s_add_u32 s%d, s%d, 1'%(S_I,S_I))
        a('s_cmp_lt_u32 s%d, %d'%(S_I,n))
        a('s_cbranch_scc1 %s_loop'%name)
        for s_ in range(nsub):
            for x in M(s_): a(x)
    if EXP.get('fine') is None: gc.stamp(a,3)

def emit_hooks(a,name,hook,hook_at):
    if hook is None: return
    H=hook if isinstance(hook,dict) else {hook_at:hook}
    for k,(at,fn) in enumerate(sorted(H.items())):
        a('s_cmp_eq_u32 s%d, %d'%(S_I,at)); a('s_cbranch_scc0 %s_nh%d'%(name,k)); fn(); a.lab('%s_nh%d'%(name,k))
def fine(a,k,name):
    if EXP.get('fine') is not None and gc.STAMPS:
        l='%s_f%d'%(name,k)
        a('s_cmp_eq_u32 s%d, %d'%(S_I,EXP['fine'])); a('s_cbranch_scc0 %s'%l); a('s_memtime s[%d:%d]'%(64+2*k,65+2*k)); a.lab(l)
def mix(a,M,F,per=2,lead=0):
    F=list(F)
    for _ in range(min(lead,len(F))): a(F.pop(0))
    for m in M:
        a(m)
        for _ in range(min(per,len(F))): a(F.pop(0))
    for x in F: a(x)

GC0=-2.0*0.7978845608028654*1.4426950408889634
GC1=GC0*0.044715
def gelu_pairs(a,pre,tmp,C0,C1,ONE):
    n=len(pre)
    for k in range(n): a('v_pk_mul_f32 %s, %s, %s'%(vr(tmp[k],2),vr(pre[k],2),vr(pre[k],2)))
    for k in range(n): a('v_pk_fma_f32 %s, %s, %s, %s'%(vr(tmp[k],2),vr(tmp[k],2),vr(C1,2),vr(C0,2)))
    for k in range(n): a('v_pk_mul_f32 %s, %s, %s'%(vr(tmp[k],2),vr(tmp[k],2),vr(pre[k],2)))
    for k in range(n):
        a('v_exp_f32 v%d, v%d'%(tmp[k],tmp[k])); a('v_exp_f32 v%d, v%d'%(tmp[k]+1,tmp[k]+1))
    for k in range(n): a('v_pk_add_f32 %s, %s, %s'%(vr(tmp[k],2),vr(tmp[k],2),vr(ONE,2)))
    for k in range(n):
        a('v_rcp_f32 v%d, v%d'%(tmp[k],tmp[k])); a('v_rcp_f32 v%d, v%d'%(tmp[k]+1,tmp[k]+1))
    for k in range(n): a('v_pk_mul_f32 %s, %s, %s'%(vr(pre[k],2),vr(pre[k],2),vr(tmp[k],2)))
def kernel_head(a,kname,pre,nwg=256):
    KCUR[0]=int(pre[1])
    a.raw('.p2align 8'); a.raw('.type %s,@function'%kname); a.lab(kname)
    a('s_cmp_ge_u32 s2, %d'%nwg); a('s_cbranch_scc1 %s_exit'%pre); gc.stamp_init(a)
def kernel_tail(a,pre,kidx,s_ws):
    a.lab(pre+'_end'); gc.stamp_dump(a,kidx,s_ws,S_WAVE); a.lab(pre+'_exit'); a('s_endpgm')

KCUR=[1]
LDK={1:'',2:'',3:''}
class AsmF(Asm):
    def __call__(s,txt):
        import g2_common as g
        if g.EXP.get('nodma') and txt.startswith('buffer_load') and txt.rstrip().endswith('lds'): return
        Asm.__call__(s,txt)
def ld(txt):
    import g2_common as g
    return txt.replace(' lds', g.LDK[g.KCUR[0]]+' lds')

def pf_loop(a,name,n,pf,d1,d2,extra_barriers=0):
    D=EXP.get('pfd',7); pol=LDK[KCUR[0]]
    a('s_mov_b32 s%d, %d'%(S_KX,d1)); a('s_mov_b32 s%d, %d'%(S_KW,d2))
    for _ in range(min(D,n)-1): pf(pol)
    m=max(n-D,0)
    if m>0:
        a('s_mov_b32 s%d, %d'%(S_I,m))
        a.lab(name+'_loop')
        a('s_barrier'); pf(pol)
        a('s_sub_u32 s%d, s%d, 1'%(S_I,S_I)); a('s_cmp_lg_u32 s%d, 0'%S_I); a('s_cbranch_scc1 %s_loop'%name)
    for _ in range(n-m+extra_barriers): a('s_barrier')
```

```python
from g2_common import *
import g2_common as g2
SLZ=34816; SLA=36864
TB=NS*SLA
T_R=TB; T_NMR=TB+512; T_CS0=TB+1024; T_CS1=TB+1664; T_W2=TB+2304
K1_LDS=TB+2304+2048
NK1=10
S_X=4; S_WS=6; S_WDRE=8; S_WDIM=10; S_WIN=12; S_DBG=14
SRD_X=16; SRD_W=20; SRD_O=24; SRD_O2=28; SRD_G=56; SRD_D=60
POLL_BOUND=4000

def stats_final(a,SUM,SQ,t,n,rout,nmrout):
    for k in range(1,len(SUM)): a('v_add_f32 v%d, v%d, v%d'%(SUM[0],SUM[0],SUM[k])); a('v_add_f32 v%d, v%d, v%d'%(SQ[0],SQ[0],SQ[k]))
    a('s_nop 1')
    a('v_add_f32_dpp v%d, v%d, v%d quad_perm:[1,0,3,2] row_mask:0xf bank_mask:0xf'%(t,SUM[0],SUM[0]))
    a('v_add_f32_dpp v%d, v%d, v%d quad_perm:[1,0,3,2] row_mask:0xf bank_mask:0xf'%(t+1,SQ[0],SQ[0]))
    a('v_mul_f32 v%d, 0x%x, v%d'%(t,f2u(1.0/n),t)); a('v_mul_f32 v%d, 0x%x, v%d'%(t+1,f2u(1.0/n),t+1))
    a('v_fma_f32 v%d, -v%d, v%d, v%d'%(t+1,t,t,t+1)); a('v_max_f32 v%d, 0, v%d'%(t+1,t+1)); a('v_add_f32 v%d, 0x%x, v%d'%(t+1,f2u(1e-5),t+1))
    a('v_rsq_f32 v%d, v%d'%(rout,t+1)); a('s_nop 0')
    a('v_mul_f32 v%d, v%d, v%d'%(nmrout,t,rout)); a('v_sub_f32 v%d, 0, v%d'%(nmrout,nmrout))

S_WSP=62
def ln1_row(a):
    a('s_lshl_b32 s%d, s2, 3'%S_T0); a('s_add_u32 s%d, s%d, s%d'%(S_T0,S_T0,S_WAVE)); a('s_mul_i32 s%d, s%d, 1280'%(S_T1,S_T0))
    a('v_lshlrev_b32 v56, 4, v0'); a('v_mov_b32 v57, 0x3f803f80')
    for k in range(4): a('v_mov_b32 v%d, 0'%(68+k))
    a('s_waitcnt lgkmcnt(0)')
    add64(a,S_T2,S_X,'s%d'%S_T1); srd(a,SRD_O,S_T2,S_T2+1,1280)
    a('buffer_load_dwordx4 v[60:63], v56, s[%d:%d], 0 offen'%(SRD_O,SRD_O+3)); a('buffer_load_dwordx4 v[64:67], v56, s[%d:%d], 0 offen offset:1024'%(SRD_O,SRD_O+3))
    add64(a,S_T2,S_WS,WS_LN1); srd(a,SRD_O2,S_T2,S_T2+1,16384)
    a('s_lshl_b32 s%d, s%d, 3'%(S_SO,S_T0))
def ln1_row_finish(a):
    a('s_waitcnt vmcnt(0)')
    for k in range(8):
        a('v_dot2_f32_bf16 v%d, v%d, v%d, v%d'%(68+(k&1),60+k,60+k,68+(k&1))); a('v_dot2_f32_bf16 v%d, v%d, v57, v%d'%(70+(k&1),60+k,70+(k&1)))
    a('s_nop 3')
    a('v_add_f32 v68, v68, v69'); a('v_add_f32 v70, v70, v71'); a('s_nop 1')
    for d in ('quad_perm:[1,0,3,2]','quad_perm:[2,3,0,1]','row_half_mirror','row_mirror'):
        a('v_add_f32_dpp v68, v68, v68 %s row_mask:0xf bank_mask:0xf'%d); a('v_add_f32_dpp v70, v70, v70 %s row_mask:0xf bank_mask:0xf'%d); a('s_nop 0')
    for sw in ('v_permlane16_swap_b32','v_permlane32_swap_b32'):
        a('v_mov_b32 v69, v68'); a('v_mov_b32 v71, v70'); a('s_nop 1')
        a('%s v68, v69'%sw); a('%s v70, v71'%sw); a('s_nop 1')
        a('v_add_f32 v68, v68, v69'); a('v_add_f32 v70, v70, v71')
    a('v_mul_f32 v70, 0x%x, v70'%f2u(1.0/640)); a('v_mul_f32 v68, 0x%x, v68'%f2u(1.0/640))
    a('v_fma_f32 v68, -v70, v70, v68'); a('v_max_f32 v68, 0, v68'); a('v_add_f32 v68, 0x%x, v68'%f2u(1e-5))
    a('v_rsq_f32 v72, v68'); a('s_nop 0'); a('v_mul_f32 v73, v70, v72'); a('v_sub_f32 v73, 0, v73')
    a('v_mov_b32 v74, 0'); a('v_cmp_eq_u32 vcc, 0, v0'); a('s_and_saveexec_b64 s[%d:%d], vcc'%(S_EX,S_EX+1))
    a('buffer_store_dwordx2 v[72:73], v74, s[%d:%d], s%d offen sc1'%(SRD_O2,SRD_O2+3,S_SO))
    a('s_mov_b64 exec, s[%d:%d]'%(S_EX,S_EX+1))
def ln1_hook(a):
    return lambda: a('s_waitcnt vmcnt(0)')

def worker(a,name,SL,isZ):
    n=NK1
    CA=14; VT=15; CF=[48,68]; CACC=88; ONES=108
    srd(a,SRD_D,S_DBG,S_DBG+1,256)
    add64(a,S_T2,S_WS,WS_GR); srd(a,SRD_G,S_T2,S_T2+1,16*12288)
    if isZ:
        a('s_cmp_eq_u32 s%d, 0'%S_PW); a('s_cbranch_scc0 %s_nojob'%name)
        a('s_mul_i32 s%d, s%d, 12288'%(S_SO,S_RB)); a('s_lshl_b32 s%d, s%d, 1'%(S_T0,S_CT)); a('s_add_u32 s%d, s%d, s%d'%(S_T0,S_T0,S_PAR)); a('s_lshl_b32 s%d, s%d, 10'%(S_T0,S_T0))
        a('s_add_u32 s%d, s%d, s%d'%(S_SO,S_SO,S_T0))
        for k in range(4): a('v_mov_b32 v%d, -1'%(8+k))
        a('v_lshlrev_b32 v3, 4, v0')
        a('buffer_store_dwordx4 v[8:11], v3, s[%d:%d], s%d offen sc1'%(SRD_G,SRD_G+3,S_SO))
        a.lab(name+'_nojob')
    a('s_load_dwordx2 s[86:87], s[0:1], 56'); a('s_load_dwordx4 s[96:99], s[0:1], 8')
    a('v_lshrrev_b32 v4, 4, v0'); a('v_and_b32 v5, 15, v0'); a('v_lshlrev_b32 v5, 7, v5')
    a('s_lshl_b32 s%d, s%d, 9'%(S_T0,S_G)); a('s_lshl_b32 s%d, s%d, 4'%(S_T1,S_J)); a('s_add_u32 s%d, s%d, s%d'%(S_T0,S_T0,S_T1)); a('v_add_u32 v6, s%d, v4'%S_T0)
    a('v_lshlrev_b32 v6, 12, v6'); a('v_add_u32 v6, v6, v5'); a('s_lshl_b32 s%d, s%d, 11'%(S_T0,S_HALF)); a('v_add_u32 v6, s%d, v6'%S_T0)
    a('s_mul_i32 s%d, s%d, 288'%(S_T0,S_G)); a('s_mul_i32 s%d, s%d, 9'%(S_T1,S_J)); a('s_add_u32 s%d, s%d, s%d'%(S_T0,S_T0,S_T1)); a('v_add_u32 v7, s%d, v4'%S_T0)
    a('v_lshlrev_b32 v7, 12, v7'); a('v_add_u32 v7, v7, v5')
    a('v_and_b32 v21, 15, v0'); a('v_lshlrev_b32 v21, 4, v21'); a('v_mov_b32 v20, 0')
    for r in (16,17,18,19): a('v_mov_b32 v%d, 0'%r)
    a('s_waitcnt lgkmcnt(0)')
    srd(a,SRD_W,86,87,2048*4096)
    a('s_cmp_eq_u32 s%d, 0'%S_HALF); a('s_cselect_b32 s%d, s96, s98'%S_T2); a('s_cselect_b32 s%d, s97, s99'%S_T3); srd(a,SRD_O2,S_T2,S_T3,2048*4096)
    if isZ:
        a('v_and_b32 v120, 15, v0'); a('v_lshrrev_b32 v121, 4, v0'); a('v_lshrrev_b32 v122, 2, v120'); a('v_lshl_add_u32 v122, v121, 2, v122')
        a('v_mul_u32_u24 v122, 288, v122'); a('v_and_b32 v120, 3, v120'); a('v_lshl_add_u32 v122, v120, 3, v122')
        a('s_and_b32 s%d, s%d, 1'%(S_T0,S_PW)); a('s_mul_i32 s%d, s%d, 9216'%(S_T0,S_T0)); a('s_cmp_lt_u32 s%d, 2'%S_PW); a('s_cselect_b32 s%d, 160, 0'%S_T1)
        a('s_add_u32 s%d, s%d, s%d'%(S_T0,S_T0,S_T1)); a('s_add_u32 s%d, s%d, 16384'%(S_T0,S_T0)); a('v_add_u32 v%d, s%d, v122'%(CA,S_T0))
        for k in range(4): a('v_mov_b32 v%d, 0x3f803f80'%(ONES+k))
        for k in range(20): a('v_mov_b32 v%d, 0'%(CACC+k))
        for k in range(40): a('v_mov_b32 v%d, 0'%(CF[0]+k))
    def reads(st):
        a('v_add_u32 v%d, s%d, v%d'%(VT,S_SLC,CA))
        lab=a.newlab(name+'_c')
        for j in range(5):
            if j==4: a('s_cmp_lt_u32 s%d, 2'%S_PW); a('s_cbranch_scc1 %s'%lab)
            for b in range(2): a('ds_read_b64_tr_b16 %s, v%d offset:%d'%(vr(CF[st]+4*j+2*b,2),VT,b*4608+j*32))
        a.lab(lab)
    def compute(st):
        for j in range(5):
            a('v_mfma_f32_16x16x32_bf16 %s, %s, %s, %s'%(vr(CACC+4*j,4),vr(ONES,4),vr(CF[st]+4*j,4),vr(CACC+4*j,4)))
    def xpf(k,pol):
        if k<4:
            a('s_mov_b32 s%d, %d'%(S_SO,k*4*4096)); a('buffer_load_dword v10, v6, s[%d:%d], s%d offen%s'%(SRD_W,SRD_W+3,S_SO,pol))
        else:
            k-=4
            a('s_mov_b32 s%d, %d'%(S_SO,k*4*4096))
            if k==2: a('s_mov_b32 exec_hi, 0'); a('s_mov_b32 exec_lo, 0xffff')
            a('buffer_load_dword v10, v7, s[%d:%d], s%d offen%s'%(SRD_O2,SRD_O2+3,S_SO,pol))
            if k==2: a('s_mov_b64 exec, -1')
    TBL=16
    def side(i):
        pol=' nt' if not EXP.get('xpfdef') else ''
        if not (EXP.get('noxpf') or EXP.get('noxpf1')) and EXP.get('pfmid') and 2<=i<=8:
            l=a.newlab(name+'_p'); a('s_cmp_eq_u32 s%d, 1'%S_PW); a('s_cbranch_scc0 %s'%l)
            xpf(i-2,pol)
            a.lab(l)
        if i==2:
            l=a.newlab(name+'_a'); a('s_cmp_eq_u32 s%d, 0'%S_PW); a('s_cbranch_scc0 %s'%l)
            a('s_waitcnt vmcnt(0)')
            a('v_mov_b32 v4, 1'); a('s_and_b32 s%d, s2, 15'%S_T0); a('s_lshl_b32 s%d, s%d, 4'%(S_T0,S_T0)); a('v_mov_b32 v3, s%d'%S_T0)
            a('v_cmp_eq_u32 vcc, 0, v0'); a('s_and_saveexec_b64 s[%d:%d], vcc'%(S_EX,S_EX+1))
            a('buffer_atomic_add v4, v3, s[%d:%d], 0 offen sc1'%(SRD_D,SRD_D+3))
            a('s_mov_b64 exec, s[%d:%d]'%(S_EX,S_EX+1))
            a.lab(l)
        if i==5:
            l=a.newlab(name+'_q'); a('s_cmp_eq_u32 s%d, 0'%S_PW); a('s_cbranch_scc0 %s'%l)
            a('buffer_load_dword v20, v21, s[%d:%d], 0 offen sc1'%(SRD_D,SRD_D+3))
            a.lab(l)
        if i==7:
            l=a.newlab(name+'_r'); a('s_cmp_eq_u32 s%d, 0'%S_PW); a('s_cbranch_scc0 %s'%l)
            a('s_mov_b32 s%d, 0'%S_SO2)
            lp=a.newlab(name+'_pl'); ok=a.newlab(name+'_ok')
            a.lab(lp)
            a('s_waitcnt vmcnt(0)'); a('v_cmp_gt_u32 vcc, 16, v20'); a('s_nop 1'); a('s_cmp_eq_u64 vcc, 0'); a('s_cbranch_scc1 %s'%ok)
            a('buffer_load_dword v20, v21, s[%d:%d], 0 offen sc1'%(SRD_D,SRD_D+3))
            a('s_add_u32 s%d, s%d, 1'%(S_SO2,S_SO2)); a('s_cmp_lt_u32 s%d, %d'%(S_SO2,POLL_BOUND)); a('s_cbranch_scc1 %s'%lp)
            a.lab(ok)
            add64(a,S_T2,S_WS,WS_LN1); srd(a,SRD_O,S_T2,S_T2+1,16384)
            if isZ:
                a('s_lshl_b32 s%d, s%d, 7'%(S_T0,S_RB)); a('v_add_u32 v22, s%d, v0'%S_T0); a('v_add_u32 v23, 64, v22')
            else:
                a('s_lshl_b32 s%d, s%d, 6'%(S_T0,S_RB)); a('v_add_u32 v22, s%d, v0'%S_T0); a('v_sub_u32 v23, 2048, v22')
                a('v_cmp_eq_u32 vcc, 2048, v23'); a('v_mov_b32 v24, 1024'); a('s_nop 0'); a('v_cndmask_b32 v23, v23, v24, vcc')
            a('v_lshlrev_b32 v22, 3, v22'); a('v_lshlrev_b32 v23, 3, v23')
            a('buffer_load_dwordx2 v[16:17], v22, s[%d:%d], 0 offen sc1'%(SRD_O,SRD_O+3)); a('buffer_load_dwordx2 v[18:19], v23, s[%d:%d], 0 offen sc1'%(SRD_O,SRD_O+3))
            a.lab(l)
    a('s_mov_b32 s%d, 0'%S_SLC)
    for i in range(n):
        a('s_barrier')
        if isZ: reads(i&1)
        side(i)
        if isZ:
            compute((i&1)^1); a('s_waitcnt lgkmcnt(0)'); slot_advance(a,S_SLC,SL)
    if isZ: compute((n-1)&1)
    if not (EXP.get('noxpf') or EXP.get('noxpf1') or EXP.get('pfmid')):
        l=a.newlab(name+'_pe'); a('s_cmp_eq_u32 s%d, 1'%S_PW); a('s_cbranch_scc0 %s'%l)
        for k in range(7): xpf(k,' nt' if not EXP.get('xpfdef') else '')
        a.lab(l)
    gc.stamp(a,3)
    l=a.newlab(name+'_w'); a('s_cmp_eq_u32 s%d, 0'%S_PW); a('s_cbranch_scc0 %s'%l)
    a('s_waitcnt vmcnt(0)'); a('v_lshlrev_b32 v26, 2, v0'); a('v_add_u32 v26, %d, v26'%T_R)
    a('ds_write_b32 v26, v16'); a('ds_write_b32 v26, v17 offset:512'); a('ds_write_b32 v26, v18 offset:256'); a('ds_write_b32 v26, v19 offset:768')
    a.lab(l)
    if isZ:
        a('s_and_b32 s%d, s%d, 1'%(S_T0,S_PW)); a('s_mul_i32 s%d, s%d, 640'%(S_T0,S_T0)); a('s_cmp_lt_u32 s%d, 2'%S_PW); a('s_cselect_b32 s%d, 320, 0'%S_T1)
        a('s_add_u32 s%d, s%d, s%d'%(S_T0,S_T0,S_T1)); a('v_and_b32 v26, 15, v0'); a('v_lshlrev_b32 v26, 2, v26'); a('v_add_u32 v26, s%d, v26'%S_T0); a('v_add_u32 v26, %d, v26'%T_CS0)
        a('s_nop 7')
        lab=a.newlab(name+'_f')
        for j in range(5):
            if j==4: a('s_cmp_lt_u32 s%d, 2'%S_PW); a('s_cbranch_scc1 %s'%lab)
            a('ds_write_b32 v26, v%d offset:%d'%(CACC+4*j,j*64))
        a.lab(lab)

def krot(a):
    if EXP.get('norot'): a('s_mov_b32 s%d, 0'%S_T0); return
    a('s_mul_i32 s%d, s%d, 5'%(S_T0,S_G)); a('s_lshr_b32 s%d, s%d, 1'%(S_T0,S_T0))
    a('s_mul_i32 s%d, s%d, %d'%(S_T1,S_HALF,EXP.get('rothalf',4))); a('s_add_u32 s%d, s%d, s%d'%(S_T0,S_T0,S_T1))
    a('s_cmp_ge_u32 s%d, 10'%S_T0); a('s_cselect_b32 s%d, 10, 0'%S_T1); a('s_sub_u32 s%d, s%d, s%d'%(S_T0,S_T0,S_T1))

def gen_k1(a,kname):
    kernel_head(a,kname,'K1')
    a('s_load_dwordx2 s[%d:%d], s[0:1], 0'%(S_X,S_X+1))
    a('s_load_dwordx4 s[%d:%d], s[0:1], 24'%(S_WDRE,S_WDRE+3))
    a('s_load_dwordx2 s[%d:%d], s[0:1], 48'%(S_WIN,S_WIN+1))
    a('s_load_dwordx2 s[%d:%d], s[0:1], 88'%(S_DBG,S_DBG+1))
    a('s_load_dwordx2 s[%d:%d], s[0:1], 96'%(S_WS,S_WS+1))
    a('v_lshrrev_b32 v1, 6, v0'); a('v_and_b32 v0, 63, v0'); a('s_nop 0')
    a('v_readfirstlane_b32 s%d, v1'%S_WAVE)
    a('s_and_b32 s%d, s2, 7'%S_XCD); a('s_lshr_b32 s%d, s2, 3'%S_J)
    a('s_lshr_b32 s%d, s%d, 1'%(S_G,S_XCD)); a('s_and_b32 s%d, s%d, 1'%(S_HALF,S_XCD))
    a('s_cmp_ge_u32 s%d, 24'%S_J); a('s_cbranch_scc1 K1A_entry')
    a('s_mul_i32 s%d, s%d, 43'%(S_T0,S_J)); a('s_lshr_b32 s%d, s%d, 8'%(S_T0,S_T0))
    a('s_mul_i32 s%d, s%d, 6'%(S_T1,S_T0)); a('s_sub_u32 s%d, s%d, s%d'%(S_T1,S_J,S_T1))
    a('s_and_b32 s%d, s%d, 1'%(S_PAR,S_T1)); a('s_lshr_b32 s%d, s%d, 1'%(S_T1,S_T1)); a('s_mul_i32 s%d, s%d, 3'%(S_CT,S_HALF)); a('s_add_u32 s%d, s%d, s%d'%(S_CT,S_CT,S_T1))
    a('s_lshl_b32 s%d, s%d, 1'%(S_T1,S_G)); a('s_add_u32 s%d, s%d, s%d'%(S_T2,S_T1,S_T0))
    a('s_sub_u32 s%d, s%d, s%d'%(S_T3,S_T0,S_T1)); a('s_add_u32 s%d, s%d, 12'%(S_T3,S_T3))
    a('s_cmp_lt_u32 s%d, 2'%S_T0); a('s_cselect_b32 s%d, s%d, s%d'%(S_RB,S_T2,S_T3))
    a('s_cmp_ge_u32 s%d, 12'%S_WAVE); a('s_cbranch_scc1 K1Z_work')
    a('s_cmp_ge_u32 s%d, 8'%S_WAVE); a('s_cbranch_scc1 K1Z_prod')
    ACC=16; FA=56; FB=84; XA=[112,113]; WA=116
    a('s_and_b32 s%d, s%d, 3'%(S_PW,S_WAVE)); a('s_lshr_b32 s%d, s%d, 2'%(S_H,S_WAVE))
    a('v_and_b32 v1, 15, v0'); a('v_lshrrev_b32 v2, 4, v0')
    a('v_and_b32 v3, 7, v0'); a('v_xor_b32 v3, v3, v2'); a('v_lshlrev_b32 v3, 4, v3'); a('v_lshl_add_u32 v3, v1, 7, v3')
    a('s_lshl_b32 s%d, s%d, 12'%(S_T0,S_PW)); a('v_add_u32 v%d, s%d, v3'%(XA[0],S_T0)); a('v_xor_b32 v%d, 64, v%d'%(XA[1],XA[0]))
    a('v_lshrrev_b32 v3, 2, v1'); a('v_lshl_add_u32 v3, v2, 2, v3'); a('v_mul_u32_u24 v3, 288, v3'); a('v_and_b32 v4, 3, v1'); a('v_lshl_add_u32 v3, v4, 3, v3')
    a('s_mul_i32 s%d, s%d, 160'%(S_T0,S_H)); a('v_add_u32 v%d, s%d, v3'%(WA,S_T0))
    ln1_row(a)
    for k in range(40): a('v_mov_b32 v%d, 0'%(ACC+k))
    ln1_row_finish(a)
    def acc(i,j): return ACC+(j*2+i)*4
    a('s_cmp_eq_u32 s%d, s%d'%(S_H,S_PAR)); a('s_cselect_b32 s%d, 0, 2'%S_T0); a('s_add_u32 s%d, s%d, s%d'%(S_T0,S_T0,S_H))
    for t,lab in ((1,'K1c_z2_1'),(2,'K1c_z1_0'),(3,'K1c_z1_1')):
        a('s_cmp_eq_u32 s%d, %d'%(S_T0,t)); a('s_cbranch_scc1 %s'%lab)
    for role in ('z2','z1'):
      for h in range(2):
        nj=5-h; nm='K1c_%s_%d'%(role,h)
        a.lab(nm)
        def rd(st,sub,nj=nj):
            F=FA if st==0 else FB; m=[]
            for i in range(2): m.append('ds_read_b128 %s, v%d offset:%d'%(vr(F+i*4,4),XA[sub],i*2048))
            for j in range(nj):
                for b in range(2): m.append('ds_read_b64_tr_b16 %s, v%d offset:%d'%(vr(F+8+j*4+b*2,2),WA,16384+sub*9216+b*4608+j*32))
            return m
        def mf(st,role=role,nj=nj):
            F=FA if st==0 else FB; m=[]
            for j in range(nj):
                for i in range(2):
                    x=vr(F+i*4,4); w=vr(F+8+j*4,4); c=vr(acc(i,j),4)
                    m.append('v_mfma_f32_16x16x32_bf16 %s, %s, %s, %s'%((c,x,w,c) if role=='z2' else (c,w,x,c)))
            return m
        consumer_loop(a,nm+'L',SLZ,NK1,XA+[WA],rd,mf,lag=(h==0),hook=ln1_hook(a),hook_at=2,per=EXP.get('k1per',2),dly=EXP.get('k1dly',12))
        a('s_barrier')
        if EXP.get('fine') is None: gc.stamp(a,4)
        C0=112;C1=114;ONE=116
        a('v_mov_b32 v%d, 0x%x'%(C0,f2u(GC0))); a('v_mov_b32 v%d, 0x%x'%(C0+1,f2u(GC0)))
        a('v_mov_b32 v%d, 0x%x'%(C1,f2u(GC1))); a('v_mov_b32 v%d, 0x%x'%(C1+1,f2u(GC1)))
        a('v_mov_b32 v%d, 1.0'%ONE); a('v_mov_b32 v%d, 1.0'%(ONE+1))
        TMP=[56,58,60,62]; prs=[(i,p) for i in range(2) for p in range(2)]
        if role=='z2':
            if not EXP.get('noz2prio'): a('s_setprio 3')
            RR=64; NM=72; CS=80; CSb=86; SUM=92; SQ=100; GRN=56; VO=118; PK=108
            a('s_lshl_b32 s%d, s%d, 7'%(S_T0,S_PW)); a('v_lshlrev_b32 v3, 4, v2'); a('v_add_u32 v3, s%d, v3'%S_T0); a('v_add_u32 v3, %d, v3'%T_R)
            for i in range(2):
                a('ds_read_b128 %s, v3 offset:%d'%(vr(RR+4*i,4),i*64)); a('ds_read_b128 %s, v3 offset:%d'%(vr(NM+4*i,4),512+i*64))
            a('v_lshlrev_b32 v4, 2, v1'); a('v_add_u32 v4, %d, v4'%(T_CS0+h*320))
            for j in range(nj):
                a('ds_read_b32 v%d, v4 offset:%d'%(CS+j,j*64)); a('ds_read_b32 v%d, v4 offset:%d'%(CSb+j,640+j*64))
            for k in range(8): a('v_mov_b32 v%d, 0'%(SUM+k)); a('v_mov_b32 v%d, 0'%(SQ+k))
            add64(a,S_T2,S_WS,WS_GR); srd(a,SRD_G,S_T2,S_T2+1,16*12288)
            a('s_mul_i32 s%d, s%d, 12288'%(S_SO,S_RB))
            a('s_lshl_b32 s%d, s%d, 1'%(S_T0,S_CT)); a('s_add_u32 s%d, s%d, %d'%(S_T0,S_T0,h)); a('s_lshl_b32 s%d, s%d, 10'%(S_T0,S_T0))
            a('s_lshl_b32 s%d, s%d, 8'%(S_T1,S_PW)); a('s_add_u32 s%d, s%d, s%d'%(S_T0,S_T0,S_T1)); a('s_add_u32 s%d, s%d, s%d'%(S_SO2,S_SO,S_T0))
            a('s_waitcnt lgkmcnt(0)')
            for j in range(nj): a('v_add_f32 v%d, v%d, v%d'%(CS+j,CS+j,CSb+j))
            for j in range(nj):
                csr=CS+j; cspair=vr(csr&~1,2); sel=csr&1
                for k,(i,p) in enumerate(prs): a('v_pk_mul_f32 %s, %s, %s op_sel:[0,%d] op_sel_hi:[1,%d]'%(vr(TMP[k],2),vr(NM+4*i+2*p,2),cspair,sel,sel))
                for k,(i,p) in enumerate(prs):
                    r=acc(i,j)+2*p; a('v_pk_fma_f32 %s, %s, %s, %s'%(vr(r,2),vr(r,2),vr(RR+4*i+2*p,2),vr(TMP[k],2)))
                gelu_pairs(a,[acc(i,j)+2*p for (i,p) in prs],TMP,C0,C1,ONE)
                for k,(i,p) in enumerate(prs):
                    r=acc(i,j)+2*p
                    a('v_pk_add_f32 %s, %s, %s'%(vr(SUM+4*i+2*p,2),vr(SUM+4*i+2*p,2),vr(r,2)))
                    a('v_pk_fma_f32 %s, %s, %s, %s'%(vr(SQ+4*i+2*p,2),vr(r,2),vr(r,2),vr(SQ+4*i+2*p,2)))
            if EXP.get('z2st'): gc.stamp(a,1)
            for sh in (8,4,2):
                for k in range(8): a('v_add_f32_dpp v%d, v%d, v%d row_ror:%d row_mask:0xf bank_mask:0xf'%(SUM+k,SUM+k,SUM+k,sh))
                for k in range(8): a('v_add_f32_dpp v%d, v%d, v%d row_ror:%d row_mask:0xf bank_mask:0xf'%(SQ+k,SQ+k,SQ+k,sh))
            for k in range(8): a('v_add_f32_dpp v%d, v%d, v%d row_ror:1 row_mask:0xf bank_mask:0xf'%(GRN+2*k,SUM+k,SUM+k))
            for k in range(8): a('v_add_f32_dpp v%d, v%d, v%d row_ror:1 row_mask:0xf bank_mask:0xf'%(GRN+2*k+1,SQ+k,SQ+k))
            a('v_lshlrev_b32 v3, 5, v2'); a('v_cmp_eq_u32 vcc, 0, v1'); a('s_and_saveexec_b64 s[%d:%d], vcc'%(S_EX,S_EX+1))
            for i in range(2):
                for p in range(2): a('buffer_store_dwordx4 %s, v3, s[%d:%d], s%d offen offset:%d sc1'%(vr(GRN+8*i+4*p,4),SRD_G,SRD_G+3,S_SO2,i*128+p*16))
            a('s_mov_b64 exec, s[%d:%d]'%(S_EX,S_EX+1))
            if EXP.get('z2st'): gc.stamp(a,2)
            PL=72
            a('v_and_b32 v4, 31, v0'); a('v_lshrrev_b32 v5, 5, v0'); a('v_mul_u32_u24 v5, 6144, v5'); a('v_lshl_add_u32 v4, v4, 3, v5')
            a('s_lshl_b32 s%d, s%d, 8'%(S_T1,S_PW)); a('v_add_u32 v4, s%d, v4'%S_T1); a('v_add_u32 v5, 4096, v4')
            a('s_mov_b32 s%d, 0'%S_I)
            a.lab(nm+'_poll')
            for k in range(6): a('buffer_load_dwordx2 %s, v%d, s[%d:%d], s%d offen offset:%d sc1'%(vr(PL+2*k,2),4 if k<4 else 5,SRD_G,SRD_G+3,S_SO,(k%4)*1024))
            a('s_waitcnt vmcnt(0)')
            a('v_max3_u32 v6, v%d, v%d, v%d'%(PL,PL+1,PL+2))
            for k in range(3,12,2):
                a('v_max3_u32 v6, v6, v%d, v%d'%(PL+k,PL+k+1) if k+1<12 else 'v_max_u32 v6, v6, v%d'%(PL+k))
            a('v_cmp_eq_u32 s[%d:%d], -1, v6'%(S_EX,S_EX+1)); a('s_nop 1'); a('s_cmp_eq_u64 s[%d:%d], 0'%(S_EX,S_EX+1)); a('s_cbranch_scc1 %s_rdy'%nm)
            a('s_add_u32 s%d, s%d, 1'%(S_I,S_I)); a('s_cmp_lt_u32 s%d, %d'%(S_I,POLL_BOUND)); a('s_cbranch_scc1 %s_poll'%nm)
            a.lab(nm+'_rdy')
            if EXP.get('z2st'): gc.stamp(a,3)
            a('v_pk_add_f32 %s, %s, %s'%(vr(PL,2),vr(PL,2),vr(PL+2,2))); a('v_pk_add_f32 %s, %s, %s'%(vr(PL+4,2),vr(PL+4,2),vr(PL+6,2))); a('v_pk_add_f32 %s, %s, %s'%(vr(PL+8,2),vr(PL+8,2),vr(PL+10,2)))
            a('v_pk_add_f32 %s, %s, %s'%(vr(PL,2),vr(PL,2),vr(PL+4,2))); a('v_pk_add_f32 %s, %s, %s'%(vr(PL,2),vr(PL,2),vr(PL+8,2)))
            a('v_mov_b32 v%d, v%d'%(PL+2,PL)); a('v_mov_b32 v%d, v%d'%(PL+3,PL+1)); a('s_nop 1')
            a('v_permlane32_swap_b32 v%d, v%d'%(PL,PL+2)); a('v_permlane32_swap_b32 v%d, v%d'%(PL+1,PL+3)); a('s_nop 1')
            a('v_pk_add_f32 %s, %s, %s'%(vr(PL,2),vr(PL,2),vr(PL+2,2)))
            a('v_mul_f32 v%d, 0x%x, v%d'%(PL,f2u(1.0/864),PL)); a('v_mul_f32 v%d, 0x%x, v%d'%(PL+1,f2u(1.0/864),PL+1))
            a('v_fma_f32 v%d, -v%d, v%d, v%d'%(PL+1,PL,PL,PL+1)); a('v_max_f32 v%d, 0, v%d'%(PL+1,PL+1)); a('v_add_f32 v%d, 0x%x, v%d'%(PL+1,f2u(1e-5),PL+1))
            a('v_rsq_f32 v%d, v%d'%(PL+2,PL+1)); a('s_nop 0'); a('v_mul_f32 v%d, v%d, v%d'%(PL+3,PL,PL+2)); a('v_sub_f32 v%d, 0, v%d'%(PL+3,PL+3))
            a('s_lshl_b32 s%d, s%d, 8'%(S_T0,S_WAVE)); a('s_add_u32 s%d, s%d, %d'%(S_T0,S_T0,T_W2))
            a('v_and_b32 v4, 31, v0'); a('v_lshlrev_b32 v4, 2, v4'); a('v_add_u32 v4, s%d, v4'%S_T0)
            a('ds_write_b32 v4, v%d'%(PL+2)); a('ds_write_b32 v4, v%d offset:128'%(PL+3))
            a('v_lshlrev_b32 v5, 4, v2'); a('v_add_u32 v5, s%d, v5'%S_T0)
            a('s_waitcnt lgkmcnt(0)')
            for i in range(2):
                a('ds_read_b128 %s, v5 offset:%d'%(vr(RR+4*i,4),i*64)); a('ds_read_b128 %s, v5 offset:%d'%(vr(84+4*i,4),128+i*64))
            NM2=84
            a('s_mul_i32 s%d, s%d, %d'%(S_T0,S_CT,Z2_CT)); a('s_lshl_b32 s%d, s%d, 1'%(S_T1,S_RB)); a('s_lshr_b32 s%d, s%d, 1'%(S_T2,S_PW))
            a('s_add_u32 s%d, s%d, s%d'%(S_T1,S_T1,S_T2)); a('s_mul_i32 s%d, s%d, 18432'%(S_T1,S_T1)); a('s_add_u32 s%d, s%d, s%d'%(S_T0,S_T0,S_T1))
            a('s_and_b32 s%d, s%d, 1'%(S_T1,S_PW)); a('s_mul_i32 s%d, s%d, 9216'%(S_T1,S_T1)); a('s_add_u32 s%d, s%d, s%d'%(S_T0,S_T0,S_T1))
            a('s_add_u32 s%d, s%d, %d'%(S_SO,S_T0,5120*h))
            srd(a,SRD_O,S_WS,S_WS+1,6*Z2_CT)
            a('v_lshlrev_b32 v%d, 4, v0'%VO)
            a('s_waitcnt lgkmcnt(0)')
            for j in range(nj):
                for k,(i,p) in enumerate(prs):
                    r=acc(i,j)+2*p; a('v_pk_fma_f32 %s, %s, %s, %s'%(vr(r,2),vr(r,2),vr(RR+4*i+2*p,2),vr(NM2+4*i+2*p,2)))
                o=PK+4*(j&1)
                for k,(i,p) in enumerate(prs):
                    r=acc(i,j)+2*p; a('v_cvt_pk_bf16_f32 v%d, v%d, v%d'%(o+k,r,r+1))
                a('s_nop 1')
                a('v_permlane32_swap_b32 v%d, v%d'%(o,o+2)); a('v_permlane32_swap_b32 v%d, v%d'%(o+1,o+3)); a('s_nop 1')
                a('v_permlane16_swap_b32 v%d, v%d'%(o,o+2)); a('v_permlane16_swap_b32 v%d, v%d'%(o+1,o+3))
                if j<4: a('buffer_store_dwordx4 %s, v%d, s[%d:%d], s%d offen offset:%d%s'%(vr(o,4),VO,SRD_O,SRD_O+3,S_SO,j*1024,g2.STF))
                else:
                    a('s_add_u32 s%d, s%d, 4096'%(S_SO,S_SO)); a('buffer_store_dwordx4 %s, v%d, s[%d:%d], s%d offen%s'%(vr(o,4),VO,SRD_O,SRD_O+3,S_SO,g2.STF))
            a('s_branch K1_end')
        else:
            RR=64; NM=66; CS=68; CSb=88; PK=100; VO=118
            a('s_lshl_b32 s%d, s%d, 7'%(S_T0,S_PW)); a('v_lshlrev_b32 v3, 2, v1'); a('v_add_u32 v3, s%d, v3'%S_T0); a('v_add_u32 v3, %d, v3'%T_R)
            for i in range(2):
                a('ds_read_b32 v%d, v3 offset:%d'%(RR+i,i*64)); a('ds_read_b32 v%d, v3 offset:%d'%(NM+i,512+i*64))
            a('v_lshlrev_b32 v4, 4, v2'); a('v_add_u32 v4, %d, v4'%(T_CS0+320*h))
            for j in range(nj):
                a('ds_read_b128 %s, v4 offset:%d'%(vr(CS+4*j,4),j*64)); a('ds_read_b128 %s, v4 offset:%d'%(vr(CSb+4*j,4),640+j*64))
            a('s_mul_i32 s%d, s%d, 6'%(S_T0,S_RB)); a('s_add_u32 s%d, s%d, s%d'%(S_T0,S_T0,S_CT)); a('s_lshl_b32 s%d, s%d, 3'%(S_T0,S_T0))
            a('s_add_u32 s%d, s%d, s%d'%(S_T0,S_T0,S_WAVE)); a('s_mul_i32 s%d, s%d, 5120'%(S_SO,S_T0))
            add64(a,S_T2,S_WS,WS_Z1); srd(a,SRD_O,S_T2,S_T2+1,96*40960)
            a('v_lshlrev_b32 v%d, 4, v0'%VO)
            a('s_waitcnt lgkmcnt(0)')
            for j in range(nj):
                for p in range(2): a('v_pk_add_f32 %s, %s, %s'%(vr(CS+4*j+2*p,2),vr(CS+4*j+2*p,2),vr(CSb+4*j+2*p,2)))
            for j in range(nj):
                for k,(i,p) in enumerate(prs): a('v_pk_mul_f32 %s, %s, %s op_sel:[0,%d] op_sel_hi:[1,%d]'%(vr(TMP[k],2),vr(CS+4*j+2*p,2),vr(NM,2),i,i))
                for k,(i,p) in enumerate(prs):
                    r=acc(i,j)+2*p; a('v_pk_fma_f32 %s, %s, %s, %s op_sel:[0,%d,0] op_sel_hi:[1,%d,1]'%(vr(r,2),vr(r,2),vr(RR,2),vr(TMP[k],2),i,i))
                gelu_pairs(a,[acc(i,j)+2*p for (i,p) in prs],TMP,C0,C1,ONE)
                o=PK+4*(j&1)
                for k,(i,p) in enumerate(prs):
                    r=acc(i,j)+2*p; a('v_cvt_pk_bf16_f32 v%d, v%d, v%d'%(o+k,r,r+1))
                if j<4: a('buffer_store_dwordx4 %s, v%d, s[%d:%d], s%d offen offset:%d%s'%(vr(o,4),VO,SRD_O,SRD_O+3,S_SO,j*1024,g2.STF))
                else:
                    a('s_add_u32 s%d, s%d, 4096'%(S_SO,S_SO)); a('buffer_store_dwordx4 %s, v%d, s[%d:%d], s%d offen%s'%(vr(o,4),VO,SRD_O,SRD_O+3,S_SO,g2.STF))
            a('s_branch K1_end')
    a.lab('K1Z_prod')
    XO=[2,3]; WO=[4,5,6,7,8]
    if EXP.get('same'): a('s_mov_b32 s%d, 0'%S_RB); a('s_mov_b32 s%d, 0'%S_CT)
    a('s_sub_u32 s%d, s%d, 8'%(S_PW,S_WAVE))
    a('v_lshrrev_b32 v20, 3, v0'); a('s_lshl_b32 s%d, s%d, 5'%(S_T0,S_PW)); a('v_add_u32 v21, s%d, v20'%S_T0); a('v_mul_u32_u24 v21, 1280, v21')
    a('v_and_b32 v22, 7, v0'); a('v_xor_b32 v22, v22, v20')
    a('v_lshl_add_u32 v%d, v22, 4, v21'%XO[0]); a('v_mov_b32 v%d, v%d'%(XO[1],XO[0]))
    a('s_mul_i32 s%d, s%d, 288'%(S_T0,S_CT)); a('s_cmp_eq_u32 s%d, 0'%S_PAR); a('s_cselect_b32 s%d, 1728, 0'%S_T1); a('s_cselect_b32 s%d, 0, 1728'%S_T2)
    a('s_add_u32 s%d, s%d, s%d'%(S_T1,S_T1,S_T0)); a('s_add_u32 s%d, s%d, s%d'%(S_T2,S_T2,S_T0))
    a('v_mov_b32 v24, s%d'%S_T1); a('v_mov_b32 v25, s%d'%S_T2)
    for i in range(5):
        a('s_lshl_b32 s%d, s%d, 6'%(S_T0,S_PW)); a('s_add_u32 s%d, s%d, %d'%(S_T0,S_T0,256*i)); a('v_add_u32 v20, s%d, v0'%S_T0)
        a('v_mul_u32_u24 v21, 3641, v20'); a('v_lshrrev_b32 v21, 16, v21')
        a('v_mul_u32_u24 v22, 18, v21'); a('v_sub_u32 v22, v20, v22'); a('v_cmp_gt_u32 vcc, 10, v22')
        a('v_and_b32 v26, 0x23, v21'); a('v_bfe_u32 v27, v21, 2, 2'); a('v_lshl_or_b32 v26, v27, 3, v26'); a('v_bfe_u32 v27, v21, 4, 1'); a('v_lshl_or_b32 v21, v27, 2, v26')
        a('v_mul_u32_u24 v21, 3456, v21'); a('v_lshl_add_u32 v21, v22, 4, v21')
        a('v_cndmask_b32 v23, v25, v24, vcc'); a('v_add_u32 v%d, v21, v23'%WO[i])
    a('s_mov_b32 s%d, 0'%S_SLI)
    krot(a); a('s_lshl_b32 s%d, s%d, 7'%(S_KX,S_T0)); a('s_mul_i32 s%d, s%d, %d'%(S_KW,S_T0,64*3456))
    a('s_waitcnt lgkmcnt(0)')
    a('s_mul_i32 s%d, s%d, %d'%(S_T0,S_RB,128*1280)); add64(a,S_X,S_X,'s%d'%S_T0); srd(a,SRD_X,S_X,S_X+1,128*1280)
    srd(a,SRD_W,S_WIN,S_WIN+1,640*3456)
    def issueZ():
        a('s_lshl_b32 s%d, s%d, 12'%(S_T,S_PW)); a('s_add_u32 s%d, s%d, s%d'%(S_T,S_T,S_SLI))
        for j in range(4):
            a('s_add_u32 m0, s%d, %d'%(S_T,j*1024)); a('s_add_u32 s%d, s%d, %d'%(S_SO,S_KX,j*10240))
            a(ld('buffer_load_dwordx4 v%d, s[%d:%d], s%d offen lds'%(XO[j&1],SRD_X,SRD_X+3,S_SO)))
        a('s_lshl_b32 s%d, s%d, 10'%(S_T,S_PW)); a('s_add_u32 s%d, s%d, s%d'%(S_T,S_T,S_SLI))
        lab=a.newlab('K1Zp_s')
        for i in range(5):
            if i==4: a('s_cmp_lt_u32 s%d, 2'%S_PW); a('s_cbranch_scc0 %s'%lab)
            a('s_add_u32 m0, s%d, %d'%(S_T,16384+i*4096)); a('s_nop 0')
            a(ld('buffer_load_dwordx4 v%d, s[%d:%d], s%d offen lds'%(WO[i],SRD_W,SRD_W+3,S_KW)))
        a.lab(lab)
        slot_advance(a,S_SLI,SLZ); a('s_add_u32 s%d, s%d, 128'%(S_KX,S_KX)); a('s_add_u32 s%d, s%d, %d'%(S_KW,S_KW,64*3456))
        a('s_cmp_eq_u32 s%d, 1280'%S_KX); a('s_cselect_b32 s%d, 0, s%d'%(S_KX,S_KX)); a('s_cselect_b32 s%d, 0, s%d'%(S_KW,S_KW))
    dma_producer(a,'K1Zp',NK1,8,issueZ)
    a('s_branch K1_end')
    a.lab('K1Z_work')
    a('s_sub_u32 s%d, s%d, 12'%(S_PW,S_WAVE))
    a('s_waitcnt lgkmcnt(0)')
    worker(a,'K1Zw',SLZ,True)
    a('s_waitcnt lgkmcnt(0)'); a('s_barrier'); a('s_branch K1_end')

    a.lab('K1A_entry')
    a('s_sub_u32 s%d, s%d, 24'%(S_T0,S_J)); a('s_lshr_b32 s%d, s%d, 1'%(S_T1,S_T0)); a('s_and_b32 s%d, s%d, 1'%(S_CT,S_T0))
    a('s_lshl_b32 s%d, s%d, 2'%(S_RB,S_G)); a('s_add_u32 s%d, s%d, s%d'%(S_RB,S_RB,S_T1))
    a('s_cmp_ge_u32 s%d, 12'%S_WAVE); a('s_cbranch_scc1 K1A_work')
    a('s_cmp_ge_u32 s%d, 8'%S_WAVE); a('s_cbranch_scc1 K1A_prod')
    ACC=16; FA=56; FB=84; XA=[112,113]; WA2=[114,115]
    a('s_and_b32 s%d, s%d, 3'%(S_PW,S_WAVE)); a('s_lshr_b32 s%d, s%d, 2'%(S_H,S_WAVE))
    a('v_and_b32 v1, 15, v0'); a('v_lshrrev_b32 v2, 4, v0'); a('v_and_b32 v3, 7, v0'); a('v_xor_b32 v3, v3, v2'); a('v_lshlrev_b32 v3, 4, v3')
    a('v_lshl_add_u32 v3, v1, 7, v3')
    a('s_lshl_b32 s%d, s%d, 11'%(S_T0,S_PW)); a('v_add_u32 v%d, s%d, v3'%(XA[0],S_T0)); a('v_xor_b32 v%d, 64, v%d'%(XA[1],XA[0]))
    a('s_mul_i32 s%d, s%d, %d'%(S_T0,S_H,80*128)); a('s_add_u32 s%d, s%d, 16384'%(S_T0,S_T0)); a('v_add_u32 v%d, s%d, v3'%(WA2[0],S_T0)); a('v_xor_b32 v%d, 64, v%d'%(WA2[1],WA2[0]))
    ln1_row(a)
    for k in range(40): a('v_mov_b32 v%d, 0'%(ACC+k))
    ln1_row_finish(a)
    def accA(tb,j): return ACC+(j*2+tb)*4
    def rdA(st,sub):
        F=FA if st==0 else FB; m=[]
        for tb in range(2): m.append('ds_read_b128 %s, v%d offset:%d'%(vr(F+tb*4,4),XA[sub],tb*8192))
        for j in range(5): m.append('ds_read_b128 %s, v%d offset:%d'%(vr(F+8+j*4,4),WA2[sub],j*2048))
        return m
    def mfA(st):
        F=FA if st==0 else FB; m=[]
        for j in range(5):
            for tb in range(2):
                c=vr(accA(tb,j),4); m.append('v_mfma_f32_16x16x32_bf16 %s, %s, %s, %s'%(c,vr(F+tb*4,4),vr(F+8+j*4,4),c))
        return m
    a('s_cmp_eq_u32 s%d, 0'%S_H); a('s_cbranch_scc0 K1A_c1')
    consumer_loop(a,'K1A0',SLA,NK1,XA+WA2,rdA,mfA,lag=True,hook=ln1_hook(a),hook_at=2)
    a('s_branch K1A_cd')
    a.lab('K1A_c1')
    consumer_loop(a,'K1A1',SLA,NK1,XA+WA2,rdA,mfA,lag=False,hook=ln1_hook(a),hook_at=2)
    a.lab('K1A_cd')
    a('s_barrier')
    if EXP.get('fine') is None: gc.stamp(a,4)
    RT=56; RB_=60; RO=64; T4=[66,68]; PK=70; VO=76
    a('s_lshl_b32 s%d, s%d, 6'%(S_T0,S_PW)); a('v_lshlrev_b32 v3, 4, v2'); a('v_add_u32 v3, s%d, v3'%S_T0); a('v_add_u32 v3, %d, v3'%T_R)
    a('ds_read_b128 %s, v3'%vr(RT,4)); a('ds_read_b128 %s, v3 offset:256'%vr(RB_,4))
    a('s_mul_i32 s%d, s%d, %d'%(S_T0,S_HALF,AE_MAT)); a('s_lshl_b32 s%d, s%d, 1'%(S_T1,S_CT)); a('s_add_u32 s%d, s%d, s%d'%(S_T1,S_T1,S_H))
    a('s_mul_i32 s%d, s%d, 163840'%(S_T1,S_T1)); a('s_add_u32 s%d, s%d, s%d'%(S_T0,S_T0,S_T1)); a('s_mul_i32 s%d, s%d, 10240'%(S_T1,S_RB))
    a('s_add_u32 s%d, s%d, s%d'%(S_T0,S_T0,S_T1)); a('s_lshr_b32 s%d, s%d, 1'%(S_T1,S_PW)); a('s_mul_i32 s%d, s%d, 5120'%(S_T1,S_T1)); a('s_add_u32 s%d, s%d, s%d'%(S_SO,S_T0,S_T1))
    add64(a,S_T2,S_WS,WS_AE); srd(a,SRD_O,S_T2,S_T2+1,2*AE_MAT)
    a('s_and_b32 s%d, s%d, 1'%(S_T0,S_PW)); a('s_lshl_b32 s%d, s%d, 9'%(S_T0,S_T0))
    a('v_lshrrev_b32 v3, 1, v2'); a('v_lshlrev_b32 v3, 8, v3'); a('v_lshl_add_u32 v3, v1, 4, v3'); a('v_and_b32 v4, 1, v2'); a('v_lshl_add_u32 v3, v4, 3, v3')
    a('v_add_u32 v%d, s%d, v3'%(VO,S_T0))
    a('s_waitcnt lgkmcnt(0)')
    a('s_or_b32 s%d, s%d, s%d'%(S_T0,S_RB,S_PW)); a('s_or_b32 s%d, s%d, s%d'%(S_T0,S_T0,S_HALF)); a('s_cmp_eq_u32 s%d, 0'%S_T0); a('s_cbranch_scc0 K1A_nosp')
    add64(a,S_T2,S_WS,WS_A1024); srd(a,SRD_O2,S_T2,S_T2+1,1280)
    a('s_mul_i32 s%d, s%d, 640'%(S_T0,S_CT)); a('s_mul_i32 s%d, s%d, 320'%(S_T1,S_H)); a('s_add_u32 s%d, s%d, s%d'%(S_T0,S_T0,S_T1))
    a('v_lshlrev_b32 v5, 2, v1')
    a('v_cmp_gt_u32 vcc, 16, v0'); a('s_and_saveexec_b64 s[%d:%d], vcc'%(S_EX,S_EX+1))
    for j in range(5):
        a('v_mul_f32 v%d, v%d, v%d'%(RO,accA(1,j),RB_))
        a('buffer_store_dword v%d, v5, s[%d:%d], s%d offen offset:%d%s'%(RO,SRD_O2,SRD_O2+3,S_T0,j*64,g2.STF)); a('s_nop 0')
    a('v_mov_b32 v%d, 0'%RB_)
    a('s_mov_b64 exec, s[%d:%d]'%(S_EX,S_EX+1))
    a.lab('K1A_nosp')
    a('s_cmp_eq_u32 s%d, 0'%S_HALF); a('s_cselect_b32 s%d, 1.0, -1.0'%S_T0)
    for k in range(4): a('v_mul_f32 v%d, s%d, v%d'%(RB_+k,S_T0,RB_+k))
    for j in range(5):
        for p in range(2): a('v_pk_mul_f32 %s, %s, %s'%(vr(T4[p],2),vr(accA(1,j)+2*p,2),vr(RB_+2*p,2)))
        for p in range(2): a('v_pk_fma_f32 %s, %s, %s, %s'%(vr(T4[p],2),vr(accA(0,j)+2*p,2),vr(RT+2*p,2),vr(T4[p],2)))
        for p in range(2): a('v_cvt_pk_bf16_f32 v%d, v%d, v%d'%(PK+p+2*(j&1),T4[p],T4[p]+1))
        if j<4: a('buffer_store_dwordx2 %s, v%d, s[%d:%d], s%d offen offset:%d%s'%(vr(PK+2*(j&1),2),VO,SRD_O,SRD_O+3,S_SO,j*1024,g2.STF))
        else:
            a('s_add_u32 s%d, s%d, 4096'%(S_SO,S_SO)); a('buffer_store_dwordx2 %s, v%d, s[%d:%d], s%d offen%s'%(vr(PK+2*(j&1),2),VO,SRD_O,SRD_O+3,S_SO,g2.STF))
    a('s_branch K1_end')
    a.lab('K1A_prod')
    XO4=[2,3,4,5]; WO1=6
    if EXP.get('same'): a('s_mov_b32 s%d, 0'%S_RB); a('s_mov_b32 s%d, 0'%S_CT)
    a('s_sub_u32 s%d, s%d, 8'%(S_PW,S_WAVE))
    a('v_lshrrev_b32 v20, 3, v0'); a('v_and_b32 v22, 7, v0'); a('v_xor_b32 v22, v22, v20'); a('v_lshlrev_b32 v22, 4, v22')
    a('s_lshl_b32 s%d, s%d, 6'%(S_T0,S_RB))
    a('s_cmp_lt_u32 s%d, 2'%S_PW); a('s_cbranch_scc0 K1Ap_bot')
    a('s_lshl_b32 s%d, s%d, 5'%(S_T1,S_PW)); a('s_add_u32 s%d, s%d, s%d'%(S_T1,S_T1,S_T0))
    for j in range(4):
        a('v_add_u32 v21, s%d, v20'%S_T1); a('v_add_u32 v21, %d, v21'%(8*j)); a('v_mul_u32_u24 v21, 1280, v21'); a('v_add_u32 v%d, v21, v22'%XO4[j])
    a('s_branch K1Ap_xd')
    a.lab('K1Ap_bot')
    a('s_sub_u32 s%d, s%d, 2'%(S_T1,S_PW)); a('s_lshl_b32 s%d, s%d, 5'%(S_T1,S_T1)); a('s_add_u32 s%d, s%d, s%d'%(S_T1,S_T1,S_T0)); a('s_sub_u32 s%d, 2048, s%d'%(S_T1,S_T1))
    for j in range(4):
        a('v_sub_u32 v21, s%d, v20'%S_T1); a('v_subrev_u32 v21, %d, v21'%(8*j))
        if j==0:
            a('v_cmp_eq_u32 vcc, 2048, v21'); a('v_mov_b32 v23, 1024'); a('s_nop 0'); a('v_cndmask_b32 v21, v21, v23, vcc')
        a('v_mul_u32_u24 v21, 1280, v21'); a('v_add_u32 v%d, v21, v22'%XO4[j])
    a.lab('K1Ap_xd')
    a('s_mul_i32 s%d, s%d, 40'%(S_T0,S_PW)); a('v_add_u32 v21, s%d, v20'%S_T0); a('v_mul_u32_u24 v21, 1280, v21'); a('v_add_u32 v%d, v21, v22'%WO1)
    a('s_mov_b32 s%d, 0'%S_SLI)
    krot(a); a('s_lshl_b32 s%d, s%d, 7'%(S_KX,S_T0))
    a('s_waitcnt lgkmcnt(0)')
    srd(a,SRD_X,S_X,S_X+1,2048*1280)
    a('s_cmp_eq_u32 s%d, 0'%S_HALF); a('s_cselect_b32 s%d, s%d, s%d'%(S_T2,S_WDRE,S_WDIM)); a('s_cselect_b32 s%d, s%d, s%d'%(S_T3,S_WDRE+1,S_WDIM+1))
    a('s_mul_i32 s%d, s%d, %d'%(S_T0,S_CT,160*1280)); a('s_add_u32 s%d, s%d, 1280'%(S_T0,S_T0)); add64(a,S_T2,S_T2,'s%d'%S_T0)
    srd(a,SRD_W,S_T2,S_T2+1,160*1280)
    def issueA():
        a('s_lshl_b32 s%d, s%d, 12'%(S_T,S_PW)); a('s_add_u32 s%d, s%d, s%d'%(S_T,S_T,S_SLI))
        for j in range(4):
            a('s_add_u32 m0, s%d, %d'%(S_T,j*1024)); a('s_nop 0')
            a(ld('buffer_load_dwordx4 v%d, s[%d:%d], s%d offen lds'%(XO4[j],SRD_X,SRD_X+3,S_KX)))
        a('s_mul_i32 s%d, s%d, 5120'%(S_T,S_PW)); a('s_add_u32 s%d, s%d, s%d'%(S_T,S_T,S_SLI))
        for j in range(5):
            a('s_add_u32 m0, s%d, %d'%(S_T,16384+j*1024)); a('s_add_u32 s%d, s%d, %d'%(S_SO,S_KX,j*10240))
            a(ld('buffer_load_dwordx4 v%d, s[%d:%d], s%d offen lds'%(WO1,SRD_W,SRD_W+3,S_SO)))
        slot_advance(a,S_SLI,SLA); a('s_add_u32 s%d, s%d, 128'%(S_KX,S_KX))
        a('s_cmp_eq_u32 s%d, 1280'%S_KX); a('s_cselect_b32 s%d, 0, s%d'%(S_KX,S_KX))
    dma_producer(a,'K1Ap',NK1,9,issueA)
    a('s_branch K1_end')
    a.lab('K1A_work')
    a('s_sub_u32 s%d, s%d, 12'%(S_PW,S_WAVE))
    a('s_waitcnt lgkmcnt(0)')
    worker(a,'K1Aw',SLA,False)
    a('s_waitcnt lgkmcnt(0)'); a('s_barrier')
    kernel_tail(a,'K1',0,S_WS)
```

```python
from g2_common import *
import g2_common as g2
SLG=34816; SLT=28672
K2_LDS=NS*SLG
NK2=16
S_WSP=4; S_WS=6; S_WSRE=8; S_WSIM=10; S_BSP=12; S_WOUT=14
SRD_A=16; SRD_B=20; SRD_O=24; SRD_O2=28; SRD_C=56; SRD_D=60
S_KH=36; S_TB=37

def gen_k2(a,kname):
    kernel_head(a,kname,'K2')
    a('s_load_dwordx4 s[%d:%d], s[0:1], 8'%(S_WSRE,S_WSRE+3))
    a('s_load_dwordx2 s[%d:%d], s[0:1], 56'%(S_WSP,S_WSP+1))
    a('s_load_dwordx2 s[%d:%d], s[0:1], 64'%(S_BSP,S_BSP+1))
    a('s_load_dwordx2 s[%d:%d], s[0:1], 96'%(S_WS,S_WS+1))
    a('s_load_dwordx2 s[%d:%d], s[0:1], 72'%(S_WOUT,S_WOUT+1))
    a('v_lshrrev_b32 v1, 6, v0'); a('v_and_b32 v0, 63, v0'); a('s_nop 0')
    a('v_readfirstlane_b32 s%d, v1'%S_WAVE)
    a('s_and_b32 s%d, s2, 7'%S_XCD); a('s_lshr_b32 s%d, s2, 3'%S_J)
    a('s_and_b32 s%d, s%d, 1'%(S_KH,S_XCD))
    a('s_cmp_ge_u32 s%d, 24'%S_J); a('s_cbranch_scc1 K2T_entry')
    a('s_mul_i32 s%d, s%d, 43'%(S_T0,S_J)); a('s_lshr_b32 s%d, s%d, 8'%(S_T0,S_T0))
    a('s_mul_i32 s%d, s%d, 6'%(S_T1,S_T0)); a('s_sub_u32 s%d, s%d, s%d'%(S_CT,S_J,S_T1))
    a('s_lshr_b32 s%d, s%d, 1'%(S_T1,S_XCD)); a('s_lshl_b32 s%d, s%d, 2'%(S_T1,S_T1)); a('s_add_u32 s%d, s%d, s%d'%(S_TB,S_T1,S_T0))
    a('s_cmp_ge_u32 s%d, 8'%S_WAVE); a('s_cbranch_scc1 K2G_prod')
    ACC=16; FA=56; FB=84; WA=[112,113]; ZA=114; Z1L=[2,6,10,116,120]; BB=124
    a('s_and_b32 s%d, s%d, 3'%(S_PW,S_WAVE)); a('s_lshr_b32 s%d, s%d, 2'%(S_H,S_WAVE))
    a('v_and_b32 v6, 15, v0'); a('v_lshrrev_b32 v7, 4, v0'); a('v_and_b32 v8, 7, v0'); a('v_xor_b32 v8, v8, v7'); a('v_lshlrev_b32 v8, 4, v8')
    a('v_lshl_add_u32 v8, v6, 7, v8'); a('s_lshl_b32 s%d, s%d, 12'%(S_T0,S_PW)); a('v_add_u32 v%d, s%d, v8'%(WA[0],S_T0)); a('v_xor_b32 v%d, 64, v%d'%(WA[1],WA[0]))
    a('s_mul_i32 s%d, s%d, 5120'%(S_T0,S_H)); a('s_add_u32 s%d, s%d, 16384'%(S_T0,S_T0)); a('v_lshlrev_b32 v14, 4, v0'); a('v_add_u32 v%d, s%d, v14'%(ZA,S_T0))
    for k in range(40): a('v_mov_b32 v%d, 0'%(ACC+k))
    a('s_mul_i32 s%d, s%d, 6'%(S_T0,S_TB)); a('s_add_u32 s%d, s%d, s%d'%(S_T0,S_T0,S_CT)); a('s_lshl_b32 s%d, s%d, 3'%(S_T0,S_T0))
    a('s_add_u32 s%d, s%d, s%d'%(S_T0,S_T0,S_WAVE)); a('s_mul_i32 s%d, s%d, 5120'%(S_SO,S_T0))
    a('s_lshl_b32 s%d, s%d, 7'%(S_T0,S_TB)); a('s_lshl_b32 s%d, s%d, 5'%(S_T1,S_PW)); a('s_add_u32 s%d, s%d, s%d'%(S_T0,S_T0,S_T1))
    a('v_add_u32 v15, s%d, v6'%S_T0); a('v_lshlrev_b32 v15, 1, v15')
    a('s_waitcnt lgkmcnt(0)')
    add64(a,S_T2,S_WS,WS_Z1); srd(a,SRD_C,S_T2,S_T2+1,96*40960)
    srd(a,SRD_O2,S_BSP,S_BSP+1,4096)
    def pfz_g(tag):
        a('buffer_load_dword v127, v126, s[%d:%d], s%d offen'%(SRD_D,SRD_D+3,S_G))
        l=a.newlab('K2G_pfz')
        a('s_cmp_eq_u32 s%d, 7'%S_WAVE); a('s_cbranch_scc0 %s'%l); a('buffer_load_dword v127, v1, s[%d:%d], s%d offen'%(SRD_D,SRD_D+3,S_G)); a.lab(l)
    if EXP.get('pfz'):
        a('s_mul_i32 s%d, s%d, %d'%(S_T2,S_CT,Z2_CT)); a('s_mul_i32 s%d, s%d, %d'%(S_T3,S_KH,16*18432)); a('s_add_u32 s%d, s%d, s%d'%(S_T1,S_T2,S_T3))
        add64(a,S_T2,S_WS,'s%d'%S_T1); srd(a,SRD_D,S_T2,S_T2+1,16*18432)
        a('s_and_b32 s%d, s%d, 3'%(S_G,S_TB)); a('s_mul_i32 s%d, s%d, %d'%(S_G,S_G,36*128))
        for rep_,dst in ((0,126),(1,1)):
            a('s_lshl_b32 s%d, s%d, 6'%(S_T0,S_WAVE))
            if rep_==1: a('s_mov_b32 s%d, 512'%S_T0)
            a('v_add_u32 v9, s%d, v0'%S_T0); a('v_mul_u32_u24 v10, 1821, v9'); a('v_lshrrev_b32 v10, 16, v10')
            a('v_mul_u32_u24 v11, 36, v10'); a('v_sub_u32 v11, v9, v11'); a('v_mul_u32_u24 v10, 18432, v10'); a('v_lshl_add_u32 v%d, v11, 7, v10'%dst)
    def acc(i,j): return ACC+(j*2+i)*4
    a('s_cmp_eq_u32 s%d, 0'%S_H); a('s_cbranch_scc0 K2Gc_1')
    for h in range(2):
        nj=5-h; nm='K2Gc_%d'%h
        a.lab(nm)
        def hk(nj=nj):
            for j in range(min(nj,4)): a('buffer_load_dwordx4 %s, v14, s[%d:%d], s%d offen offset:%d'%(vr(Z1L[j],4),SRD_C,SRD_C+3,S_SO,j*1024))
            if nj==5:
                a('s_add_u32 s%d, s%d, 4096'%(S_SO,S_SO)); a('buffer_load_dwordx4 %s, v14, s[%d:%d], s%d offen'%(vr(Z1L[4],4),SRD_C,SRD_C+3,S_SO))
            a('buffer_load_ushort v%d, v15, s[%d:%d], 0 offen'%(BB,SRD_O2,SRD_O2+3)); a('buffer_load_ushort v%d, v15, s[%d:%d], 0 offen offset:32'%(BB+1,SRD_O2,SRD_O2+3))
        def rd(st,sub,nj=nj):
            F=FA if st==0 else FB; m=[]
            for i in range(2): m.append('ds_read_b128 %s, v%d offset:%d'%(vr(F+i*4,4),WA[sub],i*2048))
            for j in range(nj): m.append('ds_read_b128 %s, v%d offset:%d'%(vr(F+8+j*4,4),ZA,sub*9216+j*1024))
            return m
        def mf(st,nj=nj):
            F=FA if st==0 else FB; m=[]
            for j in range(nj):
                for i in range(2):
                    c=vr(acc(i,j),4); m.append('v_mfma_f32_16x16x32_bf16 %s, %s, %s, %s'%(c,vr(F+8+j*4,4),vr(F+i*4,4),c))
            return m
        consumer_loop(a,nm+'L',SLG,NK2,WA+[ZA],rd,mf,hook=({EXP.get('z1at',9):hk,EXP.get('pfzat',1):(lambda h=h:pfz_g('%d'%h))} if EXP.get('pfz') else hk),hook_at=EXP.get('z1at',9),lag=(h==0))
        a('s_barrier')
        a('s_waitcnt vmcnt(0)')
        a('s_cmp_eq_u32 s%d, 0'%S_KH); a('s_cselect_b32 s%d, 1.0, 0'%S_T0)
        a('v_lshlrev_b32 v%d, 16, v%d'%(BB,BB)); a('v_lshlrev_b32 v%d, 16, v%d'%(BB+1,BB+1))
        a('v_mul_f32 v%d, s%d, v%d'%(BB,S_T0,BB)); a('v_mul_f32 v%d, s%d, v%d'%(BB+1,S_T0,BB+1))
        a('s_mul_i32 s%d, s%d, %d'%(S_T0,S_KH,H_VER)); add64(a,S_T2,S_WS,WS_H); add64(a,S_T2,S_T2,'s%d'%S_T0); srd(a,SRD_O,S_T2,S_T2+1,H_VER)
        a('s_lshl_b32 s%d, s%d, 3'%(S_T0,S_TB)); a('s_lshl_b32 s%d, s%d, 1'%(S_T1,S_PW)); a('s_add_u32 s%d, s%d, s%d'%(S_T0,S_T0,S_T1)); a('s_mul_i32 s%d, s%d, 27648'%(S_T0,S_T0))
        a('s_mul_i32 s%d, s%d, 9'%(S_T1,S_CT)); a('s_add_u32 s%d, s%d, %d'%(S_T1,S_T1,5*h)); a('s_lshl_b32 s%d, s%d, 9'%(S_T1,S_T1))
        a('s_add_u32 s%d, s%d, s%d'%(S_SO,S_T0,S_T1)); a('s_add_u32 s%d, s%d, 27648'%(S_SO2,S_SO))
        a('v_lshlrev_b32 v14, 3, v0')
        TZ=[56,58,60,62]; PK=64
        for j in range(nj):
            prs=[(i,p) for i in range(2) for p in range(2)]
            for k,(i,p) in enumerate(prs):
                z=Z1L[j]+2*i+p
                a('v_lshlrev_b32 v%d, 16, v%d'%(TZ[k],z)); a('v_and_b32 v%d, 0xffff0000, v%d'%(TZ[k]+1,z))
            for k,(i,p) in enumerate(prs):
                r=acc(i,j)+2*p; a('v_pk_add_f32 %s, %s, %s op_sel:[0,%d] op_sel_hi:[1,%d]'%(vr(r,2),vr(r,2),vr(BB,2),i,i))
            for k,(i,p) in enumerate(prs):
                r=acc(i,j)+2*p; a('v_pk_mul_f32 %s, %s, %s'%(vr(r,2),vr(r,2),vr(TZ[k],2)))
            o=PK+4*(j&1)
            for k,(i,p) in enumerate(prs):
                r=acc(i,j)+2*p; a('v_cvt_pk_bf16_f32 v%d, v%d, v%d'%(o+k,r,r+1))
            a('buffer_store_dwordx2 %s, v14, s[%d:%d], s%d offen offset:%d%s'%(vr(o,2),SRD_O,SRD_O+3,S_SO,j*512,g2.STF))
            a('buffer_store_dwordx2 %s, v14, s[%d:%d], s%d offen offset:%d%s'%(vr(o+2,2),SRD_O,SRD_O+3,S_SO2,j*512,g2.STF))
        a('s_branch K2_end')
    a.lab('K2G_prod')
    WO=2; ZO=3; S_ZO=S_PAR
    if EXP.get('same'): a('s_mov_b32 s%d, 0'%S_TB); a('s_mov_b32 s%d, 0'%S_CT); a('s_mov_b32 s%d, 0'%S_KH)
    a('s_sub_u32 s%d, s%d, 8'%(S_PW,S_WAVE))
    a('v_lshrrev_b32 v20, 3, v0'); a('v_and_b32 v22, 7, v0'); a('v_xor_b32 v22, v22, v20'); a('v_lshlrev_b32 v22, 4, v22')
    a('s_lshl_b32 s%d, s%d, 4'%(S_T0,S_PW)); a('v_add_u32 v21, s%d, v20'%S_T0); a('v_lshlrev_b32 v21, 12, v21'); a('v_add_u32 v%d, v21, v22'%WO)
    a('s_mul_i32 s%d, s%d, 3'%(S_T0,S_PW)); a('s_lshl_b32 s%d, s%d, 1'%(S_T1,S_PW)); a('s_add_u32 s%d, s%d, 2'%(S_T1,S_T1))
    a('s_cmp_lt_u32 s%d, 2'%S_PW); a('s_cselect_b32 s%d, s%d, s%d'%(S_ZO,S_T0,S_T1)); a('s_lshl_b32 s%d, s%d, 10'%(S_ZO,S_ZO))
    a('v_lshlrev_b32 v20, 4, v0'); a('v_add_u32 v%d, s%d, v20'%(ZO,S_ZO))
    a('s_mov_b32 s%d, 0'%S_SLI)
    a('s_mul_i32 s%d, s%d, %d'%(S_T0,S_CT,EXP.get('ra',0))); a('s_and_b32 s%d, s%d, 3'%(S_T1,S_TB)); a('s_mul_i32 s%d, s%d, %d'%(S_T1,S_T1,EXP.get('rb',0)))
    a('s_add_u32 s%d, s%d, s%d'%(S_T0,S_T0,S_T1)); a('s_and_b32 s%d, s%d, 15'%(S_T0,S_T0)); a('s_lshl_b32 s%d, s%d, 7'%(S_KX,S_T0)); a('s_mul_i32 s%d, s%d, 18432'%(S_KW,S_T0))
    a('s_mul_i32 s%d, s%d, %d'%(S_T0,S_TB,128*4096)); a('s_lshl_b32 s%d, s%d, 11'%(S_T1,S_KH)); a('s_add_u32 s%d, s%d, s%d'%(S_T0,S_T0,S_T1))
    a('s_sub_u32 s%d, %d, s%d'%(S_T1,128*4096,S_T1))
    a('s_mul_i32 s%d, s%d, %d'%(S_T2,S_CT,Z2_CT)); a('s_mul_i32 s%d, s%d, %d'%(S_T3,S_KH,16*18432)); a('s_add_u32 s%d, s%d, s%d'%(S_SO2,S_T2,S_T3))
    a('s_waitcnt lgkmcnt(0)')
    add64(a,S_WSP,S_WSP,'s%d'%S_T0); srd(a,SRD_A,S_WSP,S_WSP+1,'s%d'%S_T1)
    add64(a,S_T2,S_WS,'s%d'%S_SO2); srd(a,SRD_B,S_T2,S_T2+1,16*18432)
    def issue():
        a('s_lshl_b32 s%d, s%d, 11'%(S_T,S_PW)); a('s_add_u32 s%d, s%d, s%d'%(S_T,S_T,S_SLI))
        for j in range(2):
            a('s_add_u32 m0, s%d, %d'%(S_T,j*1024)); a('s_add_u32 s%d, s%d, %d'%(S_SO,S_KX,j*32768))
            a(ld('buffer_load_dwordx4 v%d, s[%d:%d], s%d offen lds'%(WO,SRD_A,SRD_A+3,S_SO)))
        a('s_add_u32 s%d, s%d, s%d'%(S_T,S_SLI,S_ZO)); a('s_add_u32 m0, s%d, 16384'%S_T); a('s_nop 0')
        for j in range(2): a('buffer_load_dwordx4 v%d, s[%d:%d], s%d offen offset:%d lds'%(ZO,SRD_B,SRD_B+3,S_KW,j*1024))
        lab=a.newlab('K2Gp_t')
        a('s_cmp_lt_u32 s%d, 2'%S_PW); a('s_cbranch_scc0 %s'%lab)
        a('buffer_load_dwordx4 v%d, s[%d:%d], s%d offen offset:2048 lds'%(ZO,SRD_B,SRD_B+3,S_KW))
        a.lab(lab)
        slot_advance(a,S_SLI,SLG); a('s_add_u32 s%d, s%d, 128'%(S_KX,S_KX)); a('s_add_u32 s%d, s%d, 18432'%(S_KW,S_KW))
        a('s_cmp_eq_u32 s%d, 2048'%S_KX); a('s_cselect_b32 s%d, 0, s%d'%(S_KX,S_KX)); a('s_cselect_b32 s%d, 0, s%d'%(S_KW,S_KW))
    dma_producer(a,'K2Gp',NK2,4,issue)
    a('s_branch K2_end')

    a.lab('K2T_entry')
    a('s_sub_u32 s%d, s%d, 24'%(S_T0,S_J)); a('s_and_b32 s%d, s%d, 3'%(S_CT,S_T0)); a('s_lshr_b32 s%d, s%d, 2'%(S_T0,S_T0))
    a('s_lshr_b32 s%d, s%d, 1'%(S_T1,S_XCD)); a('s_lshl_b32 s%d, s%d, 1'%(S_T1,S_T1)); a('s_add_u32 s%d, s%d, s%d'%(S_TB,S_T1,S_T0))
    a('s_cmp_ge_u32 s%d, 8'%S_WAVE); a('s_cbranch_scc1 K2T_prod')
    a('s_and_b32 s%d, s%d, 3'%(S_PW,S_WAVE)); a('s_lshr_b32 s%d, s%d, 2'%(S_H,S_WAVE))
    a('s_cmp_eq_u32 s%d, 3'%S_PW); a('s_cbranch_scc1 K2T_xpf')
    ACC=16; FA=56; FB=80; WA=[112,113]; AA=114; A1=116
    a('v_lshrrev_b32 v7, 4, v0'); a('v_lshlrev_b32 v5, 4, v7')
    a('v_and_b32 v6, 15, v0'); a('v_and_b32 v8, 7, v0'); a('v_xor_b32 v8, v8, v7'); a('v_lshlrev_b32 v8, 4, v8'); a('v_lshl_add_u32 v8, v6, 7, v8')
    a('s_mul_i32 s%d, s%d, %d'%(S_T0,S_PW,48*128)); a('v_add_u32 v%d, s%d, v8'%(WA[0],S_T0)); a('v_xor_b32 v%d, 64, v%d'%(WA[1],WA[0]))
    a('s_mul_i32 s%d, s%d, 3072'%(S_T0,S_H)); a('s_add_u32 s%d, s%d, 18432'%(S_T0,S_T0)); a('v_lshlrev_b32 v9, 4, v0'); a('v_add_u32 v%d, s%d, v9'%(AA,S_T0))
    for k in range(36): a('v_mov_b32 v%d, 0'%(ACC+k))
    a('s_mul_i32 s%d, s%d, 320'%(S_T0,S_CT)); a('s_mul_i32 s%d, s%d, 192'%(S_T1,S_H)); a('s_add_u32 s%d, s%d, s%d'%(S_SO,S_T0,S_T1))
    a('s_waitcnt lgkmcnt(0)')
    add64(a,S_T2,S_WS,WS_A1024); srd(a,SRD_C,S_T2,S_T2+1,1280)
    def pfz_t(tag):
        a('buffer_load_dword v2, v10, s[%d:%d], s%d offen'%(SRD_D,SRD_D+3,S_G))
        l=a.newlab('K2T_pfz')
        a('s_cmp_lt_u32 s%d, 4'%S_PAR); a('s_cbranch_scc0 %s'%l); a('buffer_load_dword v2, v11, s[%d:%d], s%d offen'%(SRD_D,SRD_D+3,S_G)); a.lab(l)
    if EXP.get('pfz'):
        a('s_mul_i32 s%d, s%d, %d'%(S_T0,S_KH,AE_MAT)); a('s_mul_i32 s%d, s%d, 163840'%(S_T1,S_CT)); a('s_add_u32 s%d, s%d, s%d'%(S_T1,S_T0,S_T1))
        add64(a,S_T2,S_WS,WS_AE); add64(a,S_T2,S_T2,'s%d'%S_T1); srd(a,SRD_D,S_T2,S_T2+1,163840)
        a('s_and_b32 s%d, s%d, 1'%(S_G,S_TB)); a('s_mul_i32 s%d, s%d, %d'%(S_G,S_G,40*128))
        a('s_mul_i32 s%d, s%d, 3'%(S_PAR,S_H)); a('s_add_u32 s%d, s%d, s%d'%(S_PAR,S_PAR,S_PW))
        for rep_,dst in ((0,10),(1,11)):
            a('s_add_u32 s%d, s%d, %d'%(S_T0,S_PAR,6*rep_)); a('s_lshl_b32 s%d, s%d, 6'%(S_T0,S_T0))
            a('v_add_u32 v1, s%d, v0'%S_T0); a('v_mul_u32_u24 v12, 1639, v1'); a('v_lshrrev_b32 v12, 16, v12')
            a('v_mul_u32_u24 v13, 40, v12'); a('v_sub_u32 v13, v1, v13'); a('v_mul_u32_u24 v12, 10240, v12'); a('v_lshl_add_u32 v%d, v13, 7, v12'%dst)
    def accT(i,j): return ACC+(j*3+i)*4
    a('s_cmp_eq_u32 s%d, 0'%S_H); a('s_cbranch_scc0 K2Tc_1')
    for h in range(2):
        nj=3-h; nm='K2Tc_%d'%h
        a.lab(nm)
        def hkT(nj=nj):
            for j in range(nj): a('buffer_load_dwordx4 %s, v5, s[%d:%d], s%d offen offset:%d'%(vr(A1+4*j,4),SRD_C,SRD_C+3,S_SO,j*64))
        def rdT(st,sub,nj=nj):
            F=FA if st==0 else FB; m=[]
            for i in range(3): m.append('ds_read_b128 %s, v%d offset:%d'%(vr(F+i*4,4),WA[sub],i*2048))
            for j in range(nj): m.append('ds_read_b128 %s, v%d offset:%d'%(vr(F+12+j*4,4),AA,sub*5120+j*1024))
            return m
        def mfT(st,nj=nj):
            F=FA if st==0 else FB; m=[]
            for j in range(nj):
                for i in range(3):
                    c=vr(accT(i,j),4); m.append('v_mfma_f32_16x16x32_bf16 %s, %s, %s, %s'%(c,vr(F+12+j*4,4),vr(F+i*4,4),c))
            return m
        consumer_loop(a,nm+'L',SLT,NK2,WA+[AA],rdT,mfT,hook=({4:hkT,EXP.get('pfzat',1):(lambda h=h:pfz_t('%d'%h))} if EXP.get('pfz') else hkT),hook_at=4,lag=(h==0))
        a('s_barrier')
        a('s_waitcnt vmcnt(0)')
        a('s_cmp_eq_u32 s%d, 0'%S_KH); a('s_cselect_b32 s%d, 1.0, 0'%S_T0)
        a('v_and_b32 v5, 1, v0'); a('v_lshlrev_b32 v5, 31, v5'); a('v_xor_b32 v5, s%d, v5'%S_T0)
        a('s_mul_i32 s%d, s%d, %d'%(S_T0,S_KH,PQ_MAT)); add64(a,S_T2,S_WS,WS_PQ); add64(a,S_T2,S_T2,'s%d'%S_T0); srd(a,SRD_O,S_T2,S_T2+1,PQ_MAT)
        a('s_mul_i32 s%d, s%d, 144'%(S_T0,S_TB)); a('s_mul_i32 s%d, s%d, 48'%(S_T1,S_PW)); a('s_add_u32 s%d, s%d, s%d'%(S_T0,S_T0,S_T1)); a('s_mul_i32 s%d, s%d, 1280'%(S_T0,S_T0))
        a('s_mul_i32 s%d, s%d, 320'%(S_T1,S_CT)); a('s_add_u32 s%d, s%d, s%d'%(S_T0,S_T0,S_T1)); a('s_add_u32 s%d, s%d, %d'%(S_SO,S_T0,192*h))
        a('v_mul_u32_u24 v6, 1280, v6'); a('v_lshl_add_u32 v6, v7, 4, v6')
        if EXP.get('nopA'):
            for _ in range(EXP['nopA']): a('s_nop 15')
        for j in range(nj):
            for i in range(3):
                r=accT(i,j)
                if EXP.get('plain'):
                    for p in range(4): a('v_fma_f32 v%d, v%d, v5, v%d'%(r+p,A1+4*j+p,r+p))
                else:
                    for p in range(2): a('v_pk_fma_f32 %s, %s, %s, %s op_sel:[0,1,0] op_sel_hi:[1,1,1]'%(vr(r+2*p,2),vr(A1+4*j+2*p,2),vr(4,2),vr(r+2*p,2)))
            if EXP.get('nopB'): a('s_nop 7')
            for i in range(3):
                a('s_add_u32 s%d, s%d, %d'%(S_SO2,S_SO,i*16*1280))
                a('buffer_store_dwordx4 %s, v6, s[%d:%d], s%d offen offset:%d%s'%(vr(accT(i,j),4),SRD_O,SRD_O+3,S_SO2,j*64,g2.STF))
        a('s_branch K2_end')
    a.lab('K2T_xpf')
    if EXP.get('noxpf') or EXP.get('noxpf2'): a('s_endpgm')
    a('s_sub_u32 s%d, s%d, 24'%(S_T0,S_J)); a('s_lshl_b32 s%d, s%d, 1'%(S_T0,S_T0)); a('s_add_u32 s%d, s%d, s%d'%(S_T0,S_T0,S_H)); a('s_mul_i32 s%d, s%d, %d'%(S_SO,S_T0,540*128))
    a('v_lshlrev_b32 v1, 7, v0')
    a('s_waitcnt lgkmcnt(0)')
    srd(a,SRD_D,S_WOUT,S_WOUT+1,864*1280)
    st0=EXP.get('wpfat',13)
    for i in range(NK2):
        a('s_barrier')
        if i==st0:
            for k in range(9):
                if k==8: a('s_mov_b32 exec_hi, 0'); a('s_mov_b32 exec_lo, 0xfffffff')
                a('buffer_load_dword v2, v1, s[%d:%d], s%d offen'%(SRD_D,SRD_D+3,S_SO)); a('s_add_u32 s%d, s%d, 8192'%(S_SO,S_SO))
    a('s_barrier')
    a('s_endpgm')
    a.lab('K2T_prod')
    WO=2; AO=3; S_U0=S_PAR
    if EXP.get('same'): a('s_mov_b32 s%d, 0'%S_TB); a('s_mov_b32 s%d, 0'%S_CT); a('s_mov_b32 s%d, 0'%S_KH)
    a('s_sub_u32 s%d, s%d, 8'%(S_PW,S_WAVE))
    a('v_lshrrev_b32 v20, 3, v0'); a('v_and_b32 v22, 7, v0'); a('v_xor_b32 v22, v22, v20'); a('v_lshlrev_b32 v22, 4, v22'); a('v_lshl_add_u32 v%d, v20, 12, v22'%WO)
    a('s_lshl_b32 s%d, s%d, 1'%(S_T0,S_PW)); a('s_sub_u32 s%d, s%d, 2'%(S_T0,S_T0)); a('s_add_u32 s%d, s%d, 2'%(S_T1,S_PW))
    a('s_cmp_lt_u32 s%d, 4'%S_PW); a('s_cselect_b32 s%d, s%d, s%d'%(S_U0,S_T0,S_T1)); a('s_cmp_lt_u32 s%d, 2'%S_PW); a('s_cselect_b32 s%d, s%d, s%d'%(S_U0,S_PW,S_U0)); a('s_lshl_b32 s%d, s%d, 10'%(S_U0,S_U0))
    a('v_lshlrev_b32 v20, 4, v0'); a('v_add_u32 v%d, s%d, v20'%(AO,S_U0))
    a('s_mov_b32 s%d, 0'%S_SLI)
    a('s_mul_i32 s%d, s%d, %d'%(S_T0,S_CT,EXP.get('rta',0))); a('s_and_b32 s%d, s%d, 1'%(S_T1,S_TB)); a('s_mul_i32 s%d, s%d, %d'%(S_T1,S_T1,EXP.get('rtb',0)))
    a('s_add_u32 s%d, s%d, s%d'%(S_T0,S_T0,S_T1)); a('s_and_b32 s%d, s%d, 15'%(S_T0,S_T0)); a('s_lshl_b32 s%d, s%d, 7'%(S_KX,S_T0)); a('s_mul_i32 s%d, s%d, 10240'%(S_KW,S_T0))
    a('s_mul_i32 s%d, s%d, %d'%(S_T0,S_KH,AE_MAT)); a('s_mul_i32 s%d, s%d, 163840'%(S_T1,S_CT)); a('s_add_u32 s%d, s%d, s%d'%(S_SO2,S_T0,S_T1))
    a('s_mul_i32 s%d, s%d, %d'%(S_T0,S_TB,144*4096))
    a('s_waitcnt lgkmcnt(0)')
    a('s_cmp_eq_u32 s%d, 0'%S_KH); a('s_cselect_b32 s%d, s%d, s%d'%(S_T2,S_WSRE,S_WSIM)); a('s_cselect_b32 s%d, s%d, s%d'%(S_T3,S_WSRE+1,S_WSIM+1))
    add64(a,S_T2,S_T2,'s%d'%S_T0); srd(a,SRD_A,S_T2,S_T2+1,144*4096)
    add64(a,S_T2,S_WS,WS_AE); add64(a,S_T2,S_T2,'s%d'%S_SO2); srd(a,SRD_B,S_T2,S_T2+1,163840)
    def issueT():
        a('s_lshl_b32 s%d, s%d, 10'%(S_T,S_PW)); a('s_add_u32 s%d, s%d, s%d'%(S_T,S_T,S_SLI))
        a('s_lshl_b32 s%d, s%d, 15'%(S_T0,S_PW)); a('s_add_u32 s%d, s%d, s%d'%(S_T0,S_T0,S_KX))
        for i in range(2):
            a('s_add_u32 m0, s%d, %d'%(S_T,i*8192)); a('s_add_u32 s%d, s%d, %d'%(S_SO,S_T0,i*8*32768))
            a(('buffer_load_dwordx4 v%d, s[%d:%d], s%d offen lds'%(WO,SRD_A,SRD_A+3,S_SO)).replace(' lds',(' nt' if EXP.get('t2nt') else LDK[2])+' lds'))
        a('s_add_u32 s%d, s%d, s%d'%(S_T1,S_SLI,S_U0)); a('s_add_u32 m0, s%d, 18432'%S_T1); a('s_nop 0')
        a('buffer_load_dwordx4 v%d, s[%d:%d], s%d offen lds'%(AO,SRD_B,SRD_B+3,S_KW))
        l1=a.newlab('K2Tp_a'); l2=a.newlab('K2Tp_b')
        a('s_cmp_lt_u32 s%d, 2'%S_PW); a('s_cbranch_scc1 %s'%l1)
        a('s_cmp_lt_u32 s%d, 4'%S_PW); a('s_cbranch_scc0 %s'%l2)
        a('buffer_load_dwordx4 v%d, s[%d:%d], s%d offen offset:1024 lds'%(AO,SRD_B,SRD_B+3,S_KW)); a('s_branch %s'%l2)
        a.lab(l1)
        a('s_add_u32 m0, s%d, %d'%(S_T,2*8192)); a('s_add_u32 s%d, s%d, %d'%(S_SO,S_T0,2*8*32768))
        a(('buffer_load_dwordx4 v%d, s[%d:%d], s%d offen lds'%(WO,SRD_A,SRD_A+3,S_SO)).replace(' lds',(' nt' if EXP.get('t2nt') else LDK[2])+' lds'))
        a.lab(l2)
        slot_advance(a,S_SLI,SLT); a('s_add_u32 s%d, s%d, 128'%(S_KX,S_KX)); a('s_add_u32 s%d, s%d, 10240'%(S_KW,S_KW))
        a('s_cmp_eq_u32 s%d, 2048'%S_KX); a('s_cselect_b32 s%d, 0, s%d'%(S_KX,S_KX)); a('s_cselect_b32 s%d, 0, s%d'%(S_KW,S_KW))
    dma_producer(a,'K2Tp',NK2,3,issueT)
    kernel_tail(a,'K2',1,S_WS)
```

```python
from g2_common import *
import g2_common as g2
SL3=39936
K3_LDS=NS*SL3
NK3=9
S_X=4; S_WS=6; S_WOUT=8; S_OUT=10
SRD_A=16; SRD_B=20; SRD_O=24; SRD_C=56; SRD_D=60
S_TB=37; S_DT=38
AREA_P=1*SL3; AREA_X=1*SL3+20480; AREA_DUM=1*SL3+32768; AREA_Q=2*SL3

def gen_k3(a,kname):
    kernel_head(a,kname,'K3')
    a('s_load_dwordx2 s[%d:%d], s[0:1], 0'%(S_X,S_X+1))
    a('s_load_dwordx4 s[%d:%d], s[0:1], 72'%(S_WOUT,S_WOUT+3))
    a('s_load_dwordx2 s[%d:%d], s[0:1], 96'%(S_WS,S_WS+1))
    wave_setup(a,'K3')
    a('s_and_b32 s%d, s2, 7'%S_XCD); a('s_lshr_b32 s%d, s2, 3'%S_J)
    a('s_lshr_b32 s%d, s%d, 3'%(S_T0,S_J)); a('s_lshl_b32 s%d, s%d, 2'%(S_TB,S_XCD)); a('s_add_u32 s%d, s%d, s%d'%(S_TB,S_TB,S_T0))
    a('s_and_b32 s%d, s%d, 7'%(S_DT,S_J))
    a('s_cmp_ge_u32 s%d, 8'%S_WAVE); a('s_cbranch_scc1 K3_prod')
    ACC=16; FS=[32,52,72]; WA=92; HA=93; PP=96; QQ=108; XX=120
    a('s_and_b32 s%d, s%d, 3'%(S_PW,S_WAVE)); a('s_lshr_b32 s%d, s%d, 2'%(S_H,S_WAVE))
    a('v_and_b32 v6, 15, v0'); a('v_lshrrev_b32 v7, 4, v0')
    a('s_lshl_b32 s%d, s%d, 6'%(S_T0,S_TB)); a('s_lshl_b32 s%d, s%d, 4'%(S_T1,S_PW)); a('s_add_u32 s%d, s%d, s%d'%(S_T0,S_T0,S_T1)); a('v_add_u32 v8, s%d, v6'%S_T0)
    a('s_mul_i32 s%d, s%d, 80'%(S_T0,S_DT)); a('s_mul_i32 s%d, s%d, 48'%(S_T1,S_H)); a('s_add_u32 s%d, s%d, s%d'%(S_T3,S_T0,S_T1))
    a('v_lshlrev_b32 v9, 2, v7'); a('v_add_u32 v9, s%d, v9'%S_T3)
    a('v_mul_u32_u24 v10, 1280, v8'); a('v_lshl_add_u32 v10, v9, 1, v10')
    a('s_mul_i32 s%d, s%d, 3072'%(S_T0,S_PW)); a('v_lshlrev_b32 v12, 3, v0'); a('v_add_u32 v%d, s%d, v12'%(HA,S_T0))
    a('v_lshrrev_b32 v12, 2, v6'); a('v_lshl_add_u32 v12, v7, 2, v12'); a('v_mul_u32_u24 v12, 160, v12'); a('v_and_b32 v13, 3, v6'); a('v_lshl_add_u32 v12, v13, 3, v12')
    a('s_mul_i32 s%d, s%d, 96'%(S_T0,S_H)); a('s_add_u32 s%d, s%d, 24576'%(S_T0,S_T0)); a('v_add_u32 v%d, s%d, v12'%(WA,S_T0))
    for k in range(12): a('v_mov_b32 v%d, 0'%(ACC+k))
    a('s_cmp_eq_u32 s%d, 0'%S_H); a('s_cbranch_scc0 K3c_1')
    for h in range(2):
        nj=3-h; nm='K3c_%d'%h
        a.lab(nm)
        def rd(st,sub,nj=nj):
            F=FS[st]; m=[]
            for ver in range(2):
                for b in range(2): m.append('ds_read_b64 %s, v%d offset:%d'%(vr(F+ver*4+b*2,2),HA,ver*12288+(sub*2+b)*512))
            for j in range(nj):
                for b in range(2): m.append('ds_read_b64_tr_b16 %s, v%d offset:%d'%(vr(F+8+j*4+b*2,2),WA,sub*32*160+b*16*160+j*32))
            return m
        def mf(st,nj=nj):
            F=FS[st]; m=[]
            for ver in range(2):
                for j in range(nj):
                    c=vr(ACC+4*j,4); m.append('v_mfma_f32_16x16x32_bf16 %s, %s, %s, %s'%(c,vr(F+8+j*4,4),vr(F+ver*4,4),c))
            return m
        consumer_loop(a,nm+'L',SL3,NK3,[WA,HA],rd,mf,lag=(h==0),nsub=3,per=EXP.get('k3per',2),dly=EXP.get('k3dly',6),phase=3)
        a('s_barrier')
        a('s_lshl_b32 s%d, s%d, 4'%(S_T0,S_PW)); a('v_add_u32 v11, s%d, v6'%S_T0)
        a('v_mul_u32_u24 v12, 320, v11'); a('v_mul_u32_u24 v13, 160, v11')
        a('v_lshlrev_b32 v14, 2, v7'); a('v_add_u32 v14, %d, v14'%(48*h))
        a('v_lshl_add_u32 v13, v14, 1, v13'); a('v_add_u32 v13, %d, v13'%(AREA_X))
        a('s_cmp_lt_u32 s%d, 4'%S_DT); a('s_cbranch_scc1 %s_rdir'%nm)
        a('v_sub_u32 v14, %d, v14'%(76-32))
        a('v_lshl_add_u32 v12, v14, 2, v12'); a('v_add_u32 v12, %d, v12'%(AREA_P))
        for j in range(nj):
            a('ds_read_b128 %s, v12 offset:%d'%(vr(PP+4*j,4),(2-j)*64)); a('ds_read_b128 %s, v12 offset:%d'%(vr(QQ+4*j,4),AREA_Q-AREA_P+(2-j)*64))
        a('s_branch %s_rdone'%nm)
        a.lab(nm+'_rdir')
        a('v_lshl_add_u32 v12, v14, 2, v12'); a('v_add_u32 v12, %d, v12'%(AREA_P))
        for j in range(nj):
            a('ds_read_b128 %s, v12 offset:%d'%(vr(PP+4*j,4),j*64)); a('ds_read_b128 %s, v12 offset:%d'%(vr(QQ+4*j,4),AREA_Q-AREA_P+j*64))
        a.lab(nm+'_rdone')
        for j in range(nj): a('ds_read_b64 %s, v13 offset:%d'%(vr(XX+2*j,2),j*32))
        srd(a,SRD_O,S_OUT,S_OUT+1,2048*1280)
        a('s_waitcnt lgkmcnt(0)')
        a('s_cmp_lt_u32 s%d, 16'%S_TB); a('s_cselect_b32 s%d, 1, 0'%S_T0); a('s_cmp_lt_u32 s%d, 4'%S_DT); a('s_cselect_b32 s%d, 1, 0'%S_T1)
        a('s_cmp_eq_u32 s%d, s%d'%(S_T0,S_T1)); a('s_cselect_b32 s%d, -1.0, 1.0'%S_T0)
        a('v_mov_b32 v2, s%d'%S_T0); a('v_mov_b32 v3, s%d'%S_T0)
        for j in range(nj):
            for p in range(2): a('v_pk_fma_f32 %s, %s, %s, %s'%(vr(PP+4*j+2*p,2),vr(QQ+4*j+2*p,2),vr(2,2),vr(PP+4*j+2*p,2)))
        if h==0:
            a('s_cmp_eq_u32 s%d, 0'%S_DT); a('s_cbranch_scc0 K3_noz')
            a('v_cmp_gt_u32 vcc, 16, v0'); a('v_mov_b32 v4, 0'); a('s_nop 0'); a('v_cndmask_b32 v%d, v%d, v4, vcc'%(PP,PP))
            a.lab('K3_noz')
        a('s_cmp_lt_u32 s%d, 4'%S_DT); a('s_cbranch_scc0 %s_epm'%nm)
        for role in ('dir','mir'):
            if role=='mir': a.lab(nm+'_epm')
            for j in range(nj):
                c=ACC+4*j
                for r in range(4):
                    y=PP+4*j+(r if role=='dir' else 3-r)
                    a('v_add_f32 v%d, v%d, v%d'%(c+r,c+r,y))
                for p in range(2):
                    x=XX+2*j+p
                    a('v_lshlrev_b32 v%d, 16, v%d'%(4,x)); a('v_and_b32 v%d, 0xffff0000, v%d'%(5,x))
                    a('v_pk_add_f32 %s, %s, %s'%(vr(c+2*p,2),vr(c+2*p,2),vr(4,2)))
                o=12+2*(j&1)
                a('v_cvt_pk_bf16_f32 v%d, v%d, v%d'%(o,c,c+1)); a('v_cvt_pk_bf16_f32 v%d, v%d, v%d'%(o+1,c+2,c+3))
                a('buffer_store_dwordx2 %s, v10, s[%d:%d], 0 offen offset:%d'%(vr(o,2),SRD_O,SRD_O+3,j*32))
            a('s_branch K3_end')
    a.lab('K3_prod')
    HO=2; WO=[3,4]
    if EXP.get('same'): a('s_mov_b32 s%d, 0'%S_TB); a('s_mov_b32 s%d, 0'%S_DT)
    a('s_sub_u32 s%d, s%d, 8'%(S_PW,S_WAVE))
    a('s_and_b32 s%d, s%d, 3'%(S_T1,S_PW)); a('s_lshr_b32 s%d, s%d, 2'%(S_T2,S_PW))
    a('s_lshl_b32 s%d, s%d, 2'%(S_T0,S_TB)); a('s_add_u32 s%d, s%d, s%d'%(S_T0,S_T0,S_T1)); a('s_mul_i32 s%d, s%d, 27648'%(S_KX,S_T0))
    a('s_mul_i32 s%d, s%d, %d'%(S_T0,S_T2,H_VER)); a('s_add_u32 s%d, s%d, s%d'%(S_KX,S_KX,S_T0))
    a('s_mul_i32 s%d, s%d, 3072'%(S_T1,S_T1)); a('s_mul_i32 s%d, s%d, 12288'%(S_T2,S_T2)); a('s_add_u32 s%d, s%d, s%d'%(S_PAR,S_T1,S_T2))
    a('v_lshlrev_b32 v%d, 4, v0'%HO)
    for i in range(2):
        a('s_lshl_b32 s%d, s%d, 6'%(S_T0,S_PW)); a('s_add_u32 s%d, s%d, %d'%(S_T0,S_T0,512*i)); a('v_add_u32 v20, s%d, v0'%S_T0)
        a('v_mul_u32_u24 v21, 6554, v20'); a('v_lshrrev_b32 v21, 16, v21')
        a('v_mul_u32_u24 v22, 10, v21'); a('v_sub_u32 v22, v20, v22'); a('v_mul_u32_u24 v21, 1280, v21'); a('v_lshl_add_u32 v%d, v22, 4, v21'%WO[i])
    PO=[6,7,8]; XO=[9,10]
    a('s_mul_i32 s%d, s%d, 80'%(S_T0,S_DT)); a('s_sub_u32 s%d, s%d, 1'%(S_T1,S_T0)); a('s_sub_u32 s%d, 560, s%d'%(S_T2,S_T0))
    a('s_cmp_lt_u32 s%d, 4'%S_DT); a('s_cselect_b32 s%d, s%d, s%d'%(S_T0,S_T1,S_T2)); a('s_lshl_b32 s%d, s%d, 2'%(S_T0,S_T0)); a('s_add_u32 s%d, s%d, 64'%(S_SO2,S_T0))
    a('s_lshl_b32 s%d, s%d, 6'%(S_T3,S_TB))
    for i in range(3):
        a('s_lshl_b32 s%d, s%d, 6'%(S_T0,S_PW)); a('s_add_u32 s%d, s%d, %d'%(S_T0,S_T0,512*i)); a('v_add_u32 v20, s%d, v0'%S_T0)
        a('v_mul_u32_u24 v21, 3277, v20'); a('v_lshrrev_b32 v21, 16, v21')
        a('v_mul_u32_u24 v22, 20, v21'); a('v_sub_u32 v22, v20, v22')
        a('v_add_u32 v21, s%d, v21'%S_T3)
        a('s_cmp_lt_u32 s%d, 16'%S_TB); l=a.newlab('K3p_m'); a('s_cbranch_scc1 %s'%l); a('v_sub_u32 v21, 2048, v21'); a.lab(l)
        a('v_mul_u32_u24 v21, 1280, v21'); a('v_lshl_add_u32 v21, v22, 4, v21'); a('v_add_u32 v%d, s%d, v21'%(PO[i],S_SO2))
    a('s_cmp_lt_u32 s%d, 4'%S_PW); l=a.newlab('K3p_d'); a('s_cbranch_scc1 %s'%l); a('v_mov_b32 v%d, 0x7fffff00'%PO[2]); a.lab(l)
    a('s_sub_u32 s%d, s%d, 4'%(S_T0,S_PW)); a('s_lshl_b32 s%d, s%d, 1'%(S_T0,S_T0)); a('s_add_u32 s%d, s%d, 8'%(S_T1,S_PW))
    a('s_cmp_lt_u32 s%d, 4'%S_PW); a('s_cselect_b32 s%d, s%d, s%d'%(S_G,S_T1,S_T0))
    for i in range(2):
        a('s_add_u32 s%d, s%d, %d'%(S_T0,S_G,i)); a('s_lshl_b32 s%d, s%d, 6'%(S_T0,S_T0)); a('v_add_u32 v20, s%d, v0'%S_T0)
        a('v_mul_u32_u24 v21, 6554, v20'); a('v_lshrrev_b32 v21, 16, v21'); a('v_mul_u32_u24 v22, 10, v21'); a('v_sub_u32 v22, v20, v22')
        a('v_add_u32 v21, s%d, v21'%S_T3); a('v_mul_u32_u24 v21, 1280, v21'); a('v_lshl_add_u32 v21, v22, 4, v21')
        a('s_mul_i32 s%d, s%d, 160'%(S_T0,S_DT)); a('v_add_u32 v%d, s%d, v21'%(XO[i],S_T0))
    a('s_mov_b32 s%d, 0'%S_SLI)
    if EXP.get('norot') or EXP.get('norot3'): a('s_mov_b32 s%d, 0'%S_KW); a('s_mov_b32 s%d, 0'%S_HALF)
    else:
        a('s_mov_b32 s%d, s%d'%(S_HALF,S_XCD)); a('s_mul_i32 s%d, s%d, %d'%(S_KW,S_XCD,96*1280)); a('s_mul_i32 s%d, s%d, 3072'%(S_T2,S_XCD)); a('s_add_u32 s%d, s%d, s%d'%(S_KX,S_KX,S_T2))
    a('s_mul_i32 s%d, s%d, 160'%(S_T2,S_DT)); a('s_sub_u32 s%d, %d, s%d'%(S_T3,864*1280,S_T2))
    a('s_waitcnt lgkmcnt(0)')
    add64(a,S_T0,S_WS,WS_H); srd(a,SRD_A,S_T0,S_T0+1,2*H_VER)
    add64(a,S_WOUT,S_WOUT,'s%d'%S_T2); srd(a,SRD_B,S_WOUT,S_WOUT+1,'s%d'%S_T3)
    srd(a,SRD_C,S_X,S_X+1,2048*1280)
    add64(a,S_T0,S_WS,WS_PQ-64); srd(a,SRD_D,S_T0,S_T0+1,2*PQ_MAT+64)
    def issue():
        a('s_add_u32 m0, s%d, s%d'%(S_SLI,S_PAR)); a('s_lshl_b32 s%d, s%d, 10'%(S_T,S_PW))
        for k in range(3): a('buffer_load_dwordx4 v%d, s[%d:%d], s%d offen offset:%d lds'%(HO,SRD_A,SRD_A+3,S_KX,k*1024))
        a('s_add_u32 s%d, s%d, s%d'%(S_T,S_T,S_SLI))
        lab=a.newlab('K3p_s')
        for i in range(2):
            if i==1: a('s_cmp_lt_u32 s%d, 7'%S_PW); a('s_cbranch_scc0 %s'%lab)
            a('s_add_u32 m0, s%d, %d'%(S_T,24576+i*8192)); a('s_nop 0')
            a(ld('buffer_load_dwordx4 v%d, s[%d:%d], s%d offen lds'%(WO[i],SRD_B,SRD_B+3,S_KW)))
        a.lab(lab)
        slot_advance(a,S_SLI,SL3); a('s_add_u32 s%d, s%d, 3072'%(S_KX,S_KX)); a('s_add_u32 s%d, s%d, %d'%(S_KW,S_KW,96*1280))
        a('s_add_u32 s%d, s%d, 1'%(S_HALF,S_HALF)); a('s_cmp_eq_u32 s%d, 9'%S_HALF); lw=a.newlab('K3p_w'); a('s_cbranch_scc0 %s'%lw)
        a('s_mov_b32 s%d, 0'%S_HALF); a('s_mov_b32 s%d, 0'%S_KW); a('s_sub_u32 s%d, s%d, %d'%(S_KX,S_KX,9*3072)); a.lab(lw)
    n=NK3; c=4
    if EXP.get('pprio'): a('s_setprio %d'%EXP['pprio'])
    dep_barrier(a,'K3p',3,S_WS,poller=True)
    gc.stamp(a,1)
    issue(); issue()
    gc.stamp(a,2)
    a('s_waitcnt vmcnt(%d)'%c); gc.stamp(a,3); a('s_barrier')
    issue(); issue()
    a('s_mov_b32 s%d, 1'%S_I)
    a.lab('K3p_loop')
    a('s_waitcnt vmcnt(%d)'%(2*c)); a('s_barrier'); issue()
    a('s_add_u32 s%d, s%d, 1'%(S_I,S_I)); a('s_cmp_lt_u32 s%d, %d'%(S_I,n-3)); a('s_cbranch_scc1 K3p_loop')
    a('s_waitcnt vmcnt(%d)'%(2*c)); a('s_barrier')
    a('s_lshl_b32 s%d, s%d, 10'%(S_T,S_PW))
    for i in range(2):
        a('s_add_u32 m0, s%d, %d'%(S_T,AREA_P+i*8192)); a('s_nop 0'); a('buffer_load_dwordx4 v%d, s[%d:%d], 0 offen lds'%(PO[i],SRD_D,SRD_D+3))
    l4=a.newlab('K3p_t4'); ld_=a.newlab('K3p_td')
    a('s_cmp_lt_u32 s%d, 4'%S_PW); a('s_cbranch_scc0 %s'%l4)
    a('s_add_u32 m0, s%d, %d'%(S_T,AREA_P+2*8192)); a('s_nop 0'); a('buffer_load_dwordx4 v%d, s[%d:%d], 0 offen lds'%(PO[2],SRD_D,SRD_D+3))
    a('s_lshl_b32 s%d, s%d, 10'%(S_T0,S_G)); a('s_add_u32 s%d, s%d, %d'%(S_T0,S_T0,AREA_X)); a('s_cmp_lt_u32 s%d, 2'%S_PW); a('s_cselect_b32 s%d, s%d, %d'%(S_T0,S_T0,AREA_DUM))
    lq=a.newlab('K3p_tx'); a('s_cbranch_scc1 %s'%lq); a('v_mov_b32 v%d, 0x7fffff00'%XO[0]); a.lab(lq)
    a('s_mov_b32 m0, s%d'%S_T0); a('s_nop 0'); a('buffer_load_dwordx4 v%d, s[%d:%d], 0 offen lds'%(XO[0],SRD_C,SRD_C+3)); a('s_branch %s'%ld_)
    a.lab(l4)
    a('s_lshl_b32 s%d, s%d, 10'%(S_T0,S_G))
    for i in range(2):
        a('s_add_u32 m0, s%d, %d'%(S_T0,AREA_X+i*1024)); a('s_nop 0'); a('buffer_load_dwordx4 v%d, s[%d:%d], 0 offen lds'%(XO[i],SRD_C,SRD_C+3))
    a.lab(ld_)
    a('s_waitcnt vmcnt(%d)'%(c+4)); a('s_barrier')
    a('s_mov_b32 s%d, %d'%(S_SO,PQ_MAT))
    for i in range(3):
        a('s_add_u32 m0, s%d, %d'%(S_T,AREA_Q+i*8192)); a('s_nop 0'); a('buffer_load_dwordx4 v%d, s[%d:%d], s%d offen lds'%(PO[i],SRD_D,SRD_D+3,S_SO))
    a('s_waitcnt vmcnt(7)'); a('s_barrier')
    gc.stamp(a,4)
    a('s_waitcnt vmcnt(0)'); a('s_barrier')
    kernel_tail(a,'K3',2,S_WS)
```

```python
from g2_common import *
import g2_common as g2
SLZ=34816; SLA=36864
TB=NS*SLA
T_R=TB; T_NMR=TB+512; T_CS0=TB+1024; T_CS1=TB+1664; T_W2=TB+2304
K1_LDS=TB+2304+2048
NK1=10
S_X=4; S_WS=6; S_WDRE=8; S_WDIM=10; S_WIN=12; S_DBG=14
SRD_X=16; SRD_W=20; SRD_O=24; SRD_O2=28; SRD_G=56; SRD_D=60
POLL_BOUND=4000

def stats_final(a,SUM,SQ,t,n,rout,nmrout):
    for k in range(1,len(SUM)): a('v_add_f32 v%d, v%d, v%d'%(SUM[0],SUM[0],SUM[k])); a('v_add_f32 v%d, v%d, v%d'%(SQ[0],SQ[0],SQ[k]))
    a('s_nop 1')
    a('v_add_f32_dpp v%d, v%d, v%d quad_perm:[1,0,3,2] row_mask:0xf bank_mask:0xf'%(t,SUM[0],SUM[0]))
    a('v_add_f32_dpp v%d, v%d, v%d quad_perm:[1,0,3,2] row_mask:0xf bank_mask:0xf'%(t+1,SQ[0],SQ[0]))
    a('v_mul_f32 v%d, 0x%x, v%d'%(t,f2u(1.0/n),t)); a('v_mul_f32 v%d, 0x%x, v%d'%(t+1,f2u(1.0/n),t+1))
    a('v_fma_f32 v%d, -v%d, v%d, v%d'%(t+1,t,t,t+1)); a('v_max_f32 v%d, 0, v%d'%(t+1,t+1)); a('v_add_f32 v%d, 0x%x, v%d'%(t+1,f2u(1e-5),t+1))
    a('v_rsq_f32 v%d, v%d'%(rout,t+1)); a('s_nop 0')
    a('v_mul_f32 v%d, v%d, v%d'%(nmrout,t,rout)); a('v_sub_f32 v%d, 0, v%d'%(nmrout,nmrout))

S_WSP=62
def ln1_row(a):
    a('s_lshl_b32 s%d, s2, 3'%S_T0); a('s_add_u32 s%d, s%d, s%d'%(S_T0,S_T0,S_WAVE)); a('s_mul_i32 s%d, s%d, 1280'%(S_T1,S_T0))
    a('v_lshlrev_b32 v56, 4, v0'); a('v_mov_b32 v57, 0x3f803f80')
    for k in range(4): a('v_mov_b32 v%d, 0'%(68+k))
    a('s_waitcnt lgkmcnt(0)')
    add64(a,S_T2,S_X,'s%d'%S_T1); srd(a,SRD_O,S_T2,S_T2+1,1280)
    a('buffer_load_dwordx4 v[60:63], v56, s[%d:%d], 0 offen'%(SRD_O,SRD_O+3)); a('buffer_load_dwordx4 v[64:67], v56, s[%d:%d], 0 offen offset:1024'%(SRD_O,SRD_O+3))
    add64(a,S_T2,S_WS,WS_LN1); srd(a,SRD_O2,S_T2,S_T2+1,16384)
    a('s_lshl_b32 s%d, s%d, 3'%(S_SO,S_T0))
def ln1_row_finish(a):
    a('s_waitcnt vmcnt(0)')
    for k in range(8):
        a('v_dot2_f32_bf16 v%d, v%d, v%d, v%d'%(68+(k&1),60+k,60+k,68+(k&1))); a('v_dot2_f32_bf16 v%d, v%d, v57, v%d'%(70+(k&1),60+k,70+(k&1)))
    a('s_nop 3')
    a('v_add_f32 v68, v68, v69'); a('v_add_f32 v70, v70, v71'); a('s_nop 1')
    for d in ('quad_perm:[1,0,3,2]','quad_perm:[2,3,0,1]','row_half_mirror','row_mirror'):
        a('v_add_f32_dpp v68, v68, v68 %s row_mask:0xf bank_mask:0xf'%d); a('v_add_f32_dpp v70, v70, v70 %s row_mask:0xf bank_mask:0xf'%d); a('s_nop 0')
    for sw in ('v_permlane16_swap_b32','v_permlane32_swap_b32'):
        a('v_mov_b32 v69, v68'); a('v_mov_b32 v71, v70'); a('s_nop 1')
        a('%s v68, v69'%sw); a('%s v70, v71'%sw); a('s_nop 1')
        a('v_add_f32 v68, v68, v69'); a('v_add_f32 v70, v70, v71')
    a('v_mul_f32 v70, 0x%x, v70'%f2u(1.0/640)); a('v_mul_f32 v68, 0x%x, v68'%f2u(1.0/640))
    a('v_fma_f32 v68, -v70, v70, v68'); a('v_max_f32 v68, 0, v68'); a('v_add_f32 v68, 0x%x, v68'%f2u(1e-5))
    a('v_rsq_f32 v72, v68'); a('s_nop 0'); a('v_mul_f32 v73, v70, v72'); a('v_sub_f32 v73, 0, v73')
    a('v_mov_b32 v74, 0'); a('v_cmp_eq_u32 vcc, 0, v0'); a('s_and_saveexec_b64 s[%d:%d], vcc'%(S_EX,S_EX+1))
    a('buffer_store_dwordx2 v[72:73], v74, s[%d:%d], s%d offen sc1'%(SRD_O2,SRD_O2+3,S_SO))
    a('s_mov_b64 exec, s[%d:%d]'%(S_EX,S_EX+1))
def ln1_hook(a):
    return lambda: a('s_waitcnt vmcnt(0)')

def worker(a,name,SL,isZ):
    n=NK1
    CA=14; VT=15; CF=[48,68]; CACC=88; ONES=108
    srd(a,SRD_D,S_DBG,S_DBG+1,256)
    add64(a,S_T2,S_WS,WS_GR); srd(a,SRD_G,S_T2,S_T2+1,16*12288)
    if isZ:
        a('s_cmp_eq_u32 s%d, 0'%S_PW); a('s_cbranch_scc0 %s_nojob'%name)
        a('s_mul_i32 s%d, s%d, 12288'%(S_SO,S_RB)); a('s_lshl_b32 s%d, s%d, 1'%(S_T0,S_CT)); a('s_add_u32 s%d, s%d, s%d'%(S_T0,S_T0,S_PAR)); a('s_lshl_b32 s%d, s%d, 10'%(S_T0,S_T0))
        a('s_add_u32 s%d, s%d, s%d'%(S_SO,S_SO,S_T0))
        for k in range(4): a('v_mov_b32 v%d, -1'%(8+k))
        a('v_lshlrev_b32 v3, 4, v0')
        a('buffer_store_dwordx4 v[8:11], v3, s[%d:%d], s%d offen sc1'%(SRD_G,SRD_G+3,S_SO))
        a.lab(name+'_nojob')
    a('s_load_dwordx2 s[86:87], s[0:1], 56'); a('s_load_dwordx4 s[96:99], s[0:1], 8'); a('s_load_dwordx2 s[88:89], s[0:1], 72')
    a('v_lshrrev_b32 v4, 4, v0'); a('v_and_b32 v5, 15, v0'); a('v_lshlrev_b32 v5, 7, v5')
    a('s_lshl_b32 s%d, s%d, 9'%(S_T0,S_G)); a('s_lshl_b32 s%d, s%d, 4'%(S_T1,S_J)); a('s_add_u32 s%d, s%d, s%d'%(S_T0,S_T0,S_T1)); a('v_add_u32 v6, s%d, v4'%S_T0)
    a('v_lshlrev_b32 v6, 12, v6'); a('v_add_u32 v6, v6, v5'); a('s_lshl_b32 s%d, s%d, 11'%(S_T0,S_HALF)); a('v_add_u32 v6, s%d, v6'%S_T0)
    a('s_mul_i32 s%d, s%d, 288'%(S_T0,S_G)); a('s_mul_i32 s%d, s%d, 9'%(S_T1,S_J)); a('s_add_u32 s%d, s%d, s%d'%(S_T0,S_T0,S_T1)); a('v_add_u32 v7, s%d, v4'%S_T0)
    a('v_lshlrev_b32 v7, 12, v7'); a('v_add_u32 v7, v7, v5')
    a('v_and_b32 v21, 15, v0'); a('v_lshlrev_b32 v21, 4, v21'); a('v_mov_b32 v20, 0')
    for r in (16,17,18,19): a('v_mov_b32 v%d, 0'%r)
    a('s_waitcnt lgkmcnt(0)')
    srd(a,SRD_W,86,87,2048*4096)
    a('s_cmp_eq_u32 s%d, 0'%S_HALF); a('s_cselect_b32 s%d, s96, s98'%S_T2); a('s_cselect_b32 s%d, s97, s99'%S_T3); srd(a,SRD_O2,S_T2,S_T3,2048*4096)
    if isZ:
        a('v_and_b32 v120, 15, v0'); a('v_lshrrev_b32 v121, 4, v0'); a('v_lshrrev_b32 v122, 2, v120'); a('v_lshl_add_u32 v122, v121, 2, v122')
        a('v_mul_u32_u24 v122, 288, v122'); a('v_and_b32 v120, 3, v120'); a('v_lshl_add_u32 v122, v120, 3, v122')
        a('s_and_b32 s%d, s%d, 1'%(S_T0,S_PW)); a('s_mul_i32 s%d, s%d, 9216'%(S_T0,S_T0)); a('s_cmp_lt_u32 s%d, 2'%S_PW); a('s_cselect_b32 s%d, 160, 0'%S_T1)
        a('s_add_u32 s%d, s%d, s%d'%(S_T0,S_T0,S_T1)); a('s_add_u32 s%d, s%d, 16384'%(S_T0,S_T0)); a('v_add_u32 v%d, s%d, v122'%(CA,S_T0))
        for k in range(4): a('v_mov_b32 v%d, 0x3f803f80'%(ONES+k))
        for k in range(20): a('v_mov_b32 v%d, 0'%(CACC+k))
        for k in range(40): a('v_mov_b32 v%d, 0'%(CF[0]+k))
    def reads(st):
        a('v_add_u32 v%d, s%d, v%d'%(VT,S_SLC,CA))
        lab=a.newlab(name+'_c')
        for j in range(5):
            if j==4: a('s_cmp_lt_u32 s%d, 2'%S_PW); a('s_cbranch_scc1 %s'%lab)
            for b in range(2): a('ds_read_b64_tr_b16 %s, v%d offset:%d'%(vr(CF[st]+4*j+2*b,2),VT,b*4608+j*32))
        a.lab(lab)
    def compute(st):
        for j in range(5):
            a('v_mfma_f32_16x16x32_bf16 %s, %s, %s, %s'%(vr(CACC+4*j,4),vr(ONES,4),vr(CF[st]+4*j,4),vr(CACC+4*j,4)))
    def xpf(k,pol):
        if k<4:
            a('s_mov_b32 s%d, %d'%(S_SO,k*4*4096)); a('buffer_load_dword v10, v6, s[%d:%d], s%d offen%s'%(SRD_W,SRD_W+3,S_SO,pol))
        else:
            k-=4
            a('s_mov_b32 s%d, %d'%(S_SO,k*4*4096))
            if k==2: a('s_mov_b32 exec_hi, 0'); a('s_mov_b32 exec_lo, 0xffff')
            a('buffer_load_dword v10, v7, s[%d:%d], s%d offen%s'%(SRD_O2,SRD_O2+3,S_SO,pol))
            if k==2: a('s_mov_b64 exec, -1')
    def wout_pf():
        srd(a,SRD_O,88,89,864*1280)
        a('s_mul_i32 s%d, s2, %d'%(S_SO,34*128)); a('v_lshlrev_b32 v11, 7, v0'); a('s_mov_b32 exec_hi, 3')
        a('buffer_load_dword v10, v11, s[%d:%d], s%d offen'%(SRD_O,SRD_O+3,S_SO)); a('s_mov_b32 exec_hi, -1')
    TBL=16
    def side(i):
        pol=' nt' if not EXP.get('xpfdef') else ''
        if not (EXP.get('noxpf') or EXP.get('noxpf1')) and EXP.get('pfmid') and 2<=i<=8:
            l=a.newlab(name+'_p'); a('s_cmp_eq_u32 s%d, 1'%S_PW); a('s_cbranch_scc0 %s'%l)
            xpf(i-2,pol)
            a.lab(l)
        if EXP.get('wo1') and i==EXP.get('wo1'):
            l=a.newlab(name+'_wo'); a('s_cmp_eq_u32 s%d, 2'%S_PW); a('s_cbranch_scc0 %s'%l); wout_pf(); a.lab(l)
        if i==2:
            l=a.newlab(name+'_a'); a('s_cmp_eq_u32 s%d, 0'%S_PW); a('s_cbranch_scc0 %s'%l)
            a('s_waitcnt vmcnt(0)')
            a('v_mov_b32 v4, 1'); a('s_and_b32 s%d, s2, 15'%S_T0); a('s_lshl_b32 s%d, s%d, 4'%(S_T0,S_T0)); a('v_mov_b32 v3, s%d'%S_T0)
            a('v_cmp_eq_u32 vcc, 0, v0'); a('s_and_saveexec_b64 s[%d:%d], vcc'%(S_EX,S_EX+1))
            a('buffer_atomic_add v4, v3, s[%d:%d], 0 offen sc1'%(SRD_D,SRD_D+3))
            a('s_mov_b64 exec, s[%d:%d]'%(S_EX,S_EX+1))
            a.lab(l)
        if i==5:
            l=a.newlab(name+'_q'); a('s_cmp_eq_u32 s%d, 0'%S_PW); a('s_cbranch_scc0 %s'%l)
            a('buffer_load_dword v20, v21, s[%d:%d], 0 offen sc1'%(SRD_D,SRD_D+3))
            a.lab(l)
        if i==7:
            l=a.newlab(name+'_r'); a('s_cmp_eq_u32 s%d, 0'%S_PW); a('s_cbranch_scc0 %s'%l)
            a('s_mov_b32 s%d, 0'%S_SO2)
            lp=a.newlab(name+'_pl'); ok=a.newlab(name+'_ok')
            a.lab(lp)
            a('s_waitcnt vmcnt(0)'); a('v_cmp_gt_u32 vcc, 16, v20'); a('s_nop 1'); a('s_cmp_eq_u64 vcc, 0'); a('s_cbranch_scc1 %s'%ok)
            a('buffer_load_dword v20, v21, s[%d:%d], 0 offen sc1'%(SRD_D,SRD_D+3))
            a('s_add_u32 s%d, s%d, 1'%(S_SO2,S_SO2)); a('s_cmp_lt_u32 s%d, %d'%(S_SO2,POLL_BOUND)); a('s_cbranch_scc1 %s'%lp)
            a.lab(ok)
            add64(a,S_T2,S_WS,WS_LN1); srd(a,SRD_O,S_T2,S_T2+1,16384)
            if isZ:
                a('s_lshl_b32 s%d, s%d, 7'%(S_T0,S_RB)); a('v_add_u32 v22, s%d, v0'%S_T0); a('v_add_u32 v23, 64, v22')
            else:
                a('s_lshl_b32 s%d, s%d, 6'%(S_T0,S_RB)); a('v_add_u32 v22, s%d, v0'%S_T0); a('v_sub_u32 v23, 2048, v22')
                a('v_cmp_eq_u32 vcc, 2048, v23'); a('v_mov_b32 v24, 1024'); a('s_nop 0'); a('v_cndmask_b32 v23, v23, v24, vcc')
            a('v_lshlrev_b32 v22, 3, v22'); a('v_lshlrev_b32 v23, 3, v23')
            a('buffer_load_dwordx2 v[16:17], v22, s[%d:%d], 0 offen sc1'%(SRD_O,SRD_O+3)); a('buffer_load_dwordx2 v[18:19], v23, s[%d:%d], 0 offen sc1'%(SRD_O,SRD_O+3))
            a.lab(l)
    a('s_mov_b32 s%d, 0'%S_SLC)
    for i in range(n):
        a('s_barrier')
        if isZ: reads(i&1)
        side(i)
        if isZ:
            compute((i&1)^1); a('s_waitcnt lgkmcnt(0)'); slot_advance(a,S_SLC,SL)
    if isZ: compute((n-1)&1)
    if not (EXP.get('noxpf') or EXP.get('noxpf1') or EXP.get('pfmid')):
        l=a.newlab(name+'_pe'); a('s_cmp_eq_u32 s%d, 1'%S_PW); a('s_cbranch_scc0 %s'%l)
        for k in range(7): xpf(k,' nt' if not EXP.get('xpfdef') else '')
        a.lab(l)
    gc.stamp(a,3)
    l=a.newlab(name+'_w'); a('s_cmp_eq_u32 s%d, 0'%S_PW); a('s_cbranch_scc0 %s'%l)
    a('s_waitcnt vmcnt(0)'); a('v_lshlrev_b32 v26, 2, v0'); a('v_add_u32 v26, %d, v26'%T_R)
    a('ds_write_b32 v26, v16'); a('ds_write_b32 v26, v17 offset:512'); a('ds_write_b32 v26, v18 offset:256'); a('ds_write_b32 v26, v19 offset:768')
    a.lab(l)
    if isZ:
        a('s_and_b32 s%d, s%d, 1'%(S_T0,S_PW)); a('s_mul_i32 s%d, s%d, 640'%(S_T0,S_T0)); a('s_cmp_lt_u32 s%d, 2'%S_PW); a('s_cselect_b32 s%d, 320, 0'%S_T1)
        a('s_add_u32 s%d, s%d, s%d'%(S_T0,S_T0,S_T1)); a('v_and_b32 v26, 15, v0'); a('v_lshlrev_b32 v26, 2, v26'); a('v_add_u32 v26, s%d, v26'%S_T0); a('v_add_u32 v26, %d, v26'%T_CS0)
        a('s_nop 7')
        lab=a.newlab(name+'_f')
        for j in range(5):
            if j==4: a('s_cmp_lt_u32 s%d, 2'%S_PW); a('s_cbranch_scc1 %s'%lab)
            a('ds_write_b32 v26, v%d offset:%d'%(CACC+4*j,j*64))
        a.lab(lab)

def krot(a):
    if EXP.get('norot'): a('s_mov_b32 s%d, 0'%S_T0); return
    a('s_mul_i32 s%d, s%d, 5'%(S_T0,S_G)); a('s_lshr_b32 s%d, s%d, 1'%(S_T0,S_T0))
    a('s_mul_i32 s%d, s%d, %d'%(S_T1,S_HALF,EXP.get('rothalf',4))); a('s_add_u32 s%d, s%d, s%d'%(S_T0,S_T0,S_T1))
    a('s_cmp_ge_u32 s%d, 10'%S_T0); a('s_cselect_b32 s%d, 10, 0'%S_T1); a('s_sub_u32 s%d, s%d, s%d'%(S_T0,S_T0,S_T1))

def gen_k1(a,kname):
    kernel_head(a,kname,'K1')
    a('s_load_dwordx2 s[%d:%d], s[0:1], 0'%(S_X,S_X+1))
    a('s_load_dwordx4 s[%d:%d], s[0:1], 24'%(S_WDRE,S_WDRE+3))
    a('s_load_dwordx2 s[%d:%d], s[0:1], 48'%(S_WIN,S_WIN+1))
    a('s_load_dwordx2 s[%d:%d], s[0:1], 88'%(S_DBG,S_DBG+1))
    a('s_load_dwordx2 s[%d:%d], s[0:1], 96'%(S_WS,S_WS+1))
    a('v_lshrrev_b32 v1, 6, v0'); a('v_and_b32 v0, 63, v0'); a('s_nop 0')
    a('v_readfirstlane_b32 s%d, v1'%S_WAVE)
    a('s_and_b32 s%d, s2, 7'%S_XCD); a('s_lshr_b32 s%d, s2, 3'%S_J)
    a('s_lshr_b32 s%d, s%d, 1'%(S_G,S_XCD)); a('s_and_b32 s%d, s%d, 1'%(S_HALF,S_XCD))
    a('s_cmp_ge_u32 s%d, 24'%S_J); a('s_cbranch_scc1 K1A_entry')
    a('s_mul_i32 s%d, s%d, 43'%(S_T0,S_J)); a('s_lshr_b32 s%d, s%d, 8'%(S_T0,S_T0))
    a('s_mul_i32 s%d, s%d, 6'%(S_T1,S_T0)); a('s_sub_u32 s%d, s%d, s%d'%(S_T1,S_J,S_T1))
    a('s_and_b32 s%d, s%d, 1'%(S_PAR,S_T1)); a('s_lshr_b32 s%d, s%d, 1'%(S_T1,S_T1)); a('s_mul_i32 s%d, s%d, 3'%(S_CT,S_HALF)); a('s_add_u32 s%d, s%d, s%d'%(S_CT,S_CT,S_T1))
    a('s_lshl_b32 s%d, s%d, 1'%(S_T1,S_G)); a('s_add_u32 s%d, s%d, s%d'%(S_T2,S_T1,S_T0))
    a('s_sub_u32 s%d, s%d, s%d'%(S_T3,S_T0,S_T1)); a('s_add_u32 s%d, s%d, 12'%(S_T3,S_T3))
    a('s_cmp_lt_u32 s%d, 2'%S_T0); a('s_cselect_b32 s%d, s%d, s%d'%(S_RB,S_T2,S_T3))
    a('s_cmp_ge_u32 s%d, 12'%S_WAVE); a('s_cbranch_scc1 K1Z_work')
    a('s_cmp_ge_u32 s%d, 8'%S_WAVE); a('s_cbranch_scc1 K1Z_prod')
    ACC=16; FA=56; FB=84; XA=[112,113]; WA=116
    a('s_and_b32 s%d, s%d, 3'%(S_PW,S_WAVE)); a('s_lshr_b32 s%d, s%d, 2'%(S_H,S_WAVE))
    a('v_and_b32 v1, 15, v0'); a('v_lshrrev_b32 v2, 4, v0')
    a('v_and_b32 v3, 7, v0'); a('v_xor_b32 v3, v3, v2'); a('v_lshlrev_b32 v3, 4, v3'); a('v_lshl_add_u32 v3, v1, 7, v3')
    a('s_lshl_b32 s%d, s%d, 12'%(S_T0,S_PW)); a('v_add_u32 v%d, s%d, v3'%(XA[0],S_T0)); a('v_xor_b32 v%d, 64, v%d'%(XA[1],XA[0]))
    a('v_lshrrev_b32 v3, 2, v1'); a('v_lshl_add_u32 v3, v2, 2, v3'); a('v_mul_u32_u24 v3, 288, v3'); a('v_and_b32 v4, 3, v1'); a('v_lshl_add_u32 v3, v4, 3, v3')
    a('s_mul_i32 s%d, s%d, 160'%(S_T0,S_H)); a('v_add_u32 v%d, s%d, v3'%(WA,S_T0))
    ln1_row(a)
    for k in range(40): a('v_mov_b32 v%d, 0'%(ACC+k))
    ln1_row_finish(a)
    def acc(i,j): return ACC+(j*2+i)*4
    a('s_cmp_eq_u32 s%d, s%d'%(S_H,S_PAR)); a('s_cselect_b32 s%d, 0, 2'%S_T0); a('s_add_u32 s%d, s%d, s%d'%(S_T0,S_T0,S_H))
    for t,lab in ((1,'K1c_z2_1'),(2,'K1c_z1_0'),(3,'K1c_z1_1')):
        a('s_cmp_eq_u32 s%d, %d'%(S_T0,t)); a('s_cbranch_scc1 %s'%lab)
    for role in ('z2','z1'):
      for h in range(2):
        nj=5-h; nm='K1c_%s_%d'%(role,h)
        a.lab(nm)
        def rd(st,sub,nj=nj):
            F=FA if st==0 else FB; m=[]
            for i in range(2): m.append('ds_read_b128 %s, v%d offset:%d'%(vr(F+i*4,4),XA[sub],i*2048))
            for j in range(nj):
                for b in range(2): m.append('ds_read_b64_tr_b16 %s, v%d offset:%d'%(vr(F+8+j*4+b*2,2),WA,16384+sub*9216+b*4608+j*32))
            return m
        def mf(st,role=role,nj=nj):
            F=FA if st==0 else FB; m=[]
            for j in range(nj):
                for i in range(2):
                    x=vr(F+i*4,4); w=vr(F+8+j*4,4); c=vr(acc(i,j),4)
                    m.append('v_mfma_f32_16x16x32_bf16 %s, %s, %s, %s'%((c,x,w,c) if role=='z2' else (c,w,x,c)))
            return m
        consumer_loop(a,nm+'L',SLZ,NK1,XA+[WA],rd,mf,lag=(h==0),hook=ln1_hook(a),hook_at=2,per=EXP.get('k1per',2),dly=EXP.get('k1dly',12))
        a('s_barrier')
        if EXP.get('fine') is None: gc.stamp(a,4)
        C0=112;C1=114;ONE=116
        a('v_mov_b32 v%d, 0x%x'%(C0,f2u(GC0))); a('v_mov_b32 v%d, 0x%x'%(C0+1,f2u(GC0)))
        a('v_mov_b32 v%d, 0x%x'%(C1,f2u(GC1))); a('v_mov_b32 v%d, 0x%x'%(C1+1,f2u(GC1)))
        a('v_mov_b32 v%d, 1.0'%ONE); a('v_mov_b32 v%d, 1.0'%(ONE+1))
        TMP=[56,58,60,62]; prs=[(i,p) for i in range(2) for p in range(2)]
        if role=='z2':
            if not EXP.get('noz2prio'): a('s_setprio 3')
            RR=64; NM=72; CS=80; CSb=86; SUM=92; SQ=100; GRN=56; VO=118; PK=108
            a('s_lshl_b32 s%d, s%d, 7'%(S_T0,S_PW)); a('v_lshlrev_b32 v3, 4, v2'); a('v_add_u32 v3, s%d, v3'%S_T0); a('v_add_u32 v3, %d, v3'%T_R)
            for i in range(2):
                a('ds_read_b128 %s, v3 offset:%d'%(vr(RR+4*i,4),i*64)); a('ds_read_b128 %s, v3 offset:%d'%(vr(NM+4*i,4),512+i*64))
            a('v_lshlrev_b32 v4, 2, v1'); a('v_add_u32 v4, %d, v4'%(T_CS0+h*320))
            for j in range(nj):
                a('ds_read_b32 v%d, v4 offset:%d'%(CS+j,j*64)); a('ds_read_b32 v%d, v4 offset:%d'%(CSb+j,640+j*64))
            for k in range(8): a('v_mov_b32 v%d, 0'%(SUM+k)); a('v_mov_b32 v%d, 0'%(SQ+k))
            add64(a,S_T2,S_WS,WS_GR); srd(a,SRD_G,S_T2,S_T2+1,16*12288)
            a('s_mul_i32 s%d, s%d, 12288'%(S_SO,S_RB))
            a('s_lshl_b32 s%d, s%d, 1'%(S_T0,S_CT)); a('s_add_u32 s%d, s%d, %d'%(S_T0,S_T0,h)); a('s_lshl_b32 s%d, s%d, 10'%(S_T0,S_T0))
            a('s_lshl_b32 s%d, s%d, 8'%(S_T1,S_PW)); a('s_add_u32 s%d, s%d, s%d'%(S_T0,S_T0,S_T1)); a('s_add_u32 s%d, s%d, s%d'%(S_SO2,S_SO,S_T0))
            a('s_waitcnt lgkmcnt(0)')
            for j in range(nj): a('v_add_f32 v%d, v%d, v%d'%(CS+j,CS+j,CSb+j))
            for j in range(nj):
                csr=CS+j; cspair=vr(csr&~1,2); sel=csr&1
                for k,(i,p) in enumerate(prs): a('v_pk_mul_f32 %s, %s, %s op_sel:[0,%d] op_sel_hi:[1,%d]'%(vr(TMP[k],2),vr(NM+4*i+2*p,2),cspair,sel,sel))
                for k,(i,p) in enumerate(prs):
                    r=acc(i,j)+2*p; a('v_pk_fma_f32 %s, %s, %s, %s'%(vr(r,2),vr(r,2),vr(RR+4*i+2*p,2),vr(TMP[k],2)))
                gelu_pairs(a,[acc(i,j)+2*p for (i,p) in prs],TMP,C0,C1,ONE)
                for k,(i,p) in enumerate(prs):
                    r=acc(i,j)+2*p
                    a('v_pk_add_f32 %s, %s, %s'%(vr(SUM+4*i+2*p,2),vr(SUM+4*i+2*p,2),vr(r,2)))
                    a('v_pk_fma_f32 %s, %s, %s, %s'%(vr(SQ+4*i+2*p,2),vr(r,2),vr(r,2),vr(SQ+4*i+2*p,2)))
            if EXP.get('z2st'): gc.stamp(a,1)
            for sh in (8,4,2):
                for k in range(8): a('v_add_f32_dpp v%d, v%d, v%d row_ror:%d row_mask:0xf bank_mask:0xf'%(SUM+k,SUM+k,SUM+k,sh))
                for k in range(8): a('v_add_f32_dpp v%d, v%d, v%d row_ror:%d row_mask:0xf bank_mask:0xf'%(SQ+k,SQ+k,SQ+k,sh))
            for k in range(8): a('v_add_f32_dpp v%d, v%d, v%d row_ror:1 row_mask:0xf bank_mask:0xf'%(GRN+2*k,SUM+k,SUM+k))
            for k in range(8): a('v_add_f32_dpp v%d, v%d, v%d row_ror:1 row_mask:0xf bank_mask:0xf'%(GRN+2*k+1,SQ+k,SQ+k))
            a('v_lshlrev_b32 v3, 5, v2'); a('v_cmp_eq_u32 vcc, 0, v1'); a('s_and_saveexec_b64 s[%d:%d], vcc'%(S_EX,S_EX+1))
            for i in range(2):
                for p in range(2): a('buffer_store_dwordx4 %s, v3, s[%d:%d], s%d offen offset:%d sc1'%(vr(GRN+8*i+4*p,4),SRD_G,SRD_G+3,S_SO2,i*128+p*16))
            a('s_mov_b64 exec, s[%d:%d]'%(S_EX,S_EX+1))
            if EXP.get('z2st'): gc.stamp(a,2)
            PL=72
            a('v_and_b32 v4, 31, v0'); a('v_lshrrev_b32 v5, 5, v0'); a('v_mul_u32_u24 v5, 6144, v5'); a('v_lshl_add_u32 v4, v4, 3, v5')
            a('s_lshl_b32 s%d, s%d, 8'%(S_T1,S_PW)); a('v_add_u32 v4, s%d, v4'%S_T1); a('v_add_u32 v5, 4096, v4')
            a('s_mov_b32 s%d, 0'%S_I)
            a.lab(nm+'_poll')
            for k in range(6): a('buffer_load_dwordx2 %s, v%d, s[%d:%d], s%d offen offset:%d sc1'%(vr(PL+2*k,2),4 if k<4 else 5,SRD_G,SRD_G+3,S_SO,(k%4)*1024))
            a('s_waitcnt vmcnt(0)')
            a('v_max3_u32 v6, v%d, v%d, v%d'%(PL,PL+1,PL+2))
            for k in range(3,12,2):
                a('v_max3_u32 v6, v6, v%d, v%d'%(PL+k,PL+k+1) if k+1<12 else 'v_max_u32 v6, v6, v%d'%(PL+k))
            a('v_cmp_eq_u32 s[%d:%d], -1, v6'%(S_EX,S_EX+1)); a('s_nop 1'); a('s_cmp_eq_u64 s[%d:%d], 0'%(S_EX,S_EX+1)); a('s_cbranch_scc1 %s_rdy'%nm)
            a('s_add_u32 s%d, s%d, 1'%(S_I,S_I)); a('s_cmp_lt_u32 s%d, %d'%(S_I,POLL_BOUND)); a('s_cbranch_scc1 %s_poll'%nm)
            a.lab(nm+'_rdy')
            if EXP.get('z2st'): gc.stamp(a,3)
            a('v_pk_add_f32 %s, %s, %s'%(vr(PL,2),vr(PL,2),vr(PL+2,2))); a('v_pk_add_f32 %s, %s, %s'%(vr(PL+4,2),vr(PL+4,2),vr(PL+6,2))); a('v_pk_add_f32 %s, %s, %s'%(vr(PL+8,2),vr(PL+8,2),vr(PL+10,2)))
            a('v_pk_add_f32 %s, %s, %s'%(vr(PL,2),vr(PL,2),vr(PL+4,2))); a('v_pk_add_f32 %s, %s, %s'%(vr(PL,2),vr(PL,2),vr(PL+8,2)))
            a('v_mov_b32 v%d, v%d'%(PL+2,PL)); a('v_mov_b32 v%d, v%d'%(PL+3,PL+1)); a('s_nop 1')
            a('v_permlane32_swap_b32 v%d, v%d'%(PL,PL+2)); a('v_permlane32_swap_b32 v%d, v%d'%(PL+1,PL+3)); a('s_nop 1')
            a('v_pk_add_f32 %s, %s, %s'%(vr(PL,2),vr(PL,2),vr(PL+2,2)))
            a('v_mul_f32 v%d, 0x%x, v%d'%(PL,f2u(1.0/864),PL)); a('v_mul_f32 v%d, 0x%x, v%d'%(PL+1,f2u(1.0/864),PL+1))
            a('v_fma_f32 v%d, -v%d, v%d, v%d'%(PL+1,PL,PL,PL+1)); a('v_max_f32 v%d, 0, v%d'%(PL+1,PL+1)); a('v_add_f32 v%d, 0x%x, v%d'%(PL+1,f2u(1e-5),PL+1))
            a('v_rsq_f32 v%d, v%d'%(PL+2,PL+1)); a('s_nop 0'); a('v_mul_f32 v%d, v%d, v%d'%(PL+3,PL,PL+2)); a('v_sub_f32 v%d, 0, v%d'%(PL+3,PL+3))
            a('s_lshl_b32 s%d, s%d, 8'%(S_T0,S_WAVE)); a('s_add_u32 s%d, s%d, %d'%(S_T0,S_T0,T_W2))
            a('v_and_b32 v4, 31, v0'); a('v_lshlrev_b32 v4, 2, v4'); a('v_add_u32 v4, s%d, v4'%S_T0)
            a('ds_write_b32 v4, v%d'%(PL+2)); a('ds_write_b32 v4, v%d offset:128'%(PL+3))
            a('v_lshlrev_b32 v5, 4, v2'); a('v_add_u32 v5, s%d, v5'%S_T0)
            a('s_waitcnt lgkmcnt(0)')
            for i in range(2):
                a('ds_read_b128 %s, v5 offset:%d'%(vr(RR+4*i,4),i*64)); a('ds_read_b128 %s, v5 offset:%d'%(vr(84+4*i,4),128+i*64))
            NM2=84
            a('s_mul_i32 s%d, s%d, %d'%(S_T0,S_CT,Z2_CT)); a('s_lshl_b32 s%d, s%d, 1'%(S_T1,S_RB)); a('s_lshr_b32 s%d, s%d, 1'%(S_T2,S_PW))
            a('s_add_u32 s%d, s%d, s%d'%(S_T1,S_T1,S_T2)); a('s_mul_i32 s%d, s%d, 18432'%(S_T1,S_T1)); a('s_add_u32 s%d, s%d, s%d'%(S_T0,S_T0,S_T1))
            a('s_and_b32 s%d, s%d, 1'%(S_T1,S_PW)); a('s_mul_i32 s%d, s%d, 9216'%(S_T1,S_T1)); a('s_add_u32 s%d, s%d, s%d'%(S_T0,S_T0,S_T1))
            a('s_add_u32 s%d, s%d, %d'%(S_SO,S_T0,5120*h))
            srd(a,SRD_O,S_WS,S_WS+1,6*Z2_CT)
            a('v_lshlrev_b32 v%d, 4, v0'%VO)
            a('s_waitcnt lgkmcnt(0)')
            for j in range(nj):
                for k,(i,p) in enumerate(prs):
                    r=acc(i,j)+2*p; a('v_pk_fma_f32 %s, %s, %s, %s'%(vr(r,2),vr(r,2),vr(RR+4*i+2*p,2),vr(NM2+4*i+2*p,2)))
                o=PK+4*(j&1)
                for k,(i,p) in enumerate(prs):
                    r=acc(i,j)+2*p; a('v_cvt_pk_bf16_f32 v%d, v%d, v%d'%(o+k,r,r+1))
                a('s_nop 1')
                a('v_permlane32_swap_b32 v%d, v%d'%(o,o+2)); a('v_permlane32_swap_b32 v%d, v%d'%(o+1,o+3)); a('s_nop 1')
                a('v_permlane16_swap_b32 v%d, v%d'%(o,o+2)); a('v_permlane16_swap_b32 v%d, v%d'%(o+1,o+3))
                if j<4: a('buffer_store_dwordx4 %s, v%d, s[%d:%d], s%d offen offset:%d%s'%(vr(o,4),VO,SRD_O,SRD_O+3,S_SO,j*1024,g2.STF))
                else:
                    a('s_add_u32 s%d, s%d, 4096'%(S_SO,S_SO)); a('buffer_store_dwordx4 %s, v%d, s[%d:%d], s%d offen%s'%(vr(o,4),VO,SRD_O,SRD_O+3,S_SO,g2.STF))
            a('s_branch K1_end')
        else:
            RR=64; NM=66; CS=68; CSb=88; PK=100; VO=118
            a('s_lshl_b32 s%d, s%d, 7'%(S_T0,S_PW)); a('v_lshlrev_b32 v3, 2, v1'); a('v_add_u32 v3, s%d, v3'%S_T0); a('v_add_u32 v3, %d, v3'%T_R)
            for i in range(2):
                a('ds_read_b32 v%d, v3 offset:%d'%(RR+i,i*64)); a('ds_read_b32 v%d, v3 offset:%d'%(NM+i,512+i*64))
            a('v_lshlrev_b32 v4, 4, v2'); a('v_add_u32 v4, %d, v4'%(T_CS0+320*h))
            for j in range(nj):
                a('ds_read_b128 %s, v4 offset:%d'%(vr(CS+4*j,4),j*64)); a('ds_read_b128 %s, v4 offset:%d'%(vr(CSb+4*j,4),640+j*64))
            a('s_mul_i32 s%d, s%d, 6'%(S_T0,S_RB)); a('s_add_u32 s%d, s%d, s%d'%(S_T0,S_T0,S_CT)); a('s_lshl_b32 s%d, s%d, 3'%(S_T0,S_T0))
            a('s_add_u32 s%d, s%d, s%d'%(S_T0,S_T0,S_WAVE)); a('s_mul_i32 s%d, s%d, 5120'%(S_SO,S_T0))
            add64(a,S_T2,S_WS,WS_Z1); srd(a,SRD_O,S_T2,S_T2+1,96*40960)
            a('v_lshlrev_b32 v%d, 4, v0'%VO)
            a('s_waitcnt lgkmcnt(0)')
            for j in range(nj):
                for p in range(2): a('v_pk_add_f32 %s, %s, %s'%(vr(CS+4*j+2*p,2),vr(CS+4*j+2*p,2),vr(CSb+4*j+2*p,2)))
            for j in range(nj):
                for k,(i,p) in enumerate(prs): a('v_pk_mul_f32 %s, %s, %s op_sel:[0,%d] op_sel_hi:[1,%d]'%(vr(TMP[k],2),vr(CS+4*j+2*p,2),vr(NM,2),i,i))
                for k,(i,p) in enumerate(prs):
                    r=acc(i,j)+2*p; a('v_pk_fma_f32 %s, %s, %s, %s op_sel:[0,%d,0] op_sel_hi:[1,%d,1]'%(vr(r,2),vr(r,2),vr(RR,2),vr(TMP[k],2),i,i))
                gelu_pairs(a,[acc(i,j)+2*p for (i,p) in prs],TMP,C0,C1,ONE)
                o=PK+4*(j&1)
                for k,(i,p) in enumerate(prs):
                    r=acc(i,j)+2*p; a('v_cvt_pk_bf16_f32 v%d, v%d, v%d'%(o+k,r,r+1))
                if j<4: a('buffer_store_dwordx4 %s, v%d, s[%d:%d], s%d offen offset:%d%s'%(vr(o,4),VO,SRD_O,SRD_O+3,S_SO,j*1024,g2.STF))
                else:
                    a('s_add_u32 s%d, s%d, 4096'%(S_SO,S_SO)); a('buffer_store_dwordx4 %s, v%d, s[%d:%d], s%d offen%s'%(vr(o,4),VO,SRD_O,SRD_O+3,S_SO,g2.STF))
            a('s_branch K1_end')
    a.lab('K1Z_prod')
    XO=[2,3]; WO=[4,5,6,7,8]
    if EXP.get('same'): a('s_mov_b32 s%d, 0'%S_RB); a('s_mov_b32 s%d, 0'%S_CT)
    a('s_sub_u32 s%d, s%d, 8'%(S_PW,S_WAVE))
    a('v_lshrrev_b32 v20, 3, v0'); a('s_lshl_b32 s%d, s%d, 5'%(S_T0,S_PW)); a('v_add_u32 v21, s%d, v20'%S_T0); a('v_mul_u32_u24 v21, 1280, v21')
    a('v_and_b32 v22, 7, v0'); a('v_xor_b32 v22, v22, v20')
    a('v_lshl_add_u32 v%d, v22, 4, v21'%XO[0]); a('v_mov_b32 v%d, v%d'%(XO[1],XO[0]))
    a('s_mul_i32 s%d, s%d, 288'%(S_T0,S_CT)); a('s_cmp_eq_u32 s%d, 0'%S_PAR); a('s_cselect_b32 s%d, 1728, 0'%S_T1); a('s_cselect_b32 s%d, 0, 1728'%S_T2)
    a('s_add_u32 s%d, s%d, s%d'%(S_T1,S_T1,S_T0)); a('s_add_u32 s%d, s%d, s%d'%(S_T2,S_T2,S_T0))
    a('v_mov_b32 v24, s%d'%S_T1); a('v_mov_b32 v25, s%d'%S_T2)
    for i in range(5):
        a('s_lshl_b32 s%d, s%d, 6'%(S_T0,S_PW)); a('s_add_u32 s%d, s%d, %d'%(S_T0,S_T0,256*i)); a('v_add_u32 v20, s%d, v0'%S_T0)
        a('v_mul_u32_u24 v21, 3641, v20'); a('v_lshrrev_b32 v21, 16, v21')
        a('v_mul_u32_u24 v22, 18, v21'); a('v_sub_u32 v22, v20, v22'); a('v_cmp_gt_u32 vcc, 10, v22')
        a('v_and_b32 v26, 0x23, v21'); a('v_bfe_u32 v27, v21, 2, 2'); a('v_lshl_or_b32 v26, v27, 3, v26'); a('v_bfe_u32 v27, v21, 4, 1'); a('v_lshl_or_b32 v21, v27, 2, v26')
        a('v_mul_u32_u24 v21, 3456, v21'); a('v_lshl_add_u32 v21, v22, 4, v21')
        a('v_cndmask_b32 v23, v25, v24, vcc'); a('v_add_u32 v%d, v21, v23'%WO[i])
    a('s_mov_b32 s%d, 0'%S_SLI)
    krot(a); a('s_lshl_b32 s%d, s%d, 7'%(S_KX,S_T0)); a('s_mul_i32 s%d, s%d, %d'%(S_KW,S_T0,64*3456))
    a('s_waitcnt lgkmcnt(0)')
    a('s_mul_i32 s%d, s%d, %d'%(S_T0,S_RB,128*1280)); add64(a,S_X,S_X,'s%d'%S_T0); srd(a,SRD_X,S_X,S_X+1,128*1280)
    srd(a,SRD_W,S_WIN,S_WIN+1,640*3456)
    def issueZ():
        a('s_lshl_b32 s%d, s%d, 12'%(S_T,S_PW)); a('s_add_u32 s%d, s%d, s%d'%(S_T,S_T,S_SLI))
        for j in range(4):
            a('s_add_u32 m0, s%d, %d'%(S_T,j*1024)); a('s_add_u32 s%d, s%d, %d'%(S_SO,S_KX,j*10240))
            a(ld('buffer_load_dwordx4 v%d, s[%d:%d], s%d offen lds'%(XO[j&1],SRD_X,SRD_X+3,S_SO)))
        a('s_lshl_b32 s%d, s%d, 10'%(S_T,S_PW)); a('s_add_u32 s%d, s%d, s%d'%(S_T,S_T,S_SLI))
        lab=a.newlab('K1Zp_s')
        for i in range(5):
            if i==4: a('s_cmp_lt_u32 s%d, 2'%S_PW); a('s_cbranch_scc0 %s'%lab)
            a('s_add_u32 m0, s%d, %d'%(S_T,16384+i*4096)); a('s_nop 0')
            a(ld('buffer_load_dwordx4 v%d, s[%d:%d], s%d offen lds'%(WO[i],SRD_W,SRD_W+3,S_KW)))
        a.lab(lab)
        slot_advance(a,S_SLI,SLZ); a('s_add_u32 s%d, s%d, 128'%(S_KX,S_KX)); a('s_add_u32 s%d, s%d, %d'%(S_KW,S_KW,64*3456))
        a('s_cmp_eq_u32 s%d, 1280'%S_KX); a('s_cselect_b32 s%d, 0, s%d'%(S_KX,S_KX)); a('s_cselect_b32 s%d, 0, s%d'%(S_KW,S_KW))
    dma_producer(a,'K1Zp',NK1,8,issueZ)
    a('s_branch K1_end')
    a.lab('K1Z_work')
    a('s_sub_u32 s%d, s%d, 12'%(S_PW,S_WAVE))
    a('s_waitcnt lgkmcnt(0)')
    worker(a,'K1Zw',SLZ,True)
    a('s_waitcnt lgkmcnt(0)'); a('s_barrier'); a('s_branch K1_end')

    a.lab('K1A_entry')
    a('s_sub_u32 s%d, s%d, 24'%(S_T0,S_J)); a('s_lshr_b32 s%d, s%d, 1'%(S_T1,S_T0)); a('s_and_b32 s%d, s%d, 1'%(S_CT,S_T0))
    a('s_lshl_b32 s%d, s%d, 2'%(S_RB,S_G)); a('s_add_u32 s%d, s%d, s%d'%(S_RB,S_RB,S_T1))
    a('s_cmp_ge_u32 s%d, 12'%S_WAVE); a('s_cbranch_scc1 K1A_work')
    a('s_cmp_ge_u32 s%d, 8'%S_WAVE); a('s_cbranch_scc1 K1A_prod')
    ACC=16; FA=56; FB=84; XA=[112,113]; WA2=[114,115]
    a('s_and_b32 s%d, s%d, 3'%(S_PW,S_WAVE)); a('s_lshr_b32 s%d, s%d, 2'%(S_H,S_WAVE))
    a('v_and_b32 v1, 15, v0'); a('v_lshrrev_b32 v2, 4, v0'); a('v_and_b32 v3, 7, v0'); a('v_xor_b32 v3, v3, v2'); a('v_lshlrev_b32 v3, 4, v3')
    a('v_lshl_add_u32 v3, v1, 7, v3')
    a('s_lshl_b32 s%d, s%d, 11'%(S_T0,S_PW)); a('v_add_u32 v%d, s%d, v3'%(XA[0],S_T0)); a('v_xor_b32 v%d, 64, v%d'%(XA[1],XA[0]))
    a('s_mul_i32 s%d, s%d, %d'%(S_T0,S_H,80*128)); a('s_add_u32 s%d, s%d, 16384'%(S_T0,S_T0)); a('v_add_u32 v%d, s%d, v3'%(WA2[0],S_T0)); a('v_xor_b32 v%d, 64, v%d'%(WA2[1],WA2[0]))
    ln1_row(a)
    for k in range(40): a('v_mov_b32 v%d, 0'%(ACC+k))
    ln1_row_finish(a)
    def accA(tb,j): return ACC+(j*2+tb)*4
    def rdA(st,sub):
        F=FA if st==0 else FB; m=[]
        for tb in range(2): m.append('ds_read_b128 %s, v%d offset:%d'%(vr(F+tb*4,4),XA[sub],tb*8192))
        for j in range(5): m.append('ds_read_b128 %s, v%d offset:%d'%(vr(F+8+j*4,4),WA2[sub],j*2048))
        return m
    def mfA(st):
        F=FA if st==0 else FB; m=[]
        for j in range(5):
            for tb in range(2):
                c=vr(accA(tb,j),4); m.append('v_mfma_f32_16x16x32_bf16 %s, %s, %s, %s'%(c,vr(F+tb*4,4),vr(F+8+j*4,4),c))
        return m
    a('s_cmp_eq_u32 s%d, 0'%S_H); a('s_cbranch_scc0 K1A_c1')
    consumer_loop(a,'K1A0',SLA,NK1,XA+WA2,rdA,mfA,lag=True,hook=ln1_hook(a),hook_at=2)
    a('s_branch K1A_cd')
    a.lab('K1A_c1')
    consumer_loop(a,'K1A1',SLA,NK1,XA+WA2,rdA,mfA,lag=False,hook=ln1_hook(a),hook_at=2)
    a.lab('K1A_cd')
    a('s_barrier')
    if EXP.get('fine') is None: gc.stamp(a,4)
    RT=56; RB_=60; RO=64; T4=[66,68]; PK=70; VO=76
    a('s_lshl_b32 s%d, s%d, 6'%(S_T0,S_PW)); a('v_lshlrev_b32 v3, 4, v2'); a('v_add_u32 v3, s%d, v3'%S_T0); a('v_add_u32 v3, %d, v3'%T_R)
    a('ds_read_b128 %s, v3'%vr(RT,4)); a('ds_read_b128 %s, v3 offset:256'%vr(RB_,4))
    a('s_mul_i32 s%d, s%d, %d'%(S_T0,S_HALF,AE_MAT)); a('s_lshl_b32 s%d, s%d, 1'%(S_T1,S_CT)); a('s_add_u32 s%d, s%d, s%d'%(S_T1,S_T1,S_H))
    a('s_mul_i32 s%d, s%d, 163840'%(S_T1,S_T1)); a('s_add_u32 s%d, s%d, s%d'%(S_T0,S_T0,S_T1)); a('s_mul_i32 s%d, s%d, 10240'%(S_T1,S_RB))
    a('s_add_u32 s%d, s%d, s%d'%(S_T0,S_T0,S_T1)); a('s_lshr_b32 s%d, s%d, 1'%(S_T1,S_PW)); a('s_mul_i32 s%d, s%d, 5120'%(S_T1,S_T1)); a('s_add_u32 s%d, s%d, s%d'%(S_SO,S_T0,S_T1))
    add64(a,S_T2,S_WS,WS_AE); srd(a,SRD_O,S_T2,S_T2+1,2*AE_MAT)
    a('s_and_b32 s%d, s%d, 1'%(S_T0,S_PW)); a('s_lshl_b32 s%d, s%d, 9'%(S_T0,S_T0))
    a('v_lshrrev_b32 v3, 1, v2'); a('v_lshlrev_b32 v3, 8, v3'); a('v_lshl_add_u32 v3, v1, 4, v3'); a('v_and_b32 v4, 1, v2'); a('v_lshl_add_u32 v3, v4, 3, v3')
    a('v_add_u32 v%d, s%d, v3'%(VO,S_T0))
    a('s_waitcnt lgkmcnt(0)')
    a('s_or_b32 s%d, s%d, s%d'%(S_T0,S_RB,S_PW)); a('s_or_b32 s%d, s%d, s%d'%(S_T0,S_T0,S_HALF)); a('s_cmp_eq_u32 s%d, 0'%S_T0); a('s_cbranch_scc0 K1A_nosp')
    add64(a,S_T2,S_WS,WS_A1024); srd(a,SRD_O2,S_T2,S_T2+1,1280)
    a('s_mul_i32 s%d, s%d, 640'%(S_T0,S_CT)); a('s_mul_i32 s%d, s%d, 320'%(S_T1,S_H)); a('s_add_u32 s%d, s%d, s%d'%(S_T0,S_T0,S_T1))
    a('v_lshlrev_b32 v5, 2, v1')
    a('v_cmp_gt_u32 vcc, 16, v0'); a('s_and_saveexec_b64 s[%d:%d], vcc'%(S_EX,S_EX+1))
    for j in range(5):
        a('v_mul_f32 v%d, v%d, v%d'%(RO,accA(1,j),RB_))
        a('buffer_store_dword v%d, v5, s[%d:%d], s%d offen offset:%d%s'%(RO,SRD_O2,SRD_O2+3,S_T0,j*64,g2.STF)); a('s_nop 0')
    a('v_mov_b32 v%d, 0'%RB_)
    a('s_mov_b64 exec, s[%d:%d]'%(S_EX,S_EX+1))
    a.lab('K1A_nosp')
    a('s_cmp_eq_u32 s%d, 0'%S_HALF); a('s_cselect_b32 s%d, 1.0, -1.0'%S_T0)
    for k in range(4): a('v_mul_f32 v%d, s%d, v%d'%(RB_+k,S_T0,RB_+k))
    for j in range(5):
        for p in range(2): a('v_pk_mul_f32 %s, %s, %s'%(vr(T4[p],2),vr(accA(1,j)+2*p,2),vr(RB_+2*p,2)))
        for p in range(2): a('v_pk_fma_f32 %s, %s, %s, %s'%(vr(T4[p],2),vr(accA(0,j)+2*p,2),vr(RT+2*p,2),vr(T4[p],2)))
        for p in range(2): a('v_cvt_pk_bf16_f32 v%d, v%d, v%d'%(PK+p+2*(j&1),T4[p],T4[p]+1))
        if j<4: a('buffer_store_dwordx2 %s, v%d, s[%d:%d], s%d offen offset:%d%s'%(vr(PK+2*(j&1),2),VO,SRD_O,SRD_O+3,S_SO,j*1024,g2.STF))
        else:
            a('s_add_u32 s%d, s%d, 4096'%(S_SO,S_SO)); a('buffer_store_dwordx2 %s, v%d, s[%d:%d], s%d offen%s'%(vr(PK+2*(j&1),2),VO,SRD_O,SRD_O+3,S_SO,g2.STF))
    a('s_branch K1_end')
    a.lab('K1A_prod')
    XO4=[2,3,4,5]; WO1=6
    if EXP.get('same'): a('s_mov_b32 s%d, 0'%S_RB); a('s_mov_b32 s%d, 0'%S_CT)
    a('s_sub_u32 s%d, s%d, 8'%(S_PW,S_WAVE))
    a('v_lshrrev_b32 v20, 3, v0'); a('v_and_b32 v22, 7, v0'); a('v_xor_b32 v22, v22, v20'); a('v_lshlrev_b32 v22, 4, v22')
    a('s_lshl_b32 s%d, s%d, 6'%(S_T0,S_RB))
    a('s_cmp_lt_u32 s%d, 2'%S_PW); a('s_cbranch_scc0 K1Ap_bot')
    a('s_lshl_b32 s%d, s%d, 5'%(S_T1,S_PW)); a('s_add_u32 s%d, s%d, s%d'%(S_T1,S_T1,S_T0))
    for j in range(4):
        a('v_add_u32 v21, s%d, v20'%S_T1); a('v_add_u32 v21, %d, v21'%(8*j)); a('v_mul_u32_u24 v21, 1280, v21'); a('v_add_u32 v%d, v21, v22'%XO4[j])
    a('s_branch K1Ap_xd')
    a.lab('K1Ap_bot')
    a('s_sub_u32 s%d, s%d, 2'%(S_T1,S_PW)); a('s_lshl_b32 s%d, s%d, 5'%(S_T1,S_T1)); a('s_add_u32 s%d, s%d, s%d'%(S_T1,S_T1,S_T0)); a('s_sub_u32 s%d, 2048, s%d'%(S_T1,S_T1))
    for j in range(4):
        a('v_sub_u32 v21, s%d, v20'%S_T1); a('v_subrev_u32 v21, %d, v21'%(8*j))
        if j==0:
            a('v_cmp_eq_u32 vcc, 2048, v21'); a('v_mov_b32 v23, 1024'); a('s_nop 0'); a('v_cndmask_b32 v21, v21, v23, vcc')
        a('v_mul_u32_u24 v21, 1280, v21'); a('v_add_u32 v%d, v21, v22'%XO4[j])
    a.lab('K1Ap_xd')
    a('s_mul_i32 s%d, s%d, 40'%(S_T0,S_PW)); a('v_add_u32 v21, s%d, v20'%S_T0); a('v_mul_u32_u24 v21, 1280, v21'); a('v_add_u32 v%d, v21, v22'%WO1)
    a('s_mov_b32 s%d, 0'%S_SLI)
    krot(a); a('s_lshl_b32 s%d, s%d, 7'%(S_KX,S_T0))
    a('s_waitcnt lgkmcnt(0)')
    srd(a,SRD_X,S_X,S_X+1,2048*1280)
    a('s_cmp_eq_u32 s%d, 0'%S_HALF); a('s_cselect_b32 s%d, s%d, s%d'%(S_T2,S_WDRE,S_WDIM)); a('s_cselect_b32 s%d, s%d, s%d'%(S_T3,S_WDRE+1,S_WDIM+1))
    a('s_mul_i32 s%d, s%d, %d'%(S_T0,S_CT,160*1280)); a('s_add_u32 s%d, s%d, 1280'%(S_T0,S_T0)); add64(a,S_T2,S_T2,'s%d'%S_T0)
    srd(a,SRD_W,S_T2,S_T2+1,160*1280)
    def issueA():
        a('s_lshl_b32 s%d, s%d, 12'%(S_T,S_PW)); a('s_add_u32 s%d, s%d, s%d'%(S_T,S_T,S_SLI))
        for j in range(4):
            a('s_add_u32 m0, s%d, %d'%(S_T,j*1024)); a('s_nop 0')
            a(ld('buffer_load_dwordx4 v%d, s[%d:%d], s%d offen lds'%(XO4[j],SRD_X,SRD_X+3,S_KX)))
        a('s_mul_i32 s%d, s%d, 5120'%(S_T,S_PW)); a('s_add_u32 s%d, s%d, s%d'%(S_T,S_T,S_SLI))
        for j in range(5):
            a('s_add_u32 m0, s%d, %d'%(S_T,16384+j*1024)); a('s_add_u32 s%d, s%d, %d'%(S_SO,S_KX,j*10240))
            a(ld('buffer_load_dwordx4 v%d, s[%d:%d], s%d offen lds'%(WO1,SRD_W,SRD_W+3,S_SO)))
        slot_advance(a,S_SLI,SLA); a('s_add_u32 s%d, s%d, 128'%(S_KX,S_KX))
        a('s_cmp_eq_u32 s%d, 1280'%S_KX); a('s_cselect_b32 s%d, 0, s%d'%(S_KX,S_KX))
    dma_producer(a,'K1Ap',NK1,9,issueA)
    a('s_branch K1_end')
    a.lab('K1A_work')
    a('s_sub_u32 s%d, s%d, 12'%(S_PW,S_WAVE))
    a('s_waitcnt lgkmcnt(0)')
    worker(a,'K1Aw',SLA,False)
    a('s_waitcnt lgkmcnt(0)'); a('s_barrier')
    kernel_tail(a,'K1',0,S_WS)
```

```python
from g2_common import *
import g2_common as g2
SLZ=34816; SLA=36864
TB=NS*SLA
T_R=TB; T_NMR=TB+512; T_CS0=TB+1024; T_CS1=TB+1664; T_W2=TB+2304
K1_LDS=TB+2304+2048
NK1=10
S_X=4; S_WS=6; S_WDRE=8; S_WDIM=10; S_WIN=12; S_DBG=14
SRD_X=16; SRD_W=20; SRD_O=24; SRD_O2=28; SRD_G=56; SRD_D=60
POLL_BOUND=4000

def stats_final(a,SUM,SQ,t,n,rout,nmrout):
    for k in range(1,len(SUM)): a('v_add_f32 v%d, v%d, v%d'%(SUM[0],SUM[0],SUM[k])); a('v_add_f32 v%d, v%d, v%d'%(SQ[0],SQ[0],SQ[k]))
    a('s_nop 1')
    a('v_add_f32_dpp v%d, v%d, v%d quad_perm:[1,0,3,2] row_mask:0xf bank_mask:0xf'%(t,SUM[0],SUM[0]))
    a('v_add_f32_dpp v%d, v%d, v%d quad_perm:[1,0,3,2] row_mask:0xf bank_mask:0xf'%(t+1,SQ[0],SQ[0]))
    a('v_mul_f32 v%d, 0x%x, v%d'%(t,f2u(1.0/n),t)); a('v_mul_f32 v%d, 0x%x, v%d'%(t+1,f2u(1.0/n),t+1))
    a('v_fma_f32 v%d, -v%d, v%d, v%d'%(t+1,t,t,t+1)); a('v_max_f32 v%d, 0, v%d'%(t+1,t+1)); a('v_add_f32 v%d, 0x%x, v%d'%(t+1,f2u(1e-5),t+1))
    a('v_rsq_f32 v%d, v%d'%(rout,t+1)); a('s_nop 0')
    a('v_mul_f32 v%d, v%d, v%d'%(nmrout,t,rout)); a('v_sub_f32 v%d, 0, v%d'%(nmrout,nmrout))

S_WSP=62
def ln1_row(a):
    a('s_lshl_b32 s%d, s2, 3'%S_T0); a('s_add_u32 s%d, s%d, s%d'%(S_T0,S_T0,S_WAVE)); a('s_mul_i32 s%d, s%d, 1280'%(S_T1,S_T0))
    a('v_lshlrev_b32 v56, 4, v0'); a('v_mov_b32 v57, 0x3f803f80')
    for k in range(4): a('v_mov_b32 v%d, 0'%(68+k))
    a('s_waitcnt lgkmcnt(0)')
    add64(a,S_T2,S_X,'s%d'%S_T1); srd(a,SRD_O,S_T2,S_T2+1,1280)
    a('buffer_load_dwordx4 v[60:63], v56, s[%d:%d], 0 offen'%(SRD_O,SRD_O+3)); a('buffer_load_dwordx4 v[64:67], v56, s[%d:%d], 0 offen offset:1024'%(SRD_O,SRD_O+3))
    add64(a,S_T2,S_WS,WS_LN1); srd(a,SRD_O2,S_T2,S_T2+1,16384)
    a('s_lshl_b32 s%d, s%d, 3'%(S_SO,S_T0))
def ln1_row_finish(a):
    a('s_waitcnt vmcnt(0)')
    for k in range(8):
        a('v_dot2_f32_bf16 v%d, v%d, v%d, v%d'%(68+(k&1),60+k,60+k,68+(k&1))); a('v_dot2_f32_bf16 v%d, v%d, v57, v%d'%(70+(k&1),60+k,70+(k&1)))
    a('s_nop 3')
    a('v_add_f32 v68, v68, v69'); a('v_add_f32 v70, v70, v71'); a('s_nop 1')
    for d in ('quad_perm:[1,0,3,2]','quad_perm:[2,3,0,1]','row_half_mirror','row_mirror'):
        a('v_add_f32_dpp v68, v68, v68 %s row_mask:0xf bank_mask:0xf'%d); a('v_add_f32_dpp v70, v70, v70 %s row_mask:0xf bank_mask:0xf'%d); a('s_nop 0')
    for sw in ('v_permlane16_swap_b32','v_permlane32_swap_b32'):
        a('v_mov_b32 v69, v68'); a('v_mov_b32 v71, v70'); a('s_nop 1')
        a('%s v68, v69'%sw); a('%s v70, v71'%sw); a('s_nop 1')
        a('v_add_f32 v68, v68, v69'); a('v_add_f32 v70, v70, v71')
    a('v_mul_f32 v70, 0x%x, v70'%f2u(1.0/640)); a('v_mul_f32 v68, 0x%x, v68'%f2u(1.0/640))
    a('v_fma_f32 v68, -v70, v70, v68'); a('v_max_f32 v68, 0, v68'); a('v_add_f32 v68, 0x%x, v68'%f2u(1e-5))
    a('v_rsq_f32 v72, v68'); a('s_nop 0'); a('v_mul_f32 v73, v70, v72'); a('v_sub_f32 v73, 0, v73')
    a('v_mov_b32 v74, 0'); a('v_cmp_eq_u32 vcc, 0, v0'); a('s_and_saveexec_b64 s[%d:%d], vcc'%(S_EX,S_EX+1))
    a('buffer_store_dwordx2 v[72:73], v74, s[%d:%d], s%d offen sc1'%(SRD_O2,SRD_O2+3,S_SO))
    a('s_mov_b64 exec, s[%d:%d]'%(S_EX,S_EX+1))
def ln1_hook(a):
    return lambda: a('s_waitcnt vmcnt(0)')

def worker(a,name,SL,isZ):
    n=NK1
    CA=14; VT=15; CF=[48,68]; CACC=88; ONES=108
    srd(a,SRD_D,S_DBG,S_DBG+1,256)
    add64(a,S_T2,S_WS,WS_GR); srd(a,SRD_G,S_T2,S_T2+1,16*12288)
    if isZ:
        a('s_cmp_eq_u32 s%d, 0'%S_PW); a('s_cbranch_scc0 %s_nojob'%name)
        a('s_mul_i32 s%d, s%d, 12288'%(S_SO,S_RB)); a('s_lshl_b32 s%d, s%d, 1'%(S_T0,S_CT)); a('s_add_u32 s%d, s%d, s%d'%(S_T0,S_T0,S_PAR)); a('s_lshl_b32 s%d, s%d, 10'%(S_T0,S_T0))
        a('s_add_u32 s%d, s%d, s%d'%(S_SO,S_SO,S_T0))
        for k in range(4): a('v_mov_b32 v%d, -1'%(8+k))
        a('v_lshlrev_b32 v3, 4, v0')
        a('buffer_store_dwordx4 v[8:11], v3, s[%d:%d], s%d offen sc1'%(SRD_G,SRD_G+3,S_SO))
        a.lab(name+'_nojob')
    a('s_load_dwordx2 s[86:87], s[0:1], 56'); a('s_load_dwordx4 s[96:99], s[0:1], 8'); a('s_load_dwordx2 s[88:89], s[0:1], 72')
    a('v_lshrrev_b32 v4, 4, v0'); a('v_and_b32 v5, 15, v0'); a('v_lshlrev_b32 v5, 7, v5')
    a('s_lshl_b32 s%d, s%d, 9'%(S_T0,S_G)); a('s_lshl_b32 s%d, s%d, 4'%(S_T1,S_J)); a('s_add_u32 s%d, s%d, s%d'%(S_T0,S_T0,S_T1)); a('v_add_u32 v6, s%d, v4'%S_T0)
    a('v_lshlrev_b32 v6, 12, v6'); a('v_add_u32 v6, v6, v5'); a('s_lshl_b32 s%d, s%d, 11'%(S_T0,S_HALF)); a('v_add_u32 v6, s%d, v6'%S_T0)
    a('s_mul_i32 s%d, s%d, 288'%(S_T0,S_G)); a('s_mul_i32 s%d, s%d, 9'%(S_T1,S_J)); a('s_add_u32 s%d, s%d, s%d'%(S_T0,S_T0,S_T1)); a('v_add_u32 v7, s%d, v4'%S_T0)
    a('v_lshlrev_b32 v7, 12, v7'); a('v_add_u32 v7, v7, v5')
    a('v_and_b32 v21, 15, v0'); a('v_lshlrev_b32 v21, 4, v21'); a('v_mov_b32 v20, 0')
    for r in (16,17,18,19): a('v_mov_b32 v%d, 0'%r)
    a('s_waitcnt lgkmcnt(0)')
    srd(a,SRD_W,86,87,2048*4096)
    a('s_cmp_eq_u32 s%d, 0'%S_HALF); a('s_cselect_b32 s%d, s96, s98'%S_T2); a('s_cselect_b32 s%d, s97, s99'%S_T3); srd(a,SRD_O2,S_T2,S_T3,2048*4096)
    if isZ:
        a('v_and_b32 v120, 15, v0'); a('v_lshrrev_b32 v121, 4, v0'); a('v_lshrrev_b32 v122, 2, v120'); a('v_lshl_add_u32 v122, v121, 2, v122')
        a('v_mul_u32_u24 v122, 288, v122'); a('v_and_b32 v120, 3, v120'); a('v_lshl_add_u32 v122, v120, 3, v122')
        a('s_and_b32 s%d, s%d, 1'%(S_T0,S_PW)); a('s_mul_i32 s%d, s%d, 9216'%(S_T0,S_T0)); a('s_cmp_lt_u32 s%d, 2'%S_PW); a('s_cselect_b32 s%d, 160, 0'%S_T1)
        a('s_add_u32 s%d, s%d, s%d'%(S_T0,S_T0,S_T1)); a('s_add_u32 s%d, s%d, 16384'%(S_T0,S_T0)); a('v_add_u32 v%d, s%d, v122'%(CA,S_T0))
        for k in range(4): a('v_mov_b32 v%d, 0x3f803f80'%(ONES+k))
        for k in range(20): a('v_mov_b32 v%d, 0'%(CACC+k))
        for k in range(40): a('v_mov_b32 v%d, 0'%(CF[0]+k))
    def reads(st):
        a('v_add_u32 v%d, s%d, v%d'%(VT,S_SLC,CA))
        lab=a.newlab(name+'_c')
        for j in range(5):
            if j==4: a('s_cmp_lt_u32 s%d, 2'%S_PW); a('s_cbranch_scc1 %s'%lab)
            for b in range(2): a('ds_read_b64_tr_b16 %s, v%d offset:%d'%(vr(CF[st]+4*j+2*b,2),VT,b*4608+j*32))
        a.lab(lab)
    def compute(st):
        for j in range(5):
            a('v_mfma_f32_16x16x32_bf16 %s, %s, %s, %s'%(vr(CACC+4*j,4),vr(ONES,4),vr(CF[st]+4*j,4),vr(CACC+4*j,4)))
    def xpf(k,pol):
        if k<4:
            a('s_mov_b32 s%d, %d'%(S_SO,k*4*4096)); a('buffer_load_dword v10, v6, s[%d:%d], s%d offen%s'%(SRD_W,SRD_W+3,S_SO,pol))
        else:
            k-=4
            a('s_mov_b32 s%d, %d'%(S_SO,k*4*4096))
            if k==2: a('s_mov_b32 exec_hi, 0'); a('s_mov_b32 exec_lo, 0xffff')
            a('buffer_load_dword v10, v7, s[%d:%d], s%d offen%s'%(SRD_O2,SRD_O2+3,S_SO,pol))
            if k==2: a('s_mov_b64 exec, -1')
    def wout_pf():
        srd(a,SRD_O,88,89,864*1280)
        a('s_mul_i32 s%d, s2, %d'%(S_SO,34*128)); a('v_lshlrev_b32 v11, 7, v0'); a('s_mov_b32 exec_hi, 3')
        a('buffer_load_dword v10, v11, s[%d:%d], s%d offen'%(SRD_O,SRD_O+3,S_SO)); a('s_mov_b32 exec_hi, -1')
    TBL=16
    def side(i):
        pol=' nt' if not EXP.get('xpfdef') else ''
        if not (EXP.get('noxpf') or EXP.get('noxpf1')) and EXP.get('pfmid') and EXP.get('pf0',2)<=i<=EXP.get('pf0',2)+6:
            l=a.newlab(name+'_p'); a('s_cmp_eq_u32 s%d, 1'%S_PW); a('s_cbranch_scc0 %s'%l)
            if not (EXP.get('pfwonly') and i-EXP.get('pf0',2)>=4): xpf(i-EXP.get('pf0',2),pol)
            a.lab(l)
        if EXP.get('wo1') and i==EXP.get('wo1'):
            l=a.newlab(name+'_wo'); a('s_cmp_eq_u32 s%d, 2'%S_PW); a('s_cbranch_scc0 %s'%l); wout_pf(); a.lab(l)
        if i==2:
            l=a.newlab(name+'_a'); a('s_cmp_eq_u32 s%d, 0'%S_PW); a('s_cbranch_scc0 %s'%l)
            a('s_waitcnt vmcnt(0)')
            a('v_mov_b32 v4, 1'); a('s_and_b32 s%d, s2, 15'%S_T0); a('s_lshl_b32 s%d, s%d, 4'%(S_T0,S_T0)); a('v_mov_b32 v3, s%d'%S_T0)
            a('v_cmp_eq_u32 vcc, 0, v0'); a('s_and_saveexec_b64 s[%d:%d], vcc'%(S_EX,S_EX+1))
            a('buffer_atomic_add v4, v3, s[%d:%d], 0 offen sc1'%(SRD_D,SRD_D+3))
            a('s_mov_b64 exec, s[%d:%d]'%(S_EX,S_EX+1))
            a.lab(l)
        if i==5:
            l=a.newlab(name+'_q'); a('s_cmp_eq_u32 s%d, 0'%S_PW); a('s_cbranch_scc0 %s'%l)
            a('buffer_load_dword v20, v21, s[%d:%d], 0 offen sc1'%(SRD_D,SRD_D+3))
            a.lab(l)
        if i==7:
            l=a.newlab(name+'_r'); a('s_cmp_eq_u32 s%d, 0'%S_PW); a('s_cbranch_scc0 %s'%l)
            a('s_mov_b32 s%d, 0'%S_SO2)
            lp=a.newlab(name+'_pl'); ok=a.newlab(name+'_ok')
            a.lab(lp)
            a('s_waitcnt vmcnt(0)'); a('v_cmp_gt_u32 vcc, 16, v20'); a('s_nop 1'); a('s_cmp_eq_u64 vcc, 0'); a('s_cbranch_scc1 %s'%ok)
            a('buffer_load_dword v20, v21, s[%d:%d], 0 offen sc1'%(SRD_D,SRD_D+3))
            a('s_add_u32 s%d, s%d, 1'%(S_SO2,S_SO2)); a('s_cmp_lt_u32 s%d, %d'%(S_SO2,POLL_BOUND)); a('s_cbranch_scc1 %s'%lp)
            a.lab(ok)
            add64(a,S_T2,S_WS,WS_LN1); srd(a,SRD_O,S_T2,S_T2+1,16384)
            if isZ:
                a('s_lshl_b32 s%d, s%d, 7'%(S_T0,S_RB)); a('v_add_u32 v22, s%d, v0'%S_T0); a('v_add_u32 v23, 64, v22')
            else:
                a('s_lshl_b32 s%d, s%d, 6'%(S_T0,S_RB)); a('v_add_u32 v22, s%d, v0'%S_T0); a('v_sub_u32 v23, 2048, v22')
                a('v_cmp_eq_u32 vcc, 2048, v23'); a('v_mov_b32 v24, 1024'); a('s_nop 0'); a('v_cndmask_b32 v23, v23, v24, vcc')
            a('v_lshlrev_b32 v22, 3, v22'); a('v_lshlrev_b32 v23, 3, v23')
            a('buffer_load_dwordx2 v[16:17], v22, s[%d:%d], 0 offen sc1'%(SRD_O,SRD_O+3)); a('buffer_load_dwordx2 v[18:19], v23, s[%d:%d], 0 offen sc1'%(SRD_O,SRD_O+3))
            a.lab(l)
    a('s_mov_b32 s%d, 0'%S_SLC)
    for i in range(n):
        a('s_barrier')
        if isZ: reads(i&1)
        side(i)
        if isZ:
            compute((i&1)^1); a('s_waitcnt lgkmcnt(0)'); slot_advance(a,S_SLC,SL)
    if isZ: compute((n-1)&1)
    if not (EXP.get('noxpf') or EXP.get('noxpf1') or EXP.get('pfmid')):
        l=a.newlab(name+'_pe'); a('s_cmp_eq_u32 s%d, 1'%S_PW); a('s_cbranch_scc0 %s'%l)
        for k in range(4 if EXP.get('pfwonly') else 7): xpf(k,' nt' if not EXP.get('xpfdef') else '')
        a.lab(l)
    gc.stamp(a,3)
    l=a.newlab(name+'_w'); a('s_cmp_eq_u32 s%d, 0'%S_PW); a('s_cbranch_scc0 %s'%l)
    a('s_waitcnt vmcnt(0)'); a('v_lshlrev_b32 v26, 2, v0'); a('v_add_u32 v26, %d, v26'%T_R)
    a('ds_write_b32 v26, v16'); a('ds_write_b32 v26, v17 offset:512'); a('ds_write_b32 v26, v18 offset:256'); a('ds_write_b32 v26, v19 offset:768')
    a.lab(l)
    if isZ:
        a('s_and_b32 s%d, s%d, 1'%(S_T0,S_PW)); a('s_mul_i32 s%d, s%d, 640'%(S_T0,S_T0)); a('s_cmp_lt_u32 s%d, 2'%S_PW); a('s_cselect_b32 s%d, 320, 0'%S_T1)
        a('s_add_u32 s%d, s%d, s%d'%(S_T0,S_T0,S_T1)); a('v_and_b32 v26, 15, v0'); a('v_lshlrev_b32 v26, 2, v26'); a('v_add_u32 v26, s%d, v26'%S_T0); a('v_add_u32 v26, %d, v26'%T_CS0)
        a('s_nop 7')
        lab=a.newlab(name+'_f')
        for j in range(5):
            if j==4: a('s_cmp_lt_u32 s%d, 2'%S_PW); a('s_cbranch_scc1 %s'%lab)
            a('ds_write_b32 v26, v%d offset:%d'%(CACC+4*j,j*64))
        a.lab(lab)

def krot(a):
    if EXP.get('norot'): a('s_mov_b32 s%d, 0'%S_T0); return
    a('s_mul_i32 s%d, s%d, 5'%(S_T0,S_G)); a('s_lshr_b32 s%d, s%d, 1'%(S_T0,S_T0))
    a('s_mul_i32 s%d, s%d, %d'%(S_T1,S_HALF,EXP.get('rothalf',4))); a('s_add_u32 s%d, s%d, s%d'%(S_T0,S_T0,S_T1))
    a('s_cmp_ge_u32 s%d, 10'%S_T0); a('s_cselect_b32 s%d, 10, 0'%S_T1); a('s_sub_u32 s%d, s%d, s%d'%(S_T0,S_T0,S_T1))

def gen_k1(a,kname):
    kernel_head(a,kname,'K1')
    a('s_load_dwordx2 s[%d:%d], s[0:1], 0'%(S_X,S_X+1))
    a('s_load_dwordx4 s[%d:%d], s[0:1], 24'%(S_WDRE,S_WDRE+3))
    a('s_load_dwordx2 s[%d:%d], s[0:1], 48'%(S_WIN,S_WIN+1))
    a('s_load_dwordx2 s[%d:%d], s[0:1], 88'%(S_DBG,S_DBG+1))
    a('s_load_dwordx2 s[%d:%d], s[0:1], 96'%(S_WS,S_WS+1))
    a('v_lshrrev_b32 v1, 6, v0'); a('v_and_b32 v0, 63, v0'); a('s_nop 0')
    a('v_readfirstlane_b32 s%d, v1'%S_WAVE)
    a('s_and_b32 s%d, s2, 7'%S_XCD); a('s_lshr_b32 s%d, s2, 3'%S_J)
    a('s_lshr_b32 s%d, s%d, 1'%(S_G,S_XCD)); a('s_and_b32 s%d, s%d, 1'%(S_HALF,S_XCD))
    a('s_cmp_ge_u32 s%d, 24'%S_J); a('s_cbranch_scc1 K1A_entry')
    a('s_mul_i32 s%d, s%d, 43'%(S_T0,S_J)); a('s_lshr_b32 s%d, s%d, 8'%(S_T0,S_T0))
    a('s_mul_i32 s%d, s%d, 6'%(S_T1,S_T0)); a('s_sub_u32 s%d, s%d, s%d'%(S_T1,S_J,S_T1))
    a('s_and_b32 s%d, s%d, 1'%(S_PAR,S_T1)); a('s_lshr_b32 s%d, s%d, 1'%(S_T1,S_T1)); a('s_mul_i32 s%d, s%d, 3'%(S_CT,S_HALF)); a('s_add_u32 s%d, s%d, s%d'%(S_CT,S_CT,S_T1))
    a('s_lshl_b32 s%d, s%d, 1'%(S_T1,S_G)); a('s_add_u32 s%d, s%d, s%d'%(S_T2,S_T1,S_T0))
    a('s_sub_u32 s%d, s%d, s%d'%(S_T3,S_T0,S_T1)); a('s_add_u32 s%d, s%d, 12'%(S_T3,S_T3))
    a('s_cmp_lt_u32 s%d, 2'%S_T0); a('s_cselect_b32 s%d, s%d, s%d'%(S_RB,S_T2,S_T3))
    a('s_cmp_ge_u32 s%d, 12'%S_WAVE); a('s_cbranch_scc1 K1Z_work')
    a('s_cmp_ge_u32 s%d, 8'%S_WAVE); a('s_cbranch_scc1 K1Z_prod')
    ACC=16; FA=56; FB=84; XA=[112,113]; WA=116
    a('s_and_b32 s%d, s%d, 3'%(S_PW,S_WAVE)); a('s_lshr_b32 s%d, s%d, 2'%(S_H,S_WAVE))
    a('v_and_b32 v1, 15, v0'); a('v_lshrrev_b32 v2, 4, v0')
    a('v_and_b32 v3, 7, v0'); a('v_xor_b32 v3, v3, v2'); a('v_lshlrev_b32 v3, 4, v3'); a('v_lshl_add_u32 v3, v1, 7, v3')
    a('s_lshl_b32 s%d, s%d, 12'%(S_T0,S_PW)); a('v_add_u32 v%d, s%d, v3'%(XA[0],S_T0)); a('v_xor_b32 v%d, 64, v%d'%(XA[1],XA[0]))
    a('v_lshrrev_b32 v3, 2, v1'); a('v_lshl_add_u32 v3, v2, 2, v3'); a('v_mul_u32_u24 v3, 288, v3'); a('v_and_b32 v4, 3, v1'); a('v_lshl_add_u32 v3, v4, 3, v3')
    a('s_mul_i32 s%d, s%d, 160'%(S_T0,S_H)); a('v_add_u32 v%d, s%d, v3'%(WA,S_T0))
    ln1_row(a)
    for k in range(40): a('v_mov_b32 v%d, 0'%(ACC+k))
    ln1_row_finish(a)
    def acc(i,j): return ACC+(j*2+i)*4
    a('s_cmp_eq_u32 s%d, s%d'%(S_H,S_PAR)); a('s_cselect_b32 s%d, 0, 2'%S_T0); a('s_add_u32 s%d, s%d, s%d'%(S_T0,S_T0,S_H))
    for t,lab in ((1,'K1c_z2_1'),(2,'K1c_z1_0'),(3,'K1c_z1_1')):
        a('s_cmp_eq_u32 s%d, %d'%(S_T0,t)); a('s_cbranch_scc1 %s'%lab)
    for role in ('z2','z1'):
      for h in range(2):
        nj=5-h; nm='K1c_%s_%d'%(role,h)
        a.lab(nm)
        def rd(st,sub,nj=nj):
            F=FA if st==0 else FB; m=[]
            for i in range(2): m.append('ds_read_b128 %s, v%d offset:%d'%(vr(F+i*4,4),XA[sub],i*2048))
            for j in range(nj):
                for b in range(2): m.append('ds_read_b64_tr_b16 %s, v%d offset:%d'%(vr(F+8+j*4+b*2,2),WA,16384+sub*9216+b*4608+j*32))
            return m
        def mf(st,role=role,nj=nj):
            F=FA if st==0 else FB; m=[]
            for j in range(nj):
                for i in range(2):
                    x=vr(F+i*4,4); w=vr(F+8+j*4,4); c=vr(acc(i,j),4)
                    m.append('v_mfma_f32_16x16x32_bf16 %s, %s, %s, %s'%((c,x,w,c) if role=='z2' else (c,w,x,c)))
            return m
        consumer_loop(a,nm+'L',SLZ,NK1,XA+[WA],rd,mf,lag=(h==0),hook=ln1_hook(a),hook_at=2,per=EXP.get('k1per',2),dly=EXP.get('k1dly',12))
        a('s_barrier')
        if EXP.get('fine') is None: gc.stamp(a,4)
        C0=112;C1=114;ONE=116
        a('v_mov_b32 v%d, 0x%x'%(C0,f2u(GC0))); a('v_mov_b32 v%d, 0x%x'%(C0+1,f2u(GC0)))
        a('v_mov_b32 v%d, 0x%x'%(C1,f2u(GC1))); a('v_mov_b32 v%d, 0x%x'%(C1+1,f2u(GC1)))
        a('v_mov_b32 v%d, 1.0'%ONE); a('v_mov_b32 v%d, 1.0'%(ONE+1))
        TMP=[56,58,60,62]; prs=[(i,p) for i in range(2) for p in range(2)]
        if role=='z2':
            if not EXP.get('noz2prio'): a('s_setprio 3')
            RR=64; NM=72; CS=80; CSb=86; SUM=92; SQ=100; GRN=56; VO=118; PK=108
            a('s_lshl_b32 s%d, s%d, 7'%(S_T0,S_PW)); a('v_lshlrev_b32 v3, 4, v2'); a('v_add_u32 v3, s%d, v3'%S_T0); a('v_add_u32 v3, %d, v3'%T_R)
            for i in range(2):
                a('ds_read_b128 %s, v3 offset:%d'%(vr(RR+4*i,4),i*64)); a('ds_read_b128 %s, v3 offset:%d'%(vr(NM+4*i,4),512+i*64))
            a('v_lshlrev_b32 v4, 2, v1'); a('v_add_u32 v4, %d, v4'%(T_CS0+h*320))
            for j in range(nj):
                a('ds_read_b32 v%d, v4 offset:%d'%(CS+j,j*64)); a('ds_read_b32 v%d, v4 offset:%d'%(CSb+j,640+j*64))
            for k in range(8): a('v_mov_b32 v%d, 0'%(SUM+k)); a('v_mov_b32 v%d, 0'%(SQ+k))
            add64(a,S_T2,S_WS,WS_GR); srd(a,SRD_G,S_T2,S_T2+1,16*12288)
            a('s_mul_i32 s%d, s%d, 12288'%(S_SO,S_RB))
            a('s_lshl_b32 s%d, s%d, 1'%(S_T0,S_CT)); a('s_add_u32 s%d, s%d, %d'%(S_T0,S_T0,h)); a('s_lshl_b32 s%d, s%d, 10'%(S_T0,S_T0))
            a('s_lshl_b32 s%d, s%d, 8'%(S_T1,S_PW)); a('s_add_u32 s%d, s%d, s%d'%(S_T0,S_T0,S_T1)); a('s_add_u32 s%d, s%d, s%d'%(S_SO2,S_SO,S_T0))
            a('s_waitcnt lgkmcnt(0)')
            for j in range(nj): a('v_add_f32 v%d, v%d, v%d'%(CS+j,CS+j,CSb+j))
            for j in range(nj):
                csr=CS+j; cspair=vr(csr&~1,2); sel=csr&1
                for k,(i,p) in enumerate(prs): a('v_pk_mul_f32 %s, %s, %s op_sel:[0,%d] op_sel_hi:[1,%d]'%(vr(TMP[k],2),vr(NM+4*i+2*p,2),cspair,sel,sel))
                for k,(i,p) in enumerate(prs):
                    r=acc(i,j)+2*p; a('v_pk_fma_f32 %s, %s, %s, %s'%(vr(r,2),vr(r,2),vr(RR+4*i+2*p,2),vr(TMP[k],2)))
                gelu_pairs(a,[acc(i,j)+2*p for (i,p) in prs],TMP,C0,C1,ONE)
                for k,(i,p) in enumerate(prs):
                    r=acc(i,j)+2*p
                    a('v_pk_add_f32 %s, %s, %s'%(vr(SUM+4*i+2*p,2),vr(SUM+4*i+2*p,2),vr(r,2)))
                    a('v_pk_fma_f32 %s, %s, %s, %s'%(vr(SQ+4*i+2*p,2),vr(r,2),vr(r,2),vr(SQ+4*i+2*p,2)))
            if EXP.get('z2st'): gc.stamp(a,1)
            for sh in (8,4,2):
                for k in range(8): a('v_add_f32_dpp v%d, v%d, v%d row_ror:%d row_mask:0xf bank_mask:0xf'%(SUM+k,SUM+k,SUM+k,sh))
                for k in range(8): a('v_add_f32_dpp v%d, v%d, v%d row_ror:%d row_mask:0xf bank_mask:0xf'%(SQ+k,SQ+k,SQ+k,sh))
            for k in range(8): a('v_add_f32_dpp v%d, v%d, v%d row_ror:1 row_mask:0xf bank_mask:0xf'%(GRN+2*k,SUM+k,SUM+k))
            for k in range(8): a('v_add_f32_dpp v%d, v%d, v%d row_ror:1 row_mask:0xf bank_mask:0xf'%(GRN+2*k+1,SQ+k,SQ+k))
            a('v_lshlrev_b32 v3, 5, v2'); a('v_cmp_eq_u32 vcc, 0, v1'); a('s_and_saveexec_b64 s[%d:%d], vcc'%(S_EX,S_EX+1))
            for i in range(2):
                for p in range(2): a('buffer_store_dwordx4 %s, v3, s[%d:%d], s%d offen offset:%d sc1'%(vr(GRN+8*i+4*p,4),SRD_G,SRD_G+3,S_SO2,i*128+p*16))
            a('s_mov_b64 exec, s[%d:%d]'%(S_EX,S_EX+1))
            if EXP.get('z2st'): gc.stamp(a,2)
            PL=72
            a('v_and_b32 v4, 31, v0'); a('v_lshrrev_b32 v5, 5, v0'); a('v_mul_u32_u24 v5, 6144, v5'); a('v_lshl_add_u32 v4, v4, 3, v5')
            a('s_lshl_b32 s%d, s%d, 8'%(S_T1,S_PW)); a('v_add_u32 v4, s%d, v4'%S_T1); a('v_add_u32 v5, 4096, v4')
            a('s_mov_b32 s%d, 0'%S_I)
            a.lab(nm+'_poll')
            for k in range(6): a('buffer_load_dwordx2 %s, v%d, s[%d:%d], s%d offen offset:%d sc1'%(vr(PL+2*k,2),4 if k<4 else 5,SRD_G,SRD_G+3,S_SO,(k%4)*1024))
            a('s_waitcnt vmcnt(0)')
            a('v_max3_u32 v6, v%d, v%d, v%d'%(PL,PL+1,PL+2))
            for k in range(3,12,2):
                a('v_max3_u32 v6, v6, v%d, v%d'%(PL+k,PL+k+1) if k+1<12 else 'v_max_u32 v6, v6, v%d'%(PL+k))
            a('v_cmp_eq_u32 s[%d:%d], -1, v6'%(S_EX,S_EX+1)); a('s_nop 1'); a('s_cmp_eq_u64 s[%d:%d], 0'%(S_EX,S_EX+1)); a('s_cbranch_scc1 %s_rdy'%nm)
            a('s_add_u32 s%d, s%d, 1'%(S_I,S_I)); a('s_cmp_lt_u32 s%d, %d'%(S_I,POLL_BOUND)); a('s_cbranch_scc1 %s_poll'%nm)
            a.lab(nm+'_rdy')
            if EXP.get('z2st'): gc.stamp(a,3)
            a('v_pk_add_f32 %s, %s, %s'%(vr(PL,2),vr(PL,2),vr(PL+2,2))); a('v_pk_add_f32 %s, %s, %s'%(vr(PL+4,2),vr(PL+4,2),vr(PL+6,2))); a('v_pk_add_f32 %s, %s, %s'%(vr(PL+8,2),vr(PL+8,2),vr(PL+10,2)))
            a('v_pk_add_f32 %s, %s, %s'%(vr(PL,2),vr(PL,2),vr(PL+4,2))); a('v_pk_add_f32 %s, %s, %s'%(vr(PL,2),vr(PL,2),vr(PL+8,2)))
            a('v_mov_b32 v%d, v%d'%(PL+2,PL)); a('v_mov_b32 v%d, v%d'%(PL+3,PL+1)); a('s_nop 1')
            a('v_permlane32_swap_b32 v%d, v%d'%(PL,PL+2)); a('v_permlane32_swap_b32 v%d, v%d'%(PL+1,PL+3)); a('s_nop 1')
            a('v_pk_add_f32 %s, %s, %s'%(vr(PL,2),vr(PL,2),vr(PL+2,2)))
            a('v_mul_f32 v%d, 0x%x, v%d'%(PL,f2u(1.0/864),PL)); a('v_mul_f32 v%d, 0x%x, v%d'%(PL+1,f2u(1.0/864),PL+1))
            a('v_fma_f32 v%d, -v%d, v%d, v%d'%(PL+1,PL,PL,PL+1)); a('v_max_f32 v%d, 0, v%d'%(PL+1,PL+1)); a('v_add_f32 v%d, 0x%x, v%d'%(PL+1,f2u(1e-5),PL+1))
            a('v_rsq_f32 v%d, v%d'%(PL+2,PL+1)); a('s_nop 0'); a('v_mul_f32 v%d, v%d, v%d'%(PL+3,PL,PL+2)); a('v_sub_f32 v%d, 0, v%d'%(PL+3,PL+3))
            a('s_lshl_b32 s%d, s%d, 8'%(S_T0,S_WAVE)); a('s_add_u32 s%d, s%d, %d'%(S_T0,S_T0,T_W2))
            a('v_and_b32 v4, 31, v0'); a('v_lshlrev_b32 v4, 2, v4'); a('v_add_u32 v4, s%d, v4'%S_T0)
            a('ds_write_b32 v4, v%d'%(PL+2)); a('ds_write_b32 v4, v%d offset:128'%(PL+3))
            a('v_lshlrev_b32 v5, 4, v2'); a('v_add_u32 v5, s%d, v5'%S_T0)
            a('s_waitcnt lgkmcnt(0)')
            for i in range(2):
                a('ds_read_b128 %s, v5 offset:%d'%(vr(RR+4*i,4),i*64)); a('ds_read_b128 %s, v5 offset:%d'%(vr(84+4*i,4),128+i*64))
            NM2=84
            a('s_mul_i32 s%d, s%d, %d'%(S_T0,S_CT,Z2_CT)); a('s_lshl_b32 s%d, s%d, 1'%(S_T1,S_RB)); a('s_lshr_b32 s%d, s%d, 1'%(S_T2,S_PW))
            a('s_add_u32 s%d, s%d, s%d'%(S_T1,S_T1,S_T2)); a('s_mul_i32 s%d, s%d, 18432'%(S_T1,S_T1)); a('s_add_u32 s%d, s%d, s%d'%(S_T0,S_T0,S_T1))
            a('s_and_b32 s%d, s%d, 1'%(S_T1,S_PW)); a('s_mul_i32 s%d, s%d, 9216'%(S_T1,S_T1)); a('s_add_u32 s%d, s%d, s%d'%(S_T0,S_T0,S_T1))
            a('s_add_u32 s%d, s%d, %d'%(S_SO,S_T0,5120*h))
            srd(a,SRD_O,S_WS,S_WS+1,6*Z2_CT)
            a('v_lshlrev_b32 v%d, 4, v0'%VO)
            a('s_waitcnt lgkmcnt(0)')
            for j in range(nj):
                for k,(i,p) in enumerate(prs):
                    r=acc(i,j)+2*p; a('v_pk_fma_f32 %s, %s, %s, %s'%(vr(r,2),vr(r,2),vr(RR+4*i+2*p,2),vr(NM2+4*i+2*p,2)))
                o=PK+4*(j&1)
                for k,(i,p) in enumerate(prs):
                    r=acc(i,j)+2*p; a('v_cvt_pk_bf16_f32 v%d, v%d, v%d'%(o+k,r,r+1))
                a('s_nop 1')
                a('v_permlane32_swap_b32 v%d, v%d'%(o,o+2)); a('v_permlane32_swap_b32 v%d, v%d'%(o+1,o+3)); a('s_nop 1')
                a('v_permlane16_swap_b32 v%d, v%d'%(o,o+2)); a('v_permlane16_swap_b32 v%d, v%d'%(o+1,o+3))
                if j<4: a('buffer_store_dwordx4 %s, v%d, s[%d:%d], s%d offen offset:%d%s'%(vr(o,4),VO,SRD_O,SRD_O+3,S_SO,j*1024,g2.STF))
                else:
                    a('s_add_u32 s%d, s%d, 4096'%(S_SO,S_SO)); a('buffer_store_dwordx4 %s, v%d, s[%d:%d], s%d offen%s'%(vr(o,4),VO,SRD_O,SRD_O+3,S_SO,g2.STF))
            a('s_branch K1_end')
        else:
            RR=64; NM=66; CS=68; CSb=88; PK=100; VO=118
            a('s_lshl_b32 s%d, s%d, 7'%(S_T0,S_PW)); a('v_lshlrev_b32 v3, 2, v1'); a('v_add_u32 v3, s%d, v3'%S_T0); a('v_add_u32 v3, %d, v3'%T_R)
            for i in range(2):
                a('ds_read_b32 v%d, v3 offset:%d'%(RR+i,i*64)); a('ds_read_b32 v%d, v3 offset:%d'%(NM+i,512+i*64))
            a('v_lshlrev_b32 v4, 4, v2'); a('v_add_u32 v4, %d, v4'%(T_CS0+320*h))
            for j in range(nj):
                a('ds_read_b128 %s, v4 offset:%d'%(vr(CS+4*j,4),j*64)); a('ds_read_b128 %s, v4 offset:%d'%(vr(CSb+4*j,4),640+j*64))
            a('s_mul_i32 s%d, s%d, 6'%(S_T0,S_RB)); a('s_add_u32 s%d, s%d, s%d'%(S_T0,S_T0,S_CT)); a('s_lshl_b32 s%d, s%d, 3'%(S_T0,S_T0))
            a('s_add_u32 s%d, s%d, s%d'%(S_T0,S_T0,S_WAVE)); a('s_mul_i32 s%d, s%d, 5120'%(S_SO,S_T0))
            add64(a,S_T2,S_WS,WS_Z1); srd(a,SRD_O,S_T2,S_T2+1,96*40960)
            a('v_lshlrev_b32 v%d, 4, v0'%VO)
            a('s_waitcnt lgkmcnt(0)')
            for j in range(nj):
                for p in range(2): a('v_pk_add_f32 %s, %s, %s'%(vr(CS+4*j+2*p,2),vr(CS+4*j+2*p,2),vr(CSb+4*j+2*p,2)))
            for j in range(nj):
                for k,(i,p) in enumerate(prs): a('v_pk_mul_f32 %s, %s, %s op_sel:[0,%d] op_sel_hi:[1,%d]'%(vr(TMP[k],2),vr(CS+4*j+2*p,2),vr(NM,2),i,i))
                for k,(i,p) in enumerate(prs):
                    r=acc(i,j)+2*p; a('v_pk_fma_f32 %s, %s, %s, %s op_sel:[0,%d,0] op_sel_hi:[1,%d,1]'%(vr(r,2),vr(r,2),vr(RR,2),vr(TMP[k],2),i,i))
                gelu_pairs(a,[acc(i,j)+2*p for (i,p) in prs],TMP,C0,C1,ONE)
                o=PK+4*(j&1)
                for k,(i,p) in enumerate(prs):
                    r=acc(i,j)+2*p; a('v_cvt_pk_bf16_f32 v%d, v%d, v%d'%(o+k,r,r+1))
                if j<4: a('buffer_store_dwordx4 %s, v%d, s[%d:%d], s%d offen offset:%d%s'%(vr(o,4),VO,SRD_O,SRD_O+3,S_SO,j*1024,g2.STF))
                else:
                    a('s_add_u32 s%d, s%d, 4096'%(S_SO,S_SO)); a('buffer_store_dwordx4 %s, v%d, s[%d:%d], s%d offen%s'%(vr(o,4),VO,SRD_O,SRD_O+3,S_SO,g2.STF))
            a('s_branch K1_end')
    a.lab('K1Z_prod')
    XO=[2,3]; WO=[4,5,6,7,8]
    if EXP.get('same'): a('s_mov_b32 s%d, 0'%S_RB); a('s_mov_b32 s%d, 0'%S_CT)
    a('s_sub_u32 s%d, s%d, 8'%(S_PW,S_WAVE))
    a('v_lshrrev_b32 v20, 3, v0'); a('s_lshl_b32 s%d, s%d, 5'%(S_T0,S_PW)); a('v_add_u32 v21, s%d, v20'%S_T0); a('v_mul_u32_u24 v21, 1280, v21')
    a('v_and_b32 v22, 7, v0'); a('v_xor_b32 v22, v22, v20')
    a('v_lshl_add_u32 v%d, v22, 4, v21'%XO[0]); a('v_mov_b32 v%d, v%d'%(XO[1],XO[0]))
    a('s_mul_i32 s%d, s%d, 288'%(S_T0,S_CT)); a('s_cmp_eq_u32 s%d, 0'%S_PAR); a('s_cselect_b32 s%d, 1728, 0'%S_T1); a('s_cselect_b32 s%d, 0, 1728'%S_T2)
    a('s_add_u32 s%d, s%d, s%d'%(S_T1,S_T1,S_T0)); a('s_add_u32 s%d, s%d, s%d'%(S_T2,S_T2,S_T0))
    a('v_mov_b32 v24, s%d'%S_T1); a('v_mov_b32 v25, s%d'%S_T2)
    for i in range(5):
        a('s_lshl_b32 s%d, s%d, 6'%(S_T0,S_PW)); a('s_add_u32 s%d, s%d, %d'%(S_T0,S_T0,256*i)); a('v_add_u32 v20, s%d, v0'%S_T0)
        a('v_mul_u32_u24 v21, 3641, v20'); a('v_lshrrev_b32 v21, 16, v21')
        a('v_mul_u32_u24 v22, 18, v21'); a('v_sub_u32 v22, v20, v22'); a('v_cmp_gt_u32 vcc, 10, v22')
        a('v_and_b32 v26, 0x23, v21'); a('v_bfe_u32 v27, v21, 2, 2'); a('v_lshl_or_b32 v26, v27, 3, v26'); a('v_bfe_u32 v27, v21, 4, 1'); a('v_lshl_or_b32 v21, v27, 2, v26')
        a('v_mul_u32_u24 v21, 3456, v21'); a('v_lshl_add_u32 v21, v22, 4, v21')
        a('v_cndmask_b32 v23, v25, v24, vcc'); a('v_add_u32 v%d, v21, v23'%WO[i])
    a('s_mov_b32 s%d, 0'%S_SLI)
    krot(a); a('s_lshl_b32 s%d, s%d, 7'%(S_KX,S_T0)); a('s_mul_i32 s%d, s%d, %d'%(S_KW,S_T0,64*3456))
    a('s_waitcnt lgkmcnt(0)')
    a('s_mul_i32 s%d, s%d, %d'%(S_T0,S_RB,128*1280)); add64(a,S_X,S_X,'s%d'%S_T0); srd(a,SRD_X,S_X,S_X+1,128*1280)
    srd(a,SRD_W,S_WIN,S_WIN+1,640*3456)
    def issueZ():
        a('s_lshl_b32 s%d, s%d, 12'%(S_T,S_PW)); a('s_add_u32 s%d, s%d, s%d'%(S_T,S_T,S_SLI))
        for j in range(4):
            a('s_add_u32 m0, s%d, %d'%(S_T,j*1024)); a('s_add_u32 s%d, s%d, %d'%(S_SO,S_KX,j*10240))
            a(ld('buffer_load_dwordx4 v%d, s[%d:%d], s%d offen lds'%(XO[j&1],SRD_X,SRD_X+3,S_SO)))
        a('s_lshl_b32 s%d, s%d, 10'%(S_T,S_PW)); a('s_add_u32 s%d, s%d, s%d'%(S_T,S_T,S_SLI))
        lab=a.newlab('K1Zp_s')
        for i in range(5):
            if i==4: a('s_cmp_lt_u32 s%d, 2'%S_PW); a('s_cbranch_scc0 %s'%lab)
            a('s_add_u32 m0, s%d, %d'%(S_T,16384+i*4096)); a('s_nop 0')
            a(ld('buffer_load_dwordx4 v%d, s[%d:%d], s%d offen lds'%(WO[i],SRD_W,SRD_W+3,S_KW)))
        a.lab(lab)
        slot_advance(a,S_SLI,SLZ); a('s_add_u32 s%d, s%d, 128'%(S_KX,S_KX)); a('s_add_u32 s%d, s%d, %d'%(S_KW,S_KW,64*3456))
        a('s_cmp_eq_u32 s%d, 1280'%S_KX); a('s_cselect_b32 s%d, 0, s%d'%(S_KX,S_KX)); a('s_cselect_b32 s%d, 0, s%d'%(S_KW,S_KW))
    dma_producer(a,'K1Zp',NK1,8,issueZ)
    a('s_branch K1_end')
    a.lab('K1Z_work')
    a('s_sub_u32 s%d, s%d, 12'%(S_PW,S_WAVE))
    a('s_waitcnt lgkmcnt(0)')
    worker(a,'K1Zw',SLZ,True)
    a('s_waitcnt lgkmcnt(0)'); a('s_barrier'); a('s_branch K1_end')

    a.lab('K1A_entry')
    a('s_sub_u32 s%d, s%d, 24'%(S_T0,S_J)); a('s_lshr_b32 s%d, s%d, 1'%(S_T1,S_T0)); a('s_and_b32 s%d, s%d, 1'%(S_CT,S_T0))
    a('s_lshl_b32 s%d, s%d, 2'%(S_RB,S_G)); a('s_add_u32 s%d, s%d, s%d'%(S_RB,S_RB,S_T1))
    a('s_cmp_ge_u32 s%d, 12'%S_WAVE); a('s_cbranch_scc1 K1A_work')
    a('s_cmp_ge_u32 s%d, 8'%S_WAVE); a('s_cbranch_scc1 K1A_prod')
    ACC=16; FA=56; FB=84; XA=[112,113]; WA2=[114,115]
    a('s_and_b32 s%d, s%d, 3'%(S_PW,S_WAVE)); a('s_lshr_b32 s%d, s%d, 2'%(S_H,S_WAVE))
    a('v_and_b32 v1, 15, v0'); a('v_lshrrev_b32 v2, 4, v0'); a('v_and_b32 v3, 7, v0'); a('v_xor_b32 v3, v3, v2'); a('v_lshlrev_b32 v3, 4, v3')
    a('v_lshl_add_u32 v3, v1, 7, v3')
    a('s_lshl_b32 s%d, s%d, 11'%(S_T0,S_PW)); a('v_add_u32 v%d, s%d, v3'%(XA[0],S_T0)); a('v_xor_b32 v%d, 64, v%d'%(XA[1],XA[0]))
    a('s_mul_i32 s%d, s%d, %d'%(S_T0,S_H,80*128)); a('s_add_u32 s%d, s%d, 16384'%(S_T0,S_T0)); a('v_add_u32 v%d, s%d, v3'%(WA2[0],S_T0)); a('v_xor_b32 v%d, 64, v%d'%(WA2[1],WA2[0]))
    ln1_row(a)
    for k in range(40): a('v_mov_b32 v%d, 0'%(ACC+k))
    ln1_row_finish(a)
    def accA(tb,j): return ACC+(j*2+tb)*4
    def rdA(st,sub):
        F=FA if st==0 else FB; m=[]
        for tb in range(2): m.append('ds_read_b128 %s, v%d offset:%d'%(vr(F+tb*4,4),XA[sub],tb*8192))
        for j in range(5): m.append('ds_read_b128 %s, v%d offset:%d'%(vr(F+8+j*4,4),WA2[sub],j*2048))
        return m
    def mfA(st):
        F=FA if st==0 else FB; m=[]
        for j in range(5):
            for tb in range(2):
                c=vr(accA(tb,j),4); m.append('v_mfma_f32_16x16x32_bf16 %s, %s, %s, %s'%(c,vr(F+tb*4,4),vr(F+8+j*4,4),c))
        return m
    a('s_cmp_eq_u32 s%d, 0'%S_H); a('s_cbranch_scc0 K1A_c1')
    consumer_loop(a,'K1A0',SLA,NK1,XA+WA2,rdA,mfA,lag=True,hook=ln1_hook(a),hook_at=2)
    a('s_branch K1A_cd')
    a.lab('K1A_c1')
    consumer_loop(a,'K1A1',SLA,NK1,XA+WA2,rdA,mfA,lag=False,hook=ln1_hook(a),hook_at=2)
    a.lab('K1A_cd')
    a('s_barrier')
    if EXP.get('fine') is None: gc.stamp(a,4)
    RT=56; RB_=60; RO=64; T4=[66,68]; PK=70; VO=76
    a('s_lshl_b32 s%d, s%d, 6'%(S_T0,S_PW)); a('v_lshlrev_b32 v3, 4, v2'); a('v_add_u32 v3, s%d, v3'%S_T0); a('v_add_u32 v3, %d, v3'%T_R)
    a('ds_read_b128 %s, v3'%vr(RT,4)); a('ds_read_b128 %s, v3 offset:256'%vr(RB_,4))
    a('s_mul_i32 s%d, s%d, %d'%(S_T0,S_HALF,AE_MAT)); a('s_lshl_b32 s%d, s%d, 1'%(S_T1,S_CT)); a('s_add_u32 s%d, s%d, s%d'%(S_T1,S_T1,S_H))
    a('s_mul_i32 s%d, s%d, 163840'%(S_T1,S_T1)); a('s_add_u32 s%d, s%d, s%d'%(S_T0,S_T0,S_T1)); a('s_mul_i32 s%d, s%d, 10240'%(S_T1,S_RB))
    a('s_add_u32 s%d, s%d, s%d'%(S_T0,S_T0,S_T1)); a('s_lshr_b32 s%d, s%d, 1'%(S_T1,S_PW)); a('s_mul_i32 s%d, s%d, 5120'%(S_T1,S_T1)); a('s_add_u32 s%d, s%d, s%d'%(S_SO,S_T0,S_T1))
    add64(a,S_T2,S_WS,WS_AE); srd(a,SRD_O,S_T2,S_T2+1,2*AE_MAT)
    a('s_and_b32 s%d, s%d, 1'%(S_T0,S_PW)); a('s_lshl_b32 s%d, s%d, 9'%(S_T0,S_T0))
    a('v_lshrrev_b32 v3, 1, v2'); a('v_lshlrev_b32 v3, 8, v3'); a('v_lshl_add_u32 v3, v1, 4, v3'); a('v_and_b32 v4, 1, v2'); a('v_lshl_add_u32 v3, v4, 3, v3')
    a('v_add_u32 v%d, s%d, v3'%(VO,S_T0))
    a('s_waitcnt lgkmcnt(0)')
    a('s_or_b32 s%d, s%d, s%d'%(S_T0,S_RB,S_PW)); a('s_or_b32 s%d, s%d, s%d'%(S_T0,S_T0,S_HALF)); a('s_cmp_eq_u32 s%d, 0'%S_T0); a('s_cbranch_scc0 K1A_nosp')
    add64(a,S_T2,S_WS,WS_A1024); srd(a,SRD_O2,S_T2,S_T2+1,1280)
    a('s_mul_i32 s%d, s%d, 640'%(S_T0,S_CT)); a('s_mul_i32 s%d, s%d, 320'%(S_T1,S_H)); a('s_add_u32 s%d, s%d, s%d'%(S_T0,S_T0,S_T1))
    a('v_lshlrev_b32 v5, 2, v1')
    a('v_cmp_gt_u32 vcc, 16, v0'); a('s_and_saveexec_b64 s[%d:%d], vcc'%(S_EX,S_EX+1))
    for j in range(5):
        a('v_mul_f32 v%d, v%d, v%d'%(RO,accA(1,j),RB_))
        a('buffer_store_dword v%d, v5, s[%d:%d], s%d offen offset:%d%s'%(RO,SRD_O2,SRD_O2+3,S_T0,j*64,g2.STF)); a('s_nop 0')
    a('v_mov_b32 v%d, 0'%RB_)
    a('s_mov_b64 exec, s[%d:%d]'%(S_EX,S_EX+1))
    a.lab('K1A_nosp')
    a('s_cmp_eq_u32 s%d, 0'%S_HALF); a('s_cselect_b32 s%d, 1.0, -1.0'%S_T0)
    for k in range(4): a('v_mul_f32 v%d, s%d, v%d'%(RB_+k,S_T0,RB_+k))
    for j in range(5):
        for p in range(2): a('v_pk_mul_f32 %s, %s, %s'%(vr(T4[p],2),vr(accA(1,j)+2*p,2),vr(RB_+2*p,2)))
        for p in range(2): a('v_pk_fma_f32 %s, %s, %s, %s'%(vr(T4[p],2),vr(accA(0,j)+2*p,2),vr(RT+2*p,2),vr(T4[p],2)))
        for p in range(2): a('v_cvt_pk_bf16_f32 v%d, v%d, v%d'%(PK+p+2*(j&1),T4[p],T4[p]+1))
        if j<4: a('buffer_store_dwordx2 %s, v%d, s[%d:%d], s%d offen offset:%d%s'%(vr(PK+2*(j&1),2),VO,SRD_O,SRD_O+3,S_SO,j*1024,g2.STF))
        else:
            a('s_add_u32 s%d, s%d, 4096'%(S_SO,S_SO)); a('buffer_store_dwordx2 %s, v%d, s[%d:%d], s%d offen%s'%(vr(PK+2*(j&1),2),VO,SRD_O,SRD_O+3,S_SO,g2.STF))
    a('s_branch K1_end')
    a.lab('K1A_prod')
    XO4=[2,3,4,5]; WO1=6
    if EXP.get('same'): a('s_mov_b32 s%d, 0'%S_RB); a('s_mov_b32 s%d, 0'%S_CT)
    a('s_sub_u32 s%d, s%d, 8'%(S_PW,S_WAVE))
    a('v_lshrrev_b32 v20, 3, v0'); a('v_and_b32 v22, 7, v0'); a('v_xor_b32 v22, v22, v20'); a('v_lshlrev_b32 v22, 4, v22')
    a('s_lshl_b32 s%d, s%d, 6'%(S_T0,S_RB))
    a('s_cmp_lt_u32 s%d, 2'%S_PW); a('s_cbranch_scc0 K1Ap_bot')
    a('s_lshl_b32 s%d, s%d, 5'%(S_T1,S_PW)); a('s_add_u32 s%d, s%d, s%d'%(S_T1,S_T1,S_T0))
    for j in range(4):
        a('v_add_u32 v21, s%d, v20'%S_T1); a('v_add_u32 v21, %d, v21'%(8*j)); a('v_mul_u32_u24 v21, 1280, v21'); a('v_add_u32 v%d, v21, v22'%XO4[j])
    a('s_branch K1Ap_xd')
    a.lab('K1Ap_bot')
    a('s_sub_u32 s%d, s%d, 2'%(S_T1,S_PW)); a('s_lshl_b32 s%d, s%d, 5'%(S_T1,S_T1)); a('s_add_u32 s%d, s%d, s%d'%(S_T1,S_T1,S_T0)); a('s_sub_u32 s%d, 2048, s%d'%(S_T1,S_T1))
    for j in range(4):
        a('v_sub_u32 v21, s%d, v20'%S_T1); a('v_subrev_u32 v21, %d, v21'%(8*j))
        if j==0:
            a('v_cmp_eq_u32 vcc, 2048, v21'); a('v_mov_b32 v23, 1024'); a('s_nop 0'); a('v_cndmask_b32 v21, v21, v23, vcc')
        a('v_mul_u32_u24 v21, 1280, v21'); a('v_add_u32 v%d, v21, v22'%XO4[j])
    a.lab('K1Ap_xd')
    a('s_mul_i32 s%d, s%d, 40'%(S_T0,S_PW)); a('v_add_u32 v21, s%d, v20'%S_T0); a('v_mul_u32_u24 v21, 1280, v21'); a('v_add_u32 v%d, v21, v22'%WO1)
    a('s_mov_b32 s%d, 0'%S_SLI)
    krot(a); a('s_lshl_b32 s%d, s%d, 7'%(S_KX,S_T0))
    a('s_waitcnt lgkmcnt(0)')
    srd(a,SRD_X,S_X,S_X+1,2048*1280)
    a('s_cmp_eq_u32 s%d, 0'%S_HALF); a('s_cselect_b32 s%d, s%d, s%d'%(S_T2,S_WDRE,S_WDIM)); a('s_cselect_b32 s%d, s%d, s%d'%(S_T3,S_WDRE+1,S_WDIM+1))
    a('s_mul_i32 s%d, s%d, %d'%(S_T0,S_CT,160*1280)); a('s_add_u32 s%d, s%d, 1280'%(S_T0,S_T0)); add64(a,S_T2,S_T2,'s%d'%S_T0)
    srd(a,SRD_W,S_T2,S_T2+1,160*1280)
    def issueA():
        a('s_lshl_b32 s%d, s%d, 12'%(S_T,S_PW)); a('s_add_u32 s%d, s%d, s%d'%(S_T,S_T,S_SLI))
        for j in range(4):
            a('s_add_u32 m0, s%d, %d'%(S_T,j*1024)); a('s_nop 0')
            a(ld('buffer_load_dwordx4 v%d, s[%d:%d], s%d offen lds'%(XO4[j],SRD_X,SRD_X+3,S_KX)))
        a('s_mul_i32 s%d, s%d, 5120'%(S_T,S_PW)); a('s_add_u32 s%d, s%d, s%d'%(S_T,S_T,S_SLI))
        for j in range(5):
            a('s_add_u32 m0, s%d, %d'%(S_T,16384+j*1024)); a('s_add_u32 s%d, s%d, %d'%(S_SO,S_KX,j*10240))
            a(ld('buffer_load_dwordx4 v%d, s[%d:%d], s%d offen lds'%(WO1,SRD_W,SRD_W+3,S_SO)))
        slot_advance(a,S_SLI,SLA); a('s_add_u32 s%d, s%d, 128'%(S_KX,S_KX))
        a('s_cmp_eq_u32 s%d, 1280'%S_KX); a('s_cselect_b32 s%d, 0, s%d'%(S_KX,S_KX))
    dma_producer(a,'K1Ap',NK1,9,issueA)
    a('s_branch K1_end')
    a.lab('K1A_work')
    a('s_sub_u32 s%d, s%d, 12'%(S_PW,S_WAVE))
    a('s_waitcnt lgkmcnt(0)')
    worker(a,'K1Aw',SLA,False)
    a('s_waitcnt lgkmcnt(0)'); a('s_barrier')
    kernel_tail(a,'K1',0,S_WS)
```

```python
from gen_common import *
import gen_common as gc
import struct
def f2u(f): return struct.unpack('<I',struct.pack('<f',f))[0]
WS_GR = 0x08D0000
WS_FL  = 0x08CC000
FUSED=[False]
WS_LN1 = 0x08C8000
NS=4
S_WAVE=32; S_XCD=33; S_J=34; S_G=35; S_HALF=36; S_RB=37; S_CT=38; S_PW=39; S_H=40
S_I=41; S_SLI=42; S_SLC=43; S_KX=44; S_KW=45; S_T=46; S_SO=47; S_T0=48; S_T1=49; S_T2=50; S_T3=51; S_SO2=52; S_PAR=53
S_EX=54
EXP={}
LDF=''
STF=''

def srd(a,d,lo,hi,size):
    a('s_mov_b32 s%d, s%d'%(d,lo)); a('s_mov_b32 s%d, s%d'%(d+1,hi))
    if isinstance(size,int): a('s_mov_b32 s%d, 0x%x'%(d+2,size))
    else: a('s_mov_b32 s%d, %s'%(d+2,size))
    a('s_mov_b32 s%d, 0x00020000'%(d+3))
def add64(a,dlo,slo,off):
    o = off if isinstance(off,str) else '0x%x'%off
    a('s_add_u32 s%d, s%d, %s'%(dlo,slo,o)); a('s_addc_u32 s%d, s%d, 0'%(dlo+1,slo+1))
def slot_advance(a,s,SL,ns=NS):
    a('s_add_u32 s%d, s%d, %d'%(s,s,SL)); a('s_cmp_eq_u32 s%d, %d'%(s,ns*SL)); a('s_cselect_b32 s%d, 0, s%d'%(s,s))

def dma_producer(a,name,n,c,issue,tail=None,phase=1,s_ws=6,post=0):
    if EXP.get('pprio'): a('s_setprio %d'%EXP['pprio'])
    D=EXP.get('depth',3)
    dep_barrier(a,name,phase,s_ws,poller=True)
    gc.stamp(a,1)
    issue(); issue()
    gc.stamp(a,2)
    a('s_waitcnt vmcnt(%d)'%c); gc.stamp(a,3); a('s_barrier')
    for _ in range(D-1): issue()
    a('s_mov_b32 s%d, %d'%(S_I,n-1-D))
    a.lab(name+'_loop')
    a('s_waitcnt vmcnt(%d)'%min(63,(D-1)*c)); a('s_barrier')
    issue()
    a('s_sub_u32 s%d, s%d, 1'%(S_I,S_I)); a('s_cmp_lg_u32 s%d, 0'%S_I); a('s_cbranch_scc1 %s_loop'%name)
    for r in range(D-1,-1,-1):
        a('s_waitcnt vmcnt(%d)'%min(63,r*c)); a('s_barrier')
    gc.stamp(a,4)
    if FUSED[0]:
        for _ in range(post): a('s_barrier')

def consumer_loop(a,name,SL,n,addr_regs,reads,mfmas,ns=NS,hook=None,hook_at=2,lag=False,nsub=2,per=1,dly=None,phase=1):
    def R(s): return [] if EXP.get('noread') else reads(s,s)
    def M(s): return [] if EXP.get('nomfma') else mfmas(s)
    book=['s_mov_b32 s%d, s%d'%(S_T0,S_SLC),'s_add_u32 s%d, s%d, %d'%(S_SLC,S_SLC,SL),'s_cmp_eq_u32 s%d, %d'%(S_SLC,ns*SL),'s_cselect_b32 s%d, 0, s%d'%(S_SLC,S_SLC),
          's_sub_u32 s%d, s%d, s%d'%(S_T0,S_SLC,S_T0),'s_add_u32 s%d, s%d, 1'%(S_I,S_I)]
    upd=['v_add_u32 v%d, s%d, v%d'%(r,S_T0,r) for r in addr_regs]
    a('s_mov_b32 s%d, 0'%S_I); a('s_mov_b32 s%d, 0'%S_SLC)
    dep_barrier(a,name,phase,6)
    if EXP.get('fine') is None: gc.stamp(a,1)
    if not lag:
        a('s_barrier')
        if EXP.get('fine') is None: gc.stamp(a,2)
        a.lab(name+'_loop')
        fine(a,1,name)
        if not EXP.get('noprio'): a('s_setprio 1')
        for s_ in range(nsub):
            for x in R(s_): a(x)
        if not EXP.get('noprio'): a('s_setprio 0')
        fine(a,2,name)
        for x in book: a(x)
        for x in upd: a(x)
        emit_hooks(a,name,hook,hook_at)
        if EXP.get('fine') is not None: a('s_sub_u32 s%d, s%d, 1'%(S_I,S_I))
        for s_ in range(nsub):
            later=sum(len(R(t)) for t in range(s_+1,nsub))
            a('s_waitcnt lgkmcnt(%d)'%(0 if EXP.get('fine') is not None else min(later,15)))
            if s_==0: fine(a,3,name)
            for x in M(s_): a(x)
        fine(a,4,name)
        if EXP.get('fine') is not None: a('s_add_u32 s%d, s%d, 1'%(S_I,S_I))
        a('s_cmp_lt_u32 s%d, %d'%(S_I,n))
        a('s_cbranch_scc0 %s_done'%name)
        a('s_barrier')
        a('s_branch %s_loop'%name)
        a.lab(name+'_done')
    else:
        a('s_barrier')
        if EXP.get('fine') is None: gc.stamp(a,2)
        for s_ in range(nsub):
            for x in R(s_): a(x)
        for x in book: a(x)
        for x in upd: a(x)
        if isinstance(hook,dict) and 1 in hook: hook[1]()
        a('s_waitcnt lgkmcnt(0)')
        a.lab(name+'_loop')
        a('s_barrier')
        fine(a,1,name)
        if EXP.get('noilv'):
            for s_ in range(nsub):
                for x in M(s_): a(x)
            fine(a,2,name)
            for s_ in range(nsub):
                for x in R(s_): a(x)
            fine(a,3,name)
        else:
            Ms=[M(s_) for s_ in range(nsub)]; allM=[m for x in Ms for m in x]
            ends=[sum(len(Ms[t]) for t in range(s_+1)) for s_ in range(nsub)]
            pend=[]
            if dly is None: dly=max(ends[0],len(allM)-len(R(0))) if allM else 0
            nxt=0
            for k_,m in enumerate(allM):
                a(m)
                while nxt<nsub-1 and k_+1>=ends[nxt]:
                    pend+=R(nxt); nxt+=1
                if k_+1>=dly:
                    for _ in range(min(per,len(pend))): a(pend.pop(0))
            fine(a,2,name)
            for x in pend: a(x)
            for x in R(nsub-1): a(x)
            fine(a,3,name)
        for x in book: a(x)
        for x in upd: a(x)
        emit_hooks(a,name,({k_:v_ for k_,v_ in hook.items() if k_!=1} if isinstance(hook,dict) else hook),hook_at)
        a('s_waitcnt lgkmcnt(0)')
        if EXP.get('fine') is not None:
            a('s_sub_u32 s%d, s%d, 1'%(S_I,S_I)); fine(a,4,name); a('s_add_u32 s%d, s%d, 1'%(S_I,S_I))
        a('s_cmp_lt_u32 s%d, %d'%(S_I,n))
        a('s_cbranch_scc1 %s_loop'%name)
        for s_ in range(nsub):
            for x in M(s_): a(x)
    if EXP.get('fine') is None: gc.stamp(a,3)

def emit_hooks(a,name,hook,hook_at):
    if hook is None: return
    H=hook if isinstance(hook,dict) else {hook_at:hook}
    for k,(at,fn) in enumerate(sorted(H.items())):
        a('s_cmp_eq_u32 s%d, %d'%(S_I,at)); a('s_cbranch_scc0 %s_nh%d'%(name,k)); fn(); a.lab('%s_nh%d'%(name,k))
def fine(a,k,name):
    if EXP.get('fine') is not None and gc.STAMPS:
        l='%s_f%d'%(name,k)
        a('s_cmp_eq_u32 s%d, %d'%(S_I,EXP['fine'])); a('s_cbranch_scc0 %s'%l); a('s_memtime s[%d:%d]'%(64+2*k,65+2*k)); a.lab(l)
def mix(a,M,F,per=2,lead=0):
    F=list(F)
    for _ in range(min(lead,len(F))): a(F.pop(0))
    for m in M:
        a(m)
        for _ in range(min(per,len(F))): a(F.pop(0))
    for x in F: a(x)

GC0=-2.0*0.7978845608028654*1.4426950408889634
GC1=GC0*0.044715
def gelu_pairs(a,pre,tmp,C0,C1,ONE):
    n=len(pre)
    for k in range(n): a('v_pk_mul_f32 %s, %s, %s'%(vr(tmp[k],2),vr(pre[k],2),vr(pre[k],2)))
    for k in range(n): a('v_pk_fma_f32 %s, %s, %s, %s'%(vr(tmp[k],2),vr(tmp[k],2),vr(C1,2),vr(C0,2)))
    for k in range(n): a('v_pk_mul_f32 %s, %s, %s'%(vr(tmp[k],2),vr(tmp[k],2),vr(pre[k],2)))
    for k in range(n):
        a('v_exp_f32 v%d, v%d'%(tmp[k],tmp[k])); a('v_exp_f32 v%d, v%d'%(tmp[k]+1,tmp[k]+1))
    for k in range(n): a('v_pk_add_f32 %s, %s, %s'%(vr(tmp[k],2),vr(tmp[k],2),vr(ONE,2)))
    for k in range(n):
        a('v_rcp_f32 v%d, v%d'%(tmp[k],tmp[k])); a('v_rcp_f32 v%d, v%d'%(tmp[k]+1,tmp[k]+1))
    for k in range(n): a('v_pk_mul_f32 %s, %s, %s'%(vr(pre[k],2),vr(pre[k],2),vr(tmp[k],2)))
def kernel_head(a,kname,pre,nwg=256):
    KCUR[0]=int(pre[1])
    if FUSED[0] and pre!='K1':
        a.lab(pre+'_entry'); gc.stamp_init(a); return
    a.raw('.p2align 8'); a.raw('.type %s,@function'%kname); a.lab(kname)
    a('s_cmp_ge_u32 s2, %d'%nwg); a('s_cbranch_scc1 %s_exit'%('K3' if FUSED[0] else pre)); gc.stamp_init(a)
def wave_setup(a,pre):
    if FUSED[0] and pre!='K1': return
    a('v_lshrrev_b32 v1, 6, v0'); a('v_and_b32 v0, 63, v0'); a('s_nop 0')
    a('v_readfirstlane_b32 s%d, v1'%S_WAVE)
def kernel_tail(a,pre,kidx,s_ws):
    a.lab(pre+'_end')
    if FUSED[0] and pre!='K3':
        a('s_waitcnt vmcnt(0) lgkmcnt(0)'); a('s_barrier')
        l='%s_fl'%pre
        a('s_cmp_eq_u32 s%d, 0'%S_WAVE); a('s_cbranch_scc0 %s'%l)
        add64(a,88,s_ws,WS_FL+(0x2000 if pre=='K2' else 0)); srd(a,92,88,89,0x2000)
        a('s_lshl_b32 s88, s2, 5'); a('v_mov_b32 v2, 1'); a('v_mov_b32 v3, 0'); a('s_mov_b32 exec_lo, 1'); a('s_mov_b32 exec_hi, 0')
        a('buffer_store_dword v2, v3, s[92:95], s88 offen sc1'); a('s_mov_b64 exec, -1')
        a.lab(l)
        gc.stamp_dump(a,kidx,s_ws,S_WAVE)
        a('s_setprio 0')
        return
    gc.stamp_dump(a,kidx,s_ws,S_WAVE); a.lab(pre+'_exit'); a('s_endpgm')
def dep_poll(a,name,phase,s_ws):
    add64(a,88,s_ws,WS_FL+(0x2000 if phase==3 else 0)); srd(a,92,88,89,0x2000)
    a('s_and_b32 s88, s2, 7'); a('s_lshr_b32 s89, s2, 3')
    a('v_mov_b32 v31, 0x7fffff00')
    if phase==2:
        a('s_cmp_ge_u32 s89, 24'); a('s_cbranch_scc1 %s_t'%name)
        a('s_mul_i32 s90, s89, 43'); a('s_lshr_b32 s90, s90, 8'); a('s_mul_i32 s90, s90, 6'); a('s_sub_u32 s90, s89, s90')
        a('s_cmp_ge_u32 s90, 3'); a('s_cselect_b32 s91, 1, 0'); a('s_cselect_b32 s89, 3, 0'); a('s_sub_u32 s90, s90, s89'); a('s_lshl_b32 s90, s90, 1')
        a('v_lshrrev_b32 v28, 3, v0'); a('v_lshlrev_b32 v28, 1, v28'); a('v_add_u32 v28, s91, v28')
        a('v_bfe_u32 v29, v0, 1, 2'); a('v_mul_u32_u24 v29, 6, v29'); a('v_and_b32 v30, 1, v0'); a('v_add_u32 v29, v29, v30'); a('v_add_u32 v29, s90, v29')
        a('v_lshl_add_u32 v28, v29, 3, v28'); a('v_cmp_gt_u32 vcc, 32, v0'); a('s_branch %s_go'%name)
        a.lab(name+'_t')
        a('s_sub_u32 s89, s89, 24'); a('s_and_b32 s89, s89, 3'); a('s_lshr_b32 s89, s89, 1'); a('s_add_u32 s89, s89, 24'); a('s_and_b32 s88, s88, 1')
        a('v_lshrrev_b32 v28, 2, v0'); a('v_lshlrev_b32 v28, 1, v28'); a('v_add_u32 v28, s88, v28')
        a('v_and_b32 v29, 3, v0'); a('v_lshlrev_b32 v29, 1, v29'); a('v_add_u32 v29, s89, v29')
        a('v_lshl_add_u32 v28, v29, 3, v28'); a('v_cmp_gt_u32 vcc, 16, v0')
        a.lab(name+'_go')
        a('v_lshlrev_b32 v28, 5, v28'); a('s_nop 1'); a('v_cndmask_b32 v28, v31, v28, vcc'); a('v_cndmask_b32_e64 v27, 1, 0, vcc')
        nset=1
    else:
        a('s_lshl_b32 s88, s88, 2'); a('s_lshr_b32 s89, s89, 3'); a('s_add_u32 s88, s88, s89'); a('s_lshr_b32 s88, s88, 1')
        a('s_lshr_b32 s89, s88, 2'); a('s_lshl_b32 s89, s89, 1'); a('s_and_b32 s88, s88, 3'); a('s_mul_i32 s88, s88, 6')
        a('v_and_b32 v28, 1, v0'); a('v_add_u32 v28, s89, v28'); a('v_lshrrev_b32 v29, 1, v0'); a('v_add_u32 v29, s88, v29'); a('v_lshl_add_u32 v28, v29, 3, v28')
        a('v_cmp_gt_u32 vcc, 12, v0'); a('v_lshlrev_b32 v28, 5, v28'); a('s_nop 0'); a('v_cndmask_b32 v28, v31, v28, vcc'); a('v_cndmask_b32_e64 v27, 1, 0, vcc')
        a('v_and_b32 v26, 7, v0'); a('v_lshrrev_b32 v29, 3, v0'); a('v_add_u32 v29, 24, v29'); a('v_lshl_add_u32 v26, v29, 3, v26'); a('v_lshlrev_b32 v26, 5, v26')
        nset=2
    a('s_mov_b32 s90, 0')
    a.lab(name+'_lp')
    a('buffer_load_dword v25, v28, s[92:95], 0 offen sc1')
    if nset==2: a('buffer_load_dword v24, v26, s[92:95], 0 offen sc1')
    a('s_waitcnt vmcnt(0)')
    a('v_or_b32 v25, v25, v27')
    if nset==2: a('v_min_u32 v25, v25, v24')
    a('v_cmp_ne_u32 vcc, 1, v25'); a('s_nop 1'); a('s_cmp_eq_u64 vcc, 0'); a('s_cbranch_scc1 %s_ok'%name)
    a('s_add_u32 s90, s90, 1'); a('s_cmp_lt_u32 s90, 4000'); a('s_cbranch_scc1 %s_lp'%name)
    a.lab(name+'_ok')
def dep_barrier(a,name,phase,s_ws,poller=False):
    if not FUSED[0] or phase==1: return
    if poller:
        l=name+'_np'; a('s_cmp_eq_u32 s%d, 8'%S_WAVE); a('s_cbranch_scc0 %s'%l); dep_poll(a,name+'_dp',phase,s_ws); a.lab(l)
    a('s_barrier')

KCUR=[1]
LDK={1:'',2:'',3:''}
class AsmF(Asm):
    def __call__(s,txt):
        import g2_common as g
        if g.EXP.get('nodma') and txt.startswith('buffer_load') and txt.rstrip().endswith('lds'): return
        Asm.__call__(s,txt)
def ld(txt):
    import g2_common as g
    return txt.replace(' lds', g.LDK[g.KCUR[0]]+' lds')

def pf_loop(a,name,n,pf,d1,d2,extra_barriers=0):
    D=EXP.get('pfd',7); pol=LDK[KCUR[0]]
    a('s_mov_b32 s%d, %d'%(S_KX,d1)); a('s_mov_b32 s%d, %d'%(S_KW,d2))
    for _ in range(min(D,n)-1): pf(pol)
    m=max(n-D,0)
    if m>0:
        a('s_mov_b32 s%d, %d'%(S_I,m))
        a.lab(name+'_loop')
        a('s_barrier'); pf(pol)
        a('s_sub_u32 s%d, s%d, 1'%(S_I,S_I)); a('s_cmp_lg_u32 s%d, 0'%S_I); a('s_cbranch_scc1 %s_loop'%name)
    for _ in range(n-m+extra_barriers): a('s_barrier')
```

```python
from g2_common import *
import g2_common as g2
SLZ=34816; SLA=36864
TB=NS*SLA
T_R=TB; T_NMR=TB+512; T_CS0=TB+1024; T_CS1=TB+1664; T_W2=TB+2304
K1_LDS=TB+2304+2048
NK1=10
S_X=4; S_WS=6; S_WDRE=8; S_WDIM=10; S_WIN=12; S_DBG=14
SRD_X=16; SRD_W=20; SRD_O=24; SRD_O2=28; SRD_G=56; SRD_D=60
POLL_BOUND=4000

def stats_final(a,SUM,SQ,t,n,rout,nmrout):
    for k in range(1,len(SUM)): a('v_add_f32 v%d, v%d, v%d'%(SUM[0],SUM[0],SUM[k])); a('v_add_f32 v%d, v%d, v%d'%(SQ[0],SQ[0],SQ[k]))
    a('s_nop 1')
    a('v_add_f32_dpp v%d, v%d, v%d quad_perm:[1,0,3,2] row_mask:0xf bank_mask:0xf'%(t,SUM[0],SUM[0]))
    a('v_add_f32_dpp v%d, v%d, v%d quad_perm:[1,0,3,2] row_mask:0xf bank_mask:0xf'%(t+1,SQ[0],SQ[0]))
    a('v_mul_f32 v%d, 0x%x, v%d'%(t,f2u(1.0/n),t)); a('v_mul_f32 v%d, 0x%x, v%d'%(t+1,f2u(1.0/n),t+1))
    a('v_fma_f32 v%d, -v%d, v%d, v%d'%(t+1,t,t,t+1)); a('v_max_f32 v%d, 0, v%d'%(t+1,t+1)); a('v_add_f32 v%d, 0x%x, v%d'%(t+1,f2u(1e-5),t+1))
    a('v_rsq_f32 v%d, v%d'%(rout,t+1)); a('s_nop 0')
    a('v_mul_f32 v%d, v%d, v%d'%(nmrout,t,rout)); a('v_sub_f32 v%d, 0, v%d'%(nmrout,nmrout))

S_WSP=62
def ln1_row(a):
    a('s_lshl_b32 s%d, s2, 3'%S_T0); a('s_add_u32 s%d, s%d, s%d'%(S_T0,S_T0,S_WAVE)); a('s_mul_i32 s%d, s%d, 1280'%(S_T1,S_T0))
    a('v_lshlrev_b32 v56, 4, v0'); a('v_mov_b32 v57, 0x3f803f80')
    for k in range(4): a('v_mov_b32 v%d, 0'%(68+k))
    a('s_waitcnt lgkmcnt(0)')
    add64(a,S_T2,S_X,'s%d'%S_T1); srd(a,SRD_O,S_T2,S_T2+1,1280)
    a('buffer_load_dwordx4 v[60:63], v56, s[%d:%d], 0 offen'%(SRD_O,SRD_O+3)); a('buffer_load_dwordx4 v[64:67], v56, s[%d:%d], 0 offen offset:1024'%(SRD_O,SRD_O+3))
    add64(a,S_T2,S_WS,WS_LN1); srd(a,SRD_O2,S_T2,S_T2+1,16384)
    a('s_lshl_b32 s%d, s%d, 3'%(S_SO,S_T0))
def ln1_row_finish(a):
    a('s_waitcnt vmcnt(0)')
    for k in range(8):
        a('v_dot2_f32_bf16 v%d, v%d, v%d, v%d'%(68+(k&1),60+k,60+k,68+(k&1))); a('v_dot2_f32_bf16 v%d, v%d, v57, v%d'%(70+(k&1),60+k,70+(k&1)))
    a('s_nop 3')
    a('v_add_f32 v68, v68, v69'); a('v_add_f32 v70, v70, v71'); a('s_nop 1')
    for d in ('quad_perm:[1,0,3,2]','quad_perm:[2,3,0,1]','row_half_mirror','row_mirror'):
        a('v_add_f32_dpp v68, v68, v68 %s row_mask:0xf bank_mask:0xf'%d); a('v_add_f32_dpp v70, v70, v70 %s row_mask:0xf bank_mask:0xf'%d); a('s_nop 0')
    for sw in ('v_permlane16_swap_b32','v_permlane32_swap_b32'):
        a('v_mov_b32 v69, v68'); a('v_mov_b32 v71, v70'); a('s_nop 1')
        a('%s v68, v69'%sw); a('%s v70, v71'%sw); a('s_nop 1')
        a('v_add_f32 v68, v68, v69'); a('v_add_f32 v70, v70, v71')
    a('v_mul_f32 v70, 0x%x, v70'%f2u(1.0/640)); a('v_mul_f32 v68, 0x%x, v68'%f2u(1.0/640))
    a('v_fma_f32 v68, -v70, v70, v68'); a('v_max_f32 v68, 0, v68'); a('v_add_f32 v68, 0x%x, v68'%f2u(1e-5))
    a('v_rsq_f32 v72, v68'); a('s_nop 0'); a('v_mul_f32 v73, v70, v72'); a('v_sub_f32 v73, 0, v73')
    a('v_mov_b32 v74, 0'); a('v_cmp_eq_u32 vcc, 0, v0'); a('s_and_saveexec_b64 s[%d:%d], vcc'%(S_EX,S_EX+1))
    a('buffer_store_dwordx2 v[72:73], v74, s[%d:%d], s%d offen sc1'%(SRD_O2,SRD_O2+3,S_SO))
    a('s_mov_b64 exec, s[%d:%d]'%(S_EX,S_EX+1))
def ln1_hook(a):
    return lambda: a('s_waitcnt vmcnt(0)')

def worker(a,name,SL,isZ):
    n=NK1
    CA=14; VT=15; CF=[48,68]; CACC=88; ONES=108
    srd(a,SRD_D,S_DBG,S_DBG+1,256)
    add64(a,S_T2,S_WS,WS_GR); srd(a,SRD_G,S_T2,S_T2+1,16*12288)
    if isZ:
        a('s_cmp_eq_u32 s%d, 0'%S_PW); a('s_cbranch_scc0 %s_nojob'%name)
        a('s_mul_i32 s%d, s%d, 12288'%(S_SO,S_RB)); a('s_lshl_b32 s%d, s%d, 1'%(S_T0,S_CT)); a('s_add_u32 s%d, s%d, s%d'%(S_T0,S_T0,S_PAR)); a('s_lshl_b32 s%d, s%d, 10'%(S_T0,S_T0))
        a('s_add_u32 s%d, s%d, s%d'%(S_SO,S_SO,S_T0))
        for k in range(4): a('v_mov_b32 v%d, -1'%(8+k))
        a('v_lshlrev_b32 v3, 4, v0')
        a('buffer_store_dwordx4 v[8:11], v3, s[%d:%d], s%d offen sc1'%(SRD_G,SRD_G+3,S_SO))
        a.lab(name+'_nojob')
    if g2.FUSED[0]:
        lf=a.newlab(name+'_cf'); a('s_cmp_eq_u32 s%d, 0'%S_PW); a('s_cbranch_scc0 %s'%lf)
        add64(a,S_T2,S_WS,WS_FL); srd(a,SRD_O,S_T2,S_T2+1,0x4000)
        a('s_lshl_b32 s%d, s2, 5'%S_T0); a('v_mov_b32 v12, 0'); a('v_lshlrev_b32 v13, 13, v0'); a('s_mov_b32 exec_lo, 3'); a('s_mov_b32 exec_hi, 0')
        a('buffer_store_dword v12, v13, s[%d:%d], s%d offen sc1'%(SRD_O,SRD_O+3,S_T0)); a('s_mov_b64 exec, -1')
        a.lab(lf)
    a('s_load_dwordx2 s[86:87], s[0:1], 56'); a('s_load_dwordx4 s[96:99], s[0:1], 8'); a('s_load_dwordx2 s[88:89], s[0:1], 72')
    a('v_lshrrev_b32 v4, 4, v0'); a('v_and_b32 v5, 15, v0'); a('v_lshlrev_b32 v5, 7, v5')
    a('s_lshl_b32 s%d, s%d, 9'%(S_T0,S_G)); a('s_lshl_b32 s%d, s%d, 4'%(S_T1,S_J)); a('s_add_u32 s%d, s%d, s%d'%(S_T0,S_T0,S_T1)); a('v_add_u32 v6, s%d, v4'%S_T0)
    a('v_lshlrev_b32 v6, 12, v6'); a('v_add_u32 v6, v6, v5'); a('s_lshl_b32 s%d, s%d, 11'%(S_T0,S_HALF)); a('v_add_u32 v6, s%d, v6'%S_T0)
    a('s_mul_i32 s%d, s%d, 288'%(S_T0,S_G)); a('s_mul_i32 s%d, s%d, 9'%(S_T1,S_J)); a('s_add_u32 s%d, s%d, s%d'%(S_T0,S_T0,S_T1)); a('v_add_u32 v7, s%d, v4'%S_T0)
    a('v_lshlrev_b32 v7, 12, v7'); a('v_add_u32 v7, v7, v5')
    a('v_and_b32 v21, 15, v0'); a('v_lshlrev_b32 v21, 4, v21'); a('v_mov_b32 v20, 0')
    for r in (16,17,18,19): a('v_mov_b32 v%d, 0'%r)
    a('s_waitcnt lgkmcnt(0)')
    srd(a,SRD_W,86,87,2048*4096)
    a('s_cmp_eq_u32 s%d, 0'%S_HALF); a('s_cselect_b32 s%d, s96, s98'%S_T2); a('s_cselect_b32 s%d, s97, s99'%S_T3); srd(a,SRD_O2,S_T2,S_T3,2048*4096)
    if isZ:
        a('v_and_b32 v120, 15, v0'); a('v_lshrrev_b32 v121, 4, v0'); a('v_lshrrev_b32 v122, 2, v120'); a('v_lshl_add_u32 v122, v121, 2, v122')
        a('v_mul_u32_u24 v122, 288, v122'); a('v_and_b32 v120, 3, v120'); a('v_lshl_add_u32 v122, v120, 3, v122')
        a('s_and_b32 s%d, s%d, 1'%(S_T0,S_PW)); a('s_mul_i32 s%d, s%d, 9216'%(S_T0,S_T0)); a('s_cmp_lt_u32 s%d, 2'%S_PW); a('s_cselect_b32 s%d, 160, 0'%S_T1)
        a('s_add_u32 s%d, s%d, s%d'%(S_T0,S_T0,S_T1)); a('s_add_u32 s%d, s%d, 16384'%(S_T0,S_T0)); a('v_add_u32 v%d, s%d, v122'%(CA,S_T0))
        for k in range(4): a('v_mov_b32 v%d, 0x3f803f80'%(ONES+k))
        for k in range(20): a('v_mov_b32 v%d, 0'%(CACC+k))
        for k in range(40): a('v_mov_b32 v%d, 0'%(CF[0]+k))
    def reads(st):
        a('v_add_u32 v%d, s%d, v%d'%(VT,S_SLC,CA))
        lab=a.newlab(name+'_c')
        for j in range(5):
            if j==4: a('s_cmp_lt_u32 s%d, 2'%S_PW); a('s_cbranch_scc1 %s'%lab)
            for b in range(2): a('ds_read_b64_tr_b16 %s, v%d offset:%d'%(vr(CF[st]+4*j+2*b,2),VT,b*4608+j*32))
        a.lab(lab)
    def compute(st):
        for j in range(5):
            a('v_mfma_f32_16x16x32_bf16 %s, %s, %s, %s'%(vr(CACC+4*j,4),vr(ONES,4),vr(CF[st]+4*j,4),vr(CACC+4*j,4)))
    def xpf(k,pol):
        if k<4:
            a('s_mov_b32 s%d, %d'%(S_SO,k*4*4096)); a('buffer_load_dword v10, v6, s[%d:%d], s%d offen%s'%(SRD_W,SRD_W+3,S_SO,pol))
        else:
            k-=4
            a('s_mov_b32 s%d, %d'%(S_SO,k*4*4096))
            if k==2: a('s_mov_b32 exec_hi, 0'); a('s_mov_b32 exec_lo, 0xffff')
            a('buffer_load_dword v10, v7, s[%d:%d], s%d offen%s'%(SRD_O2,SRD_O2+3,S_SO,pol))
            if k==2: a('s_mov_b64 exec, -1')
    def wout_pf():
        srd(a,SRD_O,88,89,864*1280)
        a('s_mul_i32 s%d, s2, %d'%(S_SO,34*128)); a('v_lshlrev_b32 v11, 7, v0'); a('s_mov_b32 exec_hi, 3')
        a('buffer_load_dword v10, v11, s[%d:%d], s%d offen'%(SRD_O,SRD_O+3,S_SO)); a('s_mov_b32 exec_hi, -1')
    TBL=16
    def side(i):
        pol=' nt' if not EXP.get('xpfdef') else ''
        if not (EXP.get('noxpf') or EXP.get('noxpf1')) and EXP.get('pfmid') and EXP.get('pf0',2)<=i<=EXP.get('pf0',2)+6:
            l=a.newlab(name+'_p'); a('s_cmp_eq_u32 s%d, 1'%S_PW); a('s_cbranch_scc0 %s'%l)
            if not (EXP.get('pfwonly') and i-EXP.get('pf0',2)>=4): xpf(i-EXP.get('pf0',2),pol)
            a.lab(l)
        if EXP.get('wo1') and i==EXP.get('wo1'):
            l=a.newlab(name+'_wo'); a('s_cmp_eq_u32 s%d, 2'%S_PW); a('s_cbranch_scc0 %s'%l); wout_pf(); a.lab(l)
        if i==2:
            l=a.newlab(name+'_a'); a('s_cmp_eq_u32 s%d, 0'%S_PW); a('s_cbranch_scc0 %s'%l)
            a('s_waitcnt vmcnt(0)')
            a('v_mov_b32 v4, 1'); a('s_and_b32 s%d, s2, 15'%S_T0); a('s_lshl_b32 s%d, s%d, 4'%(S_T0,S_T0)); a('v_mov_b32 v3, s%d'%S_T0)
            a('v_cmp_eq_u32 vcc, 0, v0'); a('s_and_saveexec_b64 s[%d:%d], vcc'%(S_EX,S_EX+1))
            a('buffer_atomic_add v4, v3, s[%d:%d], 0 offen sc1'%(SRD_D,SRD_D+3))
            a('s_mov_b64 exec, s[%d:%d]'%(S_EX,S_EX+1))
            a.lab(l)
        if i==5:
            l=a.newlab(name+'_q'); a('s_cmp_eq_u32 s%d, 0'%S_PW); a('s_cbranch_scc0 %s'%l)
            a('buffer_load_dword v20, v21, s[%d:%d], 0 offen sc1'%(SRD_D,SRD_D+3))
            a.lab(l)
        if i==7:
            l=a.newlab(name+'_r'); a('s_cmp_eq_u32 s%d, 0'%S_PW); a('s_cbranch_scc0 %s'%l)
            a('s_mov_b32 s%d, 0'%S_SO2)
            lp=a.newlab(name+'_pl'); ok=a.newlab(name+'_ok')
            a.lab(lp)
            a('s_waitcnt vmcnt(0)'); a('v_cmp_gt_u32 vcc, 16, v20'); a('s_nop 1'); a('s_cmp_eq_u64 vcc, 0'); a('s_cbranch_scc1 %s'%ok)
            a('buffer_load_dword v20, v21, s[%d:%d], 0 offen sc1'%(SRD_D,SRD_D+3))
            a('s_add_u32 s%d, s%d, 1'%(S_SO2,S_SO2)); a('s_cmp_lt_u32 s%d, %d'%(S_SO2,POLL_BOUND)); a('s_cbranch_scc1 %s'%lp)
            a.lab(ok)
            add64(a,S_T2,S_WS,WS_LN1); srd(a,SRD_O,S_T2,S_T2+1,16384)
            if isZ:
                a('s_lshl_b32 s%d, s%d, 7'%(S_T0,S_RB)); a('v_add_u32 v22, s%d, v0'%S_T0); a('v_add_u32 v23, 64, v22')
            else:
                a('s_lshl_b32 s%d, s%d, 6'%(S_T0,S_RB)); a('v_add_u32 v22, s%d, v0'%S_T0); a('v_sub_u32 v23, 2048, v22')
                a('v_cmp_eq_u32 vcc, 2048, v23'); a('v_mov_b32 v24, 1024'); a('s_nop 0'); a('v_cndmask_b32 v23, v23, v24, vcc')
            a('v_lshlrev_b32 v22, 3, v22'); a('v_lshlrev_b32 v23, 3, v23')
            a('buffer_load_dwordx2 v[16:17], v22, s[%d:%d], 0 offen sc1'%(SRD_O,SRD_O+3)); a('buffer_load_dwordx2 v[18:19], v23, s[%d:%d], 0 offen sc1'%(SRD_O,SRD_O+3))
            a.lab(l)
    a('s_mov_b32 s%d, 0'%S_SLC)
    for i in range(n):
        a('s_barrier')
        if isZ: reads(i&1)
        side(i)
        if isZ:
            compute((i&1)^1); a('s_waitcnt lgkmcnt(0)'); slot_advance(a,S_SLC,SL)
    if isZ: compute((n-1)&1)
    if not (EXP.get('noxpf') or EXP.get('noxpf1') or EXP.get('pfmid')):
        l=a.newlab(name+'_pe'); a('s_cmp_eq_u32 s%d, 1'%S_PW); a('s_cbranch_scc0 %s'%l)
        for k in range(4 if EXP.get('pfwonly') else 7): xpf(k,' nt' if not EXP.get('xpfdef') else '')
        a.lab(l)
    gc.stamp(a,3)
    l=a.newlab(name+'_w'); a('s_cmp_eq_u32 s%d, 0'%S_PW); a('s_cbranch_scc0 %s'%l)
    a('s_waitcnt vmcnt(0)'); a('v_lshlrev_b32 v26, 2, v0'); a('v_add_u32 v26, %d, v26'%T_R)
    a('ds_write_b32 v26, v16'); a('ds_write_b32 v26, v17 offset:512'); a('ds_write_b32 v26, v18 offset:256'); a('ds_write_b32 v26, v19 offset:768')
    a.lab(l)
    if isZ:
        a('s_and_b32 s%d, s%d, 1'%(S_T0,S_PW)); a('s_mul_i32 s%d, s%d, 640'%(S_T0,S_T0)); a('s_cmp_lt_u32 s%d, 2'%S_PW); a('s_cselect_b32 s%d, 320, 0'%S_T1)
        a('s_add_u32 s%d, s%d, s%d'%(S_T0,S_T0,S_T1)); a('v_and_b32 v26, 15, v0'); a('v_lshlrev_b32 v26, 2, v26'); a('v_add_u32 v26, s%d, v26'%S_T0); a('v_add_u32 v26, %d, v26'%T_CS0)
        a('s_nop 7')
        lab=a.newlab(name+'_f')
        for j in range(5):
            if j==4: a('s_cmp_lt_u32 s%d, 2'%S_PW); a('s_cbranch_scc1 %s'%lab)
            a('ds_write_b32 v26, v%d offset:%d'%(CACC+4*j,j*64))
        a.lab(lab)

def krot(a):
    if EXP.get('norot'): a('s_mov_b32 s%d, 0'%S_T0); return
    a('s_mul_i32 s%d, s%d, 5'%(S_T0,S_G)); a('s_lshr_b32 s%d, s%d, 1'%(S_T0,S_T0))
    a('s_mul_i32 s%d, s%d, %d'%(S_T1,S_HALF,EXP.get('rothalf',4))); a('s_add_u32 s%d, s%d, s%d'%(S_T0,S_T0,S_T1))
    a('s_cmp_ge_u32 s%d, 10'%S_T0); a('s_cselect_b32 s%d, 10, 0'%S_T1); a('s_sub_u32 s%d, s%d, s%d'%(S_T0,S_T0,S_T1))

def gen_k1(a,kname):
    kernel_head(a,kname,'K1')
    a('s_load_dwordx2 s[%d:%d], s[0:1], 0'%(S_X,S_X+1))
    a('s_load_dwordx4 s[%d:%d], s[0:1], 24'%(S_WDRE,S_WDRE+3))
    a('s_load_dwordx2 s[%d:%d], s[0:1], 48'%(S_WIN,S_WIN+1))
    a('s_load_dwordx2 s[%d:%d], s[0:1], 88'%(S_DBG,S_DBG+1))
    a('s_load_dwordx2 s[%d:%d], s[0:1], 96'%(S_WS,S_WS+1))
    wave_setup(a,'K1')
    a('s_and_b32 s%d, s2, 7'%S_XCD); a('s_lshr_b32 s%d, s2, 3'%S_J)
    a('s_lshr_b32 s%d, s%d, 1'%(S_G,S_XCD)); a('s_and_b32 s%d, s%d, 1'%(S_HALF,S_XCD))
    a('s_cmp_ge_u32 s%d, 24'%S_J); a('s_cbranch_scc1 K1A_entry')
    a('s_mul_i32 s%d, s%d, 43'%(S_T0,S_J)); a('s_lshr_b32 s%d, s%d, 8'%(S_T0,S_T0))
    a('s_mul_i32 s%d, s%d, 6'%(S_T1,S_T0)); a('s_sub_u32 s%d, s%d, s%d'%(S_T1,S_J,S_T1))
    a('s_and_b32 s%d, s%d, 1'%(S_PAR,S_T1)); a('s_lshr_b32 s%d, s%d, 1'%(S_T1,S_T1)); a('s_mul_i32 s%d, s%d, 3'%(S_CT,S_HALF)); a('s_add_u32 s%d, s%d, s%d'%(S_CT,S_CT,S_T1))
    a('s_lshl_b32 s%d, s%d, 1'%(S_T1,S_G)); a('s_add_u32 s%d, s%d, s%d'%(S_T2,S_T1,S_T0))
    a('s_sub_u32 s%d, s%d, s%d'%(S_T3,S_T0,S_T1)); a('s_add_u32 s%d, s%d, 12'%(S_T3,S_T3))
    a('s_cmp_lt_u32 s%d, 2'%S_T0); a('s_cselect_b32 s%d, s%d, s%d'%(S_RB,S_T2,S_T3))
    a('s_cmp_ge_u32 s%d, 12'%S_WAVE); a('s_cbranch_scc1 K1Z_work')
    a('s_cmp_ge_u32 s%d, 8'%S_WAVE); a('s_cbranch_scc1 K1Z_prod')
    ACC=16; FA=56; FB=84; XA=[112,113]; WA=116
    a('s_and_b32 s%d, s%d, 3'%(S_PW,S_WAVE)); a('s_lshr_b32 s%d, s%d, 2'%(S_H,S_WAVE))
    a('v_and_b32 v1, 15, v0'); a('v_lshrrev_b32 v2, 4, v0')
    a('v_and_b32 v3, 7, v0'); a('v_xor_b32 v3, v3, v2'); a('v_lshlrev_b32 v3, 4, v3'); a('v_lshl_add_u32 v3, v1, 7, v3')
    a('s_lshl_b32 s%d, s%d, 12'%(S_T0,S_PW)); a('v_add_u32 v%d, s%d, v3'%(XA[0],S_T0)); a('v_xor_b32 v%d, 64, v%d'%(XA[1],XA[0]))
    a('v_lshrrev_b32 v3, 2, v1'); a('v_lshl_add_u32 v3, v2, 2, v3'); a('v_mul_u32_u24 v3, 288, v3'); a('v_and_b32 v4, 3, v1'); a('v_lshl_add_u32 v3, v4, 3, v3')
    a('s_mul_i32 s%d, s%d, 160'%(S_T0,S_H)); a('v_add_u32 v%d, s%d, v3'%(WA,S_T0))
    ln1_row(a)
    for k in range(40): a('v_mov_b32 v%d, 0'%(ACC+k))
    ln1_row_finish(a)
    def acc(i,j): return ACC+(j*2+i)*4
    a('s_cmp_eq_u32 s%d, s%d'%(S_H,S_PAR)); a('s_cselect_b32 s%d, 0, 2'%S_T0); a('s_add_u32 s%d, s%d, s%d'%(S_T0,S_T0,S_H))
    for t,lab in ((1,'K1c_z2_1'),(2,'K1c_z1_0'),(3,'K1c_z1_1')):
        a('s_cmp_eq_u32 s%d, %d'%(S_T0,t)); a('s_cbranch_scc1 %s'%lab)
    for role in ('z2','z1'):
      for h in range(2):
        nj=5-h; nm='K1c_%s_%d'%(role,h)
        a.lab(nm)
        def rd(st,sub,nj=nj):
            F=FA if st==0 else FB; m=[]
            for i in range(2): m.append('ds_read_b128 %s, v%d offset:%d'%(vr(F+i*4,4),XA[sub],i*2048))
            for j in range(nj):
                for b in range(2): m.append('ds_read_b64_tr_b16 %s, v%d offset:%d'%(vr(F+8+j*4+b*2,2),WA,16384+sub*9216+b*4608+j*32))
            return m
        def mf(st,role=role,nj=nj):
            F=FA if st==0 else FB; m=[]
            for j in range(nj):
                for i in range(2):
                    x=vr(F+i*4,4); w=vr(F+8+j*4,4); c=vr(acc(i,j),4)
                    m.append('v_mfma_f32_16x16x32_bf16 %s, %s, %s, %s'%((c,x,w,c) if role=='z2' else (c,w,x,c)))
            return m
        consumer_loop(a,nm+'L',SLZ,NK1,XA+[WA],rd,mf,lag=(h==0),hook=ln1_hook(a),hook_at=2,per=EXP.get('k1per',2),dly=EXP.get('k1dly',12))
        a('s_barrier')
        if EXP.get('fine') is None: gc.stamp(a,4)
        C0=112;C1=114;ONE=116
        a('v_mov_b32 v%d, 0x%x'%(C0,f2u(GC0))); a('v_mov_b32 v%d, 0x%x'%(C0+1,f2u(GC0)))
        a('v_mov_b32 v%d, 0x%x'%(C1,f2u(GC1))); a('v_mov_b32 v%d, 0x%x'%(C1+1,f2u(GC1)))
        a('v_mov_b32 v%d, 1.0'%ONE); a('v_mov_b32 v%d, 1.0'%(ONE+1))
        TMP=[56,58,60,62]; prs=[(i,p) for i in range(2) for p in range(2)]
        if role=='z2':
            if not EXP.get('noz2prio'): a('s_setprio 3')
            RR=64; NM=72; CS=80; CSb=86; SUM=92; SQ=100; GRN=56; VO=118; PK=108
            a('s_lshl_b32 s%d, s%d, 7'%(S_T0,S_PW)); a('v_lshlrev_b32 v3, 4, v2'); a('v_add_u32 v3, s%d, v3'%S_T0); a('v_add_u32 v3, %d, v3'%T_R)
            for i in range(2):
                a('ds_read_b128 %s, v3 offset:%d'%(vr(RR+4*i,4),i*64)); a('ds_read_b128 %s, v3 offset:%d'%(vr(NM+4*i,4),512+i*64))
            a('v_lshlrev_b32 v4, 2, v1'); a('v_add_u32 v4, %d, v4'%(T_CS0+h*320))
            for j in range(nj):
                a('ds_read_b32 v%d, v4 offset:%d'%(CS+j,j*64)); a('ds_read_b32 v%d, v4 offset:%d'%(CSb+j,640+j*64))
            for k in range(8): a('v_mov_b32 v%d, 0'%(SUM+k)); a('v_mov_b32 v%d, 0'%(SQ+k))
            add64(a,S_T2,S_WS,WS_GR); srd(a,SRD_G,S_T2,S_T2+1,16*12288)
            a('s_mul_i32 s%d, s%d, 12288'%(S_SO,S_RB))
            a('s_lshl_b32 s%d, s%d, 1'%(S_T0,S_CT)); a('s_add_u32 s%d, s%d, %d'%(S_T0,S_T0,h)); a('s_lshl_b32 s%d, s%d, 10'%(S_T0,S_T0))
            a('s_lshl_b32 s%d, s%d, 8'%(S_T1,S_PW)); a('s_add_u32 s%d, s%d, s%d'%(S_T0,S_T0,S_T1)); a('s_add_u32 s%d, s%d, s%d'%(S_SO2,S_SO,S_T0))
            a('s_waitcnt lgkmcnt(0)')
            for j in range(nj): a('v_add_f32 v%d, v%d, v%d'%(CS+j,CS+j,CSb+j))
            for j in range(nj):
                csr=CS+j; cspair=vr(csr&~1,2); sel=csr&1
                for k,(i,p) in enumerate(prs): a('v_pk_mul_f32 %s, %s, %s op_sel:[0,%d] op_sel_hi:[1,%d]'%(vr(TMP[k],2),vr(NM+4*i+2*p,2),cspair,sel,sel))
                for k,(i,p) in enumerate(prs):
                    r=acc(i,j)+2*p; a('v_pk_fma_f32 %s, %s, %s, %s'%(vr(r,2),vr(r,2),vr(RR+4*i+2*p,2),vr(TMP[k],2)))
                gelu_pairs(a,[acc(i,j)+2*p for (i,p) in prs],TMP,C0,C1,ONE)
                for k,(i,p) in enumerate(prs):
                    r=acc(i,j)+2*p
                    a('v_pk_add_f32 %s, %s, %s'%(vr(SUM+4*i+2*p,2),vr(SUM+4*i+2*p,2),vr(r,2)))
                    a('v_pk_fma_f32 %s, %s, %s, %s'%(vr(SQ+4*i+2*p,2),vr(r,2),vr(r,2),vr(SQ+4*i+2*p,2)))
            if EXP.get('z2st'): gc.stamp(a,1)
            for sh in (8,4,2):
                for k in range(8): a('v_add_f32_dpp v%d, v%d, v%d row_ror:%d row_mask:0xf bank_mask:0xf'%(SUM+k,SUM+k,SUM+k,sh))
                for k in range(8): a('v_add_f32_dpp v%d, v%d, v%d row_ror:%d row_mask:0xf bank_mask:0xf'%(SQ+k,SQ+k,SQ+k,sh))
            for k in range(8): a('v_add_f32_dpp v%d, v%d, v%d row_ror:1 row_mask:0xf bank_mask:0xf'%(GRN+2*k,SUM+k,SUM+k))
            for k in range(8): a('v_add_f32_dpp v%d, v%d, v%d row_ror:1 row_mask:0xf bank_mask:0xf'%(GRN+2*k+1,SQ+k,SQ+k))
            a('v_lshlrev_b32 v3, 5, v2'); a('v_cmp_eq_u32 vcc, 0, v1'); a('s_and_saveexec_b64 s[%d:%d], vcc'%(S_EX,S_EX+1))
            for i in range(2):
                for p in range(2): a('buffer_store_dwordx4 %s, v3, s[%d:%d], s%d offen offset:%d sc1'%(vr(GRN+8*i+4*p,4),SRD_G,SRD_G+3,S_SO2,i*128+p*16))
            a('s_mov_b64 exec, s[%d:%d]'%(S_EX,S_EX+1))
            if EXP.get('z2st'): gc.stamp(a,2)
            PL=72; PL2=96
            a('v_and_b32 v4, 31, v0'); a('v_lshrrev_b32 v5, 5, v0'); a('v_mul_u32_u24 v5, 6144, v5'); a('v_lshl_add_u32 v4, v4, 3, v5')
            a('s_lshl_b32 s%d, s%d, 8'%(S_T1,S_PW)); a('v_add_u32 v4, s%d, v4'%S_T1); a('v_add_u32 v5, 4096, v4')
            a('s_mov_b32 s%d, 0'%S_I)
            def pl_issue(P):
                for k in range(6): a('buffer_load_dwordx2 %s, v%d, s[%d:%d], s%d offen offset:%d sc1'%(vr(P+2*k,2),4 if k<4 else 5,SRD_G,SRD_G+3,S_SO,(k%4)*1024))
            def pl_check(P,ok):
                a('v_max3_u32 v6, v%d, v%d, v%d'%(P,P+1,P+2))
                for k in range(3,12,2):
                    a('v_max3_u32 v6, v6, v%d, v%d'%(P+k,P+k+1) if k+1<12 else 'v_max_u32 v6, v6, v%d'%(P+k))
                a('v_cmp_eq_u32 s[%d:%d], -1, v6'%(S_EX,S_EX+1)); a('s_nop 1'); a('s_cmp_eq_u64 s[%d:%d], 0'%(S_EX,S_EX+1)); a('s_cbranch_scc1 %s'%ok)
            pl_issue(PL)
            a.lab(nm+'_poll')
            pl_issue(PL2)
            a('s_waitcnt vmcnt(6)'); pl_check(PL,nm+'_rdy')
            pl_issue(PL)
            a('s_waitcnt vmcnt(6)'); pl_check(PL2,nm+'_rdy2')
            a('s_add_u32 s%d, s%d, 1'%(S_I,S_I)); a('s_cmp_lt_u32 s%d, %d'%(S_I,POLL_BOUND)); a('s_cbranch_scc1 %s_poll'%nm)
            a.lab(nm+'_rdy2')
            a('s_waitcnt vmcnt(0)')
            for k in range(12): a('v_mov_b32 v%d, v%d'%(PL+k,PL2+k))
            a.lab(nm+'_rdy')
            a('s_waitcnt vmcnt(0)')
            if EXP.get('z2st'): gc.stamp(a,3)
            a('v_pk_add_f32 %s, %s, %s'%(vr(PL,2),vr(PL,2),vr(PL+2,2))); a('v_pk_add_f32 %s, %s, %s'%(vr(PL+4,2),vr(PL+4,2),vr(PL+6,2))); a('v_pk_add_f32 %s, %s, %s'%(vr(PL+8,2),vr(PL+8,2),vr(PL+10,2)))
            a('v_pk_add_f32 %s, %s, %s'%(vr(PL,2),vr(PL,2),vr(PL+4,2))); a('v_pk_add_f32 %s, %s, %s'%(vr(PL,2),vr(PL,2),vr(PL+8,2)))
            a('v_mov_b32 v%d, v%d'%(PL+2,PL)); a('v_mov_b32 v%d, v%d'%(PL+3,PL+1)); a('s_nop 1')
            a('v_permlane32_swap_b32 v%d, v%d'%(PL,PL+2)); a('v_permlane32_swap_b32 v%d, v%d'%(PL+1,PL+3)); a('s_nop 1')
            a('v_pk_add_f32 %s, %s, %s'%(vr(PL,2),vr(PL,2),vr(PL+2,2)))
            a('v_mul_f32 v%d, 0x%x, v%d'%(PL,f2u(1.0/864),PL)); a('v_mul_f32 v%d, 0x%x, v%d'%(PL+1,f2u(1.0/864),PL+1))
            a('v_fma_f32 v%d, -v%d, v%d, v%d'%(PL+1,PL,PL,PL+1)); a('v_max_f32 v%d, 0, v%d'%(PL+1,PL+1)); a('v_add_f32 v%d, 0x%x, v%d'%(PL+1,f2u(1e-5),PL+1))
            a('v_rsq_f32 v%d, v%d'%(PL+2,PL+1)); a('s_nop 0'); a('v_mul_f32 v%d, v%d, v%d'%(PL+3,PL,PL+2)); a('v_sub_f32 v%d, 0, v%d'%(PL+3,PL+3))
            a('s_lshl_b32 s%d, s%d, 8'%(S_T0,S_WAVE)); a('s_add_u32 s%d, s%d, %d'%(S_T0,S_T0,T_W2))
            a('v_and_b32 v4, 31, v0'); a('v_lshlrev_b32 v4, 2, v4'); a('v_add_u32 v4, s%d, v4'%S_T0)
            a('ds_write_b32 v4, v%d'%(PL+2)); a('ds_write_b32 v4, v%d offset:128'%(PL+3))
            a('v_lshlrev_b32 v5, 4, v2'); a('v_add_u32 v5, s%d, v5'%S_T0)
            a('s_waitcnt lgkmcnt(0)')
            for i in range(2):
                a('ds_read_b128 %s, v5 offset:%d'%(vr(RR+4*i,4),i*64)); a('ds_read_b128 %s, v5 offset:%d'%(vr(84+4*i,4),128+i*64))
            NM2=84
            a('s_mul_i32 s%d, s%d, %d'%(S_T0,S_CT,Z2_CT)); a('s_lshl_b32 s%d, s%d, 1'%(S_T1,S_RB)); a('s_lshr_b32 s%d, s%d, 1'%(S_T2,S_PW))
            a('s_add_u32 s%d, s%d, s%d'%(S_T1,S_T1,S_T2)); a('s_mul_i32 s%d, s%d, 18432'%(S_T1,S_T1)); a('s_add_u32 s%d, s%d, s%d'%(S_T0,S_T0,S_T1))
            a('s_and_b32 s%d, s%d, 1'%(S_T1,S_PW)); a('s_mul_i32 s%d, s%d, 9216'%(S_T1,S_T1)); a('s_add_u32 s%d, s%d, s%d'%(S_T0,S_T0,S_T1))
            a('s_add_u32 s%d, s%d, %d'%(S_SO,S_T0,5120*h))
            srd(a,SRD_O,S_WS,S_WS+1,6*Z2_CT)
            a('v_lshlrev_b32 v%d, 4, v0'%VO)
            a('s_waitcnt lgkmcnt(0)')
            for j in range(nj):
                for k,(i,p) in enumerate(prs):
                    r=acc(i,j)+2*p; a('v_pk_fma_f32 %s, %s, %s, %s'%(vr(r,2),vr(r,2),vr(RR+4*i+2*p,2),vr(NM2+4*i+2*p,2)))
                o=PK+4*(j&1)
                for k,(i,p) in enumerate(prs):
                    r=acc(i,j)+2*p; a('v_cvt_pk_bf16_f32 v%d, v%d, v%d'%(o+k,r,r+1))
                a('s_nop 1')
                a('v_permlane32_swap_b32 v%d, v%d'%(o,o+2)); a('v_permlane32_swap_b32 v%d, v%d'%(o+1,o+3)); a('s_nop 1')
                a('v_permlane16_swap_b32 v%d, v%d'%(o,o+2)); a('v_permlane16_swap_b32 v%d, v%d'%(o+1,o+3))
                if j<4: a('buffer_store_dwordx4 %s, v%d, s[%d:%d], s%d offen offset:%d%s'%(vr(o,4),VO,SRD_O,SRD_O+3,S_SO,j*1024,g2.STF))
                else:
                    a('s_add_u32 s%d, s%d, 4096'%(S_SO,S_SO)); a('buffer_store_dwordx4 %s, v%d, s[%d:%d], s%d offen%s'%(vr(o,4),VO,SRD_O,SRD_O+3,S_SO,g2.STF))
            a('s_branch K1_end')
        else:
            RR=64; NM=66; CS=68; CSb=88; PK=100; VO=118
            a('s_lshl_b32 s%d, s%d, 7'%(S_T0,S_PW)); a('v_lshlrev_b32 v3, 2, v1'); a('v_add_u32 v3, s%d, v3'%S_T0); a('v_add_u32 v3, %d, v3'%T_R)
            for i in range(2):
                a('ds_read_b32 v%d, v3 offset:%d'%(RR+i,i*64)); a('ds_read_b32 v%d, v3 offset:%d'%(NM+i,512+i*64))
            a('v_lshlrev_b32 v4, 4, v2'); a('v_add_u32 v4, %d, v4'%(T_CS0+320*h))
            for j in range(nj):
                a('ds_read_b128 %s, v4 offset:%d'%(vr(CS+4*j,4),j*64)); a('ds_read_b128 %s, v4 offset:%d'%(vr(CSb+4*j,4),640+j*64))
            a('s_mul_i32 s%d, s%d, 6'%(S_T0,S_RB)); a('s_add_u32 s%d, s%d, s%d'%(S_T0,S_T0,S_CT)); a('s_lshl_b32 s%d, s%d, 3'%(S_T0,S_T0))
            a('s_add_u32 s%d, s%d, s%d'%(S_T0,S_T0,S_WAVE)); a('s_mul_i32 s%d, s%d, 5120'%(S_SO,S_T0))
            add64(a,S_T2,S_WS,WS_Z1); srd(a,SRD_O,S_T2,S_T2+1,96*40960)
            a('v_lshlrev_b32 v%d, 4, v0'%VO)
            a('s_waitcnt lgkmcnt(0)')
            for j in range(nj):
                for p in range(2): a('v_pk_add_f32 %s, %s, %s'%(vr(CS+4*j+2*p,2),vr(CS+4*j+2*p,2),vr(CSb+4*j+2*p,2)))
            for j in range(nj):
                for k,(i,p) in enumerate(prs): a('v_pk_mul_f32 %s, %s, %s op_sel:[0,%d] op_sel_hi:[1,%d]'%(vr(TMP[k],2),vr(CS+4*j+2*p,2),vr(NM,2),i,i))
                for k,(i,p) in enumerate(prs):
                    r=acc(i,j)+2*p; a('v_pk_fma_f32 %s, %s, %s, %s op_sel:[0,%d,0] op_sel_hi:[1,%d,1]'%(vr(r,2),vr(r,2),vr(RR,2),vr(TMP[k],2),i,i))
                gelu_pairs(a,[acc(i,j)+2*p for (i,p) in prs],TMP,C0,C1,ONE)
                o=PK+4*(j&1)
                for k,(i,p) in enumerate(prs):
                    r=acc(i,j)+2*p; a('v_cvt_pk_bf16_f32 v%d, v%d, v%d'%(o+k,r,r+1))
                if j<4: a('buffer_store_dwordx4 %s, v%d, s[%d:%d], s%d offen offset:%d%s'%(vr(o,4),VO,SRD_O,SRD_O+3,S_SO,j*1024,g2.STF))
                else:
                    a('s_add_u32 s%d, s%d, 4096'%(S_SO,S_SO)); a('buffer_store_dwordx4 %s, v%d, s[%d:%d], s%d offen%s'%(vr(o,4),VO,SRD_O,SRD_O+3,S_SO,g2.STF))
            a('s_branch K1_end')
    a.lab('K1Z_prod')
    XO=[2,3]; WO=[4,5,6,7,8]
    if EXP.get('same'): a('s_mov_b32 s%d, 0'%S_RB); a('s_mov_b32 s%d, 0'%S_CT)
    a('s_sub_u32 s%d, s%d, 8'%(S_PW,S_WAVE))
    a('v_lshrrev_b32 v20, 3, v0'); a('s_lshl_b32 s%d, s%d, 5'%(S_T0,S_PW)); a('v_add_u32 v21, s%d, v20'%S_T0); a('v_mul_u32_u24 v21, 1280, v21')
    a('v_and_b32 v22, 7, v0'); a('v_xor_b32 v22, v22, v20')
    a('v_lshl_add_u32 v%d, v22, 4, v21'%XO[0]); a('v_mov_b32 v%d, v%d'%(XO[1],XO[0]))
    a('s_mul_i32 s%d, s%d, 288'%(S_T0,S_CT)); a('s_cmp_eq_u32 s%d, 0'%S_PAR); a('s_cselect_b32 s%d, 1728, 0'%S_T1); a('s_cselect_b32 s%d, 0, 1728'%S_T2)
    a('s_add_u32 s%d, s%d, s%d'%(S_T1,S_T1,S_T0)); a('s_add_u32 s%d, s%d, s%d'%(S_T2,S_T2,S_T0))
    a('v_mov_b32 v24, s%d'%S_T1); a('v_mov_b32 v25, s%d'%S_T2)
    for i in range(5):
        a('s_lshl_b32 s%d, s%d, 6'%(S_T0,S_PW)); a('s_add_u32 s%d, s%d, %d'%(S_T0,S_T0,256*i)); a('v_add_u32 v20, s%d, v0'%S_T0)
        a('v_mul_u32_u24 v21, 3641, v20'); a('v_lshrrev_b32 v21, 16, v21')
        a('v_mul_u32_u24 v22, 18, v21'); a('v_sub_u32 v22, v20, v22'); a('v_cmp_gt_u32 vcc, 10, v22')
        a('v_and_b32 v26, 0x23, v21'); a('v_bfe_u32 v27, v21, 2, 2'); a('v_lshl_or_b32 v26, v27, 3, v26'); a('v_bfe_u32 v27, v21, 4, 1'); a('v_lshl_or_b32 v21, v27, 2, v26')
        a('v_mul_u32_u24 v21, 3456, v21'); a('v_lshl_add_u32 v21, v22, 4, v21')
        a('v_cndmask_b32 v23, v25, v24, vcc'); a('v_add_u32 v%d, v21, v23'%WO[i])
    a('s_mov_b32 s%d, 0'%S_SLI)
    krot(a); a('s_lshl_b32 s%d, s%d, 7'%(S_KX,S_T0)); a('s_mul_i32 s%d, s%d, %d'%(S_KW,S_T0,64*3456))
    a('s_waitcnt lgkmcnt(0)')
    a('s_mul_i32 s%d, s%d, %d'%(S_T0,S_RB,128*1280)); add64(a,S_X,S_X,'s%d'%S_T0); srd(a,SRD_X,S_X,S_X+1,128*1280)
    srd(a,SRD_W,S_WIN,S_WIN+1,640*3456)
    def issueZ():
        a('s_lshl_b32 s%d, s%d, 12'%(S_T,S_PW)); a('s_add_u32 s%d, s%d, s%d'%(S_T,S_T,S_SLI))
        for j in range(4):
            a('s_add_u32 m0, s%d, %d'%(S_T,j*1024)); a('s_add_u32 s%d, s%d, %d'%(S_SO,S_KX,j*10240))
            a(ld('buffer_load_dwordx4 v%d, s[%d:%d], s%d offen lds'%(XO[j&1],SRD_X,SRD_X+3,S_SO)))
        a('s_lshl_b32 s%d, s%d, 10'%(S_T,S_PW)); a('s_add_u32 s%d, s%d, s%d'%(S_T,S_T,S_SLI))
        lab=a.newlab('K1Zp_s')
        for i in range(5):
            if i==4: a('s_cmp_lt_u32 s%d, 2'%S_PW); a('s_cbranch_scc0 %s'%lab)
            a('s_add_u32 m0, s%d, %d'%(S_T,16384+i*4096)); a('s_nop 0')
            a(ld('buffer_load_dwordx4 v%d, s[%d:%d], s%d offen lds'%(WO[i],SRD_W,SRD_W+3,S_KW)))
        a.lab(lab)
        slot_advance(a,S_SLI,SLZ); a('s_add_u32 s%d, s%d, 128'%(S_KX,S_KX)); a('s_add_u32 s%d, s%d, %d'%(S_KW,S_KW,64*3456))
        a('s_cmp_eq_u32 s%d, 1280'%S_KX); a('s_cselect_b32 s%d, 0, s%d'%(S_KX,S_KX)); a('s_cselect_b32 s%d, 0, s%d'%(S_KW,S_KW))
    dma_producer(a,'K1Zp',NK1,8,issueZ,post=1)
    a('s_branch K1_end')
    a.lab('K1Z_work')
    a('s_sub_u32 s%d, s%d, 12'%(S_PW,S_WAVE))
    a('s_waitcnt lgkmcnt(0)')
    worker(a,'K1Zw',SLZ,True)
    a('s_waitcnt lgkmcnt(0)'); a('s_barrier'); a('s_branch K1_end')

    a.lab('K1A_entry')
    a('s_sub_u32 s%d, s%d, 24'%(S_T0,S_J)); a('s_lshr_b32 s%d, s%d, 1'%(S_T1,S_T0)); a('s_and_b32 s%d, s%d, 1'%(S_CT,S_T0))
    a('s_lshl_b32 s%d, s%d, 2'%(S_RB,S_G)); a('s_add_u32 s%d, s%d, s%d'%(S_RB,S_RB,S_T1))
    a('s_cmp_ge_u32 s%d, 12'%S_WAVE); a('s_cbranch_scc1 K1A_work')
    a('s_cmp_ge_u32 s%d, 8'%S_WAVE); a('s_cbranch_scc1 K1A_prod')
    ACC=16; FA=56; FB=84; XA=[112,113]; WA2=[114,115]
    a('s_and_b32 s%d, s%d, 3'%(S_PW,S_WAVE)); a('s_lshr_b32 s%d, s%d, 2'%(S_H,S_WAVE))
    a('v_and_b32 v1, 15, v0'); a('v_lshrrev_b32 v2, 4, v0'); a('v_and_b32 v3, 7, v0'); a('v_xor_b32 v3, v3, v2'); a('v_lshlrev_b32 v3, 4, v3')
    a('v_lshl_add_u32 v3, v1, 7, v3')
    a('s_lshl_b32 s%d, s%d, 11'%(S_T0,S_PW)); a('v_add_u32 v%d, s%d, v3'%(XA[0],S_T0)); a('v_xor_b32 v%d, 64, v%d'%(XA[1],XA[0]))
    a('s_mul_i32 s%d, s%d, %d'%(S_T0,S_H,80*128)); a('s_add_u32 s%d, s%d, 16384'%(S_T0,S_T0)); a('v_add_u32 v%d, s%d, v3'%(WA2[0],S_T0)); a('v_xor_b32 v%d, 64, v%d'%(WA2[1],WA2[0]))
    ln1_row(a)
    for k in range(40): a('v_mov_b32 v%d, 0'%(ACC+k))
    ln1_row_finish(a)
    def accA(tb,j): return ACC+(j*2+tb)*4
    def rdA(st,sub):
        F=FA if st==0 else FB; m=[]
        for tb in range(2): m.append('ds_read_b128 %s, v%d offset:%d'%(vr(F+tb*4,4),XA[sub],tb*8192))
        for j in range(5): m.append('ds_read_b128 %s, v%d offset:%d'%(vr(F+8+j*4,4),WA2[sub],j*2048))
        return m
    def mfA(st):
        F=FA if st==0 else FB; m=[]
        for j in range(5):
            for tb in range(2):
                c=vr(accA(tb,j),4); m.append('v_mfma_f32_16x16x32_bf16 %s, %s, %s, %s'%(c,vr(F+tb*4,4),vr(F+8+j*4,4),c))
        return m
    a('s_cmp_eq_u32 s%d, 0'%S_H); a('s_cbranch_scc0 K1A_c1')
    consumer_loop(a,'K1A0',SLA,NK1,XA+WA2,rdA,mfA,lag=True,hook=ln1_hook(a),hook_at=2)
    a('s_branch K1A_cd')
    a.lab('K1A_c1')
    consumer_loop(a,'K1A1',SLA,NK1,XA+WA2,rdA,mfA,lag=False,hook=ln1_hook(a),hook_at=2)
    a.lab('K1A_cd')
    a('s_barrier')
    if EXP.get('fine') is None: gc.stamp(a,4)
    RT=56; RB_=60; RO=64; T4=[66,68]; PK=70; VO=76
    a('s_lshl_b32 s%d, s%d, 6'%(S_T0,S_PW)); a('v_lshlrev_b32 v3, 4, v2'); a('v_add_u32 v3, s%d, v3'%S_T0); a('v_add_u32 v3, %d, v3'%T_R)
    a('ds_read_b128 %s, v3'%vr(RT,4)); a('ds_read_b128 %s, v3 offset:256'%vr(RB_,4))
    a('s_mul_i32 s%d, s%d, %d'%(S_T0,S_HALF,AE_MAT)); a('s_lshl_b32 s%d, s%d, 1'%(S_T1,S_CT)); a('s_add_u32 s%d, s%d, s%d'%(S_T1,S_T1,S_H))
    a('s_mul_i32 s%d, s%d, 163840'%(S_T1,S_T1)); a('s_add_u32 s%d, s%d, s%d'%(S_T0,S_T0,S_T1)); a('s_mul_i32 s%d, s%d, 10240'%(S_T1,S_RB))
    a('s_add_u32 s%d, s%d, s%d'%(S_T0,S_T0,S_T1)); a('s_lshr_b32 s%d, s%d, 1'%(S_T1,S_PW)); a('s_mul_i32 s%d, s%d, 5120'%(S_T1,S_T1)); a('s_add_u32 s%d, s%d, s%d'%(S_SO,S_T0,S_T1))
    add64(a,S_T2,S_WS,WS_AE); srd(a,SRD_O,S_T2,S_T2+1,2*AE_MAT)
    a('s_and_b32 s%d, s%d, 1'%(S_T0,S_PW)); a('s_lshl_b32 s%d, s%d, 9'%(S_T0,S_T0))
    a('v_lshrrev_b32 v3, 1, v2'); a('v_lshlrev_b32 v3, 8, v3'); a('v_lshl_add_u32 v3, v1, 4, v3'); a('v_and_b32 v4, 1, v2'); a('v_lshl_add_u32 v3, v4, 3, v3')
    a('v_add_u32 v%d, s%d, v3'%(VO,S_T0))
    a('s_waitcnt lgkmcnt(0)')
    a('s_or_b32 s%d, s%d, s%d'%(S_T0,S_RB,S_PW)); a('s_or_b32 s%d, s%d, s%d'%(S_T0,S_T0,S_HALF)); a('s_cmp_eq_u32 s%d, 0'%S_T0); a('s_cbranch_scc0 K1A_nosp')
    add64(a,S_T2,S_WS,WS_A1024); srd(a,SRD_O2,S_T2,S_T2+1,1280)
    a('s_mul_i32 s%d, s%d, 640'%(S_T0,S_CT)); a('s_mul_i32 s%d, s%d, 320'%(S_T1,S_H)); a('s_add_u32 s%d, s%d, s%d'%(S_T0,S_T0,S_T1))
    a('v_lshlrev_b32 v5, 2, v1')
    a('v_cmp_gt_u32 vcc, 16, v0'); a('s_and_saveexec_b64 s[%d:%d], vcc'%(S_EX,S_EX+1))
    for j in range(5):
        a('v_mul_f32 v%d, v%d, v%d'%(RO,accA(1,j),RB_))
        a('buffer_store_dword v%d, v5, s[%d:%d], s%d offen offset:%d%s'%(RO,SRD_O2,SRD_O2+3,S_T0,j*64,g2.STF)); a('s_nop 0')
    a('v_mov_b32 v%d, 0'%RB_)
    a('s_mov_b64 exec, s[%d:%d]'%(S_EX,S_EX+1))
    a.lab('K1A_nosp')
    a('s_cmp_eq_u32 s%d, 0'%S_HALF); a('s_cselect_b32 s%d, 1.0, -1.0'%S_T0)
    for k in range(4): a('v_mul_f32 v%d, s%d, v%d'%(RB_+k,S_T0,RB_+k))
    for j in range(5):
        for p in range(2): a('v_pk_mul_f32 %s, %s, %s'%(vr(T4[p],2),vr(accA(1,j)+2*p,2),vr(RB_+2*p,2)))
        for p in range(2): a('v_pk_fma_f32 %s, %s, %s, %s'%(vr(T4[p],2),vr(accA(0,j)+2*p,2),vr(RT+2*p,2),vr(T4[p],2)))
        for p in range(2): a('v_cvt_pk_bf16_f32 v%d, v%d, v%d'%(PK+p+2*(j&1),T4[p],T4[p]+1))
        if j<4: a('buffer_store_dwordx2 %s, v%d, s[%d:%d], s%d offen offset:%d%s'%(vr(PK+2*(j&1),2),VO,SRD_O,SRD_O+3,S_SO,j*1024,g2.STF))
        else:
            a('s_add_u32 s%d, s%d, 4096'%(S_SO,S_SO)); a('buffer_store_dwordx2 %s, v%d, s[%d:%d], s%d offen%s'%(vr(PK+2*(j&1),2),VO,SRD_O,SRD_O+3,S_SO,g2.STF))
    a('s_branch K1_end')
    a.lab('K1A_prod')
    XO4=[2,3,4,5]; WO1=6
    if EXP.get('same'): a('s_mov_b32 s%d, 0'%S_RB); a('s_mov_b32 s%d, 0'%S_CT)
    a('s_sub_u32 s%d, s%d, 8'%(S_PW,S_WAVE))
    a('v_lshrrev_b32 v20, 3, v0'); a('v_and_b32 v22, 7, v0'); a('v_xor_b32 v22, v22, v20'); a('v_lshlrev_b32 v22, 4, v22')
    a('s_lshl_b32 s%d, s%d, 6'%(S_T0,S_RB))
    a('s_cmp_lt_u32 s%d, 2'%S_PW); a('s_cbranch_scc0 K1Ap_bot')
    a('s_lshl_b32 s%d, s%d, 5'%(S_T1,S_PW)); a('s_add_u32 s%d, s%d, s%d'%(S_T1,S_T1,S_T0))
    for j in range(4):
        a('v_add_u32 v21, s%d, v20'%S_T1); a('v_add_u32 v21, %d, v21'%(8*j)); a('v_mul_u32_u24 v21, 1280, v21'); a('v_add_u32 v%d, v21, v22'%XO4[j])
    a('s_branch K1Ap_xd')
    a.lab('K1Ap_bot')
    a('s_sub_u32 s%d, s%d, 2'%(S_T1,S_PW)); a('s_lshl_b32 s%d, s%d, 5'%(S_T1,S_T1)); a('s_add_u32 s%d, s%d, s%d'%(S_T1,S_T1,S_T0)); a('s_sub_u32 s%d, 2048, s%d'%(S_T1,S_T1))
    for j in range(4):
        a('v_sub_u32 v21, s%d, v20'%S_T1); a('v_subrev_u32 v21, %d, v21'%(8*j))
        if j==0:
            a('v_cmp_eq_u32 vcc, 2048, v21'); a('v_mov_b32 v23, 1024'); a('s_nop 0'); a('v_cndmask_b32 v21, v21, v23, vcc')
        a('v_mul_u32_u24 v21, 1280, v21'); a('v_add_u32 v%d, v21, v22'%XO4[j])
    a.lab('K1Ap_xd')
    a('s_mul_i32 s%d, s%d, 40'%(S_T0,S_PW)); a('v_add_u32 v21, s%d, v20'%S_T0); a('v_mul_u32_u24 v21, 1280, v21'); a('v_add_u32 v%d, v21, v22'%WO1)
    a('s_mov_b32 s%d, 0'%S_SLI)
    krot(a); a('s_lshl_b32 s%d, s%d, 7'%(S_KX,S_T0))
    a('s_waitcnt lgkmcnt(0)')
    srd(a,SRD_X,S_X,S_X+1,2048*1280)
    a('s_cmp_eq_u32 s%d, 0'%S_HALF); a('s_cselect_b32 s%d, s%d, s%d'%(S_T2,S_WDRE,S_WDIM)); a('s_cselect_b32 s%d, s%d, s%d'%(S_T3,S_WDRE+1,S_WDIM+1))
    a('s_mul_i32 s%d, s%d, %d'%(S_T0,S_CT,160*1280)); a('s_add_u32 s%d, s%d, 1280'%(S_T0,S_T0)); add64(a,S_T2,S_T2,'s%d'%S_T0)
    srd(a,SRD_W,S_T2,S_T2+1,160*1280)
    def issueA():
        a('s_lshl_b32 s%d, s%d, 12'%(S_T,S_PW)); a('s_add_u32 s%d, s%d, s%d'%(S_T,S_T,S_SLI))
        for j in range(4):
            a('s_add_u32 m0, s%d, %d'%(S_T,j*1024)); a('s_nop 0')
            a(ld('buffer_load_dwordx4 v%d, s[%d:%d], s%d offen lds'%(XO4[j],SRD_X,SRD_X+3,S_KX)))
        a('s_mul_i32 s%d, s%d, 5120'%(S_T,S_PW)); a('s_add_u32 s%d, s%d, s%d'%(S_T,S_T,S_SLI))
        for j in range(5):
            a('s_add_u32 m0, s%d, %d'%(S_T,16384+j*1024)); a('s_add_u32 s%d, s%d, %d'%(S_SO,S_KX,j*10240))
            a(ld('buffer_load_dwordx4 v%d, s[%d:%d], s%d offen lds'%(WO1,SRD_W,SRD_W+3,S_SO)))
        slot_advance(a,S_SLI,SLA); a('s_add_u32 s%d, s%d, 128'%(S_KX,S_KX))
        a('s_cmp_eq_u32 s%d, 1280'%S_KX); a('s_cselect_b32 s%d, 0, s%d'%(S_KX,S_KX))
    dma_producer(a,'K1Ap',NK1,9,issueA,post=1)
    a('s_branch K1_end')
    a.lab('K1A_work')
    a('s_sub_u32 s%d, s%d, 12'%(S_PW,S_WAVE))
    a('s_waitcnt lgkmcnt(0)')
    worker(a,'K1Aw',SLA,False)
    a('s_waitcnt lgkmcnt(0)'); a('s_barrier')
    kernel_tail(a,'K1',0,S_WS)
```

```python
from g2_common import *
import g2_common as g2
SLG=34816; SLT=28672
K2_LDS=NS*SLG
NK2=16
S_WSP=4; S_WS=6; S_WSRE=8; S_WSIM=10; S_BSP=12; S_WOUT=14
SRD_A=16; SRD_B=20; SRD_O=24; SRD_O2=28; SRD_C=56; SRD_D=60
S_KH=36; S_TB=37

def gen_k2(a,kname):
    kernel_head(a,kname,'K2')
    a('s_load_dwordx4 s[%d:%d], s[0:1], 8'%(S_WSRE,S_WSRE+3))
    a('s_load_dwordx2 s[%d:%d], s[0:1], 56'%(S_WSP,S_WSP+1))
    a('s_load_dwordx2 s[%d:%d], s[0:1], 64'%(S_BSP,S_BSP+1))
    a('s_load_dwordx2 s[%d:%d], s[0:1], 96'%(S_WS,S_WS+1))
    a('s_load_dwordx2 s[%d:%d], s[0:1], 72'%(S_WOUT,S_WOUT+1))
    wave_setup(a,'K2')
    a('s_and_b32 s%d, s2, 7'%S_XCD); a('s_lshr_b32 s%d, s2, 3'%S_J)
    a('s_and_b32 s%d, s%d, 1'%(S_KH,S_XCD))
    a('s_cmp_ge_u32 s%d, 24'%S_J); a('s_cbranch_scc1 K2T_entry')
    a('s_mul_i32 s%d, s%d, 43'%(S_T0,S_J)); a('s_lshr_b32 s%d, s%d, 8'%(S_T0,S_T0))
    a('s_mul_i32 s%d, s%d, 6'%(S_T1,S_T0)); a('s_sub_u32 s%d, s%d, s%d'%(S_CT,S_J,S_T1))
    a('s_lshr_b32 s%d, s%d, 1'%(S_T1,S_XCD)); a('s_lshl_b32 s%d, s%d, 2'%(S_T1,S_T1)); a('s_add_u32 s%d, s%d, s%d'%(S_TB,S_T1,S_T0))
    a('s_cmp_ge_u32 s%d, 8'%S_WAVE); a('s_cbranch_scc1 K2G_prod')
    ACC=16; FA=56; FB=84; WA=[112,113]; ZA=114; Z1L=[2,6,10,116,120]; BB=124
    a('s_and_b32 s%d, s%d, 3'%(S_PW,S_WAVE)); a('s_lshr_b32 s%d, s%d, 2'%(S_H,S_WAVE))
    a('v_and_b32 v6, 15, v0'); a('v_lshrrev_b32 v7, 4, v0'); a('v_and_b32 v8, 7, v0'); a('v_xor_b32 v8, v8, v7'); a('v_lshlrev_b32 v8, 4, v8')
    a('v_lshl_add_u32 v8, v6, 7, v8'); a('s_lshl_b32 s%d, s%d, 12'%(S_T0,S_PW)); a('v_add_u32 v%d, s%d, v8'%(WA[0],S_T0)); a('v_xor_b32 v%d, 64, v%d'%(WA[1],WA[0]))
    a('s_mul_i32 s%d, s%d, 5120'%(S_T0,S_H)); a('s_add_u32 s%d, s%d, 16384'%(S_T0,S_T0)); a('v_lshlrev_b32 v14, 4, v0'); a('v_add_u32 v%d, s%d, v14'%(ZA,S_T0))
    for k in range(40): a('v_mov_b32 v%d, 0'%(ACC+k))
    a('s_mul_i32 s%d, s%d, 6'%(S_T0,S_TB)); a('s_add_u32 s%d, s%d, s%d'%(S_T0,S_T0,S_CT)); a('s_lshl_b32 s%d, s%d, 3'%(S_T0,S_T0))
    a('s_add_u32 s%d, s%d, s%d'%(S_T0,S_T0,S_WAVE)); a('s_mul_i32 s%d, s%d, 5120'%(S_SO,S_T0))
    a('s_lshl_b32 s%d, s%d, 7'%(S_T0,S_TB)); a('s_lshl_b32 s%d, s%d, 5'%(S_T1,S_PW)); a('s_add_u32 s%d, s%d, s%d'%(S_T0,S_T0,S_T1))
    a('v_add_u32 v15, s%d, v6'%S_T0); a('v_lshlrev_b32 v15, 1, v15')
    a('s_waitcnt lgkmcnt(0)')
    add64(a,S_T2,S_WS,WS_Z1); srd(a,SRD_C,S_T2,S_T2+1,96*40960)
    srd(a,SRD_O2,S_BSP,S_BSP+1,4096)
    def pfz_g(tag):
        a('buffer_load_dword v127, v126, s[%d:%d], s%d offen'%(SRD_D,SRD_D+3,S_G))
        l=a.newlab('K2G_pfz')
        a('s_cmp_eq_u32 s%d, 7'%S_WAVE); a('s_cbranch_scc0 %s'%l); a('buffer_load_dword v127, v1, s[%d:%d], s%d offen'%(SRD_D,SRD_D+3,S_G)); a.lab(l)
    if EXP.get('pfz'):
        a('s_mul_i32 s%d, s%d, %d'%(S_T2,S_CT,Z2_CT)); a('s_mul_i32 s%d, s%d, %d'%(S_T3,S_KH,16*18432)); a('s_add_u32 s%d, s%d, s%d'%(S_T1,S_T2,S_T3))
        add64(a,S_T2,S_WS,'s%d'%S_T1); srd(a,SRD_D,S_T2,S_T2+1,16*18432)
        a('s_and_b32 s%d, s%d, 3'%(S_G,S_TB)); a('s_mul_i32 s%d, s%d, %d'%(S_G,S_G,36*128))
        for rep_,dst in ((0,126),(1,1)):
            a('s_lshl_b32 s%d, s%d, 6'%(S_T0,S_WAVE))
            if rep_==1: a('s_mov_b32 s%d, 512'%S_T0)
            a('v_add_u32 v9, s%d, v0'%S_T0); a('v_mul_u32_u24 v10, 1821, v9'); a('v_lshrrev_b32 v10, 16, v10')
            a('v_mul_u32_u24 v11, 36, v10'); a('v_sub_u32 v11, v9, v11'); a('v_mul_u32_u24 v10, 18432, v10'); a('v_lshl_add_u32 v%d, v11, 7, v10'%dst)
    def acc(i,j): return ACC+(j*2+i)*4
    a('s_cmp_eq_u32 s%d, 0'%S_H); a('s_cbranch_scc0 K2Gc_1')
    for h in range(2):
        nj=5-h; nm='K2Gc_%d'%h
        a.lab(nm)
        def hk(nj=nj):
            for j in range(min(nj,4)): a('buffer_load_dwordx4 %s, v14, s[%d:%d], s%d offen offset:%d'%(vr(Z1L[j],4),SRD_C,SRD_C+3,S_SO,j*1024))
            if nj==5:
                a('s_add_u32 s%d, s%d, 4096'%(S_SO,S_SO)); a('buffer_load_dwordx4 %s, v14, s[%d:%d], s%d offen'%(vr(Z1L[4],4),SRD_C,SRD_C+3,S_SO))
            a('buffer_load_ushort v%d, v15, s[%d:%d], 0 offen'%(BB,SRD_O2,SRD_O2+3)); a('buffer_load_ushort v%d, v15, s[%d:%d], 0 offen offset:32'%(BB+1,SRD_O2,SRD_O2+3))
        def rd(st,sub,nj=nj):
            F=FA if st==0 else FB; m=[]
            for i in range(2): m.append('ds_read_b128 %s, v%d offset:%d'%(vr(F+i*4,4),WA[sub],i*2048))
            for j in range(nj): m.append('ds_read_b128 %s, v%d offset:%d'%(vr(F+8+j*4,4),ZA,sub*9216+j*1024))
            return m
        def mf(st,nj=nj):
            F=FA if st==0 else FB; m=[]
            for j in range(nj):
                for i in range(2):
                    c=vr(acc(i,j),4); m.append('v_mfma_f32_16x16x32_bf16 %s, %s, %s, %s'%(c,vr(F+8+j*4,4),vr(F+i*4,4),c))
            return m
        consumer_loop(a,nm+'L',SLG,NK2,WA+[ZA],rd,mf,hook=({EXP.get('z1at',9):hk,EXP.get('pfzat',1):(lambda h=h:pfz_g('%d'%h))} if EXP.get('pfz') else hk),hook_at=EXP.get('z1at',9),lag=(h==0),phase=2)
        a('s_barrier')
        a('s_waitcnt vmcnt(0)')
        a('s_cmp_eq_u32 s%d, 0'%S_KH); a('s_cselect_b32 s%d, 1.0, 0'%S_T0)
        a('v_lshlrev_b32 v%d, 16, v%d'%(BB,BB)); a('v_lshlrev_b32 v%d, 16, v%d'%(BB+1,BB+1))
        a('v_mul_f32 v%d, s%d, v%d'%(BB,S_T0,BB)); a('v_mul_f32 v%d, s%d, v%d'%(BB+1,S_T0,BB+1))
        a('s_mul_i32 s%d, s%d, %d'%(S_T0,S_KH,H_VER)); add64(a,S_T2,S_WS,WS_H); add64(a,S_T2,S_T2,'s%d'%S_T0); srd(a,SRD_O,S_T2,S_T2+1,H_VER)
        a('s_lshl_b32 s%d, s%d, 3'%(S_T0,S_TB)); a('s_lshl_b32 s%d, s%d, 1'%(S_T1,S_PW)); a('s_add_u32 s%d, s%d, s%d'%(S_T0,S_T0,S_T1)); a('s_mul_i32 s%d, s%d, 27648'%(S_T0,S_T0))
        a('s_mul_i32 s%d, s%d, 9'%(S_T1,S_CT)); a('s_add_u32 s%d, s%d, %d'%(S_T1,S_T1,5*h)); a('s_lshl_b32 s%d, s%d, 9'%(S_T1,S_T1))
        a('s_add_u32 s%d, s%d, s%d'%(S_SO,S_T0,S_T1)); a('s_add_u32 s%d, s%d, 27648'%(S_SO2,S_SO))
        a('v_lshlrev_b32 v14, 3, v0')
        TZ=[56,58,60,62]; PK=64
        for j in range(nj):
            prs=[(i,p) for i in range(2) for p in range(2)]
            for k,(i,p) in enumerate(prs):
                z=Z1L[j]+2*i+p
                a('v_lshlrev_b32 v%d, 16, v%d'%(TZ[k],z)); a('v_and_b32 v%d, 0xffff0000, v%d'%(TZ[k]+1,z))
            for k,(i,p) in enumerate(prs):
                r=acc(i,j)+2*p; a('v_pk_add_f32 %s, %s, %s op_sel:[0,%d] op_sel_hi:[1,%d]'%(vr(r,2),vr(r,2),vr(BB,2),i,i))
            for k,(i,p) in enumerate(prs):
                r=acc(i,j)+2*p; a('v_pk_mul_f32 %s, %s, %s'%(vr(r,2),vr(r,2),vr(TZ[k],2)))
            o=PK+4*(j&1)
            for k,(i,p) in enumerate(prs):
                r=acc(i,j)+2*p; a('v_cvt_pk_bf16_f32 v%d, v%d, v%d'%(o+k,r,r+1))
            a('buffer_store_dwordx2 %s, v14, s[%d:%d], s%d offen offset:%d%s'%(vr(o,2),SRD_O,SRD_O+3,S_SO,j*512,g2.STF))
            a('buffer_store_dwordx2 %s, v14, s[%d:%d], s%d offen offset:%d%s'%(vr(o+2,2),SRD_O,SRD_O+3,S_SO2,j*512,g2.STF))
        a('s_branch K2_end')
    a.lab('K2G_prod')
    WO=2; ZO=3; S_ZO=S_PAR
    if EXP.get('same'): a('s_mov_b32 s%d, 0'%S_TB); a('s_mov_b32 s%d, 0'%S_CT); a('s_mov_b32 s%d, 0'%S_KH)
    a('s_sub_u32 s%d, s%d, 8'%(S_PW,S_WAVE))
    a('v_lshrrev_b32 v20, 3, v0'); a('v_and_b32 v22, 7, v0'); a('v_xor_b32 v22, v22, v20'); a('v_lshlrev_b32 v22, 4, v22')
    a('s_lshl_b32 s%d, s%d, 4'%(S_T0,S_PW)); a('v_add_u32 v21, s%d, v20'%S_T0); a('v_lshlrev_b32 v21, 12, v21'); a('v_add_u32 v%d, v21, v22'%WO)
    a('s_mul_i32 s%d, s%d, 3'%(S_T0,S_PW)); a('s_lshl_b32 s%d, s%d, 1'%(S_T1,S_PW)); a('s_add_u32 s%d, s%d, 2'%(S_T1,S_T1))
    a('s_cmp_lt_u32 s%d, 2'%S_PW); a('s_cselect_b32 s%d, s%d, s%d'%(S_ZO,S_T0,S_T1)); a('s_lshl_b32 s%d, s%d, 10'%(S_ZO,S_ZO))
    a('v_lshlrev_b32 v20, 4, v0'); a('v_add_u32 v%d, s%d, v20'%(ZO,S_ZO))
    a('s_mov_b32 s%d, 0'%S_SLI)
    a('s_mul_i32 s%d, s%d, %d'%(S_T0,S_CT,EXP.get('ra',0))); a('s_and_b32 s%d, s%d, 3'%(S_T1,S_TB)); a('s_mul_i32 s%d, s%d, %d'%(S_T1,S_T1,EXP.get('rb',0)))
    a('s_add_u32 s%d, s%d, s%d'%(S_T0,S_T0,S_T1)); a('s_and_b32 s%d, s%d, 15'%(S_T0,S_T0)); a('s_lshl_b32 s%d, s%d, 7'%(S_KX,S_T0)); a('s_mul_i32 s%d, s%d, 18432'%(S_KW,S_T0))
    a('s_mul_i32 s%d, s%d, %d'%(S_T0,S_TB,128*4096)); a('s_lshl_b32 s%d, s%d, 11'%(S_T1,S_KH)); a('s_add_u32 s%d, s%d, s%d'%(S_T0,S_T0,S_T1))
    a('s_sub_u32 s%d, %d, s%d'%(S_T1,128*4096,S_T1))
    a('s_mul_i32 s%d, s%d, %d'%(S_T2,S_CT,Z2_CT)); a('s_mul_i32 s%d, s%d, %d'%(S_T3,S_KH,16*18432)); a('s_add_u32 s%d, s%d, s%d'%(S_SO2,S_T2,S_T3))
    a('s_waitcnt lgkmcnt(0)')
    add64(a,S_WSP,S_WSP,'s%d'%S_T0); srd(a,SRD_A,S_WSP,S_WSP+1,'s%d'%S_T1)
    add64(a,S_T2,S_WS,'s%d'%S_SO2); srd(a,SRD_B,S_T2,S_T2+1,16*18432)
    def issue():
        a('s_lshl_b32 s%d, s%d, 11'%(S_T,S_PW)); a('s_add_u32 s%d, s%d, s%d'%(S_T,S_T,S_SLI))
        for j in range(2):
            a('s_add_u32 m0, s%d, %d'%(S_T,j*1024)); a('s_add_u32 s%d, s%d, %d'%(S_SO,S_KX,j*32768))
            a(ld('buffer_load_dwordx4 v%d, s[%d:%d], s%d offen lds'%(WO,SRD_A,SRD_A+3,S_SO)))
        a('s_add_u32 s%d, s%d, s%d'%(S_T,S_SLI,S_ZO)); a('s_add_u32 m0, s%d, 16384'%S_T); a('s_nop 0')
        for j in range(2): a('buffer_load_dwordx4 v%d, s[%d:%d], s%d offen offset:%d lds'%(ZO,SRD_B,SRD_B+3,S_KW,j*1024))
        lab=a.newlab('K2Gp_t')
        a('s_cmp_lt_u32 s%d, 2'%S_PW); a('s_cbranch_scc0 %s'%lab)
        a('buffer_load_dwordx4 v%d, s[%d:%d], s%d offen offset:2048 lds'%(ZO,SRD_B,SRD_B+3,S_KW))
        a.lab(lab)
        slot_advance(a,S_SLI,SLG); a('s_add_u32 s%d, s%d, 128'%(S_KX,S_KX)); a('s_add_u32 s%d, s%d, 18432'%(S_KW,S_KW))
        a('s_cmp_eq_u32 s%d, 2048'%S_KX); a('s_cselect_b32 s%d, 0, s%d'%(S_KX,S_KX)); a('s_cselect_b32 s%d, 0, s%d'%(S_KW,S_KW))
    dma_producer(a,'K2Gp',NK2,4,issue,phase=2,s_ws=S_WS,post=1)
    a('s_branch K2_end')

    a.lab('K2T_entry')
    a('s_sub_u32 s%d, s%d, 24'%(S_T0,S_J)); a('s_and_b32 s%d, s%d, 3'%(S_CT,S_T0)); a('s_lshr_b32 s%d, s%d, 2'%(S_T0,S_T0))
    a('s_lshr_b32 s%d, s%d, 1'%(S_T1,S_XCD)); a('s_lshl_b32 s%d, s%d, 1'%(S_T1,S_T1)); a('s_add_u32 s%d, s%d, s%d'%(S_TB,S_T1,S_T0))
    a('s_cmp_ge_u32 s%d, 8'%S_WAVE); a('s_cbranch_scc1 K2T_prod')
    a('s_and_b32 s%d, s%d, 3'%(S_PW,S_WAVE)); a('s_lshr_b32 s%d, s%d, 2'%(S_H,S_WAVE))
    a('s_cmp_eq_u32 s%d, 3'%S_PW); a('s_cbranch_scc1 K2T_xpf')
    ACC=16; FA=56; FB=80; WA=[112,113]; AA=114; A1=116
    a('v_lshrrev_b32 v7, 4, v0'); a('v_lshlrev_b32 v5, 4, v7')
    a('v_and_b32 v6, 15, v0'); a('v_and_b32 v8, 7, v0'); a('v_xor_b32 v8, v8, v7'); a('v_lshlrev_b32 v8, 4, v8'); a('v_lshl_add_u32 v8, v6, 7, v8')
    a('s_mul_i32 s%d, s%d, %d'%(S_T0,S_PW,48*128)); a('v_add_u32 v%d, s%d, v8'%(WA[0],S_T0)); a('v_xor_b32 v%d, 64, v%d'%(WA[1],WA[0]))
    a('s_mul_i32 s%d, s%d, 3072'%(S_T0,S_H)); a('s_add_u32 s%d, s%d, 18432'%(S_T0,S_T0)); a('v_lshlrev_b32 v9, 4, v0'); a('v_add_u32 v%d, s%d, v9'%(AA,S_T0))
    for k in range(36): a('v_mov_b32 v%d, 0'%(ACC+k))
    a('s_mul_i32 s%d, s%d, 320'%(S_T0,S_CT)); a('s_mul_i32 s%d, s%d, 192'%(S_T1,S_H)); a('s_add_u32 s%d, s%d, s%d'%(S_SO,S_T0,S_T1))
    a('s_waitcnt lgkmcnt(0)')
    add64(a,S_T2,S_WS,WS_A1024); srd(a,SRD_C,S_T2,S_T2+1,1280)
    def pfz_t(tag):
        a('buffer_load_dword v2, v10, s[%d:%d], s%d offen'%(SRD_D,SRD_D+3,S_G))
        l=a.newlab('K2T_pfz')
        a('s_cmp_lt_u32 s%d, 4'%S_PAR); a('s_cbranch_scc0 %s'%l); a('buffer_load_dword v2, v11, s[%d:%d], s%d offen'%(SRD_D,SRD_D+3,S_G)); a.lab(l)
    if EXP.get('pfz'):
        a('s_mul_i32 s%d, s%d, %d'%(S_T0,S_KH,AE_MAT)); a('s_mul_i32 s%d, s%d, 163840'%(S_T1,S_CT)); a('s_add_u32 s%d, s%d, s%d'%(S_T1,S_T0,S_T1))
        add64(a,S_T2,S_WS,WS_AE); add64(a,S_T2,S_T2,'s%d'%S_T1); srd(a,SRD_D,S_T2,S_T2+1,163840)
        a('s_and_b32 s%d, s%d, 1'%(S_G,S_TB)); a('s_mul_i32 s%d, s%d, %d'%(S_G,S_G,40*128))
        a('s_mul_i32 s%d, s%d, 3'%(S_PAR,S_H)); a('s_add_u32 s%d, s%d, s%d'%(S_PAR,S_PAR,S_PW))
        for rep_,dst in ((0,10),(1,11)):
            a('s_add_u32 s%d, s%d, %d'%(S_T0,S_PAR,6*rep_)); a('s_lshl_b32 s%d, s%d, 6'%(S_T0,S_T0))
            a('v_add_u32 v1, s%d, v0'%S_T0); a('v_mul_u32_u24 v12, 1639, v1'); a('v_lshrrev_b32 v12, 16, v12')
            a('v_mul_u32_u24 v13, 40, v12'); a('v_sub_u32 v13, v1, v13'); a('v_mul_u32_u24 v12, 10240, v12'); a('v_lshl_add_u32 v%d, v13, 7, v12'%dst)
    def accT(i,j): return ACC+(j*3+i)*4
    a('s_cmp_eq_u32 s%d, 0'%S_H); a('s_cbranch_scc0 K2Tc_1')
    for h in range(2):
        nj=3-h; nm='K2Tc_%d'%h
        a.lab(nm)
        def hkT(nj=nj):
            for j in range(nj): a('buffer_load_dwordx4 %s, v5, s[%d:%d], s%d offen offset:%d'%(vr(A1+4*j,4),SRD_C,SRD_C+3,S_SO,j*64))
        def rdT(st,sub,nj=nj):
            F=FA if st==0 else FB; m=[]
            for i in range(3): m.append('ds_read_b128 %s, v%d offset:%d'%(vr(F+i*4,4),WA[sub],i*2048))
            for j in range(nj): m.append('ds_read_b128 %s, v%d offset:%d'%(vr(F+12+j*4,4),AA,sub*5120+j*1024))
            return m
        def mfT(st,nj=nj):
            F=FA if st==0 else FB; m=[]
            for j in range(nj):
                for i in range(3):
                    c=vr(accT(i,j),4); m.append('v_mfma_f32_16x16x32_bf16 %s, %s, %s, %s'%(c,vr(F+12+j*4,4),vr(F+i*4,4),c))
            return m
        consumer_loop(a,nm+'L',SLT,NK2,WA+[AA],rdT,mfT,hook=({4:hkT,EXP.get('pfzat',1):(lambda h=h:pfz_t('%d'%h))} if EXP.get('pfz') else hkT),hook_at=4,lag=(h==0),phase=2)
        a('s_barrier')
        a('s_waitcnt vmcnt(0)')
        a('s_cmp_eq_u32 s%d, 0'%S_KH); a('s_cselect_b32 s%d, 1.0, 0'%S_T0)
        a('v_and_b32 v5, 1, v0'); a('v_lshlrev_b32 v5, 31, v5'); a('v_xor_b32 v5, s%d, v5'%S_T0)
        a('s_mul_i32 s%d, s%d, %d'%(S_T0,S_KH,PQ_MAT)); add64(a,S_T2,S_WS,WS_PQ); add64(a,S_T2,S_T2,'s%d'%S_T0); srd(a,SRD_O,S_T2,S_T2+1,PQ_MAT)
        a('s_mul_i32 s%d, s%d, 144'%(S_T0,S_TB)); a('s_mul_i32 s%d, s%d, 48'%(S_T1,S_PW)); a('s_add_u32 s%d, s%d, s%d'%(S_T0,S_T0,S_T1)); a('s_mul_i32 s%d, s%d, 1280'%(S_T0,S_T0))
        a('s_mul_i32 s%d, s%d, 320'%(S_T1,S_CT)); a('s_add_u32 s%d, s%d, s%d'%(S_T0,S_T0,S_T1)); a('s_add_u32 s%d, s%d, %d'%(S_SO,S_T0,192*h))
        a('v_mul_u32_u24 v6, 1280, v6'); a('v_lshl_add_u32 v6, v7, 4, v6')
        if EXP.get('nopA'):
            for _ in range(EXP['nopA']): a('s_nop 15')
        for j in range(nj):
            for i in range(3):
                r=accT(i,j)
                if EXP.get('plain'):
                    for p in range(4): a('v_fma_f32 v%d, v%d, v5, v%d'%(r+p,A1+4*j+p,r+p))
                else:
                    for p in range(2): a('v_pk_fma_f32 %s, %s, %s, %s op_sel:[0,1,0] op_sel_hi:[1,1,1]'%(vr(r+2*p,2),vr(A1+4*j+2*p,2),vr(4,2),vr(r+2*p,2)))
            if EXP.get('nopB'): a('s_nop 7')
            for i in range(3):
                a('s_add_u32 s%d, s%d, %d'%(S_SO2,S_SO,i*16*1280))
                a('buffer_store_dwordx4 %s, v6, s[%d:%d], s%d offen offset:%d%s'%(vr(accT(i,j),4),SRD_O,SRD_O+3,S_SO2,j*64,g2.STF))
        a('s_branch K2_end')
    a.lab('K2T_xpf')
    if g2.FUSED[0]:
        for _ in range(NK2+2): a('s_barrier')
        a('s_branch K2_end')
    else:
        if EXP.get('noxpf') or EXP.get('noxpf2'): a('s_endpgm')
        a('s_sub_u32 s%d, s%d, 24'%(S_T0,S_J)); a('s_lshl_b32 s%d, s%d, 1'%(S_T0,S_T0)); a('s_add_u32 s%d, s%d, s%d'%(S_T0,S_T0,S_H)); a('s_mul_i32 s%d, s%d, %d'%(S_SO,S_T0,540*128))
        a('v_lshlrev_b32 v1, 7, v0')
        a('s_waitcnt lgkmcnt(0)')
        srd(a,SRD_D,S_WOUT,S_WOUT+1,864*1280)
        st0=EXP.get('wpfat',13)
        for i in range(NK2):
            a('s_barrier')
            if i==st0:
                for k in range(9):
                    if k==8: a('s_mov_b32 exec_hi, 0'); a('s_mov_b32 exec_lo, 0xfffffff')
                    a('buffer_load_dword v2, v1, s[%d:%d], s%d offen'%(SRD_D,SRD_D+3,S_SO)); a('s_add_u32 s%d, s%d, 8192'%(S_SO,S_SO))
        a('s_barrier')
        a('s_endpgm')
    a.lab('K2T_prod')
    WO=2; AO=3; S_U0=S_PAR
    if EXP.get('same'): a('s_mov_b32 s%d, 0'%S_TB); a('s_mov_b32 s%d, 0'%S_CT); a('s_mov_b32 s%d, 0'%S_KH)
    a('s_sub_u32 s%d, s%d, 8'%(S_PW,S_WAVE))
    a('v_lshrrev_b32 v20, 3, v0'); a('v_and_b32 v22, 7, v0'); a('v_xor_b32 v22, v22, v20'); a('v_lshlrev_b32 v22, 4, v22'); a('v_lshl_add_u32 v%d, v20, 12, v22'%WO)
    a('s_lshl_b32 s%d, s%d, 1'%(S_T0,S_PW)); a('s_sub_u32 s%d, s%d, 2'%(S_T0,S_T0)); a('s_add_u32 s%d, s%d, 2'%(S_T1,S_PW))
    a('s_cmp_lt_u32 s%d, 4'%S_PW); a('s_cselect_b32 s%d, s%d, s%d'%(S_U0,S_T0,S_T1)); a('s_cmp_lt_u32 s%d, 2'%S_PW); a('s_cselect_b32 s%d, s%d, s%d'%(S_U0,S_PW,S_U0)); a('s_lshl_b32 s%d, s%d, 10'%(S_U0,S_U0))
    a('v_lshlrev_b32 v20, 4, v0'); a('v_add_u32 v%d, s%d, v20'%(AO,S_U0))
    a('s_mov_b32 s%d, 0'%S_SLI)
    a('s_mul_i32 s%d, s%d, %d'%(S_T0,S_CT,EXP.get('rta',0))); a('s_and_b32 s%d, s%d, 1'%(S_T1,S_TB)); a('s_mul_i32 s%d, s%d, %d'%(S_T1,S_T1,EXP.get('rtb',0)))
    a('s_add_u32 s%d, s%d, s%d'%(S_T0,S_T0,S_T1)); a('s_and_b32 s%d, s%d, 15'%(S_T0,S_T0)); a('s_lshl_b32 s%d, s%d, 7'%(S_KX,S_T0)); a('s_mul_i32 s%d, s%d, 10240'%(S_KW,S_T0))
    a('s_mul_i32 s%d, s%d, %d'%(S_T0,S_KH,AE_MAT)); a('s_mul_i32 s%d, s%d, 163840'%(S_T1,S_CT)); a('s_add_u32 s%d, s%d, s%d'%(S_SO2,S_T0,S_T1))
    a('s_mul_i32 s%d, s%d, %d'%(S_T0,S_TB,144*4096))
    a('s_waitcnt lgkmcnt(0)')
    a('s_cmp_eq_u32 s%d, 0'%S_KH); a('s_cselect_b32 s%d, s%d, s%d'%(S_T2,S_WSRE,S_WSIM)); a('s_cselect_b32 s%d, s%d, s%d'%(S_T3,S_WSRE+1,S_WSIM+1))
    add64(a,S_T2,S_T2,'s%d'%S_T0); srd(a,SRD_A,S_T2,S_T2+1,144*4096)
    add64(a,S_T2,S_WS,WS_AE); add64(a,S_T2,S_T2,'s%d'%S_SO2); srd(a,SRD_B,S_T2,S_T2+1,163840)
    def issueT():
        a('s_lshl_b32 s%d, s%d, 10'%(S_T,S_PW)); a('s_add_u32 s%d, s%d, s%d'%(S_T,S_T,S_SLI))
        a('s_lshl_b32 s%d, s%d, 15'%(S_T0,S_PW)); a('s_add_u32 s%d, s%d, s%d'%(S_T0,S_T0,S_KX))
        for i in range(2):
            a('s_add_u32 m0, s%d, %d'%(S_T,i*8192)); a('s_add_u32 s%d, s%d, %d'%(S_SO,S_T0,i*8*32768))
            a(('buffer_load_dwordx4 v%d, s[%d:%d], s%d offen lds'%(WO,SRD_A,SRD_A+3,S_SO)).replace(' lds',(' nt' if EXP.get('t2nt') else LDK[2])+' lds'))
        a('s_add_u32 s%d, s%d, s%d'%(S_T1,S_SLI,S_U0)); a('s_add_u32 m0, s%d, 18432'%S_T1); a('s_nop 0')
        a('buffer_load_dwordx4 v%d, s[%d:%d], s%d offen lds'%(AO,SRD_B,SRD_B+3,S_KW))
        l1=a.newlab('K2Tp_a'); l2=a.newlab('K2Tp_b')
        a('s_cmp_lt_u32 s%d, 2'%S_PW); a('s_cbranch_scc1 %s'%l1)
        a('s_cmp_lt_u32 s%d, 4'%S_PW); a('s_cbranch_scc0 %s'%l2)
        a('buffer_load_dwordx4 v%d, s[%d:%d], s%d offen offset:1024 lds'%(AO,SRD_B,SRD_B+3,S_KW)); a('s_branch %s'%l2)
        a.lab(l1)
        a('s_add_u32 m0, s%d, %d'%(S_T,2*8192)); a('s_add_u32 s%d, s%d, %d'%(S_SO,S_T0,2*8*32768))
        a(('buffer_load_dwordx4 v%d, s[%d:%d], s%d offen lds'%(WO,SRD_A,SRD_A+3,S_SO)).replace(' lds',(' nt' if EXP.get('t2nt') else LDK[2])+' lds'))
        a.lab(l2)
        slot_advance(a,S_SLI,SLT); a('s_add_u32 s%d, s%d, 128'%(S_KX,S_KX)); a('s_add_u32 s%d, s%d, 10240'%(S_KW,S_KW))
        a('s_cmp_eq_u32 s%d, 2048'%S_KX); a('s_cselect_b32 s%d, 0, s%d'%(S_KX,S_KX)); a('s_cselect_b32 s%d, 0, s%d'%(S_KW,S_KW))
    dma_producer(a,'K2Tp',NK2,3,issueT,phase=2,s_ws=S_WS,post=1)
    kernel_tail(a,'K2',1,S_WS)
```

```python
import sys
sys.path.insert(0,'dev')
from gen_common import *
import gen_common, g2_common
BASE='parallel_sum__spectral_fnet__mixer_gmlp__prompt'
def kd(name,vgpr,sgpr=100):
    return '''.amdhsa_kernel %s
  .amdhsa_next_free_vgpr %d
  .amdhsa_next_free_sgpr %d
  .amdhsa_accum_offset %d
  .amdhsa_group_segment_fixed_size 0
  .amdhsa_kernarg_size 104
  .amdhsa_user_sgpr_count 2
  .amdhsa_user_sgpr_kernarg_segment_ptr 1
  .amdhsa_system_sgpr_workgroup_id_x 1
  .amdhsa_float_denorm_mode_32 3
.end_amdhsa_kernel
'''%(name,vgpr,sgpr,vgpr)
DUP=False
def build(which=('k1','k2','k3')):
    import g2_k1,g2_k2,g2_k3
    hdr=open('cdna_kernels/%s.s.ref'%BASE).read().split('; Override launch')[0]
    launches=[]; kds=[]; body=g2_common.AsmF()
    if 'k1' in which:
        launches.append('; @launch kernel=fk1_kernel grid=(256,1,1) block=(1024,1,1) lds=%d'%g2_k1.K1_LDS)
        body.raw('.globl fk1_kernel'); g2_k1.gen_k1(body,'fk1_kernel'); kds.append(kd('fk1_kernel',128))
    if 'k2' in which:
        launches.append('; @launch kernel=fk2_kernel grid=(256,1,1) block=(1024,1,1) lds=%d'%g2_k2.K2_LDS)
        body.raw('.globl fk2_kernel'); g2_k2.gen_k2(body,'fk2_kernel'); kds.append(kd('fk2_kernel',128))
    if 'k3' in which:
        launches.append('; @launch kernel=fk3_kernel grid=(256,1,1) block=(1024,1,1) lds=%d'%g2_k3.K3_LDS)
        body.raw('.globl fk3_kernel'); g2_k3.gen_k3(body,'fk3_kernel'); kds.append(kd('fk3_kernel',128))
    if DUP: launches=[launches[0],launches[0],launches[1],launches[1],launches[2],launches[2]]
    if g2_common.FUSED[0]:
        kn=BASE+'_kernel'
        body=g2_common.AsmF(); body.raw('.globl '+kn)
        g2_k1.gen_k1(body,kn); g2_k2.gen_k2(body,kn); g2_k3.gen_k3(body,kn)
        launches=['; @launch grid=(256,1,1) block=(1024,1,1) lds=%d'%g2_k3.K3_LDS]; kds=[kd(kn,128)]
        if not g2_common.EXP.get('nosc1ld'):
            ph=1; out=[]
            for ln in body.L:
                if ln.startswith('K2_entry:'): ph=2
                if ln.startswith('K3_entry:'): ph=3
                t=ln.strip()
                if t.startswith('buffer_load') and ' sc1' not in t:
                    hand = (ph==2 and ('s[20:23]' in t or 's[56:59]' in t)) or (ph==3 and ('s[16:19]' in t or 's[60:63]' in t))
                    if hand:
                        ln = ln.replace(' lds',' sc1 lds') if t.endswith('lds') else ln+' sc1'
                out.append(ln)
            body.L=out
    return hdr+'\n'.join(launches)+'\n.amdgcn_target "amdgcn-amd-amdhsa--gfx950"\n.text\n'+body.text()+'.section .rodata,"a"\n'+''.join('.p2align 6\n'+k for k in kds)
if __name__=='__main__':
    opts=sys.argv[2:]
    if 'stamps' in opts: gen_common.STAMPS=True
    if 'light' in opts: gen_common.STAMPS=True; gen_common.LIGHT=True
    if 'fused' in opts: g2_common.FUSED[0]=True
    if 'dup' in opts: DUP=True
    for o in opts:
        if o.startswith('x:'):
            k,_,v=o[2:].partition('='); g2_common.EXP[k]=int(v) if v else 1
    for k in (1,2,3):
        if 'ldnt%d'%k in opts or 'ldnt' in opts: g2_common.LDK[k]=' nt'
    if 'sc1' in opts: g2_common.STF=' sc1'
    if 'nt' in opts: g2_common.STF=' nt'
    if 'sc01' in opts: g2_common.STF=' sc0 sc1'
    assert (not g2_common.FUSED[0]) or 'sc1' in g2_common.STF, 'fused needs sc1 stores'
    open(sys.argv[1],'w').write(build())
```

```python
from g2_common import *
import g2_common as g2
SLZ=34816; SLA=36864
TB=NS*SLA
T_R=TB; T_NMR=TB+512; T_CS0=TB+1024; T_CS1=TB+1664; T_W2=TB+2304
K1_LDS=TB+2304+2048
NK1=10
S_X=4; S_WS=6; S_WDRE=8; S_WDIM=10; S_WIN=12; S_DBG=14
SRD_X=16; SRD_W=20; SRD_O=24; SRD_O2=28; SRD_G=56; SRD_D=60
POLL_BOUND=4000

def stats_final(a,SUM,SQ,t,n,rout,nmrout):
    for k in range(1,len(SUM)): a('v_add_f32 v%d, v%d, v%d'%(SUM[0],SUM[0],SUM[k])); a('v_add_f32 v%d, v%d, v%d'%(SQ[0],SQ[0],SQ[k]))
    a('s_nop 1')
    a('v_add_f32_dpp v%d, v%d, v%d quad_perm:[1,0,3,2] row_mask:0xf bank_mask:0xf'%(t,SUM[0],SUM[0]))
    a('v_add_f32_dpp v%d, v%d, v%d quad_perm:[1,0,3,2] row_mask:0xf bank_mask:0xf'%(t+1,SQ[0],SQ[0]))
    a('v_mul_f32 v%d, 0x%x, v%d'%(t,f2u(1.0/n),t)); a('v_mul_f32 v%d, 0x%x, v%d'%(t+1,f2u(1.0/n),t+1))
    a('v_fma_f32 v%d, -v%d, v%d, v%d'%(t+1,t,t,t+1)); a('v_max_f32 v%d, 0, v%d'%(t+1,t+1)); a('v_add_f32 v%d, 0x%x, v%d'%(t+1,f2u(1e-5),t+1))
    a('v_rsq_f32 v%d, v%d'%(rout,t+1)); a('s_nop 0')
    a('v_mul_f32 v%d, v%d, v%d'%(nmrout,t,rout)); a('v_sub_f32 v%d, 0, v%d'%(nmrout,nmrout))

S_WSP=62
def ln1_row(a):
    a('s_lshl_b32 s%d, s2, 3'%S_T0); a('s_add_u32 s%d, s%d, s%d'%(S_T0,S_T0,S_WAVE)); a('s_mul_i32 s%d, s%d, 1280'%(S_T1,S_T0))
    a('v_lshlrev_b32 v56, 4, v0'); a('v_mov_b32 v57, 0x3f803f80')
    for k in range(4): a('v_mov_b32 v%d, 0'%(68+k))
    a('s_waitcnt lgkmcnt(0)')
    add64(a,S_T2,S_X,'s%d'%S_T1); srd(a,SRD_O,S_T2,S_T2+1,1280)
    a('buffer_load_dwordx4 v[60:63], v56, s[%d:%d], 0 offen'%(SRD_O,SRD_O+3)); a('buffer_load_dwordx4 v[64:67], v56, s[%d:%d], 0 offen offset:1024'%(SRD_O,SRD_O+3))
    add64(a,S_T2,S_WS,WS_LN1); srd(a,SRD_O2,S_T2,S_T2+1,16384)
    a('s_lshl_b32 s%d, s%d, 3'%(S_SO,S_T0))
def ln1_row_finish(a):
    a('s_waitcnt vmcnt(0)')
    for k in range(8):
        a('v_dot2_f32_bf16 v%d, v%d, v%d, v%d'%(68+(k&1),60+k,60+k,68+(k&1))); a('v_dot2_f32_bf16 v%d, v%d, v57, v%d'%(70+(k&1),60+k,70+(k&1)))
    a('s_nop 3')
    a('v_add_f32 v68, v68, v69'); a('v_add_f32 v70, v70, v71'); a('s_nop 1')
    for d in ('quad_perm:[1,0,3,2]','quad_perm:[2,3,0,1]','row_half_mirror','row_mirror'):
        a('v_add_f32_dpp v68, v68, v68 %s row_mask:0xf bank_mask:0xf'%d); a('v_add_f32_dpp v70, v70, v70 %s row_mask:0xf bank_mask:0xf'%d); a('s_nop 0')
    for sw in ('v_permlane16_swap_b32','v_permlane32_swap_b32'):
        a('v_mov_b32 v69, v68'); a('v_mov_b32 v71, v70'); a('s_nop 1')
        a('%s v68, v69'%sw); a('%s v70, v71'%sw); a('s_nop 1')
        a('v_add_f32 v68, v68, v69'); a('v_add_f32 v70, v70, v71')
    a('v_mul_f32 v70, 0x%x, v70'%f2u(1.0/640)); a('v_mul_f32 v68, 0x%x, v68'%f2u(1.0/640))
    a('v_fma_f32 v68, -v70, v70, v68'); a('v_max_f32 v68, 0, v68'); a('v_add_f32 v68, 0x%x, v68'%f2u(1e-5))
    a('v_rsq_f32 v72, v68'); a('s_nop 0'); a('v_mul_f32 v73, v70, v72'); a('v_sub_f32 v73, 0, v73')
    a('v_mov_b32 v74, 0'); a('v_cmp_eq_u32 vcc, 0, v0'); a('s_and_saveexec_b64 s[%d:%d], vcc'%(S_EX,S_EX+1))
    a('buffer_store_dwordx2 v[72:73], v74, s[%d:%d], s%d offen sc1'%(SRD_O2,SRD_O2+3,S_SO))
    a('s_mov_b64 exec, s[%d:%d]'%(S_EX,S_EX+1))
def ln1_hook(a):
    return lambda: a('s_waitcnt vmcnt(0)')

def worker(a,name,SL,isZ):
    n=NK1
    CA=14; VT=15; CF=[48,68]; CACC=88; ONES=108
    srd(a,SRD_D,S_DBG,S_DBG+1,256)
    add64(a,S_T2,S_WS,WS_GR); srd(a,SRD_G,S_T2,S_T2+1,16*12288)
    if isZ:
        a('s_cmp_eq_u32 s%d, 0'%S_PW); a('s_cbranch_scc0 %s_nojob'%name)
        a('s_mul_i32 s%d, s%d, 12288'%(S_SO,S_RB)); a('s_lshl_b32 s%d, s%d, 1'%(S_T0,S_CT)); a('s_add_u32 s%d, s%d, s%d'%(S_T0,S_T0,S_PAR)); a('s_lshl_b32 s%d, s%d, 10'%(S_T0,S_T0))
        a('s_add_u32 s%d, s%d, s%d'%(S_SO,S_SO,S_T0))
        for k in range(4): a('v_mov_b32 v%d, -1'%(8+k))
        a('v_lshlrev_b32 v3, 4, v0')
        a('buffer_store_dwordx4 v[8:11], v3, s[%d:%d], s%d offen sc1'%(SRD_G,SRD_G+3,S_SO))
        a.lab(name+'_nojob')
    if g2.FUSED[0]:
        lf=a.newlab(name+'_cf'); a('s_cmp_eq_u32 s%d, 0'%S_PW); a('s_cbranch_scc0 %s'%lf)
        add64(a,S_T2,S_WS,WS_FL); srd(a,SRD_O,S_T2,S_T2+1,0x4000)
        a('s_lshl_b32 s%d, s2, 5'%S_T0); a('v_mov_b32 v12, 0'); a('v_lshlrev_b32 v13, 13, v0'); a('s_mov_b32 exec_lo, 3'); a('s_mov_b32 exec_hi, 0')
        a('buffer_store_dword v12, v13, s[%d:%d], s%d offen sc1'%(SRD_O,SRD_O+3,S_T0)); a('s_mov_b64 exec, -1')
        a.lab(lf)
    a('s_load_dwordx2 s[86:87], s[0:1], 56'); a('s_load_dwordx4 s[96:99], s[0:1], 8'); a('s_load_dwordx2 s[88:89], s[0:1], 72')
    a('v_lshrrev_b32 v4, 4, v0'); a('v_and_b32 v5, 15, v0'); a('v_lshlrev_b32 v5, 7, v5')
    a('s_lshl_b32 s%d, s%d, 9'%(S_T0,S_G)); a('s_lshl_b32 s%d, s%d, 4'%(S_T1,S_J)); a('s_add_u32 s%d, s%d, s%d'%(S_T0,S_T0,S_T1)); a('v_add_u32 v6, s%d, v4'%S_T0)
    a('v_lshlrev_b32 v6, 12, v6'); a('v_add_u32 v6, v6, v5'); a('s_lshl_b32 s%d, s%d, 11'%(S_T0,S_HALF)); a('v_add_u32 v6, s%d, v6'%S_T0)
    a('s_mul_i32 s%d, s%d, 288'%(S_T0,S_G)); a('s_mul_i32 s%d, s%d, 9'%(S_T1,S_J)); a('s_add_u32 s%d, s%d, s%d'%(S_T0,S_T0,S_T1)); a('v_add_u32 v7, s%d, v4'%S_T0)
    a('v_lshlrev_b32 v7, 12, v7'); a('v_add_u32 v7, v7, v5')
    a('v_and_b32 v21, 15, v0'); a('v_lshlrev_b32 v21, 4, v21'); a('v_mov_b32 v20, 0')
    for r in (16,17,18,19): a('v_mov_b32 v%d, 0'%r)
    a('s_waitcnt lgkmcnt(0)')
    srd(a,SRD_W,86,87,2048*4096)
    a('s_cmp_eq_u32 s%d, 0'%S_HALF); a('s_cselect_b32 s%d, s96, s98'%S_T2); a('s_cselect_b32 s%d, s97, s99'%S_T3); srd(a,SRD_O2,S_T2,S_T3,2048*4096)
    if isZ:
        a('v_and_b32 v120, 15, v0'); a('v_lshrrev_b32 v121, 4, v0'); a('v_lshrrev_b32 v122, 2, v120'); a('v_lshl_add_u32 v122, v121, 2, v122')
        a('v_mul_u32_u24 v122, 288, v122'); a('v_and_b32 v120, 3, v120'); a('v_lshl_add_u32 v122, v120, 3, v122')
        a('s_and_b32 s%d, s%d, 1'%(S_T0,S_PW)); a('s_mul_i32 s%d, s%d, 9216'%(S_T0,S_T0)); a('s_cmp_lt_u32 s%d, 2'%S_PW); a('s_cselect_b32 s%d, 160, 0'%S_T1)
        a('s_add_u32 s%d, s%d, s%d'%(S_T0,S_T0,S_T1)); a('s_add_u32 s%d, s%d, 16384'%(S_T0,S_T0)); a('v_add_u32 v%d, s%d, v122'%(CA,S_T0))
        for k in range(4): a('v_mov_b32 v%d, 0x3f803f80'%(ONES+k))
        for k in range(20): a('v_mov_b32 v%d, 0'%(CACC+k))
        for k in range(40): a('v_mov_b32 v%d, 0'%(CF[0]+k))
    def reads(st):
        a('v_add_u32 v%d, s%d, v%d'%(VT,S_SLC,CA))
        lab=a.newlab(name+'_c')
        for j in range(5):
            if j==4: a('s_cmp_lt_u32 s%d, 2'%S_PW); a('s_cbranch_scc1 %s'%lab)
            for b in range(2): a('ds_read_b64_tr_b16 %s, v%d offset:%d'%(vr(CF[st]+4*j+2*b,2),VT,b*4608+j*32))
        a.lab(lab)
    def compute(st):
        for j in range(5):
            a('v_mfma_f32_16x16x32_bf16 %s, %s, %s, %s'%(vr(CACC+4*j,4),vr(ONES,4),vr(CF[st]+4*j,4),vr(CACC+4*j,4)))
    def xpf(k,pol):
        if k<4:
            a('s_mov_b32 s%d, %d'%(S_SO,k*4*4096)); a('buffer_load_dword v10, v6, s[%d:%d], s%d offen%s'%(SRD_W,SRD_W+3,S_SO,pol))
        else:
            k-=4
            a('s_mov_b32 s%d, %d'%(S_SO,k*4*4096))
            if k==2: a('s_mov_b32 exec_hi, 0'); a('s_mov_b32 exec_lo, 0xffff')
            a('buffer_load_dword v10, v7, s[%d:%d], s%d offen%s'%(SRD_O2,SRD_O2+3,S_SO,pol))
            if k==2: a('s_mov_b64 exec, -1')
    def wout_pf():
        srd(a,SRD_O,88,89,864*1280)
        a('s_mul_i32 s%d, s2, %d'%(S_SO,34*128)); a('v_lshlrev_b32 v11, 7, v0'); a('s_mov_b32 exec_hi, 3')
        a('buffer_load_dword v10, v11, s[%d:%d], s%d offen'%(SRD_O,SRD_O+3,S_SO)); a('s_mov_b32 exec_hi, -1')
    TBL=16
    def side(i):
        pol=' nt' if not EXP.get('xpfdef') else ''
        if not (EXP.get('noxpf') or EXP.get('noxpf1')) and EXP.get('pfmid') and EXP.get('pf0',2)<=i<=EXP.get('pf0',2)+6:
            l=a.newlab(name+'_p'); a('s_cmp_eq_u32 s%d, 1'%S_PW); a('s_cbranch_scc0 %s'%l)
            kk=i-EXP.get('pf0',2)
            if not ((EXP.get('pfwonly') or EXP.get('pfsplit')==1) and kk>=4) and not (EXP.get('pfsplit')==2 and kk<4): xpf(kk,pol)
            a.lab(l)
        if EXP.get('wo1') and i==EXP.get('wo1'):
            l=a.newlab(name+'_wo'); a('s_cmp_eq_u32 s%d, 2'%S_PW); a('s_cbranch_scc0 %s'%l); wout_pf(); a.lab(l)
        if i==2:
            l=a.newlab(name+'_a'); a('s_cmp_eq_u32 s%d, 0'%S_PW); a('s_cbranch_scc0 %s'%l)
            a('s_waitcnt vmcnt(0)')
            a('v_mov_b32 v4, 1'); a('s_and_b32 s%d, s2, 15'%S_T0); a('s_lshl_b32 s%d, s%d, 4'%(S_T0,S_T0)); a('v_mov_b32 v3, s%d'%S_T0)
            a('v_cmp_eq_u32 vcc, 0, v0'); a('s_and_saveexec_b64 s[%d:%d], vcc'%(S_EX,S_EX+1))
            a('buffer_atomic_add v4, v3, s[%d:%d], 0 offen sc1'%(SRD_D,SRD_D+3))
            a('s_mov_b64 exec, s[%d:%d]'%(S_EX,S_EX+1))
            a.lab(l)
        if i==5:
            l=a.newlab(name+'_q'); a('s_cmp_eq_u32 s%d, 0'%S_PW); a('s_cbranch_scc0 %s'%l)
            a('buffer_load_dword v20, v21, s[%d:%d], 0 offen sc1'%(SRD_D,SRD_D+3))
            a.lab(l)
        if i==7:
            l=a.newlab(name+'_r'); a('s_cmp_eq_u32 s%d, 0'%S_PW); a('s_cbranch_scc0 %s'%l)
            a('s_mov_b32 s%d, 0'%S_SO2)
            lp=a.newlab(name+'_pl'); ok=a.newlab(name+'_ok')
            a.lab(lp)
            a('s_waitcnt vmcnt(0)'); a('v_cmp_gt_u32 vcc, 16, v20'); a('s_nop 1'); a('s_cmp_eq_u64 vcc, 0'); a('s_cbranch_scc1 %s'%ok)
            a('buffer_load_dword v20, v21, s[%d:%d], 0 offen sc1'%(SRD_D,SRD_D+3))
            a('s_add_u32 s%d, s%d, 1'%(S_SO2,S_SO2)); a('s_cmp_lt_u32 s%d, %d'%(S_SO2,POLL_BOUND)); a('s_cbranch_scc1 %s'%lp)
            a.lab(ok)
            add64(a,S_T2,S_WS,WS_LN1); srd(a,SRD_O,S_T2,S_T2+1,16384)
            if isZ:
                a('s_lshl_b32 s%d, s%d, 7'%(S_T0,S_RB)); a('v_add_u32 v22, s%d, v0'%S_T0); a('v_add_u32 v23, 64, v22')
            else:
                a('s_lshl_b32 s%d, s%d, 6'%(S_T0,S_RB)); a('v_add_u32 v22, s%d, v0'%S_T0); a('v_sub_u32 v23, 2048, v22')
                a('v_cmp_eq_u32 vcc, 2048, v23'); a('v_mov_b32 v24, 1024'); a('s_nop 0'); a('v_cndmask_b32 v23, v23, v24, vcc')
            a('v_lshlrev_b32 v22, 3, v22'); a('v_lshlrev_b32 v23, 3, v23')
            a('buffer_load_dwordx2 v[16:17], v22, s[%d:%d], 0 offen sc1'%(SRD_O,SRD_O+3)); a('buffer_load_dwordx2 v[18:19], v23, s[%d:%d], 0 offen sc1'%(SRD_O,SRD_O+3))
            a.lab(l)
    a('s_mov_b32 s%d, 0'%S_SLC)
    for i in range(n):
        a('s_barrier')
        if isZ: reads(i&1)
        side(i)
        if isZ:
            compute((i&1)^1); a('s_waitcnt lgkmcnt(0)'); slot_advance(a,S_SLC,SL)
    if isZ: compute((n-1)&1)
    if not (EXP.get('noxpf') or EXP.get('noxpf1') or (EXP.get('pfmid') and not EXP.get('pfsplit'))):
        l=a.newlab(name+'_pe'); a('s_cmp_eq_u32 s%d, 1'%S_PW); a('s_cbranch_scc0 %s'%l)
        ks=range(4 if EXP.get('pfwonly') else 7)
        if EXP.get('pfsplit')==1: ks=range(4,7)
        if EXP.get('pfsplit')==2: ks=range(0,4)
        for k in ks: xpf(k,' nt' if not EXP.get('xpfdef') else '')
        a.lab(l)
    gc.stamp(a,3)
    l=a.newlab(name+'_w'); a('s_cmp_eq_u32 s%d, 0'%S_PW); a('s_cbranch_scc0 %s'%l)
    a('s_waitcnt vmcnt(0)'); a('v_lshlrev_b32 v26, 2, v0'); a('v_add_u32 v26, %d, v26'%T_R)
    a('ds_write_b32 v26, v16'); a('ds_write_b32 v26, v17 offset:512'); a('ds_write_b32 v26, v18 offset:256'); a('ds_write_b32 v26, v19 offset:768')
    a.lab(l)
    if isZ:
        a('s_and_b32 s%d, s%d, 1'%(S_T0,S_PW)); a('s_mul_i32 s%d, s%d, 640'%(S_T0,S_T0)); a('s_cmp_lt_u32 s%d, 2'%S_PW); a('s_cselect_b32 s%d, 320, 0'%S_T1)
        a('s_add_u32 s%d, s%d, s%d'%(S_T0,S_T0,S_T1)); a('v_and_b32 v26, 15, v0'); a('v_lshlrev_b32 v26, 2, v26'); a('v_add_u32 v26, s%d, v26'%S_T0); a('v_add_u32 v26, %d, v26'%T_CS0)
        a('s_nop 7')
        lab=a.newlab(name+'_f')
        for j in range(5):
            if j==4: a('s_cmp_lt_u32 s%d, 2'%S_PW); a('s_cbranch_scc1 %s'%lab)
            a('ds_write_b32 v26, v%d offset:%d'%(CACC+4*j,j*64))
        a.lab(lab)

def krot(a):
    if EXP.get('norot'): a('s_mov_b32 s%d, 0'%S_T0); return
    a('s_mul_i32 s%d, s%d, 5'%(S_T0,S_G)); a('s_lshr_b32 s%d, s%d, 1'%(S_T0,S_T0))
    a('s_mul_i32 s%d, s%d, %d'%(S_T1,S_HALF,EXP.get('rothalf',4))); a('s_add_u32 s%d, s%d, s%d'%(S_T0,S_T0,S_T1))
    a('s_cmp_ge_u32 s%d, 10'%S_T0); a('s_cselect_b32 s%d, 10, 0'%S_T1); a('s_sub_u32 s%d, s%d, s%d'%(S_T0,S_T0,S_T1))

def gen_k1(a,kname):
    kernel_head(a,kname,'K1')
    a('s_load_dwordx2 s[%d:%d], s[0:1], 0'%(S_X,S_X+1))
    a('s_load_dwordx4 s[%d:%d], s[0:1], 24'%(S_WDRE,S_WDRE+3))
    a('s_load_dwordx2 s[%d:%d], s[0:1], 48'%(S_WIN,S_WIN+1))
    a('s_load_dwordx2 s[%d:%d], s[0:1], 88'%(S_DBG,S_DBG+1))
    a('s_load_dwordx2 s[%d:%d], s[0:1], 96'%(S_WS,S_WS+1))
    wave_setup(a,'K1')
    a('s_and_b32 s%d, s2, 7'%S_XCD); a('s_lshr_b32 s%d, s2, 3'%S_J)
    a('s_lshr_b32 s%d, s%d, 1'%(S_G,S_XCD)); a('s_and_b32 s%d, s%d, 1'%(S_HALF,S_XCD))
    a('s_cmp_ge_u32 s%d, 24'%S_J); a('s_cbranch_scc1 K1A_entry')
    a('s_mul_i32 s%d, s%d, 43'%(S_T0,S_J)); a('s_lshr_b32 s%d, s%d, 8'%(S_T0,S_T0))
    a('s_mul_i32 s%d, s%d, 6'%(S_T1,S_T0)); a('s_sub_u32 s%d, s%d, s%d'%(S_T1,S_J,S_T1))
    a('s_and_b32 s%d, s%d, 1'%(S_PAR,S_T1)); a('s_lshr_b32 s%d, s%d, 1'%(S_T1,S_T1)); a('s_mul_i32 s%d, s%d, 3'%(S_CT,S_HALF)); a('s_add_u32 s%d, s%d, s%d'%(S_CT,S_CT,S_T1))
    a('s_lshl_b32 s%d, s%d, 1'%(S_T1,S_G)); a('s_add_u32 s%d, s%d, s%d'%(S_T2,S_T1,S_T0))
    a('s_sub_u32 s%d, s%d, s%d'%(S_T3,S_T0,S_T1)); a('s_add_u32 s%d, s%d, 12'%(S_T3,S_T3))
    a('s_cmp_lt_u32 s%d, 2'%S_T0); a('s_cselect_b32 s%d, s%d, s%d'%(S_RB,S_T2,S_T3))
    a('s_cmp_ge_u32 s%d, 12'%S_WAVE); a('s_cbranch_scc1 K1Z_work')
    a('s_cmp_ge_u32 s%d, 8'%S_WAVE); a('s_cbranch_scc1 K1Z_prod')
    ACC=16; FA=56; FB=84; XA=[112,113]; WA=116
    a('s_and_b32 s%d, s%d, 3'%(S_PW,S_WAVE)); a('s_lshr_b32 s%d, s%d, 2'%(S_H,S_WAVE))
    a('v_and_b32 v1, 15, v0'); a('v_lshrrev_b32 v2, 4, v0')
    a('v_and_b32 v3, 7, v0'); a('v_xor_b32 v3, v3, v2'); a('v_lshlrev_b32 v3, 4, v3'); a('v_lshl_add_u32 v3, v1, 7, v3')
    a('s_lshl_b32 s%d, s%d, 12'%(S_T0,S_PW)); a('v_add_u32 v%d, s%d, v3'%(XA[0],S_T0)); a('v_xor_b32 v%d, 64, v%d'%(XA[1],XA[0]))
    a('v_lshrrev_b32 v3, 2, v1'); a('v_lshl_add_u32 v3, v2, 2, v3'); a('v_mul_u32_u24 v3, 288, v3'); a('v_and_b32 v4, 3, v1'); a('v_lshl_add_u32 v3, v4, 3, v3')
    a('s_mul_i32 s%d, s%d, 160'%(S_T0,S_H)); a('v_add_u32 v%d, s%d, v3'%(WA,S_T0))
    ln1_row(a)
    for k in range(40): a('v_mov_b32 v%d, 0'%(ACC+k))
    ln1_row_finish(a)
    def acc(i,j): return ACC+(j*2+i)*4
    a('s_cmp_eq_u32 s%d, s%d'%(S_H,S_PAR)); a('s_cselect_b32 s%d, 0, 2'%S_T0); a('s_add_u32 s%d, s%d, s%d'%(S_T0,S_T0,S_H))
    for t,lab in ((1,'K1c_z2_1'),(2,'K1c_z1_0'),(3,'K1c_z1_1')):
        a('s_cmp_eq_u32 s%d, %d'%(S_T0,t)); a('s_cbranch_scc1 %s'%lab)
    for role in ('z2','z1'):
      for h in range(2):
        nj=5-h; nm='K1c_%s_%d'%(role,h)
        a.lab(nm)
        def rd(st,sub,nj=nj):
            F=FA if st==0 else FB; m=[]
            for i in range(2): m.append('ds_read_b128 %s, v%d offset:%d'%(vr(F+i*4,4),XA[sub],i*2048))
            for j in range(nj):
                for b in range(2): m.append('ds_read_b64_tr_b16 %s, v%d offset:%d'%(vr(F+8+j*4+b*2,2),WA,16384+sub*9216+b*4608+j*32))
            return m
        def mf(st,role=role,nj=nj):
            F=FA if st==0 else FB; m=[]
            for j in range(nj):
                for i in range(2):
                    x=vr(F+i*4,4); w=vr(F+8+j*4,4); c=vr(acc(i,j),4)
                    m.append('v_mfma_f32_16x16x32_bf16 %s, %s, %s, %s'%((c,x,w,c) if role=='z2' else (c,w,x,c)))
            return m
        consumer_loop(a,nm+'L',SLZ,NK1,XA+[WA],rd,mf,lag=(h==0),hook=ln1_hook(a),hook_at=2,per=EXP.get('k1per',2),dly=EXP.get('k1dly',12))
        a('s_barrier')
        if EXP.get('fine') is None: gc.stamp(a,4)
        C0=112;C1=114;ONE=116
        a('v_mov_b32 v%d, 0x%x'%(C0,f2u(GC0))); a('v_mov_b32 v%d, 0x%x'%(C0+1,f2u(GC0)))
        a('v_mov_b32 v%d, 0x%x'%(C1,f2u(GC1))); a('v_mov_b32 v%d, 0x%x'%(C1+1,f2u(GC1)))
        a('v_mov_b32 v%d, 1.0'%ONE); a('v_mov_b32 v%d, 1.0'%(ONE+1))
        TMP=[56,58,60,62]; prs=[(i,p) for i in range(2) for p in range(2)]
        if role=='z2':
            if not EXP.get('noz2prio'): a('s_setprio 3')
            RR=64; NM=72; CS=80; CSb=86; SUM=92; SQ=100; GRN=56; VO=118; PK=108
            a('s_lshl_b32 s%d, s%d, 7'%(S_T0,S_PW)); a('v_lshlrev_b32 v3, 4, v2'); a('v_add_u32 v3, s%d, v3'%S_T0); a('v_add_u32 v3, %d, v3'%T_R)
            for i in range(2):
                a('ds_read_b128 %s, v3 offset:%d'%(vr(RR+4*i,4),i*64)); a('ds_read_b128 %s, v3 offset:%d'%(vr(NM+4*i,4),512+i*64))
            a('v_lshlrev_b32 v4, 2, v1'); a('v_add_u32 v4, %d, v4'%(T_CS0+h*320))
            for j in range(nj):
                a('ds_read_b32 v%d, v4 offset:%d'%(CS+j,j*64)); a('ds_read_b32 v%d, v4 offset:%d'%(CSb+j,640+j*64))
            for k in range(8): a('v_mov_b32 v%d, 0'%(SUM+k)); a('v_mov_b32 v%d, 0'%(SQ+k))
            add64(a,S_T2,S_WS,WS_GR); srd(a,SRD_G,S_T2,S_T2+1,16*12288)
            a('s_mul_i32 s%d, s%d, 12288'%(S_SO,S_RB))
            a('s_lshl_b32 s%d, s%d, 1'%(S_T0,S_CT)); a('s_add_u32 s%d, s%d, %d'%(S_T0,S_T0,h)); a('s_lshl_b32 s%d, s%d, 10'%(S_T0,S_T0))
            a('s_lshl_b32 s%d, s%d, 8'%(S_T1,S_PW)); a('s_add_u32 s%d, s%d, s%d'%(S_T0,S_T0,S_T1)); a('s_add_u32 s%d, s%d, s%d'%(S_SO2,S_SO,S_T0))
            a('s_waitcnt lgkmcnt(0)')
            for j in range(nj): a('v_add_f32 v%d, v%d, v%d'%(CS+j,CS+j,CSb+j))
            for j in range(nj):
                csr=CS+j; cspair=vr(csr&~1,2); sel=csr&1
                for k,(i,p) in enumerate(prs): a('v_pk_mul_f32 %s, %s, %s op_sel:[0,%d] op_sel_hi:[1,%d]'%(vr(TMP[k],2),vr(NM+4*i+2*p,2),cspair,sel,sel))
                for k,(i,p) in enumerate(prs):
                    r=acc(i,j)+2*p; a('v_pk_fma_f32 %s, %s, %s, %s'%(vr(r,2),vr(r,2),vr(RR+4*i+2*p,2),vr(TMP[k],2)))
                gelu_pairs(a,[acc(i,j)+2*p for (i,p) in prs],TMP,C0,C1,ONE)
                for k,(i,p) in enumerate(prs):
                    r=acc(i,j)+2*p
                    a('v_pk_add_f32 %s, %s, %s'%(vr(SUM+4*i+2*p,2),vr(SUM+4*i+2*p,2),vr(r,2)))
                    a('v_pk_fma_f32 %s, %s, %s, %s'%(vr(SQ+4*i+2*p,2),vr(r,2),vr(r,2),vr(SQ+4*i+2*p,2)))
            if EXP.get('z2st'): gc.stamp(a,1)
            for sh in (8,4,2):
                for k in range(8): a('v_add_f32_dpp v%d, v%d, v%d row_ror:%d row_mask:0xf bank_mask:0xf'%(SUM+k,SUM+k,SUM+k,sh))
                for k in range(8): a('v_add_f32_dpp v%d, v%d, v%d row_ror:%d row_mask:0xf bank_mask:0xf'%(SQ+k,SQ+k,SQ+k,sh))
            for k in range(8): a('v_add_f32_dpp v%d, v%d, v%d row_ror:1 row_mask:0xf bank_mask:0xf'%(GRN+2*k,SUM+k,SUM+k))
            for k in range(8): a('v_add_f32_dpp v%d, v%d, v%d row_ror:1 row_mask:0xf bank_mask:0xf'%(GRN+2*k+1,SQ+k,SQ+k))
            a('v_lshlrev_b32 v3, 5, v2'); a('v_cmp_eq_u32 vcc, 0, v1'); a('s_and_saveexec_b64 s[%d:%d], vcc'%(S_EX,S_EX+1))
            for i in range(2):
                for p in range(2): a('buffer_store_dwordx4 %s, v3, s[%d:%d], s%d offen offset:%d sc1'%(vr(GRN+8*i+4*p,4),SRD_G,SRD_G+3,S_SO2,i*128+p*16))
            a('s_mov_b64 exec, s[%d:%d]'%(S_EX,S_EX+1))
            if EXP.get('z2st'): gc.stamp(a,2)
            PL=72; PL2=96
            a('v_and_b32 v4, 31, v0'); a('v_lshrrev_b32 v5, 5, v0'); a('v_mul_u32_u24 v5, 6144, v5'); a('v_lshl_add_u32 v4, v4, 3, v5')
            a('s_lshl_b32 s%d, s%d, 8'%(S_T1,S_PW)); a('v_add_u32 v4, s%d, v4'%S_T1); a('v_add_u32 v5, 4096, v4')
            a('s_mov_b32 s%d, 0'%S_I)
            def pl_issue(P):
                for k in range(6): a('buffer_load_dwordx2 %s, v%d, s[%d:%d], s%d offen offset:%d sc1'%(vr(P+2*k,2),4 if k<4 else 5,SRD_G,SRD_G+3,S_SO,(k%4)*1024))
            def pl_check(P,ok):
                a('v_max3_u32 v6, v%d, v%d, v%d'%(P,P+1,P+2))
                for k in range(3,12,2):
                    a('v_max3_u32 v6, v6, v%d, v%d'%(P+k,P+k+1) if k+1<12 else 'v_max_u32 v6, v6, v%d'%(P+k))
                a('v_cmp_eq_u32 s[%d:%d], -1, v6'%(S_EX,S_EX+1)); a('s_nop 1'); a('s_cmp_eq_u64 s[%d:%d], 0'%(S_EX,S_EX+1)); a('s_cbranch_scc1 %s'%ok)
            pl_issue(PL)
            a.lab(nm+'_poll')
            pl_issue(PL2)
            a('s_waitcnt vmcnt(6)'); pl_check(PL,nm+'_rdy')
            pl_issue(PL)
            a('s_waitcnt vmcnt(6)'); pl_check(PL2,nm+'_rdy2')
            a('s_add_u32 s%d, s%d, 1'%(S_I,S_I)); a('s_cmp_lt_u32 s%d, %d'%(S_I,POLL_BOUND)); a('s_cbranch_scc1 %s_poll'%nm)
            a.lab(nm+'_rdy2')
            a('s_waitcnt vmcnt(0)')
            for k in range(12): a('v_mov_b32 v%d, v%d'%(PL+k,PL2+k))
            a.lab(nm+'_rdy')
            a('s_waitcnt vmcnt(0)')
            if EXP.get('z2st'): gc.stamp(a,3)
            a('v_pk_add_f32 %s, %s, %s'%(vr(PL,2),vr(PL,2),vr(PL+2,2))); a('v_pk_add_f32 %s, %s, %s'%(vr(PL+4,2),vr(PL+4,2),vr(PL+6,2))); a('v_pk_add_f32 %s, %s, %s'%(vr(PL+8,2),vr(PL+8,2),vr(PL+10,2)))
            a('v_pk_add_f32 %s, %s, %s'%(vr(PL,2),vr(PL,2),vr(PL+4,2))); a('v_pk_add_f32 %s, %s, %s'%(vr(PL,2),vr(PL,2),vr(PL+8,2)))
            a('v_mov_b32 v%d, v%d'%(PL+2,PL)); a('v_mov_b32 v%d, v%d'%(PL+3,PL+1)); a('s_nop 1')
            a('v_permlane32_swap_b32 v%d, v%d'%(PL,PL+2)); a('v_permlane32_swap_b32 v%d, v%d'%(PL+1,PL+3)); a('s_nop 1')
            a('v_pk_add_f32 %s, %s, %s'%(vr(PL,2),vr(PL,2),vr(PL+2,2)))
            a('v_mul_f32 v%d, 0x%x, v%d'%(PL,f2u(1.0/864),PL)); a('v_mul_f32 v%d, 0x%x, v%d'%(PL+1,f2u(1.0/864),PL+1))
            a('v_fma_f32 v%d, -v%d, v%d, v%d'%(PL+1,PL,PL,PL+1)); a('v_max_f32 v%d, 0, v%d'%(PL+1,PL+1)); a('v_add_f32 v%d, 0x%x, v%d'%(PL+1,f2u(1e-5),PL+1))
            a('v_rsq_f32 v%d, v%d'%(PL+2,PL+1)); a('s_nop 0'); a('v_mul_f32 v%d, v%d, v%d'%(PL+3,PL,PL+2)); a('v_sub_f32 v%d, 0, v%d'%(PL+3,PL+3))
            a('s_lshl_b32 s%d, s%d, 8'%(S_T0,S_WAVE)); a('s_add_u32 s%d, s%d, %d'%(S_T0,S_T0,T_W2))
            a('v_and_b32 v4, 31, v0'); a('v_lshlrev_b32 v4, 2, v4'); a('v_add_u32 v4, s%d, v4'%S_T0)
            a('ds_write_b32 v4, v%d'%(PL+2)); a('ds_write_b32 v4, v%d offset:128'%(PL+3))
            a('v_lshlrev_b32 v5, 4, v2'); a('v_add_u32 v5, s%d, v5'%S_T0)
            a('s_waitcnt lgkmcnt(0)')
            for i in range(2):
                a('ds_read_b128 %s, v5 offset:%d'%(vr(RR+4*i,4),i*64)); a('ds_read_b128 %s, v5 offset:%d'%(vr(84+4*i,4),128+i*64))
            NM2=84
            a('s_mul_i32 s%d, s%d, %d'%(S_T0,S_CT,Z2_CT)); a('s_lshl_b32 s%d, s%d, 1'%(S_T1,S_RB)); a('s_lshr_b32 s%d, s%d, 1'%(S_T2,S_PW))
            a('s_add_u32 s%d, s%d, s%d'%(S_T1,S_T1,S_T2)); a('s_mul_i32 s%d, s%d, 18432'%(S_T1,S_T1)); a('s_add_u32 s%d, s%d, s%d'%(S_T0,S_T0,S_T1))
            a('s_and_b32 s%d, s%d, 1'%(S_T1,S_PW)); a('s_mul_i32 s%d, s%d, 9216'%(S_T1,S_T1)); a('s_add_u32 s%d, s%d, s%d'%(S_T0,S_T0,S_T1))
            a('s_add_u32 s%d, s%d, %d'%(S_SO,S_T0,5120*h))
            srd(a,SRD_O,S_WS,S_WS+1,6*Z2_CT)
            a('v_lshlrev_b32 v%d, 4, v0'%VO)
            a('s_waitcnt lgkmcnt(0)')
            for j in range(nj):
                for k,(i,p) in enumerate(prs):
                    r=acc(i,j)+2*p; a('v_pk_fma_f32 %s, %s, %s, %s'%(vr(r,2),vr(r,2),vr(RR+4*i+2*p,2),vr(NM2+4*i+2*p,2)))
                o=PK+4*(j&1)
                for k,(i,p) in enumerate(prs):
                    r=acc(i,j)+2*p; a('v_cvt_pk_bf16_f32 v%d, v%d, v%d'%(o+k,r,r+1))
                a('s_nop 1')
                a('v_permlane32_swap_b32 v%d, v%d'%(o,o+2)); a('v_permlane32_swap_b32 v%d, v%d'%(o+1,o+3)); a('s_nop 1')
                a('v_permlane16_swap_b32 v%d, v%d'%(o,o+2)); a('v_permlane16_swap_b32 v%d, v%d'%(o+1,o+3))
                if j<4: a('buffer_store_dwordx4 %s, v%d, s[%d:%d], s%d offen offset:%d%s'%(vr(o,4),VO,SRD_O,SRD_O+3,S_SO,j*1024,g2.STF))
                else:
                    a('s_add_u32 s%d, s%d, 4096'%(S_SO,S_SO)); a('buffer_store_dwordx4 %s, v%d, s[%d:%d], s%d offen%s'%(vr(o,4),VO,SRD_O,SRD_O+3,S_SO,g2.STF))
            a('s_branch K1_end')
        else:
            RR=64; NM=66; CS=68; CSb=88; PK=100; VO=118
            a('s_lshl_b32 s%d, s%d, 7'%(S_T0,S_PW)); a('v_lshlrev_b32 v3, 2, v1'); a('v_add_u32 v3, s%d, v3'%S_T0); a('v_add_u32 v3, %d, v3'%T_R)
            for i in range(2):
                a('ds_read_b32 v%d, v3 offset:%d'%(RR+i,i*64)); a('ds_read_b32 v%d, v3 offset:%d'%(NM+i,512+i*64))
            a('v_lshlrev_b32 v4, 4, v2'); a('v_add_u32 v4, %d, v4'%(T_CS0+320*h))
            for j in range(nj):
                a('ds_read_b128 %s, v4 offset:%d'%(vr(CS+4*j,4),j*64)); a('ds_read_b128 %s, v4 offset:%d'%(vr(CSb+4*j,4),640+j*64))
            a('s_mul_i32 s%d, s%d, 6'%(S_T0,S_RB)); a('s_add_u32 s%d, s%d, s%d'%(S_T0,S_T0,S_CT)); a('s_lshl_b32 s%d, s%d, 3'%(S_T0,S_T0))
            a('s_add_u32 s%d, s%d, s%d'%(S_T0,S_T0,S_WAVE)); a('s_mul_i32 s%d, s%d, 5120'%(S_SO,S_T0))
            add64(a,S_T2,S_WS,WS_Z1); srd(a,SRD_O,S_T2,S_T2+1,96*40960)
            a('v_lshlrev_b32 v%d, 4, v0'%VO)
            a('s_waitcnt lgkmcnt(0)')
            for j in range(nj):
                for p in range(2): a('v_pk_add_f32 %s, %s, %s'%(vr(CS+4*j+2*p,2),vr(CS+4*j+2*p,2),vr(CSb+4*j+2*p,2)))
            for j in range(nj):
                for k,(i,p) in enumerate(prs): a('v_pk_mul_f32 %s, %s, %s op_sel:[0,%d] op_sel_hi:[1,%d]'%(vr(TMP[k],2),vr(CS+4*j+2*p,2),vr(NM,2),i,i))
                for k,(i,p) in enumerate(prs):
                    r=acc(i,j)+2*p; a('v_pk_fma_f32 %s, %s, %s, %s op_sel:[0,%d,0] op_sel_hi:[1,%d,1]'%(vr(r,2),vr(r,2),vr(RR,2),vr(TMP[k],2),i,i))
                gelu_pairs(a,[acc(i,j)+2*p for (i,p) in prs],TMP,C0,C1,ONE)
                o=PK+4*(j&1)
                for k,(i,p) in enumerate(prs):
                    r=acc(i,j)+2*p; a('v_cvt_pk_bf16_f32 v%d, v%d, v%d'%(o+k,r,r+1))
                if j<4: a('buffer_store_dwordx4 %s, v%d, s[%d:%d], s%d offen offset:%d%s'%(vr(o,4),VO,SRD_O,SRD_O+3,S_SO,j*1024,g2.STF))
                else:
                    a('s_add_u32 s%d, s%d, 4096'%(S_SO,S_SO)); a('buffer_store_dwordx4 %s, v%d, s[%d:%d], s%d offen%s'%(vr(o,4),VO,SRD_O,SRD_O+3,S_SO,g2.STF))
            a('s_branch K1_end')
    a.lab('K1Z_prod')
    XO=[2,3]; WO=[4,5,6,7,8]
    if EXP.get('same'): a('s_mov_b32 s%d, 0'%S_RB); a('s_mov_b32 s%d, 0'%S_CT)
    a('s_sub_u32 s%d, s%d, 8'%(S_PW,S_WAVE))
    a('v_lshrrev_b32 v20, 3, v0'); a('s_lshl_b32 s%d, s%d, 5'%(S_T0,S_PW)); a('v_add_u32 v21, s%d, v20'%S_T0); a('v_mul_u32_u24 v21, 1280, v21')
    a('v_and_b32 v22, 7, v0'); a('v_xor_b32 v22, v22, v20')
    a('v_lshl_add_u32 v%d, v22, 4, v21'%XO[0]); a('v_mov_b32 v%d, v%d'%(XO[1],XO[0]))
    a('s_mul_i32 s%d, s%d, 288'%(S_T0,S_CT)); a('s_cmp_eq_u32 s%d, 0'%S_PAR); a('s_cselect_b32 s%d, 1728, 0'%S_T1); a('s_cselect_b32 s%d, 0, 1728'%S_T2)
    a('s_add_u32 s%d, s%d, s%d'%(S_T1,S_T1,S_T0)); a('s_add_u32 s%d, s%d, s%d'%(S_T2,S_T2,S_T0))
    a('v_mov_b32 v24, s%d'%S_T1); a('v_mov_b32 v25, s%d'%S_T2)
    for i in range(5):
        a('s_lshl_b32 s%d, s%d, 6'%(S_T0,S_PW)); a('s_add_u32 s%d, s%d, %d'%(S_T0,S_T0,256*i)); a('v_add_u32 v20, s%d, v0'%S_T0)
        a('v_mul_u32_u24 v21, 3641, v20'); a('v_lshrrev_b32 v21, 16, v21')
        a('v_mul_u32_u24 v22, 18, v21'); a('v_sub_u32 v22, v20, v22'); a('v_cmp_gt_u32 vcc, 10, v22')
        a('v_and_b32 v26, 0x23, v21'); a('v_bfe_u32 v27, v21, 2, 2'); a('v_lshl_or_b32 v26, v27, 3, v26'); a('v_bfe_u32 v27, v21, 4, 1'); a('v_lshl_or_b32 v21, v27, 2, v26')
        a('v_mul_u32_u24 v21, 3456, v21'); a('v_lshl_add_u32 v21, v22, 4, v21')
        a('v_cndmask_b32 v23, v25, v24, vcc'); a('v_add_u32 v%d, v21, v23'%WO[i])
    a('s_mov_b32 s%d, 0'%S_SLI)
    krot(a); a('s_lshl_b32 s%d, s%d, 7'%(S_KX,S_T0)); a('s_mul_i32 s%d, s%d, %d'%(S_KW,S_T0,64*3456))
    a('s_waitcnt lgkmcnt(0)')
    a('s_mul_i32 s%d, s%d, %d'%(S_T0,S_RB,128*1280)); add64(a,S_X,S_X,'s%d'%S_T0); srd(a,SRD_X,S_X,S_X+1,128*1280)
    srd(a,SRD_W,S_WIN,S_WIN+1,640*3456)
    def issueZ():
        a('s_lshl_b32 s%d, s%d, 12'%(S_T,S_PW)); a('s_add_u32 s%d, s%d, s%d'%(S_T,S_T,S_SLI))
        for j in range(4):
            a('s_add_u32 m0, s%d, %d'%(S_T,j*1024)); a('s_add_u32 s%d, s%d, %d'%(S_SO,S_KX,j*10240))
            a(ld('buffer_load_dwordx4 v%d, s[%d:%d], s%d offen lds'%(XO[j&1],SRD_X,SRD_X+3,S_SO)))
        a('s_lshl_b32 s%d, s%d, 10'%(S_T,S_PW)); a('s_add_u32 s%d, s%d, s%d'%(S_T,S_T,S_SLI))
        lab=a.newlab('K1Zp_s')
        for i in range(5):
            if i==4: a('s_cmp_lt_u32 s%d, 2'%S_PW); a('s_cbranch_scc0 %s'%lab)
            a('s_add_u32 m0, s%d, %d'%(S_T,16384+i*4096)); a('s_nop 0')
            a(ld('buffer_load_dwordx4 v%d, s[%d:%d], s%d offen lds'%(WO[i],SRD_W,SRD_W+3,S_KW)))
        a.lab(lab)
        slot_advance(a,S_SLI,SLZ); a('s_add_u32 s%d, s%d, 128'%(S_KX,S_KX)); a('s_add_u32 s%d, s%d, %d'%(S_KW,S_KW,64*3456))
        a('s_cmp_eq_u32 s%d, 1280'%S_KX); a('s_cselect_b32 s%d, 0, s%d'%(S_KX,S_KX)); a('s_cselect_b32 s%d, 0, s%d'%(S_KW,S_KW))
    dma_producer(a,'K1Zp',NK1,8,issueZ,post=1)
    a('s_branch K1_end')
    a.lab('K1Z_work')
    a('s_sub_u32 s%d, s%d, 12'%(S_PW,S_WAVE))
    a('s_waitcnt lgkmcnt(0)')
    worker(a,'K1Zw',SLZ,True)
    a('s_waitcnt lgkmcnt(0)'); a('s_barrier'); a('s_branch K1_end')

    a.lab('K1A_entry')
    a('s_sub_u32 s%d, s%d, 24'%(S_T0,S_J)); a('s_lshr_b32 s%d, s%d, 1'%(S_T1,S_T0)); a('s_and_b32 s%d, s%d, 1'%(S_CT,S_T0))
    a('s_lshl_b32 s%d, s%d, 2'%(S_RB,S_G)); a('s_add_u32 s%d, s%d, s%d'%(S_RB,S_RB,S_T1))
    a('s_cmp_ge_u32 s%d, 12'%S_WAVE); a('s_cbranch_scc1 K1A_work')
    a('s_cmp_ge_u32 s%d, 8'%S_WAVE); a('s_cbranch_scc1 K1A_prod')
    ACC=16; FA=56; FB=84; XA=[112,113]; WA2=[114,115]
    a('s_and_b32 s%d, s%d, 3'%(S_PW,S_WAVE)); a('s_lshr_b32 s%d, s%d, 2'%(S_H,S_WAVE))
    a('v_and_b32 v1, 15, v0'); a('v_lshrrev_b32 v2, 4, v0'); a('v_and_b32 v3, 7, v0'); a('v_xor_b32 v3, v3, v2'); a('v_lshlrev_b32 v3, 4, v3')
    a('v_lshl_add_u32 v3, v1, 7, v3')
    a('s_lshl_b32 s%d, s%d, 11'%(S_T0,S_PW)); a('v_add_u32 v%d, s%d, v3'%(XA[0],S_T0)); a('v_xor_b32 v%d, 64, v%d'%(XA[1],XA[0]))
    a('s_mul_i32 s%d, s%d, %d'%(S_T0,S_H,80*128)); a('s_add_u32 s%d, s%d, 16384'%(S_T0,S_T0)); a('v_add_u32 v%d, s%d, v3'%(WA2[0],S_T0)); a('v_xor_b32 v%d, 64, v%d'%(WA2[1],WA2[0]))
    ln1_row(a)
    for k in range(40): a('v_mov_b32 v%d, 0'%(ACC+k))
    ln1_row_finish(a)
    def accA(tb,j): return ACC+(j*2+tb)*4
    def rdA(st,sub):
        F=FA if st==0 else FB; m=[]
        for tb in range(2): m.append('ds_read_b128 %s, v%d offset:%d'%(vr(F+tb*4,4),XA[sub],tb*8192))
        for j in range(5): m.append('ds_read_b128 %s, v%d offset:%d'%(vr(F+8+j*4,4),WA2[sub],j*2048))
        return m
    def mfA(st):
        F=FA if st==0 else FB; m=[]
        for j in range(5):
            for tb in range(2):
                c=vr(accA(tb,j),4); m.append('v_mfma_f32_16x16x32_bf16 %s, %s, %s, %s'%(c,vr(F+tb*4,4),vr(F+8+j*4,4),c))
        return m
    a('s_cmp_eq_u32 s%d, 0'%S_H); a('s_cbranch_scc0 K1A_c1')
    consumer_loop(a,'K1A0',SLA,NK1,XA+WA2,rdA,mfA,lag=True,hook=ln1_hook(a),hook_at=2)
    a('s_branch K1A_cd')
    a.lab('K1A_c1')
    consumer_loop(a,'K1A1',SLA,NK1,XA+WA2,rdA,mfA,lag=False,hook=ln1_hook(a),hook_at=2)
    a.lab('K1A_cd')
    a('s_barrier')
    if EXP.get('fine') is None: gc.stamp(a,4)
    RT=56; RB_=60; RO=64; T4=[66,68]; PK=70; VO=76
    a('s_lshl_b32 s%d, s%d, 6'%(S_T0,S_PW)); a('v_lshlrev_b32 v3, 4, v2'); a('v_add_u32 v3, s%d, v3'%S_T0); a('v_add_u32 v3, %d, v3'%T_R)
    a('ds_read_b128 %s, v3'%vr(RT,4)); a('ds_read_b128 %s, v3 offset:256'%vr(RB_,4))
    a('s_mul_i32 s%d, s%d, %d'%(S_T0,S_HALF,AE_MAT)); a('s_lshl_b32 s%d, s%d, 1'%(S_T1,S_CT)); a('s_add_u32 s%d, s%d, s%d'%(S_T1,S_T1,S_H))
    a('s_mul_i32 s%d, s%d, 163840'%(S_T1,S_T1)); a('s_add_u32 s%d, s%d, s%d'%(S_T0,S_T0,S_T1)); a('s_mul_i32 s%d, s%d, 10240'%(S_T1,S_RB))
    a('s_add_u32 s%d, s%d, s%d'%(S_T0,S_T0,S_T1)); a('s_lshr_b32 s%d, s%d, 1'%(S_T1,S_PW)); a('s_mul_i32 s%d, s%d, 5120'%(S_T1,S_T1)); a('s_add_u32 s%d, s%d, s%d'%(S_SO,S_T0,S_T1))
    add64(a,S_T2,S_WS,WS_AE); srd(a,SRD_O,S_T2,S_T2+1,2*AE_MAT)
    a('s_and_b32 s%d, s%d, 1'%(S_T0,S_PW)); a('s_lshl_b32 s%d, s%d, 9'%(S_T0,S_T0))
    a('v_lshrrev_b32 v3, 1, v2'); a('v_lshlrev_b32 v3, 8, v3'); a('v_lshl_add_u32 v3, v1, 4, v3'); a('v_and_b32 v4, 1, v2'); a('v_lshl_add_u32 v3, v4, 3, v3')
    a('v_add_u32 v%d, s%d, v3'%(VO,S_T0))
    a('s_waitcnt lgkmcnt(0)')
    a('s_or_b32 s%d, s%d, s%d'%(S_T0,S_RB,S_PW)); a('s_or_b32 s%d, s%d, s%d'%(S_T0,S_T0,S_HALF)); a('s_cmp_eq_u32 s%d, 0'%S_T0); a('s_cbranch_scc0 K1A_nosp')
    add64(a,S_T2,S_WS,WS_A1024); srd(a,SRD_O2,S_T2,S_T2+1,1280)
    a('s_mul_i32 s%d, s%d, 640'%(S_T0,S_CT)); a('s_mul_i32 s%d, s%d, 320'%(S_T1,S_H)); a('s_add_u32 s%d, s%d, s%d'%(S_T0,S_T0,S_T1))
    a('v_lshlrev_b32 v5, 2, v1')
    a('v_cmp_gt_u32 vcc, 16, v0'); a('s_and_saveexec_b64 s[%d:%d], vcc'%(S_EX,S_EX+1))
    for j in range(5):
        a('v_mul_f32 v%d, v%d, v%d'%(RO,accA(1,j),RB_))
        a('buffer_store_dword v%d, v5, s[%d:%d], s%d offen offset:%d%s'%(RO,SRD_O2,SRD_O2+3,S_T0,j*64,g2.STF)); a('s_nop 0')
    a('v_mov_b32 v%d, 0'%RB_)
    a('s_mov_b64 exec, s[%d:%d]'%(S_EX,S_EX+1))
    a.lab('K1A_nosp')
    a('s_cmp_eq_u32 s%d, 0'%S_HALF); a('s_cselect_b32 s%d, 1.0, -1.0'%S_T0)
    for k in range(4): a('v_mul_f32 v%d, s%d, v%d'%(RB_+k,S_T0,RB_+k))
    for j in range(5):
        for p in range(2): a('v_pk_mul_f32 %s, %s, %s'%(vr(T4[p],2),vr(accA(1,j)+2*p,2),vr(RB_+2*p,2)))
        for p in range(2): a('v_pk_fma_f32 %s, %s, %s, %s'%(vr(T4[p],2),vr(accA(0,j)+2*p,2),vr(RT+2*p,2),vr(T4[p],2)))
        for p in range(2): a('v_cvt_pk_bf16_f32 v%d, v%d, v%d'%(PK+p+2*(j&1),T4[p],T4[p]+1))
        if j<4: a('buffer_store_dwordx2 %s, v%d, s[%d:%d], s%d offen offset:%d%s'%(vr(PK+2*(j&1),2),VO,SRD_O,SRD_O+3,S_SO,j*1024,g2.STF))
        else:
            a('s_add_u32 s%d, s%d, 4096'%(S_SO,S_SO)); a('buffer_store_dwordx2 %s, v%d, s[%d:%d], s%d offen%s'%(vr(PK+2*(j&1),2),VO,SRD_O,SRD_O+3,S_SO,g2.STF))
    a('s_branch K1_end')
    a.lab('K1A_prod')
    XO4=[2,3,4,5]; WO1=6
    if EXP.get('same'): a('s_mov_b32 s%d, 0'%S_RB); a('s_mov_b32 s%d, 0'%S_CT)
    a('s_sub_u32 s%d, s%d, 8'%(S_PW,S_WAVE))
    a('v_lshrrev_b32 v20, 3, v0'); a('v_and_b32 v22, 7, v0'); a('v_xor_b32 v22, v22, v20'); a('v_lshlrev_b32 v22, 4, v22')
    a('s_lshl_b32 s%d, s%d, 6'%(S_T0,S_RB))
    a('s_cmp_lt_u32 s%d, 2'%S_PW); a('s_cbranch_scc0 K1Ap_bot')
    a('s_lshl_b32 s%d, s%d, 5'%(S_T1,S_PW)); a('s_add_u32 s%d, s%d, s%d'%(S_T1,S_T1,S_T0))
    for j in range(4):
        a('v_add_u32 v21, s%d, v20'%S_T1); a('v_add_u32 v21, %d, v21'%(8*j)); a('v_mul_u32_u24 v21, 1280, v21'); a('v_add_u32 v%d, v21, v22'%XO4[j])
    a('s_branch K1Ap_xd')
    a.lab('K1Ap_bot')
    a('s_sub_u32 s%d, s%d, 2'%(S_T1,S_PW)); a('s_lshl_b32 s%d, s%d, 5'%(S_T1,S_T1)); a('s_add_u32 s%d, s%d, s%d'%(S_T1,S_T1,S_T0)); a('s_sub_u32 s%d, 2048, s%d'%(S_T1,S_T1))
    for j in range(4):
        a('v_sub_u32 v21, s%d, v20'%S_T1); a('v_subrev_u32 v21, %d, v21'%(8*j))
        if j==0:
            a('v_cmp_eq_u32 vcc, 2048, v21'); a('v_mov_b32 v23, 1024'); a('s_nop 0'); a('v_cndmask_b32 v21, v21, v23, vcc')
        a('v_mul_u32_u24 v21, 1280, v21'); a('v_add_u32 v%d, v21, v22'%XO4[j])
    a.lab('K1Ap_xd')
    a('s_mul_i32 s%d, s%d, 40'%(S_T0,S_PW)); a('v_add_u32 v21, s%d, v20'%S_T0); a('v_mul_u32_u24 v21, 1280, v21'); a('v_add_u32 v%d, v21, v22'%WO1)
    a('s_mov_b32 s%d, 0'%S_SLI)
    krot(a); a('s_lshl_b32 s%d, s%d, 7'%(S_KX,S_T0))
    a('s_waitcnt lgkmcnt(0)')
    srd(a,SRD_X,S_X,S_X+1,2048*1280)
    a('s_cmp_eq_u32 s%d, 0'%S_HALF); a('s_cselect_b32 s%d, s%d, s%d'%(S_T2,S_WDRE,S_WDIM)); a('s_cselect_b32 s%d, s%d, s%d'%(S_T3,S_WDRE+1,S_WDIM+1))
    a('s_mul_i32 s%d, s%d, %d'%(S_T0,S_CT,160*1280)); a('s_add_u32 s%d, s%d, 1280'%(S_T0,S_T0)); add64(a,S_T2,S_T2,'s%d'%S_T0)
    srd(a,SRD_W,S_T2,S_T2+1,160*1280)
    def issueA():
        a('s_lshl_b32 s%d, s%d, 12'%(S_T,S_PW)); a('s_add_u32 s%d, s%d, s%d'%(S_T,S_T,S_SLI))
        for j in range(4):
            a('s_add_u32 m0, s%d, %d'%(S_T,j*1024)); a('s_nop 0')
            a(ld('buffer_load_dwordx4 v%d, s[%d:%d], s%d offen lds'%(XO4[j],SRD_X,SRD_X+3,S_KX)))
        a('s_mul_i32 s%d, s%d, 5120'%(S_T,S_PW)); a('s_add_u32 s%d, s%d, s%d'%(S_T,S_T,S_SLI))
        for j in range(5):
            a('s_add_u32 m0, s%d, %d'%(S_T,16384+j*1024)); a('s_add_u32 s%d, s%d, %d'%(S_SO,S_KX,j*10240))
            a(ld('buffer_load_dwordx4 v%d, s[%d:%d], s%d offen lds'%(WO1,SRD_W,SRD_W+3,S_SO)))
        slot_advance(a,S_SLI,SLA); a('s_add_u32 s%d, s%d, 128'%(S_KX,S_KX))
        a('s_cmp_eq_u32 s%d, 1280'%S_KX); a('s_cselect_b32 s%d, 0, s%d'%(S_KX,S_KX))
    dma_producer(a,'K1Ap',NK1,9,issueA,post=1)
    a('s_branch K1_end')
    a.lab('K1A_work')
    a('s_sub_u32 s%d, s%d, 12'%(S_PW,S_WAVE))
    a('s_waitcnt lgkmcnt(0)')
    worker(a,'K1Aw',SLA,False)
    a('s_waitcnt lgkmcnt(0)'); a('s_barrier')
    kernel_tail(a,'K1',0,S_WS)
```

```python
from g2_common import *
import g2_common as g2
SLG=34816; SLT=28672
K2_LDS=NS*SLG
NK2=16
S_WSP=4; S_WS=6; S_WSRE=8; S_WSIM=10; S_BSP=12; S_WOUT=14
SRD_A=16; SRD_B=20; SRD_O=24; SRD_O2=28; SRD_C=56; SRD_D=60
S_KH=36; S_TB=37

def gen_k2(a,kname):
    kernel_head(a,kname,'K2')
    a('s_load_dwordx4 s[%d:%d], s[0:1], 8'%(S_WSRE,S_WSRE+3))
    a('s_load_dwordx2 s[%d:%d], s[0:1], 56'%(S_WSP,S_WSP+1))
    a('s_load_dwordx2 s[%d:%d], s[0:1], 64'%(S_BSP,S_BSP+1))
    a('s_load_dwordx2 s[%d:%d], s[0:1], 96'%(S_WS,S_WS+1))
    a('s_load_dwordx2 s[%d:%d], s[0:1], 72'%(S_WOUT,S_WOUT+1))
    wave_setup(a,'K2')
    a('s_and_b32 s%d, s2, 7'%S_XCD); a('s_lshr_b32 s%d, s2, 3'%S_J)
    a('s_and_b32 s%d, s%d, 1'%(S_KH,S_XCD))
    a('s_cmp_ge_u32 s%d, 24'%S_J); a('s_cbranch_scc1 K2T_entry')
    a('s_mul_i32 s%d, s%d, 43'%(S_T0,S_J)); a('s_lshr_b32 s%d, s%d, 8'%(S_T0,S_T0))
    a('s_mul_i32 s%d, s%d, 6'%(S_T1,S_T0)); a('s_sub_u32 s%d, s%d, s%d'%(S_CT,S_J,S_T1))
    a('s_lshr_b32 s%d, s%d, 1'%(S_T1,S_XCD)); a('s_lshl_b32 s%d, s%d, 2'%(S_T1,S_T1)); a('s_add_u32 s%d, s%d, s%d'%(S_TB,S_T1,S_T0))
    a('s_cmp_ge_u32 s%d, 8'%S_WAVE); a('s_cbranch_scc1 K2G_prod')
    ACC=16; FA=56; FB=84; WA=[112,113]; ZA=114; Z1L=[2,6,10,116,120]; BB=124
    a('s_and_b32 s%d, s%d, 3'%(S_PW,S_WAVE)); a('s_lshr_b32 s%d, s%d, 2'%(S_H,S_WAVE))
    a('v_and_b32 v6, 15, v0'); a('v_lshrrev_b32 v7, 4, v0'); a('v_and_b32 v8, 7, v0'); a('v_xor_b32 v8, v8, v7'); a('v_lshlrev_b32 v8, 4, v8')
    a('v_lshl_add_u32 v8, v6, 7, v8'); a('s_lshl_b32 s%d, s%d, 12'%(S_T0,S_PW)); a('v_add_u32 v%d, s%d, v8'%(WA[0],S_T0)); a('v_xor_b32 v%d, 64, v%d'%(WA[1],WA[0]))
    a('s_mul_i32 s%d, s%d, 5120'%(S_T0,S_H)); a('s_add_u32 s%d, s%d, 16384'%(S_T0,S_T0)); a('v_lshlrev_b32 v14, 4, v0'); a('v_add_u32 v%d, s%d, v14'%(ZA,S_T0))
    for k in range(40): a('v_mov_b32 v%d, 0'%(ACC+k))
    a('s_mul_i32 s%d, s%d, 6'%(S_T0,S_TB)); a('s_add_u32 s%d, s%d, s%d'%(S_T0,S_T0,S_CT)); a('s_lshl_b32 s%d, s%d, 3'%(S_T0,S_T0))
    a('s_add_u32 s%d, s%d, s%d'%(S_T0,S_T0,S_WAVE)); a('s_mul_i32 s%d, s%d, 5120'%(S_SO,S_T0))
    a('s_lshl_b32 s%d, s%d, 7'%(S_T0,S_TB)); a('s_lshl_b32 s%d, s%d, 5'%(S_T1,S_PW)); a('s_add_u32 s%d, s%d, s%d'%(S_T0,S_T0,S_T1))
    a('v_add_u32 v15, s%d, v6'%S_T0); a('v_lshlrev_b32 v15, 1, v15')
    a('s_waitcnt lgkmcnt(0)')
    add64(a,S_T2,S_WS,WS_Z1); srd(a,SRD_C,S_T2,S_T2+1,96*40960)
    srd(a,SRD_O2,S_BSP,S_BSP+1,4096)
    def pfz_g(tag):
        a('buffer_load_dword v127, v126, s[%d:%d], s%d offen'%(SRD_D,SRD_D+3,S_G))
        l=a.newlab('K2G_pfz')
        a('s_cmp_eq_u32 s%d, 7'%S_WAVE); a('s_cbranch_scc0 %s'%l); a('buffer_load_dword v127, v1, s[%d:%d], s%d offen'%(SRD_D,SRD_D+3,S_G)); a.lab(l)
    if EXP.get('pfz'):
        a('s_mul_i32 s%d, s%d, %d'%(S_T2,S_CT,Z2_CT)); a('s_mul_i32 s%d, s%d, %d'%(S_T3,S_KH,16*18432)); a('s_add_u32 s%d, s%d, s%d'%(S_T1,S_T2,S_T3))
        add64(a,S_T2,S_WS,'s%d'%S_T1); srd(a,SRD_D,S_T2,S_T2+1,16*18432)
        a('s_and_b32 s%d, s%d, 3'%(S_G,S_TB)); a('s_mul_i32 s%d, s%d, %d'%(S_G,S_G,36*128))
        for rep_,dst in ((0,126),(1,1)):
            a('s_lshl_b32 s%d, s%d, 6'%(S_T0,S_WAVE))
            if rep_==1: a('s_mov_b32 s%d, 512'%S_T0)
            a('v_add_u32 v9, s%d, v0'%S_T0); a('v_mul_u32_u24 v10, 1821, v9'); a('v_lshrrev_b32 v10, 16, v10')
            a('v_mul_u32_u24 v11, 36, v10'); a('v_sub_u32 v11, v9, v11'); a('v_mul_u32_u24 v10, 18432, v10'); a('v_lshl_add_u32 v%d, v11, 7, v10'%dst)
    def acc(i,j): return ACC+(j*2+i)*4
    a('s_cmp_eq_u32 s%d, 0'%S_H); a('s_cbranch_scc0 K2Gc_1')
    for h in range(2):
        nj=5-h; nm='K2Gc_%d'%h
        a.lab(nm)
        def hk(nj=nj):
            for j in range(min(nj,4)): a('buffer_load_dwordx4 %s, v14, s[%d:%d], s%d offen offset:%d'%(vr(Z1L[j],4),SRD_C,SRD_C+3,S_SO,j*1024))
            if nj==5:
                a('s_add_u32 s%d, s%d, 4096'%(S_SO,S_SO)); a('buffer_load_dwordx4 %s, v14, s[%d:%d], s%d offen'%(vr(Z1L[4],4),SRD_C,SRD_C+3,S_SO))
            a('buffer_load_ushort v%d, v15, s[%d:%d], 0 offen'%(BB,SRD_O2,SRD_O2+3)); a('buffer_load_ushort v%d, v15, s[%d:%d], 0 offen offset:32'%(BB+1,SRD_O2,SRD_O2+3))
        def rd(st,sub,nj=nj):
            F=FA if st==0 else FB; m=[]
            for i in range(2): m.append('ds_read_b128 %s, v%d offset:%d'%(vr(F+i*4,4),WA[sub],i*2048))
            for j in range(nj): m.append('ds_read_b128 %s, v%d offset:%d'%(vr(F+8+j*4,4),ZA,sub*9216+j*1024))
            return m
        def mf(st,nj=nj):
            F=FA if st==0 else FB; m=[]
            for j in range(nj):
                for i in range(2):
                    c=vr(acc(i,j),4); m.append('v_mfma_f32_16x16x32_bf16 %s, %s, %s, %s'%(c,vr(F+8+j*4,4),vr(F+i*4,4),c))
            return m
        consumer_loop(a,nm+'L',SLG,NK2,WA+[ZA],rd,mf,hook=({EXP.get('z1at',9):hk,EXP.get('pfzat',1):(lambda h=h:pfz_g('%d'%h))} if EXP.get('pfz') else hk),hook_at=EXP.get('z1at',9),lag=(h==0),phase=2)
        a('s_barrier')
        a('s_waitcnt vmcnt(0)')
        a('s_cmp_eq_u32 s%d, 0'%S_KH); a('s_cselect_b32 s%d, 1.0, 0'%S_T0)
        a('v_lshlrev_b32 v%d, 16, v%d'%(BB,BB)); a('v_lshlrev_b32 v%d, 16, v%d'%(BB+1,BB+1))
        a('v_mul_f32 v%d, s%d, v%d'%(BB,S_T0,BB)); a('v_mul_f32 v%d, s%d, v%d'%(BB+1,S_T0,BB+1))
        a('s_mul_i32 s%d, s%d, %d'%(S_T0,S_KH,H_VER)); add64(a,S_T2,S_WS,WS_H); add64(a,S_T2,S_T2,'s%d'%S_T0); srd(a,SRD_O,S_T2,S_T2+1,H_VER)
        a('s_lshl_b32 s%d, s%d, 3'%(S_T0,S_TB)); a('s_lshl_b32 s%d, s%d, 1'%(S_T1,S_PW)); a('s_add_u32 s%d, s%d, s%d'%(S_T0,S_T0,S_T1)); a('s_mul_i32 s%d, s%d, 27648'%(S_T0,S_T0))
        a('s_mul_i32 s%d, s%d, 9'%(S_T1,S_CT)); a('s_add_u32 s%d, s%d, %d'%(S_T1,S_T1,5*h)); a('s_lshl_b32 s%d, s%d, 9'%(S_T1,S_T1))
        a('s_add_u32 s%d, s%d, s%d'%(S_SO,S_T0,S_T1)); a('s_add_u32 s%d, s%d, 27648'%(S_SO2,S_SO))
        a('v_lshlrev_b32 v14, 3, v0')
        TZ=[56,58,60,62]; PK=64
        for j in range(nj):
            prs=[(i,p) for i in range(2) for p in range(2)]
            for k,(i,p) in enumerate(prs):
                z=Z1L[j]+2*i+p
                a('v_lshlrev_b32 v%d, 16, v%d'%(TZ[k],z)); a('v_and_b32 v%d, 0xffff0000, v%d'%(TZ[k]+1,z))
            for k,(i,p) in enumerate(prs):
                r=acc(i,j)+2*p; a('v_pk_add_f32 %s, %s, %s op_sel:[0,%d] op_sel_hi:[1,%d]'%(vr(r,2),vr(r,2),vr(BB,2),i,i))
            for k,(i,p) in enumerate(prs):
                r=acc(i,j)+2*p; a('v_pk_mul_f32 %s, %s, %s'%(vr(r,2),vr(r,2),vr(TZ[k],2)))
            o=PK+4*(j&1)
            for k,(i,p) in enumerate(prs):
                r=acc(i,j)+2*p; a('v_cvt_pk_bf16_f32 v%d, v%d, v%d'%(o+k,r,r+1))
            a('buffer_store_dwordx2 %s, v14, s[%d:%d], s%d offen offset:%d%s'%(vr(o,2),SRD_O,SRD_O+3,S_SO,j*512,g2.STF))
            a('buffer_store_dwordx2 %s, v14, s[%d:%d], s%d offen offset:%d%s'%(vr(o+2,2),SRD_O,SRD_O+3,S_SO2,j*512,g2.STF))
        a('s_branch K2_end')
    a.lab('K2G_prod')
    WO=2; ZO=3; S_ZO=S_PAR
    if EXP.get('same'): a('s_mov_b32 s%d, 0'%S_TB); a('s_mov_b32 s%d, 0'%S_CT); a('s_mov_b32 s%d, 0'%S_KH)
    a('s_sub_u32 s%d, s%d, 8'%(S_PW,S_WAVE))
    a('v_lshrrev_b32 v20, 3, v0'); a('v_and_b32 v22, 7, v0'); a('v_xor_b32 v22, v22, v20'); a('v_lshlrev_b32 v22, 4, v22')
    a('s_lshl_b32 s%d, s%d, 4'%(S_T0,S_PW)); a('v_add_u32 v21, s%d, v20'%S_T0); a('v_lshlrev_b32 v21, 12, v21'); a('v_add_u32 v%d, v21, v22'%WO)
    a('s_mul_i32 s%d, s%d, 3'%(S_T0,S_PW)); a('s_lshl_b32 s%d, s%d, 1'%(S_T1,S_PW)); a('s_add_u32 s%d, s%d, 2'%(S_T1,S_T1))
    a('s_cmp_lt_u32 s%d, 2'%S_PW); a('s_cselect_b32 s%d, s%d, s%d'%(S_ZO,S_T0,S_T1)); a('s_lshl_b32 s%d, s%d, 10'%(S_ZO,S_ZO))
    a('v_lshlrev_b32 v20, 4, v0'); a('v_add_u32 v%d, s%d, v20'%(ZO,S_ZO))
    a('s_mov_b32 s%d, 0'%S_SLI)
    a('s_mul_i32 s%d, s%d, %d'%(S_T0,S_CT,EXP.get('ra',0))); a('s_and_b32 s%d, s%d, 3'%(S_T1,S_TB)); a('s_mul_i32 s%d, s%d, %d'%(S_T1,S_T1,EXP.get('rb',0)))
    a('s_add_u32 s%d, s%d, s%d'%(S_T0,S_T0,S_T1)); a('s_and_b32 s%d, s%d, 15'%(S_T0,S_T0)); a('s_lshl_b32 s%d, s%d, 7'%(S_KX,S_T0)); a('s_mul_i32 s%d, s%d, 18432'%(S_KW,S_T0))
    a('s_mul_i32 s%d, s%d, %d'%(S_T0,S_TB,128*4096)); a('s_lshl_b32 s%d, s%d, 11'%(S_T1,S_KH)); a('s_add_u32 s%d, s%d, s%d'%(S_T0,S_T0,S_T1))
    a('s_sub_u32 s%d, %d, s%d'%(S_T1,128*4096,S_T1))
    a('s_mul_i32 s%d, s%d, %d'%(S_T2,S_CT,Z2_CT)); a('s_mul_i32 s%d, s%d, %d'%(S_T3,S_KH,16*18432)); a('s_add_u32 s%d, s%d, s%d'%(S_SO2,S_T2,S_T3))
    a('s_waitcnt lgkmcnt(0)')
    add64(a,S_WSP,S_WSP,'s%d'%S_T0); srd(a,SRD_A,S_WSP,S_WSP+1,'s%d'%S_T1)
    add64(a,S_T2,S_WS,'s%d'%S_SO2); srd(a,SRD_B,S_T2,S_T2+1,16*18432)
    def issue():
        a('s_lshl_b32 s%d, s%d, 11'%(S_T,S_PW)); a('s_add_u32 s%d, s%d, s%d'%(S_T,S_T,S_SLI))
        for j in range(2):
            a('s_add_u32 m0, s%d, %d'%(S_T,j*1024)); a('s_add_u32 s%d, s%d, %d'%(S_SO,S_KX,j*32768))
            a(ld('buffer_load_dwordx4 v%d, s[%d:%d], s%d offen lds'%(WO,SRD_A,SRD_A+3,S_SO)))
        a('s_add_u32 s%d, s%d, s%d'%(S_T,S_SLI,S_ZO)); a('s_add_u32 m0, s%d, 16384'%S_T); a('s_nop 0')
        for j in range(2): a('buffer_load_dwordx4 v%d, s[%d:%d], s%d offen offset:%d lds'%(ZO,SRD_B,SRD_B+3,S_KW,j*1024))
        lab=a.newlab('K2Gp_t')
        a('s_cmp_lt_u32 s%d, 2'%S_PW); a('s_cbranch_scc0 %s'%lab)
        a('buffer_load_dwordx4 v%d, s[%d:%d], s%d offen offset:2048 lds'%(ZO,SRD_B,SRD_B+3,S_KW))
        a.lab(lab)
        slot_advance(a,S_SLI,SLG); a('s_add_u32 s%d, s%d, 128'%(S_KX,S_KX)); a('s_add_u32 s%d, s%d, 18432'%(S_KW,S_KW))
        a('s_cmp_eq_u32 s%d, 2048'%S_KX); a('s_cselect_b32 s%d, 0, s%d'%(S_KX,S_KX)); a('s_cselect_b32 s%d, 0, s%d'%(S_KW,S_KW))
    dma_producer(a,'K2Gp',NK2,4,issue,phase=2,s_ws=S_WS,post=1)
    a('s_branch K2_end')

    a.lab('K2T_entry')
    a('s_sub_u32 s%d, s%d, 24'%(S_T0,S_J)); a('s_and_b32 s%d, s%d, 3'%(S_CT,S_T0)); a('s_lshr_b32 s%d, s%d, 2'%(S_T0,S_T0))
    a('s_lshr_b32 s%d, s%d, 1'%(S_T1,S_XCD)); a('s_lshl_b32 s%d, s%d, 1'%(S_T1,S_T1)); a('s_add_u32 s%d, s%d, s%d'%(S_TB,S_T1,S_T0))
    a('s_cmp_ge_u32 s%d, 8'%S_WAVE); a('s_cbranch_scc1 K2T_prod')
    a('s_and_b32 s%d, s%d, 3'%(S_PW,S_WAVE)); a('s_lshr_b32 s%d, s%d, 2'%(S_H,S_WAVE))
    a('s_cmp_eq_u32 s%d, 3'%S_PW); a('s_cbranch_scc1 K2T_xpf')
    ACC=16; FA=56; FB=80; WA=[112,113]; AA=114; A1=116
    a('v_lshrrev_b32 v7, 4, v0'); a('v_lshlrev_b32 v5, 4, v7')
    a('v_and_b32 v6, 15, v0'); a('v_and_b32 v8, 7, v0'); a('v_xor_b32 v8, v8, v7'); a('v_lshlrev_b32 v8, 4, v8'); a('v_lshl_add_u32 v8, v6, 7, v8')
    a('s_mul_i32 s%d, s%d, %d'%(S_T0,S_PW,48*128)); a('v_add_u32 v%d, s%d, v8'%(WA[0],S_T0)); a('v_xor_b32 v%d, 64, v%d'%(WA[1],WA[0]))
    a('s_mul_i32 s%d, s%d, 3072'%(S_T0,S_H)); a('s_add_u32 s%d, s%d, 18432'%(S_T0,S_T0)); a('v_lshlrev_b32 v9, 4, v0'); a('v_add_u32 v%d, s%d, v9'%(AA,S_T0))
    for k in range(36): a('v_mov_b32 v%d, 0'%(ACC+k))
    a('s_mul_i32 s%d, s%d, 320'%(S_T0,S_CT)); a('s_mul_i32 s%d, s%d, 192'%(S_T1,S_H)); a('s_add_u32 s%d, s%d, s%d'%(S_SO,S_T0,S_T1))
    a('s_waitcnt lgkmcnt(0)')
    add64(a,S_T2,S_WS,WS_A1024); srd(a,SRD_C,S_T2,S_T2+1,1280)
    def pfz_t(tag):
        a('buffer_load_dword v2, v10, s[%d:%d], s%d offen'%(SRD_D,SRD_D+3,S_G))
        l=a.newlab('K2T_pfz')
        a('s_cmp_lt_u32 s%d, 4'%S_PAR); a('s_cbranch_scc0 %s'%l); a('buffer_load_dword v2, v11, s[%d:%d], s%d offen'%(SRD_D,SRD_D+3,S_G)); a.lab(l)
    if EXP.get('pfz'):
        a('s_mul_i32 s%d, s%d, %d'%(S_T0,S_KH,AE_MAT)); a('s_mul_i32 s%d, s%d, 163840'%(S_T1,S_CT)); a('s_add_u32 s%d, s%d, s%d'%(S_T1,S_T0,S_T1))
        add64(a,S_T2,S_WS,WS_AE); add64(a,S_T2,S_T2,'s%d'%S_T1); srd(a,SRD_D,S_T2,S_T2+1,163840)
        a('s_and_b32 s%d, s%d, 1'%(S_G,S_TB)); a('s_mul_i32 s%d, s%d, %d'%(S_G,S_G,40*128))
        a('s_mul_i32 s%d, s%d, 3'%(S_PAR,S_H)); a('s_add_u32 s%d, s%d, s%d'%(S_PAR,S_PAR,S_PW))
        for rep_,dst in ((0,10),(1,11)):
            a('s_add_u32 s%d, s%d, %d'%(S_T0,S_PAR,6*rep_)); a('s_lshl_b32 s%d, s%d, 6'%(S_T0,S_T0))
            a('v_add_u32 v1, s%d, v0'%S_T0); a('v_mul_u32_u24 v12, 1639, v1'); a('v_lshrrev_b32 v12, 16, v12')
            a('v_mul_u32_u24 v13, 40, v12'); a('v_sub_u32 v13, v1, v13'); a('v_mul_u32_u24 v12, 10240, v12'); a('v_lshl_add_u32 v%d, v13, 7, v12'%dst)
    def accT(i,j): return ACC+(j*3+i)*4
    a('s_cmp_eq_u32 s%d, 0'%S_H); a('s_cbranch_scc0 K2Tc_1')
    for h in range(2):
        nj=3-h; nm='K2Tc_%d'%h
        a.lab(nm)
        def hkT(nj=nj):
            for j in range(nj): a('buffer_load_dwordx4 %s, v5, s[%d:%d], s%d offen offset:%d'%(vr(A1+4*j,4),SRD_C,SRD_C+3,S_SO,j*64))
        def rdT(st,sub,nj=nj):
            F=FA if st==0 else FB; m=[]
            for i in range(3): m.append('ds_read_b128 %s, v%d offset:%d'%(vr(F+i*4,4),WA[sub],i*2048))
            for j in range(nj): m.append('ds_read_b128 %s, v%d offset:%d'%(vr(F+12+j*4,4),AA,sub*5120+j*1024))
            return m
        def mfT(st,nj=nj):
            F=FA if st==0 else FB; m=[]
            for j in range(nj):
                for i in range(3):
                    c=vr(accT(i,j),4); m.append('v_mfma_f32_16x16x32_bf16 %s, %s, %s, %s'%(c,vr(F+12+j*4,4),vr(F+i*4,4),c))
            return m
        consumer_loop(a,nm+'L',SLT,NK2,WA+[AA],rdT,mfT,hook=({4:hkT,EXP.get('pfzat',1):(lambda h=h:pfz_t('%d'%h))} if EXP.get('pfz') else hkT),hook_at=4,lag=(h==0),phase=2)
        a('s_barrier')
        a('s_waitcnt vmcnt(0)')
        a('s_cmp_eq_u32 s%d, 0'%S_KH); a('s_cselect_b32 s%d, 1.0, 0'%S_T0)
        a('v_and_b32 v5, 1, v0'); a('v_lshlrev_b32 v5, 31, v5'); a('v_xor_b32 v5, s%d, v5'%S_T0)
        a('s_mul_i32 s%d, s%d, %d'%(S_T0,S_KH,PQ_MAT)); add64(a,S_T2,S_WS,WS_PQ); add64(a,S_T2,S_T2,'s%d'%S_T0); srd(a,SRD_O,S_T2,S_T2+1,PQ_MAT)
        a('s_mul_i32 s%d, s%d, 144'%(S_T0,S_TB)); a('s_mul_i32 s%d, s%d, 48'%(S_T1,S_PW)); a('s_add_u32 s%d, s%d, s%d'%(S_T0,S_T0,S_T1)); a('s_mul_i32 s%d, s%d, 1280'%(S_T0,S_T0))
        a('s_mul_i32 s%d, s%d, 320'%(S_T1,S_CT)); a('s_add_u32 s%d, s%d, s%d'%(S_T0,S_T0,S_T1)); a('s_add_u32 s%d, s%d, %d'%(S_SO,S_T0,192*h))
        a('v_mul_u32_u24 v6, 1280, v6'); a('v_lshl_add_u32 v6, v7, 4, v6')
        if EXP.get('nopA'):
            for _ in range(EXP['nopA']): a('s_nop 15')
        for j in range(nj):
            for i in range(3):
                r=accT(i,j)
                if EXP.get('plain'):
                    for p in range(4): a('v_fma_f32 v%d, v%d, v5, v%d'%(r+p,A1+4*j+p,r+p))
                else:
                    for p in range(2): a('v_pk_fma_f32 %s, %s, %s, %s op_sel:[0,1,0] op_sel_hi:[1,1,1]'%(vr(r+2*p,2),vr(A1+4*j+2*p,2),vr(4,2),vr(r+2*p,2)))
            if EXP.get('nopB'): a('s_nop 7')
            for i in range(3):
                a('s_add_u32 s%d, s%d, %d'%(S_SO2,S_SO,i*16*1280))
                a('buffer_store_dwordx4 %s, v6, s[%d:%d], s%d offen offset:%d%s'%(vr(accT(i,j),4),SRD_O,SRD_O+3,S_SO2,j*64,g2.STF))
        a('s_branch K2_end')
    a.lab('K2T_xpf')
    if g2.FUSED[0]:
        if EXP.get('t2pf'):
            a('s_waitcnt lgkmcnt(0)')
            a('s_cmp_eq_u32 s%d, 0'%S_H); a('s_cbranch_scc0 K2T_xpf7')
            a('s_lshr_b32 s%d, s%d, 1'%(S_T0,S_XCD)); a('s_lshl_b32 s%d, s%d, 9'%(S_T0,S_T0)); a('s_sub_u32 s%d, s%d, 24'%(S_T1,S_J)); a('s_lshl_b32 s%d, s%d, 6'%(S_T1,S_T1))
            a('s_add_u32 s%d, s%d, s%d'%(S_T0,S_T0,S_T1)); a('v_add_u32 v1, s%d, v0'%S_T0); a('v_lshlrev_b32 v1, 12, v1')
            a('s_lshl_b32 s%d, s%d, 11'%(S_SO,S_KH))
            srd(a,SRD_D,S_WSP,S_WSP+1,2048*4096)
            lead=EXP.get('t2lead',2)
            for k in range(lead):
                a('buffer_load_dword v2, v1, s[%d:%d], s%d offen'%(SRD_D,SRD_D+3,S_SO)); a('s_add_u32 s%d, s%d, 128'%(S_SO,S_SO))
            a('s_barrier')
            for i in range(NK2):
                a('s_barrier')
                if i+lead<NK2:
                    a('buffer_load_dword v2, v1, s[%d:%d], s%d offen'%(SRD_D,SRD_D+3,S_SO)); a('s_add_u32 s%d, s%d, 128'%(S_SO,S_SO))
            a('s_barrier')
            a('s_branch K2_end')
            a.lab('K2T_xpf7')
            a('s_sub_u32 s%d, s%d, 24'%(S_T1,S_J)); a('s_lshl_b32 s%d, s%d, 3'%(S_T1,S_T1)); a('s_add_u32 s%d, s%d, s%d'%(S_T1,S_T1,S_XCD)); a('s_mul_i32 s%d, s%d, %d'%(S_SO,S_T1,135*128))
            a('v_lshlrev_b32 v1, 7, v0')
            srd(a,SRD_D,S_WOUT,S_WOUT+1,864*1280)
            a('s_barrier')
            for i in range(NK2):
                a('s_barrier')
                if 8<=i<11:
                    a('s_mov_b32 exec_hi, 0x1fff'); a('buffer_load_dword v2, v1, s[%d:%d], s%d offen'%(SRD_D,SRD_D+3,S_SO)); a('s_mov_b32 exec_hi, -1'); a('s_add_u32 s%d, s%d, %d'%(S_SO,S_SO,45*128))
            a('s_barrier')
            a('s_branch K2_end')
        else:
            for _ in range(NK2+2): a('s_barrier')
            a('s_branch K2_end')
    else:
        if EXP.get('noxpf') or EXP.get('noxpf2'): a('s_endpgm')
        a('s_sub_u32 s%d, s%d, 24'%(S_T0,S_J)); a('s_lshl_b32 s%d, s%d, 1'%(S_T0,S_T0)); a('s_add_u32 s%d, s%d, s%d'%(S_T0,S_T0,S_H)); a('s_mul_i32 s%d, s%d, %d'%(S_SO,S_T0,540*128))
        a('v_lshlrev_b32 v1, 7, v0')
        a('s_waitcnt lgkmcnt(0)')
        srd(a,SRD_D,S_WOUT,S_WOUT+1,864*1280)
        st0=EXP.get('wpfat',13)
        for i in range(NK2):
            a('s_barrier')
            if i==st0:
                for k in range(9):
                    if k==8: a('s_mov_b32 exec_hi, 0'); a('s_mov_b32 exec_lo, 0xfffffff')
                    a('buffer_load_dword v2, v1, s[%d:%d], s%d offen'%(SRD_D,SRD_D+3,S_SO)); a('s_add_u32 s%d, s%d, 8192'%(S_SO,S_SO))
        a('s_barrier')
        a('s_endpgm')
    a.lab('K2T_prod')
    WO=2; AO=3; S_U0=S_PAR
    if EXP.get('same'): a('s_mov_b32 s%d, 0'%S_TB); a('s_mov_b32 s%d, 0'%S_CT); a('s_mov_b32 s%d, 0'%S_KH)
    a('s_sub_u32 s%d, s%d, 8'%(S_PW,S_WAVE))
    a('v_lshrrev_b32 v20, 3, v0'); a('v_and_b32 v22, 7, v0'); a('v_xor_b32 v22, v22, v20'); a('v_lshlrev_b32 v22, 4, v22'); a('v_lshl_add_u32 v%d, v20, 12, v22'%WO)
    a('s_lshl_b32 s%d, s%d, 1'%(S_T0,S_PW)); a('s_sub_u32 s%d, s%d, 2'%(S_T0,S_T0)); a('s_add_u32 s%d, s%d, 2'%(S_T1,S_PW))
    a('s_cmp_lt_u32 s%d, 4'%S_PW); a('s_cselect_b32 s%d, s%d, s%d'%(S_U0,S_T0,S_T1)); a('s_cmp_lt_u32 s%d, 2'%S_PW); a('s_cselect_b32 s%d, s%d, s%d'%(S_U0,S_PW,S_U0)); a('s_lshl_b32 s%d, s%d, 10'%(S_U0,S_U0))
    a('v_lshlrev_b32 v20, 4, v0'); a('v_add_u32 v%d, s%d, v20'%(AO,S_U0))
    a('s_mov_b32 s%d, 0'%S_SLI)
    a('s_mul_i32 s%d, s%d, %d'%(S_T0,S_CT,EXP.get('rta',0))); a('s_and_b32 s%d, s%d, 1'%(S_T1,S_TB)); a('s_mul_i32 s%d, s%d, %d'%(S_T1,S_T1,EXP.get('rtb',0)))
    a('s_add_u32 s%d, s%d, s%d'%(S_T0,S_T0,S_T1)); a('s_and_b32 s%d, s%d, 15'%(S_T0,S_T0)); a('s_lshl_b32 s%d, s%d, 7'%(S_KX,S_T0)); a('s_mul_i32 s%d, s%d, 10240'%(S_KW,S_T0))
    a('s_mul_i32 s%d, s%d, %d'%(S_T0,S_KH,AE_MAT)); a('s_mul_i32 s%d, s%d, 163840'%(S_T1,S_CT)); a('s_add_u32 s%d, s%d, s%d'%(S_SO2,S_T0,S_T1))
    a('s_mul_i32 s%d, s%d, %d'%(S_T0,S_TB,144*4096))
    a('s_waitcnt lgkmcnt(0)')
    a('s_cmp_eq_u32 s%d, 0'%S_KH); a('s_cselect_b32 s%d, s%d, s%d'%(S_T2,S_WSRE,S_WSIM)); a('s_cselect_b32 s%d, s%d, s%d'%(S_T3,S_WSRE+1,S_WSIM+1))
    add64(a,S_T2,S_T2,'s%d'%S_T0); srd(a,SRD_A,S_T2,S_T2+1,144*4096)
    add64(a,S_T2,S_WS,WS_AE); add64(a,S_T2,S_T2,'s%d'%S_SO2); srd(a,SRD_B,S_T2,S_T2+1,163840)
    def issueT():
        a('s_lshl_b32 s%d, s%d, 10'%(S_T,S_PW)); a('s_add_u32 s%d, s%d, s%d'%(S_T,S_T,S_SLI))
        a('s_lshl_b32 s%d, s%d, 15'%(S_T0,S_PW)); a('s_add_u32 s%d, s%d, s%d'%(S_T0,S_T0,S_KX))
        for i in range(2):
            a('s_add_u32 m0, s%d, %d'%(S_T,i*8192)); a('s_add_u32 s%d, s%d, %d'%(S_SO,S_T0,i*8*32768))
            a(('buffer_load_dwordx4 v%d, s[%d:%d], s%d offen lds'%(WO,SRD_A,SRD_A+3,S_SO)).replace(' lds',(' nt' if EXP.get('t2nt') else LDK[2])+' lds'))
        a('s_add_u32 s%d, s%d, s%d'%(S_T1,S_SLI,S_U0)); a('s_add_u32 m0, s%d, 18432'%S_T1); a('s_nop 0')
        a('buffer_load_dwordx4 v%d, s[%d:%d], s%d offen lds'%(AO,SRD_B,SRD_B+3,S_KW))
        l1=a.newlab('K2Tp_a'); l2=a.newlab('K2Tp_b')
        a('s_cmp_lt_u32 s%d, 2'%S_PW); a('s_cbranch_scc1 %s'%l1)
        a('s_cmp_lt_u32 s%d, 4'%S_PW); a('s_cbranch_scc0 %s'%l2)
        a('buffer_load_dwordx4 v%d, s[%d:%d], s%d offen offset:1024 lds'%(AO,SRD_B,SRD_B+3,S_KW)); a('s_branch %s'%l2)
        a.lab(l1)
        a('s_add_u32 m0, s%d, %d'%(S_T,2*8192)); a('s_add_u32 s%d, s%d, %d'%(S_SO,S_T0,2*8*32768))
        a(('buffer_load_dwordx4 v%d, s[%d:%d], s%d offen lds'%(WO,SRD_A,SRD_A+3,S_SO)).replace(' lds',(' nt' if EXP.get('t2nt') else LDK[2])+' lds'))
        a.lab(l2)
        slot_advance(a,S_SLI,SLT); a('s_add_u32 s%d, s%d, 128'%(S_KX,S_KX)); a('s_add_u32 s%d, s%d, 10240'%(S_KW,S_KW))
        a('s_cmp_eq_u32 s%d, 2048'%S_KX); a('s_cselect_b32 s%d, 0, s%d'%(S_KX,S_KX)); a('s_cselect_b32 s%d, 0, s%d'%(S_KW,S_KW))
    dma_producer(a,'K2Tp',NK2,3,issueT,phase=2,s_ws=S_WS,post=1)
    kernel_tail(a,'K2',1,S_WS)
```

```python
from gen_common import *
import gen_common as gc
import struct
def f2u(f): return struct.unpack('<I',struct.pack('<f',f))[0]
WS_GR = 0x08D0000
WS_FG  = 0x08C4000
WS_FL  = 0x08CC000
FUSED=[False]
WS_LN1 = 0x08C8000
NS=4
S_WAVE=32; S_XCD=33; S_J=34; S_G=35; S_HALF=36; S_RB=37; S_CT=38; S_PW=39; S_H=40
S_I=41; S_SLI=42; S_SLC=43; S_KX=44; S_KW=45; S_T=46; S_SO=47; S_T0=48; S_T1=49; S_T2=50; S_T3=51; S_SO2=52; S_PAR=53
S_EX=54
EXP={}
LDF=''
STF=''

def srd(a,d,lo,hi,size):
    a('s_mov_b32 s%d, s%d'%(d,lo)); a('s_mov_b32 s%d, s%d'%(d+1,hi))
    if isinstance(size,int): a('s_mov_b32 s%d, 0x%x'%(d+2,size))
    else: a('s_mov_b32 s%d, %s'%(d+2,size))
    a('s_mov_b32 s%d, 0x00020000'%(d+3))
def add64(a,dlo,slo,off):
    o = off if isinstance(off,str) else '0x%x'%off
    a('s_add_u32 s%d, s%d, %s'%(dlo,slo,o)); a('s_addc_u32 s%d, s%d, 0'%(dlo+1,slo+1))
def slot_advance(a,s,SL,ns=NS):
    a('s_add_u32 s%d, s%d, %d'%(s,s,SL)); a('s_cmp_eq_u32 s%d, %d'%(s,ns*SL)); a('s_cselect_b32 s%d, 0, s%d'%(s,s))

def dma_producer(a,name,n,c,issue,tail=None,phase=1,s_ws=6,post=0):
    if EXP.get('pprio'): a('s_setprio %d'%EXP['pprio'])
    D=EXP.get('depth',3)
    dep_barrier(a,name,phase,s_ws,poller=True)
    gc.stamp(a,1)
    P=EXP.get('pro%d'%phase,EXP.get('pro',2))
    for _ in range(P): issue()
    gc.stamp(a,2)
    a('s_waitcnt vmcnt(%d)'%min(63,(P-1)*c)); gc.stamp(a,3); a('s_barrier')
    for _ in range(D+1-P): issue()
    a('s_mov_b32 s%d, %d'%(S_I,n-1-D))
    a.lab(name+'_loop')
    a('s_waitcnt vmcnt(%d)'%min(63,(D-1)*c)); a('s_barrier')
    issue()
    a('s_sub_u32 s%d, s%d, 1'%(S_I,S_I)); a('s_cmp_lg_u32 s%d, 0'%S_I); a('s_cbranch_scc1 %s_loop'%name)
    for r in range(D-1,-1,-1):
        a('s_waitcnt vmcnt(%d)'%min(63,r*c)); a('s_barrier')
    gc.stamp(a,4)
    if FUSED[0]:
        for _ in range(post): a('s_barrier')

def consumer_loop(a,name,SL,n,addr_regs,reads,mfmas,ns=NS,hook=None,hook_at=2,lag=False,nsub=2,per=1,dly=None,phase=1):
    def R(s): return [] if EXP.get('noread') else reads(s,s)
    def M(s): return [] if EXP.get('nomfma') else mfmas(s)
    book=['s_mov_b32 s%d, s%d'%(S_T0,S_SLC),'s_add_u32 s%d, s%d, %d'%(S_SLC,S_SLC,SL),'s_cmp_eq_u32 s%d, %d'%(S_SLC,ns*SL),'s_cselect_b32 s%d, 0, s%d'%(S_SLC,S_SLC),
          's_sub_u32 s%d, s%d, s%d'%(S_T0,S_SLC,S_T0),'s_add_u32 s%d, s%d, 1'%(S_I,S_I)]
    upd=['v_add_u32 v%d, s%d, v%d'%(r,S_T0,r) for r in addr_regs]
    a('s_mov_b32 s%d, 0'%S_I); a('s_mov_b32 s%d, 0'%S_SLC)
    dep_barrier(a,name,phase,6)
    if EXP.get('fine') is None: gc.stamp(a,1)
    if not lag:
        a('s_barrier')
        if EXP.get('fine') is None: gc.stamp(a,2)
        a.lab(name+'_loop')
        fine(a,1,name)
        if not EXP.get('noprio'): a('s_setprio 1')
        for s_ in range(nsub):
            for x in R(s_): a(x)
        if not EXP.get('noprio'): a('s_setprio 0')
        fine(a,2,name)
        for x in book: a(x)
        for x in upd: a(x)
        emit_hooks(a,name,hook,hook_at)
        if EXP.get('fine') is not None: a('s_sub_u32 s%d, s%d, 1'%(S_I,S_I))
        for s_ in range(nsub):
            later=sum(len(R(t)) for t in range(s_+1,nsub))
            a('s_waitcnt lgkmcnt(%d)'%(0 if EXP.get('fine') is not None else min(later,15)))
            if s_==0: fine(a,3,name)
            for x in M(s_): a(x)
        fine(a,4,name)
        if EXP.get('fine') is not None: a('s_add_u32 s%d, s%d, 1'%(S_I,S_I))
        a('s_cmp_lt_u32 s%d, %d'%(S_I,n))
        a('s_cbranch_scc0 %s_done'%name)
        a('s_barrier')
        a('s_branch %s_loop'%name)
        a.lab(name+'_done')
    else:
        a('s_barrier')
        if EXP.get('fine') is None: gc.stamp(a,2)
        for s_ in range(nsub):
            for x in R(s_): a(x)
        for x in book: a(x)
        for x in upd: a(x)
        if isinstance(hook,dict) and 1 in hook: hook[1]()
        a('s_waitcnt lgkmcnt(0)')
        a.lab(name+'_loop')
        a('s_barrier')
        fine(a,1,name)
        if EXP.get('noilv'):
            for s_ in range(nsub):
                for x in M(s_): a(x)
            fine(a,2,name)
            for s_ in range(nsub):
                for x in R(s_): a(x)
            fine(a,3,name)
        else:
            Ms=[M(s_) for s_ in range(nsub)]; allM=[m for x in Ms for m in x]
            ends=[sum(len(Ms[t]) for t in range(s_+1)) for s_ in range(nsub)]
            pend=[]
            if dly is None: dly=max(ends[0],len(allM)-len(R(0))) if allM else 0
            nxt=0
            for k_,m in enumerate(allM):
                a(m)
                while nxt<nsub-1 and k_+1>=ends[nxt]:
                    pend+=R(nxt); nxt+=1
                if k_+1>=dly:
                    for _ in range(min(per,len(pend))): a(pend.pop(0))
            fine(a,2,name)
            for x in pend: a(x)
            for x in R(nsub-1): a(x)
            fine(a,3,name)
        for x in book: a(x)
        for x in upd: a(x)
        emit_hooks(a,name,({k_:v_ for k_,v_ in hook.items() if k_!=1} if isinstance(hook,dict) else hook),hook_at)
        a('s_waitcnt lgkmcnt(0)')
        if EXP.get('fine') is not None:
            a('s_sub_u32 s%d, s%d, 1'%(S_I,S_I)); fine(a,4,name); a('s_add_u32 s%d, s%d, 1'%(S_I,S_I))
        a('s_cmp_lt_u32 s%d, %d'%(S_I,n))
        a('s_cbranch_scc1 %s_loop'%name)
        for s_ in range(nsub):
            for x in M(s_): a(x)
    if EXP.get('fine') is None: gc.stamp(a,3)

def emit_hooks(a,name,hook,hook_at):
    if hook is None: return
    H=hook if isinstance(hook,dict) else {hook_at:hook}
    for k,(at,fn) in enumerate(sorted(H.items())):
        a('s_cmp_eq_u32 s%d, %d'%(S_I,at)); a('s_cbranch_scc0 %s_nh%d'%(name,k)); fn(); a.lab('%s_nh%d'%(name,k))
def fine(a,k,name):
    if EXP.get('fine') is not None and gc.STAMPS:
        l='%s_f%d'%(name,k)
        a('s_cmp_eq_u32 s%d, %d'%(S_I,EXP['fine'])); a('s_cbranch_scc0 %s'%l); a('s_memtime s[%d:%d]'%(64+2*k,65+2*k)); a.lab(l)
def mix(a,M,F,per=2,lead=0):
    F=list(F)
    for _ in range(min(lead,len(F))): a(F.pop(0))
    for m in M:
        a(m)
        for _ in range(min(per,len(F))): a(F.pop(0))
    for x in F: a(x)

GC0=-2.0*0.7978845608028654*1.4426950408889634
GC1=GC0*0.044715
def gelu_pairs(a,pre,tmp,C0,C1,ONE):
    n=len(pre)
    for k in range(n): a('v_pk_mul_f32 %s, %s, %s'%(vr(tmp[k],2),vr(pre[k],2),vr(pre[k],2)))
    for k in range(n): a('v_pk_fma_f32 %s, %s, %s, %s'%(vr(tmp[k],2),vr(tmp[k],2),vr(C1,2),vr(C0,2)))
    for k in range(n): a('v_pk_mul_f32 %s, %s, %s'%(vr(tmp[k],2),vr(tmp[k],2),vr(pre[k],2)))
    for k in range(n):
        a('v_exp_f32 v%d, v%d'%(tmp[k],tmp[k])); a('v_exp_f32 v%d, v%d'%(tmp[k]+1,tmp[k]+1))
    for k in range(n): a('v_pk_add_f32 %s, %s, %s'%(vr(tmp[k],2),vr(tmp[k],2),vr(ONE,2)))
    for k in range(n):
        a('v_rcp_f32 v%d, v%d'%(tmp[k],tmp[k])); a('v_rcp_f32 v%d, v%d'%(tmp[k]+1,tmp[k]+1))
    for k in range(n): a('v_pk_mul_f32 %s, %s, %s'%(vr(pre[k],2),vr(pre[k],2),vr(tmp[k],2)))
def kernel_head(a,kname,pre,nwg=256):
    KCUR[0]=int(pre[1])
    if FUSED[0] and pre!='K1':
        a.lab(pre+'_entry')
        if not gc.LIGHT: gc.stamp_init(a)
        return
    a.raw('.p2align 8'); a.raw('.type %s,@function'%kname); a.lab(kname)
    a('s_cmp_ge_u32 s2, %d'%nwg); a('s_cbranch_scc1 %s_exit'%('K3' if FUSED[0] else pre)); gc.stamp_init(a)
def wave_setup(a,pre):
    if FUSED[0] and pre!='K1': return
    a('v_lshrrev_b32 v1, 6, v0'); a('v_and_b32 v0, 63, v0'); a('s_nop 0')
    a('v_readfirstlane_b32 s%d, v1'%S_WAVE)
def kernel_tail(a,pre,kidx,s_ws):
    a.lab(pre+'_end')
    if FUSED[0] and pre!='K3':
        a('s_waitcnt vmcnt(0) lgkmcnt(0)'); a('s_barrier')
        l='%s_fl'%pre
        a('s_cmp_eq_u32 s%d, 0'%S_WAVE); a('s_cbranch_scc0 %s'%l)
        add64(a,88,s_ws,WS_FL+(0x2000 if pre=='K2' else 0)); srd(a,92,88,89,0x2000)
        a('s_lshl_b32 s88, s2, 5'); a('v_mov_b32 v2, 1'); a('v_mov_b32 v3, 0'); a('s_mov_b32 exec_lo, 1'); a('s_mov_b32 exec_hi, 0')
        a('buffer_store_dword v2, v3, s[92:95], s88 offen sc1'); a('s_mov_b64 exec, -1')
        a.lab(l)
        if not gc.LIGHT: gc.stamp_dump(a,kidx,s_ws,S_WAVE)
        a('s_setprio 0')
        return
    gc.stamp_dump(a,kidx,s_ws,S_WAVE); a.lab(pre+'_exit'); a('s_endpgm')
def dep_poll(a,name,phase,s_ws):
    add64(a,88,s_ws,WS_FL+(0x2000 if phase==3 else 0)); srd(a,92,88,89,0x2000)
    a('s_and_b32 s88, s2, 7'); a('s_lshr_b32 s89, s2, 3')
    a('v_mov_b32 v31, 0x7fffff00')
    if phase==2:
        a('s_cmp_ge_u32 s89, 24'); a('s_cbranch_scc1 %s_t'%name)
        a('s_mul_i32 s90, s89, 43'); a('s_lshr_b32 s90, s90, 8'); a('s_mul_i32 s90, s90, 6'); a('s_sub_u32 s90, s89, s90')
        a('s_cmp_ge_u32 s90, 3'); a('s_cselect_b32 s91, 1, 0'); a('s_cselect_b32 s89, 3, 0'); a('s_sub_u32 s90, s90, s89'); a('s_lshl_b32 s90, s90, 1')
        a('v_lshrrev_b32 v28, 3, v0'); a('v_lshlrev_b32 v28, 1, v28'); a('v_add_u32 v28, s91, v28')
        a('v_bfe_u32 v29, v0, 1, 2'); a('v_mul_u32_u24 v29, 6, v29'); a('v_and_b32 v30, 1, v0'); a('v_add_u32 v29, v29, v30'); a('v_add_u32 v29, s90, v29')
        a('v_lshl_add_u32 v28, v29, 3, v28'); a('v_cmp_gt_u32 vcc, 32, v0'); a('s_branch %s_go'%name)
        a.lab(name+'_t')
        a('s_sub_u32 s89, s89, 24'); a('s_and_b32 s89, s89, 3'); a('s_lshr_b32 s89, s89, 1'); a('s_add_u32 s89, s89, 24'); a('s_and_b32 s88, s88, 1')
        a('v_lshrrev_b32 v28, 2, v0'); a('v_lshlrev_b32 v28, 1, v28'); a('v_add_u32 v28, s88, v28')
        a('v_and_b32 v29, 3, v0'); a('v_lshlrev_b32 v29, 1, v29'); a('v_add_u32 v29, s89, v29')
        a('v_lshl_add_u32 v28, v29, 3, v28'); a('v_cmp_gt_u32 vcc, 16, v0')
        a.lab(name+'_go')
        a('v_lshlrev_b32 v28, 5, v28'); a('s_nop 1'); a('v_cndmask_b32 v28, v31, v28, vcc'); a('v_cndmask_b32_e64 v27, 1, 0, vcc')
        nset=1
    else:
        a('s_lshl_b32 s88, s88, 2'); a('s_lshr_b32 s89, s89, 3'); a('s_add_u32 s88, s88, s89'); a('s_lshr_b32 s88, s88, 1')
        a('s_lshr_b32 s89, s88, 2'); a('s_lshl_b32 s89, s89, 1'); a('s_and_b32 s88, s88, 3'); a('s_mul_i32 s88, s88, 6')
        a('v_and_b32 v28, 1, v0'); a('v_add_u32 v28, s89, v28'); a('v_lshrrev_b32 v29, 1, v0'); a('v_add_u32 v29, s88, v29'); a('v_lshl_add_u32 v28, v29, 3, v28')
        a('v_cmp_gt_u32 vcc, 12, v0'); a('v_lshlrev_b32 v28, 5, v28'); a('s_nop 0'); a('v_cndmask_b32 v28, v31, v28, vcc'); a('v_cndmask_b32_e64 v27, 1, 0, vcc')
        a('v_and_b32 v26, 7, v0'); a('v_lshrrev_b32 v29, 3, v0'); a('v_add_u32 v29, 24, v29'); a('v_lshl_add_u32 v26, v29, 3, v26'); a('v_lshlrev_b32 v26, 5, v26')
        nset=2
    a('s_mov_b32 s90, 0')
    def iss(r0,r1):
        a('buffer_load_dword v%d, v28, s[92:95], 0 offen sc1'%r0)
        if nset==2: a('buffer_load_dword v%d, v26, s[92:95], 0 offen sc1'%r1)
    def chk(r0,r1):
        a('v_or_b32 v%d, v%d, v27'%(r0,r0))
        if nset==2: a('v_min_u32 v%d, v%d, v%d'%(r0,r0,r1))
        a('v_cmp_ne_u32 vcc, 1, v%d'%r0); a('s_nop 1'); a('s_cmp_eq_u64 vcc, 0'); a('s_cbranch_scc1 %s_ok'%name)
    iss(25,24)
    a.lab(name+'_lp')
    iss(23,22); a('s_waitcnt vmcnt(%d)'%nset); chk(25,24)
    iss(21,20); a('s_waitcnt vmcnt(%d)'%nset); chk(23,22)
    iss(25,24); a('s_waitcnt vmcnt(%d)'%nset); chk(21,20)
    a('s_add_u32 s90, s90, 1'); a('s_cmp_lt_u32 s90, 2000'); a('s_cbranch_scc1 %s_lp'%name)
    a.lab(name+'_ok')
    a('s_waitcnt vmcnt(0)')
def dep_barrier(a,name,phase,s_ws,poller=False):
    if not FUSED[0] or phase==1: return
    if poller:
        l=name+'_np'; a('s_cmp_eq_u32 s%d, 8'%S_WAVE); a('s_cbranch_scc0 %s'%l); dep_poll(a,name+'_dp',phase,s_ws); a.lab(l)
    a('s_barrier')

KCUR=[1]
LDK={1:'',2:'',3:''}
class AsmF(Asm):
    def __call__(s,txt):
        import g2_common as g
        if g.EXP.get('nodma') and txt.startswith('buffer_load') and txt.rstrip().endswith('lds'): return
        Asm.__call__(s,txt)
def ld(txt):
    import g2_common as g
    return txt.replace(' lds', g.LDK[g.KCUR[0]]+' lds')

def pf_loop(a,name,n,pf,d1,d2,extra_barriers=0):
    D=EXP.get('pfd',7); pol=LDK[KCUR[0]]
    a('s_mov_b32 s%d, %d'%(S_KX,d1)); a('s_mov_b32 s%d, %d'%(S_KW,d2))
    for _ in range(min(D,n)-1): pf(pol)
    m=max(n-D,0)
    if m>0:
        a('s_mov_b32 s%d, %d'%(S_I,m))
        a.lab(name+'_loop')
        a('s_barrier'); pf(pol)
        a('s_sub_u32 s%d, s%d, 1'%(S_I,S_I)); a('s_cmp_lg_u32 s%d, 0'%S_I); a('s_cbranch_scc1 %s_loop'%name)
    for _ in range(n-m+extra_barriers): a('s_barrier')
```

```python
from g2_common import *
import g2_common as g2
SLZ=34816; SLA=36864
TB=NS*SLA
T_R=TB; T_NMR=TB+512; T_CS0=TB+1024; T_CS1=TB+1664; T_W2=TB+2304
K1_LDS=TB+2304+2048
NK1=10
S_X=4; S_WS=6; S_WDRE=8; S_WDIM=10; S_WIN=12; S_DBG=14
SRD_X=16; SRD_W=20; SRD_O=24; SRD_O2=28; SRD_G=56; SRD_D=60
POLL_BOUND=4000

def stats_final(a,SUM,SQ,t,n,rout,nmrout):
    for k in range(1,len(SUM)): a('v_add_f32 v%d, v%d, v%d'%(SUM[0],SUM[0],SUM[k])); a('v_add_f32 v%d, v%d, v%d'%(SQ[0],SQ[0],SQ[k]))
    a('s_nop 1')
    a('v_add_f32_dpp v%d, v%d, v%d quad_perm:[1,0,3,2] row_mask:0xf bank_mask:0xf'%(t,SUM[0],SUM[0]))
    a('v_add_f32_dpp v%d, v%d, v%d quad_perm:[1,0,3,2] row_mask:0xf bank_mask:0xf'%(t+1,SQ[0],SQ[0]))
    a('v_mul_f32 v%d, 0x%x, v%d'%(t,f2u(1.0/n),t)); a('v_mul_f32 v%d, 0x%x, v%d'%(t+1,f2u(1.0/n),t+1))
    a('v_fma_f32 v%d, -v%d, v%d, v%d'%(t+1,t,t,t+1)); a('v_max_f32 v%d, 0, v%d'%(t+1,t+1)); a('v_add_f32 v%d, 0x%x, v%d'%(t+1,f2u(1e-5),t+1))
    a('v_rsq_f32 v%d, v%d'%(rout,t+1)); a('s_nop 0')
    a('v_mul_f32 v%d, v%d, v%d'%(nmrout,t,rout)); a('v_sub_f32 v%d, 0, v%d'%(nmrout,nmrout))

S_WSP=62
def ln1_row(a):
    a('s_lshl_b32 s%d, s2, 3'%S_T0); a('s_add_u32 s%d, s%d, s%d'%(S_T0,S_T0,S_WAVE)); a('s_mul_i32 s%d, s%d, 1280'%(S_T1,S_T0))
    a('v_lshlrev_b32 v56, 4, v0'); a('v_mov_b32 v57, 0x3f803f80')
    for k in range(4): a('v_mov_b32 v%d, 0'%(68+k))
    a('s_waitcnt lgkmcnt(0)')
    add64(a,S_T2,S_X,'s%d'%S_T1); srd(a,SRD_O,S_T2,S_T2+1,1280)
    a('buffer_load_dwordx4 v[60:63], v56, s[%d:%d], 0 offen'%(SRD_O,SRD_O+3)); a('buffer_load_dwordx4 v[64:67], v56, s[%d:%d], 0 offen offset:1024'%(SRD_O,SRD_O+3))
    add64(a,S_T2,S_WS,WS_LN1); srd(a,SRD_O2,S_T2,S_T2+1,16384)
    a('s_lshl_b32 s%d, s%d, 3'%(S_SO,S_T0))
def ln1_row_finish(a):
    a('s_waitcnt vmcnt(0)')
    for k in range(8):
        a('v_dot2_f32_bf16 v%d, v%d, v%d, v%d'%(68+(k&1),60+k,60+k,68+(k&1))); a('v_dot2_f32_bf16 v%d, v%d, v57, v%d'%(70+(k&1),60+k,70+(k&1)))
    a('s_nop 3')
    a('v_add_f32 v68, v68, v69'); a('v_add_f32 v70, v70, v71'); a('s_nop 1')
    for d in ('quad_perm:[1,0,3,2]','quad_perm:[2,3,0,1]','row_half_mirror','row_mirror'):
        a('v_add_f32_dpp v68, v68, v68 %s row_mask:0xf bank_mask:0xf'%d); a('v_add_f32_dpp v70, v70, v70 %s row_mask:0xf bank_mask:0xf'%d); a('s_nop 0')
    for sw in ('v_permlane16_swap_b32','v_permlane32_swap_b32'):
        a('v_mov_b32 v69, v68'); a('v_mov_b32 v71, v70'); a('s_nop 1')
        a('%s v68, v69'%sw); a('%s v70, v71'%sw); a('s_nop 1')
        a('v_add_f32 v68, v68, v69'); a('v_add_f32 v70, v70, v71')
    a('v_mul_f32 v70, 0x%x, v70'%f2u(1.0/640)); a('v_mul_f32 v68, 0x%x, v68'%f2u(1.0/640))
    a('v_fma_f32 v68, -v70, v70, v68'); a('v_max_f32 v68, 0, v68'); a('v_add_f32 v68, 0x%x, v68'%f2u(1e-5))
    a('v_rsq_f32 v72, v68'); a('s_nop 0'); a('v_mul_f32 v73, v70, v72'); a('v_sub_f32 v73, 0, v73')
    a('v_mov_b32 v74, 0'); a('v_cmp_eq_u32 vcc, 0, v0'); a('s_and_saveexec_b64 s[%d:%d], vcc'%(S_EX,S_EX+1))
    a('buffer_store_dwordx2 v[72:73], v74, s[%d:%d], s%d offen sc1'%(SRD_O2,SRD_O2+3,S_SO))
    a('s_mov_b64 exec, s[%d:%d]'%(S_EX,S_EX+1))
def ln1_hook(a):
    return lambda: a('s_waitcnt vmcnt(0)')

def worker(a,name,SL,isZ):
    n=NK1
    CA=14; VT=15; CF=[48,68]; CACC=88; ONES=108
    srd(a,SRD_D,S_DBG,S_DBG+1,256)
    add64(a,S_T2,S_WS,WS_GR); srd(a,SRD_G,S_T2,S_T2+1,16*12288)
    if isZ:
        a('s_cmp_eq_u32 s%d, 0'%S_PW); a('s_cbranch_scc0 %s_nojob'%name)
        a('s_mul_i32 s%d, s%d, 12288'%(S_SO,S_RB)); a('s_lshl_b32 s%d, s%d, 1'%(S_T0,S_CT)); a('s_add_u32 s%d, s%d, s%d'%(S_T0,S_T0,S_PAR)); a('s_lshl_b32 s%d, s%d, 10'%(S_T0,S_T0))
        a('s_add_u32 s%d, s%d, s%d'%(S_SO,S_SO,S_T0))
        for k in range(4): a('v_mov_b32 v%d, -1'%(8+k))
        a('v_lshlrev_b32 v3, 4, v0')
        a('buffer_store_dwordx4 v[8:11], v3, s[%d:%d], s%d offen sc1'%(SRD_G,SRD_G+3,S_SO))
        if not EXP.get('oldpoll'):
            add64(a,S_T2,S_WS,WS_FG); srd(a,SRD_O2,S_T2,S_T2+1,4096)
            a('s_lshl_b32 s%d, s%d, 8'%(S_T0,S_RB)); a('s_lshl_b32 s%d, s%d, 1'%(S_T1,S_CT)); a('s_add_u32 s%d, s%d, s%d'%(S_T1,S_T1,S_PAR)); a('s_lshl_b32 s%d, s%d, 2'%(S_T1,S_T1)); a('s_add_u32 s%d, s%d, s%d'%(S_T0,S_T0,S_T1))
            a('v_mov_b32 v12, 0'); a('v_lshlrev_b32 v13, 6, v0'); a('s_mov_b32 exec_lo, 15'); a('s_mov_b32 exec_hi, 0')
            a('buffer_store_dword v12, v13, s[%d:%d], s%d offen sc1'%(SRD_O2,SRD_O2+3,S_T0)); a('s_mov_b64 exec, -1')
        a.lab(name+'_nojob')
    if g2.FUSED[0]:
        lf=a.newlab(name+'_cf'); a('s_cmp_eq_u32 s%d, 0'%S_PW); a('s_cbranch_scc0 %s'%lf)
        add64(a,S_T2,S_WS,WS_FL); srd(a,SRD_O,S_T2,S_T2+1,0x4000)
        a('s_lshl_b32 s%d, s2, 5'%S_T0); a('v_mov_b32 v12, 0'); a('v_lshlrev_b32 v13, 13, v0'); a('s_mov_b32 exec_lo, 3'); a('s_mov_b32 exec_hi, 0')
        a('buffer_store_dword v12, v13, s[%d:%d], s%d offen sc1'%(SRD_O,SRD_O+3,S_T0)); a('s_mov_b64 exec, -1')
        a.lab(lf)
    a('s_load_dwordx2 s[86:87], s[0:1], 56'); a('s_load_dwordx4 s[96:99], s[0:1], 8'); a('s_load_dwordx2 s[88:89], s[0:1], 72')
    a('v_lshrrev_b32 v4, 4, v0'); a('v_and_b32 v5, 15, v0'); a('v_lshlrev_b32 v5, 7, v5')
    a('s_lshl_b32 s%d, s%d, 9'%(S_T0,S_G)); a('s_lshl_b32 s%d, s%d, 4'%(S_T1,S_J)); a('s_add_u32 s%d, s%d, s%d'%(S_T0,S_T0,S_T1)); a('v_add_u32 v6, s%d, v4'%S_T0)
    a('v_lshlrev_b32 v6, 12, v6'); a('v_add_u32 v6, v6, v5'); a('s_lshl_b32 s%d, s%d, 11'%(S_T0,S_HALF)); a('v_add_u32 v6, s%d, v6'%S_T0)
    a('s_mul_i32 s%d, s%d, 288'%(S_T0,S_G)); a('s_mul_i32 s%d, s%d, 9'%(S_T1,S_J)); a('s_add_u32 s%d, s%d, s%d'%(S_T0,S_T0,S_T1)); a('v_add_u32 v7, s%d, v4'%S_T0)
    a('v_lshlrev_b32 v7, 12, v7'); a('v_add_u32 v7, v7, v5')
    a('v_and_b32 v21, 15, v0'); a('v_lshlrev_b32 v21, 4, v21'); a('v_mov_b32 v20, 0')
    for r in (16,17,18,19): a('v_mov_b32 v%d, 0'%r)
    a('s_waitcnt lgkmcnt(0)')
    srd(a,SRD_W,86,87,2048*4096)
    a('s_cmp_eq_u32 s%d, 0'%S_HALF); a('s_cselect_b32 s%d, s96, s98'%S_T2); a('s_cselect_b32 s%d, s97, s99'%S_T3); srd(a,SRD_O2,S_T2,S_T3,2048*4096)
    if isZ:
        a('v_and_b32 v120, 15, v0'); a('v_lshrrev_b32 v121, 4, v0'); a('v_lshrrev_b32 v122, 2, v120'); a('v_lshl_add_u32 v122, v121, 2, v122')
        a('v_mul_u32_u24 v122, 288, v122'); a('v_and_b32 v120, 3, v120'); a('v_lshl_add_u32 v122, v120, 3, v122')
        a('s_and_b32 s%d, s%d, 1'%(S_T0,S_PW)); a('s_mul_i32 s%d, s%d, 9216'%(S_T0,S_T0)); a('s_cmp_lt_u32 s%d, 2'%S_PW); a('s_cselect_b32 s%d, 160, 0'%S_T1)
        a('s_add_u32 s%d, s%d, s%d'%(S_T0,S_T0,S_T1)); a('s_add_u32 s%d, s%d, 16384'%(S_T0,S_T0)); a('v_add_u32 v%d, s%d, v122'%(CA,S_T0))
        for k in range(4): a('v_mov_b32 v%d, 0x3f803f80'%(ONES+k))
        for k in range(20): a('v_mov_b32 v%d, 0'%(CACC+k))
        for k in range(40): a('v_mov_b32 v%d, 0'%(CF[0]+k))
    def reads(st):
        a('v_add_u32 v%d, s%d, v%d'%(VT,S_SLC,CA))
        lab=a.newlab(name+'_c')
        for j in range(5):
            if j==4: a('s_cmp_lt_u32 s%d, 2'%S_PW); a('s_cbranch_scc1 %s'%lab)
            for b in range(2): a('ds_read_b64_tr_b16 %s, v%d offset:%d'%(vr(CF[st]+4*j+2*b,2),VT,b*4608+j*32))
        a.lab(lab)
    def compute(st):
        for j in range(5):
            a('v_mfma_f32_16x16x32_bf16 %s, %s, %s, %s'%(vr(CACC+4*j,4),vr(ONES,4),vr(CF[st]+4*j,4),vr(CACC+4*j,4)))
    def xpf(k,pol):
        if k<4:
            a('s_mov_b32 s%d, %d'%(S_SO,k*4*4096)); a('buffer_load_dword v10, v6, s[%d:%d], s%d offen%s'%(SRD_W,SRD_W+3,S_SO,pol))
        else:
            k-=4
            a('s_mov_b32 s%d, %d'%(S_SO,k*4*4096))
            if k==2: a('s_mov_b32 exec_hi, 0'); a('s_mov_b32 exec_lo, 0xffff')
            a('buffer_load_dword v10, v7, s[%d:%d], s%d offen%s'%(SRD_O2,SRD_O2+3,S_SO,pol))
            if k==2: a('s_mov_b64 exec, -1')
    def wout_pf():
        srd(a,SRD_O,88,89,864*1280)
        a('s_mul_i32 s%d, s2, %d'%(S_SO,34*128)); a('v_lshlrev_b32 v11, 7, v0'); a('s_mov_b32 exec_hi, 3')
        a('buffer_load_dword v10, v11, s[%d:%d], s%d offen'%(SRD_O,SRD_O+3,S_SO)); a('s_mov_b32 exec_hi, -1')
    TBL=16
    def side(i):
        pol=' nt' if not EXP.get('xpfdef') else ''
        if not (EXP.get('noxpf') or EXP.get('noxpf1')) and EXP.get('pfmid') and EXP.get('pf0',2)<=i<=EXP.get('pf0',2)+6:
            l=a.newlab(name+'_p'); a('s_cmp_eq_u32 s%d, 1'%S_PW); a('s_cbranch_scc0 %s'%l)
            kk=i-EXP.get('pf0',2)
            if not ((EXP.get('pfwonly') or EXP.get('pfsplit')==1) and kk>=4) and not (EXP.get('pfsplit')==2 and kk<4): xpf(kk,pol)
            a.lab(l)
        if EXP.get('wo1') and i==EXP.get('wo1'):
            l=a.newlab(name+'_wo'); a('s_cmp_eq_u32 s%d, 2'%S_PW); a('s_cbranch_scc0 %s'%l); wout_pf(); a.lab(l)
        if i==2:
            l=a.newlab(name+'_a'); a('s_cmp_eq_u32 s%d, 0'%S_PW); a('s_cbranch_scc0 %s'%l)
            a('s_waitcnt vmcnt(0)')
            a('v_mov_b32 v4, 1'); a('s_and_b32 s%d, s2, 15'%S_T0); a('s_lshl_b32 s%d, s%d, 4'%(S_T0,S_T0)); a('v_mov_b32 v3, s%d'%S_T0)
            a('v_cmp_eq_u32 vcc, 0, v0'); a('s_and_saveexec_b64 s[%d:%d], vcc'%(S_EX,S_EX+1))
            a('buffer_atomic_add v4, v3, s[%d:%d], 0 offen sc1'%(SRD_D,SRD_D+3))
            a('s_mov_b64 exec, s[%d:%d]'%(S_EX,S_EX+1))
            a.lab(l)
        if i==5:
            l=a.newlab(name+'_q'); a('s_cmp_eq_u32 s%d, 0'%S_PW); a('s_cbranch_scc0 %s'%l)
            a('buffer_load_dword v20, v21, s[%d:%d], 0 offen sc1'%(SRD_D,SRD_D+3))
            a.lab(l)
        if i==7:
            l=a.newlab(name+'_r'); a('s_cmp_eq_u32 s%d, 0'%S_PW); a('s_cbranch_scc0 %s'%l)
            a('s_mov_b32 s%d, 0'%S_SO2)
            lp=a.newlab(name+'_pl'); ok=a.newlab(name+'_ok')
            a.lab(lp)
            a('s_waitcnt vmcnt(0)'); a('v_cmp_gt_u32 vcc, 16, v20'); a('s_nop 1'); a('s_cmp_eq_u64 vcc, 0'); a('s_cbranch_scc1 %s'%ok)
            a('buffer_load_dword v20, v21, s[%d:%d], 0 offen sc1'%(SRD_D,SRD_D+3))
            a('s_add_u32 s%d, s%d, 1'%(S_SO2,S_SO2)); a('s_cmp_lt_u32 s%d, %d'%(S_SO2,POLL_BOUND)); a('s_cbranch_scc1 %s'%lp)
            a.lab(ok)
            add64(a,S_T2,S_WS,WS_LN1); srd(a,SRD_O,S_T2,S_T2+1,16384)
            if isZ:
                a('s_lshl_b32 s%d, s%d, 7'%(S_T0,S_RB)); a('v_add_u32 v22, s%d, v0'%S_T0); a('v_add_u32 v23, 64, v22')
            else:
                a('s_lshl_b32 s%d, s%d, 6'%(S_T0,S_RB)); a('v_add_u32 v22, s%d, v0'%S_T0); a('v_sub_u32 v23, 2048, v22')
                a('v_cmp_eq_u32 vcc, 2048, v23'); a('v_mov_b32 v24, 1024'); a('s_nop 0'); a('v_cndmask_b32 v23, v23, v24, vcc')
            a('v_lshlrev_b32 v22, 3, v22'); a('v_lshlrev_b32 v23, 3, v23')
            a('buffer_load_dwordx2 v[16:17], v22, s[%d:%d], 0 offen sc1'%(SRD_O,SRD_O+3)); a('buffer_load_dwordx2 v[18:19], v23, s[%d:%d], 0 offen sc1'%(SRD_O,SRD_O+3))
            a.lab(l)
    a('s_mov_b32 s%d, 0'%S_SLC)
    for i in range(n):
        a('s_barrier')
        if isZ: reads(i&1)
        side(i)
        if isZ:
            compute((i&1)^1); a('s_waitcnt lgkmcnt(0)'); slot_advance(a,S_SLC,SL)
    if isZ: compute((n-1)&1)
    if not (EXP.get('noxpf') or EXP.get('noxpf1') or EXP.get('pflate') or (EXP.get('pfmid') and not EXP.get('pfsplit'))):
        l=a.newlab(name+'_pe'); a('s_cmp_eq_u32 s%d, 1'%S_PW); a('s_cbranch_scc0 %s'%l)
        ks=range(4 if EXP.get('pfwonly') else 7)
        if EXP.get('pfsplit')==1: ks=range(4,7)
        if EXP.get('pfsplit')==2: ks=range(0,4)
        for k in ks: xpf(k,' nt' if not EXP.get('xpfdef') else '')
        a.lab(l)
    gc.stamp(a,3)
    l=a.newlab(name+'_w'); a('s_cmp_eq_u32 s%d, 0'%S_PW); a('s_cbranch_scc0 %s'%l)
    a('s_waitcnt vmcnt(0)'); a('v_lshlrev_b32 v26, 2, v0'); a('v_add_u32 v26, %d, v26'%T_R)
    a('ds_write_b32 v26, v16'); a('ds_write_b32 v26, v17 offset:512'); a('ds_write_b32 v26, v18 offset:256'); a('ds_write_b32 v26, v19 offset:768')
    a.lab(l)
    if isZ:
        a('s_and_b32 s%d, s%d, 1'%(S_T0,S_PW)); a('s_mul_i32 s%d, s%d, 640'%(S_T0,S_T0)); a('s_cmp_lt_u32 s%d, 2'%S_PW); a('s_cselect_b32 s%d, 320, 0'%S_T1)
        a('s_add_u32 s%d, s%d, s%d'%(S_T0,S_T0,S_T1)); a('v_and_b32 v26, 15, v0'); a('v_lshlrev_b32 v26, 2, v26'); a('v_add_u32 v26, s%d, v26'%S_T0); a('v_add_u32 v26, %d, v26'%T_CS0)
        a('s_nop 7')
        lab=a.newlab(name+'_f')
        for j in range(5):
            if j==4: a('s_cmp_lt_u32 s%d, 2'%S_PW); a('s_cbranch_scc1 %s'%lab)
            a('ds_write_b32 v26, v%d offset:%d'%(CACC+4*j,j*64))
        a.lab(lab)

    def late():
        if EXP.get('pflate') and not (EXP.get('noxpf') or EXP.get('noxpf1')):
            l=a.newlab(name+'_pl8'); a('s_cmp_eq_u32 s%d, 1'%S_PW); a('s_cbranch_scc0 %s'%l)
            for k in range(7): xpf(k,' nt' if not EXP.get('xpfdef') else '')
            a.lab(l)
    return late

def krot(a):
    if EXP.get('norot'): a('s_mov_b32 s%d, 0'%S_T0); return
    a('s_mul_i32 s%d, s%d, 5'%(S_T0,S_G)); a('s_lshr_b32 s%d, s%d, 1'%(S_T0,S_T0))
    a('s_mul_i32 s%d, s%d, %d'%(S_T1,S_HALF,EXP.get('rothalf',4))); a('s_add_u32 s%d, s%d, s%d'%(S_T0,S_T0,S_T1))
    a('s_cmp_ge_u32 s%d, 10'%S_T0); a('s_cselect_b32 s%d, 10, 0'%S_T1); a('s_sub_u32 s%d, s%d, s%d'%(S_T0,S_T0,S_T1))

def gen_k1(a,kname):
    kernel_head(a,kname,'K1')
    a('s_load_dwordx2 s[%d:%d], s[0:1], 0'%(S_X,S_X+1))
    a('s_load_dwordx4 s[%d:%d], s[0:1], 24'%(S_WDRE,S_WDRE+3))
    a('s_load_dwordx2 s[%d:%d], s[0:1], 48'%(S_WIN,S_WIN+1))
    a('s_load_dwordx2 s[%d:%d], s[0:1], 88'%(S_DBG,S_DBG+1))
    a('s_load_dwordx2 s[%d:%d], s[0:1], 96'%(S_WS,S_WS+1))
    wave_setup(a,'K1')
    a('s_and_b32 s%d, s2, 7'%S_XCD); a('s_lshr_b32 s%d, s2, 3'%S_J)
    a('s_lshr_b32 s%d, s%d, 1'%(S_G,S_XCD)); a('s_and_b32 s%d, s%d, 1'%(S_HALF,S_XCD))
    a('s_cmp_ge_u32 s%d, 24'%S_J); a('s_cbranch_scc1 K1A_entry')
    a('s_mul_i32 s%d, s%d, 43'%(S_T0,S_J)); a('s_lshr_b32 s%d, s%d, 8'%(S_T0,S_T0))
    a('s_mul_i32 s%d, s%d, 6'%(S_T1,S_T0)); a('s_sub_u32 s%d, s%d, s%d'%(S_T1,S_J,S_T1))
    a('s_and_b32 s%d, s%d, 1'%(S_PAR,S_T1)); a('s_lshr_b32 s%d, s%d, 1'%(S_T1,S_T1)); a('s_mul_i32 s%d, s%d, 3'%(S_CT,S_HALF)); a('s_add_u32 s%d, s%d, s%d'%(S_CT,S_CT,S_T1))
    a('s_lshl_b32 s%d, s%d, 1'%(S_T1,S_G)); a('s_add_u32 s%d, s%d, s%d'%(S_T2,S_T1,S_T0))
    a('s_sub_u32 s%d, s%d, s%d'%(S_T3,S_T0,S_T1)); a('s_add_u32 s%d, s%d, 12'%(S_T3,S_T3))
    a('s_cmp_lt_u32 s%d, 2'%S_T0); a('s_cselect_b32 s%d, s%d, s%d'%(S_RB,S_T2,S_T3))
    a('s_cmp_ge_u32 s%d, 12'%S_WAVE); a('s_cbranch_scc1 K1Z_work')
    a('s_cmp_ge_u32 s%d, 8'%S_WAVE); a('s_cbranch_scc1 K1Z_prod')
    ACC=16; FA=56; FB=84; XA=[112,113]; WA=116
    a('s_and_b32 s%d, s%d, 3'%(S_PW,S_WAVE)); a('s_lshr_b32 s%d, s%d, 2'%(S_H,S_WAVE))
    a('v_and_b32 v1, 15, v0'); a('v_lshrrev_b32 v2, 4, v0')
    a('v_and_b32 v3, 7, v0'); a('v_xor_b32 v3, v3, v2'); a('v_lshlrev_b32 v3, 4, v3'); a('v_lshl_add_u32 v3, v1, 7, v3')
    a('s_lshl_b32 s%d, s%d, 12'%(S_T0,S_PW)); a('v_add_u32 v%d, s%d, v3'%(XA[0],S_T0)); a('v_xor_b32 v%d, 64, v%d'%(XA[1],XA[0]))
    a('v_lshrrev_b32 v3, 2, v1'); a('v_lshl_add_u32 v3, v2, 2, v3'); a('v_mul_u32_u24 v3, 288, v3'); a('v_and_b32 v4, 3, v1'); a('v_lshl_add_u32 v3, v4, 3, v3')
    a('s_mul_i32 s%d, s%d, 160'%(S_T0,S_H)); a('v_add_u32 v%d, s%d, v3'%(WA,S_T0))
    ln1_row(a)
    for k in range(40): a('v_mov_b32 v%d, 0'%(ACC+k))
    ln1_row_finish(a)
    def acc(i,j): return ACC+(j*2+i)*4
    a('s_cmp_eq_u32 s%d, s%d'%(S_H,S_PAR)); a('s_cselect_b32 s%d, 0, 2'%S_T0); a('s_add_u32 s%d, s%d, s%d'%(S_T0,S_T0,S_H))
    for t,lab in ((1,'K1c_z2_1'),(2,'K1c_z1_0'),(3,'K1c_z1_1')):
        a('s_cmp_eq_u32 s%d, %d'%(S_T0,t)); a('s_cbranch_scc1 %s'%lab)
    for role in ('z2','z1'):
      for h in range(2):
        nj=5-h; nm='K1c_%s_%d'%(role,h)
        a.lab(nm)
        def rd(st,sub,nj=nj):
            F=FA if st==0 else FB; m=[]
            for i in range(2): m.append('ds_read_b128 %s, v%d offset:%d'%(vr(F+i*4,4),XA[sub],i*2048))
            for j in range(nj):
                for b in range(2): m.append('ds_read_b64_tr_b16 %s, v%d offset:%d'%(vr(F+8+j*4+b*2,2),WA,16384+sub*9216+b*4608+j*32))
            return m
        def mf(st,role=role,nj=nj):
            F=FA if st==0 else FB; m=[]
            for j in range(nj):
                for i in range(2):
                    x=vr(F+i*4,4); w=vr(F+8+j*4,4); c=vr(acc(i,j),4)
                    m.append('v_mfma_f32_16x16x32_bf16 %s, %s, %s, %s'%((c,x,w,c) if role=='z2' else (c,w,x,c)))
            return m
        consumer_loop(a,nm+'L',SLZ,NK1,XA+[WA],rd,mf,lag=(h==0),hook=ln1_hook(a),hook_at=2,per=EXP.get('k1per',2),dly=EXP.get('k1dly',12))
        a('s_barrier')
        if EXP.get('fine') is None: gc.stamp(a,4)
        C0=112;C1=114;ONE=116
        a('v_mov_b32 v%d, 0x%x'%(C0,f2u(GC0))); a('v_mov_b32 v%d, 0x%x'%(C0+1,f2u(GC0)))
        a('v_mov_b32 v%d, 0x%x'%(C1,f2u(GC1))); a('v_mov_b32 v%d, 0x%x'%(C1+1,f2u(GC1)))
        a('v_mov_b32 v%d, 1.0'%ONE); a('v_mov_b32 v%d, 1.0'%(ONE+1))
        TMP=[56,58,60,62]; prs=[(i,p) for i in range(2) for p in range(2)]
        if role=='z2':
            if not EXP.get('noz2prio'): a('s_setprio 3')
            RR=64; NM=72; CS=80; CSb=86; SUM=92; SQ=100; GRN=56; VO=118; PK=108
            a('s_lshl_b32 s%d, s%d, 7'%(S_T0,S_PW)); a('v_lshlrev_b32 v3, 4, v2'); a('v_add_u32 v3, s%d, v3'%S_T0); a('v_add_u32 v3, %d, v3'%T_R)
            for i in range(2):
                a('ds_read_b128 %s, v3 offset:%d'%(vr(RR+4*i,4),i*64)); a('ds_read_b128 %s, v3 offset:%d'%(vr(NM+4*i,4),512+i*64))
            a('v_lshlrev_b32 v4, 2, v1'); a('v_add_u32 v4, %d, v4'%(T_CS0+h*320))
            for j in range(nj):
                a('ds_read_b32 v%d, v4 offset:%d'%(CS+j,j*64)); a('ds_read_b32 v%d, v4 offset:%d'%(CSb+j,640+j*64))
            for k in range(8): a('v_mov_b32 v%d, 0'%(SUM+k)); a('v_mov_b32 v%d, 0'%(SQ+k))
            add64(a,S_T2,S_WS,WS_GR); srd(a,SRD_G,S_T2,S_T2+1,16*12288)
            a('s_mul_i32 s%d, s%d, 12288'%(S_SO,S_RB))
            a('s_lshl_b32 s%d, s%d, 1'%(S_T0,S_CT)); a('s_add_u32 s%d, s%d, %d'%(S_T0,S_T0,h)); a('s_lshl_b32 s%d, s%d, 10'%(S_T0,S_T0))
            a('s_lshl_b32 s%d, s%d, 8'%(S_T1,S_PW)); a('s_add_u32 s%d, s%d, s%d'%(S_T0,S_T0,S_T1)); a('s_add_u32 s%d, s%d, s%d'%(S_SO2,S_SO,S_T0))
            a('s_waitcnt lgkmcnt(0)')
            for j in range(nj): a('v_add_f32 v%d, v%d, v%d'%(CS+j,CS+j,CSb+j))
            for j in range(nj):
                csr=CS+j; cspair=vr(csr&~1,2); sel=csr&1
                for k,(i,p) in enumerate(prs): a('v_pk_mul_f32 %s, %s, %s op_sel:[0,%d] op_sel_hi:[1,%d]'%(vr(TMP[k],2),vr(NM+4*i+2*p,2),cspair,sel,sel))
                for k,(i,p) in enumerate(prs):
                    r=acc(i,j)+2*p; a('v_pk_fma_f32 %s, %s, %s, %s'%(vr(r,2),vr(r,2),vr(RR+4*i+2*p,2),vr(TMP[k],2)))
                gelu_pairs(a,[acc(i,j)+2*p for (i,p) in prs],TMP,C0,C1,ONE)
                for k,(i,p) in enumerate(prs):
                    r=acc(i,j)+2*p
                    a('v_pk_add_f32 %s, %s, %s'%(vr(SUM+4*i+2*p,2),vr(SUM+4*i+2*p,2),vr(r,2)))
                    a('v_pk_fma_f32 %s, %s, %s, %s'%(vr(SQ+4*i+2*p,2),vr(r,2),vr(r,2),vr(SQ+4*i+2*p,2)))
            if EXP.get('z2st'): gc.stamp(a,1)
            for sh in (8,4,2):
                for k in range(8): a('v_add_f32_dpp v%d, v%d, v%d row_ror:%d row_mask:0xf bank_mask:0xf'%(SUM+k,SUM+k,SUM+k,sh))
                for k in range(8): a('v_add_f32_dpp v%d, v%d, v%d row_ror:%d row_mask:0xf bank_mask:0xf'%(SQ+k,SQ+k,SQ+k,sh))
            for k in range(8): a('v_add_f32_dpp v%d, v%d, v%d row_ror:1 row_mask:0xf bank_mask:0xf'%(GRN+2*k,SUM+k,SUM+k))
            for k in range(8): a('v_add_f32_dpp v%d, v%d, v%d row_ror:1 row_mask:0xf bank_mask:0xf'%(GRN+2*k+1,SQ+k,SQ+k))
            a('v_lshlrev_b32 v3, 5, v2'); a('v_cmp_eq_u32 vcc, 0, v1'); a('s_and_saveexec_b64 s[%d:%d], vcc'%(S_EX,S_EX+1))
            for i in range(2):
                for p in range(2): a('buffer_store_dwordx4 %s, v3, s[%d:%d], s%d offen offset:%d sc1'%(vr(GRN+8*i+4*p,4),SRD_G,SRD_G+3,S_SO2,i*128+p*16))
            a('s_mov_b64 exec, s[%d:%d]'%(S_EX,S_EX+1))
            if EXP.get('z2st'): gc.stamp(a,2)
            PL=72
            if not EXP.get('oldpoll'):
                add64(a,S_T2,S_WS,WS_FG); srd(a,SRD_O2,S_T2,S_T2+1,4096)
                a('s_lshl_b32 s%d, s%d, 8'%(S_T0,S_RB)); a('s_lshl_b32 s%d, s%d, 6'%(S_T1,S_PW)); a('s_add_u32 s%d, s%d, s%d'%(S_T0,S_T0,S_T1))
                a('s_lshl_b32 s%d, s%d, 1'%(S_T1,S_CT)); a('s_add_u32 s%d, s%d, %d'%(S_T1,S_T1,h)); a('s_lshl_b32 s%d, s%d, 2'%(S_T1,S_T1)); a('s_add_u32 s%d, s%d, s%d'%(S_T1,S_T1,S_T0))
                a('v_mov_b32 v6, 1'); a('v_mov_b32 v7, 0'); a('s_mov_b32 exec_lo, 1'); a('s_mov_b32 exec_hi, 0')
                a('buffer_store_dword v6, v7, s[%d:%d], s%d offen sc1'%(SRD_O2,SRD_O2+3,S_T1)); a('s_mov_b64 exec, -1')
                a('v_lshlrev_b32 v7, 2, v0'); a('v_mov_b32 v8, 0x7fffff00'); a('v_cmp_gt_u32 vcc, 12, v0'); a('s_nop 1'); a('v_cndmask_b32 v7, v8, v7, vcc'); a('v_cndmask_b32_e64 v8, 1, 0, vcc')
                a('s_mov_b32 s%d, 0'%S_I)
                a('buffer_load_dword v9, v7, s[%d:%d], s%d offen sc1'%(SRD_O2,SRD_O2+3,S_T0))
                a.lab(nm+'_hp')
                for r0,r1 in ((9,10),(10,9)):
                    a('buffer_load_dword v%d, v7, s[%d:%d], s%d offen sc1'%(r1,SRD_O2,SRD_O2+3,S_T0)); a('s_waitcnt vmcnt(1)')
                    a('v_or_b32 v11, v%d, v8'%r0); a('v_cmp_ne_u32 vcc, 1, v11'); a('s_nop 1'); a('s_cmp_eq_u64 vcc, 0'); a('s_cbranch_scc1 %s_hok'%nm)
                a('s_add_u32 s%d, s%d, 1'%(S_I,S_I)); a('s_cmp_lt_u32 s%d, %d'%(S_I,POLL_BOUND)); a('s_cbranch_scc1 %s_hp'%nm)
                a.lab(nm+'_hok')
            a('v_and_b32 v4, 31, v0'); a('v_lshrrev_b32 v5, 5, v0'); a('v_mul_u32_u24 v5, 6144, v5'); a('v_lshl_add_u32 v4, v4, 3, v5')
            a('s_lshl_b32 s%d, s%d, 8'%(S_T1,S_PW)); a('v_add_u32 v4, s%d, v4'%S_T1); a('v_add_u32 v5, 4096, v4')
            a('s_mov_b32 s%d, 0'%S_I)
            a.lab(nm+'_poll')
            for k in range(6): a('buffer_load_dwordx2 %s, v%d, s[%d:%d], s%d offen offset:%d sc1'%(vr(PL+2*k,2),4 if k<4 else 5,SRD_G,SRD_G+3,S_SO,(k%4)*1024))
            a('s_waitcnt vmcnt(0)')
            a('v_max3_u32 v6, v%d, v%d, v%d'%(PL,PL+1,PL+2))
            for k in range(3,12,2):
                a('v_max3_u32 v6, v6, v%d, v%d'%(PL+k,PL+k+1) if k+1<12 else 'v_max_u32 v6, v6, v%d'%(PL+k))
            a('v_cmp_eq_u32 s[%d:%d], -1, v6'%(S_EX,S_EX+1)); a('s_nop 1'); a('s_cmp_eq_u64 s[%d:%d], 0'%(S_EX,S_EX+1)); a('s_cbranch_scc1 %s_rdy'%nm)
            a('s_add_u32 s%d, s%d, 1'%(S_I,S_I)); a('s_cmp_lt_u32 s%d, %d'%(S_I,POLL_BOUND)); a('s_cbranch_scc1 %s_poll'%nm)
            a.lab(nm+'_rdy')
            if EXP.get('z2st'): gc.stamp(a,3)
            a('v_pk_add_f32 %s, %s, %s'%(vr(PL,2),vr(PL,2),vr(PL+2,2))); a('v_pk_add_f32 %s, %s, %s'%(vr(PL+4,2),vr(PL+4,2),vr(PL+6,2))); a('v_pk_add_f32 %s, %s, %s'%(vr(PL+8,2),vr(PL+8,2),vr(PL+10,2)))
            a('v_pk_add_f32 %s, %s, %s'%(vr(PL,2),vr(PL,2),vr(PL+4,2))); a('v_pk_add_f32 %s, %s, %s'%(vr(PL,2),vr(PL,2),vr(PL+8,2)))
            a('v_mov_b32 v%d, v%d'%(PL+2,PL)); a('v_mov_b32 v%d, v%d'%(PL+3,PL+1)); a('s_nop 1')
            a('v_permlane32_swap_b32 v%d, v%d'%(PL,PL+2)); a('v_permlane32_swap_b32 v%d, v%d'%(PL+1,PL+3)); a('s_nop 1')
            a('v_pk_add_f32 %s, %s, %s'%(vr(PL,2),vr(PL,2),vr(PL+2,2)))
            a('v_mul_f32 v%d, 0x%x, v%d'%(PL,f2u(1.0/864),PL)); a('v_mul_f32 v%d, 0x%x, v%d'%(PL+1,f2u(1.0/864),PL+1))
            a('v_fma_f32 v%d, -v%d, v%d, v%d'%(PL+1,PL,PL,PL+1)); a('v_max_f32 v%d, 0, v%d'%(PL+1,PL+1)); a('v_add_f32 v%d, 0x%x, v%d'%(PL+1,f2u(1e-5),PL+1))
            a('v_rsq_f32 v%d, v%d'%(PL+2,PL+1)); a('s_nop 0'); a('v_mul_f32 v%d, v%d, v%d'%(PL+3,PL,PL+2)); a('v_sub_f32 v%d, 0, v%d'%(PL+3,PL+3))
            a('s_lshl_b32 s%d, s%d, 8'%(S_T0,S_WAVE)); a('s_add_u32 s%d, s%d, %d'%(S_T0,S_T0,T_W2))
            a('v_and_b32 v4, 31, v0'); a('v_lshlrev_b32 v4, 2, v4'); a('v_add_u32 v4, s%d, v4'%S_T0)
            a('ds_write_b32 v4, v%d'%(PL+2)); a('ds_write_b32 v4, v%d offset:128'%(PL+3))
            a('v_lshlrev_b32 v5, 4, v2'); a('v_add_u32 v5, s%d, v5'%S_T0)
            a('s_waitcnt lgkmcnt(0)')
            for i in range(2):
                a('ds_read_b128 %s, v5 offset:%d'%(vr(RR+4*i,4),i*64)); a('ds_read_b128 %s, v5 offset:%d'%(vr(84+4*i,4),128+i*64))
            NM2=84
            a('s_mul_i32 s%d, s%d, %d'%(S_T0,S_CT,Z2_CT)); a('s_lshl_b32 s%d, s%d, 1'%(S_T1,S_RB)); a('s_lshr_b32 s%d, s%d, 1'%(S_T2,S_PW))
            a('s_add_u32 s%d, s%d, s%d'%(S_T1,S_T1,S_T2)); a('s_mul_i32 s%d, s%d, 18432'%(S_T1,S_T1)); a('s_add_u32 s%d, s%d, s%d'%(S_T0,S_T0,S_T1))
            a('s_and_b32 s%d, s%d, 1'%(S_T1,S_PW)); a('s_mul_i32 s%d, s%d, 9216'%(S_T1,S_T1)); a('s_add_u32 s%d, s%d, s%d'%(S_T0,S_T0,S_T1))
            a('s_add_u32 s%d, s%d, %d'%(S_SO,S_T0,5120*h))
            srd(a,SRD_O,S_WS,S_WS+1,6*Z2_CT)
            a('v_lshlrev_b32 v%d, 4, v0'%VO)
            a('s_waitcnt lgkmcnt(0)')
            for j in range(nj):
                for k,(i,p) in enumerate(prs):
                    r=acc(i,j)+2*p; a('v_pk_fma_f32 %s, %s, %s, %s'%(vr(r,2),vr(r,2),vr(RR+4*i+2*p,2),vr(NM2+4*i+2*p,2)))
                o=PK+4*(j&1)
                for k,(i,p) in enumerate(prs):
                    r=acc(i,j)+2*p; a('v_cvt_pk_bf16_f32 v%d, v%d, v%d'%(o+k,r,r+1))
                a('s_nop 1')
                a('v_permlane32_swap_b32 v%d, v%d'%(o,o+2)); a('v_permlane32_swap_b32 v%d, v%d'%(o+1,o+3)); a('s_nop 1')
                a('v_permlane16_swap_b32 v%d, v%d'%(o,o+2)); a('v_permlane16_swap_b32 v%d, v%d'%(o+1,o+3))
                if j<4: a('buffer_store_dwordx4 %s, v%d, s[%d:%d], s%d offen offset:%d%s'%(vr(o,4),VO,SRD_O,SRD_O+3,S_SO,j*1024,g2.STF))
                else:
                    a('s_add_u32 s%d, s%d, 4096'%(S_SO,S_SO)); a('buffer_store_dwordx4 %s, v%d, s[%d:%d], s%d offen%s'%(vr(o,4),VO,SRD_O,SRD_O+3,S_SO,g2.STF))
            a('s_branch K1_end')
        else:
            RR=64; NM=66; CS=68; CSb=88; PK=100; VO=118
            a('s_lshl_b32 s%d, s%d, 7'%(S_T0,S_PW)); a('v_lshlrev_b32 v3, 2, v1'); a('v_add_u32 v3, s%d, v3'%S_T0); a('v_add_u32 v3, %d, v3'%T_R)
            for i in range(2):
                a('ds_read_b32 v%d, v3 offset:%d'%(RR+i,i*64)); a('ds_read_b32 v%d, v3 offset:%d'%(NM+i,512+i*64))
            a('v_lshlrev_b32 v4, 4, v2'); a('v_add_u32 v4, %d, v4'%(T_CS0+320*h))
            for j in range(nj):
                a('ds_read_b128 %s, v4 offset:%d'%(vr(CS+4*j,4),j*64)); a('ds_read_b128 %s, v4 offset:%d'%(vr(CSb+4*j,4),640+j*64))
            a('s_mul_i32 s%d, s%d, 6'%(S_T0,S_RB)); a('s_add_u32 s%d, s%d, s%d'%(S_T0,S_T0,S_CT)); a('s_lshl_b32 s%d, s%d, 3'%(S_T0,S_T0))
            a('s_add_u32 s%d, s%d, s%d'%(S_T0,S_T0,S_WAVE)); a('s_mul_i32 s%d, s%d, 5120'%(S_SO,S_T0))
            add64(a,S_T2,S_WS,WS_Z1); srd(a,SRD_O,S_T2,S_T2+1,96*40960)
            a('v_lshlrev_b32 v%d, 4, v0'%VO)
            a('s_waitcnt lgkmcnt(0)')
            for j in range(nj):
                for p in range(2): a('v_pk_add_f32 %s, %s, %s'%(vr(CS+4*j+2*p,2),vr(CS+4*j+2*p,2),vr(CSb+4*j+2*p,2)))
            for j in range(nj):
                for k,(i,p) in enumerate(prs): a('v_pk_mul_f32 %s, %s, %s op_sel:[0,%d] op_sel_hi:[1,%d]'%(vr(TMP[k],2),vr(CS+4*j+2*p,2),vr(NM,2),i,i))
                for k,(i,p) in enumerate(prs):
                    r=acc(i,j)+2*p; a('v_pk_fma_f32 %s, %s, %s, %s op_sel:[0,%d,0] op_sel_hi:[1,%d,1]'%(vr(r,2),vr(r,2),vr(RR,2),vr(TMP[k],2),i,i))
                gelu_pairs(a,[acc(i,j)+2*p for (i,p) in prs],TMP,C0,C1,ONE)
                o=acc(0,j) if not EXP.get('z1early') else PK+4*(j&1)
                for k,(i,p) in enumerate(prs):
                    r=acc(i,j)+2*p; a('v_cvt_pk_bf16_f32 v%d, v%d, v%d'%(o+k,r,r+1))
                if EXP.get('z1early'):
                    if j<4: a('buffer_store_dwordx4 %s, v%d, s[%d:%d], s%d offen offset:%d%s'%(vr(o,4),VO,SRD_O,SRD_O+3,S_SO,j*1024,g2.STF))
                    else:
                        a('s_add_u32 s%d, s%d, 4096'%(S_SO,S_SO)); a('buffer_store_dwordx4 %s, v%d, s[%d:%d], s%d offen%s'%(vr(o,4),VO,SRD_O,SRD_O+3,S_SO,g2.STF))
            if not EXP.get('z1early'):
                for j in range(nj):
                    if j<4: a('buffer_store_dwordx4 %s, v%d, s[%d:%d], s%d offen offset:%d%s'%(vr(acc(0,j),4),VO,SRD_O,SRD_O+3,S_SO,j*1024,g2.STF))
                    else:
                        a('s_add_u32 s%d, s%d, 4096'%(S_SO,S_SO)); a('buffer_store_dwordx4 %s, v%d, s[%d:%d], s%d offen%s'%(vr(acc(0,j),4),VO,SRD_O,SRD_O+3,S_SO,g2.STF))
            a('s_branch K1_end')
    a.lab('K1Z_prod')
    XO=[2,3]; WO=[4,5,6,7,8]
    if EXP.get('same'): a('s_mov_b32 s%d, 0'%S_RB); a('s_mov_b32 s%d, 0'%S_CT)
    a('s_sub_u32 s%d, s%d, 8'%(S_PW,S_WAVE))
    a('v_lshrrev_b32 v20, 3, v0'); a('s_lshl_b32 s%d, s%d, 5'%(S_T0,S_PW)); a('v_add_u32 v21, s%d, v20'%S_T0); a('v_mul_u32_u24 v21, 1280, v21')
    a('v_and_b32 v22, 7, v0'); a('v_xor_b32 v22, v22, v20')
    a('v_lshl_add_u32 v%d, v22, 4, v21'%XO[0]); a('v_mov_b32 v%d, v%d'%(XO[1],XO[0]))
    a('s_mul_i32 s%d, s%d, 288'%(S_T0,S_CT)); a('s_cmp_eq_u32 s%d, 0'%S_PAR); a('s_cselect_b32 s%d, 1728, 0'%S_T1); a('s_cselect_b32 s%d, 0, 1728'%S_T2)
    a('s_add_u32 s%d, s%d, s%d'%(S_T1,S_T1,S_T0)); a('s_add_u32 s%d, s%d, s%d'%(S_T2,S_T2,S_T0))
    a('v_mov_b32 v24, s%d'%S_T1); a('v_mov_b32 v25, s%d'%S_T2)
    for i in range(5):
        a('s_lshl_b32 s%d, s%d, 6'%(S_T0,S_PW)); a('s_add_u32 s%d, s%d, %d'%(S_T0,S_T0,256*i)); a('v_add_u32 v20, s%d, v0'%S_T0)
        a('v_mul_u32_u24 v21, 3641, v20'); a('v_lshrrev_b32 v21, 16, v21')
        a('v_mul_u32_u24 v22, 18, v21'); a('v_sub_u32 v22, v20, v22'); a('v_cmp_gt_u32 vcc, 10, v22')
        a('v_and_b32 v26, 0x23, v21'); a('v_bfe_u32 v27, v21, 2, 2'); a('v_lshl_or_b32 v26, v27, 3, v26'); a('v_bfe_u32 v27, v21, 4, 1'); a('v_lshl_or_b32 v21, v27, 2, v26')
        a('v_mul_u32_u24 v21, 3456, v21'); a('v_lshl_add_u32 v21, v22, 4, v21')
        a('v_cndmask_b32 v23, v25, v24, vcc'); a('v_add_u32 v%d, v21, v23'%WO[i])
    a('s_mov_b32 s%d, 0'%S_SLI)
    krot(a); a('s_lshl_b32 s%d, s%d, 7'%(S_KX,S_T0)); a('s_mul_i32 s%d, s%d, %d'%(S_KW,S_T0,64*3456))
    a('s_waitcnt lgkmcnt(0)')
    a('s_mul_i32 s%d, s%d, %d'%(S_T0,S_RB,128*1280)); add64(a,S_X,S_X,'s%d'%S_T0); srd(a,SRD_X,S_X,S_X+1,128*1280)
    srd(a,SRD_W,S_WIN,S_WIN+1,640*3456)
    def issueZ():
        a('s_lshl_b32 s%d, s%d, 12'%(S_T,S_PW)); a('s_add_u32 s%d, s%d, s%d'%(S_T,S_T,S_SLI))
        for j in range(4):
            a('s_add_u32 m0, s%d, %d'%(S_T,j*1024)); a('s_add_u32 s%d, s%d, %d'%(S_SO,S_KX,j*10240))
            a(ld('buffer_load_dwordx4 v%d, s[%d:%d], s%d offen lds'%(XO[j&1],SRD_X,SRD_X+3,S_SO)))
        a('s_lshl_b32 s%d, s%d, 10'%(S_T,S_PW)); a('s_add_u32 s%d, s%d, s%d'%(S_T,S_T,S_SLI))
        lab=a.newlab('K1Zp_s')
        for i in range(5):
            if i==4: a('s_cmp_lt_u32 s%d, 2'%S_PW); a('s_cbranch_scc0 %s'%lab)
            a('s_add_u32 m0, s%d, %d'%(S_T,16384+i*4096)); a('s_nop 0')
            a(ld('buffer_load_dwordx4 v%d, s[%d:%d], s%d offen lds'%(WO[i],SRD_W,SRD_W+3,S_KW)))
        a.lab(lab)
        slot_advance(a,S_SLI,SLZ); a('s_add_u32 s%d, s%d, 128'%(S_KX,S_KX)); a('s_add_u32 s%d, s%d, %d'%(S_KW,S_KW,64*3456))
        a('s_cmp_eq_u32 s%d, 1280'%S_KX); a('s_cselect_b32 s%d, 0, s%d'%(S_KX,S_KX)); a('s_cselect_b32 s%d, 0, s%d'%(S_KW,S_KW))
    dma_producer(a,'K1Zp',NK1,8,issueZ,post=1)
    a('s_branch K1_end')
    a.lab('K1Z_work')
    a('s_sub_u32 s%d, s%d, 12'%(S_PW,S_WAVE))
    a('s_waitcnt lgkmcnt(0)')
    late=worker(a,'K1Zw',SLZ,True)
    a('s_waitcnt lgkmcnt(0)'); a('s_barrier'); late(); a('s_branch K1_end')

    a.lab('K1A_entry')
    a('s_sub_u32 s%d, s%d, 24'%(S_T0,S_J)); a('s_lshr_b32 s%d, s%d, 1'%(S_T1,S_T0)); a('s_and_b32 s%d, s%d, 1'%(S_CT,S_T0))
    a('s_lshl_b32 s%d, s%d, 2'%(S_RB,S_G)); a('s_add_u32 s%d, s%d, s%d'%(S_RB,S_RB,S_T1))
    a('s_cmp_ge_u32 s%d, 12'%S_WAVE); a('s_cbranch_scc1 K1A_work')
    a('s_cmp_ge_u32 s%d, 8'%S_WAVE); a('s_cbranch_scc1 K1A_prod')
    ACC=16; FA=56; FB=84; XA=[112,113]; WA2=[114,115]
    a('s_and_b32 s%d, s%d, 3'%(S_PW,S_WAVE)); a('s_lshr_b32 s%d, s%d, 2'%(S_H,S_WAVE))
    a('v_and_b32 v1, 15, v0'); a('v_lshrrev_b32 v2, 4, v0'); a('v_and_b32 v3, 7, v0'); a('v_xor_b32 v3, v3, v2'); a('v_lshlrev_b32 v3, 4, v3')
    a('v_lshl_add_u32 v3, v1, 7, v3')
    a('s_lshl_b32 s%d, s%d, 11'%(S_T0,S_PW)); a('v_add_u32 v%d, s%d, v3'%(XA[0],S_T0)); a('v_xor_b32 v%d, 64, v%d'%(XA[1],XA[0]))
    a('s_mul_i32 s%d, s%d, %d'%(S_T0,S_H,80*128)); a('s_add_u32 s%d, s%d, 16384'%(S_T0,S_T0)); a('v_add_u32 v%d, s%d, v3'%(WA2[0],S_T0)); a('v_xor_b32 v%d, 64, v%d'%(WA2[1],WA2[0]))
    ln1_row(a)
    for k in range(40): a('v_mov_b32 v%d, 0'%(ACC+k))
    ln1_row_finish(a)
    def accA(tb,j): return ACC+(j*2+tb)*4
    def rdA(st,sub):
        F=FA if st==0 else FB; m=[]
        for tb in range(2): m.append('ds_read_b128 %s, v%d offset:%d'%(vr(F+tb*4,4),XA[sub],tb*8192))
        for j in range(5): m.append('ds_read_b128 %s, v%d offset:%d'%(vr(F+8+j*4,4),WA2[sub],j*2048))
        return m
    def mfA(st):
        F=FA if st==0 else FB; m=[]
        for j in range(5):
            for tb in range(2):
                c=vr(accA(tb,j),4); m.append('v_mfma_f32_16x16x32_bf16 %s, %s, %s, %s'%(c,vr(F+tb*4,4),vr(F+8+j*4,4),c))
        return m
    a('s_cmp_eq_u32 s%d, 0'%S_H); a('s_cbranch_scc0 K1A_c1')
    consumer_loop(a,'K1A0',SLA,NK1,XA+WA2,rdA,mfA,lag=True,hook=ln1_hook(a),hook_at=2)
    a('s_branch K1A_cd')
    a.lab('K1A_c1')
    consumer_loop(a,'K1A1',SLA,NK1,XA+WA2,rdA,mfA,lag=False,hook=ln1_hook(a),hook_at=2)
    a.lab('K1A_cd')
    a('s_barrier')
    if EXP.get('fine') is None: gc.stamp(a,4)
    RT=56; RB_=60; RO=64; T4=[66,68]; PK=70; VO=76
    a('s_lshl_b32 s%d, s%d, 6'%(S_T0,S_PW)); a('v_lshlrev_b32 v3, 4, v2'); a('v_add_u32 v3, s%d, v3'%S_T0); a('v_add_u32 v3, %d, v3'%T_R)
    a('ds_read_b128 %s, v3'%vr(RT,4)); a('ds_read_b128 %s, v3 offset:256'%vr(RB_,4))
    a('s_mul_i32 s%d, s%d, %d'%(S_T0,S_HALF,AE_MAT)); a('s_lshl_b32 s%d, s%d, 1'%(S_T1,S_CT)); a('s_add_u32 s%d, s%d, s%d'%(S_T1,S_T1,S_H))
    a('s_mul_i32 s%d, s%d, 163840'%(S_T1,S_T1)); a('s_add_u32 s%d, s%d, s%d'%(S_T0,S_T0,S_T1)); a('s_mul_i32 s%d, s%d, 10240'%(S_T1,S_RB))
    a('s_add_u32 s%d, s%d, s%d'%(S_T0,S_T0,S_T1)); a('s_lshr_b32 s%d, s%d, 1'%(S_T1,S_PW)); a('s_mul_i32 s%d, s%d, 5120'%(S_T1,S_T1)); a('s_add_u32 s%d, s%d, s%d'%(S_SO,S_T0,S_T1))
    add64(a,S_T2,S_WS,WS_AE); srd(a,SRD_O,S_T2,S_T2+1,2*AE_MAT)
    a('s_and_b32 s%d, s%d, 1'%(S_T0,S_PW)); a('s_lshl_b32 s%d, s%d, 9'%(S_T0,S_T0))
    a('v_lshrrev_b32 v3, 1, v2'); a('v_lshlrev_b32 v3, 8, v3'); a('v_lshl_add_u32 v3, v1, 4, v3'); a('v_and_b32 v4, 1, v2'); a('v_lshl_add_u32 v3, v4, 3, v3')
    a('v_add_u32 v%d, s%d, v3'%(VO,S_T0))
    a('s_waitcnt lgkmcnt(0)')
    a('s_or_b32 s%d, s%d, s%d'%(S_T0,S_RB,S_PW)); a('s_or_b32 s%d, s%d, s%d'%(S_T0,S_T0,S_HALF)); a('s_cmp_eq_u32 s%d, 0'%S_T0); a('s_cbranch_scc0 K1A_nosp')
    add64(a,S_T2,S_WS,WS_A1024); srd(a,SRD_O2,S_T2,S_T2+1,1280)
    a('s_mul_i32 s%d, s%d, 640'%(S_T0,S_CT)); a('s_mul_i32 s%d, s%d, 320'%(S_T1,S_H)); a('s_add_u32 s%d, s%d, s%d'%(S_T0,S_T0,S_T1))
    a('v_lshlrev_b32 v5, 2, v1')
    a('v_cmp_gt_u32 vcc, 16, v0'); a('s_and_saveexec_b64 s[%d:%d], vcc'%(S_EX,S_EX+1))
    for j in range(5):
        a('v_mul_f32 v%d, v%d, v%d'%(RO,accA(1,j),RB_))
        a('buffer_store_dword v%d, v5, s[%d:%d], s%d offen offset:%d%s'%(RO,SRD_O2,SRD_O2+3,S_T0,j*64,g2.STF)); a('s_nop 0')
    a('v_mov_b32 v%d, 0'%RB_)
    a('s_mov_b64 exec, s[%d:%d]'%(S_EX,S_EX+1))
    a.lab('K1A_nosp')
    a('s_cmp_eq_u32 s%d, 0'%S_HALF); a('s_cselect_b32 s%d, 1.0, -1.0'%S_T0)
    for k in range(4): a('v_mul_f32 v%d, s%d, v%d'%(RB_+k,S_T0,RB_+k))
    for j in range(5):
        for p in range(2): a('v_pk_mul_f32 %s, %s, %s'%(vr(T4[p],2),vr(accA(1,j)+2*p,2),vr(RB_+2*p,2)))
        for p in range(2): a('v_pk_fma_f32 %s, %s, %s, %s'%(vr(T4[p],2),vr(accA(0,j)+2*p,2),vr(RT+2*p,2),vr(T4[p],2)))
        for p in range(2): a('v_cvt_pk_bf16_f32 v%d, v%d, v%d'%(PK+p+2*(j&1),T4[p],T4[p]+1))
        if j<4: a('buffer_store_dwordx2 %s, v%d, s[%d:%d], s%d offen offset:%d%s'%(vr(PK+2*(j&1),2),VO,SRD_O,SRD_O+3,S_SO,j*1024,g2.STF))
        else:
            a('s_add_u32 s%d, s%d, 4096'%(S_SO,S_SO)); a('buffer_store_dwordx2 %s, v%d, s[%d:%d], s%d offen%s'%(vr(PK+2*(j&1),2),VO,SRD_O,SRD_O+3,S_SO,g2.STF))
    a('s_branch K1_end')
    a.lab('K1A_prod')
    XO4=[2,3,4,5]; WO1=6
    if EXP.get('same'): a('s_mov_b32 s%d, 0'%S_RB); a('s_mov_b32 s%d, 0'%S_CT)
    a('s_sub_u32 s%d, s%d, 8'%(S_PW,S_WAVE))
    a('v_lshrrev_b32 v20, 3, v0'); a('v_and_b32 v22, 7, v0'); a('v_xor_b32 v22, v22, v20'); a('v_lshlrev_b32 v22, 4, v22')
    a('s_lshl_b32 s%d, s%d, 6'%(S_T0,S_RB))
    a('s_cmp_lt_u32 s%d, 2'%S_PW); a('s_cbranch_scc0 K1Ap_bot')
    a('s_lshl_b32 s%d, s%d, 5'%(S_T1,S_PW)); a('s_add_u32 s%d, s%d, s%d'%(S_T1,S_T1,S_T0))
    for j in range(4):
        a('v_add_u32 v21, s%d, v20'%S_T1); a('v_add_u32 v21, %d, v21'%(8*j)); a('v_mul_u32_u24 v21, 1280, v21'); a('v_add_u32 v%d, v21, v22'%XO4[j])
    a('s_branch K1Ap_xd')
    a.lab('K1Ap_bot')
    a('s_sub_u32 s%d, s%d, 2'%(S_T1,S_PW)); a('s_lshl_b32 s%d, s%d, 5'%(S_T1,S_T1)); a('s_add_u32 s%d, s%d, s%d'%(S_T1,S_T1,S_T0)); a('s_sub_u32 s%d, 2048, s%d'%(S_T1,S_T1))
    for j in range(4):
        a('v_sub_u32 v21, s%d, v20'%S_T1); a('v_subrev_u32 v21, %d, v21'%(8*j))
        if j==0:
            a('v_cmp_eq_u32 vcc, 2048, v21'); a('v_mov_b32 v23, 1024'); a('s_nop 0'); a('v_cndmask_b32 v21, v21, v23, vcc')
        a('v_mul_u32_u24 v21, 1280, v21'); a('v_add_u32 v%d, v21, v22'%XO4[j])
    a.lab('K1Ap_xd')
    a('s_mul_i32 s%d, s%d, 40'%(S_T0,S_PW)); a('v_add_u32 v21, s%d, v20'%S_T0); a('v_mul_u32_u24 v21, 1280, v21'); a('v_add_u32 v%d, v21, v22'%WO1)
    a('s_mov_b32 s%d, 0'%S_SLI)
    krot(a); a('s_lshl_b32 s%d, s%d, 7'%(S_KX,S_T0))
    a('s_waitcnt lgkmcnt(0)')
    srd(a,SRD_X,S_X,S_X+1,2048*1280)
    a('s_cmp_eq_u32 s%d, 0'%S_HALF); a('s_cselect_b32 s%d, s%d, s%d'%(S_T2,S_WDRE,S_WDIM)); a('s_cselect_b32 s%d, s%d, s%d'%(S_T3,S_WDRE+1,S_WDIM+1))
    a('s_mul_i32 s%d, s%d, %d'%(S_T0,S_CT,160*1280)); a('s_add_u32 s%d, s%d, 1280'%(S_T0,S_T0)); add64(a,S_T2,S_T2,'s%d'%S_T0)
    srd(a,SRD_W,S_T2,S_T2+1,160*1280)
    def issueA():
        a('s_lshl_b32 s%d, s%d, 12'%(S_T,S_PW)); a('s_add_u32 s%d, s%d, s%d'%(S_T,S_T,S_SLI))
        for j in range(4):
            a('s_add_u32 m0, s%d, %d'%(S_T,j*1024)); a('s_nop 0')
            a(ld('buffer_load_dwordx4 v%d, s[%d:%d], s%d offen lds'%(XO4[j],SRD_X,SRD_X+3,S_KX)))
        a('s_mul_i32 s%d, s%d, 5120'%(S_T,S_PW)); a('s_add_u32 s%d, s%d, s%d'%(S_T,S_T,S_SLI))
        for j in range(5):
            a('s_add_u32 m0, s%d, %d'%(S_T,16384+j*1024)); a('s_add_u32 s%d, s%d, %d'%(S_SO,S_KX,j*10240))
            a(ld('buffer_load_dwordx4 v%d, s[%d:%d], s%d offen lds'%(WO1,SRD_W,SRD_W+3,S_SO)))
        slot_advance(a,S_SLI,SLA); a('s_add_u32 s%d, s%d, 128'%(S_KX,S_KX))
        a('s_cmp_eq_u32 s%d, 1280'%S_KX); a('s_cselect_b32 s%d, 0, s%d'%(S_KX,S_KX))
    dma_producer(a,'K1Ap',NK1,9,issueA,post=1)
    a('s_branch K1_end')
    a.lab('K1A_work')
    a('s_sub_u32 s%d, s%d, 12'%(S_PW,S_WAVE))
    a('s_waitcnt lgkmcnt(0)')
    late=worker(a,'K1Aw',SLA,False)
    a('s_waitcnt lgkmcnt(0)'); a('s_barrier'); late()
    kernel_tail(a,'K1',0,S_WS)
```

```python
from g2_common import *
import g2_common as g2
SL3=39936
K3_LDS=NS*SL3
NK3=9
S_X=4; S_WS=6; S_WOUT=8; S_OUT=10
SRD_A=16; SRD_B=20; SRD_O=24; SRD_C=56; SRD_D=60
S_TB=37; S_DT=38
AREA_P=1*SL3; AREA_X=1*SL3+20480; AREA_DUM=1*SL3+32768; AREA_Q=2*SL3

def gen_k3(a,kname):
    kernel_head(a,kname,'K3')
    a('s_load_dwordx2 s[%d:%d], s[0:1], 0'%(S_X,S_X+1))
    a('s_load_dwordx4 s[%d:%d], s[0:1], 72'%(S_WOUT,S_WOUT+3))
    a('s_load_dwordx2 s[%d:%d], s[0:1], 96'%(S_WS,S_WS+1))
    wave_setup(a,'K3')
    a('s_and_b32 s%d, s2, 7'%S_XCD); a('s_lshr_b32 s%d, s2, 3'%S_J)
    a('s_lshr_b32 s%d, s%d, 3'%(S_T0,S_J)); a('s_lshl_b32 s%d, s%d, 2'%(S_TB,S_XCD)); a('s_add_u32 s%d, s%d, s%d'%(S_TB,S_TB,S_T0))
    a('s_and_b32 s%d, s%d, 7'%(S_DT,S_J))
    a('s_cmp_ge_u32 s%d, 8'%S_WAVE); a('s_cbranch_scc1 K3_prod')
    ACC=16; FS=[32,52,72]; WA=92; HA=93; PP=96; QQ=108; XX=120
    a('s_and_b32 s%d, s%d, 3'%(S_PW,S_WAVE)); a('s_lshr_b32 s%d, s%d, 2'%(S_H,S_WAVE))
    a('v_and_b32 v6, 15, v0'); a('v_lshrrev_b32 v7, 4, v0')
    a('s_lshl_b32 s%d, s%d, 6'%(S_T0,S_TB)); a('s_lshl_b32 s%d, s%d, 4'%(S_T1,S_PW)); a('s_add_u32 s%d, s%d, s%d'%(S_T0,S_T0,S_T1)); a('v_add_u32 v8, s%d, v6'%S_T0)
    a('s_mul_i32 s%d, s%d, 80'%(S_T0,S_DT)); a('s_mul_i32 s%d, s%d, 48'%(S_T1,S_H)); a('s_add_u32 s%d, s%d, s%d'%(S_T3,S_T0,S_T1))
    a('v_lshlrev_b32 v9, 2, v7'); a('v_add_u32 v9, s%d, v9'%S_T3)
    a('v_mul_u32_u24 v10, 1280, v8'); a('v_lshl_add_u32 v10, v9, 1, v10')
    a('s_mul_i32 s%d, s%d, 3072'%(S_T0,S_PW)); a('v_lshlrev_b32 v12, 3, v0'); a('v_add_u32 v%d, s%d, v12'%(HA,S_T0))
    a('v_lshrrev_b32 v12, 2, v6'); a('v_lshl_add_u32 v12, v7, 2, v12'); a('v_mul_u32_u24 v12, 160, v12'); a('v_and_b32 v13, 3, v6'); a('v_lshl_add_u32 v12, v13, 3, v12')
    a('s_mul_i32 s%d, s%d, 96'%(S_T0,S_H)); a('s_add_u32 s%d, s%d, 24576'%(S_T0,S_T0)); a('v_add_u32 v%d, s%d, v12'%(WA,S_T0))
    for k in range(12): a('v_mov_b32 v%d, 0'%(ACC+k))
    a('s_cmp_eq_u32 s%d, 0'%S_H); a('s_cbranch_scc0 K3c_1')
    for h in range(2):
        nj=3-h; nm='K3c_%d'%h
        a.lab(nm)
        def rd(st,sub,nj=nj):
            F=FS[st]; m=[]
            for ver in range(2):
                for b in range(2): m.append('ds_read_b64 %s, v%d offset:%d'%(vr(F+ver*4+b*2,2),HA,ver*12288+(sub*2+b)*512))
            for j in range(nj):
                for b in range(2): m.append('ds_read_b64_tr_b16 %s, v%d offset:%d'%(vr(F+8+j*4+b*2,2),WA,sub*32*160+b*16*160+j*32))
            return m
        def mf(st,nj=nj):
            F=FS[st]; m=[]
            for ver in range(2):
                for j in range(nj):
                    c=vr(ACC+4*j,4); m.append('v_mfma_f32_16x16x32_bf16 %s, %s, %s, %s'%(c,vr(F+8+j*4,4),vr(F+ver*4,4),c))
            return m
        consumer_loop(a,nm+'L',SL3,NK3,[WA,HA],rd,mf,lag=(h==0),nsub=3,per=EXP.get('k3per',2),dly=EXP.get('k3dly',6),phase=3)
        a('s_barrier')
        a('s_lshl_b32 s%d, s%d, 4'%(S_T0,S_PW)); a('v_add_u32 v11, s%d, v6'%S_T0)
        a('v_mul_u32_u24 v12, 320, v11'); a('v_mul_u32_u24 v13, 160, v11')
        a('v_lshlrev_b32 v14, 2, v7'); a('v_add_u32 v14, %d, v14'%(48*h))
        a('v_lshl_add_u32 v13, v14, 1, v13'); a('v_add_u32 v13, %d, v13'%(AREA_X))
        a('s_cmp_lt_u32 s%d, 4'%S_DT); a('s_cbranch_scc1 %s_rdir'%nm)
        a('v_sub_u32 v14, %d, v14'%(76-32))
        a('v_lshl_add_u32 v12, v14, 2, v12'); a('v_add_u32 v12, %d, v12'%(AREA_P))
        for j in range(nj):
            a('ds_read_b128 %s, v12 offset:%d'%(vr(PP+4*j,4),(2-j)*64)); a('ds_read_b128 %s, v12 offset:%d'%(vr(QQ+4*j,4),AREA_Q-AREA_P+(2-j)*64))
        a('s_branch %s_rdone'%nm)
        a.lab(nm+'_rdir')
        a('v_lshl_add_u32 v12, v14, 2, v12'); a('v_add_u32 v12, %d, v12'%(AREA_P))
        for j in range(nj):
            a('ds_read_b128 %s, v12 offset:%d'%(vr(PP+4*j,4),j*64)); a('ds_read_b128 %s, v12 offset:%d'%(vr(QQ+4*j,4),AREA_Q-AREA_P+j*64))
        a.lab(nm+'_rdone')
        for j in range(nj): a('ds_read_b64 %s, v13 offset:%d'%(vr(XX+2*j,2),j*32))
        srd(a,SRD_O,S_OUT,S_OUT+1,2048*1280)
        a('s_waitcnt lgkmcnt(0)')
        a('s_cmp_lt_u32 s%d, 16'%S_TB); a('s_cselect_b32 s%d, 1, 0'%S_T0); a('s_cmp_lt_u32 s%d, 4'%S_DT); a('s_cselect_b32 s%d, 1, 0'%S_T1)
        a('s_cmp_eq_u32 s%d, s%d'%(S_T0,S_T1)); a('s_cselect_b32 s%d, -1.0, 1.0'%S_T0)
        a('v_mov_b32 v2, s%d'%S_T0); a('v_mov_b32 v3, s%d'%S_T0)
        for j in range(nj):
            for p in range(2): a('v_pk_fma_f32 %s, %s, %s, %s'%(vr(PP+4*j+2*p,2),vr(QQ+4*j+2*p,2),vr(2,2),vr(PP+4*j+2*p,2)))
        if h==0:
            a('s_cmp_eq_u32 s%d, 0'%S_DT); a('s_cbranch_scc0 K3_noz')
            a('v_cmp_gt_u32 vcc, 16, v0'); a('v_mov_b32 v4, 0'); a('s_nop 0'); a('v_cndmask_b32 v%d, v%d, v4, vcc'%(PP,PP))
            a.lab('K3_noz')
        a('s_cmp_lt_u32 s%d, 4'%S_DT); a('s_cbranch_scc0 %s_epm'%nm)
        for role in ('dir','mir'):
            if role=='mir': a.lab(nm+'_epm')
            for j in range(nj):
                c=ACC+4*j
                for r in range(4):
                    y=PP+4*j+(r if role=='dir' else 3-r)
                    a('v_add_f32 v%d, v%d, v%d'%(c+r,c+r,y))
                for p in range(2):
                    x=XX+2*j+p
                    a('v_lshlrev_b32 v%d, 16, v%d'%(4,x)); a('v_and_b32 v%d, 0xffff0000, v%d'%(5,x))
                    a('v_pk_add_f32 %s, %s, %s'%(vr(c+2*p,2),vr(c+2*p,2),vr(4,2)))
                o=12+2*(j&1)
                a('v_cvt_pk_bf16_f32 v%d, v%d, v%d'%(o,c,c+1)); a('v_cvt_pk_bf16_f32 v%d, v%d, v%d'%(o+1,c+2,c+3))
                a('buffer_store_dwordx2 %s, v10, s[%d:%d], 0 offen offset:%d%s'%(vr(o,2),SRD_O,SRD_O+3,j*32,{0:'',1:' sc1',2:' nt',3:' sc0 sc1'}[EXP.get('outst',0)]))
            a('s_branch K3_end')
    a.lab('K3_prod')
    HO=2; WO=[3,4]
    if EXP.get('same'): a('s_mov_b32 s%d, 0'%S_TB); a('s_mov_b32 s%d, 0'%S_DT)
    a('s_sub_u32 s%d, s%d, 8'%(S_PW,S_WAVE))
    a('s_and_b32 s%d, s%d, 3'%(S_T1,S_PW)); a('s_lshr_b32 s%d, s%d, 2'%(S_T2,S_PW))
    a('s_lshl_b32 s%d, s%d, 2'%(S_T0,S_TB)); a('s_add_u32 s%d, s%d, s%d'%(S_T0,S_T0,S_T1)); a('s_mul_i32 s%d, s%d, 27648'%(S_KX,S_T0))
    a('s_mul_i32 s%d, s%d, %d'%(S_T0,S_T2,H_VER)); a('s_add_u32 s%d, s%d, s%d'%(S_KX,S_KX,S_T0))
    a('s_mul_i32 s%d, s%d, 3072'%(S_T1,S_T1)); a('s_mul_i32 s%d, s%d, 12288'%(S_T2,S_T2)); a('s_add_u32 s%d, s%d, s%d'%(S_PAR,S_T1,S_T2))
    a('v_lshlrev_b32 v%d, 4, v0'%HO)
    for i in range(2):
        a('s_lshl_b32 s%d, s%d, 6'%(S_T0,S_PW)); a('s_add_u32 s%d, s%d, %d'%(S_T0,S_T0,512*i)); a('v_add_u32 v20, s%d, v0'%S_T0)
        a('v_mul_u32_u24 v21, 6554, v20'); a('v_lshrrev_b32 v21, 16, v21')
        a('v_mul_u32_u24 v22, 10, v21'); a('v_sub_u32 v22, v20, v22'); a('v_mul_u32_u24 v21, 1280, v21'); a('v_lshl_add_u32 v%d, v22, 4, v21'%WO[i])
    PO=[6,7,8]; XO=[9,10]
    a('s_mul_i32 s%d, s%d, 80'%(S_T0,S_DT)); a('s_sub_u32 s%d, s%d, 1'%(S_T1,S_T0)); a('s_sub_u32 s%d, 560, s%d'%(S_T2,S_T0))
    a('s_cmp_lt_u32 s%d, 4'%S_DT); a('s_cselect_b32 s%d, s%d, s%d'%(S_T0,S_T1,S_T2)); a('s_lshl_b32 s%d, s%d, 2'%(S_T0,S_T0)); a('s_add_u32 s%d, s%d, 64'%(S_SO2,S_T0))
    a('s_lshl_b32 s%d, s%d, 6'%(S_T3,S_TB))
    for i in range(3):
        a('s_lshl_b32 s%d, s%d, 6'%(S_T0,S_PW)); a('s_add_u32 s%d, s%d, %d'%(S_T0,S_T0,512*i)); a('v_add_u32 v20, s%d, v0'%S_T0)
        a('v_mul_u32_u24 v21, 3277, v20'); a('v_lshrrev_b32 v21, 16, v21')
        a('v_mul_u32_u24 v22, 20, v21'); a('v_sub_u32 v22, v20, v22')
        a('v_add_u32 v21, s%d, v21'%S_T3)
        a('s_cmp_lt_u32 s%d, 16'%S_TB); l=a.newlab('K3p_m'); a('s_cbranch_scc1 %s'%l); a('v_sub_u32 v21, 2048, v21'); a.lab(l)
        a('v_mul_u32_u24 v21, 1280, v21'); a('v_lshl_add_u32 v21, v22, 4, v21'); a('v_add_u32 v%d, s%d, v21'%(PO[i],S_SO2))
    a('s_cmp_lt_u32 s%d, 4'%S_PW); l=a.newlab('K3p_d'); a('s_cbranch_scc1 %s'%l); a('v_mov_b32 v%d, 0x7fffff00'%PO[2]); a.lab(l)
    a('s_sub_u32 s%d, s%d, 4'%(S_T0,S_PW)); a('s_lshl_b32 s%d, s%d, 1'%(S_T0,S_T0)); a('s_add_u32 s%d, s%d, 8'%(S_T1,S_PW))
    a('s_cmp_lt_u32 s%d, 4'%S_PW); a('s_cselect_b32 s%d, s%d, s%d'%(S_G,S_T1,S_T0))
    for i in range(2):
        a('s_add_u32 s%d, s%d, %d'%(S_T0,S_G,i)); a('s_lshl_b32 s%d, s%d, 6'%(S_T0,S_T0)); a('v_add_u32 v20, s%d, v0'%S_T0)
        a('v_mul_u32_u24 v21, 6554, v20'); a('v_lshrrev_b32 v21, 16, v21'); a('v_mul_u32_u24 v22, 10, v21'); a('v_sub_u32 v22, v20, v22')
        a('v_add_u32 v21, s%d, v21'%S_T3); a('v_mul_u32_u24 v21, 1280, v21'); a('v_lshl_add_u32 v21, v22, 4, v21')
        a('s_mul_i32 s%d, s%d, 160'%(S_T0,S_DT)); a('v_add_u32 v%d, s%d, v21'%(XO[i],S_T0))
    a('s_mov_b32 s%d, 0'%S_SLI)
    if EXP.get('norot') or EXP.get('norot3'): a('s_mov_b32 s%d, 0'%S_KW); a('s_mov_b32 s%d, 0'%S_HALF)
    else:
        a('s_mov_b32 s%d, s%d'%(S_HALF,S_XCD)); a('s_mul_i32 s%d, s%d, %d'%(S_KW,S_XCD,96*1280)); a('s_mul_i32 s%d, s%d, 3072'%(S_T2,S_XCD)); a('s_add_u32 s%d, s%d, s%d'%(S_KX,S_KX,S_T2))
    a('s_mul_i32 s%d, s%d, 160'%(S_T2,S_DT)); a('s_sub_u32 s%d, %d, s%d'%(S_T3,864*1280,S_T2))
    a('s_waitcnt lgkmcnt(0)')
    add64(a,S_T0,S_WS,WS_H); srd(a,SRD_A,S_T0,S_T0+1,2*H_VER)
    add64(a,S_WOUT,S_WOUT,'s%d'%S_T2); srd(a,SRD_B,S_WOUT,S_WOUT+1,'s%d'%S_T3)
    srd(a,SRD_C,S_X,S_X+1,2048*1280)
    add64(a,S_T0,S_WS,WS_PQ-64); srd(a,SRD_D,S_T0,S_T0+1,2*PQ_MAT+64)
    def issue():
        a('s_add_u32 m0, s%d, s%d'%(S_SLI,S_PAR)); a('s_lshl_b32 s%d, s%d, 10'%(S_T,S_PW))
        for k in range(3): a('buffer_load_dwordx4 v%d, s[%d:%d], s%d offen offset:%d lds'%(HO,SRD_A,SRD_A+3,S_KX,k*1024))
        a('s_add_u32 s%d, s%d, s%d'%(S_T,S_T,S_SLI))
        lab=a.newlab('K3p_s')
        for i in range(2):
            if i==1: a('s_cmp_lt_u32 s%d, 7'%S_PW); a('s_cbranch_scc0 %s'%lab)
            a('s_add_u32 m0, s%d, %d'%(S_T,24576+i*8192)); a('s_nop 0')
            a(ld('buffer_load_dwordx4 v%d, s[%d:%d], s%d offen lds'%(WO[i],SRD_B,SRD_B+3,S_KW)))
        a.lab(lab)
        slot_advance(a,S_SLI,SL3); a('s_add_u32 s%d, s%d, 3072'%(S_KX,S_KX)); a('s_add_u32 s%d, s%d, %d'%(S_KW,S_KW,96*1280))
        a('s_add_u32 s%d, s%d, 1'%(S_HALF,S_HALF)); a('s_cmp_eq_u32 s%d, 9'%S_HALF); lw=a.newlab('K3p_w'); a('s_cbranch_scc0 %s'%lw)
        a('s_mov_b32 s%d, 0'%S_HALF); a('s_mov_b32 s%d, 0'%S_KW); a('s_sub_u32 s%d, s%d, %d'%(S_KX,S_KX,9*3072)); a.lab(lw)
    n=NK3; c=4
    if EXP.get('pprio'): a('s_setprio %d'%EXP['pprio'])
    if g2.FUSED[0] and EXP.get('k3pf'):
        l=a.newlab('K3p_pf'); a('s_cmp_ge_u32 s%d, 1'%S_PW); a('s_cbranch_scc0 %s'%l); a('s_cmp_lt_u32 s%d, 6'%S_PW); a('s_cbranch_scc0 %s'%l)
        a('s_mul_i32 s%d, s%d, 270'%(S_T0,S_J)); a('s_sub_u32 s%d, s%d, 1'%(S_T1,S_PW)); a('s_mul_i32 s%d, s%d, 54'%(S_T1,S_T1)); a('s_add_u32 s%d, s%d, s%d'%(S_T0,S_T0,S_T1)); a('s_lshl_b32 s%d, s%d, 7'%(S_T0,S_T0))
        a('s_load_dwordx2 s[86:87], s[0:1], 72'); a('v_lshlrev_b32 v30, 7, v0'); a('s_waitcnt lgkmcnt(0)')
        srd(a,SRD_O,86,87,864*1280)
        a('s_mov_b32 exec_hi, 0x3fffff'); a('buffer_load_dword v29, v30, s[%d:%d], s%d offen'%(SRD_O,SRD_O+3,S_T0)); a('s_mov_b32 exec_hi, -1')
        a.lab(l)
    dep_barrier(a,'K3p',3,S_WS,poller=True)
    gc.stamp(a,1)
    P=EXP.get('pro3',EXP.get('pro',2))
    for _ in range(P): issue()
    gc.stamp(a,2)
    a('s_waitcnt vmcnt(%d)'%((P-1)*c)); gc.stamp(a,3); a('s_barrier')
    for _ in range(4-P): issue()
    a('s_mov_b32 s%d, 1'%S_I)
    a.lab('K3p_loop')
    a('s_waitcnt vmcnt(%d)'%(2*c)); a('s_barrier'); issue()
    a('s_add_u32 s%d, s%d, 1'%(S_I,S_I)); a('s_cmp_lt_u32 s%d, %d'%(S_I,n-3)); a('s_cbranch_scc1 K3p_loop')
    a('s_waitcnt vmcnt(%d)'%(2*c)); a('s_barrier')
    a('s_lshl_b32 s%d, s%d, 10'%(S_T,S_PW))
    for i in range(2):
        a('s_add_u32 m0, s%d, %d'%(S_T,AREA_P+i*8192)); a('s_nop 0'); a('buffer_load_dwordx4 v%d, s[%d:%d], 0 offen lds'%(PO[i],SRD_D,SRD_D+3))
    l4=a.newlab('K3p_t4'); ld_=a.newlab('K3p_td')
    a('s_cmp_lt_u32 s%d, 4'%S_PW); a('s_cbranch_scc0 %s'%l4)
    a('s_add_u32 m0, s%d, %d'%(S_T,AREA_P+2*8192)); a('s_nop 0'); a('buffer_load_dwordx4 v%d, s[%d:%d], 0 offen lds'%(PO[2],SRD_D,SRD_D+3))
    a('s_lshl_b32 s%d, s%d, 10'%(S_T0,S_G)); a('s_add_u32 s%d, s%d, %d'%(S_T0,S_T0,AREA_X)); a('s_cmp_lt_u32 s%d, 2'%S_PW); a('s_cselect_b32 s%d, s%d, %d'%(S_T0,S_T0,AREA_DUM))
    lq=a.newlab('K3p_tx'); a('s_cbranch_scc1 %s'%lq); a('v_mov_b32 v%d, 0x7fffff00'%XO[0]); a.lab(lq)
    a('s_mov_b32 m0, s%d'%S_T0); a('s_nop 0'); a('buffer_load_dwordx4 v%d, s[%d:%d], 0 offen lds'%(XO[0],SRD_C,SRD_C+3)); a('s_branch %s'%ld_)
    a.lab(l4)
    a('s_lshl_b32 s%d, s%d, 10'%(S_T0,S_G))
    for i in range(2):
        a('s_add_u32 m0, s%d, %d'%(S_T0,AREA_X+i*1024)); a('s_nop 0'); a('buffer_load_dwordx4 v%d, s[%d:%d], 0 offen lds'%(XO[i],SRD_C,SRD_C+3))
    a.lab(ld_)
    a('s_waitcnt vmcnt(%d)'%(c+4)); a('s_barrier')
    a('s_mov_b32 s%d, %d'%(S_SO,PQ_MAT))
    for i in range(3):
        a('s_add_u32 m0, s%d, %d'%(S_T,AREA_Q+i*8192)); a('s_nop 0'); a('buffer_load_dwordx4 v%d, s[%d:%d], s%d offen lds'%(PO[i],SRD_D,SRD_D+3,S_SO))
    a('s_waitcnt vmcnt(7)'); a('s_barrier')
    gc.stamp(a,4)
    a('s_waitcnt vmcnt(0)'); a('s_barrier')
    kernel_tail(a,'K3',2,S_WS)
```

```python
from g2_common import *
import g2_common as g2
SLZ=34816; SLA=36864
TB=NS*SLA
T_R=TB; T_NMR=TB+512; T_CS0=TB+1024; T_CS1=TB+1664; T_W2=TB+2304
K1_LDS=TB+2304+2048
NK1=10
S_X=4; S_WS=6; S_WDRE=8; S_WDIM=10; S_WIN=12; S_DBG=14
SRD_X=16; SRD_W=20; SRD_O=24; SRD_O2=28; SRD_G=56; SRD_D=60
POLL_BOUND=4000

def stats_final(a,SUM,SQ,t,n,rout,nmrout):
    for k in range(1,len(SUM)): a('v_add_f32 v%d, v%d, v%d'%(SUM[0],SUM[0],SUM[k])); a('v_add_f32 v%d, v%d, v%d'%(SQ[0],SQ[0],SQ[k]))
    a('s_nop 1')
    a('v_add_f32_dpp v%d, v%d, v%d quad_perm:[1,0,3,2] row_mask:0xf bank_mask:0xf'%(t,SUM[0],SUM[0]))
    a('v_add_f32_dpp v%d, v%d, v%d quad_perm:[1,0,3,2] row_mask:0xf bank_mask:0xf'%(t+1,SQ[0],SQ[0]))
    a('v_mul_f32 v%d, 0x%x, v%d'%(t,f2u(1.0/n),t)); a('v_mul_f32 v%d, 0x%x, v%d'%(t+1,f2u(1.0/n),t+1))
    a('v_fma_f32 v%d, -v%d, v%d, v%d'%(t+1,t,t,t+1)); a('v_max_f32 v%d, 0, v%d'%(t+1,t+1)); a('v_add_f32 v%d, 0x%x, v%d'%(t+1,f2u(1e-5),t+1))
    a('v_rsq_f32 v%d, v%d'%(rout,t+1)); a('s_nop 0')
    a('v_mul_f32 v%d, v%d, v%d'%(nmrout,t,rout)); a('v_sub_f32 v%d, 0, v%d'%(nmrout,nmrout))

S_WSP=62
def ln1_row(a):
    a('s_lshl_b32 s%d, s2, 3'%S_T0); a('s_add_u32 s%d, s%d, s%d'%(S_T0,S_T0,S_WAVE)); a('s_mul_i32 s%d, s%d, 1280'%(S_T1,S_T0))
    a('v_lshlrev_b32 v56, 4, v0'); a('v_mov_b32 v57, 0x3f803f80')
    for k in range(4): a('v_mov_b32 v%d, 0'%(68+k))
    a('s_waitcnt lgkmcnt(0)')
    add64(a,S_T2,S_X,'s%d'%S_T1); srd(a,SRD_O,S_T2,S_T2+1,1280)
    a('buffer_load_dwordx4 v[60:63], v56, s[%d:%d], 0 offen'%(SRD_O,SRD_O+3)); a('buffer_load_dwordx4 v[64:67], v56, s[%d:%d], 0 offen offset:1024'%(SRD_O,SRD_O+3))
    add64(a,S_T2,S_WS,WS_LN1); srd(a,SRD_O2,S_T2,S_T2+1,16384)
    a('s_lshl_b32 s%d, s%d, 3'%(S_SO,S_T0))
def ln1_row_finish(a):
    a('s_waitcnt vmcnt(0)')
    for k in range(8):
        a('v_dot2_f32_bf16 v%d, v%d, v%d, v%d'%(68+(k&1),60+k,60+k,68+(k&1))); a('v_dot2_f32_bf16 v%d, v%d, v57, v%d'%(70+(k&1),60+k,70+(k&1)))
    a('s_nop 3')
    a('v_add_f32 v68, v68, v69'); a('v_add_f32 v70, v70, v71'); a('s_nop 1')
    for d in ('quad_perm:[1,0,3,2]','quad_perm:[2,3,0,1]','row_half_mirror','row_mirror'):
        a('v_add_f32_dpp v68, v68, v68 %s row_mask:0xf bank_mask:0xf'%d); a('v_add_f32_dpp v70, v70, v70 %s row_mask:0xf bank_mask:0xf'%d); a('s_nop 0')
    for sw in ('v_permlane16_swap_b32','v_permlane32_swap_b32'):
        a('v_mov_b32 v69, v68'); a('v_mov_b32 v71, v70'); a('s_nop 1')
        a('%s v68, v69'%sw); a('%s v70, v71'%sw); a('s_nop 1')
        a('v_add_f32 v68, v68, v69'); a('v_add_f32 v70, v70, v71')
    a('v_mul_f32 v70, 0x%x, v70'%f2u(1.0/640)); a('v_mul_f32 v68, 0x%x, v68'%f2u(1.0/640))
    a('v_fma_f32 v68, -v70, v70, v68'); a('v_max_f32 v68, 0, v68'); a('v_add_f32 v68, 0x%x, v68'%f2u(1e-5))
    a('v_rsq_f32 v72, v68'); a('s_nop 0'); a('v_mul_f32 v73, v70, v72'); a('v_sub_f32 v73, 0, v73')
    a('v_mov_b32 v74, 0'); a('v_cmp_eq_u32 vcc, 0, v0'); a('s_and_saveexec_b64 s[%d:%d], vcc'%(S_EX,S_EX+1))
    a('buffer_store_dwordx2 v[72:73], v74, s[%d:%d], s%d offen sc1'%(SRD_O2,SRD_O2+3,S_SO))
    a('s_mov_b64 exec, s[%d:%d]'%(S_EX,S_EX+1))
def ln1_hook(a):
    return lambda: a('s_waitcnt vmcnt(0)')

def worker(a,name,SL,isZ):
    n=NK1
    CA=14; VT=15; CF=[48,68]; CACC=88; ONES=108
    srd(a,SRD_D,S_DBG,S_DBG+1,256)
    add64(a,S_T2,S_WS,WS_GR); srd(a,SRD_G,S_T2,S_T2+1,16*12288)
    if isZ:
        a('s_cmp_eq_u32 s%d, 0'%S_PW); a('s_cbranch_scc0 %s_nojob'%name)
        a('s_mul_i32 s%d, s%d, 12288'%(S_SO,S_RB)); a('s_lshl_b32 s%d, s%d, 1'%(S_T0,S_CT)); a('s_add_u32 s%d, s%d, s%d'%(S_T0,S_T0,S_PAR)); a('s_lshl_b32 s%d, s%d, 10'%(S_T0,S_T0))
        a('s_add_u32 s%d, s%d, s%d'%(S_SO,S_SO,S_T0))
        for k in range(4): a('v_mov_b32 v%d, -1'%(8+k))
        a('v_lshlrev_b32 v3, 4, v0')
        a('buffer_store_dwordx4 v[8:11], v3, s[%d:%d], s%d offen sc1'%(SRD_G,SRD_G+3,S_SO))
        if not EXP.get('oldpoll'):
            add64(a,S_T2,S_WS,WS_FG); srd(a,SRD_O2,S_T2,S_T2+1,4096)
            a('s_lshl_b32 s%d, s%d, 8'%(S_T0,S_RB)); a('s_lshl_b32 s%d, s%d, 1'%(S_T1,S_CT)); a('s_add_u32 s%d, s%d, s%d'%(S_T1,S_T1,S_PAR)); a('s_lshl_b32 s%d, s%d, 2'%(S_T1,S_T1)); a('s_add_u32 s%d, s%d, s%d'%(S_T0,S_T0,S_T1))
            a('v_mov_b32 v12, 0'); a('v_lshlrev_b32 v13, 6, v0'); a('s_mov_b32 exec_lo, 15'); a('s_mov_b32 exec_hi, 0')
            a('buffer_store_dword v12, v13, s[%d:%d], s%d offen sc1'%(SRD_O2,SRD_O2+3,S_T0)); a('s_mov_b64 exec, -1')
        a.lab(name+'_nojob')
    if g2.FUSED[0]:
        lf=a.newlab(name+'_cf'); a('s_cmp_eq_u32 s%d, 0'%S_PW); a('s_cbranch_scc0 %s'%lf)
        add64(a,S_T2,S_WS,WS_FL); srd(a,SRD_O,S_T2,S_T2+1,0x4000)
        a('s_lshl_b32 s%d, s2, 5'%S_T0); a('v_mov_b32 v12, 0'); a('v_lshlrev_b32 v13, 13, v0'); a('s_mov_b32 exec_lo, 3'); a('s_mov_b32 exec_hi, 0')
        a('buffer_store_dword v12, v13, s[%d:%d], s%d offen sc1'%(SRD_O,SRD_O+3,S_T0)); a('s_mov_b64 exec, -1')
        a.lab(lf)
    a('s_load_dwordx2 s[86:87], s[0:1], 56'); a('s_load_dwordx4 s[96:99], s[0:1], 8'); a('s_load_dwordx2 s[88:89], s[0:1], 72')
    a('v_lshrrev_b32 v4, 4, v0'); a('v_and_b32 v5, 15, v0'); a('v_lshlrev_b32 v5, 7, v5')
    a('s_lshl_b32 s%d, s%d, 9'%(S_T0,S_G)); a('s_lshl_b32 s%d, s%d, 4'%(S_T1,S_J)); a('s_add_u32 s%d, s%d, s%d'%(S_T0,S_T0,S_T1)); a('v_add_u32 v6, s%d, v4'%S_T0)
    a('v_lshlrev_b32 v6, 12, v6'); a('v_add_u32 v6, v6, v5'); a('s_lshl_b32 s%d, s%d, 11'%(S_T0,S_HALF)); a('v_add_u32 v6, s%d, v6'%S_T0)
    a('s_mul_i32 s%d, s%d, 288'%(S_T0,S_G)); a('s_mul_i32 s%d, s%d, 9'%(S_T1,S_J)); a('s_add_u32 s%d, s%d, s%d'%(S_T0,S_T0,S_T1)); a('v_add_u32 v7, s%d, v4'%S_T0)
    a('v_lshlrev_b32 v7, 12, v7'); a('v_add_u32 v7, v7, v5')
    a('v_and_b32 v21, 15, v0'); a('v_lshlrev_b32 v21, 4, v21'); a('v_mov_b32 v20, 0')
    for r in (16,17,18,19): a('v_mov_b32 v%d, 0'%r)
    a('s_waitcnt lgkmcnt(0)')
    srd(a,SRD_W,86,87,2048*4096)
    a('s_cmp_eq_u32 s%d, 0'%S_HALF); a('s_cselect_b32 s%d, s96, s98'%S_T2); a('s_cselect_b32 s%d, s97, s99'%S_T3); srd(a,SRD_O2,S_T2,S_T3,2048*4096)
    if isZ:
        a('v_and_b32 v120, 15, v0'); a('v_lshrrev_b32 v121, 4, v0'); a('v_lshrrev_b32 v122, 2, v120'); a('v_lshl_add_u32 v122, v121, 2, v122')
        a('v_mul_u32_u24 v122, 288, v122'); a('v_and_b32 v120, 3, v120'); a('v_lshl_add_u32 v122, v120, 3, v122')
        a('s_and_b32 s%d, s%d, 1'%(S_T0,S_PW)); a('s_mul_i32 s%d, s%d, 9216'%(S_T0,S_T0)); a('s_cmp_lt_u32 s%d, 2'%S_PW); a('s_cselect_b32 s%d, 160, 0'%S_T1)
        a('s_add_u32 s%d, s%d, s%d'%(S_T0,S_T0,S_T1)); a('s_add_u32 s%d, s%d, 16384'%(S_T0,S_T0)); a('v_add_u32 v%d, s%d, v122'%(CA,S_T0))
        for k in range(4): a('v_mov_b32 v%d, 0x3f803f80'%(ONES+k))
        for k in range(20): a('v_mov_b32 v%d, 0'%(CACC+k))
        for k in range(40): a('v_mov_b32 v%d, 0'%(CF[0]+k))
    def reads(st):
        a('v_add_u32 v%d, s%d, v%d'%(VT,S_SLC,CA))
        lab=a.newlab(name+'_c')
        for j in range(5):
            if j==4: a('s_cmp_lt_u32 s%d, 2'%S_PW); a('s_cbranch_scc1 %s'%lab)
            for b in range(2): a('ds_read_b64_tr_b16 %s, v%d offset:%d'%(vr(CF[st]+4*j+2*b,2),VT,b*4608+j*32))
        a.lab(lab)
    def compute(st):
        for j in range(5):
            a('v_mfma_f32_16x16x32_bf16 %s, %s, %s, %s'%(vr(CACC+4*j,4),vr(ONES,4),vr(CF[st]+4*j,4),vr(CACC+4*j,4)))
    def xpf(k,pol):
        if k<4:
            a('s_mov_b32 s%d, %d'%(S_SO,k*4*4096)); a('buffer_load_dword v10, v6, s[%d:%d], s%d offen%s'%(SRD_W,SRD_W+3,S_SO,pol))
        else:
            k-=4
            a('s_mov_b32 s%d, %d'%(S_SO,k*4*4096))
            if k==2: a('s_mov_b32 exec_hi, 0'); a('s_mov_b32 exec_lo, 0xffff')
            a('buffer_load_dword v10, v7, s[%d:%d], s%d offen%s'%(SRD_O2,SRD_O2+3,S_SO,pol))
            if k==2: a('s_mov_b64 exec, -1')
    def wout_pf():
        srd(a,SRD_O,88,89,864*1280)
        a('s_mul_i32 s%d, s2, %d'%(S_SO,34*128)); a('v_lshlrev_b32 v11, 7, v0'); a('s_mov_b32 exec_hi, 3')
        a('buffer_load_dword v10, v11, s[%d:%d], s%d offen'%(SRD_O,SRD_O+3,S_SO)); a('s_mov_b32 exec_hi, -1')
    TBL=16
    def side(i):
        pol=' nt' if not EXP.get('xpfdef') else ''
        if not (EXP.get('noxpf') or EXP.get('noxpf1')) and EXP.get('pfmid') and EXP.get('pf0',2)<=i<=EXP.get('pf0',2)+6:
            l=a.newlab(name+'_p'); a('s_cmp_eq_u32 s%d, 1'%S_PW); a('s_cbranch_scc0 %s'%l)
            kk=i-EXP.get('pf0',2)
            if not ((EXP.get('pfwonly') or EXP.get('pfsplit')==1) and kk>=4) and not (EXP.get('pfsplit')==2 and kk<4): xpf(kk,pol)
            a.lab(l)
        if EXP.get('wo1') and i==EXP.get('wo1'):
            l=a.newlab(name+'_wo'); a('s_cmp_eq_u32 s%d, 2'%S_PW); a('s_cbranch_scc0 %s'%l); wout_pf(); a.lab(l)
        if i==2:
            l=a.newlab(name+'_a'); a('s_cmp_eq_u32 s%d, 0'%S_PW); a('s_cbranch_scc0 %s'%l)
            a('s_waitcnt vmcnt(0)')
            a('v_mov_b32 v4, 1'); a('s_and_b32 s%d, s2, 15'%S_T0); a('s_lshl_b32 s%d, s%d, 4'%(S_T0,S_T0)); a('v_mov_b32 v3, s%d'%S_T0)
            a('v_cmp_eq_u32 vcc, 0, v0'); a('s_and_saveexec_b64 s[%d:%d], vcc'%(S_EX,S_EX+1))
            a('buffer_atomic_add v4, v3, s[%d:%d], 0 offen sc1'%(SRD_D,SRD_D+3))
            a('s_mov_b64 exec, s[%d:%d]'%(S_EX,S_EX+1))
            a.lab(l)
        if i==5:
            l=a.newlab(name+'_q'); a('s_cmp_eq_u32 s%d, 0'%S_PW); a('s_cbranch_scc0 %s'%l)
            a('buffer_load_dword v20, v21, s[%d:%d], 0 offen sc1'%(SRD_D,SRD_D+3))
            a.lab(l)
        if i==7:
            l=a.newlab(name+'_r'); a('s_cmp_eq_u32 s%d, 0'%S_PW); a('s_cbranch_scc0 %s'%l)
            a('s_mov_b32 s%d, 0'%S_SO2)
            lp=a.newlab(name+'_pl'); ok=a.newlab(name+'_ok')
            a.lab(lp)
            a('s_waitcnt vmcnt(0)'); a('v_cmp_gt_u32 vcc, 16, v20'); a('s_nop 1'); a('s_cmp_eq_u64 vcc, 0'); a('s_cbranch_scc1 %s'%ok)
            a('buffer_load_dword v20, v21, s[%d:%d], 0 offen sc1'%(SRD_D,SRD_D+3))
            a('s_add_u32 s%d, s%d, 1'%(S_SO2,S_SO2)); a('s_cmp_lt_u32 s%d, %d'%(S_SO2,POLL_BOUND)); a('s_cbranch_scc1 %s'%lp)
            a.lab(ok)
            add64(a,S_T2,S_WS,WS_LN1); srd(a,SRD_O,S_T2,S_T2+1,16384)
            if isZ:
                a('s_lshl_b32 s%d, s%d, 7'%(S_T0,S_RB)); a('v_add_u32 v22, s%d, v0'%S_T0); a('v_add_u32 v23, 64, v22')
            else:
                a('s_lshl_b32 s%d, s%d, 6'%(S_T0,S_RB)); a('v_add_u32 v22, s%d, v0'%S_T0); a('v_sub_u32 v23, 2048, v22')
                a('v_cmp_eq_u32 vcc, 2048, v23'); a('v_mov_b32 v24, 1024'); a('s_nop 0'); a('v_cndmask_b32 v23, v23, v24, vcc')
            a('v_lshlrev_b32 v22, 3, v22'); a('v_lshlrev_b32 v23, 3, v23')
            a('buffer_load_dwordx2 v[16:17], v22, s[%d:%d], 0 offen sc1'%(SRD_O,SRD_O+3)); a('buffer_load_dwordx2 v[18:19], v23, s[%d:%d], 0 offen sc1'%(SRD_O,SRD_O+3))
            a.lab(l)
    a('s_mov_b32 s%d, 0'%S_SLC)
    for i in range(n):
        a('s_barrier')
        if isZ: reads(i&1)
        side(i)
        if isZ:
            compute((i&1)^1); a('s_waitcnt lgkmcnt(0)'); slot_advance(a,S_SLC,SL)
    if isZ: compute((n-1)&1)
    if not (EXP.get('noxpf') or EXP.get('noxpf1') or EXP.get('pflate') or (EXP.get('pfmid') and not EXP.get('pfsplit'))):
        l=a.newlab(name+'_pe'); a('s_cmp_eq_u32 s%d, 1'%S_PW); a('s_cbranch_scc0 %s'%l)
        ks=range(4 if EXP.get('pfwonly') else 7)
        if EXP.get('pfsplit')==1: ks=range(4,7)
        if EXP.get('pfsplit')==2: ks=range(0,4)
        for k in ks: xpf(k,' nt' if not EXP.get('xpfdef') else '')
        a.lab(l)
    gc.stamp(a,3)
    l=a.newlab(name+'_w'); a('s_cmp_eq_u32 s%d, 0'%S_PW); a('s_cbranch_scc0 %s'%l)
    a('s_waitcnt vmcnt(0)'); a('v_lshlrev_b32 v26, 2, v0'); a('v_add_u32 v26, %d, v26'%T_R)
    a('ds_write_b32 v26, v16'); a('ds_write_b32 v26, v17 offset:512'); a('ds_write_b32 v26, v18 offset:256'); a('ds_write_b32 v26, v19 offset:768')
    a.lab(l)
    if isZ:
        a('s_and_b32 s%d, s%d, 1'%(S_T0,S_PW)); a('s_mul_i32 s%d, s%d, 640'%(S_T0,S_T0)); a('s_cmp_lt_u32 s%d, 2'%S_PW); a('s_cselect_b32 s%d, 320, 0'%S_T1)
        a('s_add_u32 s%d, s%d, s%d'%(S_T0,S_T0,S_T1)); a('v_and_b32 v26, 15, v0'); a('v_lshlrev_b32 v26, 2, v26'); a('v_add_u32 v26, s%d, v26'%S_T0); a('v_add_u32 v26, %d, v26'%T_CS0)
        a('s_nop 7')
        lab=a.newlab(name+'_f')
        for j in range(5):
            if j==4: a('s_cmp_lt_u32 s%d, 2'%S_PW); a('s_cbranch_scc1 %s'%lab)
            a('ds_write_b32 v26, v%d offset:%d'%(CACC+4*j,j*64))
        a.lab(lab)

    def late():
        if EXP.get('pflate') and not (EXP.get('noxpf') or EXP.get('noxpf1')):
            l=a.newlab(name+'_pl8'); a('s_cmp_eq_u32 s%d, 1'%S_PW); a('s_cbranch_scc0 %s'%l)
            for k in range(7): xpf(k,' nt' if not EXP.get('xpfdef') else '')
            a.lab(l)
    return late

def worker2(a):
    import g3_z as z
    name='Z2w'; n=NK1; SL=z.SL2; NSz=z.NS2
    CA=14; VT=15; CF=[48,60]; CACC=72; ONES=84
    srd(a,SRD_D,S_DBG,S_DBG+1,256)
    add64(a,S_T2,S_WS,WS_GR); srd(a,SRD_G,S_T2,S_T2+1,16*12288)
    a('s_cmp_eq_u32 s%d, 0'%S_PW); a('s_cbranch_scc0 %s_nojob'%name)
    a('s_mul_i32 s%d, s%d, 12288'%(S_SO,S_RB)); a('s_lshl_b32 s%d, s%d, 1'%(S_T0,S_CT)); a('s_add_u32 s%d, s%d, s%d'%(S_T0,S_T0,S_PAR)); a('s_lshl_b32 s%d, s%d, 10'%(S_T0,S_T0))
    a('s_add_u32 s%d, s%d, s%d'%(S_SO,S_SO,S_T0))
    for k in range(4): a('v_mov_b32 v%d, -1'%(8+k))
    a('v_lshlrev_b32 v3, 4, v0')
    a('buffer_store_dwordx4 v[8:11], v3, s[%d:%d], s%d offen sc1'%(SRD_G,SRD_G+3,S_SO))
    if g2.FUSED[0]:
        add64(a,S_T2,S_WS,WS_FL); srd(a,SRD_O,S_T2,S_T2+1,0x4000)
        a('s_lshl_b32 s%d, s2, 5'%S_T0); a('v_mov_b32 v12, 0'); a('v_lshlrev_b32 v13, 13, v0'); a('s_mov_b32 exec_lo, 3'); a('s_mov_b32 exec_hi, 0')
        a('buffer_store_dword v12, v13, s[%d:%d], s%d offen sc1'%(SRD_O,SRD_O+3,S_T0)); a('s_mov_b64 exec, -1')
    a.lab(name+'_nojob')
    a('s_load_dwordx2 s[86:87], s[0:1], 56'); a('s_load_dwordx4 s[96:99], s[0:1], 8'); a('s_load_dwordx2 s[88:89], s[0:1], 72')
    a('v_lshrrev_b32 v4, 4, v0'); a('v_and_b32 v5, 15, v0'); a('v_lshlrev_b32 v5, 7, v5')
    a('s_lshl_b32 s%d, s%d, 9'%(S_T0,S_G)); a('s_lshl_b32 s%d, s%d, 4'%(S_T1,S_J)); a('s_add_u32 s%d, s%d, s%d'%(S_T0,S_T0,S_T1)); a('v_add_u32 v6, s%d, v4'%S_T0)
    a('v_lshlrev_b32 v6, 12, v6'); a('v_add_u32 v6, v6, v5'); a('s_lshl_b32 s%d, s%d, 11'%(S_T0,S_HALF)); a('v_add_u32 v6, s%d, v6'%S_T0)
    a('s_mul_i32 s%d, s%d, 288'%(S_T0,S_G)); a('s_mul_i32 s%d, s%d, 9'%(S_T1,S_J)); a('s_add_u32 s%d, s%d, s%d'%(S_T0,S_T0,S_T1)); a('v_add_u32 v7, s%d, v4'%S_T0)
    a('v_lshlrev_b32 v7, 12, v7'); a('v_add_u32 v7, v7, v5')
    a('v_and_b32 v21, 15, v0'); a('v_lshlrev_b32 v21, 4, v21'); a('v_mov_b32 v20, 0')
    for r in (16,17,18,19): a('v_mov_b32 v%d, 0'%r)
    a('s_waitcnt lgkmcnt(0)')
    srd(a,SRD_W,86,87,2048*4096)
    a('s_cmp_eq_u32 s%d, 0'%S_HALF); a('s_cselect_b32 s%d, s96, s98'%S_T2); a('s_cselect_b32 s%d, s97, s99'%S_T3); srd(a,SRD_O2,S_T2,S_T3,2048*4096)
    a('v_and_b32 v120, 15, v0'); a('v_lshrrev_b32 v121, 4, v0'); a('v_lshrrev_b32 v122, 2, v120'); a('v_lshl_add_u32 v122, v121, 2, v122')
    a('v_mul_u32_u24 v122, 160, v122'); a('v_and_b32 v120, 3, v120'); a('v_lshl_add_u32 v122, v120, 3, v122')
    a('s_and_b32 s%d, s%d, 1'%(S_T0,S_PW)); a('s_mul_i32 s%d, s%d, 5120'%(S_T0,S_T0)); a('s_cmp_lt_u32 s%d, 2'%S_PW); a('s_cselect_b32 s%d, 0, 96'%S_T1)
    a('s_add_u32 s%d, s%d, s%d'%(S_T0,S_T0,S_T1)); a('s_add_u32 s%d, s%d, 16384'%(S_T0,S_T0)); a('v_add_u32 v%d, s%d, v122'%(CA,S_T0))
    for k in range(4): a('v_mov_b32 v%d, 0x3f803f80'%(ONES+k))
    for k in range(12): a('v_mov_b32 v%d, 0'%(CACC+k))
    for k in range(24): a('v_mov_b32 v%d, 0'%(CF[0]+k))
    def reads(st):
        a('v_add_u32 v%d, s%d, v%d'%(VT,S_SLC,CA))
        lab=a.newlab(name+'_c')
        for j in range(3):
            if j==2: a('s_cmp_lt_u32 s%d, 2'%S_PW); a('s_cbranch_scc0 %s'%lab)
            for b in range(2): a('ds_read_b64_tr_b16 %s, v%d offset:%d'%(vr(CF[st]+4*j+2*b,2),VT,b*2560+j*32))
        a.lab(lab)
    def compute(st):
        for j in range(3): a('v_mfma_f32_16x16x32_bf16 %s, %s, %s, %s'%(vr(CACC+4*j,4),vr(ONES,4),vr(CF[st]+4*j,4),vr(CACC+4*j,4)))
    def cs_write(T):
        a('s_and_b32 s%d, s%d, 1'%(S_T0,S_PW)); a('s_mul_i32 s%d, s%d, 320'%(S_T0,S_T0)); a('s_cmp_lt_u32 s%d, 2'%S_PW); a('s_cselect_b32 s%d, 0, 192'%S_T1)
        a('s_add_u32 s%d, s%d, s%d'%(S_T0,S_T0,S_T1)); a('v_and_b32 v26, 15, v0'); a('v_lshlrev_b32 v26, 2, v26'); a('v_add_u32 v26, s%d, v26'%S_T0); a('v_add_u32 v26, %d, v26'%T)
        a('s_nop 7')
        lab=a.newlab(name+'_f')
        for j in range(3):
            if j==2: a('s_cmp_lt_u32 s%d, 2'%S_PW); a('s_cbranch_scc0 %s'%lab)
            a('ds_write_b32 v26, v%d offset:%d'%(CACC+4*j,j*64))
        a.lab(lab)
    def xpf(k,pol):
        if k<4:
            a('s_mov_b32 s%d, %d'%(S_SO,k*4*4096)); a('buffer_load_dword v10, v6, s[%d:%d], s%d offen%s'%(SRD_W,SRD_W+3,S_SO,pol))
        else:
            k-=4
            a('s_mov_b32 s%d, %d'%(S_SO,k*4*4096))
            if k==2: a('s_mov_b32 exec_hi, 0'); a('s_mov_b32 exec_lo, 0xffff')
            a('buffer_load_dword v10, v7, s[%d:%d], s%d offen%s'%(SRD_O2,SRD_O2+3,S_SO,pol))
            if k==2: a('s_mov_b64 exec, -1')
    def only(w,fn):
        l=a.newlab(name+'_o'); a('s_cmp_eq_u32 s%d, %d'%(S_PW,w)); a('s_cbranch_scc0 %s'%l); fn(); a.lab(l)
    pol='' if EXP.get('xpfdef') else ' nt'
    PG=88
    def side(i):
        if not EXP.get('noxpf'):
            ws0=EXP.get('z2ws',2); wp0=EXP.get('z2wp',12)
            if ws0<=i<ws0+3: only(3,lambda: xpf(4+i-ws0,pol))
            if wp0<=i<wp0+4: only(3,lambda: xpf(i-wp0,pol))
            if EXP.get('wo1') and i==EXP.get('wo1'):
                def wo():
                    srd(a,SRD_O,88,89,864*1280)
                    a('s_mul_i32 s%d, s2, %d'%(S_SO,34*128)); a('v_lshlrev_b32 v11, 7, v0'); a('s_mov_b32 exec_hi, 3')
                    a('buffer_load_dword v10, v11, s[%d:%d], s%d offen'%(SRD_O,SRD_O+3,S_SO)); a('s_mov_b32 exec_hi, -1')
                only(3,wo)
        if i==2:
            def cnt():
                a('s_waitcnt vmcnt(0)')
                a('v_mov_b32 v4, 1'); a('s_and_b32 s%d, s2, 15'%S_T0); a('s_lshl_b32 s%d, s%d, 4'%(S_T0,S_T0)); a('v_mov_b32 v3, s%d'%S_T0)
                a('v_cmp_eq_u32 vcc, 0, v0'); a('s_and_saveexec_b64 s[%d:%d], vcc'%(S_EX,S_EX+1))
                a('buffer_atomic_add v4, v3, s[%d:%d], 0 offen sc1'%(SRD_D,SRD_D+3)); a('s_mov_b64 exec, s[%d:%d]'%(S_EX,S_EX+1))
            only(0,cnt)
        if i==5: only(0,lambda: a('buffer_load_dword v20, v21, s[%d:%d], 0 offen sc1'%(SRD_D,SRD_D+3)))
        if i==7:
            def tab():
                a('s_mov_b32 s%d, 0'%S_SO2)
                lp=a.newlab(name+'_pl'); ok=a.newlab(name+'_ok')
                a.lab(lp)
                a('s_waitcnt vmcnt(0)'); a('v_cmp_gt_u32 vcc, 16, v20'); a('s_nop 1'); a('s_cmp_eq_u64 vcc, 0'); a('s_cbranch_scc1 %s'%ok)
                a('buffer_load_dword v20, v21, s[%d:%d], 0 offen sc1'%(SRD_D,SRD_D+3))
                a('s_add_u32 s%d, s%d, 1'%(S_SO2,S_SO2)); a('s_cmp_lt_u32 s%d, %d'%(S_SO2,POLL_BOUND)); a('s_cbranch_scc1 %s'%lp)
                a.lab(ok)
                add64(a,S_T2,S_WS,WS_LN1); srd(a,SRD_O,S_T2,S_T2+1,16384)
                a('s_lshl_b32 s%d, s%d, 7'%(S_T0,S_RB)); a('v_add_u32 v22, s%d, v0'%S_T0); a('v_add_u32 v23, 64, v22')
                a('v_lshlrev_b32 v22, 3, v22'); a('v_lshlrev_b32 v23, 3, v23')
                a('buffer_load_dwordx2 v[16:17], v22, s[%d:%d], 0 offen sc1'%(SRD_O,SRD_O+3)); a('buffer_load_dwordx2 v[18:19], v23, s[%d:%d], 0 offen sc1'%(SRD_O,SRD_O+3))
            only(0,tab)
        if i==10:
            def pub(r0):
                a('v_lshlrev_b32 v26, 2, v0'); a('v_add_u32 v26, %d, v26'%(z.T_PS+r0*4))
                a('ds_read_b32 v28, v26'); a('ds_read_b32 v29, v26 offset:512'); a('ds_read_b32 v30, v26 offset:1024'); a('ds_read_b32 v31, v26 offset:1536')
                a('s_mul_i32 s%d, s%d, 12288'%(S_SO,S_RB)); a('s_lshl_b32 s%d, s%d, 1'%(S_T0,S_CT)); a('s_add_u32 s%d, s%d, s%d'%(S_T0,S_T0,S_PAR)); a('s_lshl_b32 s%d, s%d, 10'%(S_T0,S_T0))
                a('s_add_u32 s%d, s%d, s%d'%(S_T0,S_T0,S_SO)); a('s_add_u32 s%d, s%d, %d'%(S_T0,S_T0,r0*8))
                a('v_lshlrev_b32 v27, 3, v0'); a('s_waitcnt lgkmcnt(0)')
                a('v_add_f32 v32, v28, v29'); a('v_add_f32 v33, v30, v31')
                a('buffer_store_dwordx2 v[32:33], v27, s[%d:%d], s%d offen sc1'%(SRD_G,SRD_G+3,S_T0))
            only(1,lambda: pub(0)); only(2,lambda: pub(64))
        def gr_issue(r0):
            a('s_mul_i32 s%d, s%d, 12288'%(S_SO,S_RB)); a('s_add_u32 s%d, s%d, %d'%(S_SO,S_SO,r0*8)); a('v_lshlrev_b32 v27, 3, v0'); a('v_add_u32 v34, 4096, v27'); a('v_add_u32 v35, 8192, v27')
            for k in range(12): a('buffer_load_dwordx2 %s, v%d, s[%d:%d], s%d offen offset:%d sc1'%(vr(PG+2*k,2),(27,34,35)[k//4],SRD_G,SRD_G+3,S_SO,(k%4)*1024))
        if i==EXP.get('z2pi',13):
            only(1,lambda: gr_issue(0)); only(2,lambda: gr_issue(64))
        if i==15:
            def fin(r0):
                lp=a.newlab(name+'_gp'); ok=a.newlab(name+'_gk')
                a('s_mov_b32 s%d, 0'%S_SO2)
                a.lab(lp)
                a('s_waitcnt vmcnt(0)')
                a('v_max3_u32 v36, v%d, v%d, v%d'%(PG,PG+1,PG+2))
                for k in range(3,24,2):
                    a('v_max3_u32 v36, v36, v%d, v%d'%(PG+k,PG+k+1) if k+1<24 else 'v_max_u32 v36, v36, v%d'%(PG+k))
                a('v_cmp_eq_u32 vcc, -1, v36'); a('s_nop 1'); a('s_cmp_eq_u64 vcc, 0'); a('s_cbranch_scc1 %s'%ok)
                gr_issue(r0)
                a('s_add_u32 s%d, s%d, 1'%(S_SO2,S_SO2)); a('s_cmp_lt_u32 s%d, %d'%(S_SO2,POLL_BOUND)); a('s_cbranch_scc1 %s'%lp)
                a('s_waitcnt vmcnt(0)')
                a.lab(ok)
                for k in range(1,12): a('v_add_f32 v%d, v%d, v%d'%(PG,PG,PG+2*k)); a('v_add_f32 v%d, v%d, v%d'%(PG+1,PG+1,PG+2*k+1))
                a('v_mul_f32 v%d, 0x%x, v%d'%(PG,f2u(1.0/864),PG)); a('v_mul_f32 v%d, 0x%x, v%d'%(PG+1,f2u(1.0/864),PG+1))
                a('v_fma_f32 v%d, -v%d, v%d, v%d'%(PG+1,PG,PG,PG+1)); a('v_max_f32 v%d, 0, v%d'%(PG+1,PG+1)); a('v_add_f32 v%d, 0x%x, v%d'%(PG+1,f2u(1e-5),PG+1))
                a('v_rsq_f32 v%d, v%d'%(PG+2,PG+1)); a('s_nop 0'); a('v_mul_f32 v%d, v%d, v%d'%(PG+3,PG,PG+2)); a('v_sub_f32 v%d, 0, v%d'%(PG+3,PG+3))
                a('v_lshlrev_b32 v26, 2, v0'); a('v_add_u32 v26, %d, v26'%(z.T_R2+r0*4))
                a('ds_write_b32 v26, v%d'%(PG+2)); a('ds_write_b32 v26, v%d offset:512'%(PG+3))
            only(1,lambda: fin(0)); only(2,lambda: fin(64))
    a('s_mov_b32 s%d, 0'%S_SLC)
    for i in range(2*n):
        if i==n:
            compute((n-1)&1); cs_write(z.T_CS1)
            def tw():
                a('s_waitcnt vmcnt(0)'); a('v_lshlrev_b32 v26, 2, v0'); a('v_add_u32 v26, %d, v26'%T_R)
                a('ds_write_b32 v26, v16'); a('ds_write_b32 v26, v17 offset:512'); a('ds_write_b32 v26, v18 offset:256'); a('ds_write_b32 v26, v19 offset:768')
            only(0,tw)
            a('s_waitcnt lgkmcnt(0)')
            for k in range(12): a('v_mov_b32 v%d, 0'%(CACC+k))
            for k in range(24): a('v_mov_b32 v%d, 0'%(CF[0]+k))
            a('s_barrier')
        a('s_barrier')
        reads(i&1)
        side(i)
        compute((i&1)^1); a('s_waitcnt lgkmcnt(0)'); slot_advance(a,S_SLC,SL,NSz)
    compute((2*n-1)&1); cs_write(z.T_CS2)
    gc.stamp(a,3)
    a('s_waitcnt lgkmcnt(0)'); a('s_barrier')

def krot(a):
    if EXP.get('norot'): a('s_mov_b32 s%d, 0'%S_T0); return
    a('s_mul_i32 s%d, s%d, 5'%(S_T0,S_G)); a('s_lshr_b32 s%d, s%d, 1'%(S_T0,S_T0))
    a('s_mul_i32 s%d, s%d, %d'%(S_T1,S_HALF,EXP.get('rothalf',4))); a('s_add_u32 s%d, s%d, s%d'%(S_T0,S_T0,S_T1))
    a('s_cmp_ge_u32 s%d, 10'%S_T0); a('s_cselect_b32 s%d, 10, 0'%S_T1); a('s_sub_u32 s%d, s%d, s%d'%(S_T0,S_T0,S_T1))

def gen_k1(a,kname):
    kernel_head(a,kname,'K1')
    a('s_load_dwordx2 s[%d:%d], s[0:1], 0'%(S_X,S_X+1))
    a('s_load_dwordx4 s[%d:%d], s[0:1], 24'%(S_WDRE,S_WDRE+3))
    a('s_load_dwordx2 s[%d:%d], s[0:1], 48'%(S_WIN,S_WIN+1))
    a('s_load_dwordx2 s[%d:%d], s[0:1], 88'%(S_DBG,S_DBG+1))
    a('s_load_dwordx2 s[%d:%d], s[0:1], 96'%(S_WS,S_WS+1))
    wave_setup(a,'K1')
    a('s_and_b32 s%d, s2, 7'%S_XCD); a('s_lshr_b32 s%d, s2, 3'%S_J)
    a('s_lshr_b32 s%d, s%d, 1'%(S_G,S_XCD)); a('s_and_b32 s%d, s%d, 1'%(S_HALF,S_XCD))
    a('s_cmp_ge_u32 s%d, 24'%S_J); a('s_cbranch_scc1 K1A_entry')
    a('s_mul_i32 s%d, s%d, 43'%(S_T0,S_J)); a('s_lshr_b32 s%d, s%d, 8'%(S_T0,S_T0))
    a('s_mul_i32 s%d, s%d, 6'%(S_T1,S_T0)); a('s_sub_u32 s%d, s%d, s%d'%(S_T1,S_J,S_T1))
    a('s_and_b32 s%d, s%d, 1'%(S_PAR,S_T1)); a('s_lshr_b32 s%d, s%d, 1'%(S_T1,S_T1)); a('s_mul_i32 s%d, s%d, 3'%(S_CT,S_HALF)); a('s_add_u32 s%d, s%d, s%d'%(S_CT,S_CT,S_T1))
    a('s_lshl_b32 s%d, s%d, 1'%(S_T1,S_G)); a('s_add_u32 s%d, s%d, s%d'%(S_T2,S_T1,S_T0))
    a('s_sub_u32 s%d, s%d, s%d'%(S_T3,S_T0,S_T1)); a('s_add_u32 s%d, s%d, 12'%(S_T3,S_T3))
    a('s_cmp_lt_u32 s%d, 2'%S_T0); a('s_cselect_b32 s%d, s%d, s%d'%(S_RB,S_T2,S_T3))
    if EXP.get('two'):
        import g3_z
        g3_z.gen_z(a)
    a('s_cmp_ge_u32 s%d, 12'%S_WAVE); a('s_cbranch_scc1 K1Z_work')
    a('s_cmp_ge_u32 s%d, 8'%S_WAVE); a('s_cbranch_scc1 K1Z_prod')
    ACC=16; FA=56; FB=84; XA=[112,113]; WA=116
    a('s_and_b32 s%d, s%d, 3'%(S_PW,S_WAVE)); a('s_lshr_b32 s%d, s%d, 2'%(S_H,S_WAVE))
    a('v_and_b32 v1, 15, v0'); a('v_lshrrev_b32 v2, 4, v0')
    a('v_and_b32 v3, 7, v0'); a('v_xor_b32 v3, v3, v2'); a('v_lshlrev_b32 v3, 4, v3'); a('v_lshl_add_u32 v3, v1, 7, v3')
    a('s_lshl_b32 s%d, s%d, 12'%(S_T0,S_PW)); a('v_add_u32 v%d, s%d, v3'%(XA[0],S_T0)); a('v_xor_b32 v%d, 64, v%d'%(XA[1],XA[0]))
    a('v_lshrrev_b32 v3, 2, v1'); a('v_lshl_add_u32 v3, v2, 2, v3'); a('v_mul_u32_u24 v3, 288, v3'); a('v_and_b32 v4, 3, v1'); a('v_lshl_add_u32 v3, v4, 3, v3')
    a('s_mul_i32 s%d, s%d, 160'%(S_T0,S_H)); a('v_add_u32 v%d, s%d, v3'%(WA,S_T0))
    ln1_row(a)
    for k in range(40): a('v_mov_b32 v%d, 0'%(ACC+k))
    ln1_row_finish(a)
    def acc(i,j): return ACC+(j*2+i)*4
    a('s_cmp_eq_u32 s%d, s%d'%(S_H,S_PAR)); a('s_cselect_b32 s%d, 0, 2'%S_T0); a('s_add_u32 s%d, s%d, s%d'%(S_T0,S_T0,S_H))
    for t,lab in ((1,'K1c_z2_1'),(2,'K1c_z1_0'),(3,'K1c_z1_1')):
        a('s_cmp_eq_u32 s%d, %d'%(S_T0,t)); a('s_cbranch_scc1 %s'%lab)
    for role in ('z2','z1'):
      for h in range(2):
        nj=5-h; nm='K1c_%s_%d'%(role,h)
        a.lab(nm)
        def rd(st,sub,nj=nj):
            F=FA if st==0 else FB; m=[]
            for i in range(2): m.append('ds_read_b128 %s, v%d offset:%d'%(vr(F+i*4,4),XA[sub],i*2048))
            for j in range(nj):
                for b in range(2): m.append('ds_read_b64_tr_b16 %s, v%d offset:%d'%(vr(F+8+j*4+b*2,2),WA,16384+sub*9216+b*4608+j*32))
            return m
        def mf(st,role=role,nj=nj):
            F=FA if st==0 else FB; m=[]
            for j in range(nj):
                for i in range(2):
                    x=vr(F+i*4,4); w=vr(F+8+j*4,4); c=vr(acc(i,j),4)
                    m.append('v_mfma_f32_16x16x32_bf16 %s, %s, %s, %s'%((c,x,w,c) if role=='z2' else (c,w,x,c)))
            return m
        consumer_loop(a,nm+'L',SLZ,NK1,XA+[WA],rd,mf,lag=(h==0),hook=ln1_hook(a),hook_at=2,per=EXP.get('k1per',2),dly=EXP.get('k1dly',12))
        a('s_barrier')
        if EXP.get('fine') is None: gc.stamp(a,4)
        C0=112;C1=114;ONE=116
        a('v_mov_b32 v%d, 0x%x'%(C0,f2u(GC0))); a('v_mov_b32 v%d, 0x%x'%(C0+1,f2u(GC0)))
        a('v_mov_b32 v%d, 0x%x'%(C1,f2u(GC1))); a('v_mov_b32 v%d, 0x%x'%(C1+1,f2u(GC1)))
        a('v_mov_b32 v%d, 1.0'%ONE); a('v_mov_b32 v%d, 1.0'%(ONE+1))
        TMP=[56,58,60,62]; prs=[(i,p) for i in range(2) for p in range(2)]
        if role=='z2':
            if not EXP.get('noz2prio'): a('s_setprio 3')
            RR=64; NM=72; CS=80; CSb=86; SUM=92; SQ=100; GRN=56; VO=118; PK=108
            a('s_lshl_b32 s%d, s%d, 7'%(S_T0,S_PW)); a('v_lshlrev_b32 v3, 4, v2'); a('v_add_u32 v3, s%d, v3'%S_T0); a('v_add_u32 v3, %d, v3'%T_R)
            for i in range(2):
                a('ds_read_b128 %s, v3 offset:%d'%(vr(RR+4*i,4),i*64)); a('ds_read_b128 %s, v3 offset:%d'%(vr(NM+4*i,4),512+i*64))
            a('v_lshlrev_b32 v4, 2, v1'); a('v_add_u32 v4, %d, v4'%(T_CS0+h*320))
            for j in range(nj):
                a('ds_read_b32 v%d, v4 offset:%d'%(CS+j,j*64)); a('ds_read_b32 v%d, v4 offset:%d'%(CSb+j,640+j*64))
            for k in range(8): a('v_mov_b32 v%d, 0'%(SUM+k)); a('v_mov_b32 v%d, 0'%(SQ+k))
            add64(a,S_T2,S_WS,WS_GR); srd(a,SRD_G,S_T2,S_T2+1,16*12288)
            a('s_mul_i32 s%d, s%d, 12288'%(S_SO,S_RB))
            a('s_lshl_b32 s%d, s%d, 1'%(S_T0,S_CT)); a('s_add_u32 s%d, s%d, %d'%(S_T0,S_T0,h)); a('s_lshl_b32 s%d, s%d, 10'%(S_T0,S_T0))
            a('s_lshl_b32 s%d, s%d, 8'%(S_T1,S_PW)); a('s_add_u32 s%d, s%d, s%d'%(S_T0,S_T0,S_T1)); a('s_add_u32 s%d, s%d, s%d'%(S_SO2,S_SO,S_T0))
            a('s_waitcnt lgkmcnt(0)')
            for j in range(nj): a('v_add_f32 v%d, v%d, v%d'%(CS+j,CS+j,CSb+j))
            for j in range(nj):
                csr=CS+j; cspair=vr(csr&~1,2); sel=csr&1
                for k,(i,p) in enumerate(prs): a('v_pk_mul_f32 %s, %s, %s op_sel:[0,%d] op_sel_hi:[1,%d]'%(vr(TMP[k],2),vr(NM+4*i+2*p,2),cspair,sel,sel))
                for k,(i,p) in enumerate(prs):
                    r=acc(i,j)+2*p; a('v_pk_fma_f32 %s, %s, %s, %s'%(vr(r,2),vr(r,2),vr(RR+4*i+2*p,2),vr(TMP[k],2)))
                gelu_pairs(a,[acc(i,j)+2*p for (i,p) in prs],TMP,C0,C1,ONE)
                for k,(i,p) in enumerate(prs):
                    r=acc(i,j)+2*p
                    a('v_pk_add_f32 %s, %s, %s'%(vr(SUM+4*i+2*p,2),vr(SUM+4*i+2*p,2),vr(r,2)))
                    a('v_pk_fma_f32 %s, %s, %s, %s'%(vr(SQ+4*i+2*p,2),vr(r,2),vr(r,2),vr(SQ+4*i+2*p,2)))
            if EXP.get('z2st'): gc.stamp(a,1)
            for sh in (8,4,2):
                for k in range(8): a('v_add_f32_dpp v%d, v%d, v%d row_ror:%d row_mask:0xf bank_mask:0xf'%(SUM+k,SUM+k,SUM+k,sh))
                for k in range(8): a('v_add_f32_dpp v%d, v%d, v%d row_ror:%d row_mask:0xf bank_mask:0xf'%(SQ+k,SQ+k,SQ+k,sh))
            for k in range(8): a('v_add_f32_dpp v%d, v%d, v%d row_ror:1 row_mask:0xf bank_mask:0xf'%(GRN+2*k,SUM+k,SUM+k))
            for k in range(8): a('v_add_f32_dpp v%d, v%d, v%d row_ror:1 row_mask:0xf bank_mask:0xf'%(GRN+2*k+1,SQ+k,SQ+k))
            a('v_lshlrev_b32 v3, 5, v2'); a('v_cmp_eq_u32 vcc, 0, v1'); a('s_and_saveexec_b64 s[%d:%d], vcc'%(S_EX,S_EX+1))
            for i in range(2):
                for p in range(2): a('buffer_store_dwordx4 %s, v3, s[%d:%d], s%d offen offset:%d sc1'%(vr(GRN+8*i+4*p,4),SRD_G,SRD_G+3,S_SO2,i*128+p*16))
            a('s_mov_b64 exec, s[%d:%d]'%(S_EX,S_EX+1))
            if EXP.get('z2st'): gc.stamp(a,2)
            PL=72
            if not EXP.get('oldpoll'):
                add64(a,S_T2,S_WS,WS_FG); srd(a,SRD_O2,S_T2,S_T2+1,4096)
                a('s_lshl_b32 s%d, s%d, 8'%(S_T0,S_RB)); a('s_lshl_b32 s%d, s%d, 6'%(S_T1,S_PW)); a('s_add_u32 s%d, s%d, s%d'%(S_T0,S_T0,S_T1))
                a('s_lshl_b32 s%d, s%d, 1'%(S_T1,S_CT)); a('s_add_u32 s%d, s%d, %d'%(S_T1,S_T1,h)); a('s_lshl_b32 s%d, s%d, 2'%(S_T1,S_T1)); a('s_add_u32 s%d, s%d, s%d'%(S_T1,S_T1,S_T0))
                a('v_mov_b32 v6, 1'); a('v_mov_b32 v7, 0'); a('s_mov_b32 exec_lo, 1'); a('s_mov_b32 exec_hi, 0')
                a('buffer_store_dword v6, v7, s[%d:%d], s%d offen sc1'%(SRD_O2,SRD_O2+3,S_T1)); a('s_mov_b64 exec, -1')
                a('v_lshlrev_b32 v7, 2, v0'); a('v_mov_b32 v8, 0x7fffff00'); a('v_cmp_gt_u32 vcc, 12, v0'); a('s_nop 1'); a('v_cndmask_b32 v7, v8, v7, vcc'); a('v_cndmask_b32_e64 v8, 1, 0, vcc')
                a('s_mov_b32 s%d, 0'%S_I)
                a('buffer_load_dword v9, v7, s[%d:%d], s%d offen sc1'%(SRD_O2,SRD_O2+3,S_T0))
                a.lab(nm+'_hp')
                for r0,r1 in ((9,10),(10,9)):
                    a('buffer_load_dword v%d, v7, s[%d:%d], s%d offen sc1'%(r1,SRD_O2,SRD_O2+3,S_T0)); a('s_waitcnt vmcnt(1)')
                    a('v_or_b32 v11, v%d, v8'%r0); a('v_cmp_ne_u32 vcc, 1, v11'); a('s_nop 1'); a('s_cmp_eq_u64 vcc, 0'); a('s_cbranch_scc1 %s_hok'%nm)
                a('s_add_u32 s%d, s%d, 1'%(S_I,S_I)); a('s_cmp_lt_u32 s%d, %d'%(S_I,POLL_BOUND)); a('s_cbranch_scc1 %s_hp'%nm)
                a.lab(nm+'_hok')
            a('v_and_b32 v4, 31, v0'); a('v_lshrrev_b32 v5, 5, v0'); a('v_mul_u32_u24 v5, 6144, v5'); a('v_lshl_add_u32 v4, v4, 3, v5')
            a('s_lshl_b32 s%d, s%d, 8'%(S_T1,S_PW)); a('v_add_u32 v4, s%d, v4'%S_T1); a('v_add_u32 v5, 4096, v4')
            a('s_mov_b32 s%d, 0'%S_I)
            a.lab(nm+'_poll')
            for k in range(6): a('buffer_load_dwordx2 %s, v%d, s[%d:%d], s%d offen offset:%d sc1'%(vr(PL+2*k,2),4 if k<4 else 5,SRD_G,SRD_G+3,S_SO,(k%4)*1024))
            a('s_waitcnt vmcnt(0)')
            a('v_max3_u32 v6, v%d, v%d, v%d'%(PL,PL+1,PL+2))
            for k in range(3,12,2):
                a('v_max3_u32 v6, v6, v%d, v%d'%(PL+k,PL+k+1) if k+1<12 else 'v_max_u32 v6, v6, v%d'%(PL+k))
            a('v_cmp_eq_u32 s[%d:%d], -1, v6'%(S_EX,S_EX+1)); a('s_nop 1'); a('s_cmp_eq_u64 s[%d:%d], 0'%(S_EX,S_EX+1)); a('s_cbranch_scc1 %s_rdy'%nm)
            a('s_add_u32 s%d, s%d, 1'%(S_I,S_I)); a('s_cmp_lt_u32 s%d, %d'%(S_I,POLL_BOUND)); a('s_cbranch_scc1 %s_poll'%nm)
            a.lab(nm+'_rdy')
            if EXP.get('z2st'): gc.stamp(a,3)
            a('v_pk_add_f32 %s, %s, %s'%(vr(PL,2),vr(PL,2),vr(PL+2,2))); a('v_pk_add_f32 %s, %s, %s'%(vr(PL+4,2),vr(PL+4,2),vr(PL+6,2))); a('v_pk_add_f32 %s, %s, %s'%(vr(PL+8,2),vr(PL+8,2),vr(PL+10,2)))
            a('v_pk_add_f32 %s, %s, %s'%(vr(PL,2),vr(PL,2),vr(PL+4,2))); a('v_pk_add_f32 %s, %s, %s'%(vr(PL,2),vr(PL,2),vr(PL+8,2)))
            a('v_mov_b32 v%d, v%d'%(PL+2,PL)); a('v_mov_b32 v%d, v%d'%(PL+3,PL+1)); a('s_nop 1')
            a('v_permlane32_swap_b32 v%d, v%d'%(PL,PL+2)); a('v_permlane32_swap_b32 v%d, v%d'%(PL+1,PL+3)); a('s_nop 1')
            a('v_pk_add_f32 %s, %s, %s'%(vr(PL,2),vr(PL,2),vr(PL+2,2)))
            a('v_mul_f32 v%d, 0x%x, v%d'%(PL,f2u(1.0/864),PL)); a('v_mul_f32 v%d, 0x%x, v%d'%(PL+1,f2u(1.0/864),PL+1))
            a('v_fma_f32 v%d, -v%d, v%d, v%d'%(PL+1,PL,PL,PL+1)); a('v_max_f32 v%d, 0, v%d'%(PL+1,PL+1)); a('v_add_f32 v%d, 0x%x, v%d'%(PL+1,f2u(1e-5),PL+1))
            a('v_rsq_f32 v%d, v%d'%(PL+2,PL+1)); a('s_nop 0'); a('v_mul_f32 v%d, v%d, v%d'%(PL+3,PL,PL+2)); a('v_sub_f32 v%d, 0, v%d'%(PL+3,PL+3))
            a('s_lshl_b32 s%d, s%d, 8'%(S_T0,S_WAVE)); a('s_add_u32 s%d, s%d, %d'%(S_T0,S_T0,T_W2))
            a('v_and_b32 v4, 31, v0'); a('v_lshlrev_b32 v4, 2, v4'); a('v_add_u32 v4, s%d, v4'%S_T0)
            a('ds_write_b32 v4, v%d'%(PL+2)); a('ds_write_b32 v4, v%d offset:128'%(PL+3))
            a('v_lshlrev_b32 v5, 4, v2'); a('v_add_u32 v5, s%d, v5'%S_T0)
            a('s_waitcnt lgkmcnt(0)')
            for i in range(2):
                a('ds_read_b128 %s, v5 offset:%d'%(vr(RR+4*i,4),i*64)); a('ds_read_b128 %s, v5 offset:%d'%(vr(84+4*i,4),128+i*64))
            NM2=84
            a('s_mul_i32 s%d, s%d, %d'%(S_T0,S_CT,Z2_CT)); a('s_lshl_b32 s%d, s%d, 1'%(S_T1,S_RB)); a('s_lshr_b32 s%d, s%d, 1'%(S_T2,S_PW))
            a('s_add_u32 s%d, s%d, s%d'%(S_T1,S_T1,S_T2)); a('s_mul_i32 s%d, s%d, 18432'%(S_T1,S_T1)); a('s_add_u32 s%d, s%d, s%d'%(S_T0,S_T0,S_T1))
            a('s_and_b32 s%d, s%d, 1'%(S_T1,S_PW)); a('s_mul_i32 s%d, s%d, 9216'%(S_T1,S_T1)); a('s_add_u32 s%d, s%d, s%d'%(S_T0,S_T0,S_T1))
            a('s_add_u32 s%d, s%d, %d'%(S_SO,S_T0,5120*h))
            srd(a,SRD_O,S_WS,S_WS+1,6*Z2_CT)
            a('v_lshlrev_b32 v%d, 4, v0'%VO)
            a('s_waitcnt lgkmcnt(0)')
            for j in range(nj):
                for k,(i,p) in enumerate(prs):
                    r=acc(i,j)+2*p; a('v_pk_fma_f32 %s, %s, %s, %s'%(vr(r,2),vr(r,2),vr(RR+4*i+2*p,2),vr(NM2+4*i+2*p,2)))
                o=PK+4*(j&1)
                for k,(i,p) in enumerate(prs):
                    r=acc(i,j)+2*p; a('v_cvt_pk_bf16_f32 v%d, v%d, v%d'%(o+k,r,r+1))
                a('s_nop 1')
                a('v_permlane32_swap_b32 v%d, v%d'%(o,o+2)); a('v_permlane32_swap_b32 v%d, v%d'%(o+1,o+3)); a('s_nop 1')
                a('v_permlane16_swap_b32 v%d, v%d'%(o,o+2)); a('v_permlane16_swap_b32 v%d, v%d'%(o+1,o+3))
                if j<4: a('buffer_store_dwordx4 %s, v%d, s[%d:%d], s%d offen offset:%d%s'%(vr(o,4),VO,SRD_O,SRD_O+3,S_SO,j*1024,g2.STF))
                else:
                    a('s_add_u32 s%d, s%d, 4096'%(S_SO,S_SO)); a('buffer_store_dwordx4 %s, v%d, s[%d:%d], s%d offen%s'%(vr(o,4),VO,SRD_O,SRD_O+3,S_SO,g2.STF))
            a('s_branch K1_end')
        else:
            RR=64; NM=66; CS=68; CSb=88; PK=100; VO=118
            a('s_lshl_b32 s%d, s%d, 7'%(S_T0,S_PW)); a('v_lshlrev_b32 v3, 2, v1'); a('v_add_u32 v3, s%d, v3'%S_T0); a('v_add_u32 v3, %d, v3'%T_R)
            for i in range(2):
                a('ds_read_b32 v%d, v3 offset:%d'%(RR+i,i*64)); a('ds_read_b32 v%d, v3 offset:%d'%(NM+i,512+i*64))
            a('v_lshlrev_b32 v4, 4, v2'); a('v_add_u32 v4, %d, v4'%(T_CS0+320*h))
            for j in range(nj):
                a('ds_read_b128 %s, v4 offset:%d'%(vr(CS+4*j,4),j*64)); a('ds_read_b128 %s, v4 offset:%d'%(vr(CSb+4*j,4),640+j*64))
            a('s_mul_i32 s%d, s%d, 6'%(S_T0,S_RB)); a('s_add_u32 s%d, s%d, s%d'%(S_T0,S_T0,S_CT)); a('s_lshl_b32 s%d, s%d, 3'%(S_T0,S_T0))
            a('s_add_u32 s%d, s%d, s%d'%(S_T0,S_T0,S_WAVE)); a('s_mul_i32 s%d, s%d, 5120'%(S_SO,S_T0))
            add64(a,S_T2,S_WS,WS_Z1); srd(a,SRD_O,S_T2,S_T2+1,96*40960)
            a('v_lshlrev_b32 v%d, 4, v0'%VO)
            a('s_waitcnt lgkmcnt(0)')
            for j in range(nj):
                for p in range(2): a('v_pk_add_f32 %s, %s, %s'%(vr(CS+4*j+2*p,2),vr(CS+4*j+2*p,2),vr(CSb+4*j+2*p,2)))
            for j in range(nj):
                for k,(i,p) in enumerate(prs): a('v_pk_mul_f32 %s, %s, %s op_sel:[0,%d] op_sel_hi:[1,%d]'%(vr(TMP[k],2),vr(CS+4*j+2*p,2),vr(NM,2),i,i))
                for k,(i,p) in enumerate(prs):
                    r=acc(i,j)+2*p; a('v_pk_fma_f32 %s, %s, %s, %s op_sel:[0,%d,0] op_sel_hi:[1,%d,1]'%(vr(r,2),vr(r,2),vr(RR,2),vr(TMP[k],2),i,i))
                gelu_pairs(a,[acc(i,j)+2*p for (i,p) in prs],TMP,C0,C1,ONE)
                o=acc(0,j) if not EXP.get('z1early') else PK+4*(j&1)
                for k,(i,p) in enumerate(prs):
                    r=acc(i,j)+2*p; a('v_cvt_pk_bf16_f32 v%d, v%d, v%d'%(o+k,r,r+1))
                if EXP.get('z1early'):
                    if j<4: a('buffer_store_dwordx4 %s, v%d, s[%d:%d], s%d offen offset:%d%s'%(vr(o,4),VO,SRD_O,SRD_O+3,S_SO,j*1024,g2.STF))
                    else:
                        a('s_add_u32 s%d, s%d, 4096'%(S_SO,S_SO)); a('buffer_store_dwordx4 %s, v%d, s[%d:%d], s%d offen%s'%(vr(o,4),VO,SRD_O,SRD_O+3,S_SO,g2.STF))
            if not EXP.get('z1early'):
                for j in range(nj):
                    if j<4: a('buffer_store_dwordx4 %s, v%d, s[%d:%d], s%d offen offset:%d%s'%(vr(acc(0,j),4),VO,SRD_O,SRD_O+3,S_SO,j*1024,g2.STF))
                    else:
                        a('s_add_u32 s%d, s%d, 4096'%(S_SO,S_SO)); a('buffer_store_dwordx4 %s, v%d, s[%d:%d], s%d offen%s'%(vr(acc(0,j),4),VO,SRD_O,SRD_O+3,S_SO,g2.STF))
            a('s_branch K1_end')
    a.lab('K1Z_prod')
    XO=[2,3]; WO=[4,5,6,7,8]
    if EXP.get('same'): a('s_mov_b32 s%d, 0'%S_RB); a('s_mov_b32 s%d, 0'%S_CT)
    a('s_sub_u32 s%d, s%d, 8'%(S_PW,S_WAVE))
    a('v_lshrrev_b32 v20, 3, v0'); a('s_lshl_b32 s%d, s%d, 5'%(S_T0,S_PW)); a('v_add_u32 v21, s%d, v20'%S_T0); a('v_mul_u32_u24 v21, 1280, v21')
    a('v_and_b32 v22, 7, v0'); a('v_xor_b32 v22, v22, v20')
    a('v_lshl_add_u32 v%d, v22, 4, v21'%XO[0]); a('v_mov_b32 v%d, v%d'%(XO[1],XO[0]))
    a('s_mul_i32 s%d, s%d, 288'%(S_T0,S_CT)); a('s_cmp_eq_u32 s%d, 0'%S_PAR); a('s_cselect_b32 s%d, 1728, 0'%S_T1); a('s_cselect_b32 s%d, 0, 1728'%S_T2)
    a('s_add_u32 s%d, s%d, s%d'%(S_T1,S_T1,S_T0)); a('s_add_u32 s%d, s%d, s%d'%(S_T2,S_T2,S_T0))
    a('v_mov_b32 v24, s%d'%S_T1); a('v_mov_b32 v25, s%d'%S_T2)
    for i in range(5):
        a('s_lshl_b32 s%d, s%d, 6'%(S_T0,S_PW)); a('s_add_u32 s%d, s%d, %d'%(S_T0,S_T0,256*i)); a('v_add_u32 v20, s%d, v0'%S_T0)
        a('v_mul_u32_u24 v21, 3641, v20'); a('v_lshrrev_b32 v21, 16, v21')
        a('v_mul_u32_u24 v22, 18, v21'); a('v_sub_u32 v22, v20, v22'); a('v_cmp_gt_u32 vcc, 10, v22')
        a('v_and_b32 v26, 0x23, v21'); a('v_bfe_u32 v27, v21, 2, 2'); a('v_lshl_or_b32 v26, v27, 3, v26'); a('v_bfe_u32 v27, v21, 4, 1'); a('v_lshl_or_b32 v21, v27, 2, v26')
        a('v_mul_u32_u24 v21, 3456, v21'); a('v_lshl_add_u32 v21, v22, 4, v21')
        a('v_cndmask_b32 v23, v25, v24, vcc'); a('v_add_u32 v%d, v21, v23'%WO[i])
    a('s_mov_b32 s%d, 0'%S_SLI)
    krot(a); a('s_lshl_b32 s%d, s%d, 7'%(S_KX,S_T0)); a('s_mul_i32 s%d, s%d, %d'%(S_KW,S_T0,64*3456))
    a('s_waitcnt lgkmcnt(0)')
    a('s_mul_i32 s%d, s%d, %d'%(S_T0,S_RB,128*1280)); add64(a,S_X,S_X,'s%d'%S_T0); srd(a,SRD_X,S_X,S_X+1,128*1280)
    srd(a,SRD_W,S_WIN,S_WIN+1,640*3456)
    def issueZ():
        a('s_lshl_b32 s%d, s%d, 12'%(S_T,S_PW)); a('s_add_u32 s%d, s%d, s%d'%(S_T,S_T,S_SLI))
        for j in range(4):
            a('s_add_u32 m0, s%d, %d'%(S_T,j*1024)); a('s_add_u32 s%d, s%d, %d'%(S_SO,S_KX,j*10240))
            a(ld('buffer_load_dwordx4 v%d, s[%d:%d], s%d offen lds'%(XO[j&1],SRD_X,SRD_X+3,S_SO)))
        a('s_lshl_b32 s%d, s%d, 10'%(S_T,S_PW)); a('s_add_u32 s%d, s%d, s%d'%(S_T,S_T,S_SLI))
        lab=a.newlab('K1Zp_s')
        for i in range(5):
            if i==4: a('s_cmp_lt_u32 s%d, 2'%S_PW); a('s_cbranch_scc0 %s'%lab)
            a('s_add_u32 m0, s%d, %d'%(S_T,16384+i*4096)); a('s_nop 0')
            a(ld('buffer_load_dwordx4 v%d, s[%d:%d], s%d offen lds'%(WO[i],SRD_W,SRD_W+3,S_KW)))
        a.lab(lab)
        slot_advance(a,S_SLI,SLZ); a('s_add_u32 s%d, s%d, 128'%(S_KX,S_KX)); a('s_add_u32 s%d, s%d, %d'%(S_KW,S_KW,64*3456))
        a('s_cmp_eq_u32 s%d, 1280'%S_KX); a('s_cselect_b32 s%d, 0, s%d'%(S_KX,S_KX)); a('s_cselect_b32 s%d, 0, s%d'%(S_KW,S_KW))
    dma_producer(a,'K1Zp',NK1,8,issueZ,post=1)
    a('s_branch K1_end')
    a.lab('K1Z_work')
    a('s_sub_u32 s%d, s%d, 12'%(S_PW,S_WAVE))
    a('s_waitcnt lgkmcnt(0)')
    late=worker(a,'K1Zw',SLZ,True)
    a('s_waitcnt lgkmcnt(0)'); a('s_barrier'); late(); a('s_branch K1_end')

    a.lab('K1A_entry')
    a('s_sub_u32 s%d, s%d, 24'%(S_T0,S_J)); a('s_lshr_b32 s%d, s%d, 1'%(S_T1,S_T0)); a('s_and_b32 s%d, s%d, 1'%(S_CT,S_T0))
    a('s_lshl_b32 s%d, s%d, 2'%(S_RB,S_G)); a('s_add_u32 s%d, s%d, s%d'%(S_RB,S_RB,S_T1))
    a('s_cmp_ge_u32 s%d, 12'%S_WAVE); a('s_cbranch_scc1 K1A_work')
    a('s_cmp_ge_u32 s%d, 8'%S_WAVE); a('s_cbranch_scc1 K1A_prod')
    ACC=16; FA=56; FB=84; XA=[112,113]; WA2=[114,115]
    a('s_and_b32 s%d, s%d, 3'%(S_PW,S_WAVE)); a('s_lshr_b32 s%d, s%d, 2'%(S_H,S_WAVE))
    a('v_and_b32 v1, 15, v0'); a('v_lshrrev_b32 v2, 4, v0'); a('v_and_b32 v3, 7, v0'); a('v_xor_b32 v3, v3, v2'); a('v_lshlrev_b32 v3, 4, v3')
    a('v_lshl_add_u32 v3, v1, 7, v3')
    a('s_lshl_b32 s%d, s%d, 11'%(S_T0,S_PW)); a('v_add_u32 v%d, s%d, v3'%(XA[0],S_T0)); a('v_xor_b32 v%d, 64, v%d'%(XA[1],XA[0]))
    a('s_mul_i32 s%d, s%d, %d'%(S_T0,S_H,80*128)); a('s_add_u32 s%d, s%d, 16384'%(S_T0,S_T0)); a('v_add_u32 v%d, s%d, v3'%(WA2[0],S_T0)); a('v_xor_b32 v%d, 64, v%d'%(WA2[1],WA2[0]))
    ln1_row(a)
    for k in range(40): a('v_mov_b32 v%d, 0'%(ACC+k))
    ln1_row_finish(a)
    def accA(tb,j): return ACC+(j*2+tb)*4
    def rdA(st,sub):
        F=FA if st==0 else FB; m=[]
        for tb in range(2): m.append('ds_read_b128 %s, v%d offset:%d'%(vr(F+tb*4,4),XA[sub],tb*8192))
        for j in range(5): m.append('ds_read_b128 %s, v%d offset:%d'%(vr(F+8+j*4,4),WA2[sub],j*2048))
        return m
    def mfA(st):
        F=FA if st==0 else FB; m=[]
        for j in range(5):
            for tb in range(2):
                c=vr(accA(tb,j),4); m.append('v_mfma_f32_16x16x32_bf16 %s, %s, %s, %s'%(c,vr(F+tb*4,4),vr(F+8+j*4,4),c))
        return m
    a('s_cmp_eq_u32 s%d, 0'%S_H); a('s_cbranch_scc0 K1A_c1')
    consumer_loop(a,'K1A0',SLA,NK1,XA+WA2,rdA,mfA,lag=True,hook=ln1_hook(a),hook_at=2)
    a('s_branch K1A_cd')
    a.lab('K1A_c1')
    consumer_loop(a,'K1A1',SLA,NK1,XA+WA2,rdA,mfA,lag=False,hook=ln1_hook(a),hook_at=2)
    a.lab('K1A_cd')
    a('s_barrier')
    if EXP.get('fine') is None: gc.stamp(a,4)
    RT=56; RB_=60; RO=64; T4=[66,68]; PK=70; VO=76
    a('s_lshl_b32 s%d, s%d, 6'%(S_T0,S_PW)); a('v_lshlrev_b32 v3, 4, v2'); a('v_add_u32 v3, s%d, v3'%S_T0); a('v_add_u32 v3, %d, v3'%T_R)
    a('ds_read_b128 %s, v3'%vr(RT,4)); a('ds_read_b128 %s, v3 offset:256'%vr(RB_,4))
    a('s_mul_i32 s%d, s%d, %d'%(S_T0,S_HALF,AE_MAT)); a('s_lshl_b32 s%d, s%d, 1'%(S_T1,S_CT)); a('s_add_u32 s%d, s%d, s%d'%(S_T1,S_T1,S_H))
    a('s_mul_i32 s%d, s%d, 163840'%(S_T1,S_T1)); a('s_add_u32 s%d, s%d, s%d'%(S_T0,S_T0,S_T1)); a('s_mul_i32 s%d, s%d, 10240'%(S_T1,S_RB))
    a('s_add_u32 s%d, s%d, s%d'%(S_T0,S_T0,S_T1)); a('s_lshr_b32 s%d, s%d, 1'%(S_T1,S_PW)); a('s_mul_i32 s%d, s%d, 5120'%(S_T1,S_T1)); a('s_add_u32 s%d, s%d, s%d'%(S_SO,S_T0,S_T1))
    add64(a,S_T2,S_WS,WS_AE); srd(a,SRD_O,S_T2,S_T2+1,2*AE_MAT)
    a('s_and_b32 s%d, s%d, 1'%(S_T0,S_PW)); a('s_lshl_b32 s%d, s%d, 9'%(S_T0,S_T0))
    a('v_lshrrev_b32 v3, 1, v2'); a('v_lshlrev_b32 v3, 8, v3'); a('v_lshl_add_u32 v3, v1, 4, v3'); a('v_and_b32 v4, 1, v2'); a('v_lshl_add_u32 v3, v4, 3, v3')
    a('v_add_u32 v%d, s%d, v3'%(VO,S_T0))
    a('s_waitcnt lgkmcnt(0)')
    a('s_or_b32 s%d, s%d, s%d'%(S_T0,S_RB,S_PW)); a('s_or_b32 s%d, s%d, s%d'%(S_T0,S_T0,S_HALF)); a('s_cmp_eq_u32 s%d, 0'%S_T0); a('s_cbranch_scc0 K1A_nosp')
    add64(a,S_T2,S_WS,WS_A1024); srd(a,SRD_O2,S_T2,S_T2+1,1280)
    a('s_mul_i32 s%d, s%d, 640'%(S_T0,S_CT)); a('s_mul_i32 s%d, s%d, 320'%(S_T1,S_H)); a('s_add_u32 s%d, s%d, s%d'%(S_T0,S_T0,S_T1))
    a('v_lshlrev_b32 v5, 2, v1')
    a('v_cmp_gt_u32 vcc, 16, v0'); a('s_and_saveexec_b64 s[%d:%d], vcc'%(S_EX,S_EX+1))
    for j in range(5):
        a('v_mul_f32 v%d, v%d, v%d'%(RO,accA(1,j),RB_))
        a('buffer_store_dword v%d, v5, s[%d:%d], s%d offen offset:%d%s'%(RO,SRD_O2,SRD_O2+3,S_T0,j*64,g2.STF)); a('s_nop 0')
    a('v_mov_b32 v%d, 0'%RB_)
    a('s_mov_b64 exec, s[%d:%d]'%(S_EX,S_EX+1))
    a.lab('K1A_nosp')
    a('s_cmp_eq_u32 s%d, 0'%S_HALF); a('s_cselect_b32 s%d, 1.0, -1.0'%S_T0)
    for k in range(4): a('v_mul_f32 v%d, s%d, v%d'%(RB_+k,S_T0,RB_+k))
    for j in range(5):
        for p in range(2): a('v_pk_mul_f32 %s, %s, %s'%(vr(T4[p],2),vr(accA(1,j)+2*p,2),vr(RB_+2*p,2)))
        for p in range(2): a('v_pk_fma_f32 %s, %s, %s, %s'%(vr(T4[p],2),vr(accA(0,j)+2*p,2),vr(RT+2*p,2),vr(T4[p],2)))
        for p in range(2): a('v_cvt_pk_bf16_f32 v%d, v%d, v%d'%(PK+p+2*(j&1),T4[p],T4[p]+1))
        if j<4: a('buffer_store_dwordx2 %s, v%d, s[%d:%d], s%d offen offset:%d%s'%(vr(PK+2*(j&1),2),VO,SRD_O,SRD_O+3,S_SO,j*1024,g2.STF))
        else:
            a('s_add_u32 s%d, s%d, 4096'%(S_SO,S_SO)); a('buffer_store_dwordx2 %s, v%d, s[%d:%d], s%d offen%s'%(vr(PK+2*(j&1),2),VO,SRD_O,SRD_O+3,S_SO,g2.STF))
    a('s_branch K1_end')
    a.lab('K1A_prod')
    XO4=[2,3,4,5]; WO1=6
    if EXP.get('same'): a('s_mov_b32 s%d, 0'%S_RB); a('s_mov_b32 s%d, 0'%S_CT)
    a('s_sub_u32 s%d, s%d, 8'%(S_PW,S_WAVE))
    a('v_lshrrev_b32 v20, 3, v0'); a('v_and_b32 v22, 7, v0'); a('v_xor_b32 v22, v22, v20'); a('v_lshlrev_b32 v22, 4, v22')
    a('s_lshl_b32 s%d, s%d, 6'%(S_T0,S_RB))
    a('s_cmp_lt_u32 s%d, 2'%S_PW); a('s_cbranch_scc0 K1Ap_bot')
    a('s_lshl_b32 s%d, s%d, 5'%(S_T1,S_PW)); a('s_add_u32 s%d, s%d, s%d'%(S_T1,S_T1,S_T0))
    for j in range(4):
        a('v_add_u32 v21, s%d, v20'%S_T1); a('v_add_u32 v21, %d, v21'%(8*j)); a('v_mul_u32_u24 v21, 1280, v21'); a('v_add_u32 v%d, v21, v22'%XO4[j])
    a('s_branch K1Ap_xd')
    a.lab('K1Ap_bot')
    a('s_sub_u32 s%d, s%d, 2'%(S_T1,S_PW)); a('s_lshl_b32 s%d, s%d, 5'%(S_T1,S_T1)); a('s_add_u32 s%d, s%d, s%d'%(S_T1,S_T1,S_T0)); a('s_sub_u32 s%d, 2048, s%d'%(S_T1,S_T1))
    for j in range(4):
        a('v_sub_u32 v21, s%d, v20'%S_T1); a('v_subrev_u32 v21, %d, v21'%(8*j))
        if j==0:
            a('v_cmp_eq_u32 vcc, 2048, v21'); a('v_mov_b32 v23, 1024'); a('s_nop 0'); a('v_cndmask_b32 v21, v21, v23, vcc')
        a('v_mul_u32_u24 v21, 1280, v21'); a('v_add_u32 v%d, v21, v22'%XO4[j])
    a.lab('K1Ap_xd')
    a('s_mul_i32 s%d, s%d, 40'%(S_T0,S_PW)); a('v_add_u32 v21, s%d, v20'%S_T0); a('v_mul_u32_u24 v21, 1280, v21'); a('v_add_u32 v%d, v21, v22'%WO1)
    a('s_mov_b32 s%d, 0'%S_SLI)
    krot(a); a('s_lshl_b32 s%d, s%d, 7'%(S_KX,S_T0))
    a('s_waitcnt lgkmcnt(0)')
    srd(a,SRD_X,S_X,S_X+1,2048*1280)
    a('s_cmp_eq_u32 s%d, 0'%S_HALF); a('s_cselect_b32 s%d, s%d, s%d'%(S_T2,S_WDRE,S_WDIM)); a('s_cselect_b32 s%d, s%d, s%d'%(S_T3,S_WDRE+1,S_WDIM+1))
    a('s_mul_i32 s%d, s%d, %d'%(S_T0,S_CT,160*1280)); a('s_add_u32 s%d, s%d, 1280'%(S_T0,S_T0)); add64(a,S_T2,S_T2,'s%d'%S_T0)
    srd(a,SRD_W,S_T2,S_T2+1,160*1280)
    def issueA():
        a('s_lshl_b32 s%d, s%d, 12'%(S_T,S_PW)); a('s_add_u32 s%d, s%d, s%d'%(S_T,S_T,S_SLI))
        for j in range(4):
            a('s_add_u32 m0, s%d, %d'%(S_T,j*1024)); a('s_nop 0')
            a(ld('buffer_load_dwordx4 v%d, s[%d:%d], s%d offen lds'%(XO4[j],SRD_X,SRD_X+3,S_KX)))
        a('s_mul_i32 s%d, s%d, 5120'%(S_T,S_PW)); a('s_add_u32 s%d, s%d, s%d'%(S_T,S_T,S_SLI))
        for j in range(5):
            a('s_add_u32 m0, s%d, %d'%(S_T,16384+j*1024)); a('s_add_u32 s%d, s%d, %d'%(S_SO,S_KX,j*10240))
            a(ld('buffer_load_dwordx4 v%d, s[%d:%d], s%d offen lds'%(WO1,SRD_W,SRD_W+3,S_SO)))
        slot_advance(a,S_SLI,SLA); a('s_add_u32 s%d, s%d, 128'%(S_KX,S_KX))
        a('s_cmp_eq_u32 s%d, 1280'%S_KX); a('s_cselect_b32 s%d, 0, s%d'%(S_KX,S_KX))
    dma_producer(a,'K1Ap',NK1,9,issueA,post=1)
    a('s_branch K1_end')
    a.lab('K1A_work')
    a('s_sub_u32 s%d, s%d, 12'%(S_PW,S_WAVE))
    a('s_waitcnt lgkmcnt(0)')
    late=worker(a,'K1Aw',SLA,False)
    a('s_waitcnt lgkmcnt(0)'); a('s_barrier'); late()
    kernel_tail(a,'K1',0,S_WS)
```

```python
from g2_common import *
import g2_common as g2
import g2_k1 as k1
from g2_k1 import S_X,S_WS,S_WIN,S_DBG,SRD_X,SRD_W,SRD_O,SRD_O2,SRD_G,SRD_D,T_R,T_NMR,POLL_BOUND,NK1,ln1_row,ln1_row_finish,ln1_hook,krot
NS2=5; SL2=26624; TB2=NS2*SL2
T_CS1=TB2; T_CS2=TB2+640; T_PS=TB2+1280; T_R2=TB2+1280+2048; T_NM2=T_R2+512

def gen_z(a):
    a('s_cmp_ge_u32 s%d, 12'%S_WAVE); a('s_cbranch_scc1 Z2_work')
    a('s_cmp_ge_u32 s%d, 8'%S_WAVE); a('s_cbranch_scc1 Z2_prod')
    ZK=16; AC2=40; FA=64; FB=84; XA=[104,105]; WA=106
    a('s_and_b32 s%d, s%d, 3'%(S_PW,S_WAVE)); a('s_lshr_b32 s%d, s%d, 2'%(S_H,S_WAVE))
    a('v_and_b32 v1, 15, v0'); a('v_lshrrev_b32 v2, 4, v0')
    a('v_and_b32 v3, 7, v0'); a('v_xor_b32 v3, v3, v2'); a('v_lshlrev_b32 v3, 4, v3'); a('v_lshl_add_u32 v3, v1, 7, v3')
    a('s_lshl_b32 s%d, s%d, 12'%(S_T0,S_PW)); a('v_add_u32 v%d, s%d, v3'%(XA[0],S_T0)); a('v_xor_b32 v%d, 64, v%d'%(XA[1],XA[0]))
    a('v_lshrrev_b32 v3, 2, v1'); a('v_lshl_add_u32 v3, v2, 2, v3'); a('v_mul_u32_u24 v3, 160, v3'); a('v_and_b32 v4, 3, v1'); a('v_lshl_add_u32 v%d, v4, 3, v3'%WA)
    ln1_row(a)
    for k in range(40): a('v_mov_b32 v%d, 0'%(ZK+k))
    ln1_row_finish(a)
    for k in range(40,48): a('v_mov_b32 v%d, 0'%(ZK+k))
    a('s_lshl_b32 s%d, s%d, 1'%(S_T0,S_PAR)); a('s_add_u32 s%d, s%d, s%d'%(S_T0,S_T0,S_H))
    for t in (1,2,3):
        a('s_cmp_eq_u32 s%d, %d'%(S_T0,t)); a('s_cbranch_scc1 Z2c_%d'%t)
    prs=[(i,p) for i in range(2) for p in range(2)]
    for par in range(2):
      for h in range(2):
        nm='Z2c_%d'%(2*par+h); a.lab(nm)
        n1,t1 = {(0,0):(3,0),(0,1):(2,3),(1,0):(2,0),(1,1):(2,2)}[(par,h)]
        n2,t2 = {(0,0):(2,0),(0,1):(2,2),(1,0):(3,0),(1,1):(2,3)}[(par,h)]
        def zk(i,j): return ZK+(j*2+i)*4
        def a2(i,j): return AC2+(j*2+i)*4
        def mk(nj,role,accf):
            def rd(st,sub):
                F=FA if st==0 else FB; m=[]
                for i in range(2): m.append('ds_read_b128 %s, v%d offset:%d'%(vr(F+i*4,4),XA[sub],i*2048))
                for j in range(nj):
                    for b in range(2): m.append('ds_read_b64_tr_b16 %s, v%d offset:%d'%(vr(F+8+j*4+b*2,2),WA,16384+sub*5120+b*2560+j*32))
                return m
            def mf(st):
                F=FA if st==0 else FB; m=[]
                for j in range(nj):
                    for i in range(2):
                        x=vr(F+i*4,4); w=vr(F+8+j*4,4); c=vr(accf(i,j),4)
                        m.append('v_mfma_f32_16x16x32_bf16 %s, %s, %s, %s'%((c,x,w,c) if role=='z2' else (c,w,x,c)))
                return m
            return rd,mf
        if t1: a('v_add_u32 v%d, %d, v%d'%(WA,t1*32,WA))
        rd,mf=mk(n1,'z2',zk)
        consumer_loop(a,nm+'A',SL2,NK1,XA+[WA],rd,mf,ns=NS2,lag=(h==0),hook=ln1_hook(a),hook_at=2,per=2,dly=max(2*n1,4*n1-len(rd(0,0))//2))
        a('s_barrier')
        if EXP.get('fine') is None: gc.stamp(a,4)
        C0=108;C1=110;ONE=112; TMP=[64,66,68,70]; RR=72; NM=80; CS=88; CSb=92; SUM=96; SQ=114
        a('v_mov_b32 v%d, 0x%x'%(C0,f2u(GC0))); a('v_mov_b32 v%d, 0x%x'%(C0+1,f2u(GC0)))
        a('v_mov_b32 v%d, 0x%x'%(C1,f2u(GC1))); a('v_mov_b32 v%d, 0x%x'%(C1+1,f2u(GC1)))
        a('v_mov_b32 v%d, 1.0'%ONE); a('v_mov_b32 v%d, 1.0'%(ONE+1))
        a('s_lshl_b32 s%d, s%d, 7'%(S_T0,S_PW)); a('v_lshlrev_b32 v3, 4, v2'); a('v_add_u32 v3, s%d, v3'%S_T0); a('v_add_u32 v3, %d, v3'%T_R)
        for i in range(2):
            a('ds_read_b128 %s, v3 offset:%d'%(vr(RR+4*i,4),i*64)); a('ds_read_b128 %s, v3 offset:%d'%(vr(NM+4*i,4),512+i*64))
        a('v_lshlrev_b32 v4, 2, v1'); a('v_add_u32 v4, %d, v4'%(T_CS1+t1*64))
        for j in range(n1):
            a('ds_read_b32 v%d, v4 offset:%d'%(CS+j,j*64)); a('ds_read_b32 v%d, v4 offset:%d'%(CSb+j,320+j*64))
        for k in range(8): a('v_mov_b32 v%d, 0'%(SUM+k)); a('v_mov_b32 v%d, 0'%(SQ+k))
        a('s_waitcnt lgkmcnt(0)')
        for j in range(n1): a('v_add_f32 v%d, v%d, v%d'%(CS+j,CS+j,CSb+j))
        for j in range(n1):
            csr=CS+j; cspair=vr(csr&~1,2); sel=csr&1
            for k,(i,p) in enumerate(prs): a('v_pk_mul_f32 %s, %s, %s op_sel:[0,%d] op_sel_hi:[1,%d]'%(vr(TMP[k],2),vr(NM+4*i+2*p,2),cspair,sel,sel))
            for k,(i,p) in enumerate(prs):
                r=zk(i,j)+2*p; a('v_pk_fma_f32 %s, %s, %s, %s'%(vr(r,2),vr(r,2),vr(RR+4*i+2*p,2),vr(TMP[k],2)))
            gelu_pairs(a,[zk(i,j)+2*p for (i,p) in prs],TMP,C0,C1,ONE)
            for k,(i,p) in enumerate(prs):
                r=zk(i,j)+2*p
                a('v_pk_add_f32 %s, %s, %s'%(vr(SUM+4*i+2*p,2),vr(SUM+4*i+2*p,2),vr(r,2)))
                a('v_pk_fma_f32 %s, %s, %s, %s'%(vr(SQ+4*i+2*p,2),vr(r,2),vr(r,2),vr(SQ+4*i+2*p,2)))
        for sh in (8,4,2,1):
            for k in range(8): a('v_add_f32_dpp v%d, v%d, v%d row_ror:%d row_mask:0xf bank_mask:0xf'%(SUM+k,SUM+k,SUM+k,sh))
            for k in range(8): a('v_add_f32_dpp v%d, v%d, v%d row_ror:%d row_mask:0xf bank_mask:0xf'%(SQ+k,SQ+k,SQ+k,sh))
        a('s_lshl_b32 s%d, s%d, 7'%(S_T0,S_PW)); a('v_lshlrev_b32 v3, 4, v2'); a('v_add_u32 v3, s%d, v3'%S_T0); a('v_add_u32 v3, %d, v3'%(T_PS+h*512))
        for i in range(2):
            a('ds_write_b128 v3, %s offset:%d'%(vr(SUM+4*i,4),i*64)); a('ds_write_b128 v3, %s offset:%d'%(vr(SQ+4*i,4),1024+i*64))
        if t2!=t1: a('v_add_u32 v%d, %d, v%d'%(WA,(t2-t1)*32,WA) if t2>t1 else 'v_subrev_u32 v%d, %d, v%d'%(WA,(t1-t2)*32,WA))
        a('s_waitcnt lgkmcnt(0)')
        def norm_hook(par=par,h=h,n1=n1,t1=t1):
            R2=108; N2=116; PK=124
            a('s_lshl_b32 s%d, s%d, 7'%(S_T1,S_PW)); a('v_lshlrev_b32 v3, 4, v2'); a('v_add_u32 v3, s%d, v3'%S_T1); a('v_add_u32 v3, %d, v3'%T_R2)
            for i in range(2):
                a('ds_read_b128 %s, v3 offset:%d'%(vr(R2+4*i,4),i*64)); a('ds_read_b128 %s, v3 offset:%d'%(vr(N2+4*i,4),512+i*64))
            a('s_mul_i32 s%d, s%d, %d'%(S_T1,S_CT,Z2_CT)); a('s_lshl_b32 s%d, s%d, 1'%(S_T2,S_RB)); a('s_lshr_b32 s%d, s%d, 1'%(S_T3,S_PW))
            a('s_add_u32 s%d, s%d, s%d'%(S_T2,S_T2,S_T3)); a('s_mul_i32 s%d, s%d, 18432'%(S_T2,S_T2)); a('s_add_u32 s%d, s%d, s%d'%(S_T1,S_T1,S_T2))
            a('s_and_b32 s%d, s%d, 1'%(S_T2,S_PW)); a('s_mul_i32 s%d, s%d, 9216'%(S_T2,S_T2)); a('s_add_u32 s%d, s%d, s%d'%(S_T1,S_T1,S_T2))
            a('s_add_u32 s%d, s%d, %d'%(S_SO,S_T1,((0 if par==0 else 5)+t1)*1024))
            srd(a,SRD_O,S_WS,S_WS+1,6*Z2_CT)
            a('v_lshlrev_b32 v4, 4, v0')
            a('s_waitcnt lgkmcnt(0)')
            for j in range(n1):
                for i in range(2):
                    for r in range(4): a('v_fma_f32 v%d, v%d, v%d, v%d'%(zk(i,j)+r,zk(i,j)+r,R2+4*i+r,N2+4*i+r))
                o=zk(0,j)
                for k,(i,p) in enumerate(prs):
                    r=zk(i,j)+2*p; a('v_cvt_pk_bf16_f32 v%d, v%d, v%d'%(o+k,r,r+1))
                a('s_nop 1')
                a('v_permlane32_swap_b32 v%d, v%d'%(o,o+2)); a('v_permlane32_swap_b32 v%d, v%d'%(o+1,o+3)); a('s_nop 1')
                a('v_permlane16_swap_b32 v%d, v%d'%(o,o+2)); a('v_permlane16_swap_b32 v%d, v%d'%(o+1,o+3))
                a('buffer_store_dwordx4 %s, v4, s[%d:%d], s%d offen offset:%d%s'%(vr(o,4),SRD_O,SRD_O+3,S_SO,j*1024,g2.STF))
        rd,mf=mk(n2,'z1',a2)
        consumer_loop(a,nm+'B',SL2,NK1,XA+[WA],rd,mf,ns=NS2,lag=(h==0),hook={7:norm_hook},hook_at=7,per=2,dly=max(2*n2,4*n2-len(rd(0,0))//2))
        a('s_barrier')
        if EXP.get('fine') is None: gc.stamp(a,5) if False else None
        C0=108;C1=110;ONE=112; TMP=[64,66,68,70]; RR=72; NM=74; CS=76; CSb=88; VO=114
        a('v_mov_b32 v%d, 0x%x'%(C0,f2u(GC0))); a('v_mov_b32 v%d, 0x%x'%(C0+1,f2u(GC0)))
        a('v_mov_b32 v%d, 0x%x'%(C1,f2u(GC1))); a('v_mov_b32 v%d, 0x%x'%(C1+1,f2u(GC1)))
        a('v_mov_b32 v%d, 1.0'%ONE); a('v_mov_b32 v%d, 1.0'%(ONE+1))
        a('s_lshl_b32 s%d, s%d, 7'%(S_T0,S_PW)); a('v_lshlrev_b32 v3, 2, v1'); a('v_add_u32 v3, s%d, v3'%S_T0); a('v_add_u32 v3, %d, v3'%T_R)
        for i in range(2):
            a('ds_read_b32 v%d, v3 offset:%d'%(RR+i,i*64)); a('ds_read_b32 v%d, v3 offset:%d'%(NM+i,512+i*64))
        a('v_lshlrev_b32 v4, 4, v2'); a('v_add_u32 v4, %d, v4'%(T_CS2+t2*64))
        for j in range(n2):
            a('ds_read_b128 %s, v4 offset:%d'%(vr(CS+4*j,4),j*64)); a('ds_read_b128 %s, v4 offset:%d'%(vr(CSb+4*j,4),320+j*64))
        a('s_mul_i32 s%d, s%d, 6'%(S_T0,S_RB)); a('s_add_u32 s%d, s%d, s%d'%(S_T0,S_T0,S_CT)); a('s_lshl_b32 s%d, s%d, 3'%(S_T0,S_T0))
        a('s_add_u32 s%d, s%d, s%d'%(S_T0,S_T0,S_PW)); a('s_add_u32 s%d, s%d, %d'%(S_T0,S_T0,0 if par==1 else 4)); a('s_mul_i32 s%d, s%d, 5120'%(S_SO,S_T0))
        a('s_add_u32 s%d, s%d, %d'%(S_SO,S_SO,t2*1024))
        add64(a,S_T2,S_WS,WS_Z1); srd(a,SRD_O,S_T2,S_T2+1,96*40960)
        a('v_lshlrev_b32 v%d, 4, v0'%VO)
        a('s_waitcnt lgkmcnt(0)')
        for j in range(n2):
            for p in range(2): a('v_pk_add_f32 %s, %s, %s'%(vr(CS+4*j+2*p,2),vr(CS+4*j+2*p,2),vr(CSb+4*j+2*p,2)))
        for j in range(n2):
            for k,(i,p) in enumerate(prs): a('v_pk_mul_f32 %s, %s, %s op_sel:[0,%d] op_sel_hi:[1,%d]'%(vr(TMP[k],2),vr(CS+4*j+2*p,2),vr(NM,2),i,i))
            for k,(i,p) in enumerate(prs):
                r=a2(i,j)+2*p; a('v_pk_fma_f32 %s, %s, %s, %s op_sel:[0,%d,0] op_sel_hi:[1,%d,1]'%(vr(r,2),vr(r,2),vr(RR,2),vr(TMP[k],2),i,i))
            gelu_pairs(a,[a2(i,j)+2*p for (i,p) in prs],TMP,C0,C1,ONE)
            o=a2(0,j)
            for k,(i,p) in enumerate(prs):
                r=a2(i,j)+2*p; a('v_cvt_pk_bf16_f32 v%d, v%d, v%d'%(o+k,r,r+1))
            a('buffer_store_dwordx4 %s, v%d, s[%d:%d], s%d offen offset:%d%s'%(vr(o,4),VO,SRD_O,SRD_O+3,S_SO,j*1024,g2.STF))
        a('s_branch K1_end')
    a.lab('Z2_prod')
    XO=2; WO=[3,4,5]; S_B2=S_SO2
    a('s_sub_u32 s%d, s%d, 8'%(S_PW,S_WAVE))
    a('v_lshrrev_b32 v20, 3, v0'); a('s_lshl_b32 s%d, s%d, 5'%(S_T0,S_PW)); a('v_add_u32 v21, s%d, v20'%S_T0); a('v_mul_u32_u24 v21, 1280, v21')
    a('v_and_b32 v22, 7, v0'); a('v_xor_b32 v22, v22, v20'); a('v_lshl_add_u32 v%d, v22, 4, v21'%XO)
    for i in range(3):
        a('s_lshl_b32 s%d, s%d, 6'%(S_T0,S_PW)); a('s_add_u32 s%d, s%d, %d'%(S_T0,S_T0,256*i)); a('v_add_u32 v20, s%d, v0'%S_T0)
        a('v_mul_u32_u24 v21, 6554, v20'); a('v_lshrrev_b32 v21, 16, v21'); a('v_mul_u32_u24 v22, 10, v21'); a('v_sub_u32 v22, v20, v22')
        a('v_and_b32 v26, 0x23, v21'); a('v_bfe_u32 v27, v21, 2, 2'); a('v_lshl_or_b32 v26, v27, 3, v26'); a('v_bfe_u32 v27, v21, 4, 1'); a('v_lshl_or_b32 v21, v27, 2, v26')
        a('v_mul_u32_u24 v21, 3456, v21'); a('v_lshl_add_u32 v%d, v22, 4, v21'%WO[i])
    a('s_mul_i32 s%d, s%d, 288'%(S_T0,S_CT)); a('s_mul_i32 s%d, s%d, 160'%(S_T1,S_PAR)); a('s_add_u32 s%d, s%d, s%d'%(S_G,S_T0,S_T1)); a('s_add_u32 s%d, s%d, 1728'%(S_G,S_G))
    a('s_sub_u32 s%d, 160, s%d'%(S_T1,S_T1)); a('s_add_u32 s%d, s%d, s%d'%(S_B2,S_T0,S_T1))
    a('s_mov_b32 s%d, 0'%S_SLI)
    a('s_mov_b32 s%d, s%d'%(S_EX,S_G))
    a('s_lshr_b32 s%d, s%d, 1'%(S_G,S_XCD)); krot(a); a('s_mov_b32 s%d, s%d'%(S_G,S_EX))
    a('s_lshl_b32 s%d, s%d, 7'%(S_KX,S_T0)); a('s_mul_i32 s%d, s%d, %d'%(S_KW,S_T0,64*3456))
    a('s_waitcnt lgkmcnt(0)')
    a('s_mul_i32 s%d, s%d, %d'%(S_T0,S_RB,128*1280)); add64(a,S_X,S_X,'s%d'%S_T0); srd(a,SRD_X,S_X,S_X+1,128*1280)
    srd(a,SRD_W,S_WIN,S_WIN+1,640*3456)
    a('s_lshl_b32 s%d, s%d, 12'%(S_J,S_PW)); a('s_lshl_b32 s%d, s%d, 10'%(S_HALF,S_PW))
    def issue():
        a('s_add_u32 s%d, s%d, s%d'%(S_T,S_J,S_SLI))
        for j in range(4):
            a('s_add_u32 m0, s%d, %d'%(S_T,j*1024)); a('s_add_u32 s%d, s%d, %d'%(S_SO,S_KX,j*10240))
            a(ld('buffer_load_dwordx4 v%d, s[%d:%d], s%d offen lds'%(XO,SRD_X,SRD_X+3,S_SO)))
        a('s_add_u32 s%d, s%d, s%d'%(S_T,S_HALF,S_SLI)); a('s_add_u32 s%d, s%d, s%d'%(S_SO,S_KW,S_G))
        lab=a.newlab('Z2p_s')
        for i in range(3):
            if i==2: a('s_cmp_lt_u32 s%d, 2'%S_PW); a('s_cbranch_scc0 %s'%lab)
            a('s_add_u32 m0, s%d, %d'%(S_T,16384+i*4096)); a('s_nop 0')
            a(ld('buffer_load_dwordx4 v%d, s[%d:%d], s%d offen lds'%(WO[i],SRD_W,SRD_W+3,S_SO)))
        a.lab(lab)
        slot_advance(a,S_SLI,SL2,NS2); a('s_add_u32 s%d, s%d, 128'%(S_KX,S_KX)); a('s_add_u32 s%d, s%d, %d'%(S_KW,S_KW,64*3456))
        a('s_cmp_eq_u32 s%d, 1280'%S_KX); a('s_cselect_b32 s%d, 0, s%d'%(S_KX,S_KX)); a('s_cselect_b32 s%d, 0, s%d'%(S_KW,S_KW))
    c=6; D=NS2-1; N=2*NK1
    gc.stamp(a,1)
    issue(); issue()
    gc.stamp(a,2)
    a('s_waitcnt vmcnt(%d)'%c); gc.stamp(a,3); a('s_barrier')
    for _ in range(D-1): issue()
    def steps(i0,i1,name):
        if i1<=i0: return
        a('s_mov_b32 s%d, %d'%(S_I,i1-i0)); a.lab(name)
        a('s_waitcnt vmcnt(%d)'%((D-1)*c)); a('s_barrier'); issue()
        a('s_sub_u32 s%d, s%d, 1'%(S_I,S_I)); a('s_cmp_lg_u32 s%d, 0'%S_I); a('s_cbranch_scc1 %s'%name)
    steps(1,NK1-D,'Z2p_l1')
    a('s_mov_b32 s%d, s%d'%(S_G,S_B2))
    steps(NK1-D,NK1,'Z2p_l2')
    a('s_barrier')
    steps(NK1,N-D,'Z2p_l3')
    for r in range(D-1,-1,-1):
        a('s_waitcnt vmcnt(%d)'%(r*c)); a('s_barrier')
    gc.stamp(a,4)
    a('s_barrier')
    a('s_branch K1_end')
    a.lab('Z2_work')
    a('s_sub_u32 s%d, s%d, 12'%(S_PW,S_WAVE))
    a('s_waitcnt lgkmcnt(0)')
    k1.worker2(a)
    a('s_branch K1_end')
```

```python
from gen_common import *
import gen_common as gc
import struct
def f2u(f): return struct.unpack('<I',struct.pack('<f',f))[0]
WS_GR = 0x08D0000
WS_FG  = 0x08C4000
WS_FL  = 0x08CC000
FUSED=[False]
WS_LN1 = 0x08C8000
NS=4
S_WAVE=32; S_XCD=33; S_J=34; S_G=35; S_HALF=36; S_RB=37; S_CT=38; S_PW=39; S_H=40
S_I=41; S_SLI=42; S_SLC=43; S_KX=44; S_KW=45; S_T=46; S_SO=47; S_T0=48; S_T1=49; S_T2=50; S_T3=51; S_SO2=52; S_PAR=53
S_EX=54
EXP={}
LDF=''
STF=''

def srd(a,d,lo,hi,size):
    a('s_mov_b32 s%d, s%d'%(d,lo)); a('s_mov_b32 s%d, s%d'%(d+1,hi))
    if isinstance(size,int): a('s_mov_b32 s%d, 0x%x'%(d+2,size))
    else: a('s_mov_b32 s%d, %s'%(d+2,size))
    a('s_mov_b32 s%d, 0x00020000'%(d+3))
def add64(a,dlo,slo,off):
    o = off if isinstance(off,str) else '0x%x'%off
    a('s_add_u32 s%d, s%d, %s'%(dlo,slo,o)); a('s_addc_u32 s%d, s%d, 0'%(dlo+1,slo+1))
def slot_advance(a,s,SL,ns=NS):
    a('s_add_u32 s%d, s%d, %d'%(s,s,SL)); a('s_cmp_eq_u32 s%d, %d'%(s,ns*SL)); a('s_cselect_b32 s%d, 0, s%d'%(s,s))

def dma_producer(a,name,n,c,issue,tail=None,phase=1,s_ws=6,post=0):
    if EXP.get('pprio'): a('s_setprio %d'%EXP['pprio'])
    D=EXP.get('depth_'+name,EXP.get('depth',3))
    dep_barrier(a,name,phase,s_ws,poller=True)
    gc.stamp(a,1)
    P=min(EXP.get('pro%d'%phase,EXP.get('pro',2)),D+1)
    for _ in range(P): issue()
    gc.stamp(a,2)
    a('s_waitcnt vmcnt(%d)'%min(63,(P-1)*c)); gc.stamp(a,3); a('s_barrier')
    for _ in range(D+1-P): issue()
    a('s_mov_b32 s%d, %d'%(S_I,n-1-D))
    a.lab(name+'_loop')
    a('s_waitcnt vmcnt(%d)'%min(63,(D-1)*c)); a('s_barrier')
    issue()
    a('s_sub_u32 s%d, s%d, 1'%(S_I,S_I)); a('s_cmp_lg_u32 s%d, 0'%S_I); a('s_cbranch_scc1 %s_loop'%name)
    for r in range(D-1,-1,-1):
        a('s_waitcnt vmcnt(%d)'%min(63,r*c)); a('s_barrier')
    gc.stamp(a,4)
    if FUSED[0]:
        for _ in range(post): a('s_barrier')

def consumer_loop(a,name,SL,n,addr_regs,reads,mfmas,ns=NS,hook=None,hook_at=2,lag=False,nsub=2,per=1,dly=None,phase=1):
    def R(s): return [] if EXP.get('noread') else reads(s,s)
    def M(s): return [] if EXP.get('nomfma') else mfmas(s)
    book=['s_mov_b32 s%d, s%d'%(S_T0,S_SLC),'s_add_u32 s%d, s%d, %d'%(S_SLC,S_SLC,SL),'s_cmp_eq_u32 s%d, %d'%(S_SLC,ns*SL),'s_cselect_b32 s%d, 0, s%d'%(S_SLC,S_SLC),
          's_sub_u32 s%d, s%d, s%d'%(S_T0,S_SLC,S_T0),'s_add_u32 s%d, s%d, 1'%(S_I,S_I)]
    upd=['v_add_u32 v%d, s%d, v%d'%(r,S_T0,r) for r in addr_regs]
    a('s_mov_b32 s%d, 0'%S_I); a('s_mov_b32 s%d, 0'%S_SLC)
    dep_barrier(a,name,phase,6)
    if EXP.get('fine') is None: gc.stamp(a,1)
    if not lag:
        a('s_barrier')
        if EXP.get('fine') is None: gc.stamp(a,2)
        a.lab(name+'_loop')
        fine(a,1,name)
        if not EXP.get('noprio'): a('s_setprio 1')
        for s_ in range(nsub):
            for x in R(s_): a(x)
        if not EXP.get('noprio'): a('s_setprio 0')
        fine(a,2,name)
        for x in book: a(x)
        for x in upd: a(x)
        emit_hooks(a,name,hook,hook_at)
        if EXP.get('fine') is not None: a('s_sub_u32 s%d, s%d, 1'%(S_I,S_I))
        for s_ in range(nsub):
            later=sum(len(R(t)) for t in range(s_+1,nsub))
            a('s_waitcnt lgkmcnt(%d)'%(0 if EXP.get('fine') is not None else min(later,15)))
            if s_==0: fine(a,3,name)
            for x in M(s_): a(x)
        fine(a,4,name)
        if EXP.get('fine') is not None: a('s_add_u32 s%d, s%d, 1'%(S_I,S_I))
        a('s_cmp_lt_u32 s%d, %d'%(S_I,n))
        a('s_cbranch_scc0 %s_done'%name)
        a('s_barrier')
        a('s_branch %s_loop'%name)
        a.lab(name+'_done')
    else:
        a('s_barrier')
        if EXP.get('fine') is None: gc.stamp(a,2)
        for s_ in range(nsub):
            for x in R(s_): a(x)
        for x in book: a(x)
        for x in upd: a(x)
        if isinstance(hook,dict) and 1 in hook: hook[1]()
        a('s_waitcnt lgkmcnt(0)')
        a.lab(name+'_loop')
        a('s_barrier')
        fine(a,1,name)
        if EXP.get('noilv'):
            for s_ in range(nsub):
                for x in M(s_): a(x)
            fine(a,2,name)
            for s_ in range(nsub):
                for x in R(s_): a(x)
            fine(a,3,name)
        else:
            Ms=[M(s_) for s_ in range(nsub)]; allM=[m for x in Ms for m in x]
            ends=[sum(len(Ms[t]) for t in range(s_+1)) for s_ in range(nsub)]
            pend=[]
            if dly is None: dly=max(ends[0],len(allM)-len(R(0))) if allM else 0
            nxt=0
            for k_,m in enumerate(allM):
                a(m)
                while nxt<nsub-1 and k_+1>=ends[nxt]:
                    pend+=R(nxt); nxt+=1
                if k_+1>=dly:
                    for _ in range(min(per,len(pend))): a(pend.pop(0))
            fine(a,2,name)
            for x in pend: a(x)
            for x in R(nsub-1): a(x)
            fine(a,3,name)
        for x in book: a(x)
        for x in upd: a(x)
        emit_hooks(a,name,({k_:v_ for k_,v_ in hook.items() if k_!=1} if isinstance(hook,dict) else hook),hook_at)
        a('s_waitcnt lgkmcnt(0)')
        if EXP.get('fine') is not None:
            a('s_sub_u32 s%d, s%d, 1'%(S_I,S_I)); fine(a,4,name); a('s_add_u32 s%d, s%d, 1'%(S_I,S_I))
        a('s_cmp_lt_u32 s%d, %d'%(S_I,n))
        a('s_cbranch_scc1 %s_loop'%name)
        for s_ in range(nsub):
            for x in M(s_): a(x)
    if EXP.get('fine') is None: gc.stamp(a,3)

def emit_hooks(a,name,hook,hook_at):
    if hook is None: return
    H=hook if isinstance(hook,dict) else {hook_at:hook}
    for k,(at,fn) in enumerate(sorted(H.items())):
        a('s_cmp_eq_u32 s%d, %d'%(S_I,at)); a('s_cbranch_scc0 %s_nh%d'%(name,k)); fn(); a.lab('%s_nh%d'%(name,k))
def fine(a,k,name):
    if EXP.get('fine') is not None and gc.STAMPS:
        l='%s_f%d'%(name,k)
        a('s_cmp_eq_u32 s%d, %d'%(S_I,EXP['fine'])); a('s_cbranch_scc0 %s'%l); a('s_memtime s[%d:%d]'%(64+2*k,65+2*k)); a.lab(l)
def mix(a,M,F,per=2,lead=0):
    F=list(F)
    for _ in range(min(lead,len(F))): a(F.pop(0))
    for m in M:
        a(m)
        for _ in range(min(per,len(F))): a(F.pop(0))
    for x in F: a(x)

GC0=-2.0*0.7978845608028654*1.4426950408889634
GC1=GC0*0.044715
def gelu_pairs(a,pre,tmp,C0,C1,ONE):
    n=len(pre)
    for k in range(n): a('v_pk_mul_f32 %s, %s, %s'%(vr(tmp[k],2),vr(pre[k],2),vr(pre[k],2)))
    for k in range(n): a('v_pk_fma_f32 %s, %s, %s, %s'%(vr(tmp[k],2),vr(tmp[k],2),vr(C1,2),vr(C0,2)))
    for k in range(n): a('v_pk_mul_f32 %s, %s, %s'%(vr(tmp[k],2),vr(tmp[k],2),vr(pre[k],2)))
    for k in range(n):
        a('v_exp_f32 v%d, v%d'%(tmp[k],tmp[k])); a('v_exp_f32 v%d, v%d'%(tmp[k]+1,tmp[k]+1))
    for k in range(n): a('v_pk_add_f32 %s, %s, %s'%(vr(tmp[k],2),vr(tmp[k],2),vr(ONE,2)))
    for k in range(n):
        a('v_rcp_f32 v%d, v%d'%(tmp[k],tmp[k])); a('v_rcp_f32 v%d, v%d'%(tmp[k]+1,tmp[k]+1))
    for k in range(n): a('v_pk_mul_f32 %s, %s, %s'%(vr(pre[k],2),vr(pre[k],2),vr(tmp[k],2)))
def kernel_head(a,kname,pre,nwg=256):
    KCUR[0]=int(pre[1])
    if FUSED[0] and pre!='K1':
        a.lab(pre+'_entry')
        if not gc.LIGHT: gc.stamp_init(a)
        return
    a.raw('.p2align 8'); a.raw('.type %s,@function'%kname); a.lab(kname)
    a('s_cmp_ge_u32 s2, %d'%nwg); a('s_cbranch_scc1 %s_exit'%('K3' if FUSED[0] else pre)); gc.stamp_init(a)
def wave_setup(a,pre):
    if FUSED[0] and pre!='K1': return
    a('v_lshrrev_b32 v1, 6, v0'); a('v_and_b32 v0, 63, v0'); a('s_nop 0')
    a('v_readfirstlane_b32 s%d, v1'%S_WAVE)
def kernel_tail(a,pre,kidx,s_ws):
    a.lab(pre+'_end')
    if FUSED[0] and pre!='K3':
        a('s_waitcnt vmcnt(0) lgkmcnt(0)'); a('s_barrier')
        l='%s_fl'%pre
        a('s_cmp_eq_u32 s%d, 0'%S_WAVE); a('s_cbranch_scc0 %s'%l)
        add64(a,88,s_ws,WS_FL+(0x2000 if pre=='K2' else 0)); srd(a,92,88,89,0x2000)
        a('s_lshl_b32 s88, s2, 5'); a('v_mov_b32 v2, 1'); a('v_mov_b32 v3, 0'); a('s_mov_b32 exec_lo, 1'); a('s_mov_b32 exec_hi, 0')
        a('buffer_store_dword v2, v3, s[92:95], s88 offen sc1'); a('s_mov_b64 exec, -1')
        a.lab(l)
        if not gc.LIGHT: gc.stamp_dump(a,kidx,s_ws,S_WAVE)
        a('s_setprio 0')
        return
    gc.stamp_dump(a,kidx,s_ws,S_WAVE); a.lab(pre+'_exit'); a('s_endpgm')
def dep_poll(a,name,phase,s_ws):
    add64(a,88,s_ws,WS_FL+(0x2000 if phase==3 else 0)); srd(a,92,88,89,0x2000)
    a('s_and_b32 s88, s2, 7'); a('s_lshr_b32 s89, s2, 3')
    a('v_mov_b32 v31, 0x7fffff00')
    if phase==2:
        a('s_cmp_ge_u32 s89, 24'); a('s_cbranch_scc1 %s_t'%name)
        a('s_mul_i32 s90, s89, 43'); a('s_lshr_b32 s90, s90, 8'); a('s_mul_i32 s90, s90, 6'); a('s_sub_u32 s90, s89, s90')
        a('s_cmp_ge_u32 s90, 3'); a('s_cselect_b32 s91, 1, 0'); a('s_cselect_b32 s89, 3, 0'); a('s_sub_u32 s90, s90, s89'); a('s_lshl_b32 s90, s90, 1')
        a('v_lshrrev_b32 v28, 3, v0'); a('v_lshlrev_b32 v28, 1, v28'); a('v_add_u32 v28, s91, v28')
        a('v_bfe_u32 v29, v0, 1, 2'); a('v_mul_u32_u24 v29, 6, v29'); a('v_and_b32 v30, 1, v0'); a('v_add_u32 v29, v29, v30'); a('v_add_u32 v29, s90, v29')
        a('v_lshl_add_u32 v28, v29, 3, v28'); a('v_cmp_gt_u32 vcc, 32, v0'); a('s_branch %s_go'%name)
        a.lab(name+'_t')
        a('s_sub_u32 s89, s89, 24'); a('s_and_b32 s89, s89, 3'); a('s_lshr_b32 s89, s89, 1'); a('s_add_u32 s89, s89, 24'); a('s_and_b32 s88, s88, 1')
        a('v_lshrrev_b32 v28, 2, v0'); a('v_lshlrev_b32 v28, 1, v28'); a('v_add_u32 v28, s88, v28')
        a('v_and_b32 v29, 3, v0'); a('v_lshlrev_b32 v29, 1, v29'); a('v_add_u32 v29, s89, v29')
        a('v_lshl_add_u32 v28, v29, 3, v28'); a('v_cmp_gt_u32 vcc, 16, v0')
        a.lab(name+'_go')
        a('v_lshlrev_b32 v28, 5, v28'); a('s_nop 1'); a('v_cndmask_b32 v28, v31, v28, vcc'); a('v_cndmask_b32_e64 v27, 1, 0, vcc')
        nset=1
    else:
        a('s_lshl_b32 s88, s88, 2'); a('s_lshr_b32 s89, s89, 3'); a('s_add_u32 s88, s88, s89'); a('s_lshr_b32 s88, s88, 1')
        a('s_lshr_b32 s89, s88, 2'); a('s_lshl_b32 s89, s89, 1'); a('s_and_b32 s88, s88, 3'); a('s_mul_i32 s88, s88, 6')
        a('v_and_b32 v28, 1, v0'); a('v_add_u32 v28, s89, v28'); a('v_lshrrev_b32 v29, 1, v0'); a('v_add_u32 v29, s88, v29'); a('v_lshl_add_u32 v28, v29, 3, v28')
        a('v_cmp_gt_u32 vcc, 12, v0'); a('v_lshlrev_b32 v28, 5, v28'); a('s_nop 0'); a('v_cndmask_b32 v28, v31, v28, vcc'); a('v_cndmask_b32_e64 v27, 1, 0, vcc')
        a('v_and_b32 v26, 7, v0'); a('v_lshrrev_b32 v29, 3, v0'); a('v_add_u32 v29, 24, v29'); a('v_lshl_add_u32 v26, v29, 3, v26'); a('v_lshlrev_b32 v26, 5, v26')
        nset=2
    a('s_mov_b32 s90, 0')
    def iss(r0,r1):
        a('buffer_load_dword v%d, v28, s[92:95], 0 offen sc1'%r0)
        if nset==2: a('buffer_load_dword v%d, v26, s[92:95], 0 offen sc1'%r1)
    def chk(r0,r1):
        a('v_or_b32 v%d, v%d, v27'%(r0,r0))
        if nset==2: a('v_min_u32 v%d, v%d, v%d'%(r0,r0,r1))
        a('v_cmp_ne_u32 vcc, 1, v%d'%r0); a('s_nop 1'); a('s_cmp_eq_u64 vcc, 0'); a('s_cbranch_scc1 %s_ok'%name)
    iss(25,24)
    a.lab(name+'_lp')
    iss(23,22); a('s_waitcnt vmcnt(%d)'%nset); chk(25,24)
    iss(21,20); a('s_waitcnt vmcnt(%d)'%nset); chk(23,22)
    iss(25,24); a('s_waitcnt vmcnt(%d)'%nset); chk(21,20)
    a('s_add_u32 s90, s90, 1'); a('s_cmp_lt_u32 s90, 2000'); a('s_cbranch_scc1 %s_lp'%name)
    a.lab(name+'_ok')
    a('s_waitcnt vmcnt(0)')
def dep_barrier(a,name,phase,s_ws,poller=False):
    if not FUSED[0] or phase==1: return
    if poller:
        l=name+'_np'; a('s_cmp_eq_u32 s%d, 8'%S_WAVE); a('s_cbranch_scc0 %s'%l); dep_poll(a,name+'_dp',phase,s_ws); a.lab(l)
    a('s_barrier')

KCUR=[1]
LDK={1:'',2:'',3:''}
class AsmF(Asm):
    def __call__(s,txt):
        import g2_common as g
        if g.EXP.get('nodma') and txt.startswith('buffer_load') and txt.rstrip().endswith('lds'): return
        Asm.__call__(s,txt)
def ld(txt):
    import g2_common as g
    return txt.replace(' lds', g.LDK[g.KCUR[0]]+' lds')

def pf_loop(a,name,n,pf,d1,d2,extra_barriers=0):
    D=EXP.get('pfd',7); pol=LDK[KCUR[0]]
    a('s_mov_b32 s%d, %d'%(S_KX,d1)); a('s_mov_b32 s%d, %d'%(S_KW,d2))
    for _ in range(min(D,n)-1): pf(pol)
    m=max(n-D,0)
    if m>0:
        a('s_mov_b32 s%d, %d'%(S_I,m))
        a.lab(name+'_loop')
        a('s_barrier'); pf(pol)
        a('s_sub_u32 s%d, s%d, 1'%(S_I,S_I)); a('s_cmp_lg_u32 s%d, 0'%S_I); a('s_cbranch_scc1 %s_loop'%name)
    for _ in range(n-m+extra_barriers): a('s_barrier')

def poll_rbs(a,name,s_ws,s_ct,s_kh,s_tb,grp,R=24,part='both'):
    AD,T1,T2,MK,OB,DT=R+4,R+5,R+6,R+3,R+7,R+1
    if part in ('both','issue'):
        add64(a,88,s_ws,WS_FL); srd(a,92,88,89,0x2000)
        base0={1:0,2:6,3:4}[grp]; base1={1:12,2:8,3:10}[grp]; nrb={1:4,2:2,3:2}[grp]; n=2*nrb
        a('s_cmp_eq_u32 s%d, 0'%s_kh); a('s_cselect_b32 s88, %d, %d'%(base0,base1))
        a('v_lshrrev_b32 v%d, 1, v0'%AD); a('v_add_u32 v%d, s88, v%d'%(AD,AD))
        if grp==3:
            a('v_mov_b32 v%d, s%d'%(T1,s_tb)); a('v_cmp_le_u32 vcc, %d, v0'%n); a('s_nop 1'); a('v_cndmask_b32 v%d, v%d, v%d, vcc'%(AD,AD,T1)); n+=2
        a('v_sub_u32 v%d, 15, v%d'%(T1,AD)); a('v_cmp_gt_u32 vcc, 8, v%d'%AD); a('v_and_b32 v%d, 1, v%d'%(T2,AD)); a('s_nop 0'); a('v_cndmask_b32 v%d, v%d, v%d, vcc'%(T1,T1,AD)); a('v_lshrrev_b32 v%d, 1, v%d'%(T1,T1))
        a('v_cndmask_b32_e64 v%d, 2, 0, vcc'%MK); a('v_add_u32 v%d, v%d, v%d'%(T2,T2,MK))
        a('s_cmp_ge_u32 s%d, 3'%s_ct); a('s_cselect_b32 s89, 1, 0'); a('s_cselect_b32 s90, 3, 0'); a('s_sub_u32 s90, s%d, s90'%s_ct); a('s_lshl_b32 s90, s90, 1')
        a('v_mul_u32_u24 v%d, 6, v%d'%(T2,T2)); a('v_and_b32 v%d, 1, v0'%MK); a('v_add_u32 v%d, v%d, v%d'%(T2,T2,MK)); a('v_add_u32 v%d, s90, v%d'%(T2,T2))
        a('v_lshlrev_b32 v%d, 1, v%d'%(T1,T1)); a('v_add_u32 v%d, s89, v%d'%(T1,T1)); a('v_lshl_add_u32 v%d, v%d, 3, v%d'%(AD,T2,T1)); a('v_lshlrev_b32 v%d, 5, v%d'%(AD,AD))
        a('v_mov_b32 v%d, 0x7fffff00'%OB); a('v_cmp_gt_u32 vcc, %d, v0'%n); a('s_nop 1'); a('v_cndmask_b32 v%d, v%d, v%d, vcc'%(AD,OB,AD)); a('v_cndmask_b32_e64 v%d, 1, 0, vcc'%MK)
        if part=='issue': a('buffer_load_dword v%d, v%d, s[92:95], 0 offen sc1'%(DT,AD))
    if part in ('both','check'):
        if part=='check': add64(a,88,s_ws,WS_FL); srd(a,92,88,89,0x2000)
        a('s_mov_b32 s90, 0')
        if part=='both': a('buffer_load_dword v%d, v%d, s[92:95], 0 offen sc1'%(DT,AD))
        a.lab(name+'_lp')
        a('s_waitcnt vmcnt(0)')
        a('v_or_b32 v%d, v%d, v%d'%(DT,DT,MK)); a('v_cmp_ne_u32 vcc, 1, v%d'%DT); a('s_nop 1'); a('s_cmp_eq_u64 vcc, 0'); a('s_cbranch_scc1 %s_ok'%name)
        a('buffer_load_dword v%d, v%d, s[92:95], 0 offen sc1'%(DT,AD))
        a('s_add_u32 s90, s90, 1'); a('s_cmp_lt_u32 s90, 4000'); a('s_cbranch_scc1 %s_lp'%name)
        a('s_waitcnt vmcnt(0)')
        a.lab(name+'_ok')
```

```python
from g2_common import *
import g2_common as g2
SLZ=34816; SLA=36864
TB=NS*SLA
T_R=TB; T_NMR=TB+512; T_CS0=TB+1024; T_CS1=TB+1664; T_W2=TB+2304
K1_LDS=TB+2304+2048
NK1=10
S_X=4; S_WS=6; S_WDRE=8; S_WDIM=10; S_WIN=12; S_DBG=14
SRD_X=16; SRD_W=20; SRD_O=24; SRD_O2=28; SRD_G=56; SRD_D=60
POLL_BOUND=4000

def stats_final(a,SUM,SQ,t,n,rout,nmrout):
    for k in range(1,len(SUM)): a('v_add_f32 v%d, v%d, v%d'%(SUM[0],SUM[0],SUM[k])); a('v_add_f32 v%d, v%d, v%d'%(SQ[0],SQ[0],SQ[k]))
    a('s_nop 1')
    a('v_add_f32_dpp v%d, v%d, v%d quad_perm:[1,0,3,2] row_mask:0xf bank_mask:0xf'%(t,SUM[0],SUM[0]))
    a('v_add_f32_dpp v%d, v%d, v%d quad_perm:[1,0,3,2] row_mask:0xf bank_mask:0xf'%(t+1,SQ[0],SQ[0]))
    a('v_mul_f32 v%d, 0x%x, v%d'%(t,f2u(1.0/n),t)); a('v_mul_f32 v%d, 0x%x, v%d'%(t+1,f2u(1.0/n),t+1))
    a('v_fma_f32 v%d, -v%d, v%d, v%d'%(t+1,t,t,t+1)); a('v_max_f32 v%d, 0, v%d'%(t+1,t+1)); a('v_add_f32 v%d, 0x%x, v%d'%(t+1,f2u(1e-5),t+1))
    a('v_rsq_f32 v%d, v%d'%(rout,t+1)); a('s_nop 0')
    a('v_mul_f32 v%d, v%d, v%d'%(nmrout,t,rout)); a('v_sub_f32 v%d, 0, v%d'%(nmrout,nmrout))

S_WSP=62
def ln1_row(a):
    a('s_lshl_b32 s%d, s2, 3'%S_T0); a('s_add_u32 s%d, s%d, s%d'%(S_T0,S_T0,S_WAVE)); a('s_mul_i32 s%d, s%d, 1280'%(S_T1,S_T0))
    a('v_lshlrev_b32 v56, 4, v0'); a('v_mov_b32 v57, 0x3f803f80')
    for k in range(4): a('v_mov_b32 v%d, 0'%(68+k))
    a('s_waitcnt lgkmcnt(0)')
    add64(a,S_T2,S_X,'s%d'%S_T1); srd(a,SRD_O,S_T2,S_T2+1,1280)
    a('buffer_load_dwordx4 v[60:63], v56, s[%d:%d], 0 offen'%(SRD_O,SRD_O+3)); a('buffer_load_dwordx4 v[64:67], v56, s[%d:%d], 0 offen offset:1024'%(SRD_O,SRD_O+3))
    add64(a,S_T2,S_WS,WS_LN1); srd(a,SRD_O2,S_T2,S_T2+1,16384)
    a('s_lshl_b32 s%d, s%d, 3'%(S_SO,S_T0))
def ln1_row_finish(a):
    a('s_waitcnt vmcnt(0)')
    for k in range(8):
        a('v_dot2_f32_bf16 v%d, v%d, v%d, v%d'%(68+(k&1),60+k,60+k,68+(k&1))); a('v_dot2_f32_bf16 v%d, v%d, v57, v%d'%(70+(k&1),60+k,70+(k&1)))
    a('s_nop 3')
    a('v_add_f32 v68, v68, v69'); a('v_add_f32 v70, v70, v71'); a('s_nop 1')
    for d in ('quad_perm:[1,0,3,2]','quad_perm:[2,3,0,1]','row_half_mirror','row_mirror'):
        a('v_add_f32_dpp v68, v68, v68 %s row_mask:0xf bank_mask:0xf'%d); a('v_add_f32_dpp v70, v70, v70 %s row_mask:0xf bank_mask:0xf'%d); a('s_nop 0')
    for sw in ('v_permlane16_swap_b32','v_permlane32_swap_b32'):
        a('v_mov_b32 v69, v68'); a('v_mov_b32 v71, v70'); a('s_nop 1')
        a('%s v68, v69'%sw); a('%s v70, v71'%sw); a('s_nop 1')
        a('v_add_f32 v68, v68, v69'); a('v_add_f32 v70, v70, v71')
    a('v_mul_f32 v70, 0x%x, v70'%f2u(1.0/640)); a('v_mul_f32 v68, 0x%x, v68'%f2u(1.0/640))
    a('v_fma_f32 v68, -v70, v70, v68'); a('v_max_f32 v68, 0, v68'); a('v_add_f32 v68, 0x%x, v68'%f2u(1e-5))
    a('v_rsq_f32 v72, v68'); a('s_nop 0'); a('v_mul_f32 v73, v70, v72'); a('v_sub_f32 v73, 0, v73')
    a('v_mov_b32 v74, 0'); a('v_cmp_eq_u32 vcc, 0, v0'); a('s_and_saveexec_b64 s[%d:%d], vcc'%(S_EX,S_EX+1))
    a('buffer_store_dwordx2 v[72:73], v74, s[%d:%d], s%d offen sc1'%(SRD_O2,SRD_O2+3,S_SO))
    a('s_mov_b64 exec, s[%d:%d]'%(S_EX,S_EX+1))
def ln1_hook(a):
    return lambda: a('s_waitcnt vmcnt(0)')

def worker(a,name,SL,isZ):
    n=NK1
    CA=14; VT=15; CF=[48,68]; CACC=88; ONES=108
    srd(a,SRD_D,S_DBG,S_DBG+1,256)
    add64(a,S_T2,S_WS,WS_GR); srd(a,SRD_G,S_T2,S_T2+1,16*12288)
    if isZ:
        a('s_cmp_eq_u32 s%d, 0'%S_PW); a('s_cbranch_scc0 %s_nojob'%name)
        a('s_mul_i32 s%d, s%d, 12288'%(S_SO,S_RB)); a('s_lshl_b32 s%d, s%d, 1'%(S_T0,S_CT)); a('s_add_u32 s%d, s%d, s%d'%(S_T0,S_T0,S_PAR)); a('s_lshl_b32 s%d, s%d, 10'%(S_T0,S_T0))
        a('s_add_u32 s%d, s%d, s%d'%(S_SO,S_SO,S_T0))
        for k in range(4): a('v_mov_b32 v%d, -1'%(8+k))
        a('v_lshlrev_b32 v3, 4, v0')
        a('buffer_store_dwordx4 v[8:11], v3, s[%d:%d], s%d offen sc1'%(SRD_G,SRD_G+3,S_SO))
        if not EXP.get('oldpoll'):
            add64(a,S_T2,S_WS,WS_FG); srd(a,SRD_O2,S_T2,S_T2+1,4096)
            a('s_lshl_b32 s%d, s%d, 8'%(S_T0,S_RB)); a('s_lshl_b32 s%d, s%d, 1'%(S_T1,S_CT)); a('s_add_u32 s%d, s%d, s%d'%(S_T1,S_T1,S_PAR)); a('s_lshl_b32 s%d, s%d, 2'%(S_T1,S_T1)); a('s_add_u32 s%d, s%d, s%d'%(S_T0,S_T0,S_T1))
            a('v_mov_b32 v12, 0'); a('v_lshlrev_b32 v13, 6, v0'); a('s_mov_b32 exec_lo, 15'); a('s_mov_b32 exec_hi, 0')
            a('buffer_store_dword v12, v13, s[%d:%d], s%d offen sc1'%(SRD_O2,SRD_O2+3,S_T0)); a('s_mov_b64 exec, -1')
        a.lab(name+'_nojob')
    if g2.FUSED[0]:
        lf=a.newlab(name+'_cf'); a('s_cmp_eq_u32 s%d, 0'%S_PW); a('s_cbranch_scc0 %s'%lf)
        add64(a,S_T2,S_WS,WS_FL); srd(a,SRD_O,S_T2,S_T2+1,0x4000)
        a('s_lshl_b32 s%d, s2, 5'%S_T0); a('v_mov_b32 v12, 0'); a('v_lshlrev_b32 v13, 13, v0'); a('s_mov_b32 exec_lo, 3'); a('s_mov_b32 exec_hi, 0')
        a('buffer_store_dword v12, v13, s[%d:%d], s%d offen sc1'%(SRD_O,SRD_O+3,S_T0)); a('s_mov_b64 exec, -1')
        a.lab(lf)
    a('s_load_dwordx2 s[86:87], s[0:1], 56'); a('s_load_dwordx4 s[96:99], s[0:1], 8'); a('s_load_dwordx2 s[88:89], s[0:1], 72')
    a('v_lshrrev_b32 v4, 4, v0'); a('v_and_b32 v5, 15, v0'); a('v_lshlrev_b32 v5, 7, v5')
    a('s_lshl_b32 s%d, s%d, 9'%(S_T0,S_G)); a('s_lshl_b32 s%d, s%d, 4'%(S_T1,S_J)); a('s_add_u32 s%d, s%d, s%d'%(S_T0,S_T0,S_T1)); a('v_add_u32 v6, s%d, v4'%S_T0)
    a('v_lshlrev_b32 v6, 12, v6'); a('v_add_u32 v6, v6, v5'); a('s_lshl_b32 s%d, s%d, 11'%(S_T0,S_HALF)); a('v_add_u32 v6, s%d, v6'%S_T0)
    a('s_mul_i32 s%d, s%d, 288'%(S_T0,S_G)); a('s_mul_i32 s%d, s%d, 9'%(S_T1,S_J)); a('s_add_u32 s%d, s%d, s%d'%(S_T0,S_T0,S_T1)); a('v_add_u32 v7, s%d, v4'%S_T0)
    a('v_lshlrev_b32 v7, 12, v7'); a('v_add_u32 v7, v7, v5')
    a('v_and_b32 v21, 15, v0'); a('v_lshlrev_b32 v21, 4, v21'); a('v_mov_b32 v20, 0')
    for r in (16,17,18,19): a('v_mov_b32 v%d, 0'%r)
    a('s_waitcnt lgkmcnt(0)')
    srd(a,SRD_W,86,87,2048*4096)
    a('s_cmp_eq_u32 s%d, 0'%S_HALF); a('s_cselect_b32 s%d, s96, s98'%S_T2); a('s_cselect_b32 s%d, s97, s99'%S_T3); srd(a,SRD_O2,S_T2,S_T3,2048*4096)
    if EXP.get('tlbw'):
        l=a.newlab(name+'_tw'); a('s_cmp_eq_u32 s%d, 1'%S_PW); a('s_cbranch_scc0 %s'%l)
        a('s_load_dwordx2 s[90:91], s[0:1], 80'); a('v_lshlrev_b32 v11, 21, v0'); a('s_lshl_b32 s%d, s2, 7'%S_SO); a('s_and_b32 s%d, s%d, 0xffff'%(S_SO,S_SO))
        srd(a,SRD_O,S_WS,S_WS+1,0x1400000)
        a('s_mov_b32 exec_hi, 0'); a('s_mov_b32 exec_lo, 0x3ff')
        a('buffer_load_dword v10, v11, s[%d:%d], s%d offen'%(SRD_O,SRD_O+3,S_SO))
        a('s_waitcnt lgkmcnt(0)')
        srd(a,SRD_O,90,91,2048*1280)
        a('v_lshlrev_b32 v11, 20, v0'); a('s_mov_b32 exec_lo, 7')
        a('buffer_load_dword v10, v11, s[%d:%d], s%d offen'%(SRD_O,SRD_O+3,S_SO)); a('s_mov_b64 exec, -1')
        a.lab(l)
    if EXP.get('epf'):
        l=a.newlab(name+'_e3'); a('s_cmp_eq_u32 s%d, 3'%S_PW); a('s_cbranch_scc0 %s'%l)
        srd(a,SRD_O,S_WIN,S_WIN+1,640*3456)
        a('s_mul_i32 s%d, s2, %d'%(S_SO,68*128)); a('v_lshlrev_b32 v11, 7, v0')
        a('buffer_load_dword v10, v11, s[%d:%d], s%d offen'%(SRD_O,SRD_O+3,S_SO))
        a('s_add_u32 s%d, s%d, 8192'%(S_SO,S_SO)); a('s_mov_b32 exec_hi, 0'); a('s_mov_b32 exec_lo, 15')
        a('buffer_load_dword v10, v11, s[%d:%d], s%d offen'%(SRD_O,SRD_O+3,S_SO)); a('s_mov_b64 exec, -1')
        a.lab(l)
        l=a.newlab(name+'_e2'); a('s_cmp_eq_u32 s%d, 2'%S_PW); a('s_cbranch_scc0 %s'%l)
        a('s_cmp_lt_u32 s2, 128'); a('s_cselect_b32 s%d, s%d, s%d'%(S_T2,S_WDRE,S_WDIM)); a('s_cselect_b32 s%d, s%d, s%d'%(S_T3,S_WDRE+1,S_WDIM+1))
        srd(a,SRD_O,S_T2,S_T3,321*1280)
        a('s_and_b32 s%d, s2, 127'%S_SO); a('s_mul_i32 s%d, s%d, %d'%(S_SO,S_SO,25*128)); a('s_add_u32 s%d, s%d, 1280'%(S_SO,S_SO)); a('v_lshlrev_b32 v11, 7, v0')
        a('s_mov_b32 exec_hi, 0'); a('s_mov_b32 exec_lo, 0x1ffffff')
        a('buffer_load_dword v10, v11, s[%d:%d], s%d offen'%(SRD_O,SRD_O+3,S_SO)); a('s_mov_b64 exec, -1')
        a.lab(l)
    if isZ:
        a('v_and_b32 v120, 15, v0'); a('v_lshrrev_b32 v121, 4, v0'); a('v_lshrrev_b32 v122, 2, v120'); a('v_lshl_add_u32 v122, v121, 2, v122')
        a('v_mul_u32_u24 v122, 288, v122'); a('v_and_b32 v120, 3, v120'); a('v_lshl_add_u32 v122, v120, 3, v122')
        a('s_and_b32 s%d, s%d, 1'%(S_T0,S_PW)); a('s_mul_i32 s%d, s%d, 9216'%(S_T0,S_T0)); a('s_cmp_lt_u32 s%d, 2'%S_PW); a('s_cselect_b32 s%d, 160, 0'%S_T1)
        a('s_add_u32 s%d, s%d, s%d'%(S_T0,S_T0,S_T1)); a('s_add_u32 s%d, s%d, 16384'%(S_T0,S_T0)); a('v_add_u32 v%d, s%d, v122'%(CA,S_T0))
        for k in range(4): a('v_mov_b32 v%d, 0x3f803f80'%(ONES+k))
        for k in range(20): a('v_mov_b32 v%d, 0'%(CACC+k))
        for k in range(40): a('v_mov_b32 v%d, 0'%(CF[0]+k))
    def reads(st):
        a('v_add_u32 v%d, s%d, v%d'%(VT,S_SLC,CA))
        lab=a.newlab(name+'_c')
        for j in range(5):
            if j==4: a('s_cmp_lt_u32 s%d, 2'%S_PW); a('s_cbranch_scc1 %s'%lab)
            for b in range(2): a('ds_read_b64_tr_b16 %s, v%d offset:%d'%(vr(CF[st]+4*j+2*b,2),VT,b*4608+j*32))
        a.lab(lab)
    def compute(st):
        for j in range(5):
            a('v_mfma_f32_16x16x32_bf16 %s, %s, %s, %s'%(vr(CACC+4*j,4),vr(ONES,4),vr(CF[st]+4*j,4),vr(CACC+4*j,4)))
    def xpf(k,pol):
        if k<4:
            a('s_mov_b32 s%d, %d'%(S_SO,k*4*4096)); a('buffer_load_dword v10, v6, s[%d:%d], s%d offen%s'%(SRD_W,SRD_W+3,S_SO,pol))
        else:
            k-=4
            a('s_mov_b32 s%d, %d'%(S_SO,k*4*4096))
            if k==2: a('s_mov_b32 exec_hi, 0'); a('s_mov_b32 exec_lo, 0xffff')
            a('buffer_load_dword v10, v7, s[%d:%d], s%d offen%s'%(SRD_O2,SRD_O2+3,S_SO,pol))
            if k==2: a('s_mov_b64 exec, -1')
    def wout_pf():
        srd(a,SRD_O,88,89,864*1280)
        a('s_mul_i32 s%d, s2, %d'%(S_SO,34*128)); a('v_lshlrev_b32 v11, 7, v0'); a('s_mov_b32 exec_hi, 3')
        a('buffer_load_dword v10, v11, s[%d:%d], s%d offen'%(SRD_O,SRD_O+3,S_SO)); a('s_mov_b32 exec_hi, -1')
    TBL=16
    def side(i):
        pol=' nt' if not EXP.get('xpfdef') else ''
        if not (EXP.get('noxpf') or EXP.get('noxpf1')) and EXP.get('pfmid') and EXP.get('pf0',2)<=i<=EXP.get('pf0',2)+6:
            l=a.newlab(name+'_p'); a('s_cmp_eq_u32 s%d, 1'%S_PW); a('s_cbranch_scc0 %s'%l)
            kk=i-EXP.get('pf0',2)
            if not ((EXP.get('pfwonly') or EXP.get('pfsplit')==1) and kk>=4) and not (EXP.get('pfsplit')==2 and kk<4): xpf(kk,pol)
            a.lab(l)
        if EXP.get('wo1') and i==EXP.get('wo1'):
            l=a.newlab(name+'_wo'); a('s_cmp_eq_u32 s%d, 2'%S_PW); a('s_cbranch_scc0 %s'%l); wout_pf(); a.lab(l)
        if i==2:
            l=a.newlab(name+'_a'); a('s_cmp_eq_u32 s%d, 0'%S_PW); a('s_cbranch_scc0 %s'%l)
            a('s_waitcnt vmcnt(0)')
            a('v_mov_b32 v4, 1'); a('s_and_b32 s%d, s2, 15'%S_T0); a('s_lshl_b32 s%d, s%d, 4'%(S_T0,S_T0)); a('v_mov_b32 v3, s%d'%S_T0)
            a('v_cmp_eq_u32 vcc, 0, v0'); a('s_and_saveexec_b64 s[%d:%d], vcc'%(S_EX,S_EX+1))
            a('buffer_atomic_add v4, v3, s[%d:%d], 0 offen sc1'%(SRD_D,SRD_D+3))
            a('s_mov_b64 exec, s[%d:%d]'%(S_EX,S_EX+1))
            a.lab(l)
        if i==5:
            l=a.newlab(name+'_q'); a('s_cmp_eq_u32 s%d, 0'%S_PW); a('s_cbranch_scc0 %s'%l)
            a('buffer_load_dword v20, v21, s[%d:%d], 0 offen sc1'%(SRD_D,SRD_D+3))
            a.lab(l)
        if i==7:
            l=a.newlab(name+'_r'); a('s_cmp_eq_u32 s%d, 0'%S_PW); a('s_cbranch_scc0 %s'%l)
            a('s_mov_b32 s%d, 0'%S_SO2)
            lp=a.newlab(name+'_pl'); ok=a.newlab(name+'_ok')
            a.lab(lp)
            a('s_waitcnt vmcnt(0)'); a('v_cmp_gt_u32 vcc, 16, v20'); a('s_nop 1'); a('s_cmp_eq_u64 vcc, 0'); a('s_cbranch_scc1 %s'%ok)
            a('buffer_load_dword v20, v21, s[%d:%d], 0 offen sc1'%(SRD_D,SRD_D+3))
            a('s_add_u32 s%d, s%d, 1'%(S_SO2,S_SO2)); a('s_cmp_lt_u32 s%d, %d'%(S_SO2,POLL_BOUND)); a('s_cbranch_scc1 %s'%lp)
            a.lab(ok)
            add64(a,S_T2,S_WS,WS_LN1); srd(a,SRD_O,S_T2,S_T2+1,16384)
            if isZ:
                a('s_lshl_b32 s%d, s%d, 7'%(S_T0,S_RB)); a('v_add_u32 v22, s%d, v0'%S_T0); a('v_add_u32 v23, 64, v22')
            else:
                a('s_lshl_b32 s%d, s%d, 6'%(S_T0,S_RB)); a('v_add_u32 v22, s%d, v0'%S_T0); a('v_sub_u32 v23, 2048, v22')
                a('v_cmp_eq_u32 vcc, 2048, v23'); a('v_mov_b32 v24, 1024'); a('s_nop 0'); a('v_cndmask_b32 v23, v23, v24, vcc')
            a('v_lshlrev_b32 v22, 3, v22'); a('v_lshlrev_b32 v23, 3, v23')
            a('buffer_load_dwordx2 v[16:17], v22, s[%d:%d], 0 offen sc1'%(SRD_O,SRD_O+3)); a('buffer_load_dwordx2 v[18:19], v23, s[%d:%d], 0 offen sc1'%(SRD_O,SRD_O+3))
            a.lab(l)
    a('s_mov_b32 s%d, 0'%S_SLC)
    for i in range(n):
        a('s_barrier')
        if isZ and not EXP.get('nocs'): reads(i&1)
        side(i)
        if isZ and not EXP.get('nocs'):
            compute((i&1)^1); a('s_waitcnt lgkmcnt(0)'); slot_advance(a,S_SLC,SL)
    if isZ: compute((n-1)&1)
    if not (EXP.get('noxpf') or EXP.get('noxpf1') or EXP.get('pflate') or (EXP.get('pfmid') and not EXP.get('pfsplit'))):
        l=a.newlab(name+'_pe'); a('s_cmp_eq_u32 s%d, 1'%S_PW); a('s_cbranch_scc0 %s'%l)
        ks=range(4 if EXP.get('pfwonly') else 7)
        if EXP.get('pfsplit')==1: ks=range(4,7)
        if EXP.get('pfsplit')==2: ks=range(0,4)
        for k in ks: xpf(k,' nt' if not EXP.get('xpfdef') else '')
        a.lab(l)
    gc.stamp(a,3)
    l=a.newlab(name+'_w'); a('s_cmp_eq_u32 s%d, 0'%S_PW); a('s_cbranch_scc0 %s'%l)
    a('s_waitcnt vmcnt(0)'); a('v_lshlrev_b32 v26, 2, v0'); a('v_add_u32 v26, %d, v26'%T_R)
    a('ds_write_b32 v26, v16'); a('ds_write_b32 v26, v17 offset:512'); a('ds_write_b32 v26, v18 offset:256'); a('ds_write_b32 v26, v19 offset:768')
    a.lab(l)
    if isZ:
        a('s_and_b32 s%d, s%d, 1'%(S_T0,S_PW)); a('s_mul_i32 s%d, s%d, 640'%(S_T0,S_T0)); a('s_cmp_lt_u32 s%d, 2'%S_PW); a('s_cselect_b32 s%d, 320, 0'%S_T1)
        a('s_add_u32 s%d, s%d, s%d'%(S_T0,S_T0,S_T1)); a('v_and_b32 v26, 15, v0'); a('v_lshlrev_b32 v26, 2, v26'); a('v_add_u32 v26, s%d, v26'%S_T0); a('v_add_u32 v26, %d, v26'%T_CS0)
        a('s_nop 7')
        lab=a.newlab(name+'_f')
        for j in range(5):
            if j==4: a('s_cmp_lt_u32 s%d, 2'%S_PW); a('s_cbranch_scc1 %s'%lab)
            a('ds_write_b32 v26, v%d offset:%d'%(CACC+4*j,j*64))
        a.lab(lab)

    def late():
        if EXP.get('pflate') and not (EXP.get('noxpf') or EXP.get('noxpf1')):
            l=a.newlab(name+'_pl8'); a('s_cmp_eq_u32 s%d, 1'%S_PW); a('s_cbranch_scc0 %s'%l)
            for k in range(7): xpf(k,' nt' if not EXP.get('xpfdef') else '')
            a.lab(l)
    return late

def worker2(a):
    import g3_z as z
    name='Z2w'; n=NK1; SL=z.SL2; NSz=z.NS2
    CA=14; VT=15; CF=[48,60]; CACC=72; ONES=84
    srd(a,SRD_D,S_DBG,S_DBG+1,256)
    add64(a,S_T2,S_WS,WS_GR); srd(a,SRD_G,S_T2,S_T2+1,16*12288)
    a('s_cmp_eq_u32 s%d, 0'%S_PW); a('s_cbranch_scc0 %s_nojob'%name)
    a('s_mul_i32 s%d, s%d, 12288'%(S_SO,S_RB)); a('s_lshl_b32 s%d, s%d, 1'%(S_T0,S_CT)); a('s_add_u32 s%d, s%d, s%d'%(S_T0,S_T0,S_PAR)); a('s_lshl_b32 s%d, s%d, 10'%(S_T0,S_T0))
    a('s_add_u32 s%d, s%d, s%d'%(S_SO,S_SO,S_T0))
    for k in range(4): a('v_mov_b32 v%d, -1'%(8+k))
    a('v_lshlrev_b32 v3, 4, v0')
    a('buffer_store_dwordx4 v[8:11], v3, s[%d:%d], s%d offen sc1'%(SRD_G,SRD_G+3,S_SO))
    if g2.FUSED[0]:
        add64(a,S_T2,S_WS,WS_FL); srd(a,SRD_O,S_T2,S_T2+1,0x4000)
        a('s_lshl_b32 s%d, s2, 5'%S_T0); a('v_mov_b32 v12, 0'); a('v_lshlrev_b32 v13, 13, v0'); a('s_mov_b32 exec_lo, 3'); a('s_mov_b32 exec_hi, 0')
        a('buffer_store_dword v12, v13, s[%d:%d], s%d offen sc1'%(SRD_O,SRD_O+3,S_T0)); a('s_mov_b64 exec, -1')
    a.lab(name+'_nojob')
    a('s_load_dwordx2 s[86:87], s[0:1], 56'); a('s_load_dwordx4 s[96:99], s[0:1], 8'); a('s_load_dwordx2 s[88:89], s[0:1], 72')
    a('v_lshrrev_b32 v4, 4, v0'); a('v_and_b32 v5, 15, v0'); a('v_lshlrev_b32 v5, 7, v5')
    a('s_lshl_b32 s%d, s%d, 9'%(S_T0,S_G)); a('s_lshl_b32 s%d, s%d, 4'%(S_T1,S_J)); a('s_add_u32 s%d, s%d, s%d'%(S_T0,S_T0,S_T1)); a('v_add_u32 v6, s%d, v4'%S_T0)
    a('v_lshlrev_b32 v6, 12, v6'); a('v_add_u32 v6, v6, v5'); a('s_lshl_b32 s%d, s%d, 11'%(S_T0,S_HALF)); a('v_add_u32 v6, s%d, v6'%S_T0)
    a('s_mul_i32 s%d, s%d, 288'%(S_T0,S_G)); a('s_mul_i32 s%d, s%d, 9'%(S_T1,S_J)); a('s_add_u32 s%d, s%d, s%d'%(S_T0,S_T0,S_T1)); a('v_add_u32 v7, s%d, v4'%S_T0)
    a('v_lshlrev_b32 v7, 12, v7'); a('v_add_u32 v7, v7, v5')
    a('v_and_b32 v21, 15, v0'); a('v_lshlrev_b32 v21, 4, v21'); a('v_mov_b32 v20, 0')
    for r in (16,17,18,19): a('v_mov_b32 v%d, 0'%r)
    a('s_waitcnt lgkmcnt(0)')
    srd(a,SRD_W,86,87,2048*4096)
    a('s_cmp_eq_u32 s%d, 0'%S_HALF); a('s_cselect_b32 s%d, s96, s98'%S_T2); a('s_cselect_b32 s%d, s97, s99'%S_T3); srd(a,SRD_O2,S_T2,S_T3,2048*4096)
    a('v_and_b32 v120, 15, v0'); a('v_lshrrev_b32 v121, 4, v0'); a('v_lshrrev_b32 v122, 2, v120'); a('v_lshl_add_u32 v122, v121, 2, v122')
    a('v_mul_u32_u24 v122, 160, v122'); a('v_and_b32 v120, 3, v120'); a('v_lshl_add_u32 v122, v120, 3, v122')
    a('s_and_b32 s%d, s%d, 1'%(S_T0,S_PW)); a('s_mul_i32 s%d, s%d, 5120'%(S_T0,S_T0)); a('s_cmp_lt_u32 s%d, 2'%S_PW); a('s_cselect_b32 s%d, 0, 96'%S_T1)
    a('s_add_u32 s%d, s%d, s%d'%(S_T0,S_T0,S_T1)); a('s_add_u32 s%d, s%d, 16384'%(S_T0,S_T0)); a('v_add_u32 v%d, s%d, v122'%(CA,S_T0))
    for k in range(4): a('v_mov_b32 v%d, 0x3f803f80'%(ONES+k))
    for k in range(12): a('v_mov_b32 v%d, 0'%(CACC+k))
    for k in range(24): a('v_mov_b32 v%d, 0'%(CF[0]+k))
    def reads(st):
        a('v_add_u32 v%d, s%d, v%d'%(VT,S_SLC,CA))
        lab=a.newlab(name+'_c')
        for j in range(3):
            if j==2: a('s_cmp_lt_u32 s%d, 2'%S_PW); a('s_cbranch_scc0 %s'%lab)
            for b in range(2): a('ds_read_b64_tr_b16 %s, v%d offset:%d'%(vr(CF[st]+4*j+2*b,2),VT,b*2560+j*32))
        a.lab(lab)
    def compute(st):
        for j in range(3): a('v_mfma_f32_16x16x32_bf16 %s, %s, %s, %s'%(vr(CACC+4*j,4),vr(ONES,4),vr(CF[st]+4*j,4),vr(CACC+4*j,4)))
    def cs_write(T):
        a('s_and_b32 s%d, s%d, 1'%(S_T0,S_PW)); a('s_mul_i32 s%d, s%d, 320'%(S_T0,S_T0)); a('s_cmp_lt_u32 s%d, 2'%S_PW); a('s_cselect_b32 s%d, 0, 192'%S_T1)
        a('s_add_u32 s%d, s%d, s%d'%(S_T0,S_T0,S_T1)); a('v_and_b32 v26, 15, v0'); a('v_lshlrev_b32 v26, 2, v26'); a('v_add_u32 v26, s%d, v26'%S_T0); a('v_add_u32 v26, %d, v26'%T)
        a('s_nop 7')
        lab=a.newlab(name+'_f')
        for j in range(3):
            if j==2: a('s_cmp_lt_u32 s%d, 2'%S_PW); a('s_cbranch_scc0 %s'%lab)
            a('ds_write_b32 v26, v%d offset:%d'%(CACC+4*j,j*64))
        a.lab(lab)
    def xpf(k,pol):
        if k<4:
            a('s_mov_b32 s%d, %d'%(S_SO,k*4*4096)); a('buffer_load_dword v10, v6, s[%d:%d], s%d offen%s'%(SRD_W,SRD_W+3,S_SO,pol))
        else:
            k-=4
            a('s_mov_b32 s%d, %d'%(S_SO,k*4*4096))
            if k==2: a('s_mov_b32 exec_hi, 0'); a('s_mov_b32 exec_lo, 0xffff')
            a('buffer_load_dword v10, v7, s[%d:%d], s%d offen%s'%(SRD_O2,SRD_O2+3,S_SO,pol))
            if k==2: a('s_mov_b64 exec, -1')
    def only(w,fn):
        l=a.newlab(name+'_o'); a('s_cmp_eq_u32 s%d, %d'%(S_PW,w)); a('s_cbranch_scc0 %s'%l); fn(); a.lab(l)
    pol='' if EXP.get('xpfdef') else ' nt'
    PG=88
    def side(i):
        if not EXP.get('noxpf'):
            ws0=EXP.get('z2ws',2); wp0=EXP.get('z2wp',12)
            if ws0<=i<ws0+3: only(3,lambda: xpf(4+i-ws0,pol))
            if wp0<=i<wp0+4: only(3,lambda: xpf(i-wp0,pol))
            if EXP.get('wo1') and i==EXP.get('wo1'):
                def wo():
                    srd(a,SRD_O,88,89,864*1280)
                    a('s_mul_i32 s%d, s2, %d'%(S_SO,34*128)); a('v_lshlrev_b32 v11, 7, v0'); a('s_mov_b32 exec_hi, 3')
                    a('buffer_load_dword v10, v11, s[%d:%d], s%d offen'%(SRD_O,SRD_O+3,S_SO)); a('s_mov_b32 exec_hi, -1')
                only(3,wo)
        if i==2:
            def cnt():
                a('s_waitcnt vmcnt(0)')
                a('v_mov_b32 v4, 1'); a('s_and_b32 s%d, s2, 15'%S_T0); a('s_lshl_b32 s%d, s%d, 4'%(S_T0,S_T0)); a('v_mov_b32 v3, s%d'%S_T0)
                a('v_cmp_eq_u32 vcc, 0, v0'); a('s_and_saveexec_b64 s[%d:%d], vcc'%(S_EX,S_EX+1))
                a('buffer_atomic_add v4, v3, s[%d:%d], 0 offen sc1'%(SRD_D,SRD_D+3)); a('s_mov_b64 exec, s[%d:%d]'%(S_EX,S_EX+1))
            only(0,cnt)
        if i==5: only(0,lambda: a('buffer_load_dword v20, v21, s[%d:%d], 0 offen sc1'%(SRD_D,SRD_D+3)))
        if i==7:
            def tab():
                a('s_mov_b32 s%d, 0'%S_SO2)
                lp=a.newlab(name+'_pl'); ok=a.newlab(name+'_ok')
                a.lab(lp)
                a('s_waitcnt vmcnt(0)'); a('v_cmp_gt_u32 vcc, 16, v20'); a('s_nop 1'); a('s_cmp_eq_u64 vcc, 0'); a('s_cbranch_scc1 %s'%ok)
                a('buffer_load_dword v20, v21, s[%d:%d], 0 offen sc1'%(SRD_D,SRD_D+3))
                a('s_add_u32 s%d, s%d, 1'%(S_SO2,S_SO2)); a('s_cmp_lt_u32 s%d, %d'%(S_SO2,POLL_BOUND)); a('s_cbranch_scc1 %s'%lp)
                a.lab(ok)
                add64(a,S_T2,S_WS,WS_LN1); srd(a,SRD_O,S_T2,S_T2+1,16384)
                a('s_lshl_b32 s%d, s%d, 7'%(S_T0,S_RB)); a('v_add_u32 v22, s%d, v0'%S_T0); a('v_add_u32 v23, 64, v22')
                a('v_lshlrev_b32 v22, 3, v22'); a('v_lshlrev_b32 v23, 3, v23')
                a('buffer_load_dwordx2 v[16:17], v22, s[%d:%d], 0 offen sc1'%(SRD_O,SRD_O+3)); a('buffer_load_dwordx2 v[18:19], v23, s[%d:%d], 0 offen sc1'%(SRD_O,SRD_O+3))
            only(0,tab)
        if i==10:
            def pub(r0):
                a('v_lshlrev_b32 v26, 2, v0'); a('v_add_u32 v26, %d, v26'%(z.T_PS+r0*4))
                a('ds_read_b32 v28, v26'); a('ds_read_b32 v29, v26 offset:512'); a('ds_read_b32 v30, v26 offset:1024'); a('ds_read_b32 v31, v26 offset:1536')
                a('s_mul_i32 s%d, s%d, 12288'%(S_SO,S_RB)); a('s_lshl_b32 s%d, s%d, 1'%(S_T0,S_CT)); a('s_add_u32 s%d, s%d, s%d'%(S_T0,S_T0,S_PAR)); a('s_lshl_b32 s%d, s%d, 10'%(S_T0,S_T0))
                a('s_add_u32 s%d, s%d, s%d'%(S_T0,S_T0,S_SO)); a('s_add_u32 s%d, s%d, %d'%(S_T0,S_T0,r0*8))
                a('v_lshlrev_b32 v27, 3, v0'); a('s_waitcnt lgkmcnt(0)')
                a('v_add_f32 v32, v28, v29'); a('v_add_f32 v33, v30, v31')
                a('buffer_store_dwordx2 v[32:33], v27, s[%d:%d], s%d offen sc1'%(SRD_G,SRD_G+3,S_T0))
            only(1,lambda: pub(0)); only(2,lambda: pub(64))
        def gr_issue(r0):
            a('s_mul_i32 s%d, s%d, 12288'%(S_SO,S_RB)); a('s_add_u32 s%d, s%d, %d'%(S_SO,S_SO,r0*8)); a('v_lshlrev_b32 v27, 3, v0'); a('v_add_u32 v34, 4096, v27'); a('v_add_u32 v35, 8192, v27')
            for k in range(12): a('buffer_load_dwordx2 %s, v%d, s[%d:%d], s%d offen offset:%d sc1'%(vr(PG+2*k,2),(27,34,35)[k//4],SRD_G,SRD_G+3,S_SO,(k%4)*1024))
        if i==EXP.get('z2pi',13):
            only(1,lambda: gr_issue(0)); only(2,lambda: gr_issue(64))
        if i==15:
            def fin(r0):
                lp=a.newlab(name+'_gp'); ok=a.newlab(name+'_gk')
                a('s_mov_b32 s%d, 0'%S_SO2)
                a.lab(lp)
                a('s_waitcnt vmcnt(0)')
                a('v_max3_u32 v36, v%d, v%d, v%d'%(PG,PG+1,PG+2))
                for k in range(3,24,2):
                    a('v_max3_u32 v36, v36, v%d, v%d'%(PG+k,PG+k+1) if k+1<24 else 'v_max_u32 v36, v36, v%d'%(PG+k))
                a('v_cmp_eq_u32 vcc, -1, v36'); a('s_nop 1'); a('s_cmp_eq_u64 vcc, 0'); a('s_cbranch_scc1 %s'%ok)
                gr_issue(r0)
                a('s_add_u32 s%d, s%d, 1'%(S_SO2,S_SO2)); a('s_cmp_lt_u32 s%d, %d'%(S_SO2,POLL_BOUND)); a('s_cbranch_scc1 %s'%lp)
                a('s_waitcnt vmcnt(0)')
                a.lab(ok)
                for k in range(1,12): a('v_add_f32 v%d, v%d, v%d'%(PG,PG,PG+2*k)); a('v_add_f32 v%d, v%d, v%d'%(PG+1,PG+1,PG+2*k+1))
                a('v_mul_f32 v%d, 0x%x, v%d'%(PG,f2u(1.0/864),PG)); a('v_mul_f32 v%d, 0x%x, v%d'%(PG+1,f2u(1.0/864),PG+1))
                a('v_fma_f32 v%d, -v%d, v%d, v%d'%(PG+1,PG,PG,PG+1)); a('v_max_f32 v%d, 0, v%d'%(PG+1,PG+1)); a('v_add_f32 v%d, 0x%x, v%d'%(PG+1,f2u(1e-5),PG+1))
                a('v_rsq_f32 v%d, v%d'%(PG+2,PG+1)); a('s_nop 0'); a('v_mul_f32 v%d, v%d, v%d'%(PG+3,PG,PG+2)); a('v_sub_f32 v%d, 0, v%d'%(PG+3,PG+3))
                a('v_lshlrev_b32 v26, 2, v0'); a('v_add_u32 v26, %d, v26'%(z.T_R2+r0*4))
                a('ds_write_b32 v26, v%d'%(PG+2)); a('ds_write_b32 v26, v%d offset:512'%(PG+3))
            only(1,lambda: fin(0)); only(2,lambda: fin(64))
    a('s_mov_b32 s%d, 0'%S_SLC)
    for i in range(2*n):
        if i==n:
            compute((n-1)&1); cs_write(z.T_CS1)
            def tw():
                a('s_waitcnt vmcnt(0)'); a('v_lshlrev_b32 v26, 2, v0'); a('v_add_u32 v26, %d, v26'%T_R)
                a('ds_write_b32 v26, v16'); a('ds_write_b32 v26, v17 offset:512'); a('ds_write_b32 v26, v18 offset:256'); a('ds_write_b32 v26, v19 offset:768')
            only(0,tw)
            a('s_waitcnt lgkmcnt(0)')
            for k in range(12): a('v_mov_b32 v%d, 0'%(CACC+k))
            for k in range(24): a('v_mov_b32 v%d, 0'%(CF[0]+k))
            a('s_barrier')
        a('s_barrier')
        reads(i&1)
        side(i)
        compute((i&1)^1); a('s_waitcnt lgkmcnt(0)'); slot_advance(a,S_SLC,SL,NSz)
    compute((2*n-1)&1); cs_write(z.T_CS2)
    gc.stamp(a,3)
    a('s_waitcnt lgkmcnt(0)'); a('s_barrier')

def krot(a):
    if EXP.get('norot'): a('s_mov_b32 s%d, 0'%S_T0); return
    a('s_mul_i32 s%d, s%d, 5'%(S_T0,S_G)); a('s_lshr_b32 s%d, s%d, 1'%(S_T0,S_T0))
    a('s_mul_i32 s%d, s%d, %d'%(S_T1,S_HALF,EXP.get('rothalf',4))); a('s_add_u32 s%d, s%d, s%d'%(S_T0,S_T0,S_T1))
    a('s_cmp_ge_u32 s%d, 10'%S_T0); a('s_cselect_b32 s%d, 10, 0'%S_T1); a('s_sub_u32 s%d, s%d, s%d'%(S_T0,S_T0,S_T1))

def gen_k1(a,kname):
    kernel_head(a,kname,'K1')
    a('s_load_dwordx2 s[%d:%d], s[0:1], 0'%(S_X,S_X+1))
    a('s_load_dwordx4 s[%d:%d], s[0:1], 24'%(S_WDRE,S_WDRE+3))
    a('s_load_dwordx2 s[%d:%d], s[0:1], 48'%(S_WIN,S_WIN+1))
    a('s_load_dwordx2 s[%d:%d], s[0:1], 88'%(S_DBG,S_DBG+1))
    a('s_load_dwordx2 s[%d:%d], s[0:1], 96'%(S_WS,S_WS+1))
    wave_setup(a,'K1')
    a('s_and_b32 s%d, s2, 7'%S_XCD); a('s_lshr_b32 s%d, s2, 3'%S_J)
    a('s_lshr_b32 s%d, s%d, 1'%(S_G,S_XCD)); a('s_and_b32 s%d, s%d, 1'%(S_HALF,S_XCD))
    a('s_cmp_ge_u32 s%d, 24'%S_J); a('s_cbranch_scc1 K1A_entry')
    a('s_mul_i32 s%d, s%d, 43'%(S_T0,S_J)); a('s_lshr_b32 s%d, s%d, 8'%(S_T0,S_T0))
    a('s_mul_i32 s%d, s%d, 6'%(S_T1,S_T0)); a('s_sub_u32 s%d, s%d, s%d'%(S_T1,S_J,S_T1))
    a('s_and_b32 s%d, s%d, 1'%(S_PAR,S_T1)); a('s_lshr_b32 s%d, s%d, 1'%(S_T1,S_T1)); a('s_mul_i32 s%d, s%d, 3'%(S_CT,S_HALF)); a('s_add_u32 s%d, s%d, s%d'%(S_CT,S_CT,S_T1))
    a('s_lshl_b32 s%d, s%d, 1'%(S_T1,S_G)); a('s_add_u32 s%d, s%d, s%d'%(S_T2,S_T1,S_T0))
    a('s_sub_u32 s%d, s%d, s%d'%(S_T3,S_T0,S_T1)); a('s_add_u32 s%d, s%d, 12'%(S_T3,S_T3))
    a('s_cmp_lt_u32 s%d, 2'%S_T0); a('s_cselect_b32 s%d, s%d, s%d'%(S_RB,S_T2,S_T3))
    if EXP.get('two'):
        import g3_z
        g3_z.gen_z(a)
    a('s_cmp_ge_u32 s%d, 12'%S_WAVE); a('s_cbranch_scc1 K1Z_work')
    a('s_cmp_ge_u32 s%d, 8'%S_WAVE); a('s_cbranch_scc1 K1Z_prod')
    ACC=16; FA=56; FB=84; XA=[112,113]; WA=116
    a('s_and_b32 s%d, s%d, 3'%(S_PW,S_WAVE)); a('s_lshr_b32 s%d, s%d, 2'%(S_H,S_WAVE))
    a('v_and_b32 v1, 15, v0'); a('v_lshrrev_b32 v2, 4, v0')
    a('v_and_b32 v3, 7, v0'); a('v_xor_b32 v3, v3, v2'); a('v_lshlrev_b32 v3, 4, v3'); a('v_lshl_add_u32 v3, v1, 7, v3')
    a('s_lshl_b32 s%d, s%d, 12'%(S_T0,S_PW)); a('v_add_u32 v%d, s%d, v3'%(XA[0],S_T0)); a('v_xor_b32 v%d, 64, v%d'%(XA[1],XA[0]))
    a('v_lshrrev_b32 v3, 2, v1'); a('v_lshl_add_u32 v3, v2, 2, v3'); a('v_mul_u32_u24 v3, 288, v3'); a('v_and_b32 v4, 3, v1'); a('v_lshl_add_u32 v3, v4, 3, v3')
    a('s_mul_i32 s%d, s%d, 160'%(S_T0,S_H)); a('v_add_u32 v%d, s%d, v3'%(WA,S_T0))
    ln1_row(a)
    for k in range(40): a('v_mov_b32 v%d, 0'%(ACC+k))
    ln1_row_finish(a)
    def acc(i,j): return ACC+(j*2+i)*4
    a('s_cmp_eq_u32 s%d, s%d'%(S_H,S_PAR)); a('s_cselect_b32 s%d, 0, 2'%S_T0); a('s_add_u32 s%d, s%d, s%d'%(S_T0,S_T0,S_H))
    for t,lab in ((1,'K1c_z2_1'),(2,'K1c_z1_0'),(3,'K1c_z1_1')):
        a('s_cmp_eq_u32 s%d, %d'%(S_T0,t)); a('s_cbranch_scc1 %s'%lab)
    for role in ('z2','z1'):
      for h in range(2):
        nj=5-h; nm='K1c_%s_%d'%(role,h)
        a.lab(nm)
        def rd(st,sub,nj=nj):
            F=FA if st==0 else FB; m=[]
            for i in range(2): m.append('ds_read_b128 %s, v%d offset:%d'%(vr(F+i*4,4),XA[sub],i*2048))
            for j in range(nj):
                for b in range(2): m.append('ds_read_b64_tr_b16 %s, v%d offset:%d'%(vr(F+8+j*4+b*2,2),WA,16384+sub*9216+b*4608+j*32))
            return m
        def mf(st,role=role,nj=nj):
            F=FA if st==0 else FB; m=[]
            for j in range(nj):
                for i in range(2):
                    x=vr(F+i*4,4); w=vr(F+8+j*4,4); c=vr(acc(i,j),4)
                    m.append('v_mfma_f32_16x16x32_bf16 %s, %s, %s, %s'%((c,x,w,c) if role=='z2' else (c,w,x,c)))
            return m
        consumer_loop(a,nm+'L',SLZ,NK1,XA+[WA],rd,mf,lag=(h==0),hook=ln1_hook(a),hook_at=2,per=EXP.get('k1per',2),dly=EXP.get('k1dly',12))
        a('s_barrier')
        if EXP.get('fine') is None: gc.stamp(a,4)
        C0=112;C1=114;ONE=116
        a('v_mov_b32 v%d, 0x%x'%(C0,f2u(GC0))); a('v_mov_b32 v%d, 0x%x'%(C0+1,f2u(GC0)))
        a('v_mov_b32 v%d, 0x%x'%(C1,f2u(GC1))); a('v_mov_b32 v%d, 0x%x'%(C1+1,f2u(GC1)))
        a('v_mov_b32 v%d, 1.0'%ONE); a('v_mov_b32 v%d, 1.0'%(ONE+1))
        TMP=[56,58,60,62]; prs=[(i,p) for i in range(2) for p in range(2)]
        if role=='z2':
            if not EXP.get('noz2prio'): a('s_setprio 3')
            RR=64; NM=72; CS=80; CSb=86; SUM=92; SQ=100; GRN=56; VO=118; PK=108
            a('s_lshl_b32 s%d, s%d, 7'%(S_T0,S_PW)); a('v_lshlrev_b32 v3, 4, v2'); a('v_add_u32 v3, s%d, v3'%S_T0); a('v_add_u32 v3, %d, v3'%T_R)
            for i in range(2):
                a('ds_read_b128 %s, v3 offset:%d'%(vr(RR+4*i,4),i*64)); a('ds_read_b128 %s, v3 offset:%d'%(vr(NM+4*i,4),512+i*64))
            a('v_lshlrev_b32 v4, 2, v1'); a('v_add_u32 v4, %d, v4'%(T_CS0+h*320))
            for j in range(nj):
                a('ds_read_b32 v%d, v4 offset:%d'%(CS+j,j*64)); a('ds_read_b32 v%d, v4 offset:%d'%(CSb+j,640+j*64))
            for k in range(8): a('v_mov_b32 v%d, 0'%(SUM+k)); a('v_mov_b32 v%d, 0'%(SQ+k))
            add64(a,S_T2,S_WS,WS_GR); srd(a,SRD_G,S_T2,S_T2+1,16*12288)
            a('s_mul_i32 s%d, s%d, 12288'%(S_SO,S_RB))
            a('s_lshl_b32 s%d, s%d, 1'%(S_T0,S_CT)); a('s_add_u32 s%d, s%d, %d'%(S_T0,S_T0,h)); a('s_lshl_b32 s%d, s%d, 10'%(S_T0,S_T0))
            a('s_lshl_b32 s%d, s%d, 8'%(S_T1,S_PW)); a('s_add_u32 s%d, s%d, s%d'%(S_T0,S_T0,S_T1)); a('s_add_u32 s%d, s%d, s%d'%(S_SO2,S_SO,S_T0))
            a('s_waitcnt lgkmcnt(0)')
            for j in range(nj): a('v_add_f32 v%d, v%d, v%d'%(CS+j,CS+j,CSb+j))
            for j in range(nj):
                csr=CS+j; cspair=vr(csr&~1,2); sel=csr&1
                for k,(i,p) in enumerate(prs): a('v_pk_mul_f32 %s, %s, %s op_sel:[0,%d] op_sel_hi:[1,%d]'%(vr(TMP[k],2),vr(NM+4*i+2*p,2),cspair,sel,sel))
                for k,(i,p) in enumerate(prs):
                    r=acc(i,j)+2*p; a('v_pk_fma_f32 %s, %s, %s, %s'%(vr(r,2),vr(r,2),vr(RR+4*i+2*p,2),vr(TMP[k],2)))
                gelu_pairs(a,[acc(i,j)+2*p for (i,p) in prs],TMP,C0,C1,ONE)
                for k,(i,p) in enumerate(prs):
                    r=acc(i,j)+2*p
                    a('v_pk_add_f32 %s, %s, %s'%(vr(SUM+4*i+2*p,2),vr(SUM+4*i+2*p,2),vr(r,2)))
                    a('v_pk_fma_f32 %s, %s, %s, %s'%(vr(SQ+4*i+2*p,2),vr(r,2),vr(r,2),vr(SQ+4*i+2*p,2)))
            if EXP.get('z2st'): gc.stamp(a,1)
            for sh in (8,4,2):
                for k in range(8): a('v_add_f32_dpp v%d, v%d, v%d row_ror:%d row_mask:0xf bank_mask:0xf'%(SUM+k,SUM+k,SUM+k,sh))
                for k in range(8): a('v_add_f32_dpp v%d, v%d, v%d row_ror:%d row_mask:0xf bank_mask:0xf'%(SQ+k,SQ+k,SQ+k,sh))
            for k in range(8): a('v_add_f32_dpp v%d, v%d, v%d row_ror:1 row_mask:0xf bank_mask:0xf'%(GRN+2*k,SUM+k,SUM+k))
            for k in range(8): a('v_add_f32_dpp v%d, v%d, v%d row_ror:1 row_mask:0xf bank_mask:0xf'%(GRN+2*k+1,SQ+k,SQ+k))
            a('v_lshlrev_b32 v3, 5, v2'); a('v_cmp_eq_u32 vcc, 0, v1'); a('s_and_saveexec_b64 s[%d:%d], vcc'%(S_EX,S_EX+1))
            for i in range(2):
                for p in range(2): a('buffer_store_dwordx4 %s, v3, s[%d:%d], s%d offen offset:%d sc1'%(vr(GRN+8*i+4*p,4),SRD_G,SRD_G+3,S_SO2,i*128+p*16))
            a('s_mov_b64 exec, s[%d:%d]'%(S_EX,S_EX+1))
            if EXP.get('z2st'): gc.stamp(a,2)
            PL=72
            if not EXP.get('oldpoll'):
                add64(a,S_T2,S_WS,WS_FG); srd(a,SRD_O2,S_T2,S_T2+1,4096)
                a('s_lshl_b32 s%d, s%d, 8'%(S_T0,S_RB)); a('s_lshl_b32 s%d, s%d, 6'%(S_T1,S_PW)); a('s_add_u32 s%d, s%d, s%d'%(S_T0,S_T0,S_T1))
                a('s_lshl_b32 s%d, s%d, 1'%(S_T1,S_CT)); a('s_add_u32 s%d, s%d, %d'%(S_T1,S_T1,h)); a('s_lshl_b32 s%d, s%d, 2'%(S_T1,S_T1)); a('s_add_u32 s%d, s%d, s%d'%(S_T1,S_T1,S_T0))
                a('v_mov_b32 v6, 1'); a('v_mov_b32 v7, 0'); a('s_mov_b32 exec_lo, 1'); a('s_mov_b32 exec_hi, 0')
                a('buffer_store_dword v6, v7, s[%d:%d], s%d offen sc1'%(SRD_O2,SRD_O2+3,S_T1)); a('s_mov_b64 exec, -1')
                a('v_lshlrev_b32 v7, 2, v0'); a('v_mov_b32 v8, 0x7fffff00'); a('v_cmp_gt_u32 vcc, 12, v0'); a('s_nop 1'); a('v_cndmask_b32 v7, v8, v7, vcc'); a('v_cndmask_b32_e64 v8, 1, 0, vcc')
                a('s_mov_b32 s%d, 0'%S_I)
                a('buffer_load_dword v9, v7, s[%d:%d], s%d offen sc1'%(SRD_O2,SRD_O2+3,S_T0))
                a.lab(nm+'_hp')
                for r0,r1 in ((9,10),(10,9)):
                    a('buffer_load_dword v%d, v7, s[%d:%d], s%d offen sc1'%(r1,SRD_O2,SRD_O2+3,S_T0)); a('s_waitcnt vmcnt(1)')
                    a('v_or_b32 v11, v%d, v8'%r0); a('v_cmp_ne_u32 vcc, 1, v11'); a('s_nop 1'); a('s_cmp_eq_u64 vcc, 0'); a('s_cbranch_scc1 %s_hok'%nm)
                a('s_add_u32 s%d, s%d, 1'%(S_I,S_I)); a('s_cmp_lt_u32 s%d, %d'%(S_I,POLL_BOUND)); a('s_cbranch_scc1 %s_hp'%nm)
                a.lab(nm+'_hok')
            a('v_and_b32 v4, 31, v0'); a('v_lshrrev_b32 v5, 5, v0'); a('v_mul_u32_u24 v5, 6144, v5'); a('v_lshl_add_u32 v4, v4, 3, v5')
            a('s_lshl_b32 s%d, s%d, 8'%(S_T1,S_PW)); a('v_add_u32 v4, s%d, v4'%S_T1); a('v_add_u32 v5, 4096, v4')
            a('s_mov_b32 s%d, 0'%S_I)
            a.lab(nm+'_poll')
            for k in range(6): a('buffer_load_dwordx2 %s, v%d, s[%d:%d], s%d offen offset:%d sc1'%(vr(PL+2*k,2),4 if k<4 else 5,SRD_G,SRD_G+3,S_SO,(k%4)*1024))
            a('s_waitcnt vmcnt(0)')
            a('v_max3_u32 v6, v%d, v%d, v%d'%(PL,PL+1,PL+2))
            for k in range(3,12,2):
                a('v_max3_u32 v6, v6, v%d, v%d'%(PL+k,PL+k+1) if k+1<12 else 'v_max_u32 v6, v6, v%d'%(PL+k))
            a('v_cmp_eq_u32 s[%d:%d], -1, v6'%(S_EX,S_EX+1)); a('s_nop 1'); a('s_cmp_eq_u64 s[%d:%d], 0'%(S_EX,S_EX+1)); a('s_cbranch_scc1 %s_rdy'%nm)
            a('s_add_u32 s%d, s%d, 1'%(S_I,S_I)); a('s_cmp_lt_u32 s%d, %d'%(S_I,POLL_BOUND)); a('s_cbranch_scc1 %s_poll'%nm)
            a.lab(nm+'_rdy')
            if EXP.get('z2st'): gc.stamp(a,3)
            a('v_pk_add_f32 %s, %s, %s'%(vr(PL,2),vr(PL,2),vr(PL+2,2))); a('v_pk_add_f32 %s, %s, %s'%(vr(PL+4,2),vr(PL+4,2),vr(PL+6,2))); a('v_pk_add_f32 %s, %s, %s'%(vr(PL+8,2),vr(PL+8,2),vr(PL+10,2)))
            a('v_pk_add_f32 %s, %s, %s'%(vr(PL,2),vr(PL,2),vr(PL+4,2))); a('v_pk_add_f32 %s, %s, %s'%(vr(PL,2),vr(PL,2),vr(PL+8,2)))
            a('v_mov_b32 v%d, v%d'%(PL+2,PL)); a('v_mov_b32 v%d, v%d'%(PL+3,PL+1)); a('s_nop 1')
            a('v_permlane32_swap_b32 v%d, v%d'%(PL,PL+2)); a('v_permlane32_swap_b32 v%d, v%d'%(PL+1,PL+3)); a('s_nop 1')
            a('v_pk_add_f32 %s, %s, %s'%(vr(PL,2),vr(PL,2),vr(PL+2,2)))
            a('v_mul_f32 v%d, 0x%x, v%d'%(PL,f2u(1.0/864),PL)); a('v_mul_f32 v%d, 0x%x, v%d'%(PL+1,f2u(1.0/864),PL+1))
            a('v_fma_f32 v%d, -v%d, v%d, v%d'%(PL+1,PL,PL,PL+1)); a('v_max_f32 v%d, 0, v%d'%(PL+1,PL+1)); a('v_add_f32 v%d, 0x%x, v%d'%(PL+1,f2u(1e-5),PL+1))
            a('v_rsq_f32 v%d, v%d'%(PL+2,PL+1)); a('s_nop 0'); a('v_mul_f32 v%d, v%d, v%d'%(PL+3,PL,PL+2)); a('v_sub_f32 v%d, 0, v%d'%(PL+3,PL+3))
            a('s_lshl_b32 s%d, s%d, 8'%(S_T0,S_WAVE)); a('s_add_u32 s%d, s%d, %d'%(S_T0,S_T0,T_W2))
            a('v_and_b32 v4, 31, v0'); a('v_lshlrev_b32 v4, 2, v4'); a('v_add_u32 v4, s%d, v4'%S_T0)
            a('ds_write_b32 v4, v%d'%(PL+2)); a('ds_write_b32 v4, v%d offset:128'%(PL+3))
            a('v_lshlrev_b32 v5, 4, v2'); a('v_add_u32 v5, s%d, v5'%S_T0)
            a('s_waitcnt lgkmcnt(0)')
            for i in range(2):
                a('ds_read_b128 %s, v5 offset:%d'%(vr(RR+4*i,4),i*64)); a('ds_read_b128 %s, v5 offset:%d'%(vr(84+4*i,4),128+i*64))
            NM2=84
            a('s_mul_i32 s%d, s%d, %d'%(S_T0,S_CT,Z2_CT)); a('s_lshl_b32 s%d, s%d, 1'%(S_T1,S_RB)); a('s_lshr_b32 s%d, s%d, 1'%(S_T2,S_PW))
            a('s_add_u32 s%d, s%d, s%d'%(S_T1,S_T1,S_T2)); a('s_mul_i32 s%d, s%d, 18432'%(S_T1,S_T1)); a('s_add_u32 s%d, s%d, s%d'%(S_T0,S_T0,S_T1))
            a('s_and_b32 s%d, s%d, 1'%(S_T1,S_PW)); a('s_mul_i32 s%d, s%d, 9216'%(S_T1,S_T1)); a('s_add_u32 s%d, s%d, s%d'%(S_T0,S_T0,S_T1))
            a('s_add_u32 s%d, s%d, %d'%(S_SO,S_T0,5120*h))
            srd(a,SRD_O,S_WS,S_WS+1,6*Z2_CT)
            a('v_lshlrev_b32 v%d, 4, v0'%VO)
            a('s_waitcnt lgkmcnt(0)')
            for j in range(nj):
                for k,(i,p) in enumerate(prs):
                    r=acc(i,j)+2*p; a('v_pk_fma_f32 %s, %s, %s, %s'%(vr(r,2),vr(r,2),vr(RR+4*i+2*p,2),vr(NM2+4*i+2*p,2)))
                o=PK+4*(j&1)
                for k,(i,p) in enumerate(prs):
                    r=acc(i,j)+2*p; a('v_cvt_pk_bf16_f32 v%d, v%d, v%d'%(o+k,r,r+1))
                a('s_nop 1')
                a('v_permlane32_swap_b32 v%d, v%d'%(o,o+2)); a('v_permlane32_swap_b32 v%d, v%d'%(o+1,o+3)); a('s_nop 1')
                a('v_permlane16_swap_b32 v%d, v%d'%(o,o+2)); a('v_permlane16_swap_b32 v%d, v%d'%(o+1,o+3))
                if j<4: a('buffer_store_dwordx4 %s, v%d, s[%d:%d], s%d offen offset:%d%s'%(vr(o,4),VO,SRD_O,SRD_O+3,S_SO,j*1024,g2.STF))
                else:
                    a('s_add_u32 s%d, s%d, 4096'%(S_SO,S_SO)); a('buffer_store_dwordx4 %s, v%d, s[%d:%d], s%d offen%s'%(vr(o,4),VO,SRD_O,SRD_O+3,S_SO,g2.STF))
            a('s_branch K1_end')
        else:
            RR=64; NM=66; CS=68; CSb=88; PK=100; VO=118
            a('s_lshl_b32 s%d, s%d, 7'%(S_T0,S_PW)); a('v_lshlrev_b32 v3, 2, v1'); a('v_add_u32 v3, s%d, v3'%S_T0); a('v_add_u32 v3, %d, v3'%T_R)
            for i in range(2):
                a('ds_read_b32 v%d, v3 offset:%d'%(RR+i,i*64)); a('ds_read_b32 v%d, v3 offset:%d'%(NM+i,512+i*64))
            a('v_lshlrev_b32 v4, 4, v2'); a('v_add_u32 v4, %d, v4'%(T_CS0+320*h))
            for j in range(nj):
                a('ds_read_b128 %s, v4 offset:%d'%(vr(CS+4*j,4),j*64)); a('ds_read_b128 %s, v4 offset:%d'%(vr(CSb+4*j,4),640+j*64))
            a('s_mul_i32 s%d, s%d, 6'%(S_T0,S_RB)); a('s_add_u32 s%d, s%d, s%d'%(S_T0,S_T0,S_CT)); a('s_lshl_b32 s%d, s%d, 3'%(S_T0,S_T0))
            a('s_add_u32 s%d, s%d, s%d'%(S_T0,S_T0,S_WAVE)); a('s_mul_i32 s%d, s%d, 5120'%(S_SO,S_T0))
            add64(a,S_T2,S_WS,WS_Z1); srd(a,SRD_O,S_T2,S_T2+1,96*40960)
            a('v_lshlrev_b32 v%d, 4, v0'%VO)
            a('s_waitcnt lgkmcnt(0)')
            for j in range(nj):
                for p in range(2): a('v_pk_add_f32 %s, %s, %s'%(vr(CS+4*j+2*p,2),vr(CS+4*j+2*p,2),vr(CSb+4*j+2*p,2)))
            for j in range(nj):
                for k,(i,p) in enumerate(prs): a('v_pk_mul_f32 %s, %s, %s op_sel:[0,%d] op_sel_hi:[1,%d]'%(vr(TMP[k],2),vr(CS+4*j+2*p,2),vr(NM,2),i,i))
                for k,(i,p) in enumerate(prs):
                    r=acc(i,j)+2*p; a('v_pk_fma_f32 %s, %s, %s, %s op_sel:[0,%d,0] op_sel_hi:[1,%d,1]'%(vr(r,2),vr(r,2),vr(RR,2),vr(TMP[k],2),i,i))
                gelu_pairs(a,[acc(i,j)+2*p for (i,p) in prs],TMP,C0,C1,ONE)
                o=acc(0,j) if not EXP.get('z1early') else PK+4*(j&1)
                for k,(i,p) in enumerate(prs):
                    r=acc(i,j)+2*p; a('v_cvt_pk_bf16_f32 v%d, v%d, v%d'%(o+k,r,r+1))
                if EXP.get('z1early'):
                    if j<4: a('buffer_store_dwordx4 %s, v%d, s[%d:%d], s%d offen offset:%d%s'%(vr(o,4),VO,SRD_O,SRD_O+3,S_SO,j*1024,g2.STF))
                    else:
                        a('s_add_u32 s%d, s%d, 4096'%(S_SO,S_SO)); a('buffer_store_dwordx4 %s, v%d, s[%d:%d], s%d offen%s'%(vr(o,4),VO,SRD_O,SRD_O+3,S_SO,g2.STF))
            if not EXP.get('z1early'):
                for j in range(nj):
                    if j<4: a('buffer_store_dwordx4 %s, v%d, s[%d:%d], s%d offen offset:%d%s'%(vr(acc(0,j),4),VO,SRD_O,SRD_O+3,S_SO,j*1024,g2.STF))
                    else:
                        a('s_add_u32 s%d, s%d, 4096'%(S_SO,S_SO)); a('buffer_store_dwordx4 %s, v%d, s[%d:%d], s%d offen%s'%(vr(acc(0,j),4),VO,SRD_O,SRD_O+3,S_SO,g2.STF))
            a('s_branch K1_end')
    a.lab('K1Z_prod')
    XO=[2,3]; WO=[4,5,6,7,8]
    if EXP.get('same'): a('s_mov_b32 s%d, 0'%S_RB); a('s_mov_b32 s%d, 0'%S_CT)
    a('s_sub_u32 s%d, s%d, 8'%(S_PW,S_WAVE))
    a('v_lshrrev_b32 v20, 3, v0'); a('s_lshl_b32 s%d, s%d, 5'%(S_T0,S_PW)); a('v_add_u32 v21, s%d, v20'%S_T0); a('v_mul_u32_u24 v21, 1280, v21')
    a('v_and_b32 v22, 7, v0'); a('v_xor_b32 v22, v22, v20')
    a('v_lshl_add_u32 v%d, v22, 4, v21'%XO[0]); a('v_mov_b32 v%d, v%d'%(XO[1],XO[0]))
    a('s_mul_i32 s%d, s%d, 288'%(S_T0,S_CT)); a('s_cmp_eq_u32 s%d, 0'%S_PAR); a('s_cselect_b32 s%d, 1728, 0'%S_T1); a('s_cselect_b32 s%d, 0, 1728'%S_T2)
    a('s_add_u32 s%d, s%d, s%d'%(S_T1,S_T1,S_T0)); a('s_add_u32 s%d, s%d, s%d'%(S_T2,S_T2,S_T0))
    a('v_mov_b32 v24, s%d'%S_T1); a('v_mov_b32 v25, s%d'%S_T2)
    for i in range(5):
        a('s_lshl_b32 s%d, s%d, 6'%(S_T0,S_PW)); a('s_add_u32 s%d, s%d, %d'%(S_T0,S_T0,256*i)); a('v_add_u32 v20, s%d, v0'%S_T0)
        a('v_mul_u32_u24 v21, 3641, v20'); a('v_lshrrev_b32 v21, 16, v21')
        a('v_mul_u32_u24 v22, 18, v21'); a('v_sub_u32 v22, v20, v22'); a('v_cmp_gt_u32 vcc, 10, v22')
        a('v_and_b32 v26, 0x23, v21'); a('v_bfe_u32 v27, v21, 2, 2'); a('v_lshl_or_b32 v26, v27, 3, v26'); a('v_bfe_u32 v27, v21, 4, 1'); a('v_lshl_or_b32 v21, v27, 2, v26')
        a('v_mul_u32_u24 v21, 3456, v21'); a('v_lshl_add_u32 v21, v22, 4, v21')
        a('v_cndmask_b32 v23, v25, v24, vcc'); a('v_add_u32 v%d, v21, v23'%WO[i])
    a('s_mov_b32 s%d, 0'%S_SLI)
    krot(a); a('s_lshl_b32 s%d, s%d, 7'%(S_KX,S_T0)); a('s_mul_i32 s%d, s%d, %d'%(S_KW,S_T0,64*3456))
    a('s_waitcnt lgkmcnt(0)')
    a('s_mul_i32 s%d, s%d, %d'%(S_T0,S_RB,128*1280)); add64(a,S_X,S_X,'s%d'%S_T0); srd(a,SRD_X,S_X,S_X+1,128*1280)
    srd(a,SRD_W,S_WIN,S_WIN+1,640*3456)
    def issueZ():
        a('s_lshl_b32 s%d, s%d, 12'%(S_T,S_PW)); a('s_add_u32 s%d, s%d, s%d'%(S_T,S_T,S_SLI))
        for j in range(4):
            a('s_add_u32 m0, s%d, %d'%(S_T,j*1024)); a('s_add_u32 s%d, s%d, %d'%(S_SO,S_KX,j*10240))
            a(ld('buffer_load_dwordx4 v%d, s[%d:%d], s%d offen lds'%(XO[j&1],SRD_X,SRD_X+3,S_SO)))
        a('s_lshl_b32 s%d, s%d, 10'%(S_T,S_PW)); a('s_add_u32 s%d, s%d, s%d'%(S_T,S_T,S_SLI))
        lab=a.newlab('K1Zp_s')
        for i in range(5):
            if i==4: a('s_cmp_lt_u32 s%d, 2'%S_PW); a('s_cbranch_scc0 %s'%lab)
            a('s_add_u32 m0, s%d, %d'%(S_T,16384+i*4096)); a('s_nop 0')
            a(ld('buffer_load_dwordx4 v%d, s[%d:%d], s%d offen lds'%(WO[i],SRD_W,SRD_W+3,S_KW)))
        a.lab(lab)
        slot_advance(a,S_SLI,SLZ); a('s_add_u32 s%d, s%d, 128'%(S_KX,S_KX)); a('s_add_u32 s%d, s%d, %d'%(S_KW,S_KW,64*3456))
        a('s_cmp_eq_u32 s%d, 1280'%S_KX); a('s_cselect_b32 s%d, 0, s%d'%(S_KX,S_KX)); a('s_cselect_b32 s%d, 0, s%d'%(S_KW,S_KW))
    dma_producer(a,'K1Zp',NK1,8,issueZ,post=1)
    a('s_branch K1_end')
    a.lab('K1Z_work')
    a('s_sub_u32 s%d, s%d, 12'%(S_PW,S_WAVE))
    a('s_waitcnt lgkmcnt(0)')
    late=worker(a,'K1Zw',SLZ,True)
    a('s_waitcnt lgkmcnt(0)'); a('s_barrier'); late(); a('s_branch K1_end')

    a.lab('K1A_entry')
    a('s_sub_u32 s%d, s%d, 24'%(S_T0,S_J)); a('s_lshr_b32 s%d, s%d, 1'%(S_T1,S_T0)); a('s_and_b32 s%d, s%d, 1'%(S_CT,S_T0))
    a('s_lshl_b32 s%d, s%d, 2'%(S_RB,S_G)); a('s_add_u32 s%d, s%d, s%d'%(S_RB,S_RB,S_T1))
    a('s_cmp_ge_u32 s%d, 12'%S_WAVE); a('s_cbranch_scc1 K1A_work')
    a('s_cmp_ge_u32 s%d, 8'%S_WAVE); a('s_cbranch_scc1 K1A_prod')
    ACC=16; FA=56; FB=84; XA=[112,113]; WA2=[114,115]
    a('s_and_b32 s%d, s%d, 3'%(S_PW,S_WAVE)); a('s_lshr_b32 s%d, s%d, 2'%(S_H,S_WAVE))
    a('v_and_b32 v1, 15, v0'); a('v_lshrrev_b32 v2, 4, v0'); a('v_and_b32 v3, 7, v0'); a('v_xor_b32 v3, v3, v2'); a('v_lshlrev_b32 v3, 4, v3')
    a('v_lshl_add_u32 v3, v1, 7, v3')
    a('s_lshl_b32 s%d, s%d, 11'%(S_T0,S_PW)); a('v_add_u32 v%d, s%d, v3'%(XA[0],S_T0)); a('v_xor_b32 v%d, 64, v%d'%(XA[1],XA[0]))
    a('s_mul_i32 s%d, s%d, %d'%(S_T0,S_H,80*128)); a('s_add_u32 s%d, s%d, 16384'%(S_T0,S_T0)); a('v_add_u32 v%d, s%d, v3'%(WA2[0],S_T0)); a('v_xor_b32 v%d, 64, v%d'%(WA2[1],WA2[0]))
    ln1_row(a)
    for k in range(40): a('v_mov_b32 v%d, 0'%(ACC+k))
    ln1_row_finish(a)
    def accA(tb,j): return ACC+(j*2+tb)*4
    def rdA(st,sub):
        F=FA if st==0 else FB; m=[]
        for tb in range(2): m.append('ds_read_b128 %s, v%d offset:%d'%(vr(F+tb*4,4),XA[sub],tb*8192))
        for j in range(5): m.append('ds_read_b128 %s, v%d offset:%d'%(vr(F+8+j*4,4),WA2[sub],j*2048))
        return m
    def mfA(st):
        F=FA if st==0 else FB; m=[]
        for j in range(5):
            for tb in range(2):
                c=vr(accA(tb,j),4); m.append('v_mfma_f32_16x16x32_bf16 %s, %s, %s, %s'%(c,vr(F+tb*4,4),vr(F+8+j*4,4),c))
        return m
    a('s_cmp_eq_u32 s%d, 0'%S_H); a('s_cbranch_scc0 K1A_c1')
    consumer_loop(a,'K1A0',SLA,NK1,XA+WA2,rdA,mfA,lag=True,hook=ln1_hook(a),hook_at=2)
    a('s_branch K1A_cd')
    a.lab('K1A_c1')
    consumer_loop(a,'K1A1',SLA,NK1,XA+WA2,rdA,mfA,lag=False,hook=ln1_hook(a),hook_at=2)
    a.lab('K1A_cd')
    a('s_barrier')
    if EXP.get('fine') is None: gc.stamp(a,4)
    RT=56; RB_=60; RO=64; T4=[66,68]; PK=70; VO=76
    a('s_lshl_b32 s%d, s%d, 6'%(S_T0,S_PW)); a('v_lshlrev_b32 v3, 4, v2'); a('v_add_u32 v3, s%d, v3'%S_T0); a('v_add_u32 v3, %d, v3'%T_R)
    a('ds_read_b128 %s, v3'%vr(RT,4)); a('ds_read_b128 %s, v3 offset:256'%vr(RB_,4))
    a('s_mul_i32 s%d, s%d, %d'%(S_T0,S_HALF,AE_MAT)); a('s_lshl_b32 s%d, s%d, 1'%(S_T1,S_CT)); a('s_add_u32 s%d, s%d, s%d'%(S_T1,S_T1,S_H))
    a('s_mul_i32 s%d, s%d, 163840'%(S_T1,S_T1)); a('s_add_u32 s%d, s%d, s%d'%(S_T0,S_T0,S_T1)); a('s_mul_i32 s%d, s%d, 10240'%(S_T1,S_RB))
    a('s_add_u32 s%d, s%d, s%d'%(S_T0,S_T0,S_T1)); a('s_lshr_b32 s%d, s%d, 1'%(S_T1,S_PW)); a('s_mul_i32 s%d, s%d, 5120'%(S_T1,S_T1)); a('s_add_u32 s%d, s%d, s%d'%(S_SO,S_T0,S_T1))
    add64(a,S_T2,S_WS,WS_AE); srd(a,SRD_O,S_T2,S_T2+1,2*AE_MAT)
    a('s_and_b32 s%d, s%d, 1'%(S_T0,S_PW)); a('s_lshl_b32 s%d, s%d, 9'%(S_T0,S_T0))
    a('v_lshrrev_b32 v3, 1, v2'); a('v_lshlrev_b32 v3, 8, v3'); a('v_lshl_add_u32 v3, v1, 4, v3'); a('v_and_b32 v4, 1, v2'); a('v_lshl_add_u32 v3, v4, 3, v3')
    a('v_add_u32 v%d, s%d, v3'%(VO,S_T0))
    a('s_waitcnt lgkmcnt(0)')
    a('s_or_b32 s%d, s%d, s%d'%(S_T0,S_RB,S_PW)); a('s_or_b32 s%d, s%d, s%d'%(S_T0,S_T0,S_HALF)); a('s_cmp_eq_u32 s%d, 0'%S_T0); a('s_cbranch_scc0 K1A_nosp')
    add64(a,S_T2,S_WS,WS_A1024); srd(a,SRD_O2,S_T2,S_T2+1,1280)
    a('s_mul_i32 s%d, s%d, 640'%(S_T0,S_CT)); a('s_mul_i32 s%d, s%d, 320'%(S_T1,S_H)); a('s_add_u32 s%d, s%d, s%d'%(S_T0,S_T0,S_T1))
    a('v_lshlrev_b32 v5, 2, v1')
    a('v_cmp_gt_u32 vcc, 16, v0'); a('s_and_saveexec_b64 s[%d:%d], vcc'%(S_EX,S_EX+1))
    for j in range(5):
        a('v_mul_f32 v%d, v%d, v%d'%(RO,accA(1,j),RB_))
        a('buffer_store_dword v%d, v5, s[%d:%d], s%d offen offset:%d%s'%(RO,SRD_O2,SRD_O2+3,S_T0,j*64,g2.STF)); a('s_nop 0')
    a('v_mov_b32 v%d, 0'%RB_)
    a('s_mov_b64 exec, s[%d:%d]'%(S_EX,S_EX+1))
    a.lab('K1A_nosp')
    a('s_cmp_eq_u32 s%d, 0'%S_HALF); a('s_cselect_b32 s%d, 1.0, -1.0'%S_T0)
    for k in range(4): a('v_mul_f32 v%d, s%d, v%d'%(RB_+k,S_T0,RB_+k))
    for j in range(5):
        for p in range(2): a('v_pk_mul_f32 %s, %s, %s'%(vr(T4[p],2),vr(accA(1,j)+2*p,2),vr(RB_+2*p,2)))
        for p in range(2): a('v_pk_fma_f32 %s, %s, %s, %s'%(vr(T4[p],2),vr(accA(0,j)+2*p,2),vr(RT+2*p,2),vr(T4[p],2)))
        for p in range(2): a('v_cvt_pk_bf16_f32 v%d, v%d, v%d'%(PK+p+2*(j&1),T4[p],T4[p]+1))
        if j<4: a('buffer_store_dwordx2 %s, v%d, s[%d:%d], s%d offen offset:%d%s'%(vr(PK+2*(j&1),2),VO,SRD_O,SRD_O+3,S_SO,j*1024,g2.STF))
        else:
            a('s_add_u32 s%d, s%d, 4096'%(S_SO,S_SO)); a('buffer_store_dwordx2 %s, v%d, s[%d:%d], s%d offen%s'%(vr(PK+2*(j&1),2),VO,SRD_O,SRD_O+3,S_SO,g2.STF))
    a('s_branch K1_end')
    a.lab('K1A_prod')
    XO4=[2,3,4,5]; WO1=6
    if EXP.get('same'): a('s_mov_b32 s%d, 0'%S_RB); a('s_mov_b32 s%d, 0'%S_CT)
    a('s_sub_u32 s%d, s%d, 8'%(S_PW,S_WAVE))
    a('v_lshrrev_b32 v20, 3, v0'); a('v_and_b32 v22, 7, v0'); a('v_xor_b32 v22, v22, v20'); a('v_lshlrev_b32 v22, 4, v22')
    a('s_lshl_b32 s%d, s%d, 6'%(S_T0,S_RB))
    a('s_cmp_lt_u32 s%d, 2'%S_PW); a('s_cbranch_scc0 K1Ap_bot')
    a('s_lshl_b32 s%d, s%d, 5'%(S_T1,S_PW)); a('s_add_u32 s%d, s%d, s%d'%(S_T1,S_T1,S_T0))
    for j in range(4):
        a('v_add_u32 v21, s%d, v20'%S_T1); a('v_add_u32 v21, %d, v21'%(8*j)); a('v_mul_u32_u24 v21, 1280, v21'); a('v_add_u32 v%d, v21, v22'%XO4[j])
    a('s_branch K1Ap_xd')
    a.lab('K1Ap_bot')
    a('s_sub_u32 s%d, s%d, 2'%(S_T1,S_PW)); a('s_lshl_b32 s%d, s%d, 5'%(S_T1,S_T1)); a('s_add_u32 s%d, s%d, s%d'%(S_T1,S_T1,S_T0)); a('s_sub_u32 s%d, 2048, s%d'%(S_T1,S_T1))
    for j in range(4):
        a('v_sub_u32 v21, s%d, v20'%S_T1); a('v_subrev_u32 v21, %d, v21'%(8*j))
        if j==0:
            a('v_cmp_eq_u32 vcc, 2048, v21'); a('v_mov_b32 v23, 1024'); a('s_nop 0'); a('v_cndmask_b32 v21, v21, v23, vcc')
        a('v_mul_u32_u24 v21, 1280, v21'); a('v_add_u32 v%d, v21, v22'%XO4[j])
    a.lab('K1Ap_xd')
    a('s_mul_i32 s%d, s%d, 40'%(S_T0,S_PW)); a('v_add_u32 v21, s%d, v20'%S_T0); a('v_mul_u32_u24 v21, 1280, v21'); a('v_add_u32 v%d, v21, v22'%WO1)
    a('s_mov_b32 s%d, 0'%S_SLI)
    krot(a); a('s_lshl_b32 s%d, s%d, 7'%(S_KX,S_T0))
    a('s_waitcnt lgkmcnt(0)')
    srd(a,SRD_X,S_X,S_X+1,2048*1280)
    a('s_cmp_eq_u32 s%d, 0'%S_HALF); a('s_cselect_b32 s%d, s%d, s%d'%(S_T2,S_WDRE,S_WDIM)); a('s_cselect_b32 s%d, s%d, s%d'%(S_T3,S_WDRE+1,S_WDIM+1))
    a('s_mul_i32 s%d, s%d, %d'%(S_T0,S_CT,160*1280)); a('s_add_u32 s%d, s%d, 1280'%(S_T0,S_T0)); add64(a,S_T2,S_T2,'s%d'%S_T0)
    srd(a,SRD_W,S_T2,S_T2+1,160*1280)
    def issueA():
        a('s_lshl_b32 s%d, s%d, 12'%(S_T,S_PW)); a('s_add_u32 s%d, s%d, s%d'%(S_T,S_T,S_SLI))
        for j in range(4):
            a('s_add_u32 m0, s%d, %d'%(S_T,j*1024)); a('s_nop 0')
            a(ld('buffer_load_dwordx4 v%d, s[%d:%d], s%d offen lds'%(XO4[j],SRD_X,SRD_X+3,S_KX)))
        a('s_mul_i32 s%d, s%d, 5120'%(S_T,S_PW)); a('s_add_u32 s%d, s%d, s%d'%(S_T,S_T,S_SLI))
        for j in range(5):
            a('s_add_u32 m0, s%d, %d'%(S_T,16384+j*1024)); a('s_add_u32 s%d, s%d, %d'%(S_SO,S_KX,j*10240))
            a(ld('buffer_load_dwordx4 v%d, s[%d:%d], s%d offen lds'%(WO1,SRD_W,SRD_W+3,S_SO)))
        slot_advance(a,S_SLI,SLA); a('s_add_u32 s%d, s%d, 128'%(S_KX,S_KX))
        a('s_cmp_eq_u32 s%d, 1280'%S_KX); a('s_cselect_b32 s%d, 0, s%d'%(S_KX,S_KX))
    dma_producer(a,'K1Ap',NK1,9,issueA,post=1)
    a('s_branch K1_end')
    a.lab('K1A_work')
    a('s_sub_u32 s%d, s%d, 12'%(S_PW,S_WAVE))
    a('s_waitcnt lgkmcnt(0)')
    late=worker(a,'K1Aw',SLA,False)
    a('s_waitcnt lgkmcnt(0)'); a('s_barrier'); late()
    kernel_tail(a,'K1',0,S_WS)
```

```python
from g2_common import *
import g2_common as g2
SLG=34816; SLT=28672
K2_LDS=NS*SLG
NK2=16
S_WSP=4; S_WS=6; S_WSRE=8; S_WSIM=10; S_BSP=12; S_WOUT=14
SRD_A=16; SRD_B=20; SRD_O=24; SRD_O2=28; SRD_C=56; SRD_D=60
S_KH=36; S_TB=37

def gen_k2(a,kname):
    kernel_head(a,kname,'K2')
    a('s_load_dwordx4 s[%d:%d], s[0:1], 8'%(S_WSRE,S_WSRE+3))
    a('s_load_dwordx2 s[%d:%d], s[0:1], 56'%(S_WSP,S_WSP+1))
    a('s_load_dwordx2 s[%d:%d], s[0:1], 64'%(S_BSP,S_BSP+1))
    a('s_load_dwordx2 s[%d:%d], s[0:1], 96'%(S_WS,S_WS+1))
    a('s_load_dwordx2 s[%d:%d], s[0:1], 72'%(S_WOUT,S_WOUT+1))
    wave_setup(a,'K2')
    a('s_and_b32 s%d, s2, 7'%S_XCD); a('s_lshr_b32 s%d, s2, 3'%S_J)
    a('s_and_b32 s%d, s%d, 1'%(S_KH,S_XCD))
    a('s_cmp_ge_u32 s%d, 24'%S_J); a('s_cbranch_scc1 K2T_entry')
    a('s_mul_i32 s%d, s%d, 43'%(S_T0,S_J)); a('s_lshr_b32 s%d, s%d, 8'%(S_T0,S_T0))
    a('s_mul_i32 s%d, s%d, 6'%(S_T1,S_T0)); a('s_sub_u32 s%d, s%d, s%d'%(S_CT,S_J,S_T1))
    a('s_lshr_b32 s%d, s%d, 1'%(S_T1,S_XCD)); a('s_lshl_b32 s%d, s%d, 2'%(S_T1,S_T1)); a('s_add_u32 s%d, s%d, s%d'%(S_TB,S_T1,S_T0))
    a('s_cmp_ge_u32 s%d, 8'%S_WAVE); a('s_cbranch_scc1 K2G_prod')
    ACC=16; FA=56; FB=84; WA=[112,113]; ZA=114; Z1L=[2,6,10,116,120]; BB=124
    a('s_and_b32 s%d, s%d, 3'%(S_PW,S_WAVE)); a('s_lshr_b32 s%d, s%d, 2'%(S_H,S_WAVE))
    a('v_and_b32 v6, 15, v0'); a('v_lshrrev_b32 v7, 4, v0'); a('v_and_b32 v8, 7, v0'); a('v_xor_b32 v8, v8, v7'); a('v_lshlrev_b32 v8, 4, v8')
    a('v_lshl_add_u32 v8, v6, 7, v8'); a('s_lshl_b32 s%d, s%d, 12'%(S_T0,S_PW)); a('v_add_u32 v%d, s%d, v8'%(WA[0],S_T0)); a('v_xor_b32 v%d, 64, v%d'%(WA[1],WA[0]))
    a('s_mul_i32 s%d, s%d, 5120'%(S_T0,S_H)); a('s_add_u32 s%d, s%d, 16384'%(S_T0,S_T0)); a('v_lshlrev_b32 v14, 4, v0'); a('v_add_u32 v%d, s%d, v14'%(ZA,S_T0))
    for k in range(40): a('v_mov_b32 v%d, 0'%(ACC+k))
    a('s_mul_i32 s%d, s%d, 6'%(S_T0,S_TB)); a('s_add_u32 s%d, s%d, s%d'%(S_T0,S_T0,S_CT)); a('s_lshl_b32 s%d, s%d, 3'%(S_T0,S_T0))
    a('s_add_u32 s%d, s%d, s%d'%(S_T0,S_T0,S_WAVE)); a('s_mul_i32 s%d, s%d, 5120'%(S_SO,S_T0))
    a('s_lshl_b32 s%d, s%d, 7'%(S_T0,S_TB)); a('s_lshl_b32 s%d, s%d, 5'%(S_T1,S_PW)); a('s_add_u32 s%d, s%d, s%d'%(S_T0,S_T0,S_T1))
    a('v_add_u32 v15, s%d, v6'%S_T0); a('v_lshlrev_b32 v15, 1, v15')
    a('s_waitcnt lgkmcnt(0)')
    add64(a,S_T2,S_WS,WS_Z1); srd(a,SRD_C,S_T2,S_T2+1,96*40960)
    srd(a,SRD_O2,S_BSP,S_BSP+1,4096)
    if EXP.get('stg'):
        for r in range(2,10): a('v_mov_b32 v%d, 0x7fffff00'%r) if r==6 else None
    def pfz_g(tag):
        a('buffer_load_dword v127, v126, s[%d:%d], s%d offen'%(SRD_D,SRD_D+3,S_G))
        l=a.newlab('K2G_pfz')
        a('s_cmp_eq_u32 s%d, 7'%S_WAVE); a('s_cbranch_scc0 %s'%l); a('buffer_load_dword v127, v1, s[%d:%d], s%d offen'%(SRD_D,SRD_D+3,S_G)); a.lab(l)
    if EXP.get('pfz'):
        a('s_mul_i32 s%d, s%d, %d'%(S_T2,S_CT,Z2_CT)); a('s_mul_i32 s%d, s%d, %d'%(S_T3,S_KH,16*18432)); a('s_add_u32 s%d, s%d, s%d'%(S_T1,S_T2,S_T3))
        add64(a,S_T2,S_WS,'s%d'%S_T1); srd(a,SRD_D,S_T2,S_T2+1,16*18432)
        a('s_and_b32 s%d, s%d, 3'%(S_G,S_TB)); a('s_mul_i32 s%d, s%d, %d'%(S_G,S_G,36*128))
        for rep_,dst in ((0,126),(1,1)):
            a('s_lshl_b32 s%d, s%d, 6'%(S_T0,S_WAVE))
            if rep_==1: a('s_mov_b32 s%d, 512'%S_T0)
            a('v_add_u32 v9, s%d, v0'%S_T0); a('v_mul_u32_u24 v10, 1821, v9'); a('v_lshrrev_b32 v10, 16, v10')
            a('v_mul_u32_u24 v11, 36, v10'); a('v_sub_u32 v11, v9, v11'); a('v_mul_u32_u24 v10, 18432, v10'); a('v_lshl_add_u32 v%d, v11, 7, v10'%dst)
    def acc(i,j): return ACC+(j*2+i)*4
    a('s_cmp_eq_u32 s%d, 0'%S_H); a('s_cbranch_scc0 K2Gc_1')
    for h in range(2):
        nj=5-h; nm='K2Gc_%d'%h
        a.lab(nm)
        def hk(nj=nj):
            for j in range(min(nj,4)): a('buffer_load_dwordx4 %s, v14, s[%d:%d], s%d offen offset:%d'%(vr(Z1L[j],4),SRD_C,SRD_C+3,S_SO,j*1024))
            if nj==5:
                a('s_add_u32 s%d, s%d, 4096'%(S_SO,S_SO)); a('buffer_load_dwordx4 %s, v14, s[%d:%d], s%d offen'%(vr(Z1L[4],4),SRD_C,SRD_C+3,S_SO))
            a('buffer_load_ushort v%d, v15, s[%d:%d], 0 offen'%(BB,SRD_O2,SRD_O2+3)); a('buffer_load_ushort v%d, v15, s[%d:%d], 0 offen offset:32'%(BB+1,SRD_O2,SRD_O2+3))
        def rd(st,sub,nj=nj):
            F=FA if st==0 else FB; m=[]
            for i in range(2): m.append('ds_read_b128 %s, v%d offset:%d'%(vr(F+i*4,4),WA[sub],i*2048))
            for j in range(nj): m.append('ds_read_b128 %s, v%d offset:%d'%(vr(F+8+j*4,4),ZA,sub*9216+j*1024))
            return m
        def mf(st,nj=nj):
            F=FA if st==0 else FB; m=[]
            for j in range(nj):
                for i in range(2):
                    c=vr(acc(i,j),4); m.append('v_mfma_f32_16x16x32_bf16 %s, %s, %s, %s'%(c,vr(F+8+j*4,4),vr(F+i*4,4),c))
            return m
        if g2.FUSED[0] and EXP.get('stg'):
            def pk(grp,part,h=h):
                def f():
                    l=a.newlab('K2G_sp'); a('s_cmp_eq_u32 s%d, 4'%S_WAVE); a('s_cbranch_scc0 %s'%l)
                    poll_rbs(a,a.newlab('K2G_spp'),S_WS,S_CT,S_KH,S_TB,grp,R=2,part=part); a.lab(l)
                return f
            HK={11:hk}
            if h==1: HK.update({3:pk(2,'issue'),5:pk(2,'check'),7:pk(3,'issue'),9:pk(3,'check')})
            consumer_loop(a,nm+'L',SLG,NK2,WA+[ZA],rd,mf,hook=HK,lag=(h==0),phase=2)
        else:
          consumer_loop(a,nm+'L',SLG,NK2,WA+[ZA],rd,mf,hook=({EXP.get('z1at',9):hk,EXP.get('pfzat',1):(lambda h=h:pfz_g('%d'%h))} if EXP.get('pfz') else hk),hook_at=EXP.get('z1at',9),lag=(h==0),phase=2)
        a('s_barrier')
        a('s_waitcnt vmcnt(0)')
        a('s_cmp_eq_u32 s%d, 0'%S_KH); a('s_cselect_b32 s%d, 1.0, 0'%S_T0)
        a('v_lshlrev_b32 v%d, 16, v%d'%(BB,BB)); a('v_lshlrev_b32 v%d, 16, v%d'%(BB+1,BB+1))
        a('v_mul_f32 v%d, s%d, v%d'%(BB,S_T0,BB)); a('v_mul_f32 v%d, s%d, v%d'%(BB+1,S_T0,BB+1))
        a('s_mul_i32 s%d, s%d, %d'%(S_T0,S_KH,H_VER)); add64(a,S_T2,S_WS,WS_H); add64(a,S_T2,S_T2,'s%d'%S_T0); srd(a,SRD_O,S_T2,S_T2+1,H_VER)
        a('s_lshl_b32 s%d, s%d, 3'%(S_T0,S_TB)); a('s_lshl_b32 s%d, s%d, 1'%(S_T1,S_PW)); a('s_add_u32 s%d, s%d, s%d'%(S_T0,S_T0,S_T1)); a('s_mul_i32 s%d, s%d, 27648'%(S_T0,S_T0))
        a('s_mul_i32 s%d, s%d, 9'%(S_T1,S_CT)); a('s_add_u32 s%d, s%d, %d'%(S_T1,S_T1,5*h)); a('s_lshl_b32 s%d, s%d, 9'%(S_T1,S_T1))
        a('s_add_u32 s%d, s%d, s%d'%(S_SO,S_T0,S_T1)); a('s_add_u32 s%d, s%d, 27648'%(S_SO2,S_SO))
        a('v_lshlrev_b32 v14, 3, v0')
        TZ=[56,58,60,62]; PK=64
        for j in range(nj):
            prs=[(i,p) for i in range(2) for p in range(2)]
            for k,(i,p) in enumerate(prs):
                z=Z1L[j]+2*i+p
                a('v_lshlrev_b32 v%d, 16, v%d'%(TZ[k],z)); a('v_and_b32 v%d, 0xffff0000, v%d'%(TZ[k]+1,z))
            for k,(i,p) in enumerate(prs):
                r=acc(i,j)+2*p; a('v_pk_add_f32 %s, %s, %s op_sel:[0,%d] op_sel_hi:[1,%d]'%(vr(r,2),vr(r,2),vr(BB,2),i,i))
            for k,(i,p) in enumerate(prs):
                r=acc(i,j)+2*p; a('v_pk_mul_f32 %s, %s, %s'%(vr(r,2),vr(r,2),vr(TZ[k],2)))
            o=PK+4*(j&1)
            for k,(i,p) in enumerate(prs):
                r=acc(i,j)+2*p; a('v_cvt_pk_bf16_f32 v%d, v%d, v%d'%(o+k,r,r+1))
            a('buffer_store_dwordx2 %s, v14, s[%d:%d], s%d offen offset:%d%s'%(vr(o,2),SRD_O,SRD_O+3,S_SO,j*512,g2.STF))
            a('buffer_store_dwordx2 %s, v14, s[%d:%d], s%d offen offset:%d%s'%(vr(o+2,2),SRD_O,SRD_O+3,S_SO2,j*512,g2.STF))
        a('s_branch K2_end')
    a.lab('K2G_prod')
    WO=2; ZO=3; S_ZO=S_PAR
    if EXP.get('same'): a('s_mov_b32 s%d, 0'%S_TB); a('s_mov_b32 s%d, 0'%S_CT); a('s_mov_b32 s%d, 0'%S_KH)
    a('s_sub_u32 s%d, s%d, 8'%(S_PW,S_WAVE))
    a('v_lshrrev_b32 v20, 3, v0'); a('v_and_b32 v22, 7, v0'); a('v_xor_b32 v22, v22, v20'); a('v_lshlrev_b32 v22, 4, v22')
    a('s_lshl_b32 s%d, s%d, 4'%(S_T0,S_PW)); a('v_add_u32 v21, s%d, v20'%S_T0); a('v_lshlrev_b32 v21, 12, v21'); a('v_add_u32 v%d, v21, v22'%WO)
    a('s_mul_i32 s%d, s%d, 3'%(S_T0,S_PW)); a('s_lshl_b32 s%d, s%d, 1'%(S_T1,S_PW)); a('s_add_u32 s%d, s%d, 2'%(S_T1,S_T1))
    a('s_cmp_lt_u32 s%d, 2'%S_PW); a('s_cselect_b32 s%d, s%d, s%d'%(S_ZO,S_T0,S_T1)); a('s_lshl_b32 s%d, s%d, 10'%(S_ZO,S_ZO))
    a('v_lshlrev_b32 v20, 4, v0'); a('v_add_u32 v%d, s%d, v20'%(ZO,S_ZO))
    a('s_mov_b32 s%d, 0'%S_SLI)
    a('s_mul_i32 s%d, s%d, %d'%(S_T0,S_CT,EXP.get('ra',0))); a('s_and_b32 s%d, s%d, 3'%(S_T1,S_TB)); a('s_mul_i32 s%d, s%d, %d'%(S_T1,S_T1,EXP.get('rb',0)))
    a('s_add_u32 s%d, s%d, s%d'%(S_T0,S_T0,S_T1)); a('s_and_b32 s%d, s%d, 15'%(S_T0,S_T0)); a('s_lshl_b32 s%d, s%d, 7'%(S_KX,S_T0)); a('s_mul_i32 s%d, s%d, 18432'%(S_KW,S_T0))
    a('s_mul_i32 s%d, s%d, %d'%(S_T0,S_TB,128*4096)); a('s_lshl_b32 s%d, s%d, 11'%(S_T1,S_KH)); a('s_add_u32 s%d, s%d, s%d'%(S_T0,S_T0,S_T1))
    a('s_sub_u32 s%d, %d, s%d'%(S_T1,128*4096,S_T1))
    a('s_mul_i32 s%d, s%d, %d'%(S_T2,S_CT,Z2_CT)); a('s_mul_i32 s%d, s%d, %d'%(S_T3,S_KH,16*18432)); a('s_add_u32 s%d, s%d, s%d'%(S_SO2,S_T2,S_T3))
    a('s_waitcnt lgkmcnt(0)')
    add64(a,S_WSP,S_WSP,'s%d'%S_T0); srd(a,SRD_A,S_WSP,S_WSP+1,'s%d'%S_T1)
    add64(a,S_T2,S_WS,'s%d'%S_SO2); srd(a,SRD_B,S_T2,S_T2+1,16*18432)
    def issue():
        a('s_lshl_b32 s%d, s%d, 11'%(S_T,S_PW)); a('s_add_u32 s%d, s%d, s%d'%(S_T,S_T,S_SLI))
        for j in range(2):
            a('s_add_u32 m0, s%d, %d'%(S_T,j*1024)); a('s_add_u32 s%d, s%d, %d'%(S_SO,S_KX,j*32768))
            a(ld('buffer_load_dwordx4 v%d, s[%d:%d], s%d offen lds'%(WO,SRD_A,SRD_A+3,S_SO)))
        a('s_add_u32 s%d, s%d, s%d'%(S_T,S_SLI,S_ZO)); a('s_add_u32 m0, s%d, 16384'%S_T); a('s_nop 0')
        for j in range(2): a('buffer_load_dwordx4 v%d, s[%d:%d], s%d offen offset:%d lds'%(ZO,SRD_B,SRD_B+3,S_KW,j*1024))
        lab=a.newlab('K2Gp_t')
        a('s_cmp_lt_u32 s%d, 2'%S_PW); a('s_cbranch_scc0 %s'%lab)
        a('buffer_load_dwordx4 v%d, s[%d:%d], s%d offen offset:2048 lds'%(ZO,SRD_B,SRD_B+3,S_KW))
        a.lab(lab)
        slot_advance(a,S_SLI,SLG); a('s_add_u32 s%d, s%d, 128'%(S_KX,S_KX)); a('s_add_u32 s%d, s%d, 18432'%(S_KW,S_KW))
        a('s_cmp_eq_u32 s%d, 2048'%S_KX); a('s_cselect_b32 s%d, 0, s%d'%(S_KX,S_KX)); a('s_cselect_b32 s%d, 0, s%d'%(S_KW,S_KW))
    if g2.FUSED[0] and EXP.get('stg'):
        c=4
        def setk(k0,k1):
            a('s_cmp_eq_u32 s%d, 0'%S_KH); a('s_cselect_b32 s%d, %d, %d'%(S_T0,k0,k1)); a('s_lshl_b32 s%d, s%d, 7'%(S_KX,S_T0)); a('s_mul_i32 s%d, s%d, 18432'%(S_KW,S_T0))
        def poll(grp):
            l='K2Gp_g%d'%grp; a('s_cmp_eq_u32 s%d, 8'%S_WAVE); a('s_cbranch_scc0 %s'%l); poll_rbs(a,l+'p',S_WS,S_CT,S_KH,S_TB,grp); a.lab(l)
        setk(0,8)
        poll(1); a('s_barrier')
        gc.stamp(a,1)
        issue(); issue()
        gc.stamp(a,2)
        a('s_waitcnt vmcnt(%d)'%c); gc.stamp(a,3); a('s_barrier')
        issue(); issue()
        def seg(i0,i1,nm,first_poll=None,k=None):
            for i in range(i0,i1):
                if i==i0 and first_poll:
                    a('s_waitcnt vmcnt(%d)'%(2*c)); a('s_barrier'); setk(*k); issue()
                else:
                    a('s_waitcnt vmcnt(%d)'%(2*c)); a('s_barrier'); issue()
        seg(1,5,'a'); seg(5,9,'b',2,(12,0)); seg(9,13,'c',3,(8,4))
        for r in (2,1,0):
            a('s_waitcnt vmcnt(%d)'%(r*c)); a('s_barrier')
        gc.stamp(a,4)
        a('s_barrier')
    else:
        dma_producer(a,'K2Gp',NK2,4,issue,phase=2,s_ws=S_WS,post=1)
    a('s_branch K2_end')

    a.lab('K2T_entry')
    a('s_sub_u32 s%d, s%d, 24'%(S_T0,S_J)); a('s_and_b32 s%d, s%d, 3'%(S_CT,S_T0)); a('s_lshr_b32 s%d, s%d, 2'%(S_T0,S_T0))
    a('s_lshr_b32 s%d, s%d, 1'%(S_T1,S_XCD)); a('s_lshl_b32 s%d, s%d, 1'%(S_T1,S_T1)); a('s_add_u32 s%d, s%d, s%d'%(S_TB,S_T1,S_T0))
    a('s_cmp_ge_u32 s%d, 8'%S_WAVE); a('s_cbranch_scc1 K2T_prod')
    a('s_and_b32 s%d, s%d, 3'%(S_PW,S_WAVE)); a('s_lshr_b32 s%d, s%d, 2'%(S_H,S_WAVE))
    a('s_cmp_eq_u32 s%d, 3'%S_PW); a('s_cbranch_scc1 K2T_xpf')
    ACC=16; FA=56; FB=80; WA=[112,113]; AA=114; A1=116
    a('v_lshrrev_b32 v7, 4, v0'); a('v_lshlrev_b32 v5, 4, v7')
    a('v_and_b32 v6, 15, v0'); a('v_and_b32 v8, 7, v0'); a('v_xor_b32 v8, v8, v7'); a('v_lshlrev_b32 v8, 4, v8'); a('v_lshl_add_u32 v8, v6, 7, v8')
    a('s_mul_i32 s%d, s%d, %d'%(S_T0,S_PW,48*128)); a('v_add_u32 v%d, s%d, v8'%(WA[0],S_T0)); a('v_xor_b32 v%d, 64, v%d'%(WA[1],WA[0]))
    a('s_mul_i32 s%d, s%d, 3072'%(S_T0,S_H)); a('s_add_u32 s%d, s%d, 18432'%(S_T0,S_T0)); a('v_lshlrev_b32 v9, 4, v0'); a('v_add_u32 v%d, s%d, v9'%(AA,S_T0))
    for k in range(36): a('v_mov_b32 v%d, 0'%(ACC+k))
    a('s_mul_i32 s%d, s%d, 320'%(S_T0,S_CT)); a('s_mul_i32 s%d, s%d, 192'%(S_T1,S_H)); a('s_add_u32 s%d, s%d, s%d'%(S_SO,S_T0,S_T1))
    a('s_waitcnt lgkmcnt(0)')
    add64(a,S_T2,S_WS,WS_A1024); srd(a,SRD_C,S_T2,S_T2+1,1280)
    def pfz_t(tag):
        a('buffer_load_dword v2, v10, s[%d:%d], s%d offen'%(SRD_D,SRD_D+3,S_G))
        l=a.newlab('K2T_pfz')
        a('s_cmp_lt_u32 s%d, 4'%S_PAR); a('s_cbranch_scc0 %s'%l); a('buffer_load_dword v2, v11, s[%d:%d], s%d offen'%(SRD_D,SRD_D+3,S_G)); a.lab(l)
    if EXP.get('pfz'):
        a('s_mul_i32 s%d, s%d, %d'%(S_T0,S_KH,AE_MAT)); a('s_mul_i32 s%d, s%d, 163840'%(S_T1,S_CT)); a('s_add_u32 s%d, s%d, s%d'%(S_T1,S_T0,S_T1))
        add64(a,S_T2,S_WS,WS_AE); add64(a,S_T2,S_T2,'s%d'%S_T1); srd(a,SRD_D,S_T2,S_T2+1,163840)
        a('s_and_b32 s%d, s%d, 1'%(S_G,S_TB)); a('s_mul_i32 s%d, s%d, %d'%(S_G,S_G,40*128))
        a('s_mul_i32 s%d, s%d, 3'%(S_PAR,S_H)); a('s_add_u32 s%d, s%d, s%d'%(S_PAR,S_PAR,S_PW))
        for rep_,dst in ((0,10),(1,11)):
            a('s_add_u32 s%d, s%d, %d'%(S_T0,S_PAR,6*rep_)); a('s_lshl_b32 s%d, s%d, 6'%(S_T0,S_T0))
            a('v_add_u32 v1, s%d, v0'%S_T0); a('v_mul_u32_u24 v12, 1639, v1'); a('v_lshrrev_b32 v12, 16, v12')
            a('v_mul_u32_u24 v13, 40, v12'); a('v_sub_u32 v13, v1, v13'); a('v_mul_u32_u24 v12, 10240, v12'); a('v_lshl_add_u32 v%d, v13, 7, v12'%dst)
    def accT(i,j): return ACC+(j*3+i)*4
    a('s_cmp_eq_u32 s%d, 0'%S_H); a('s_cbranch_scc0 K2Tc_1')
    for h in range(2):
        nj=3-h; nm='K2Tc_%d'%h
        a.lab(nm)
        def hkT(nj=nj):
            for j in range(nj): a('buffer_load_dwordx4 %s, v5, s[%d:%d], s%d offen offset:%d'%(vr(A1+4*j,4),SRD_C,SRD_C+3,S_SO,j*64))
        def rdT(st,sub,nj=nj):
            F=FA if st==0 else FB; m=[]
            for i in range(3): m.append('ds_read_b128 %s, v%d offset:%d'%(vr(F+i*4,4),WA[sub],i*2048))
            for j in range(nj): m.append('ds_read_b128 %s, v%d offset:%d'%(vr(F+12+j*4,4),AA,sub*5120+j*1024))
            return m
        def mfT(st,nj=nj):
            F=FA if st==0 else FB; m=[]
            for j in range(nj):
                for i in range(3):
                    c=vr(accT(i,j),4); m.append('v_mfma_f32_16x16x32_bf16 %s, %s, %s, %s'%(c,vr(F+12+j*4,4),vr(F+i*4,4),c))
            return m
        consumer_loop(a,nm+'L',SLT,NK2,WA+[AA],rdT,mfT,hook=({4:hkT,EXP.get('pfzat',1):(lambda h=h:pfz_t('%d'%h))} if EXP.get('pfz') else hkT),hook_at=4,lag=(h==0),phase=2)
        a('s_barrier')
        a('s_waitcnt vmcnt(0)')
        a('s_cmp_eq_u32 s%d, 0'%S_KH); a('s_cselect_b32 s%d, 1.0, 0'%S_T0)
        a('v_and_b32 v5, 1, v0'); a('v_lshlrev_b32 v5, 31, v5'); a('v_xor_b32 v5, s%d, v5'%S_T0)
        a('s_mul_i32 s%d, s%d, %d'%(S_T0,S_KH,PQ_MAT)); add64(a,S_T2,S_WS,WS_PQ); add64(a,S_T2,S_T2,'s%d'%S_T0); srd(a,SRD_O,S_T2,S_T2+1,PQ_MAT)
        a('s_mul_i32 s%d, s%d, 144'%(S_T0,S_TB)); a('s_mul_i32 s%d, s%d, 48'%(S_T1,S_PW)); a('s_add_u32 s%d, s%d, s%d'%(S_T0,S_T0,S_T1)); a('s_mul_i32 s%d, s%d, 1280'%(S_T0,S_T0))
        a('s_mul_i32 s%d, s%d, 320'%(S_T1,S_CT)); a('s_add_u32 s%d, s%d, s%d'%(S_T0,S_T0,S_T1)); a('s_add_u32 s%d, s%d, %d'%(S_SO,S_T0,192*h))
        a('v_mul_u32_u24 v6, 1280, v6'); a('v_lshl_add_u32 v6, v7, 4, v6')
        if EXP.get('nopA'):
            for _ in range(EXP['nopA']): a('s_nop 15')
        for j in range(nj):
            for i in range(3):
                r=accT(i,j)
                if EXP.get('plain'):
                    for p in range(4): a('v_fma_f32 v%d, v%d, v5, v%d'%(r+p,A1+4*j+p,r+p))
                else:
                    for p in range(2): a('v_pk_fma_f32 %s, %s, %s, %s op_sel:[0,1,0] op_sel_hi:[1,1,1]'%(vr(r+2*p,2),vr(A1+4*j+2*p,2),vr(4,2),vr(r+2*p,2)))
            if EXP.get('nopB'): a('s_nop 7')
            for i in range(3):
                a('s_add_u32 s%d, s%d, %d'%(S_SO2,S_SO,i*16*1280))
                a('buffer_store_dwordx4 %s, v6, s[%d:%d], s%d offen offset:%d%s'%(vr(accT(i,j),4),SRD_O,SRD_O+3,S_SO2,j*64,g2.STF))
        a('s_branch K2_end')
    a.lab('K2T_xpf')
    if g2.FUSED[0]:
        if EXP.get('t2pf'):
            a('s_waitcnt lgkmcnt(0)')
            a('s_cmp_eq_u32 s%d, 0'%S_H); a('s_cbranch_scc0 K2T_xpf7')
            a('s_lshr_b32 s%d, s%d, 1'%(S_T0,S_XCD)); a('s_lshl_b32 s%d, s%d, 9'%(S_T0,S_T0)); a('s_sub_u32 s%d, s%d, 24'%(S_T1,S_J)); a('s_lshl_b32 s%d, s%d, 6'%(S_T1,S_T1))
            a('s_add_u32 s%d, s%d, s%d'%(S_T0,S_T0,S_T1)); a('v_add_u32 v1, s%d, v0'%S_T0); a('v_lshlrev_b32 v1, 12, v1')
            a('s_lshl_b32 s%d, s%d, 11'%(S_SO,S_KH))
            srd(a,SRD_D,S_WSP,S_WSP+1,2048*4096)
            lead=EXP.get('t2lead',2)
            for k in range(lead):
                a('buffer_load_dword v2, v1, s[%d:%d], s%d offen'%(SRD_D,SRD_D+3,S_SO)); a('s_add_u32 s%d, s%d, 128'%(S_SO,S_SO))
            a('s_barrier')
            for i in range(NK2):
                a('s_barrier')
                if i+lead<NK2:
                    a('buffer_load_dword v2, v1, s[%d:%d], s%d offen'%(SRD_D,SRD_D+3,S_SO)); a('s_add_u32 s%d, s%d, 128'%(S_SO,S_SO))
            a('s_barrier')
            a('s_branch K2_end')
            a.lab('K2T_xpf7')
            a('s_sub_u32 s%d, s%d, 24'%(S_T1,S_J)); a('s_lshl_b32 s%d, s%d, 3'%(S_T1,S_T1)); a('s_add_u32 s%d, s%d, s%d'%(S_T1,S_T1,S_XCD)); a('s_mul_i32 s%d, s%d, %d'%(S_SO,S_T1,135*128))
            a('v_lshlrev_b32 v1, 7, v0')
            srd(a,SRD_D,S_WOUT,S_WOUT+1,864*1280)
            a('s_barrier')
            for i in range(NK2):
                a('s_barrier')
                if 8<=i<11:
                    a('s_mov_b32 exec_hi, 0x1fff'); a('buffer_load_dword v2, v1, s[%d:%d], s%d offen'%(SRD_D,SRD_D+3,S_SO)); a('s_mov_b32 exec_hi, -1'); a('s_add_u32 s%d, s%d, %d'%(S_SO,S_SO,45*128))
            a('s_barrier')
            a('s_branch K2_end')
        else:
            for _ in range(NK2+2): a('s_barrier')
            a('s_branch K2_end')
    else:
        if EXP.get('noxpf') or EXP.get('noxpf2'): a('s_endpgm')
        a('s_sub_u32 s%d, s%d, 24'%(S_T0,S_J)); a('s_lshl_b32 s%d, s%d, 1'%(S_T0,S_T0)); a('s_add_u32 s%d, s%d, s%d'%(S_T0,S_T0,S_H)); a('s_mul_i32 s%d, s%d, %d'%(S_SO,S_T0,540*128))
        a('v_lshlrev_b32 v1, 7, v0')
        a('s_waitcnt lgkmcnt(0)')
        srd(a,SRD_D,S_WOUT,S_WOUT+1,864*1280)
        st0=EXP.get('wpfat',13)
        for i in range(NK2):
            a('s_barrier')
            if i==st0:
                for k in range(9):
                    if k==8: a('s_mov_b32 exec_hi, 0'); a('s_mov_b32 exec_lo, 0xfffffff')
                    a('buffer_load_dword v2, v1, s[%d:%d], s%d offen'%(SRD_D,SRD_D+3,S_SO)); a('s_add_u32 s%d, s%d, 8192'%(S_SO,S_SO))
        a('s_barrier')
        a('s_endpgm')
    a.lab('K2T_prod')
    WO=2; AO=3; S_U0=S_PAR
    if EXP.get('same'): a('s_mov_b32 s%d, 0'%S_TB); a('s_mov_b32 s%d, 0'%S_CT); a('s_mov_b32 s%d, 0'%S_KH)
    a('s_sub_u32 s%d, s%d, 8'%(S_PW,S_WAVE))
    a('v_lshrrev_b32 v20, 3, v0'); a('v_and_b32 v22, 7, v0'); a('v_xor_b32 v22, v22, v20'); a('v_lshlrev_b32 v22, 4, v22'); a('v_lshl_add_u32 v%d, v20, 12, v22'%WO)
    a('s_lshl_b32 s%d, s%d, 1'%(S_T0,S_PW)); a('s_sub_u32 s%d, s%d, 2'%(S_T0,S_T0)); a('s_add_u32 s%d, s%d, 2'%(S_T1,S_PW))
    a('s_cmp_lt_u32 s%d, 4'%S_PW); a('s_cselect_b32 s%d, s%d, s%d'%(S_U0,S_T0,S_T1)); a('s_cmp_lt_u32 s%d, 2'%S_PW); a('s_cselect_b32 s%d, s%d, s%d'%(S_U0,S_PW,S_U0)); a('s_lshl_b32 s%d, s%d, 10'%(S_U0,S_U0))
    a('v_lshlrev_b32 v20, 4, v0'); a('v_add_u32 v%d, s%d, v20'%(AO,S_U0))
    a('s_mov_b32 s%d, 0'%S_SLI)
    a('s_mul_i32 s%d, s%d, %d'%(S_T0,S_CT,EXP.get('rta',0))); a('s_and_b32 s%d, s%d, 1'%(S_T1,S_TB)); a('s_mul_i32 s%d, s%d, %d'%(S_T1,S_T1,EXP.get('rtb',0)))
    a('s_add_u32 s%d, s%d, s%d'%(S_T0,S_T0,S_T1)); a('s_and_b32 s%d, s%d, 15'%(S_T0,S_T0)); a('s_lshl_b32 s%d, s%d, 7'%(S_KX,S_T0)); a('s_mul_i32 s%d, s%d, 10240'%(S_KW,S_T0))
    a('s_mul_i32 s%d, s%d, %d'%(S_T0,S_KH,AE_MAT)); a('s_mul_i32 s%d, s%d, 163840'%(S_T1,S_CT)); a('s_add_u32 s%d, s%d, s%d'%(S_SO2,S_T0,S_T1))
    a('s_mul_i32 s%d, s%d, %d'%(S_T0,S_TB,144*4096))
    a('s_waitcnt lgkmcnt(0)')
    a('s_cmp_eq_u32 s%d, 0'%S_KH); a('s_cselect_b32 s%d, s%d, s%d'%(S_T2,S_WSRE,S_WSIM)); a('s_cselect_b32 s%d, s%d, s%d'%(S_T3,S_WSRE+1,S_WSIM+1))
    add64(a,S_T2,S_T2,'s%d'%S_T0); srd(a,SRD_A,S_T2,S_T2+1,144*4096)
    add64(a,S_T2,S_WS,WS_AE); add64(a,S_T2,S_T2,'s%d'%S_SO2); srd(a,SRD_B,S_T2,S_T2+1,163840)
    def issueT():
        a('s_lshl_b32 s%d, s%d, 10'%(S_T,S_PW)); a('s_add_u32 s%d, s%d, s%d'%(S_T,S_T,S_SLI))
        a('s_lshl_b32 s%d, s%d, 15'%(S_T0,S_PW)); a('s_add_u32 s%d, s%d, s%d'%(S_T0,S_T0,S_KX))
        for i in range(2):
            a('s_add_u32 m0, s%d, %d'%(S_T,i*8192)); a('s_add_u32 s%d, s%d, %d'%(S_SO,S_T0,i*8*32768))
            a(('buffer_load_dwordx4 v%d, s[%d:%d], s%d offen lds'%(WO,SRD_A,SRD_A+3,S_SO)).replace(' lds',(' nt' if EXP.get('t2nt') else LDK[2])+' lds'))
        a('s_add_u32 s%d, s%d, s%d'%(S_T1,S_SLI,S_U0)); a('s_add_u32 m0, s%d, 18432'%S_T1); a('s_nop 0')
        a('buffer_load_dwordx4 v%d, s[%d:%d], s%d offen lds'%(AO,SRD_B,SRD_B+3,S_KW))
        l1=a.newlab('K2Tp_a'); l2=a.newlab('K2Tp_b')
        a('s_cmp_lt_u32 s%d, 2'%S_PW); a('s_cbranch_scc1 %s'%l1)
        a('s_cmp_lt_u32 s%d, 4'%S_PW); a('s_cbranch_scc0 %s'%l2)
        a('buffer_load_dwordx4 v%d, s[%d:%d], s%d offen offset:1024 lds'%(AO,SRD_B,SRD_B+3,S_KW)); a('s_branch %s'%l2)
        a.lab(l1)
        a('s_add_u32 m0, s%d, %d'%(S_T,2*8192)); a('s_add_u32 s%d, s%d, %d'%(S_SO,S_T0,2*8*32768))
        a(('buffer_load_dwordx4 v%d, s[%d:%d], s%d offen lds'%(WO,SRD_A,SRD_A+3,S_SO)).replace(' lds',(' nt' if EXP.get('t2nt') else LDK[2])+' lds'))
        a.lab(l2)
        slot_advance(a,S_SLI,SLT); a('s_add_u32 s%d, s%d, 128'%(S_KX,S_KX)); a('s_add_u32 s%d, s%d, 10240'%(S_KW,S_KW))
        a('s_cmp_eq_u32 s%d, 2048'%S_KX); a('s_cselect_b32 s%d, 0, s%d'%(S_KX,S_KX)); a('s_cselect_b32 s%d, 0, s%d'%(S_KW,S_KW))
    dma_producer(a,'K2Tp',NK2,3,issueT,phase=2,s_ws=S_WS,post=1)
    kernel_tail(a,'K2',1,S_WS)
```

```python
from g2_common import *
import g2_common as g2
SLZ=34816; SLA=36864
TB=NS*SLA
T_R=TB; T_NMR=TB+512; T_CS0=TB+1024; T_CS1=TB+1664; T_W2=TB+2304
K1_LDS=TB+2304+2048
NK1=10
S_X=4; S_WS=6; S_WDRE=8; S_WDIM=10; S_WIN=12; S_DBG=14
SRD_X=16; SRD_W=20; SRD_O=24; SRD_O2=28; SRD_G=56; SRD_D=60
POLL_BOUND=4000

def stats_final(a,SUM,SQ,t,n,rout,nmrout):
    for k in range(1,len(SUM)): a('v_add_f32 v%d, v%d, v%d'%(SUM[0],SUM[0],SUM[k])); a('v_add_f32 v%d, v%d, v%d'%(SQ[0],SQ[0],SQ[k]))
    a('s_nop 1')
    a('v_add_f32_dpp v%d, v%d, v%d quad_perm:[1,0,3,2] row_mask:0xf bank_mask:0xf'%(t,SUM[0],SUM[0]))
    a('v_add_f32_dpp v%d, v%d, v%d quad_perm:[1,0,3,2] row_mask:0xf bank_mask:0xf'%(t+1,SQ[0],SQ[0]))
    a('v_mul_f32 v%d, 0x%x, v%d'%(t,f2u(1.0/n),t)); a('v_mul_f32 v%d, 0x%x, v%d'%(t+1,f2u(1.0/n),t+1))
    a('v_fma_f32 v%d, -v%d, v%d, v%d'%(t+1,t,t,t+1)); a('v_max_f32 v%d, 0, v%d'%(t+1,t+1)); a('v_add_f32 v%d, 0x%x, v%d'%(t+1,f2u(1e-5),t+1))
    a('v_rsq_f32 v%d, v%d'%(rout,t+1)); a('s_nop 0')
    a('v_mul_f32 v%d, v%d, v%d'%(nmrout,t,rout)); a('v_sub_f32 v%d, 0, v%d'%(nmrout,nmrout))

S_WSP=62
def ln1_row(a):
    a('s_lshl_b32 s%d, s2, 3'%S_T0); a('s_add_u32 s%d, s%d, s%d'%(S_T0,S_T0,S_WAVE)); a('s_mul_i32 s%d, s%d, 1280'%(S_T1,S_T0))
    a('v_lshlrev_b32 v56, 4, v0'); a('v_mov_b32 v57, 0x3f803f80')
    for k in range(4): a('v_mov_b32 v%d, 0'%(68+k))
    a('s_waitcnt lgkmcnt(0)')
    add64(a,S_T2,S_X,'s%d'%S_T1); srd(a,SRD_O,S_T2,S_T2+1,1280)
    a('buffer_load_dwordx4 v[60:63], v56, s[%d:%d], 0 offen'%(SRD_O,SRD_O+3)); a('buffer_load_dwordx4 v[64:67], v56, s[%d:%d], 0 offen offset:1024'%(SRD_O,SRD_O+3))
    add64(a,S_T2,S_WS,WS_LN1); srd(a,SRD_O2,S_T2,S_T2+1,16384)
    a('s_lshl_b32 s%d, s%d, 3'%(S_SO,S_T0))
def ln1_row_finish(a):
    a('s_waitcnt vmcnt(0)')
    for k in range(8):
        a('v_dot2_f32_bf16 v%d, v%d, v%d, v%d'%(68+(k&1),60+k,60+k,68+(k&1))); a('v_dot2_f32_bf16 v%d, v%d, v57, v%d'%(70+(k&1),60+k,70+(k&1)))
    a('s_nop 3')
    a('v_add_f32 v68, v68, v69'); a('v_add_f32 v70, v70, v71'); a('s_nop 1')
    for d in ('quad_perm:[1,0,3,2]','quad_perm:[2,3,0,1]','row_half_mirror','row_mirror'):
        a('v_add_f32_dpp v68, v68, v68 %s row_mask:0xf bank_mask:0xf'%d); a('v_add_f32_dpp v70, v70, v70 %s row_mask:0xf bank_mask:0xf'%d); a('s_nop 0')
    for sw in ('v_permlane16_swap_b32','v_permlane32_swap_b32'):
        a('v_mov_b32 v69, v68'); a('v_mov_b32 v71, v70'); a('s_nop 1')
        a('%s v68, v69'%sw); a('%s v70, v71'%sw); a('s_nop 1')
        a('v_add_f32 v68, v68, v69'); a('v_add_f32 v70, v70, v71')
    a('v_mul_f32 v70, 0x%x, v70'%f2u(1.0/640)); a('v_mul_f32 v68, 0x%x, v68'%f2u(1.0/640))
    a('v_fma_f32 v68, -v70, v70, v68'); a('v_max_f32 v68, 0, v68'); a('v_add_f32 v68, 0x%x, v68'%f2u(1e-5))
    a('v_rsq_f32 v72, v68'); a('s_nop 0'); a('v_mul_f32 v73, v70, v72'); a('v_sub_f32 v73, 0, v73')
    a('v_mov_b32 v74, 0'); a('v_cmp_eq_u32 vcc, 0, v0'); a('s_and_saveexec_b64 s[%d:%d], vcc'%(S_EX,S_EX+1))
    a('buffer_store_dwordx2 v[72:73], v74, s[%d:%d], s%d offen sc1'%(SRD_O2,SRD_O2+3,S_SO))
    a('s_mov_b64 exec, s[%d:%d]'%(S_EX,S_EX+1))
def ln1_hook(a):
    return lambda: a('s_waitcnt vmcnt(0)')

def worker(a,name,SL,isZ):
    n=NK1
    CA=14; VT=15; CF=[48,68]; CACC=88; ONES=108
    srd(a,SRD_D,S_DBG,S_DBG+1,256)
    add64(a,S_T2,S_WS,WS_GR); srd(a,SRD_G,S_T2,S_T2+1,16*12288)
    if isZ:
        a('s_cmp_eq_u32 s%d, 0'%S_PW); a('s_cbranch_scc0 %s_nojob'%name)
        a('s_mul_i32 s%d, s%d, 12288'%(S_SO,S_RB)); a('s_lshl_b32 s%d, s%d, 1'%(S_T0,S_CT)); a('s_add_u32 s%d, s%d, s%d'%(S_T0,S_T0,S_PAR)); a('s_lshl_b32 s%d, s%d, 10'%(S_T0,S_T0))
        a('s_add_u32 s%d, s%d, s%d'%(S_SO,S_SO,S_T0))
        for k in range(4): a('v_mov_b32 v%d, -1'%(8+k))
        a('v_lshlrev_b32 v3, 4, v0')
        a('buffer_store_dwordx4 v[8:11], v3, s[%d:%d], s%d offen sc1'%(SRD_G,SRD_G+3,S_SO))
        if not EXP.get('oldpoll'):
            add64(a,S_T2,S_WS,WS_FG); srd(a,SRD_O2,S_T2,S_T2+1,4096)
            a('s_lshl_b32 s%d, s%d, 8'%(S_T0,S_RB)); a('s_lshl_b32 s%d, s%d, 1'%(S_T1,S_CT)); a('s_add_u32 s%d, s%d, s%d'%(S_T1,S_T1,S_PAR)); a('s_lshl_b32 s%d, s%d, 2'%(S_T1,S_T1)); a('s_add_u32 s%d, s%d, s%d'%(S_T0,S_T0,S_T1))
            a('v_mov_b32 v12, 0'); a('v_lshlrev_b32 v13, 6, v0'); a('s_mov_b32 exec_lo, 15'); a('s_mov_b32 exec_hi, 0')
            a('buffer_store_dword v12, v13, s[%d:%d], s%d offen sc1'%(SRD_O2,SRD_O2+3,S_T0)); a('s_mov_b64 exec, -1')
        a.lab(name+'_nojob')
    if g2.FUSED[0]:
        lf=a.newlab(name+'_cf'); a('s_cmp_eq_u32 s%d, 0'%S_PW); a('s_cbranch_scc0 %s'%lf)
        add64(a,S_T2,S_WS,WS_FL); srd(a,SRD_O,S_T2,S_T2+1,0x4000)
        a('s_lshl_b32 s%d, s2, 5'%S_T0); a('v_mov_b32 v12, 0'); a('v_lshlrev_b32 v13, 13, v0'); a('s_mov_b32 exec_lo, 3'); a('s_mov_b32 exec_hi, 0')
        a('buffer_store_dword v12, v13, s[%d:%d], s%d offen sc1'%(SRD_O,SRD_O+3,S_T0)); a('s_mov_b64 exec, -1')
        a.lab(lf)
    a('s_load_dwordx2 s[86:87], s[0:1], 56'); a('s_load_dwordx4 s[96:99], s[0:1], 8'); a('s_load_dwordx2 s[88:89], s[0:1], 72')
    a('v_lshrrev_b32 v4, 4, v0'); a('v_and_b32 v5, 15, v0'); a('v_lshlrev_b32 v5, 7, v5')
    a('s_lshl_b32 s%d, s%d, 9'%(S_T0,S_G)); a('s_lshl_b32 s%d, s%d, 4'%(S_T1,S_J)); a('s_add_u32 s%d, s%d, s%d'%(S_T0,S_T0,S_T1)); a('v_add_u32 v6, s%d, v4'%S_T0)
    a('v_lshlrev_b32 v6, 12, v6'); a('v_add_u32 v6, v6, v5'); a('s_lshl_b32 s%d, s%d, 11'%(S_T0,S_HALF)); a('v_add_u32 v6, s%d, v6'%S_T0)
    a('s_mul_i32 s%d, s%d, 288'%(S_T0,S_G)); a('s_mul_i32 s%d, s%d, 9'%(S_T1,S_J)); a('s_add_u32 s%d, s%d, s%d'%(S_T0,S_T0,S_T1)); a('v_add_u32 v7, s%d, v4'%S_T0)
    a('v_lshlrev_b32 v7, 12, v7'); a('v_add_u32 v7, v7, v5')
    a('v_and_b32 v21, 15, v0'); a('v_lshlrev_b32 v21, 4, v21'); a('v_mov_b32 v20, 0')
    for r in (16,17,18,19): a('v_mov_b32 v%d, 0'%r)
    a('s_waitcnt lgkmcnt(0)')
    srd(a,SRD_W,86,87,2048*4096)
    a('s_cmp_eq_u32 s%d, 0'%S_HALF); a('s_cselect_b32 s%d, s96, s98'%S_T2); a('s_cselect_b32 s%d, s97, s99'%S_T3); srd(a,SRD_O2,S_T2,S_T3,2048*4096)
    if EXP.get('tlbw'):
        l=a.newlab(name+'_tw'); a('s_cmp_eq_u32 s%d, 1'%S_PW); a('s_cbranch_scc0 %s'%l)
        a('s_load_dwordx2 s[90:91], s[0:1], 80'); a('v_lshlrev_b32 v11, 21, v0'); a('s_lshl_b32 s%d, s2, 7'%S_SO); a('s_and_b32 s%d, s%d, 0xffff'%(S_SO,S_SO))
        srd(a,SRD_O,S_WS,S_WS+1,0x1400000)
        a('s_mov_b32 exec_hi, 0'); a('s_mov_b32 exec_lo, 0x3ff')
        a('buffer_load_dword v10, v11, s[%d:%d], s%d offen'%(SRD_O,SRD_O+3,S_SO))
        a('s_waitcnt lgkmcnt(0)')
        srd(a,SRD_O,90,91,2048*1280)
        a('v_lshlrev_b32 v11, 20, v0'); a('s_mov_b32 exec_lo, 7')
        a('buffer_load_dword v10, v11, s[%d:%d], s%d offen'%(SRD_O,SRD_O+3,S_SO)); a('s_mov_b64 exec, -1')
        a.lab(l)
    if EXP.get('epf'):
        l=a.newlab(name+'_e3'); a('s_cmp_eq_u32 s%d, 3'%S_PW); a('s_cbranch_scc0 %s'%l)
        srd(a,SRD_O,S_WIN,S_WIN+1,640*3456)
        a('s_mul_i32 s%d, s2, %d'%(S_SO,68*128)); a('v_lshlrev_b32 v11, 7, v0')
        a('buffer_load_dword v10, v11, s[%d:%d], s%d offen'%(SRD_O,SRD_O+3,S_SO))
        a('s_add_u32 s%d, s%d, 8192'%(S_SO,S_SO)); a('s_mov_b32 exec_hi, 0'); a('s_mov_b32 exec_lo, 15')
        a('buffer_load_dword v10, v11, s[%d:%d], s%d offen'%(SRD_O,SRD_O+3,S_SO)); a('s_mov_b64 exec, -1')
        a.lab(l)
        l=a.newlab(name+'_e2'); a('s_cmp_eq_u32 s%d, 2'%S_PW); a('s_cbranch_scc0 %s'%l)
        a('s_cmp_lt_u32 s2, 128'); a('s_cselect_b32 s%d, s%d, s%d'%(S_T2,S_WDRE,S_WDIM)); a('s_cselect_b32 s%d, s%d, s%d'%(S_T3,S_WDRE+1,S_WDIM+1))
        srd(a,SRD_O,S_T2,S_T3,321*1280)
        a('s_and_b32 s%d, s2, 127'%S_SO); a('s_mul_i32 s%d, s%d, %d'%(S_SO,S_SO,25*128)); a('s_add_u32 s%d, s%d, 1280'%(S_SO,S_SO)); a('v_lshlrev_b32 v11, 7, v0')
        a('s_mov_b32 exec_hi, 0'); a('s_mov_b32 exec_lo, 0x1ffffff')
        a('buffer_load_dword v10, v11, s[%d:%d], s%d offen'%(SRD_O,SRD_O+3,S_SO)); a('s_mov_b64 exec, -1')
        a.lab(l)
    if isZ:
        a('v_and_b32 v120, 15, v0'); a('v_lshrrev_b32 v121, 4, v0'); a('v_lshrrev_b32 v122, 2, v120'); a('v_lshl_add_u32 v122, v121, 2, v122')
        a('v_mul_u32_u24 v122, 288, v122'); a('v_and_b32 v120, 3, v120'); a('v_lshl_add_u32 v122, v120, 3, v122')
        a('s_and_b32 s%d, s%d, 1'%(S_T0,S_PW)); a('s_mul_i32 s%d, s%d, 9216'%(S_T0,S_T0)); a('s_cmp_lt_u32 s%d, 2'%S_PW); a('s_cselect_b32 s%d, 160, 0'%S_T1)
        a('s_add_u32 s%d, s%d, s%d'%(S_T0,S_T0,S_T1)); a('s_add_u32 s%d, s%d, 16384'%(S_T0,S_T0)); a('v_add_u32 v%d, s%d, v122'%(CA,S_T0))
        for k in range(4): a('v_mov_b32 v%d, 0x3f803f80'%(ONES+k))
        for k in range(20): a('v_mov_b32 v%d, 0'%(CACC+k))
        for k in range(40): a('v_mov_b32 v%d, 0'%(CF[0]+k))
    def reads(st):
        a('v_add_u32 v%d, s%d, v%d'%(VT,S_SLC,CA))
        lab=a.newlab(name+'_c')
        for j in range(5):
            if j==4: a('s_cmp_lt_u32 s%d, 2'%S_PW); a('s_cbranch_scc1 %s'%lab)
            for b in range(2): a('ds_read_b64_tr_b16 %s, v%d offset:%d'%(vr(CF[st]+4*j+2*b,2),VT,b*4608+j*32))
        a.lab(lab)
    def compute(st):
        for j in range(5):
            a('v_mfma_f32_16x16x32_bf16 %s, %s, %s, %s'%(vr(CACC+4*j,4),vr(ONES,4),vr(CF[st]+4*j,4),vr(CACC+4*j,4)))
    def xpf(k,pol):
        if k<4:
            a('s_mov_b32 s%d, %d'%(S_SO,k*4*4096)); a('buffer_load_dword v10, v6, s[%d:%d], s%d offen%s'%(SRD_W,SRD_W+3,S_SO,pol))
        else:
            k-=4
            a('s_mov_b32 s%d, %d'%(S_SO,k*4*4096))
            if k==2: a('s_mov_b32 exec_hi, 0'); a('s_mov_b32 exec_lo, 0xffff')
            a('buffer_load_dword v10, v7, s[%d:%d], s%d offen%s'%(SRD_O2,SRD_O2+3,S_SO,pol))
            if k==2: a('s_mov_b64 exec, -1')
    def wout_pf():
        srd(a,SRD_O,88,89,864*1280)
        a('s_mul_i32 s%d, s2, %d'%(S_SO,34*128)); a('v_lshlrev_b32 v11, 7, v0'); a('s_mov_b32 exec_hi, 3')
        a('buffer_load_dword v10, v11, s[%d:%d], s%d offen'%(SRD_O,SRD_O+3,S_SO)); a('s_mov_b32 exec_hi, -1')
    TBL=16
    def side(i):
        pol=' nt' if not EXP.get('xpfdef') else ''
        if not (EXP.get('noxpf') or EXP.get('noxpf1')) and EXP.get('pfmid') and EXP.get('pf0',2)<=i<=EXP.get('pf0',2)+6:
            l=a.newlab(name+'_p'); a('s_cmp_eq_u32 s%d, 1'%S_PW); a('s_cbranch_scc0 %s'%l)
            kk=i-EXP.get('pf0',2)
            if not ((EXP.get('pfwonly') or EXP.get('pfsplit')==1) and kk>=4) and not (EXP.get('pfsplit')==2 and kk<4): xpf(kk,pol)
            a.lab(l)
        if EXP.get('wo1') and i==EXP.get('wo1'):
            l=a.newlab(name+'_wo'); a('s_cmp_eq_u32 s%d, 2'%S_PW); a('s_cbranch_scc0 %s'%l); wout_pf(); a.lab(l)
        if i==2:
            l=a.newlab(name+'_a'); a('s_cmp_eq_u32 s%d, 0'%S_PW); a('s_cbranch_scc0 %s'%l)
            a('s_waitcnt vmcnt(0)')
            a('v_mov_b32 v4, 1'); a('s_and_b32 s%d, s2, 15'%S_T0); a('s_lshl_b32 s%d, s%d, 4'%(S_T0,S_T0)); a('v_mov_b32 v3, s%d'%S_T0)
            a('v_cmp_eq_u32 vcc, 0, v0'); a('s_and_saveexec_b64 s[%d:%d], vcc'%(S_EX,S_EX+1))
            a('buffer_atomic_add v4, v3, s[%d:%d], 0 offen sc1'%(SRD_D,SRD_D+3))
            a('s_mov_b64 exec, s[%d:%d]'%(S_EX,S_EX+1))
            a.lab(l)
        if i==5:
            l=a.newlab(name+'_q'); a('s_cmp_eq_u32 s%d, 0'%S_PW); a('s_cbranch_scc0 %s'%l)
            a('buffer_load_dword v20, v21, s[%d:%d], 0 offen sc1'%(SRD_D,SRD_D+3))
            a.lab(l)
        if i==7:
            l=a.newlab(name+'_r'); a('s_cmp_eq_u32 s%d, 0'%S_PW); a('s_cbranch_scc0 %s'%l)
            a('s_mov_b32 s%d, 0'%S_SO2)
            lp=a.newlab(name+'_pl'); ok=a.newlab(name+'_ok')
            a.lab(lp)
            a('s_waitcnt vmcnt(0)'); a('v_cmp_gt_u32 vcc, 16, v20'); a('s_nop 1'); a('s_cmp_eq_u64 vcc, 0'); a('s_cbranch_scc1 %s'%ok)
            a('buffer_load_dword v20, v21, s[%d:%d], 0 offen sc1'%(SRD_D,SRD_D+3))
            a('s_add_u32 s%d, s%d, 1'%(S_SO2,S_SO2)); a('s_cmp_lt_u32 s%d, %d'%(S_SO2,POLL_BOUND)); a('s_cbranch_scc1 %s'%lp)
            a.lab(ok)
            add64(a,S_T2,S_WS,WS_LN1); srd(a,SRD_O,S_T2,S_T2+1,16384)
            if isZ:
                a('s_lshl_b32 s%d, s%d, 7'%(S_T0,S_RB)); a('v_add_u32 v22, s%d, v0'%S_T0); a('v_add_u32 v23, 64, v22')
            else:
                a('s_lshl_b32 s%d, s%d, 6'%(S_T0,S_RB)); a('v_add_u32 v22, s%d, v0'%S_T0); a('v_sub_u32 v23, 2048, v22')
                a('v_cmp_eq_u32 vcc, 2048, v23'); a('v_mov_b32 v24, 1024'); a('s_nop 0'); a('v_cndmask_b32 v23, v23, v24, vcc')
            a('v_lshlrev_b32 v22, 3, v22'); a('v_lshlrev_b32 v23, 3, v23')
            a('buffer_load_dwordx2 v[16:17], v22, s[%d:%d], 0 offen sc1'%(SRD_O,SRD_O+3)); a('buffer_load_dwordx2 v[18:19], v23, s[%d:%d], 0 offen sc1'%(SRD_O,SRD_O+3))
            a.lab(l)
    a('s_mov_b32 s%d, 0'%S_SLC)
    for i in range(n):
        a('s_barrier')
        if isZ and not EXP.get('nocs'): reads(i&1)
        side(i)
        if isZ and not EXP.get('nocs'):
            compute((i&1)^1); a('s_waitcnt lgkmcnt(0)'); slot_advance(a,S_SLC,SL)
    if isZ: compute((n-1)&1)
    if not (EXP.get('noxpf') or EXP.get('noxpf1') or EXP.get('pflate') or (EXP.get('pfmid') and not EXP.get('pfsplit'))):
        l=a.newlab(name+'_pe'); a('s_cmp_eq_u32 s%d, 1'%S_PW); a('s_cbranch_scc0 %s'%l)
        ks=range(4 if EXP.get('pfwonly') else 7)
        if EXP.get('pfsplit')==1: ks=range(4,7)
        if EXP.get('pfsplit')==2: ks=range(0,4)
        for k in ks: xpf(k,' nt' if not EXP.get('xpfdef') else '')
        a.lab(l)
    gc.stamp(a,3)
    l=a.newlab(name+'_w'); a('s_cmp_eq_u32 s%d, 0'%S_PW); a('s_cbranch_scc0 %s'%l)
    a('s_waitcnt vmcnt(0)'); a('v_lshlrev_b32 v26, 2, v0'); a('v_add_u32 v26, %d, v26'%T_R)
    a('ds_write_b32 v26, v16'); a('ds_write_b32 v26, v17 offset:512'); a('ds_write_b32 v26, v18 offset:256'); a('ds_write_b32 v26, v19 offset:768')
    a.lab(l)
    if isZ:
        a('s_and_b32 s%d, s%d, 1'%(S_T0,S_PW)); a('s_mul_i32 s%d, s%d, 640'%(S_T0,S_T0)); a('s_cmp_lt_u32 s%d, 2'%S_PW); a('s_cselect_b32 s%d, 320, 0'%S_T1)
        a('s_add_u32 s%d, s%d, s%d'%(S_T0,S_T0,S_T1)); a('v_and_b32 v26, 15, v0'); a('v_lshlrev_b32 v26, 2, v26'); a('v_add_u32 v26, s%d, v26'%S_T0); a('v_add_u32 v26, %d, v26'%T_CS0)
        a('s_nop 7')
        lab=a.newlab(name+'_f')
        for j in range(5):
            if j==4: a('s_cmp_lt_u32 s%d, 2'%S_PW); a('s_cbranch_scc1 %s'%lab)
            a('ds_write_b32 v26, v%d offset:%d'%(CACC+4*j,j*64))
        a.lab(lab)

    def late():
        if EXP.get('pflate') and not (EXP.get('noxpf') or EXP.get('noxpf1')):
            l=a.newlab(name+'_pl8'); a('s_cmp_eq_u32 s%d, 1'%S_PW); a('s_cbranch_scc0 %s'%l)
            ks=range(7)
            if EXP.get('pfsplit')==1: ks=range(4,7)
            if EXP.get('pfsplit')==2: ks=range(0,4)
            for k in ks: xpf(k,' nt' if not EXP.get('xpfdef') else '')
            a.lab(l)
    return late

def worker2(a):
    import g3_z as z
    name='Z2w'; n=NK1; SL=z.SL2; NSz=z.NS2
    CA=14; VT=15; CF=[48,60]; CACC=72; ONES=84
    srd(a,SRD_D,S_DBG,S_DBG+1,256)
    add64(a,S_T2,S_WS,WS_GR); srd(a,SRD_G,S_T2,S_T2+1,16*12288)
    a('s_cmp_eq_u32 s%d, 0'%S_PW); a('s_cbranch_scc0 %s_nojob'%name)
    a('s_mul_i32 s%d, s%d, 12288'%(S_SO,S_RB)); a('s_lshl_b32 s%d, s%d, 1'%(S_T0,S_CT)); a('s_add_u32 s%d, s%d, s%d'%(S_T0,S_T0,S_PAR)); a('s_lshl_b32 s%d, s%d, 10'%(S_T0,S_T0))
    a('s_add_u32 s%d, s%d, s%d'%(S_SO,S_SO,S_T0))
    for k in range(4): a('v_mov_b32 v%d, -1'%(8+k))
    a('v_lshlrev_b32 v3, 4, v0')
    a('buffer_store_dwordx4 v[8:11], v3, s[%d:%d], s%d offen sc1'%(SRD_G,SRD_G+3,S_SO))
    if g2.FUSED[0]:
        add64(a,S_T2,S_WS,WS_FL); srd(a,SRD_O,S_T2,S_T2+1,0x4000)
        a('s_lshl_b32 s%d, s2, 5'%S_T0); a('v_mov_b32 v12, 0'); a('v_lshlrev_b32 v13, 13, v0'); a('s_mov_b32 exec_lo, 3'); a('s_mov_b32 exec_hi, 0')
        a('buffer_store_dword v12, v13, s[%d:%d], s%d offen sc1'%(SRD_O,SRD_O+3,S_T0)); a('s_mov_b64 exec, -1')
    a.lab(name+'_nojob')
    a('s_load_dwordx2 s[86:87], s[0:1], 56'); a('s_load_dwordx4 s[96:99], s[0:1], 8'); a('s_load_dwordx2 s[88:89], s[0:1], 72')
    a('v_lshrrev_b32 v4, 4, v0'); a('v_and_b32 v5, 15, v0'); a('v_lshlrev_b32 v5, 7, v5')
    a('s_lshl_b32 s%d, s%d, 9'%(S_T0,S_G)); a('s_lshl_b32 s%d, s%d, 4'%(S_T1,S_J)); a('s_add_u32 s%d, s%d, s%d'%(S_T0,S_T0,S_T1)); a('v_add_u32 v6, s%d, v4'%S_T0)
    a('v_lshlrev_b32 v6, 12, v6'); a('v_add_u32 v6, v6, v5'); a('s_lshl_b32 s%d, s%d, 11'%(S_T0,S_HALF)); a('v_add_u32 v6, s%d, v6'%S_T0)
    a('s_mul_i32 s%d, s%d, 288'%(S_T0,S_G)); a('s_mul_i32 s%d, s%d, 9'%(S_T1,S_J)); a('s_add_u32 s%d, s%d, s%d'%(S_T0,S_T0,S_T1)); a('v_add_u32 v7, s%d, v4'%S_T0)
    a('v_lshlrev_b32 v7, 12, v7'); a('v_add_u32 v7, v7, v5')
    a('v_and_b32 v21, 15, v0'); a('v_lshlrev_b32 v21, 4, v21'); a('v_mov_b32 v20, 0')
    for r in (16,17,18,19): a('v_mov_b32 v%d, 0'%r)
    a('s_waitcnt lgkmcnt(0)')
    srd(a,SRD_W,86,87,2048*4096)
    a('s_cmp_eq_u32 s%d, 0'%S_HALF); a('s_cselect_b32 s%d, s96, s98'%S_T2); a('s_cselect_b32 s%d, s97, s99'%S_T3); srd(a,SRD_O2,S_T2,S_T3,2048*4096)
    a('v_and_b32 v120, 15, v0'); a('v_lshrrev_b32 v121, 4, v0'); a('v_lshrrev_b32 v122, 2, v120'); a('v_lshl_add_u32 v122, v121, 2, v122')
    a('v_mul_u32_u24 v122, 160, v122'); a('v_and_b32 v120, 3, v120'); a('v_lshl_add_u32 v122, v120, 3, v122')
    a('s_and_b32 s%d, s%d, 1'%(S_T0,S_PW)); a('s_mul_i32 s%d, s%d, 5120'%(S_T0,S_T0)); a('s_cmp_lt_u32 s%d, 2'%S_PW); a('s_cselect_b32 s%d, 0, 96'%S_T1)
    a('s_add_u32 s%d, s%d, s%d'%(S_T0,S_T0,S_T1)); a('s_add_u32 s%d, s%d, 16384'%(S_T0,S_T0)); a('v_add_u32 v%d, s%d, v122'%(CA,S_T0))
    for k in range(4): a('v_mov_b32 v%d, 0x3f803f80'%(ONES+k))
    for k in range(12): a('v_mov_b32 v%d, 0'%(CACC+k))
    for k in range(24): a('v_mov_b32 v%d, 0'%(CF[0]+k))
    def reads(st):
        a('v_add_u32 v%d, s%d, v%d'%(VT,S_SLC,CA))
        lab=a.newlab(name+'_c')
        for j in range(3):
            if j==2: a('s_cmp_lt_u32 s%d, 2'%S_PW); a('s_cbranch_scc0 %s'%lab)
            for b in range(2): a('ds_read_b64_tr_b16 %s, v%d offset:%d'%(vr(CF[st]+4*j+2*b,2),VT,b*2560+j*32))
        a.lab(lab)
    def compute(st):
        for j in range(3): a('v_mfma_f32_16x16x32_bf16 %s, %s, %s, %s'%(vr(CACC+4*j,4),vr(ONES,4),vr(CF[st]+4*j,4),vr(CACC+4*j,4)))
    def cs_write(T):
        a('s_and_b32 s%d, s%d, 1'%(S_T0,S_PW)); a('s_mul_i32 s%d, s%d, 320'%(S_T0,S_T0)); a('s_cmp_lt_u32 s%d, 2'%S_PW); a('s_cselect_b32 s%d, 0, 192'%S_T1)
        a('s_add_u32 s%d, s%d, s%d'%(S_T0,S_T0,S_T1)); a('v_and_b32 v26, 15, v0'); a('v_lshlrev_b32 v26, 2, v26'); a('v_add_u32 v26, s%d, v26'%S_T0); a('v_add_u32 v26, %d, v26'%T)
        a('s_nop 7')
        lab=a.newlab(name+'_f')
        for j in range(3):
            if j==2: a('s_cmp_lt_u32 s%d, 2'%S_PW); a('s_cbranch_scc0 %s'%lab)
            a('ds_write_b32 v26, v%d offset:%d'%(CACC+4*j,j*64))
        a.lab(lab)
    def xpf(k,pol):
        if k<4:
            a('s_mov_b32 s%d, %d'%(S_SO,k*4*4096)); a('buffer_load_dword v10, v6, s[%d:%d], s%d offen%s'%(SRD_W,SRD_W+3,S_SO,pol))
        else:
            k-=4
            a('s_mov_b32 s%d, %d'%(S_SO,k*4*4096))
            if k==2: a('s_mov_b32 exec_hi, 0'); a('s_mov_b32 exec_lo, 0xffff')
            a('buffer_load_dword v10, v7, s[%d:%d], s%d offen%s'%(SRD_O2,SRD_O2+3,S_SO,pol))
            if k==2: a('s_mov_b64 exec, -1')
    def only(w,fn):
        l=a.newlab(name+'_o'); a('s_cmp_eq_u32 s%d, %d'%(S_PW,w)); a('s_cbranch_scc0 %s'%l); fn(); a.lab(l)
    pol='' if EXP.get('xpfdef') else ' nt'
    PG=88
    def side(i):
        if not EXP.get('noxpf'):
            ws0=EXP.get('z2ws',2); wp0=EXP.get('z2wp',12)
            if ws0<=i<ws0+3: only(3,lambda: xpf(4+i-ws0,pol))
            if wp0<=i<wp0+4: only(3,lambda: xpf(i-wp0,pol))
            if EXP.get('wo1') and i==EXP.get('wo1'):
                def wo():
                    srd(a,SRD_O,88,89,864*1280)
                    a('s_mul_i32 s%d, s2, %d'%(S_SO,34*128)); a('v_lshlrev_b32 v11, 7, v0'); a('s_mov_b32 exec_hi, 3')
                    a('buffer_load_dword v10, v11, s[%d:%d], s%d offen'%(SRD_O,SRD_O+3,S_SO)); a('s_mov_b32 exec_hi, -1')
                only(3,wo)
        if i==2:
            def cnt():
                a('s_waitcnt vmcnt(0)')
                a('v_mov_b32 v4, 1'); a('s_and_b32 s%d, s2, 15'%S_T0); a('s_lshl_b32 s%d, s%d, 4'%(S_T0,S_T0)); a('v_mov_b32 v3, s%d'%S_T0)
                a('v_cmp_eq_u32 vcc, 0, v0'); a('s_and_saveexec_b64 s[%d:%d], vcc'%(S_EX,S_EX+1))
                a('buffer_atomic_add v4, v3, s[%d:%d], 0 offen sc1'%(SRD_D,SRD_D+3)); a('s_mov_b64 exec, s[%d:%d]'%(S_EX,S_EX+1))
            only(0,cnt)
        if i==5: only(0,lambda: a('buffer_load_dword v20, v21, s[%d:%d], 0 offen sc1'%(SRD_D,SRD_D+3)))
        if i==7:
            def tab():
                a('s_mov_b32 s%d, 0'%S_SO2)
                lp=a.newlab(name+'_pl'); ok=a.newlab(name+'_ok')
                a.lab(lp)
                a('s_waitcnt vmcnt(0)'); a('v_cmp_gt_u32 vcc, 16, v20'); a('s_nop 1'); a('s_cmp_eq_u64 vcc, 0'); a('s_cbranch_scc1 %s'%ok)
                a('buffer_load_dword v20, v21, s[%d:%d], 0 offen sc1'%(SRD_D,SRD_D+3))
                a('s_add_u32 s%d, s%d, 1'%(S_SO2,S_SO2)); a('s_cmp_lt_u32 s%d, %d'%(S_SO2,POLL_BOUND)); a('s_cbranch_scc1 %s'%lp)
                a.lab(ok)
                add64(a,S_T2,S_WS,WS_LN1); srd(a,SRD_O,S_T2,S_T2+1,16384)
                a('s_lshl_b32 s%d, s%d, 7'%(S_T0,S_RB)); a('v_add_u32 v22, s%d, v0'%S_T0); a('v_add_u32 v23, 64, v22')
                a('v_lshlrev_b32 v22, 3, v22'); a('v_lshlrev_b32 v23, 3, v23')
                a('buffer_load_dwordx2 v[16:17], v22, s[%d:%d], 0 offen sc1'%(SRD_O,SRD_O+3)); a('buffer_load_dwordx2 v[18:19], v23, s[%d:%d], 0 offen sc1'%(SRD_O,SRD_O+3))
            only(0,tab)
        if i==10:
            def pub(r0):
                a('v_lshlrev_b32 v26, 2, v0'); a('v_add_u32 v26, %d, v26'%(z.T_PS+r0*4))
                a('ds_read_b32 v28, v26'); a('ds_read_b32 v29, v26 offset:512'); a('ds_read_b32 v30, v26 offset:1024'); a('ds_read_b32 v31, v26 offset:1536')
                a('s_mul_i32 s%d, s%d, 12288'%(S_SO,S_RB)); a('s_lshl_b32 s%d, s%d, 1'%(S_T0,S_CT)); a('s_add_u32 s%d, s%d, s%d'%(S_T0,S_T0,S_PAR)); a('s_lshl_b32 s%d, s%d, 10'%(S_T0,S_T0))
                a('s_add_u32 s%d, s%d, s%d'%(S_T0,S_T0,S_SO)); a('s_add_u32 s%d, s%d, %d'%(S_T0,S_T0,r0*8))
                a('v_lshlrev_b32 v27, 3, v0'); a('s_waitcnt lgkmcnt(0)')
                a('v_add_f32 v32, v28, v29'); a('v_add_f32 v33, v30, v31')
                a('buffer_store_dwordx2 v[32:33], v27, s[%d:%d], s%d offen sc1'%(SRD_G,SRD_G+3,S_T0))
            only(1,lambda: pub(0)); only(2,lambda: pub(64))
        def gr_issue(r0):
            a('s_mul_i32 s%d, s%d, 12288'%(S_SO,S_RB)); a('s_add_u32 s%d, s%d, %d'%(S_SO,S_SO,r0*8)); a('v_lshlrev_b32 v27, 3, v0'); a('v_add_u32 v34, 4096, v27'); a('v_add_u32 v35, 8192, v27')
            for k in range(12): a('buffer_load_dwordx2 %s, v%d, s[%d:%d], s%d offen offset:%d sc1'%(vr(PG+2*k,2),(27,34,35)[k//4],SRD_G,SRD_G+3,S_SO,(k%4)*1024))
        if i==EXP.get('z2pi',13):
            only(1,lambda: gr_issue(0)); only(2,lambda: gr_issue(64))
        if i==15:
            def fin(r0):
                lp=a.newlab(name+'_gp'); ok=a.newlab(name+'_gk')
                a('s_mov_b32 s%d, 0'%S_SO2)
                a.lab(lp)
                a('s_waitcnt vmcnt(0)')
                a('v_max3_u32 v36, v%d, v%d, v%d'%(PG,PG+1,PG+2))
                for k in range(3,24,2):
                    a('v_max3_u32 v36, v36, v%d, v%d'%(PG+k,PG+k+1) if k+1<24 else 'v_max_u32 v36, v36, v%d'%(PG+k))
                a('v_cmp_eq_u32 vcc, -1, v36'); a('s_nop 1'); a('s_cmp_eq_u64 vcc, 0'); a('s_cbranch_scc1 %s'%ok)
                gr_issue(r0)
                a('s_add_u32 s%d, s%d, 1'%(S_SO2,S_SO2)); a('s_cmp_lt_u32 s%d, %d'%(S_SO2,POLL_BOUND)); a('s_cbranch_scc1 %s'%lp)
                a('s_waitcnt vmcnt(0)')
                a.lab(ok)
                for k in range(1,12): a('v_add_f32 v%d, v%d, v%d'%(PG,PG,PG+2*k)); a('v_add_f32 v%d, v%d, v%d'%(PG+1,PG+1,PG+2*k+1))
                a('v_mul_f32 v%d, 0x%x, v%d'%(PG,f2u(1.0/864),PG)); a('v_mul_f32 v%d, 0x%x, v%d'%(PG+1,f2u(1.0/864),PG+1))
                a('v_fma_f32 v%d, -v%d, v%d, v%d'%(PG+1,PG,PG,PG+1)); a('v_max_f32 v%d, 0, v%d'%(PG+1,PG+1)); a('v_add_f32 v%d, 0x%x, v%d'%(PG+1,f2u(1e-5),PG+1))
                a('v_rsq_f32 v%d, v%d'%(PG+2,PG+1)); a('s_nop 0'); a('v_mul_f32 v%d, v%d, v%d'%(PG+3,PG,PG+2)); a('v_sub_f32 v%d, 0, v%d'%(PG+3,PG+3))
                a('v_lshlrev_b32 v26, 2, v0'); a('v_add_u32 v26, %d, v26'%(z.T_R2+r0*4))
                a('ds_write_b32 v26, v%d'%(PG+2)); a('ds_write_b32 v26, v%d offset:512'%(PG+3))
            only(1,lambda: fin(0)); only(2,lambda: fin(64))
    a('s_mov_b32 s%d, 0'%S_SLC)
    for i in range(2*n):
        if i==n:
            compute((n-1)&1); cs_write(z.T_CS1)
            def tw():
                a('s_waitcnt vmcnt(0)'); a('v_lshlrev_b32 v26, 2, v0'); a('v_add_u32 v26, %d, v26'%T_R)
                a('ds_write_b32 v26, v16'); a('ds_write_b32 v26, v17 offset:512'); a('ds_write_b32 v26, v18 offset:256'); a('ds_write_b32 v26, v19 offset:768')
            only(0,tw)
            a('s_waitcnt lgkmcnt(0)')
            for k in range(12): a('v_mov_b32 v%d, 0'%(CACC+k))
            for k in range(24): a('v_mov_b32 v%d, 0'%(CF[0]+k))
            a('s_barrier')
        a('s_barrier')
        reads(i&1)
        side(i)
        compute((i&1)^1); a('s_waitcnt lgkmcnt(0)'); slot_advance(a,S_SLC,SL,NSz)
    compute((2*n-1)&1); cs_write(z.T_CS2)
    gc.stamp(a,3)
    a('s_waitcnt lgkmcnt(0)'); a('s_barrier')

def krot(a):
    if EXP.get('norot'): a('s_mov_b32 s%d, 0'%S_T0); return
    a('s_mul_i32 s%d, s%d, 5'%(S_T0,S_G)); a('s_lshr_b32 s%d, s%d, 1'%(S_T0,S_T0))
    a('s_mul_i32 s%d, s%d, %d'%(S_T1,S_HALF,EXP.get('rothalf',4))); a('s_add_u32 s%d, s%d, s%d'%(S_T0,S_T0,S_T1))
    a('s_cmp_ge_u32 s%d, 10'%S_T0); a('s_cselect_b32 s%d, 10, 0'%S_T1); a('s_sub_u32 s%d, s%d, s%d'%(S_T0,S_T0,S_T1))

def gen_k1(a,kname):
    kernel_head(a,kname,'K1')
    a('s_load_dwordx2 s[%d:%d], s[0:1], 0'%(S_X,S_X+1))
    a('s_load_dwordx4 s[%d:%d], s[0:1], 24'%(S_WDRE,S_WDRE+3))
    a('s_load_dwordx2 s[%d:%d], s[0:1], 48'%(S_WIN,S_WIN+1))
    a('s_load_dwordx2 s[%d:%d], s[0:1], 88'%(S_DBG,S_DBG+1))
    a('s_load_dwordx2 s[%d:%d], s[0:1], 96'%(S_WS,S_WS+1))
    wave_setup(a,'K1')
    a('s_and_b32 s%d, s2, 7'%S_XCD); a('s_lshr_b32 s%d, s2, 3'%S_J)
    a('s_lshr_b32 s%d, s%d, 1'%(S_G,S_XCD)); a('s_and_b32 s%d, s%d, 1'%(S_HALF,S_XCD))
    a('s_cmp_ge_u32 s%d, 24'%S_J); a('s_cbranch_scc1 K1A_entry')
    a('s_mul_i32 s%d, s%d, 43'%(S_T0,S_J)); a('s_lshr_b32 s%d, s%d, 8'%(S_T0,S_T0))
    a('s_mul_i32 s%d, s%d, 6'%(S_T1,S_T0)); a('s_sub_u32 s%d, s%d, s%d'%(S_T1,S_J,S_T1))
    a('s_and_b32 s%d, s%d, 1'%(S_PAR,S_T1)); a('s_lshr_b32 s%d, s%d, 1'%(S_T1,S_T1)); a('s_mul_i32 s%d, s%d, 3'%(S_CT,S_HALF)); a('s_add_u32 s%d, s%d, s%d'%(S_CT,S_CT,S_T1))
    a('s_lshl_b32 s%d, s%d, 1'%(S_T1,S_G)); a('s_add_u32 s%d, s%d, s%d'%(S_T2,S_T1,S_T0))
    a('s_sub_u32 s%d, s%d, s%d'%(S_T3,S_T0,S_T1)); a('s_add_u32 s%d, s%d, 12'%(S_T3,S_T3))
    a('s_cmp_lt_u32 s%d, 2'%S_T0); a('s_cselect_b32 s%d, s%d, s%d'%(S_RB,S_T2,S_T3))
    if EXP.get('two'):
        import g3_z
        g3_z.gen_z(a)
    a('s_cmp_ge_u32 s%d, 12'%S_WAVE); a('s_cbranch_scc1 K1Z_work')
    a('s_cmp_ge_u32 s%d, 8'%S_WAVE); a('s_cbranch_scc1 K1Z_prod')
    ACC=16; FA=56; FB=84; XA=[112,113]; WA=116
    a('s_and_b32 s%d, s%d, 3'%(S_PW,S_WAVE)); a('s_lshr_b32 s%d, s%d, 2'%(S_H,S_WAVE))
    a('v_and_b32 v1, 15, v0'); a('v_lshrrev_b32 v2, 4, v0')
    a('v_and_b32 v3, 7, v0'); a('v_xor_b32 v3, v3, v2'); a('v_lshlrev_b32 v3, 4, v3'); a('v_lshl_add_u32 v3, v1, 7, v3')
    a('s_lshl_b32 s%d, s%d, 12'%(S_T0,S_PW)); a('v_add_u32 v%d, s%d, v3'%(XA[0],S_T0)); a('v_xor_b32 v%d, 64, v%d'%(XA[1],XA[0]))
    a('v_lshrrev_b32 v3, 2, v1'); a('v_lshl_add_u32 v3, v2, 2, v3'); a('v_mul_u32_u24 v3, 288, v3'); a('v_and_b32 v4, 3, v1'); a('v_lshl_add_u32 v3, v4, 3, v3')
    a('s_mul_i32 s%d, s%d, 160'%(S_T0,S_H)); a('v_add_u32 v%d, s%d, v3'%(WA,S_T0))
    ln1_row(a)
    for k in range(40): a('v_mov_b32 v%d, 0'%(ACC+k))
    ln1_row_finish(a)
    def acc(i,j): return ACC+(j*2+i)*4
    a('s_cmp_eq_u32 s%d, s%d'%(S_H,S_PAR)); a('s_cselect_b32 s%d, 0, 2'%S_T0); a('s_add_u32 s%d, s%d, s%d'%(S_T0,S_T0,S_H))
    for t,lab in ((1,'K1c_z2_1'),(2,'K1c_z1_0'),(3,'K1c_z1_1')):
        a('s_cmp_eq_u32 s%d, %d'%(S_T0,t)); a('s_cbranch_scc1 %s'%lab)
    for role in ('z2','z1'):
      for h in range(2):
        nj=5-h; nm='K1c_%s_%d'%(role,h)
        a.lab(nm)
        def rd(st,sub,nj=nj):
            F=FA if st==0 else FB; m=[]
            for i in range(2): m.append('ds_read_b128 %s, v%d offset:%d'%(vr(F+i*4,4),XA[sub],i*2048))
            for j in range(nj):
                for b in range(2): m.append('ds_read_b64_tr_b16 %s, v%d offset:%d'%(vr(F+8+j*4+b*2,2),WA,16384+sub*9216+b*4608+j*32))
            return m
        def mf(st,role=role,nj=nj):
            F=FA if st==0 else FB; m=[]
            for j in range(nj):
                for i in range(2):
                    x=vr(F+i*4,4); w=vr(F+8+j*4,4); c=vr(acc(i,j),4)
                    m.append('v_mfma_f32_16x16x32_bf16 %s, %s, %s, %s'%((c,x,w,c) if role=='z2' else (c,w,x,c)))
            return m
        consumer_loop(a,nm+'L',SLZ,NK1,XA+[WA],rd,mf,lag=(h==0),hook=ln1_hook(a),hook_at=2,per=EXP.get('k1per',2),dly=EXP.get('k1dly',12))
        a('s_barrier')
        if EXP.get('fine') is None: gc.stamp(a,4)
        C0=112;C1=114;ONE=116
        a('v_mov_b32 v%d, 0x%x'%(C0,f2u(GC0))); a('v_mov_b32 v%d, 0x%x'%(C0+1,f2u(GC0)))
        a('v_mov_b32 v%d, 0x%x'%(C1,f2u(GC1))); a('v_mov_b32 v%d, 0x%x'%(C1+1,f2u(GC1)))
        a('v_mov_b32 v%d, 1.0'%ONE); a('v_mov_b32 v%d, 1.0'%(ONE+1))
        TMP=[56,58,60,62]; prs=[(i,p) for i in range(2) for p in range(2)]
        if role=='z2':
            if not EXP.get('noz2prio'): a('s_setprio 3')
            RR=64; NM=72; CS=80; CSb=86; SUM=92; SQ=100; GRN=56; VO=118; PK=108
            a('s_lshl_b32 s%d, s%d, 7'%(S_T0,S_PW)); a('v_lshlrev_b32 v3, 4, v2'); a('v_add_u32 v3, s%d, v3'%S_T0); a('v_add_u32 v3, %d, v3'%T_R)
            for i in range(2):
                a('ds_read_b128 %s, v3 offset:%d'%(vr(RR+4*i,4),i*64)); a('ds_read_b128 %s, v3 offset:%d'%(vr(NM+4*i,4),512+i*64))
            a('v_lshlrev_b32 v4, 2, v1'); a('v_add_u32 v4, %d, v4'%(T_CS0+h*320))
            for j in range(nj):
                a('ds_read_b32 v%d, v4 offset:%d'%(CS+j,j*64)); a('ds_read_b32 v%d, v4 offset:%d'%(CSb+j,640+j*64))
            for k in range(8): a('v_mov_b32 v%d, 0'%(SUM+k)); a('v_mov_b32 v%d, 0'%(SQ+k))
            add64(a,S_T2,S_WS,WS_GR); srd(a,SRD_G,S_T2,S_T2+1,16*12288)
            a('s_mul_i32 s%d, s%d, 12288'%(S_SO,S_RB))
            a('s_lshl_b32 s%d, s%d, 1'%(S_T0,S_CT)); a('s_add_u32 s%d, s%d, %d'%(S_T0,S_T0,h)); a('s_lshl_b32 s%d, s%d, 10'%(S_T0,S_T0))
            a('s_lshl_b32 s%d, s%d, 8'%(S_T1,S_PW)); a('s_add_u32 s%d, s%d, s%d'%(S_T0,S_T0,S_T1)); a('s_add_u32 s%d, s%d, s%d'%(S_SO2,S_SO,S_T0))
            a('s_waitcnt lgkmcnt(0)')
            for j in range(nj): a('v_add_f32 v%d, v%d, v%d'%(CS+j,CS+j,CSb+j))
            for j in range(nj):
                csr=CS+j; cspair=vr(csr&~1,2); sel=csr&1
                for k,(i,p) in enumerate(prs): a('v_pk_mul_f32 %s, %s, %s op_sel:[0,%d] op_sel_hi:[1,%d]'%(vr(TMP[k],2),vr(NM+4*i+2*p,2),cspair,sel,sel))
                for k,(i,p) in enumerate(prs):
                    r=acc(i,j)+2*p; a('v_pk_fma_f32 %s, %s, %s, %s'%(vr(r,2),vr(r,2),vr(RR+4*i+2*p,2),vr(TMP[k],2)))
                gelu_pairs(a,[acc(i,j)+2*p for (i,p) in prs],TMP,C0,C1,ONE)
                for k,(i,p) in enumerate(prs):
                    r=acc(i,j)+2*p
                    a('v_pk_add_f32 %s, %s, %s'%(vr(SUM+4*i+2*p,2),vr(SUM+4*i+2*p,2),vr(r,2)))
                    a('v_pk_fma_f32 %s, %s, %s, %s'%(vr(SQ+4*i+2*p,2),vr(r,2),vr(r,2),vr(SQ+4*i+2*p,2)))
            if EXP.get('z2st'): gc.stamp(a,1)
            for sh in (8,4,2):
                for k in range(8): a('v_add_f32_dpp v%d, v%d, v%d row_ror:%d row_mask:0xf bank_mask:0xf'%(SUM+k,SUM+k,SUM+k,sh))
                for k in range(8): a('v_add_f32_dpp v%d, v%d, v%d row_ror:%d row_mask:0xf bank_mask:0xf'%(SQ+k,SQ+k,SQ+k,sh))
            for k in range(8): a('v_add_f32_dpp v%d, v%d, v%d row_ror:1 row_mask:0xf bank_mask:0xf'%(GRN+2*k,SUM+k,SUM+k))
            for k in range(8): a('v_add_f32_dpp v%d, v%d, v%d row_ror:1 row_mask:0xf bank_mask:0xf'%(GRN+2*k+1,SQ+k,SQ+k))
            a('v_lshlrev_b32 v3, 5, v2'); a('v_cmp_eq_u32 vcc, 0, v1'); a('s_and_saveexec_b64 s[%d:%d], vcc'%(S_EX,S_EX+1))
            for i in range(2):
                for p in range(2): a('buffer_store_dwordx4 %s, v3, s[%d:%d], s%d offen offset:%d sc1'%(vr(GRN+8*i+4*p,4),SRD_G,SRD_G+3,S_SO2,i*128+p*16))
            a('s_mov_b64 exec, s[%d:%d]'%(S_EX,S_EX+1))
            if EXP.get('z2st'): gc.stamp(a,2)
            PL=72
            if not EXP.get('oldpoll'):
                add64(a,S_T2,S_WS,WS_FG); srd(a,SRD_O2,S_T2,S_T2+1,4096)
                a('s_lshl_b32 s%d, s%d, 8'%(S_T0,S_RB)); a('s_lshl_b32 s%d, s%d, 6'%(S_T1,S_PW)); a('s_add_u32 s%d, s%d, s%d'%(S_T0,S_T0,S_T1))
                a('s_lshl_b32 s%d, s%d, 1'%(S_T1,S_CT)); a('s_add_u32 s%d, s%d, %d'%(S_T1,S_T1,h)); a('s_lshl_b32 s%d, s%d, 2'%(S_T1,S_T1)); a('s_add_u32 s%d, s%d, s%d'%(S_T1,S_T1,S_T0))
                a('v_mov_b32 v6, 1'); a('v_mov_b32 v7, 0'); a('s_mov_b32 exec_lo, 1'); a('s_mov_b32 exec_hi, 0')
                a('buffer_store_dword v6, v7, s[%d:%d], s%d offen sc1'%(SRD_O2,SRD_O2+3,S_T1)); a('s_mov_b64 exec, -1')
                a('v_lshlrev_b32 v7, 2, v0'); a('v_mov_b32 v8, 0x7fffff00'); a('v_cmp_gt_u32 vcc, 12, v0'); a('s_nop 1'); a('v_cndmask_b32 v7, v8, v7, vcc'); a('v_cndmask_b32_e64 v8, 1, 0, vcc')
                a('s_mov_b32 s%d, 0'%S_I)
                a('buffer_load_dword v9, v7, s[%d:%d], s%d offen sc1'%(SRD_O2,SRD_O2+3,S_T0))
                a.lab(nm+'_hp')
                for r0,r1 in ((9,10),(10,9)):
                    a('buffer_load_dword v%d, v7, s[%d:%d], s%d offen sc1'%(r1,SRD_O2,SRD_O2+3,S_T0)); a('s_waitcnt vmcnt(1)')
                    a('v_or_b32 v11, v%d, v8'%r0); a('v_cmp_ne_u32 vcc, 1, v11'); a('s_nop 1'); a('s_cmp_eq_u64 vcc, 0'); a('s_cbranch_scc1 %s_hok'%nm)
                a('s_add_u32 s%d, s%d, 1'%(S_I,S_I)); a('s_cmp_lt_u32 s%d, %d'%(S_I,POLL_BOUND)); a('s_cbranch_scc1 %s_hp'%nm)
                a.lab(nm+'_hok')
            a('v_and_b32 v4, 31, v0'); a('v_lshrrev_b32 v5, 5, v0'); a('v_mul_u32_u24 v5, 6144, v5'); a('v_lshl_add_u32 v4, v4, 3, v5')
            a('s_lshl_b32 s%d, s%d, 8'%(S_T1,S_PW)); a('v_add_u32 v4, s%d, v4'%S_T1); a('v_add_u32 v5, 4096, v4')
            a('s_mov_b32 s%d, 0'%S_I)
            a.lab(nm+'_poll')
            for k in range(6): a('buffer_load_dwordx2 %s, v%d, s[%d:%d], s%d offen offset:%d sc1'%(vr(PL+2*k,2),4 if k<4 else 5,SRD_G,SRD_G+3,S_SO,(k%4)*1024))
            a('s_waitcnt vmcnt(0)')
            a('v_max3_u32 v6, v%d, v%d, v%d'%(PL,PL+1,PL+2))
            for k in range(3,12,2):
                a('v_max3_u32 v6, v6, v%d, v%d'%(PL+k,PL+k+1) if k+1<12 else 'v_max_u32 v6, v6, v%d'%(PL+k))
            a('v_cmp_eq_u32 s[%d:%d], -1, v6'%(S_EX,S_EX+1)); a('s_nop 1'); a('s_cmp_eq_u64 s[%d:%d], 0'%(S_EX,S_EX+1)); a('s_cbranch_scc1 %s_rdy'%nm)
            a('s_add_u32 s%d, s%d, 1'%(S_I,S_I)); a('s_cmp_lt_u32 s%d, %d'%(S_I,POLL_BOUND)); a('s_cbranch_scc1 %s_poll'%nm)
            a.lab(nm+'_rdy')
            if EXP.get('z2st'): gc.stamp(a,3)
            a('v_pk_add_f32 %s, %s, %s'%(vr(PL,2),vr(PL,2),vr(PL+2,2))); a('v_pk_add_f32 %s, %s, %s'%(vr(PL+4,2),vr(PL+4,2),vr(PL+6,2))); a('v_pk_add_f32 %s, %s, %s'%(vr(PL+8,2),vr(PL+8,2),vr(PL+10,2)))
            a('v_pk_add_f32 %s, %s, %s'%(vr(PL,2),vr(PL,2),vr(PL+4,2))); a('v_pk_add_f32 %s, %s, %s'%(vr(PL,2),vr(PL,2),vr(PL+8,2)))
            a('v_mov_b32 v%d, v%d'%(PL+2,PL)); a('v_mov_b32 v%d, v%d'%(PL+3,PL+1)); a('s_nop 1')
            a('v_permlane32_swap_b32 v%d, v%d'%(PL,PL+2)); a('v_permlane32_swap_b32 v%d, v%d'%(PL+1,PL+3)); a('s_nop 1')
            a('v_pk_add_f32 %s, %s, %s'%(vr(PL,2),vr(PL,2),vr(PL+2,2)))
            a('v_mul_f32 v%d, 0x%x, v%d'%(PL,f2u(1.0/864),PL)); a('v_mul_f32 v%d, 0x%x, v%d'%(PL+1,f2u(1.0/864),PL+1))
            a('v_fma_f32 v%d, -v%d, v%d, v%d'%(PL+1,PL,PL,PL+1)); a('v_max_f32 v%d, 0, v%d'%(PL+1,PL+1)); a('v_add_f32 v%d, 0x%x, v%d'%(PL+1,f2u(1e-5),PL+1))
            a('v_rsq_f32 v%d, v%d'%(PL+2,PL+1)); a('s_nop 0'); a('v_mul_f32 v%d, v%d, v%d'%(PL+3,PL,PL+2)); a('v_sub_f32 v%d, 0, v%d'%(PL+3,PL+3))
            a('s_lshl_b32 s%d, s%d, 8'%(S_T0,S_WAVE)); a('s_add_u32 s%d, s%d, %d'%(S_T0,S_T0,T_W2))
            a('v_and_b32 v4, 31, v0'); a('v_lshlrev_b32 v4, 2, v4'); a('v_add_u32 v4, s%d, v4'%S_T0)
            a('ds_write_b32 v4, v%d'%(PL+2)); a('ds_write_b32 v4, v%d offset:128'%(PL+3))
            a('v_lshlrev_b32 v5, 4, v2'); a('v_add_u32 v5, s%d, v5'%S_T0)
            a('s_waitcnt lgkmcnt(0)')
            for i in range(2):
                a('ds_read_b128 %s, v5 offset:%d'%(vr(RR+4*i,4),i*64)); a('ds_read_b128 %s, v5 offset:%d'%(vr(84+4*i,4),128+i*64))
            NM2=84
            a('s_mul_i32 s%d, s%d, %d'%(S_T0,S_CT,Z2_CT)); a('s_lshl_b32 s%d, s%d, 1'%(S_T1,S_RB)); a('s_lshr_b32 s%d, s%d, 1'%(S_T2,S_PW))
            a('s_add_u32 s%d, s%d, s%d'%(S_T1,S_T1,S_T2)); a('s_mul_i32 s%d, s%d, 18432'%(S_T1,S_T1)); a('s_add_u32 s%d, s%d, s%d'%(S_T0,S_T0,S_T1))
            a('s_and_b32 s%d, s%d, 1'%(S_T1,S_PW)); a('s_mul_i32 s%d, s%d, 9216'%(S_T1,S_T1)); a('s_add_u32 s%d, s%d, s%d'%(S_T0,S_T0,S_T1))
            a('s_add_u32 s%d, s%d, %d'%(S_SO,S_T0,5120*h))
            srd(a,SRD_O,S_WS,S_WS+1,6*Z2_CT)
            a('v_lshlrev_b32 v%d, 4, v0'%VO)
            a('s_waitcnt lgkmcnt(0)')
            for j in range(nj):
                for k,(i,p) in enumerate(prs):
                    r=acc(i,j)+2*p; a('v_pk_fma_f32 %s, %s, %s, %s'%(vr(r,2),vr(r,2),vr(RR+4*i+2*p,2),vr(NM2+4*i+2*p,2)))
                o=PK+4*(j&1)
                for k,(i,p) in enumerate(prs):
                    r=acc(i,j)+2*p; a('v_cvt_pk_bf16_f32 v%d, v%d, v%d'%(o+k,r,r+1))
                a('s_nop 1')
                a('v_permlane32_swap_b32 v%d, v%d'%(o,o+2)); a('v_permlane32_swap_b32 v%d, v%d'%(o+1,o+3)); a('s_nop 1')
                a('v_permlane16_swap_b32 v%d, v%d'%(o,o+2)); a('v_permlane16_swap_b32 v%d, v%d'%(o+1,o+3))
                if j<4: a('buffer_store_dwordx4 %s, v%d, s[%d:%d], s%d offen offset:%d%s'%(vr(o,4),VO,SRD_O,SRD_O+3,S_SO,j*1024,g2.STF))
                else:
                    a('s_add_u32 s%d, s%d, 4096'%(S_SO,S_SO)); a('buffer_store_dwordx4 %s, v%d, s[%d:%d], s%d offen%s'%(vr(o,4),VO,SRD_O,SRD_O+3,S_SO,g2.STF))
            a('s_branch K1_end')
        else:
            RR=64; NM=66; CS=68; CSb=88; PK=100; VO=118
            a('s_lshl_b32 s%d, s%d, 7'%(S_T0,S_PW)); a('v_lshlrev_b32 v3, 2, v1'); a('v_add_u32 v3, s%d, v3'%S_T0); a('v_add_u32 v3, %d, v3'%T_R)
            for i in range(2):
                a('ds_read_b32 v%d, v3 offset:%d'%(RR+i,i*64)); a('ds_read_b32 v%d, v3 offset:%d'%(NM+i,512+i*64))
            a('v_lshlrev_b32 v4, 4, v2'); a('v_add_u32 v4, %d, v4'%(T_CS0+320*h))
            for j in range(nj):
                a('ds_read_b128 %s, v4 offset:%d'%(vr(CS+4*j,4),j*64)); a('ds_read_b128 %s, v4 offset:%d'%(vr(CSb+4*j,4),640+j*64))
            a('s_mul_i32 s%d, s%d, 6'%(S_T0,S_RB)); a('s_add_u32 s%d, s%d, s%d'%(S_T0,S_T0,S_CT)); a('s_lshl_b32 s%d, s%d, 3'%(S_T0,S_T0))
            a('s_add_u32 s%d, s%d, s%d'%(S_T0,S_T0,S_WAVE)); a('s_mul_i32 s%d, s%d, 5120'%(S_SO,S_T0))
            add64(a,S_T2,S_WS,WS_Z1); srd(a,SRD_O,S_T2,S_T2+1,96*40960)
            a('v_lshlrev_b32 v%d, 4, v0'%VO)
            a('s_waitcnt lgkmcnt(0)')
            for j in range(nj):
                for p in range(2): a('v_pk_add_f32 %s, %s, %s'%(vr(CS+4*j+2*p,2),vr(CS+4*j+2*p,2),vr(CSb+4*j+2*p,2)))
            for j in range(nj):
                for k,(i,p) in enumerate(prs): a('v_pk_mul_f32 %s, %s, %s op_sel:[0,%d] op_sel_hi:[1,%d]'%(vr(TMP[k],2),vr(CS+4*j+2*p,2),vr(NM,2),i,i))
                for k,(i,p) in enumerate(prs):
                    r=acc(i,j)+2*p; a('v_pk_fma_f32 %s, %s, %s, %s op_sel:[0,%d,0] op_sel_hi:[1,%d,1]'%(vr(r,2),vr(r,2),vr(RR,2),vr(TMP[k],2),i,i))
                gelu_pairs(a,[acc(i,j)+2*p for (i,p) in prs],TMP,C0,C1,ONE)
                o=acc(0,j) if not EXP.get('z1early') else PK+4*(j&1)
                for k,(i,p) in enumerate(prs):
                    r=acc(i,j)+2*p; a('v_cvt_pk_bf16_f32 v%d, v%d, v%d'%(o+k,r,r+1))
                if EXP.get('z1early'):
                    if j<4: a('buffer_store_dwordx4 %s, v%d, s[%d:%d], s%d offen offset:%d%s'%(vr(o,4),VO,SRD_O,SRD_O+3,S_SO,j*1024,g2.STF))
                    else:
                        a('s_add_u32 s%d, s%d, 4096'%(S_SO,S_SO)); a('buffer_store_dwordx4 %s, v%d, s[%d:%d], s%d offen%s'%(vr(o,4),VO,SRD_O,SRD_O+3,S_SO,g2.STF))
            if not EXP.get('z1early'):
                for j in range(nj):
                    if j<4: a('buffer_store_dwordx4 %s, v%d, s[%d:%d], s%d offen offset:%d%s'%(vr(acc(0,j),4),VO,SRD_O,SRD_O+3,S_SO,j*1024,g2.STF))
                    else:
                        a('s_add_u32 s%d, s%d, 4096'%(S_SO,S_SO)); a('buffer_store_dwordx4 %s, v%d, s[%d:%d], s%d offen%s'%(vr(acc(0,j),4),VO,SRD_O,SRD_O+3,S_SO,g2.STF))
            a('s_branch K1_end')
    a.lab('K1Z_prod')
    XO=[2,3]; WO=[4,5,6,7,8]
    if EXP.get('same'): a('s_mov_b32 s%d, 0'%S_RB); a('s_mov_b32 s%d, 0'%S_CT)
    a('s_sub_u32 s%d, s%d, 8'%(S_PW,S_WAVE))
    a('v_lshrrev_b32 v20, 3, v0'); a('s_lshl_b32 s%d, s%d, 5'%(S_T0,S_PW)); a('v_add_u32 v21, s%d, v20'%S_T0); a('v_mul_u32_u24 v21, 1280, v21')
    a('v_and_b32 v22, 7, v0'); a('v_xor_b32 v22, v22, v20')
    a('v_lshl_add_u32 v%d, v22, 4, v21'%XO[0]); a('v_mov_b32 v%d, v%d'%(XO[1],XO[0]))
    a('s_mul_i32 s%d, s%d, 288'%(S_T0,S_CT)); a('s_cmp_eq_u32 s%d, 0'%S_PAR); a('s_cselect_b32 s%d, 1728, 0'%S_T1); a('s_cselect_b32 s%d, 0, 1728'%S_T2)
    a('s_add_u32 s%d, s%d, s%d'%(S_T1,S_T1,S_T0)); a('s_add_u32 s%d, s%d, s%d'%(S_T2,S_T2,S_T0))
    a('v_mov_b32 v24, s%d'%S_T1); a('v_mov_b32 v25, s%d'%S_T2)
    for i in range(5):
        a('s_lshl_b32 s%d, s%d, 6'%(S_T0,S_PW)); a('s_add_u32 s%d, s%d, %d'%(S_T0,S_T0,256*i)); a('v_add_u32 v20, s%d, v0'%S_T0)
        a('v_mul_u32_u24 v21, 3641, v20'); a('v_lshrrev_b32 v21, 16, v21')
        a('v_mul_u32_u24 v22, 18, v21'); a('v_sub_u32 v22, v20, v22'); a('v_cmp_gt_u32 vcc, 10, v22')
        a('v_and_b32 v26, 0x23, v21'); a('v_bfe_u32 v27, v21, 2, 2'); a('v_lshl_or_b32 v26, v27, 3, v26'); a('v_bfe_u32 v27, v21, 4, 1'); a('v_lshl_or_b32 v21, v27, 2, v26')
        a('v_mul_u32_u24 v21, 3456, v21'); a('v_lshl_add_u32 v21, v22, 4, v21')
        a('v_cndmask_b32 v23, v25, v24, vcc'); a('v_add_u32 v%d, v21, v23'%WO[i])
    a('s_mov_b32 s%d, 0'%S_SLI)
    krot(a); a('s_lshl_b32 s%d, s%d, 7'%(S_KX,S_T0)); a('s_mul_i32 s%d, s%d, %d'%(S_KW,S_T0,64*3456))
    a('s_waitcnt lgkmcnt(0)')
    a('s_mul_i32 s%d, s%d, %d'%(S_T0,S_RB,128*1280)); add64(a,S_X,S_X,'s%d'%S_T0); srd(a,SRD_X,S_X,S_X+1,128*1280)
    srd(a,SRD_W,S_WIN,S_WIN+1,640*3456)
    def issueZ():
        a('s_lshl_b32 s%d, s%d, 12'%(S_T,S_PW)); a('s_add_u32 s%d, s%d, s%d'%(S_T,S_T,S_SLI))
        for j in range(4):
            a('s_add_u32 m0, s%d, %d'%(S_T,j*1024)); a('s_add_u32 s%d, s%d, %d'%(S_SO,S_KX,j*10240))
            a(ld('buffer_load_dwordx4 v%d, s[%d:%d], s%d offen lds'%(XO[j&1],SRD_X,SRD_X+3,S_SO)))
        a('s_lshl_b32 s%d, s%d, 10'%(S_T,S_PW)); a('s_add_u32 s%d, s%d, s%d'%(S_T,S_T,S_SLI))
        lab=a.newlab('K1Zp_s')
        for i in range(5):
            if i==4: a('s_cmp_lt_u32 s%d, 2'%S_PW); a('s_cbranch_scc0 %s'%lab)
            a('s_add_u32 m0, s%d, %d'%(S_T,16384+i*4096)); a('s_nop 0')
            a(ld('buffer_load_dwordx4 v%d, s[%d:%d], s%d offen lds'%(WO[i],SRD_W,SRD_W+3,S_KW)))
        a.lab(lab)
        slot_advance(a,S_SLI,SLZ); a('s_add_u32 s%d, s%d, 128'%(S_KX,S_KX)); a('s_add_u32 s%d, s%d, %d'%(S_KW,S_KW,64*3456))
        a('s_cmp_eq_u32 s%d, 1280'%S_KX); a('s_cselect_b32 s%d, 0, s%d'%(S_KX,S_KX)); a('s_cselect_b32 s%d, 0, s%d'%(S_KW,S_KW))
    dma_producer(a,'K1Zp',NK1,8,issueZ,post=1)
    a('s_branch K1_end')
    a.lab('K1Z_work')
    a('s_sub_u32 s%d, s%d, 12'%(S_PW,S_WAVE))
    a('s_waitcnt lgkmcnt(0)')
    late=worker(a,'K1Zw',SLZ,True)
    a('s_waitcnt lgkmcnt(0)'); a('s_barrier'); late(); a('s_branch K1_end')

    a.lab('K1A_entry')
    a('s_sub_u32 s%d, s%d, 24'%(S_T0,S_J)); a('s_lshr_b32 s%d, s%d, 1'%(S_T1,S_T0)); a('s_and_b32 s%d, s%d, 1'%(S_CT,S_T0))
    a('s_lshl_b32 s%d, s%d, 2'%(S_RB,S_G)); a('s_add_u32 s%d, s%d, s%d'%(S_RB,S_RB,S_T1))
    a('s_cmp_ge_u32 s%d, 12'%S_WAVE); a('s_cbranch_scc1 K1A_work')
    a('s_cmp_ge_u32 s%d, 8'%S_WAVE); a('s_cbranch_scc1 K1A_prod')
    ACC=16; FA=56; FB=84; XA=[112,113]; WA2=[114,115]
    a('s_and_b32 s%d, s%d, 3'%(S_PW,S_WAVE)); a('s_lshr_b32 s%d, s%d, 2'%(S_H,S_WAVE))
    a('v_and_b32 v1, 15, v0'); a('v_lshrrev_b32 v2, 4, v0'); a('v_and_b32 v3, 7, v0'); a('v_xor_b32 v3, v3, v2'); a('v_lshlrev_b32 v3, 4, v3')
    a('v_lshl_add_u32 v3, v1, 7, v3')
    a('s_lshl_b32 s%d, s%d, 11'%(S_T0,S_PW)); a('v_add_u32 v%d, s%d, v3'%(XA[0],S_T0)); a('v_xor_b32 v%d, 64, v%d'%(XA[1],XA[0]))
    a('s_mul_i32 s%d, s%d, %d'%(S_T0,S_H,80*128)); a('s_add_u32 s%d, s%d, 16384'%(S_T0,S_T0)); a('v_add_u32 v%d, s%d, v3'%(WA2[0],S_T0)); a('v_xor_b32 v%d, 64, v%d'%(WA2[1],WA2[0]))
    ln1_row(a)
    for k in range(40): a('v_mov_b32 v%d, 0'%(ACC+k))
    ln1_row_finish(a)
    def accA(tb,j): return ACC+(j*2+tb)*4
    def rdA(st,sub):
        F=FA if st==0 else FB; m=[]
        for tb in range(2): m.append('ds_read_b128 %s, v%d offset:%d'%(vr(F+tb*4,4),XA[sub],tb*8192))
        for j in range(5): m.append('ds_read_b128 %s, v%d offset:%d'%(vr(F+8+j*4,4),WA2[sub],j*2048))
        return m
    def mfA(st):
        F=FA if st==0 else FB; m=[]
        for j in range(5):
            for tb in range(2):
                c=vr(accA(tb,j),4); m.append('v_mfma_f32_16x16x32_bf16 %s, %s, %s, %s'%(c,vr(F+tb*4,4),vr(F+8+j*4,4),c))
        return m
    a('s_cmp_eq_u32 s%d, 0'%S_H); a('s_cbranch_scc0 K1A_c1')
    consumer_loop(a,'K1A0',SLA,NK1,XA+WA2,rdA,mfA,lag=True,hook=ln1_hook(a),hook_at=2)
    a('s_branch K1A_cd')
    a.lab('K1A_c1')
    consumer_loop(a,'K1A1',SLA,NK1,XA+WA2,rdA,mfA,lag=False,hook=ln1_hook(a),hook_at=2)
    a.lab('K1A_cd')
    a('s_barrier')
    if EXP.get('fine') is None: gc.stamp(a,4)
    RT=56; RB_=60; RO=64; T4=[66,68]; PK=70; VO=76
    a('s_lshl_b32 s%d, s%d, 6'%(S_T0,S_PW)); a('v_lshlrev_b32 v3, 4, v2'); a('v_add_u32 v3, s%d, v3'%S_T0); a('v_add_u32 v3, %d, v3'%T_R)
    a('ds_read_b128 %s, v3'%vr(RT,4)); a('ds_read_b128 %s, v3 offset:256'%vr(RB_,4))
    a('s_mul_i32 s%d, s%d, %d'%(S_T0,S_HALF,AE_MAT)); a('s_lshl_b32 s%d, s%d, 1'%(S_T1,S_CT)); a('s_add_u32 s%d, s%d, s%d'%(S_T1,S_T1,S_H))
    a('s_mul_i32 s%d, s%d, 163840'%(S_T1,S_T1)); a('s_add_u32 s%d, s%d, s%d'%(S_T0,S_T0,S_T1)); a('s_mul_i32 s%d, s%d, 10240'%(S_T1,S_RB))
    a('s_add_u32 s%d, s%d, s%d'%(S_T0,S_T0,S_T1)); a('s_lshr_b32 s%d, s%d, 1'%(S_T1,S_PW)); a('s_mul_i32 s%d, s%d, 5120'%(S_T1,S_T1)); a('s_add_u32 s%d, s%d, s%d'%(S_SO,S_T0,S_T1))
    add64(a,S_T2,S_WS,WS_AE); srd(a,SRD_O,S_T2,S_T2+1,2*AE_MAT)
    a('s_and_b32 s%d, s%d, 1'%(S_T0,S_PW)); a('s_lshl_b32 s%d, s%d, 9'%(S_T0,S_T0))
    a('v_lshrrev_b32 v3, 1, v2'); a('v_lshlrev_b32 v3, 8, v3'); a('v_lshl_add_u32 v3, v1, 4, v3'); a('v_and_b32 v4, 1, v2'); a('v_lshl_add_u32 v3, v4, 3, v3')
    a('v_add_u32 v%d, s%d, v3'%(VO,S_T0))
    a('s_waitcnt lgkmcnt(0)')
    a('s_or_b32 s%d, s%d, s%d'%(S_T0,S_RB,S_PW)); a('s_or_b32 s%d, s%d, s%d'%(S_T0,S_T0,S_HALF)); a('s_cmp_eq_u32 s%d, 0'%S_T0); a('s_cbranch_scc0 K1A_nosp')
    add64(a,S_T2,S_WS,WS_A1024); srd(a,SRD_O2,S_T2,S_T2+1,1280)
    a('s_mul_i32 s%d, s%d, 640'%(S_T0,S_CT)); a('s_mul_i32 s%d, s%d, 320'%(S_T1,S_H)); a('s_add_u32 s%d, s%d, s%d'%(S_T0,S_T0,S_T1))
    a('v_lshlrev_b32 v5, 2, v1')
    a('v_cmp_gt_u32 vcc, 16, v0'); a('s_and_saveexec_b64 s[%d:%d], vcc'%(S_EX,S_EX+1))
    for j in range(5):
        a('v_mul_f32 v%d, v%d, v%d'%(RO,accA(1,j),RB_))
        a('buffer_store_dword v%d, v5, s[%d:%d], s%d offen offset:%d%s'%(RO,SRD_O2,SRD_O2+3,S_T0,j*64,g2.STF)); a('s_nop 0')
    a('v_mov_b32 v%d, 0'%RB_)
    a('s_mov_b64 exec, s[%d:%d]'%(S_EX,S_EX+1))
    a.lab('K1A_nosp')
    a('s_cmp_eq_u32 s%d, 0'%S_HALF); a('s_cselect_b32 s%d, 1.0, -1.0'%S_T0)
    for k in range(4): a('v_mul_f32 v%d, s%d, v%d'%(RB_+k,S_T0,RB_+k))
    for j in range(5):
        for p in range(2): a('v_pk_mul_f32 %s, %s, %s'%(vr(T4[p],2),vr(accA(1,j)+2*p,2),vr(RB_+2*p,2)))
        for p in range(2): a('v_pk_fma_f32 %s, %s, %s, %s'%(vr(T4[p],2),vr(accA(0,j)+2*p,2),vr(RT+2*p,2),vr(T4[p],2)))
        for p in range(2): a('v_cvt_pk_bf16_f32 v%d, v%d, v%d'%(PK+p+2*(j&1),T4[p],T4[p]+1))
        if j<4: a('buffer_store_dwordx2 %s, v%d, s[%d:%d], s%d offen offset:%d%s'%(vr(PK+2*(j&1),2),VO,SRD_O,SRD_O+3,S_SO,j*1024,g2.STF))
        else:
            a('s_add_u32 s%d, s%d, 4096'%(S_SO,S_SO)); a('buffer_store_dwordx2 %s, v%d, s[%d:%d], s%d offen%s'%(vr(PK+2*(j&1),2),VO,SRD_O,SRD_O+3,S_SO,g2.STF))
    a('s_branch K1_end')
    a.lab('K1A_prod')
    XO4=[2,3,4,5]; WO1=6
    if EXP.get('same'): a('s_mov_b32 s%d, 0'%S_RB); a('s_mov_b32 s%d, 0'%S_CT)
    a('s_sub_u32 s%d, s%d, 8'%(S_PW,S_WAVE))
    a('v_lshrrev_b32 v20, 3, v0'); a('v_and_b32 v22, 7, v0'); a('v_xor_b32 v22, v22, v20'); a('v_lshlrev_b32 v22, 4, v22')
    a('s_lshl_b32 s%d, s%d, 6'%(S_T0,S_RB))
    a('s_cmp_lt_u32 s%d, 2'%S_PW); a('s_cbranch_scc0 K1Ap_bot')
    a('s_lshl_b32 s%d, s%d, 5'%(S_T1,S_PW)); a('s_add_u32 s%d, s%d, s%d'%(S_T1,S_T1,S_T0))
    for j in range(4):
        a('v_add_u32 v21, s%d, v20'%S_T1); a('v_add_u32 v21, %d, v21'%(8*j)); a('v_mul_u32_u24 v21, 1280, v21'); a('v_add_u32 v%d, v21, v22'%XO4[j])
    a('s_branch K1Ap_xd')
    a.lab('K1Ap_bot')
    a('s_sub_u32 s%d, s%d, 2'%(S_T1,S_PW)); a('s_lshl_b32 s%d, s%d, 5'%(S_T1,S_T1)); a('s_add_u32 s%d, s%d, s%d'%(S_T1,S_T1,S_T0)); a('s_sub_u32 s%d, 2048, s%d'%(S_T1,S_T1))
    for j in range(4):
        a('v_sub_u32 v21, s%d, v20'%S_T1); a('v_subrev_u32 v21, %d, v21'%(8*j))
        if j==0:
            a('v_cmp_eq_u32 vcc, 2048, v21'); a('v_mov_b32 v23, 1024'); a('s_nop 0'); a('v_cndmask_b32 v21, v21, v23, vcc')
        a('v_mul_u32_u24 v21, 1280, v21'); a('v_add_u32 v%d, v21, v22'%XO4[j])
    a.lab('K1Ap_xd')
    a('s_mul_i32 s%d, s%d, 40'%(S_T0,S_PW)); a('v_add_u32 v21, s%d, v20'%S_T0); a('v_mul_u32_u24 v21, 1280, v21'); a('v_add_u32 v%d, v21, v22'%WO1)
    a('s_mov_b32 s%d, 0'%S_SLI)
    krot(a); a('s_lshl_b32 s%d, s%d, 7'%(S_KX,S_T0))
    a('s_waitcnt lgkmcnt(0)')
    srd(a,SRD_X,S_X,S_X+1,2048*1280)
    a('s_cmp_eq_u32 s%d, 0'%S_HALF); a('s_cselect_b32 s%d, s%d, s%d'%(S_T2,S_WDRE,S_WDIM)); a('s_cselect_b32 s%d, s%d, s%d'%(S_T3,S_WDRE+1,S_WDIM+1))
    a('s_mul_i32 s%d, s%d, %d'%(S_T0,S_CT,160*1280)); a('s_add_u32 s%d, s%d, 1280'%(S_T0,S_T0)); add64(a,S_T2,S_T2,'s%d'%S_T0)
    srd(a,SRD_W,S_T2,S_T2+1,160*1280)
    def issueA():
        a('s_lshl_b32 s%d, s%d, 12'%(S_T,S_PW)); a('s_add_u32 s%d, s%d, s%d'%(S_T,S_T,S_SLI))
        for j in range(4):
            a('s_add_u32 m0, s%d, %d'%(S_T,j*1024)); a('s_nop 0')
            a(ld('buffer_load_dwordx4 v%d, s[%d:%d], s%d offen lds'%(XO4[j],SRD_X,SRD_X+3,S_KX)))
        a('s_mul_i32 s%d, s%d, 5120'%(S_T,S_PW)); a('s_add_u32 s%d, s%d, s%d'%(S_T,S_T,S_SLI))
        for j in range(5):
            a('s_add_u32 m0, s%d, %d'%(S_T,16384+j*1024)); a('s_add_u32 s%d, s%d, %d'%(S_SO,S_KX,j*10240))
            a(ld('buffer_load_dwordx4 v%d, s[%d:%d], s%d offen lds'%(WO1,SRD_W,SRD_W+3,S_SO)))
        slot_advance(a,S_SLI,SLA); a('s_add_u32 s%d, s%d, 128'%(S_KX,S_KX))
        a('s_cmp_eq_u32 s%d, 1280'%S_KX); a('s_cselect_b32 s%d, 0, s%d'%(S_KX,S_KX))
    dma_producer(a,'K1Ap',NK1,9,issueA,post=1)
    a('s_branch K1_end')
    a.lab('K1A_work')
    a('s_sub_u32 s%d, s%d, 12'%(S_PW,S_WAVE))
    a('s_waitcnt lgkmcnt(0)')
    late=worker(a,'K1Aw',SLA,False)
    a('s_waitcnt lgkmcnt(0)'); a('s_barrier'); late()
    kernel_tail(a,'K1',0,S_WS)
```

```python
import sys
sys.path.insert(0,'dev')
from gen_common import *
import gen_common, g2_common
BASE='parallel_sum__spectral_fnet__mixer_gmlp__prompt'
def kd(name,vgpr,sgpr=100):
    return '''.amdhsa_kernel %s
  .amdhsa_next_free_vgpr %d
  .amdhsa_next_free_sgpr %d
  .amdhsa_accum_offset %d
  .amdhsa_group_segment_fixed_size 0
  .amdhsa_kernarg_size 104
  .amdhsa_user_sgpr_count 2
  .amdhsa_user_sgpr_kernarg_segment_ptr 1
  .amdhsa_system_sgpr_workgroup_id_x 1
  .amdhsa_float_denorm_mode_32 3
.end_amdhsa_kernel
'''%(name,vgpr,sgpr,vgpr)
DUP=False
def build(which=('k1','k2','k3')):
    import g2_k1,g2_k2,g2_k3
    hdr=open('cdna_kernels/%s.s.ref'%BASE).read().split('; Override launch')[0]
    launches=[]; kds=[]; body=g2_common.AsmF()
    if 'k1' in which:
        launches.append('; @launch kernel=fk1_kernel grid=(256,1,1) block=(1024,1,1) lds=%d'%g2_k1.K1_LDS)
        body.raw('.globl fk1_kernel'); g2_k1.gen_k1(body,'fk1_kernel'); kds.append(kd('fk1_kernel',128))
    if 'k2' in which:
        launches.append('; @launch kernel=fk2_kernel grid=(256,1,1) block=(1024,1,1) lds=%d'%g2_k2.K2_LDS)
        body.raw('.globl fk2_kernel'); g2_k2.gen_k2(body,'fk2_kernel'); kds.append(kd('fk2_kernel',128))
    if 'k3' in which:
        launches.append('; @launch kernel=fk3_kernel grid=(256,1,1) block=(1024,1,1) lds=%d'%g2_k3.K3_LDS)
        body.raw('.globl fk3_kernel'); g2_k3.gen_k3(body,'fk3_kernel'); kds.append(kd('fk3_kernel',128))
    if DUP: launches=[launches[0],launches[0],launches[1],launches[1],launches[2],launches[2]]
    if g2_common.FUSED[0]:
        kn=BASE+'_kernel'
        body=g2_common.AsmF(); body.raw('.globl '+kn)
        g2_k1.gen_k1(body,kn); g2_k2.gen_k2(body,kn); g2_k3.gen_k3(body,kn)
        launches=['; @launch grid=(256,1,1) block=(1024,1,1) lds=%d'%g2_k3.K3_LDS]; kds=[kd(kn,128)]
        if not g2_common.EXP.get('nosc1ld'):
            ph=1; out=[]
            for ln in body.L:
                if ln.startswith('K2_entry:'): ph=2
                if ln.startswith('K3_entry:'): ph=3
                t=ln.strip()
                if t.startswith('buffer_load') and ' sc1' not in t:
                    hand = (ph==2 and ('s[20:23]' in t or 's[56:59]' in t)) or (ph==3 and ('s[16:19]' in t or 's[60:63]' in t))
                    if hand:
                        ln = ln.replace(' lds',' sc1 lds') if t.endswith('lds') else ln+' sc1'
                out.append(ln)
            body.L=out
    if g2_common.FUSED[0]:
        hdr+='''; One persistent launch, 256 workgroups (one per CU, all co-resident), three phases separated by flag hand-offs in d_ws:
;                     between the 12 workgroups of a row block through sentinel-cleared granules; z2n = LN(z2) and z1 are stored
; Hand-offs: sc1 stores -> s_waitcnt vmcnt(0) -> barrier -> sc1 flag; consumers poll with sc1 loads (bounded) and load with sc1.
; Flags and granules are cleared by their owners at kernel start and trusted only after all 256 workgroups have counted in d_debug.
'''
    return hdr+'\n'.join(launches)+'\n.amdgcn_target "amdgcn-amd-amdhsa--gfx950"\n.text\n'+body.text()+'.section .rodata,"a"\n'+''.join('.p2align 6\n'+k for k in kds)
if __name__=='__main__':
    opts=sys.argv[2:]
    if 'stamps' in opts: gen_common.STAMPS=True
    if 'light' in opts: gen_common.STAMPS=True; gen_common.LIGHT=True
    if 'fused' in opts: g2_common.FUSED[0]=True
    if 'dup' in opts: DUP=True
    for o in opts:
        if o.startswith('x:'):
            k,_,v=o[2:].partition('='); g2_common.EXP[k]=int(v) if v else 1
    for k in (1,2,3):
        if 'ldnt%d'%k in opts or 'ldnt' in opts: g2_common.LDK[k]=' nt'
    if 'sc1' in opts: g2_common.STF=' sc1'
    if 'nt' in opts: g2_common.STF=' nt'
    if 'sc01' in opts: g2_common.STF=' sc0 sc1'
    assert (not g2_common.FUSED[0]) or 'sc1' in g2_common.STF, 'fused needs sc1 stores'
    open(sys.argv[1],'w').write(build())
```

```python
from g2_common import *
import g2_common as g2
SLG=34816; SLT=28672
K2_LDS=NS*SLG
NK2=16
S_WSP=4; S_WS=6; S_WSRE=8; S_WSIM=10; S_BSP=12; S_WOUT=14
SRD_A=16; SRD_B=20; SRD_O=24; SRD_O2=28; SRD_C=56; SRD_D=60
S_KH=36; S_TB=37

def gen_k2(a,kname):
    kernel_head(a,kname,'K2')
    a('s_load_dwordx4 s[%d:%d], s[0:1], 8'%(S_WSRE,S_WSRE+3))
    a('s_load_dwordx2 s[%d:%d], s[0:1], 56'%(S_WSP,S_WSP+1))
    a('s_load_dwordx2 s[%d:%d], s[0:1], 64'%(S_BSP,S_BSP+1))
    a('s_load_dwordx2 s[%d:%d], s[0:1], 96'%(S_WS,S_WS+1))
    a('s_load_dwordx2 s[%d:%d], s[0:1], 72'%(S_WOUT,S_WOUT+1))
    wave_setup(a,'K2')
    a('s_and_b32 s%d, s2, 7'%S_XCD); a('s_lshr_b32 s%d, s2, 3'%S_J)
    a('s_and_b32 s%d, s%d, 1'%(S_KH,S_XCD))
    a('s_cmp_ge_u32 s%d, 24'%S_J); a('s_cbranch_scc1 K2T_entry')
    a('s_mul_i32 s%d, s%d, 43'%(S_T0,S_J)); a('s_lshr_b32 s%d, s%d, 8'%(S_T0,S_T0))
    a('s_mul_i32 s%d, s%d, 6'%(S_T1,S_T0)); a('s_sub_u32 s%d, s%d, s%d'%(S_CT,S_J,S_T1))
    a('s_lshr_b32 s%d, s%d, 1'%(S_T1,S_XCD)); a('s_lshl_b32 s%d, s%d, 2'%(S_T1,S_T1)); a('s_add_u32 s%d, s%d, s%d'%(S_TB,S_T1,S_T0))
    a('s_cmp_ge_u32 s%d, 8'%S_WAVE); a('s_cbranch_scc1 K2G_prod')
    ACC=16; FA=56; FB=84; WA=[112,113]; ZA=114; Z1L=[2,6,10,116,120]; BB=124
    a('s_and_b32 s%d, s%d, 3'%(S_PW,S_WAVE)); a('s_lshr_b32 s%d, s%d, 2'%(S_H,S_WAVE))
    a('v_and_b32 v6, 15, v0'); a('v_lshrrev_b32 v7, 4, v0'); a('v_and_b32 v8, 7, v0'); a('v_xor_b32 v8, v8, v7'); a('v_lshlrev_b32 v8, 4, v8')
    a('v_lshl_add_u32 v8, v6, 7, v8'); a('s_lshl_b32 s%d, s%d, 12'%(S_T0,S_PW)); a('v_add_u32 v%d, s%d, v8'%(WA[0],S_T0)); a('v_xor_b32 v%d, 64, v%d'%(WA[1],WA[0]))
    a('s_mul_i32 s%d, s%d, 5120'%(S_T0,S_H)); a('s_add_u32 s%d, s%d, 16384'%(S_T0,S_T0)); a('v_lshlrev_b32 v14, 4, v0'); a('v_add_u32 v%d, s%d, v14'%(ZA,S_T0))
    for k in range(40): a('v_mov_b32 v%d, 0'%(ACC+k))
    a('s_mul_i32 s%d, s%d, 6'%(S_T0,S_TB)); a('s_add_u32 s%d, s%d, s%d'%(S_T0,S_T0,S_CT)); a('s_lshl_b32 s%d, s%d, 3'%(S_T0,S_T0))
    a('s_add_u32 s%d, s%d, s%d'%(S_T0,S_T0,S_WAVE)); a('s_mul_i32 s%d, s%d, 5120'%(S_SO,S_T0))
    a('s_lshl_b32 s%d, s%d, 7'%(S_T0,S_TB)); a('s_lshl_b32 s%d, s%d, 5'%(S_T1,S_PW)); a('s_add_u32 s%d, s%d, s%d'%(S_T0,S_T0,S_T1))
    a('v_add_u32 v15, s%d, v6'%S_T0); a('v_lshlrev_b32 v15, 1, v15')
    a('s_waitcnt lgkmcnt(0)')
    add64(a,S_T2,S_WS,WS_Z1); srd(a,SRD_C,S_T2,S_T2+1,96*40960)
    srd(a,SRD_O2,S_BSP,S_BSP+1,4096)
    if EXP.get('stg'):
        for r in range(2,10): a('v_mov_b32 v%d, 0x7fffff00'%r) if r==6 else None
    def pfz_g(tag):
        a('buffer_load_dword v127, v126, s[%d:%d], s%d offen'%(SRD_D,SRD_D+3,S_G))
        l=a.newlab('K2G_pfz')
        a('s_cmp_eq_u32 s%d, 7'%S_WAVE); a('s_cbranch_scc0 %s'%l); a('buffer_load_dword v127, v1, s[%d:%d], s%d offen'%(SRD_D,SRD_D+3,S_G)); a.lab(l)
    if EXP.get('pfz'):
        a('s_mul_i32 s%d, s%d, %d'%(S_T2,S_CT,Z2_CT)); a('s_mul_i32 s%d, s%d, %d'%(S_T3,S_KH,16*18432)); a('s_add_u32 s%d, s%d, s%d'%(S_T1,S_T2,S_T3))
        add64(a,S_T2,S_WS,'s%d'%S_T1); srd(a,SRD_D,S_T2,S_T2+1,16*18432)
        a('s_and_b32 s%d, s%d, 3'%(S_G,S_TB)); a('s_mul_i32 s%d, s%d, %d'%(S_G,S_G,36*128))
        for rep_,dst in ((0,126),(1,1)):
            a('s_lshl_b32 s%d, s%d, 6'%(S_T0,S_WAVE))
            if rep_==1: a('s_mov_b32 s%d, 512'%S_T0)
            a('v_add_u32 v9, s%d, v0'%S_T0); a('v_mul_u32_u24 v10, 1821, v9'); a('v_lshrrev_b32 v10, 16, v10')
            a('v_mul_u32_u24 v11, 36, v10'); a('v_sub_u32 v11, v9, v11'); a('v_mul_u32_u24 v10, 18432, v10'); a('v_lshl_add_u32 v%d, v11, 7, v10'%dst)
    def acc(i,j): return ACC+(j*2+i)*4
    a('s_cmp_eq_u32 s%d, 0'%S_H); a('s_cbranch_scc0 K2Gc_1')
    for h in range(2):
        nj=5-h; nm='K2Gc_%d'%h
        a.lab(nm)
        def hk(nj=nj):
            for j in range(min(nj,4)): a('buffer_load_dwordx4 %s, v14, s[%d:%d], s%d offen offset:%d'%(vr(Z1L[j],4),SRD_C,SRD_C+3,S_SO,j*1024))
            if nj==5:
                a('s_add_u32 s%d, s%d, 4096'%(S_SO,S_SO)); a('buffer_load_dwordx4 %s, v14, s[%d:%d], s%d offen'%(vr(Z1L[4],4),SRD_C,SRD_C+3,S_SO))
            a('buffer_load_ushort v%d, v15, s[%d:%d], 0 offen'%(BB,SRD_O2,SRD_O2+3)); a('buffer_load_ushort v%d, v15, s[%d:%d], 0 offen offset:32'%(BB+1,SRD_O2,SRD_O2+3))
        def rd(st,sub,nj=nj):
            F=FA if st==0 else FB; m=[]
            for i in range(2): m.append('ds_read_b128 %s, v%d offset:%d'%(vr(F+i*4,4),WA[sub],i*2048))
            for j in range(nj): m.append('ds_read_b128 %s, v%d offset:%d'%(vr(F+8+j*4,4),ZA,sub*9216+j*1024))
            return m
        def mf(st,nj=nj):
            F=FA if st==0 else FB; m=[]
            for j in range(nj):
                for i in range(2):
                    c=vr(acc(i,j),4); m.append('v_mfma_f32_16x16x32_bf16 %s, %s, %s, %s'%(c,vr(F+8+j*4,4),vr(F+i*4,4),c))
            return m
        if g2.FUSED[0] and EXP.get('stg'):
            def pk(grp,part,h=h):
                def f():
                    l=a.newlab('K2G_sp'); a('s_cmp_eq_u32 s%d, 4'%S_WAVE); a('s_cbranch_scc0 %s'%l)
                    poll_rbs(a,a.newlab('K2G_spp'),S_WS,S_CT,S_KH,S_TB,grp,R=2,part=part); a.lab(l)
                return f
            HK={11:hk}
            if h==1: HK.update({3:pk(2,'issue'),5:pk(2,'check'),7:pk(3,'issue'),9:pk(3,'check')})
            consumer_loop(a,nm+'L',SLG,NK2,WA+[ZA],rd,mf,hook=HK,lag=(h==0),phase=2)
        else:
          consumer_loop(a,nm+'L',SLG,NK2,WA+[ZA],rd,mf,hook=({EXP.get('z1at',9):hk,EXP.get('pfzat',1):(lambda h=h:pfz_g('%d'%h))} if EXP.get('pfz') else hk),hook_at=EXP.get('z1at',9),lag=(h==0),phase=2)
        a('s_barrier')
        a('s_waitcnt vmcnt(0)')
        a('s_cmp_eq_u32 s%d, 0'%S_KH); a('s_cselect_b32 s%d, 1.0, 0'%S_T0)
        a('v_lshlrev_b32 v%d, 16, v%d'%(BB,BB)); a('v_lshlrev_b32 v%d, 16, v%d'%(BB+1,BB+1))
        a('v_mul_f32 v%d, s%d, v%d'%(BB,S_T0,BB)); a('v_mul_f32 v%d, s%d, v%d'%(BB+1,S_T0,BB+1))
        a('s_mul_i32 s%d, s%d, %d'%(S_T0,S_KH,H_VER)); add64(a,S_T2,S_WS,WS_H); add64(a,S_T2,S_T2,'s%d'%S_T0); srd(a,SRD_O,S_T2,S_T2+1,H_VER)
        a('s_lshl_b32 s%d, s%d, 3'%(S_T0,S_TB)); a('s_lshl_b32 s%d, s%d, 1'%(S_T1,S_PW)); a('s_add_u32 s%d, s%d, s%d'%(S_T0,S_T0,S_T1)); a('s_mul_i32 s%d, s%d, 27648'%(S_T0,S_T0))
        a('s_mul_i32 s%d, s%d, 9'%(S_T1,S_CT)); a('s_add_u32 s%d, s%d, %d'%(S_T1,S_T1,5*h)); a('s_lshl_b32 s%d, s%d, 9'%(S_T1,S_T1))
        a('s_add_u32 s%d, s%d, s%d'%(S_SO,S_T0,S_T1)); a('s_add_u32 s%d, s%d, 27648'%(S_SO2,S_SO))
        a('v_lshlrev_b32 v14, 3, v0')
        TZ=[56,58,60,62]; PK=64
        for j in range(nj):
            prs=[(i,p) for i in range(2) for p in range(2)]
            for k,(i,p) in enumerate(prs):
                z=Z1L[j]+2*i+p
                a('v_lshlrev_b32 v%d, 16, v%d'%(TZ[k],z)); a('v_and_b32 v%d, 0xffff0000, v%d'%(TZ[k]+1,z))
            for k,(i,p) in enumerate(prs):
                r=acc(i,j)+2*p; a('v_pk_add_f32 %s, %s, %s op_sel:[0,%d] op_sel_hi:[1,%d]'%(vr(r,2),vr(r,2),vr(BB,2),i,i))
            for k,(i,p) in enumerate(prs):
                r=acc(i,j)+2*p; a('v_pk_mul_f32 %s, %s, %s'%(vr(r,2),vr(r,2),vr(TZ[k],2)))
            o=PK+4*(j&1)
            for k,(i,p) in enumerate(prs):
                r=acc(i,j)+2*p; a('v_cvt_pk_bf16_f32 v%d, v%d, v%d'%(o+k,r,r+1))
            a('buffer_store_dwordx2 %s, v14, s[%d:%d], s%d offen offset:%d%s'%(vr(o,2),SRD_O,SRD_O+3,S_SO,j*512,g2.STF))
            a('buffer_store_dwordx2 %s, v14, s[%d:%d], s%d offen offset:%d%s'%(vr(o+2,2),SRD_O,SRD_O+3,S_SO2,j*512,g2.STF))
        a('s_branch K2_end')
    a.lab('K2G_prod')
    WO=2; ZO=3; S_ZO=S_PAR
    if EXP.get('same'): a('s_mov_b32 s%d, 0'%S_TB); a('s_mov_b32 s%d, 0'%S_CT); a('s_mov_b32 s%d, 0'%S_KH)
    a('s_sub_u32 s%d, s%d, 8'%(S_PW,S_WAVE))
    a('v_lshrrev_b32 v20, 3, v0'); a('v_and_b32 v22, 7, v0'); a('v_xor_b32 v22, v22, v20'); a('v_lshlrev_b32 v22, 4, v22')
    a('s_lshl_b32 s%d, s%d, 4'%(S_T0,S_PW)); a('v_add_u32 v21, s%d, v20'%S_T0); a('v_lshlrev_b32 v21, 12, v21'); a('v_add_u32 v%d, v21, v22'%WO)
    a('s_mul_i32 s%d, s%d, 3'%(S_T0,S_PW)); a('s_lshl_b32 s%d, s%d, 1'%(S_T1,S_PW)); a('s_add_u32 s%d, s%d, 2'%(S_T1,S_T1))
    a('s_cmp_lt_u32 s%d, 2'%S_PW); a('s_cselect_b32 s%d, s%d, s%d'%(S_ZO,S_T0,S_T1)); a('s_lshl_b32 s%d, s%d, 10'%(S_ZO,S_ZO))
    a('v_lshlrev_b32 v20, 4, v0'); a('v_add_u32 v%d, s%d, v20'%(ZO,S_ZO))
    a('s_mov_b32 s%d, 0'%S_SLI)
    a('s_mul_i32 s%d, s%d, %d'%(S_T0,S_CT,EXP.get('ra',0))); a('s_and_b32 s%d, s%d, 3'%(S_T1,S_TB)); a('s_mul_i32 s%d, s%d, %d'%(S_T1,S_T1,EXP.get('rb',0)))
    a('s_add_u32 s%d, s%d, s%d'%(S_T0,S_T0,S_T1)); a('s_and_b32 s%d, s%d, 15'%(S_T0,S_T0)); a('s_lshl_b32 s%d, s%d, 7'%(S_KX,S_T0)); a('s_mul_i32 s%d, s%d, 18432'%(S_KW,S_T0))
    a('s_mul_i32 s%d, s%d, %d'%(S_T0,S_TB,128*4096)); a('s_lshl_b32 s%d, s%d, 11'%(S_T1,S_KH)); a('s_add_u32 s%d, s%d, s%d'%(S_T0,S_T0,S_T1))
    a('s_sub_u32 s%d, %d, s%d'%(S_T1,128*4096,S_T1))
    a('s_mul_i32 s%d, s%d, %d'%(S_T2,S_CT,Z2_CT)); a('s_mul_i32 s%d, s%d, %d'%(S_T3,S_KH,16*18432)); a('s_add_u32 s%d, s%d, s%d'%(S_SO2,S_T2,S_T3))
    a('s_waitcnt lgkmcnt(0)')
    add64(a,S_WSP,S_WSP,'s%d'%S_T0); srd(a,SRD_A,S_WSP,S_WSP+1,'s%d'%S_T1)
    add64(a,S_T2,S_WS,'s%d'%S_SO2); srd(a,SRD_B,S_T2,S_T2+1,16*18432)
    def issue():
        a('s_lshl_b32 s%d, s%d, 11'%(S_T,S_PW)); a('s_add_u32 s%d, s%d, s%d'%(S_T,S_T,S_SLI))
        for j in range(2):
            a('s_add_u32 m0, s%d, %d'%(S_T,j*1024)); a('s_add_u32 s%d, s%d, %d'%(S_SO,S_KX,j*32768))
            a(ld('buffer_load_dwordx4 v%d, s[%d:%d], s%d offen lds'%(WO,SRD_A,SRD_A+3,S_SO)))
        a('s_add_u32 s%d, s%d, s%d'%(S_T,S_SLI,S_ZO)); a('s_add_u32 m0, s%d, 16384'%S_T); a('s_nop 0')
        for j in range(2): a('buffer_load_dwordx4 v%d, s[%d:%d], s%d offen offset:%d lds'%(ZO,SRD_B,SRD_B+3,S_KW,j*1024))
        lab=a.newlab('K2Gp_t')
        a('s_cmp_lt_u32 s%d, 2'%S_PW); a('s_cbranch_scc0 %s'%lab)
        a('buffer_load_dwordx4 v%d, s[%d:%d], s%d offen offset:2048 lds'%(ZO,SRD_B,SRD_B+3,S_KW))
        a.lab(lab)
        slot_advance(a,S_SLI,SLG); a('s_add_u32 s%d, s%d, 128'%(S_KX,S_KX)); a('s_add_u32 s%d, s%d, 18432'%(S_KW,S_KW))
        a('s_cmp_eq_u32 s%d, 2048'%S_KX); a('s_cselect_b32 s%d, 0, s%d'%(S_KX,S_KX)); a('s_cselect_b32 s%d, 0, s%d'%(S_KW,S_KW))
    if g2.FUSED[0] and EXP.get('stg'):
        c=4
        def setk(k0,k1):
            a('s_cmp_eq_u32 s%d, 0'%S_KH); a('s_cselect_b32 s%d, %d, %d'%(S_T0,k0,k1)); a('s_lshl_b32 s%d, s%d, 7'%(S_KX,S_T0)); a('s_mul_i32 s%d, s%d, 18432'%(S_KW,S_T0))
        def poll(grp):
            l='K2Gp_g%d'%grp; a('s_cmp_eq_u32 s%d, 8'%S_WAVE); a('s_cbranch_scc0 %s'%l); poll_rbs(a,l+'p',S_WS,S_CT,S_KH,S_TB,grp); a.lab(l)
        setk(0,8)
        def issue_w(slot):
            a('s_lshl_b32 s%d, s%d, 11'%(S_T,S_PW)); a('s_add_u32 s%d, s%d, %d'%(S_T,S_T,slot*SLG))
            for j in range(2):
                a('s_add_u32 m0, s%d, %d'%(S_T,j*1024)); a('s_add_u32 s%d, s%d, %d'%(S_SO,S_KX,j*32768))
                a(ld('buffer_load_dwordx4 v%d, s[%d:%d], s%d offen lds'%(WO,SRD_A,SRD_A+3,S_SO)))
            a('s_add_u32 s%d, s%d, 128'%(S_KX,S_KX))
        def issue_z(slot):
            a('s_add_u32 m0, s%d, %d'%(S_ZO,slot*SLG+16384)); a('s_cmp_lt_u32 s%d, 2'%S_PW)
            for j in range(2): a('buffer_load_dwordx4 v%d, s[%d:%d], s%d offen offset:%d lds'%(ZO,SRD_B,SRD_B+3,S_KW,j*1024))
            lab=a.newlab('K2Gp_z'); a('s_cbranch_scc0 %s'%lab)
            a('buffer_load_dwordx4 v%d, s[%d:%d], s%d offen offset:2048 lds'%(ZO,SRD_B,SRD_B+3,S_KW)); a.lab(lab)
            a('s_add_u32 s%d, s%d, 18432'%(S_KW,S_KW))
        W=[2*c]*4
        if EXP.get('prew'):
            for st in range(4): issue_w(st)
            poll(1); a('s_barrier')
            gc.stamp(a,1)
            issue_z(0); issue_z(1)
            gc.stamp(a,2)
            a('s_waitcnt vmcnt(2)'); gc.stamp(a,3); a('s_barrier')
            issue_z(2); issue_z(3)
            W=[4,6,8,8]
        else:
            poll(1); a('s_barrier')
            gc.stamp(a,1)
            issue(); issue()
            gc.stamp(a,2)
            a('s_waitcnt vmcnt(%d)'%c); gc.stamp(a,3); a('s_barrier')
            issue(); issue()
        def seg(i0,i1,nm,first_poll=None,k=None):
            for i in range(i0,i1):
                if i==i0 and first_poll:
                    a('s_waitcnt vmcnt(%d)'%(2*c)); a('s_barrier'); setk(*k); issue()
                else:
                    a('s_waitcnt vmcnt(%d)'%(W[i-1] if i<=4 else 2*c)); a('s_barrier'); issue()
        seg(1,5,'a'); seg(5,9,'b',2,(12,0)); seg(9,13,'c',3,(8,4))
        for r in (2,1,0):
            a('s_waitcnt vmcnt(%d)'%(r*c)); a('s_barrier')
        gc.stamp(a,4)
        a('s_barrier')
    else:
        dma_producer(a,'K2Gp',NK2,4,issue,phase=2,s_ws=S_WS,post=1)
    a('s_branch K2_end')

    a.lab('K2T_entry')
    a('s_sub_u32 s%d, s%d, 24'%(S_T0,S_J)); a('s_and_b32 s%d, s%d, 3'%(S_CT,S_T0)); a('s_lshr_b32 s%d, s%d, 2'%(S_T0,S_T0))
    a('s_lshr_b32 s%d, s%d, 1'%(S_T1,S_XCD)); a('s_lshl_b32 s%d, s%d, 1'%(S_T1,S_T1)); a('s_add_u32 s%d, s%d, s%d'%(S_TB,S_T1,S_T0))
    a('s_cmp_ge_u32 s%d, 8'%S_WAVE); a('s_cbranch_scc1 K2T_prod')
    a('s_and_b32 s%d, s%d, 3'%(S_PW,S_WAVE)); a('s_lshr_b32 s%d, s%d, 2'%(S_H,S_WAVE))
    a('s_cmp_eq_u32 s%d, 3'%S_PW); a('s_cbranch_scc1 K2T_xpf')
    ACC=16; FA=56; FB=80; WA=[112,113]; AA=114; A1=116
    a('v_lshrrev_b32 v7, 4, v0'); a('v_lshlrev_b32 v5, 4, v7')
    a('v_and_b32 v6, 15, v0'); a('v_and_b32 v8, 7, v0'); a('v_xor_b32 v8, v8, v7'); a('v_lshlrev_b32 v8, 4, v8'); a('v_lshl_add_u32 v8, v6, 7, v8')
    a('s_mul_i32 s%d, s%d, %d'%(S_T0,S_PW,48*128)); a('v_add_u32 v%d, s%d, v8'%(WA[0],S_T0)); a('v_xor_b32 v%d, 64, v%d'%(WA[1],WA[0]))
    a('s_mul_i32 s%d, s%d, 3072'%(S_T0,S_H)); a('s_add_u32 s%d, s%d, 18432'%(S_T0,S_T0)); a('v_lshlrev_b32 v9, 4, v0'); a('v_add_u32 v%d, s%d, v9'%(AA,S_T0))
    for k in range(36): a('v_mov_b32 v%d, 0'%(ACC+k))
    a('s_mul_i32 s%d, s%d, 320'%(S_T0,S_CT)); a('s_mul_i32 s%d, s%d, 192'%(S_T1,S_H)); a('s_add_u32 s%d, s%d, s%d'%(S_SO,S_T0,S_T1))
    a('s_waitcnt lgkmcnt(0)')
    add64(a,S_T2,S_WS,WS_A1024); srd(a,SRD_C,S_T2,S_T2+1,1280)
    def pfz_t(tag):
        a('buffer_load_dword v2, v10, s[%d:%d], s%d offen'%(SRD_D,SRD_D+3,S_G))
        l=a.newlab('K2T_pfz')
        a('s_cmp_lt_u32 s%d, 4'%S_PAR); a('s_cbranch_scc0 %s'%l); a('buffer_load_dword v2, v11, s[%d:%d], s%d offen'%(SRD_D,SRD_D+3,S_G)); a.lab(l)
    if EXP.get('pfz'):
        a('s_mul_i32 s%d, s%d, %d'%(S_T0,S_KH,AE_MAT)); a('s_mul_i32 s%d, s%d, 163840'%(S_T1,S_CT)); a('s_add_u32 s%d, s%d, s%d'%(S_T1,S_T0,S_T1))
        add64(a,S_T2,S_WS,WS_AE); add64(a,S_T2,S_T2,'s%d'%S_T1); srd(a,SRD_D,S_T2,S_T2+1,163840)
        a('s_and_b32 s%d, s%d, 1'%(S_G,S_TB)); a('s_mul_i32 s%d, s%d, %d'%(S_G,S_G,40*128))
        a('s_mul_i32 s%d, s%d, 3'%(S_PAR,S_H)); a('s_add_u32 s%d, s%d, s%d'%(S_PAR,S_PAR,S_PW))
        for rep_,dst in ((0,10),(1,11)):
            a('s_add_u32 s%d, s%d, %d'%(S_T0,S_PAR,6*rep_)); a('s_lshl_b32 s%d, s%d, 6'%(S_T0,S_T0))
            a('v_add_u32 v1, s%d, v0'%S_T0); a('v_mul_u32_u24 v12, 1639, v1'); a('v_lshrrev_b32 v12, 16, v12')
            a('v_mul_u32_u24 v13, 40, v12'); a('v_sub_u32 v13, v1, v13'); a('v_mul_u32_u24 v12, 10240, v12'); a('v_lshl_add_u32 v%d, v13, 7, v12'%dst)
    def accT(i,j): return ACC+(j*3+i)*4
    a('s_cmp_eq_u32 s%d, 0'%S_H); a('s_cbranch_scc0 K2Tc_1')
    for h in range(2):
        nj=3-h; nm='K2Tc_%d'%h
        a.lab(nm)
        def hkT(nj=nj):
            for j in range(nj): a('buffer_load_dwordx4 %s, v5, s[%d:%d], s%d offen offset:%d'%(vr(A1+4*j,4),SRD_C,SRD_C+3,S_SO,j*64))
        def rdT(st,sub,nj=nj):
            F=FA if st==0 else FB; m=[]
            for i in range(3): m.append('ds_read_b128 %s, v%d offset:%d'%(vr(F+i*4,4),WA[sub],i*2048))
            for j in range(nj): m.append('ds_read_b128 %s, v%d offset:%d'%(vr(F+12+j*4,4),AA,sub*5120+j*1024))
            return m
        def mfT(st,nj=nj):
            F=FA if st==0 else FB; m=[]
            for j in range(nj):
                for i in range(3):
                    c=vr(accT(i,j),4); m.append('v_mfma_f32_16x16x32_bf16 %s, %s, %s, %s'%(c,vr(F+12+j*4,4),vr(F+i*4,4),c))
            return m
        consumer_loop(a,nm+'L',SLT,NK2,WA+[AA],rdT,mfT,hook=({4:hkT,EXP.get('pfzat',1):(lambda h=h:pfz_t('%d'%h))} if EXP.get('pfz') else hkT),hook_at=4,lag=(h==0),phase=2)
        a('s_barrier')
        a('s_waitcnt vmcnt(0)')
        a('s_cmp_eq_u32 s%d, 0'%S_KH); a('s_cselect_b32 s%d, 1.0, 0'%S_T0)
        a('v_and_b32 v5, 1, v0'); a('v_lshlrev_b32 v5, 31, v5'); a('v_xor_b32 v5, s%d, v5'%S_T0)
        a('s_mul_i32 s%d, s%d, %d'%(S_T0,S_KH,PQ_MAT)); add64(a,S_T2,S_WS,WS_PQ); add64(a,S_T2,S_T2,'s%d'%S_T0); srd(a,SRD_O,S_T2,S_T2+1,PQ_MAT)
        a('s_mul_i32 s%d, s%d, 144'%(S_T0,S_TB)); a('s_mul_i32 s%d, s%d, 48'%(S_T1,S_PW)); a('s_add_u32 s%d, s%d, s%d'%(S_T0,S_T0,S_T1)); a('s_mul_i32 s%d, s%d, 1280'%(S_T0,S_T0))
        a('s_mul_i32 s%d, s%d, 320'%(S_T1,S_CT)); a('s_add_u32 s%d, s%d, s%d'%(S_T0,S_T0,S_T1)); a('s_add_u32 s%d, s%d, %d'%(S_SO,S_T0,192*h))
        a('v_mul_u32_u24 v6, 1280, v6'); a('v_lshl_add_u32 v6, v7, 4, v6')
        if EXP.get('nopA'):
            for _ in range(EXP['nopA']): a('s_nop 15')
        for j in range(nj):
            for i in range(3):
                r=accT(i,j)
                if EXP.get('plain'):
                    for p in range(4): a('v_fma_f32 v%d, v%d, v5, v%d'%(r+p,A1+4*j+p,r+p))
                else:
                    for p in range(2): a('v_pk_fma_f32 %s, %s, %s, %s op_sel:[0,1,0] op_sel_hi:[1,1,1]'%(vr(r+2*p,2),vr(A1+4*j+2*p,2),vr(4,2),vr(r+2*p,2)))
            if EXP.get('nopB'): a('s_nop 7')
            for i in range(3):
                a('s_add_u32 s%d, s%d, %d'%(S_SO2,S_SO,i*16*1280))
                a('buffer_store_dwordx4 %s, v6, s[%d:%d], s%d offen offset:%d%s'%(vr(accT(i,j),4),SRD_O,SRD_O+3,S_SO2,j*64,g2.STF))
        a('s_branch K2_end')
    a.lab('K2T_xpf')
    if g2.FUSED[0]:
        if EXP.get('t2pf'):
            a('s_waitcnt lgkmcnt(0)')
            a('s_cmp_eq_u32 s%d, 0'%S_H); a('s_cbranch_scc0 K2T_xpf7')
            a('s_lshr_b32 s%d, s%d, 1'%(S_T0,S_XCD)); a('s_lshl_b32 s%d, s%d, 9'%(S_T0,S_T0)); a('s_sub_u32 s%d, s%d, 24'%(S_T1,S_J)); a('s_lshl_b32 s%d, s%d, 6'%(S_T1,S_T1))
            a('s_add_u32 s%d, s%d, s%d'%(S_T0,S_T0,S_T1)); a('v_add_u32 v1, s%d, v0'%S_T0); a('v_lshlrev_b32 v1, 12, v1')
            a('s_lshl_b32 s%d, s%d, 11'%(S_SO,S_KH))
            srd(a,SRD_D,S_WSP,S_WSP+1,2048*4096)
            lead=EXP.get('t2lead',2)
            for k in range(lead):
                a('buffer_load_dword v2, v1, s[%d:%d], s%d offen'%(SRD_D,SRD_D+3,S_SO)); a('s_add_u32 s%d, s%d, 128'%(S_SO,S_SO))
            a('s_barrier')
            for i in range(NK2):
                a('s_barrier')
                if i+lead<NK2:
                    a('buffer_load_dword v2, v1, s[%d:%d], s%d offen'%(SRD_D,SRD_D+3,S_SO)); a('s_add_u32 s%d, s%d, 128'%(S_SO,S_SO))
            a('s_barrier')
            a('s_branch K2_end')
            a.lab('K2T_xpf7')
            a('s_sub_u32 s%d, s%d, 24'%(S_T1,S_J)); a('s_lshl_b32 s%d, s%d, 3'%(S_T1,S_T1)); a('s_add_u32 s%d, s%d, s%d'%(S_T1,S_T1,S_XCD)); a('s_mul_i32 s%d, s%d, %d'%(S_SO,S_T1,135*128))
            a('v_lshlrev_b32 v1, 7, v0')
            srd(a,SRD_D,S_WOUT,S_WOUT+1,864*1280)
            a('s_barrier')
            for i in range(NK2):
                a('s_barrier')
                if 8<=i<11:
                    a('s_mov_b32 exec_hi, 0x1fff'); a('buffer_load_dword v2, v1, s[%d:%d], s%d offen'%(SRD_D,SRD_D+3,S_SO)); a('s_mov_b32 exec_hi, -1'); a('s_add_u32 s%d, s%d, %d'%(S_SO,S_SO,45*128))
            a('s_barrier')
            a('s_branch K2_end')
        else:
            for _ in range(NK2+2): a('s_barrier')
            a('s_branch K2_end')
    else:
        if EXP.get('noxpf') or EXP.get('noxpf2'): a('s_endpgm')
        a('s_sub_u32 s%d, s%d, 24'%(S_T0,S_J)); a('s_lshl_b32 s%d, s%d, 1'%(S_T0,S_T0)); a('s_add_u32 s%d, s%d, s%d'%(S_T0,S_T0,S_H)); a('s_mul_i32 s%d, s%d, %d'%(S_SO,S_T0,540*128))
        a('v_lshlrev_b32 v1, 7, v0')
        a('s_waitcnt lgkmcnt(0)')
        srd(a,SRD_D,S_WOUT,S_WOUT+1,864*1280)
        st0=EXP.get('wpfat',13)
        for i in range(NK2):
            a('s_barrier')
            if i==st0:
                for k in range(9):
                    if k==8: a('s_mov_b32 exec_hi, 0'); a('s_mov_b32 exec_lo, 0xfffffff')
                    a('buffer_load_dword v2, v1, s[%d:%d], s%d offen'%(SRD_D,SRD_D+3,S_SO)); a('s_add_u32 s%d, s%d, 8192'%(S_SO,S_SO))
        a('s_barrier')
        a('s_endpgm')
    a.lab('K2T_prod')
    WO=2; AO=3; S_U0=S_PAR
    if EXP.get('same'): a('s_mov_b32 s%d, 0'%S_TB); a('s_mov_b32 s%d, 0'%S_CT); a('s_mov_b32 s%d, 0'%S_KH)
    a('s_sub_u32 s%d, s%d, 8'%(S_PW,S_WAVE))
    a('v_lshrrev_b32 v20, 3, v0'); a('v_and_b32 v22, 7, v0'); a('v_xor_b32 v22, v22, v20'); a('v_lshlrev_b32 v22, 4, v22'); a('v_lshl_add_u32 v%d, v20, 12, v22'%WO)
    a('s_lshl_b32 s%d, s%d, 1'%(S_T0,S_PW)); a('s_sub_u32 s%d, s%d, 2'%(S_T0,S_T0)); a('s_add_u32 s%d, s%d, 2'%(S_T1,S_PW))
    a('s_cmp_lt_u32 s%d, 4'%S_PW); a('s_cselect_b32 s%d, s%d, s%d'%(S_U0,S_T0,S_T1)); a('s_cmp_lt_u32 s%d, 2'%S_PW); a('s_cselect_b32 s%d, s%d, s%d'%(S_U0,S_PW,S_U0)); a('s_lshl_b32 s%d, s%d, 10'%(S_U0,S_U0))
    a('v_lshlrev_b32 v20, 4, v0'); a('v_add_u32 v%d, s%d, v20'%(AO,S_U0))
    a('s_mov_b32 s%d, 0'%S_SLI)
    a('s_mul_i32 s%d, s%d, %d'%(S_T0,S_CT,EXP.get('rta',0))); a('s_and_b32 s%d, s%d, 1'%(S_T1,S_TB)); a('s_mul_i32 s%d, s%d, %d'%(S_T1,S_T1,EXP.get('rtb',0)))
    a('s_add_u32 s%d, s%d, s%d'%(S_T0,S_T0,S_T1)); a('s_and_b32 s%d, s%d, 15'%(S_T0,S_T0)); a('s_lshl_b32 s%d, s%d, 7'%(S_KX,S_T0)); a('s_mul_i32 s%d, s%d, 10240'%(S_KW,S_T0))
    a('s_mul_i32 s%d, s%d, %d'%(S_T0,S_KH,AE_MAT)); a('s_mul_i32 s%d, s%d, 163840'%(S_T1,S_CT)); a('s_add_u32 s%d, s%d, s%d'%(S_SO2,S_T0,S_T1))
    a('s_mul_i32 s%d, s%d, %d'%(S_T0,S_TB,144*4096))
    a('s_waitcnt lgkmcnt(0)')
    a('s_cmp_eq_u32 s%d, 0'%S_KH); a('s_cselect_b32 s%d, s%d, s%d'%(S_T2,S_WSRE,S_WSIM)); a('s_cselect_b32 s%d, s%d, s%d'%(S_T3,S_WSRE+1,S_WSIM+1))
    add64(a,S_T2,S_T2,'s%d'%S_T0); srd(a,SRD_A,S_T2,S_T2+1,144*4096)
    add64(a,S_T2,S_WS,WS_AE); add64(a,S_T2,S_T2,'s%d'%S_SO2); srd(a,SRD_B,S_T2,S_T2+1,163840)
    def issueT():
        a('s_lshl_b32 s%d, s%d, 10'%(S_T,S_PW)); a('s_add_u32 s%d, s%d, s%d'%(S_T,S_T,S_SLI))
        a('s_lshl_b32 s%d, s%d, 15'%(S_T0,S_PW)); a('s_add_u32 s%d, s%d, s%d'%(S_T0,S_T0,S_KX))
        for i in range(2):
            a('s_add_u32 m0, s%d, %d'%(S_T,i*8192)); a('s_add_u32 s%d, s%d, %d'%(S_SO,S_T0,i*8*32768))
            a(('buffer_load_dwordx4 v%d, s[%d:%d], s%d offen lds'%(WO,SRD_A,SRD_A+3,S_SO)).replace(' lds',(' nt' if EXP.get('t2nt') else LDK[2])+' lds'))
        a('s_add_u32 s%d, s%d, s%d'%(S_T1,S_SLI,S_U0)); a('s_add_u32 m0, s%d, 18432'%S_T1); a('s_nop 0')
        a('buffer_load_dwordx4 v%d, s[%d:%d], s%d offen lds'%(AO,SRD_B,SRD_B+3,S_KW))
        l1=a.newlab('K2Tp_a'); l2=a.newlab('K2Tp_b')
        a('s_cmp_lt_u32 s%d, 2'%S_PW); a('s_cbranch_scc1 %s'%l1)
        a('s_cmp_lt_u32 s%d, 4'%S_PW); a('s_cbranch_scc0 %s'%l2)
        a('buffer_load_dwordx4 v%d, s[%d:%d], s%d offen offset:1024 lds'%(AO,SRD_B,SRD_B+3,S_KW)); a('s_branch %s'%l2)
        a.lab(l1)
        a('s_add_u32 m0, s%d, %d'%(S_T,2*8192)); a('s_add_u32 s%d, s%d, %d'%(S_SO,S_T0,2*8*32768))
        a(('buffer_load_dwordx4 v%d, s[%d:%d], s%d offen lds'%(WO,SRD_A,SRD_A+3,S_SO)).replace(' lds',(' nt' if EXP.get('t2nt') else LDK[2])+' lds'))
        a.lab(l2)
        slot_advance(a,S_SLI,SLT); a('s_add_u32 s%d, s%d, 128'%(S_KX,S_KX)); a('s_add_u32 s%d, s%d, 10240'%(S_KW,S_KW))
        a('s_cmp_eq_u32 s%d, 2048'%S_KX); a('s_cselect_b32 s%d, 0, s%d'%(S_KX,S_KX)); a('s_cselect_b32 s%d, 0, s%d'%(S_KW,S_KW))
    if g2.FUSED[0] and EXP.get('prewt'):
        c=3; n=NK2
        t2f=(' nt' if EXP.get('t2nt') else LDK[2])
        def issue_ws(slot):
            a('s_lshl_b32 s%d, s%d, 10'%(S_T,S_PW)); a('s_add_u32 s%d, s%d, %d'%(S_T,S_T,slot*SLT))
            a('s_lshl_b32 s%d, s%d, 15'%(S_T0,S_PW)); a('s_add_u32 s%d, s%d, s%d'%(S_T0,S_T0,S_KX))
            lab=a.newlab('K2Tp_w')
            for i in range(3):
                if i==2: a('s_cmp_lt_u32 s%d, 2'%S_PW); a('s_cbranch_scc0 %s'%lab)
                a('s_add_u32 m0, s%d, %d'%(S_T,i*8192)); a('s_add_u32 s%d, s%d, %d'%(S_SO,S_T0,i*8*32768))
                a('buffer_load_dwordx4 v%d, s[%d:%d], s%d offen%s lds'%(WO,SRD_A,SRD_A+3,S_SO,t2f))
            a.lab(lab)
            a('s_add_u32 s%d, s%d, 128'%(S_KX,S_KX))
        def issue_ae(slot):
            a('s_add_u32 m0, s%d, %d'%(S_U0,slot*SLT+18432)); a('s_nop 0')
            a('buffer_load_dwordx4 v%d, s[%d:%d], s%d offen lds'%(AO,SRD_B,SRD_B+3,S_KW))
            lab=a.newlab('K2Tp_e'); a('s_cmp_lt_u32 s%d, 2'%S_PW); a('s_cbranch_scc1 %s'%lab); a('s_cmp_lt_u32 s%d, 4'%S_PW); a('s_cbranch_scc0 %s'%lab)
            a('buffer_load_dwordx4 v%d, s[%d:%d], s%d offen offset:1024 lds'%(AO,SRD_B,SRD_B+3,S_KW)); a.lab(lab)
            a('s_add_u32 s%d, s%d, 10240'%(S_KW,S_KW))
        for st in range(4): issue_ws(st)
        dep_barrier(a,'K2Tp',2,S_WS,poller=True)
        gc.stamp(a,1)
        issue_ae(0); issue_ae(1)
        gc.stamp(a,2)
        a('s_waitcnt vmcnt(1)'); gc.stamp(a,3); a('s_barrier')
        issue_ae(2); issue_ae(3)
        for wv in (2,4,6):
            a('s_waitcnt vmcnt(%d)'%wv); a('s_barrier'); issueT()
        a('s_mov_b32 s%d, %d'%(S_I,n-4-3)); a.lab('K2Tp_loop')
        a('s_waitcnt vmcnt(%d)'%(2*c)); a('s_barrier'); issueT()
        a('s_sub_u32 s%d, s%d, 1'%(S_I,S_I)); a('s_cmp_lg_u32 s%d, 0'%S_I); a('s_cbranch_scc1 K2Tp_loop')
        for r in (2,1,0):
            a('s_waitcnt vmcnt(%d)'%(r*c)); a('s_barrier')
        gc.stamp(a,4)
        a('s_barrier')
    else:
        dma_producer(a,'K2Tp',NK2,3,issueT,phase=2,s_ws=S_WS,post=1)
    a('s_branch K2_end')
    kernel_tail(a,'K2',1,S_WS)
```

```python
from g2_common import *
import g2_common as g2
SL3=39936
K3_LDS=NS*SL3
NK3=9
S_X=4; S_WS=6; S_WOUT=8; S_OUT=10
SRD_A=16; SRD_B=20; SRD_O=24; SRD_C=56; SRD_D=60
S_TB=37; S_DT=38
AREA_P=1*SL3; AREA_X=1*SL3+20480; AREA_DUM=1*SL3+32768; AREA_Q=2*SL3

def gen_k3(a,kname):
    kernel_head(a,kname,'K3')
    a('s_load_dwordx2 s[%d:%d], s[0:1], 0'%(S_X,S_X+1))
    a('s_load_dwordx4 s[%d:%d], s[0:1], 72'%(S_WOUT,S_WOUT+3))
    a('s_load_dwordx2 s[%d:%d], s[0:1], 96'%(S_WS,S_WS+1))
    wave_setup(a,'K3')
    a('s_and_b32 s%d, s2, 7'%S_XCD); a('s_lshr_b32 s%d, s2, 3'%S_J)
    a('s_lshr_b32 s%d, s%d, 3'%(S_T0,S_J)); a('s_lshl_b32 s%d, s%d, 2'%(S_TB,S_XCD)); a('s_add_u32 s%d, s%d, s%d'%(S_TB,S_TB,S_T0))
    a('s_and_b32 s%d, s%d, 7'%(S_DT,S_J))
    a('s_cmp_ge_u32 s%d, 8'%S_WAVE); a('s_cbranch_scc1 K3_prod')
    ACC=16; FS=[32,52,72]; WA=92; HA=93; PP=96; QQ=108; XX=120
    a('s_and_b32 s%d, s%d, 3'%(S_PW,S_WAVE)); a('s_lshr_b32 s%d, s%d, 2'%(S_H,S_WAVE))
    a('v_and_b32 v6, 15, v0'); a('v_lshrrev_b32 v7, 4, v0')
    a('s_lshl_b32 s%d, s%d, 6'%(S_T0,S_TB)); a('s_lshl_b32 s%d, s%d, 4'%(S_T1,S_PW)); a('s_add_u32 s%d, s%d, s%d'%(S_T0,S_T0,S_T1)); a('v_add_u32 v8, s%d, v6'%S_T0)
    a('s_mul_i32 s%d, s%d, 80'%(S_T0,S_DT)); a('s_mul_i32 s%d, s%d, 48'%(S_T1,S_H)); a('s_add_u32 s%d, s%d, s%d'%(S_T3,S_T0,S_T1))
    a('v_lshlrev_b32 v9, 2, v7'); a('v_add_u32 v9, s%d, v9'%S_T3)
    a('v_mul_u32_u24 v10, 1280, v8'); a('v_lshl_add_u32 v10, v9, 1, v10')
    a('s_mul_i32 s%d, s%d, 3072'%(S_T0,S_PW)); a('v_lshlrev_b32 v12, 3, v0'); a('v_add_u32 v%d, s%d, v12'%(HA,S_T0))
    a('v_lshrrev_b32 v12, 2, v6'); a('v_lshl_add_u32 v12, v7, 2, v12'); a('v_mul_u32_u24 v12, 160, v12'); a('v_and_b32 v13, 3, v6'); a('v_lshl_add_u32 v12, v13, 3, v12')
    a('s_mul_i32 s%d, s%d, 96'%(S_T0,S_H)); a('s_add_u32 s%d, s%d, 24576'%(S_T0,S_T0)); a('v_add_u32 v%d, s%d, v12'%(WA,S_T0))
    for k in range(12): a('v_mov_b32 v%d, 0'%(ACC+k))
    a('s_cmp_eq_u32 s%d, 0'%S_H); a('s_cbranch_scc0 K3c_1')
    for h in range(2):
        nj=3-h; nm='K3c_%d'%h
        a.lab(nm)
        def rd(st,sub,nj=nj):
            F=FS[st]; m=[]
            for ver in range(2):
                for b in range(2): m.append('ds_read_b64 %s, v%d offset:%d'%(vr(F+ver*4+b*2,2),HA,ver*12288+(sub*2+b)*512))
            for j in range(nj):
                for b in range(2): m.append('ds_read_b64_tr_b16 %s, v%d offset:%d'%(vr(F+8+j*4+b*2,2),WA,sub*32*160+b*16*160+j*32))
            return m
        def mf(st,nj=nj):
            F=FS[st]; m=[]
            for ver in range(2):
                for j in range(nj):
                    c=vr(ACC+4*j,4); m.append('v_mfma_f32_16x16x32_bf16 %s, %s, %s, %s'%(c,vr(F+8+j*4,4),vr(F+ver*4,4),c))
            return m
        consumer_loop(a,nm+'L',SL3,NK3,[WA,HA],rd,mf,lag=(h==0),nsub=3,per=EXP.get('k3per',2),dly=EXP.get('k3dly',6),phase=3)
        a('s_barrier')
        a('s_lshl_b32 s%d, s%d, 4'%(S_T0,S_PW)); a('v_add_u32 v11, s%d, v6'%S_T0)
        a('v_mul_u32_u24 v12, 320, v11'); a('v_mul_u32_u24 v13, 160, v11')
        a('v_lshlrev_b32 v14, 2, v7'); a('v_add_u32 v14, %d, v14'%(48*h))
        a('v_lshl_add_u32 v13, v14, 1, v13'); a('v_add_u32 v13, %d, v13'%(AREA_X))
        a('s_cmp_lt_u32 s%d, 4'%S_DT); a('s_cbranch_scc1 %s_rdir'%nm)
        a('v_sub_u32 v14, %d, v14'%(76-32))
        a('v_lshl_add_u32 v12, v14, 2, v12'); a('v_add_u32 v12, %d, v12'%(AREA_P))
        for j in range(nj):
            a('ds_read_b128 %s, v12 offset:%d'%(vr(PP+4*j,4),(2-j)*64)); a('ds_read_b128 %s, v12 offset:%d'%(vr(QQ+4*j,4),AREA_Q-AREA_P+(2-j)*64))
        a('s_branch %s_rdone'%nm)
        a.lab(nm+'_rdir')
        a('v_lshl_add_u32 v12, v14, 2, v12'); a('v_add_u32 v12, %d, v12'%(AREA_P))
        for j in range(nj):
            a('ds_read_b128 %s, v12 offset:%d'%(vr(PP+4*j,4),j*64)); a('ds_read_b128 %s, v12 offset:%d'%(vr(QQ+4*j,4),AREA_Q-AREA_P+j*64))
        a.lab(nm+'_rdone')
        for j in range(nj): a('ds_read_b64 %s, v13 offset:%d'%(vr(XX+2*j,2),j*32))
        srd(a,SRD_O,S_OUT,S_OUT+1,2048*1280)
        a('s_waitcnt lgkmcnt(0)')
        a('s_cmp_lt_u32 s%d, 16'%S_TB); a('s_cselect_b32 s%d, 1, 0'%S_T0); a('s_cmp_lt_u32 s%d, 4'%S_DT); a('s_cselect_b32 s%d, 1, 0'%S_T1)
        a('s_cmp_eq_u32 s%d, s%d'%(S_T0,S_T1)); a('s_cselect_b32 s%d, -1.0, 1.0'%S_T0)
        a('v_mov_b32 v2, s%d'%S_T0); a('v_mov_b32 v3, s%d'%S_T0)
        for j in range(nj):
            for p in range(2): a('v_pk_fma_f32 %s, %s, %s, %s'%(vr(PP+4*j+2*p,2),vr(QQ+4*j+2*p,2),vr(2,2),vr(PP+4*j+2*p,2)))
        if h==0:
            a('s_cmp_eq_u32 s%d, 0'%S_DT); a('s_cbranch_scc0 K3_noz')
            a('v_cmp_gt_u32 vcc, 16, v0'); a('v_mov_b32 v4, 0'); a('s_nop 0'); a('v_cndmask_b32 v%d, v%d, v4, vcc'%(PP,PP))
            a.lab('K3_noz')
        a('s_cmp_lt_u32 s%d, 4'%S_DT); a('s_cbranch_scc0 %s_epm'%nm)
        for role in ('dir','mir'):
            if role=='mir': a.lab(nm+'_epm')
            for j in range(nj):
                c=ACC+4*j
                for r in range(4):
                    y=PP+4*j+(r if role=='dir' else 3-r)
                    a('v_add_f32 v%d, v%d, v%d'%(c+r,c+r,y))
                for p in range(2):
                    x=XX+2*j+p
                    a('v_lshlrev_b32 v%d, 16, v%d'%(4,x)); a('v_and_b32 v%d, 0xffff0000, v%d'%(5,x))
                    a('v_pk_add_f32 %s, %s, %s'%(vr(c+2*p,2),vr(c+2*p,2),vr(4,2)))
                o=12+2*(j&1)
                a('v_cvt_pk_bf16_f32 v%d, v%d, v%d'%(o,c,c+1)); a('v_cvt_pk_bf16_f32 v%d, v%d, v%d'%(o+1,c+2,c+3))
                a('buffer_store_dwordx2 %s, v10, s[%d:%d], 0 offen offset:%d%s'%(vr(o,2),SRD_O,SRD_O+3,j*32,{0:'',1:' sc1',2:' nt',3:' sc0 sc1'}[EXP.get('outst',0)]))
            a('s_branch K3_end')
    a.lab('K3_prod')
    HO=2; WO=[3,4]
    if EXP.get('same'): a('s_mov_b32 s%d, 0'%S_TB); a('s_mov_b32 s%d, 0'%S_DT)
    a('s_sub_u32 s%d, s%d, 8'%(S_PW,S_WAVE))
    a('s_and_b32 s%d, s%d, 3'%(S_T1,S_PW)); a('s_lshr_b32 s%d, s%d, 2'%(S_T2,S_PW))
    a('s_lshl_b32 s%d, s%d, 2'%(S_T0,S_TB)); a('s_add_u32 s%d, s%d, s%d'%(S_T0,S_T0,S_T1)); a('s_mul_i32 s%d, s%d, 27648'%(S_KX,S_T0))
    a('s_mul_i32 s%d, s%d, %d'%(S_T0,S_T2,H_VER)); a('s_add_u32 s%d, s%d, s%d'%(S_KX,S_KX,S_T0))
    a('s_mul_i32 s%d, s%d, 3072'%(S_T1,S_T1)); a('s_mul_i32 s%d, s%d, 12288'%(S_T2,S_T2)); a('s_add_u32 s%d, s%d, s%d'%(S_PAR,S_T1,S_T2))
    a('v_lshlrev_b32 v%d, 4, v0'%HO)
    for i in range(2):
        a('s_lshl_b32 s%d, s%d, 6'%(S_T0,S_PW)); a('s_add_u32 s%d, s%d, %d'%(S_T0,S_T0,512*i)); a('v_add_u32 v20, s%d, v0'%S_T0)
        a('v_mul_u32_u24 v21, 6554, v20'); a('v_lshrrev_b32 v21, 16, v21')
        a('v_mul_u32_u24 v22, 10, v21'); a('v_sub_u32 v22, v20, v22'); a('v_mul_u32_u24 v21, 1280, v21'); a('v_lshl_add_u32 v%d, v22, 4, v21'%WO[i])
    PO=[6,7,8]; XO=[9,10]
    a('s_mul_i32 s%d, s%d, 80'%(S_T0,S_DT)); a('s_sub_u32 s%d, s%d, 1'%(S_T1,S_T0)); a('s_sub_u32 s%d, 560, s%d'%(S_T2,S_T0))
    a('s_cmp_lt_u32 s%d, 4'%S_DT); a('s_cselect_b32 s%d, s%d, s%d'%(S_T0,S_T1,S_T2)); a('s_lshl_b32 s%d, s%d, 2'%(S_T0,S_T0)); a('s_add_u32 s%d, s%d, 64'%(S_SO2,S_T0))
    a('s_lshl_b32 s%d, s%d, 6'%(S_T3,S_TB))
    for i in range(3):
        a('s_lshl_b32 s%d, s%d, 6'%(S_T0,S_PW)); a('s_add_u32 s%d, s%d, %d'%(S_T0,S_T0,512*i)); a('v_add_u32 v20, s%d, v0'%S_T0)
        a('v_mul_u32_u24 v21, 3277, v20'); a('v_lshrrev_b32 v21, 16, v21')
        a('v_mul_u32_u24 v22, 20, v21'); a('v_sub_u32 v22, v20, v22')
        a('v_add_u32 v21, s%d, v21'%S_T3)
        a('s_cmp_lt_u32 s%d, 16'%S_TB); l=a.newlab('K3p_m'); a('s_cbranch_scc1 %s'%l); a('v_sub_u32 v21, 2048, v21'); a.lab(l)
        a('v_mul_u32_u24 v21, 1280, v21'); a('v_lshl_add_u32 v21, v22, 4, v21'); a('v_add_u32 v%d, s%d, v21'%(PO[i],S_SO2))
    a('s_cmp_lt_u32 s%d, 4'%S_PW); l=a.newlab('K3p_d'); a('s_cbranch_scc1 %s'%l); a('v_mov_b32 v%d, 0x7fffff00'%PO[2]); a.lab(l)
    a('s_sub_u32 s%d, s%d, 4'%(S_T0,S_PW)); a('s_lshl_b32 s%d, s%d, 1'%(S_T0,S_T0)); a('s_add_u32 s%d, s%d, 8'%(S_T1,S_PW))
    a('s_cmp_lt_u32 s%d, 4'%S_PW); a('s_cselect_b32 s%d, s%d, s%d'%(S_G,S_T1,S_T0))
    for i in range(2):
        a('s_add_u32 s%d, s%d, %d'%(S_T0,S_G,i)); a('s_lshl_b32 s%d, s%d, 6'%(S_T0,S_T0)); a('v_add_u32 v20, s%d, v0'%S_T0)
        a('v_mul_u32_u24 v21, 6554, v20'); a('v_lshrrev_b32 v21, 16, v21'); a('v_mul_u32_u24 v22, 10, v21'); a('v_sub_u32 v22, v20, v22')
        a('v_add_u32 v21, s%d, v21'%S_T3); a('v_mul_u32_u24 v21, 1280, v21'); a('v_lshl_add_u32 v21, v22, 4, v21')
        a('s_mul_i32 s%d, s%d, 160'%(S_T0,S_DT)); a('v_add_u32 v%d, s%d, v21'%(XO[i],S_T0))
    a('s_mov_b32 s%d, 0'%S_SLI)
    if EXP.get('norot') or EXP.get('norot3'): a('s_mov_b32 s%d, 0'%S_KW); a('s_mov_b32 s%d, 0'%S_HALF)
    else:
        a('s_mov_b32 s%d, s%d'%(S_HALF,S_XCD)); a('s_mul_i32 s%d, s%d, %d'%(S_KW,S_XCD,96*1280)); a('s_mul_i32 s%d, s%d, 3072'%(S_T2,S_XCD)); a('s_add_u32 s%d, s%d, s%d'%(S_KX,S_KX,S_T2))
    a('s_mul_i32 s%d, s%d, 160'%(S_T2,S_DT)); a('s_sub_u32 s%d, %d, s%d'%(S_T3,864*1280,S_T2))
    a('s_waitcnt lgkmcnt(0)')
    add64(a,S_T0,S_WS,WS_H); srd(a,SRD_A,S_T0,S_T0+1,2*H_VER)
    add64(a,S_WOUT,S_WOUT,'s%d'%S_T2); srd(a,SRD_B,S_WOUT,S_WOUT+1,'s%d'%S_T3)
    srd(a,SRD_C,S_X,S_X+1,2048*1280)
    add64(a,S_T0,S_WS,WS_PQ-64); srd(a,SRD_D,S_T0,S_T0+1,2*PQ_MAT+64)
    def adv_h():
        a('s_add_u32 s%d, s%d, 3072'%(S_KX,S_KX))
    def issue_h(slot=None):
        if slot is None: a('s_add_u32 m0, s%d, s%d'%(S_SLI,S_PAR)); a('s_nop 0')
        else: a('s_add_u32 m0, s%d, %d'%(S_PAR,slot*SL3)); a('s_nop 0')
        for k in range(3): a('buffer_load_dwordx4 v%d, s[%d:%d], s%d offen offset:%d lds'%(HO,SRD_A,SRD_A+3,S_KX,k*1024))
    def issue_w(slot=None):
        a('s_lshl_b32 s%d, s%d, 10'%(S_T,S_PW))
        if slot is None: a('s_add_u32 s%d, s%d, s%d'%(S_T,S_T,S_SLI))
        else: a('s_add_u32 s%d, s%d, %d'%(S_T,S_T,slot*SL3))
        lab=a.newlab('K3p_s')
        for i in range(2):
            if i==1: a('s_cmp_lt_u32 s%d, 7'%S_PW); a('s_cbranch_scc0 %s'%lab)
            a('s_add_u32 m0, s%d, %d'%(S_T,24576+i*8192)); a('s_nop 0')
            a(ld('buffer_load_dwordx4 v%d, s[%d:%d], s%d offen lds'%(WO[i],SRD_B,SRD_B+3,S_KW)))
        a.lab(lab)
    def wrap(cnt,dow,doh):
        if dow: a('s_add_u32 s%d, s%d, %d'%(S_KW,S_KW,96*1280))
        if doh: a('s_add_u32 s%d, s%d, 3072'%(S_KX,S_KX))
        a('s_add_u32 s%d, s%d, 1'%(cnt,cnt)); a('s_cmp_eq_u32 s%d, 9'%cnt); lw=a.newlab('K3p_w'); a('s_cbranch_scc0 %s'%lw)
        a('s_mov_b32 s%d, 0'%cnt)
        if dow: a('s_mov_b32 s%d, 0'%S_KW)
        if doh: a('s_sub_u32 s%d, s%d, %d'%(S_KX,S_KX,9*3072))
        a.lab(lw)
    def issue():
        issue_h(); issue_w()
        slot_advance(a,S_SLI,SL3); wrap(S_HALF,True,True)
    n=NK3; c=4
    if EXP.get('pprio'): a('s_setprio %d'%EXP['pprio'])
    if g2.FUSED[0] and EXP.get('prew'):
        a('s_mov_b32 s%d, s%d'%(S_G+0,S_HALF)) if False else None
        a('s_mov_b32 s%d, s%d'%(S_EX,S_HALF))
        for st in range(4):
            issue_w(st); wrap(S_HALF,True,False)
        dep_barrier(a,'K3p',3,S_WS,poller=True)
        gc.stamp(a,1)
        for st in range(2):
            issue_h(st); wrap(S_EX,False,True)
        gc.stamp(a,2)
        a('s_waitcnt vmcnt(3)'); gc.stamp(a,3); a('s_barrier')
        for st in range(2,4):
            issue_h(st); wrap(S_EX,False,True)
        a('s_mov_b32 s%d, 0'%S_SLI)
        a('s_waitcnt vmcnt(6)'); a('s_barrier'); issue()
        a('s_waitcnt vmcnt(7)'); a('s_barrier'); issue()
        a('s_waitcnt vmcnt(8)'); a('s_barrier'); issue()
        a('s_mov_b32 s%d, 4'%S_I)
        a.lab('K3p_loop')
        a('s_waitcnt vmcnt(%d)'%(2*c)); a('s_barrier'); issue()
        a('s_add_u32 s%d, s%d, 1'%(S_I,S_I)); a('s_cmp_lt_u32 s%d, %d'%(S_I,n-3)); a('s_cbranch_scc1 K3p_loop')
        PRE=True
    else:
        PRE=False
        dep_barrier(a,'K3p',3,S_WS,poller=True)
        gc.stamp(a,1)
        P=EXP.get('pro3',EXP.get('pro',2))
        for _ in range(P): issue()
        gc.stamp(a,2)
        a('s_waitcnt vmcnt(%d)'%((P-1)*c)); gc.stamp(a,3); a('s_barrier')
        for _ in range(4-P): issue()
    if not PRE:
        a('s_mov_b32 s%d, 1'%S_I)
        a.lab('K3p_loop')
        a('s_waitcnt vmcnt(%d)'%(2*c)); a('s_barrier'); issue()
        a('s_add_u32 s%d, s%d, 1'%(S_I,S_I)); a('s_cmp_lt_u32 s%d, %d'%(S_I,n-3)); a('s_cbranch_scc1 K3p_loop')
    a('s_waitcnt vmcnt(%d)'%(2*c)); a('s_barrier')
    a('s_lshl_b32 s%d, s%d, 10'%(S_T,S_PW))
    for i in range(2):
        a('s_add_u32 m0, s%d, %d'%(S_T,AREA_P+i*8192)); a('s_nop 0'); a('buffer_load_dwordx4 v%d, s[%d:%d], 0 offen lds'%(PO[i],SRD_D,SRD_D+3))
    l4=a.newlab('K3p_t4'); ld_=a.newlab('K3p_td')
    a('s_cmp_lt_u32 s%d, 4'%S_PW); a('s_cbranch_scc0 %s'%l4)
    a('s_add_u32 m0, s%d, %d'%(S_T,AREA_P+2*8192)); a('s_nop 0'); a('buffer_load_dwordx4 v%d, s[%d:%d], 0 offen lds'%(PO[2],SRD_D,SRD_D+3))
    a('s_lshl_b32 s%d, s%d, 10'%(S_T0,S_G)); a('s_add_u32 s%d, s%d, %d'%(S_T0,S_T0,AREA_X)); a('s_cmp_lt_u32 s%d, 2'%S_PW); a('s_cselect_b32 s%d, s%d, %d'%(S_T0,S_T0,AREA_DUM))
    lq=a.newlab('K3p_tx'); a('s_cbranch_scc1 %s'%lq); a('v_mov_b32 v%d, 0x7fffff00'%XO[0]); a.lab(lq)
    a('s_mov_b32 m0, s%d'%S_T0); a('s_nop 0'); a('buffer_load_dwordx4 v%d, s[%d:%d], 0 offen lds'%(XO[0],SRD_C,SRD_C+3)); a('s_branch %s'%ld_)
    a.lab(l4)
    a('s_lshl_b32 s%d, s%d, 10'%(S_T0,S_G))
    for i in range(2):
        a('s_add_u32 m0, s%d, %d'%(S_T0,AREA_X+i*1024)); a('s_nop 0'); a('buffer_load_dwordx4 v%d, s[%d:%d], 0 offen lds'%(XO[i],SRD_C,SRD_C+3))
    a.lab(ld_)
    a('s_waitcnt vmcnt(%d)'%(c+4)); a('s_barrier')
    a('s_mov_b32 s%d, %d'%(S_SO,PQ_MAT))
    for i in range(3):
        a('s_add_u32 m0, s%d, %d'%(S_T,AREA_Q+i*8192)); a('s_nop 0'); a('buffer_load_dwordx4 v%d, s[%d:%d], s%d offen lds'%(PO[i],SRD_D,SRD_D+3,S_SO))
    a('s_waitcnt vmcnt(7)'); a('s_barrier')
    gc.stamp(a,4)
    a('s_waitcnt vmcnt(0)'); a('s_barrier')
    kernel_tail(a,'K3',2,S_WS)
```

```python
from gen_common import *
import gen_common as gc
import struct
def f2u(f): return struct.unpack('<I',struct.pack('<f',f))[0]
WS_GR = 0x08D0000
WS_FG  = 0x08C4000
WS_FL  = 0x08CC000
FUSED=[False]
WS_LN1 = 0x08C8000
NS=4
S_WAVE=32; S_XCD=33; S_J=34; S_G=35; S_HALF=36; S_RB=37; S_CT=38; S_PW=39; S_H=40
S_I=41; S_SLI=42; S_SLC=43; S_KX=44; S_KW=45; S_T=46; S_SO=47; S_T0=48; S_T1=49; S_T2=50; S_T3=51; S_SO2=52; S_PAR=53
S_EX=54
EXP={}
LDF=''
STF=''

def srd(a,d,lo,hi,size):
    a('s_mov_b32 s%d, s%d'%(d,lo)); a('s_mov_b32 s%d, s%d'%(d+1,hi))
    if isinstance(size,int): a('s_mov_b32 s%d, 0x%x'%(d+2,size))
    else: a('s_mov_b32 s%d, %s'%(d+2,size))
    a('s_mov_b32 s%d, 0x00020000'%(d+3))
def add64(a,dlo,slo,off):
    o = off if isinstance(off,str) else '0x%x'%off
    a('s_add_u32 s%d, s%d, %s'%(dlo,slo,o)); a('s_addc_u32 s%d, s%d, 0'%(dlo+1,slo+1))
def slot_advance(a,s,SL,ns=NS):
    a('s_add_u32 s%d, s%d, %d'%(s,s,SL)); a('s_cmp_eq_u32 s%d, %d'%(s,ns*SL)); a('s_cselect_b32 s%d, 0, s%d'%(s,s))

def dma_producer(a,name,n,c,issue,tail=None,phase=1,s_ws=6,post=0):
    if EXP.get('pprio'): a('s_setprio %d'%EXP['pprio'])
    D=EXP.get('depth_'+name,EXP.get('depth',3))
    dep_barrier(a,name,phase,s_ws,poller=True)
    gc.stamp(a,1)
    P=min(EXP.get('pro%d'%phase,EXP.get('pro',2)),D+1)
    for _ in range(P): issue()
    gc.stamp(a,2)
    a('s_waitcnt vmcnt(%d)'%min(63,(P-1)*c)); gc.stamp(a,3); a('s_barrier')
    for _ in range(D+1-P): issue()
    a('s_mov_b32 s%d, %d'%(S_I,n-1-D))
    a.lab(name+'_loop')
    a('s_waitcnt vmcnt(%d)'%min(63,(D-1)*c)); a('s_barrier')
    issue()
    a('s_sub_u32 s%d, s%d, 1'%(S_I,S_I)); a('s_cmp_lg_u32 s%d, 0'%S_I); a('s_cbranch_scc1 %s_loop'%name)
    for r in range(D-1,-1,-1):
        a('s_waitcnt vmcnt(%d)'%min(63,r*c)); a('s_barrier')
    gc.stamp(a,4)
    if FUSED[0]:
        for _ in range(post): a('s_barrier')

def consumer_loop(a,name,SL,n,addr_regs,reads,mfmas,ns=NS,hook=None,hook_at=2,lag=False,nsub=2,per=1,dly=None,phase=1):
    def R(s): return [] if EXP.get('noread') else reads(s,s)
    def M(s): return [] if EXP.get('nomfma') else mfmas(s)
    book=['s_mov_b32 s%d, s%d'%(S_T0,S_SLC),'s_add_u32 s%d, s%d, %d'%(S_SLC,S_SLC,SL),'s_cmp_eq_u32 s%d, %d'%(S_SLC,ns*SL),'s_cselect_b32 s%d, 0, s%d'%(S_SLC,S_SLC),
          's_sub_u32 s%d, s%d, s%d'%(S_T0,S_SLC,S_T0),'s_add_u32 s%d, s%d, 1'%(S_I,S_I)]
    upd=['v_add_u32 v%d, s%d, v%d'%(r,S_T0,r) for r in addr_regs]
    a('s_mov_b32 s%d, 0'%S_I); a('s_mov_b32 s%d, 0'%S_SLC)
    dep_barrier(a,name,phase,6)
    if EXP.get('fine') is None: gc.stamp(a,1)
    if not lag:
        a('s_barrier')
        if EXP.get('fine') is None: gc.stamp(a,2)
        a.lab(name+'_loop')
        fine(a,1,name)
        if not EXP.get('noprio'): a('s_setprio 1')
        for s_ in range(nsub):
            for x in R(s_): a(x)
        if not EXP.get('noprio'): a('s_setprio 0')
        fine(a,2,name)
        for x in book: a(x)
        for x in upd: a(x)
        emit_hooks(a,name,hook,hook_at)
        if EXP.get('fine') is not None: a('s_sub_u32 s%d, s%d, 1'%(S_I,S_I))
        for s_ in range(nsub):
            later=sum(len(R(t)) for t in range(s_+1,nsub))
            a('s_waitcnt lgkmcnt(%d)'%(0 if EXP.get('fine') is not None else min(later,15)))
            if s_==0: fine(a,3,name)
            for x in M(s_): a(x)
        fine(a,4,name)
        if EXP.get('fine') is not None: a('s_add_u32 s%d, s%d, 1'%(S_I,S_I))
        a('s_cmp_lt_u32 s%d, %d'%(S_I,n))
        a('s_cbranch_scc0 %s_done'%name)
        a('s_barrier')
        a('s_branch %s_loop'%name)
        a.lab(name+'_done')
    else:
        a('s_barrier')
        if EXP.get('fine') is None: gc.stamp(a,2)
        for s_ in range(nsub):
            for x in R(s_): a(x)
        for x in book: a(x)
        for x in upd: a(x)
        if isinstance(hook,dict) and 1 in hook: hook[1]()
        a('s_waitcnt lgkmcnt(0)')
        a.lab(name+'_loop')
        a('s_barrier')
        fine(a,1,name)
        if EXP.get('noilv'):
            for s_ in range(nsub):
                for x in M(s_): a(x)
            fine(a,2,name)
            for s_ in range(nsub):
                for x in R(s_): a(x)
            fine(a,3,name)
        else:
            Ms=[M(s_) for s_ in range(nsub)]; allM=[m for x in Ms for m in x]
            ends=[sum(len(Ms[t]) for t in range(s_+1)) for s_ in range(nsub)]
            pend=[]
            if dly is None: dly=max(ends[0],len(allM)-len(R(0))) if allM else 0
            nxt=0
            for k_,m in enumerate(allM):
                a(m)
                while nxt<nsub-1 and k_+1>=ends[nxt]:
                    pend+=R(nxt); nxt+=1
                if k_+1>=dly:
                    for _ in range(min(per,len(pend))): a(pend.pop(0))
            fine(a,2,name)
            for x in pend: a(x)
            for x in R(nsub-1): a(x)
            fine(a,3,name)
        for x in book: a(x)
        for x in upd: a(x)
        emit_hooks(a,name,({k_:v_ for k_,v_ in hook.items() if k_!=1} if isinstance(hook,dict) else hook),hook_at)
        a('s_waitcnt lgkmcnt(0)')
        if EXP.get('fine') is not None:
            a('s_sub_u32 s%d, s%d, 1'%(S_I,S_I)); fine(a,4,name); a('s_add_u32 s%d, s%d, 1'%(S_I,S_I))
        a('s_cmp_lt_u32 s%d, %d'%(S_I,n))
        a('s_cbranch_scc1 %s_loop'%name)
        for s_ in range(nsub):
            for x in M(s_): a(x)
    if EXP.get('fine') is None: gc.stamp(a,3)

def emit_hooks(a,name,hook,hook_at):
    if hook is None: return
    H=hook if isinstance(hook,dict) else {hook_at:hook}
    for k,(at,fn) in enumerate(sorted(H.items())):
        a('s_cmp_eq_u32 s%d, %d'%(S_I,at)); a('s_cbranch_scc0 %s_nh%d'%(name,k)); fn(); a.lab('%s_nh%d'%(name,k))
def fine(a,k,name):
    if EXP.get('fine') is not None and gc.STAMPS:
        l='%s_f%d'%(name,k)
        a('s_cmp_eq_u32 s%d, %d'%(S_I,EXP['fine'])); a('s_cbranch_scc0 %s'%l); a('s_memtime s[%d:%d]'%(64+2*k,65+2*k)); a.lab(l)
def mix(a,M,F,per=2,lead=0):
    F=list(F)
    for _ in range(min(lead,len(F))): a(F.pop(0))
    for m in M:
        a(m)
        for _ in range(min(per,len(F))): a(F.pop(0))
    for x in F: a(x)

GC0=-2.0*0.7978845608028654*1.4426950408889634
GC1=GC0*0.044715
def gelu_pairs(a,pre,tmp,C0,C1,ONE):
    n=len(pre)
    for k in range(n): a('v_pk_mul_f32 %s, %s, %s'%(vr(tmp[k],2),vr(pre[k],2),vr(pre[k],2)))
    for k in range(n): a('v_pk_fma_f32 %s, %s, %s, %s'%(vr(tmp[k],2),vr(tmp[k],2),vr(C1,2),vr(C0,2)))
    for k in range(n): a('v_pk_mul_f32 %s, %s, %s'%(vr(tmp[k],2),vr(tmp[k],2),vr(pre[k],2)))
    for k in range(n):
        a('v_exp_f32 v%d, v%d'%(tmp[k],tmp[k])); a('v_exp_f32 v%d, v%d'%(tmp[k]+1,tmp[k]+1))
    for k in range(n): a('v_pk_add_f32 %s, %s, %s'%(vr(tmp[k],2),vr(tmp[k],2),vr(ONE,2)))
    for k in range(n):
        a('v_rcp_f32 v%d, v%d'%(tmp[k],tmp[k])); a('v_rcp_f32 v%d, v%d'%(tmp[k]+1,tmp[k]+1))
    for k in range(n): a('v_pk_mul_f32 %s, %s, %s'%(vr(pre[k],2),vr(pre[k],2),vr(tmp[k],2)))
def kernel_head(a,kname,pre,nwg=256):
    KCUR[0]=int(pre[1])
    if FUSED[0] and pre!='K1':
        a.lab(pre+'_entry')
        if not gc.LIGHT: gc.stamp_init(a)
        return
    a.raw('.p2align 8'); a.raw('.type %s,@function'%kname); a.lab(kname)
    if FUSED[0]: a.lab('KSTART')
    a('s_cmp_ge_u32 s2, %d'%nwg); a('s_cbranch_scc1 %s_exit'%('K3' if FUSED[0] else pre)); gc.stamp_init(a)
def wave_setup(a,pre):
    if FUSED[0] and pre!='K1': return
    a('v_lshrrev_b32 v1, 6, v0'); a('v_and_b32 v0, 63, v0'); a('s_nop 0')
    a('v_readfirstlane_b32 s%d, v1'%S_WAVE)
def kernel_tail(a,pre,kidx,s_ws):
    a.lab(pre+'_end')
    if FUSED[0] and pre!='K3':
        if pre=='K1' and not EXP.get('wwait'):
            a('s_cmp_ge_u32 s%d, 12'%S_WAVE); a('s_cbranch_scc1 K1_nw'); a('s_waitcnt vmcnt(0)'); a.lab('K1_nw'); a('s_waitcnt lgkmcnt(0)'); a('s_barrier')
        else:
            a('s_waitcnt vmcnt(0) lgkmcnt(0)'); a('s_barrier')
        l='%s_fl'%pre
        a('s_cmp_eq_u32 s%d, 0'%S_WAVE); a('s_cbranch_scc0 %s'%l)
        add64(a,88,s_ws,WS_FL+(0x2000 if pre=='K2' else 0)); srd(a,92,88,89,0x2000)
        a('s_lshl_b32 s88, s2, 5'); a('v_mov_b32 v2, 1'); a('v_mov_b32 v3, 0'); a('s_mov_b32 exec_lo, 1'); a('s_mov_b32 exec_hi, 0')
        a('buffer_store_dword v2, v3, s[92:95], s88 offen sc1'); a('s_mov_b64 exec, -1')
        a.lab(l)
        if not gc.LIGHT: gc.stamp_dump(a,kidx,s_ws,S_WAVE)
        a('s_setprio 0')
        return
    gc.stamp_dump(a,kidx,s_ws,S_WAVE); a.lab(pre+'_exit'); a('s_endpgm')
    if FUSED[0]: a.lab('KEND')
def dep_poll(a,name,phase,s_ws):
    add64(a,88,s_ws,WS_FL+(0x2000 if phase==3 else 0)); srd(a,92,88,89,0x2000)
    a('s_and_b32 s88, s2, 7'); a('s_lshr_b32 s89, s2, 3')
    a('v_mov_b32 v31, 0x7fffff00')
    if phase==2:
        a('s_cmp_ge_u32 s89, 24'); a('s_cbranch_scc1 %s_t'%name)
        a('s_mul_i32 s90, s89, 43'); a('s_lshr_b32 s90, s90, 8'); a('s_mul_i32 s90, s90, 6'); a('s_sub_u32 s90, s89, s90')
        a('s_cmp_ge_u32 s90, 3'); a('s_cselect_b32 s91, 1, 0'); a('s_cselect_b32 s89, 3, 0'); a('s_sub_u32 s90, s90, s89'); a('s_lshl_b32 s90, s90, 1')
        a('v_lshrrev_b32 v28, 3, v0'); a('v_lshlrev_b32 v28, 1, v28'); a('v_add_u32 v28, s91, v28')
        a('v_bfe_u32 v29, v0, 1, 2'); a('v_mul_u32_u24 v29, 6, v29'); a('v_and_b32 v30, 1, v0'); a('v_add_u32 v29, v29, v30'); a('v_add_u32 v29, s90, v29')
        a('v_lshl_add_u32 v28, v29, 3, v28'); a('v_cmp_gt_u32 vcc, 32, v0'); a('s_branch %s_go'%name)
        a.lab(name+'_t')
        a('s_sub_u32 s89, s89, 24'); a('s_and_b32 s89, s89, 3'); a('s_lshr_b32 s89, s89, 1'); a('s_add_u32 s89, s89, 24'); a('s_and_b32 s88, s88, 1')
        a('v_lshrrev_b32 v28, 2, v0'); a('v_lshlrev_b32 v28, 1, v28'); a('v_add_u32 v28, s88, v28')
        a('v_and_b32 v29, 3, v0'); a('v_lshlrev_b32 v29, 1, v29'); a('v_add_u32 v29, s89, v29')
        a('v_lshl_add_u32 v28, v29, 3, v28'); a('v_cmp_gt_u32 vcc, 16, v0')
        a.lab(name+'_go')
        a('v_lshlrev_b32 v28, 5, v28'); a('s_nop 1'); a('v_cndmask_b32 v28, v31, v28, vcc'); a('v_cndmask_b32_e64 v27, 1, 0, vcc')
        nset=1
    else:
        a('s_lshl_b32 s88, s88, 2'); a('s_lshr_b32 s89, s89, 3'); a('s_add_u32 s88, s88, s89'); a('s_lshr_b32 s88, s88, 1')
        a('s_lshr_b32 s89, s88, 2'); a('s_lshl_b32 s89, s89, 1'); a('s_and_b32 s88, s88, 3'); a('s_mul_i32 s88, s88, 6')
        a('v_and_b32 v28, 1, v0'); a('v_add_u32 v28, s89, v28'); a('v_lshrrev_b32 v29, 1, v0'); a('v_add_u32 v29, s88, v29'); a('v_lshl_add_u32 v28, v29, 3, v28')
        a('v_cmp_gt_u32 vcc, 12, v0'); a('v_lshlrev_b32 v28, 5, v28'); a('s_nop 0'); a('v_cndmask_b32 v28, v31, v28, vcc'); a('v_cndmask_b32_e64 v27, 1, 0, vcc')
        a('v_and_b32 v26, 7, v0'); a('v_lshrrev_b32 v29, 3, v0'); a('v_add_u32 v29, 24, v29'); a('v_lshl_add_u32 v26, v29, 3, v26'); a('v_lshlrev_b32 v26, 5, v26')
        nset=2
    a('s_mov_b32 s90, 0')
    def iss(r0,r1):
        a('buffer_load_dword v%d, v28, s[92:95], 0 offen sc1'%r0)
        if nset==2: a('buffer_load_dword v%d, v26, s[92:95], 0 offen sc1'%r1)
    def chk(r0,r1):
        a('v_or_b32 v%d, v%d, v27'%(r0,r0))
        if nset==2: a('v_min_u32 v%d, v%d, v%d'%(r0,r0,r1))
        a('v_cmp_ne_u32 vcc, 1, v%d'%r0); a('s_nop 1'); a('s_cmp_eq_u64 vcc, 0'); a('s_cbranch_scc1 %s_ok'%name)
    iss(25,24)
    a.lab(name+'_lp')
    iss(23,22); a('s_waitcnt vmcnt(%d)'%nset); chk(25,24)
    iss(21,20); a('s_waitcnt vmcnt(%d)'%nset); chk(23,22)
    iss(25,24); a('s_waitcnt vmcnt(%d)'%nset); chk(21,20)
    a('s_add_u32 s90, s90, 1'); a('s_cmp_lt_u32 s90, 2000'); a('s_cbranch_scc1 %s_lp'%name)
    a.lab(name+'_ok')
    a('s_waitcnt vmcnt(0)')
def dep_barrier(a,name,phase,s_ws,poller=False):
    if not FUSED[0] or phase==1: return
    if poller:
        l=name+'_np'; a('s_cmp_eq_u32 s%d, 8'%S_WAVE); a('s_cbranch_scc0 %s'%l); dep_poll(a,name+'_dp',phase,s_ws); a.lab(l)
    a('s_barrier')

KCUR=[1]
LDK={1:'',2:'',3:''}
class AsmF(Asm):
    def __call__(s,txt):
        import g2_common as g
        if g.EXP.get('nodma') and txt.startswith('buffer_load') and txt.rstrip().endswith('lds'): return
        Asm.__call__(s,txt)
def ld(txt):
    import g2_common as g
    return txt.replace(' lds', g.LDK[g.KCUR[0]]+' lds')

def pf_loop(a,name,n,pf,d1,d2,extra_barriers=0):
    D=EXP.get('pfd',7); pol=LDK[KCUR[0]]
    a('s_mov_b32 s%d, %d'%(S_KX,d1)); a('s_mov_b32 s%d, %d'%(S_KW,d2))
    for _ in range(min(D,n)-1): pf(pol)
    m=max(n-D,0)
    if m>0:
        a('s_mov_b32 s%d, %d'%(S_I,m))
        a.lab(name+'_loop')
        a('s_barrier'); pf(pol)
        a('s_sub_u32 s%d, s%d, 1'%(S_I,S_I)); a('s_cmp_lg_u32 s%d, 0'%S_I); a('s_cbranch_scc1 %s_loop'%name)
    for _ in range(n-m+extra_barriers): a('s_barrier')

def poll_rbs(a,name,s_ws,s_ct,s_kh,s_tb,grp,R=24,part='both'):
    AD,T1,T2,MK,OB,DT=R+4,R+5,R+6,R+3,R+7,R+1
    if part in ('both','issue'):
        add64(a,88,s_ws,WS_FL); srd(a,92,88,89,0x2000)
        base0={1:0,2:6,3:4}[grp]; base1={1:12,2:8,3:10}[grp]; nrb={1:4,2:2,3:2}[grp]; n=2*nrb
        a('s_cmp_eq_u32 s%d, 0'%s_kh); a('s_cselect_b32 s88, %d, %d'%(base0,base1))
        a('v_lshrrev_b32 v%d, 1, v0'%AD); a('v_add_u32 v%d, s88, v%d'%(AD,AD))
        if grp==3:
            a('v_mov_b32 v%d, s%d'%(T1,s_tb)); a('v_cmp_le_u32 vcc, %d, v0'%n); a('s_nop 1'); a('v_cndmask_b32 v%d, v%d, v%d, vcc'%(AD,AD,T1)); n+=2
        a('v_sub_u32 v%d, 15, v%d'%(T1,AD)); a('v_cmp_gt_u32 vcc, 8, v%d'%AD); a('v_and_b32 v%d, 1, v%d'%(T2,AD)); a('s_nop 0'); a('v_cndmask_b32 v%d, v%d, v%d, vcc'%(T1,T1,AD)); a('v_lshrrev_b32 v%d, 1, v%d'%(T1,T1))
        a('v_cndmask_b32_e64 v%d, 2, 0, vcc'%MK); a('v_add_u32 v%d, v%d, v%d'%(T2,T2,MK))
        a('s_cmp_ge_u32 s%d, 3'%s_ct); a('s_cselect_b32 s89, 1, 0'); a('s_cselect_b32 s90, 3, 0'); a('s_sub_u32 s90, s%d, s90'%s_ct); a('s_lshl_b32 s90, s90, 1')
        a('v_mul_u32_u24 v%d, 6, v%d'%(T2,T2)); a('v_and_b32 v%d, 1, v0'%MK); a('v_add_u32 v%d, v%d, v%d'%(T2,T2,MK)); a('v_add_u32 v%d, s90, v%d'%(T2,T2))
        a('v_lshlrev_b32 v%d, 1, v%d'%(T1,T1)); a('v_add_u32 v%d, s89, v%d'%(T1,T1)); a('v_lshl_add_u32 v%d, v%d, 3, v%d'%(AD,T2,T1)); a('v_lshlrev_b32 v%d, 5, v%d'%(AD,AD))
        a('v_mov_b32 v%d, 0x7fffff00'%OB); a('v_cmp_gt_u32 vcc, %d, v0'%n); a('s_nop 1'); a('v_cndmask_b32 v%d, v%d, v%d, vcc'%(AD,OB,AD)); a('v_cndmask_b32_e64 v%d, 1, 0, vcc'%MK)
        if part=='issue': a('buffer_load_dword v%d, v%d, s[92:95], 0 offen sc1'%(DT,AD))
    if part in ('both','check'):
        if part=='check': add64(a,88,s_ws,WS_FL); srd(a,92,88,89,0x2000)
        a('s_mov_b32 s90, 0')
        if part=='both': a('buffer_load_dword v%d, v%d, s[92:95], 0 offen sc1'%(DT,AD))
        a.lab(name+'_lp')
        a('s_waitcnt vmcnt(0)')
        a('v_or_b32 v%d, v%d, v%d'%(DT,DT,MK)); a('v_cmp_ne_u32 vcc, 1, v%d'%DT); a('s_nop 1'); a('s_cmp_eq_u64 vcc, 0'); a('s_cbranch_scc1 %s_ok'%name)
        a('buffer_load_dword v%d, v%d, s[92:95], 0 offen sc1'%(DT,AD))
        a('s_add_u32 s90, s90, 1'); a('s_cmp_lt_u32 s90, 4000'); a('s_cbranch_scc1 %s_lp'%name)
        a('s_waitcnt vmcnt(0)')
        a.lab(name+'_ok')
```

```python
from g2_common import *
import g2_common as g2
SLZ=34816; SLA=36864
TB=NS*SLA
T_R=TB; T_NMR=TB+512; T_CS0=TB+1024; T_CS1=TB+1664; T_W2=TB+2304
K1_LDS=TB+2304+2048
NK1=10
S_X=4; S_WS=6; S_WDRE=8; S_WDIM=10; S_WIN=12; S_DBG=14
SRD_X=16; SRD_W=20; SRD_O=24; SRD_O2=28; SRD_G=56; SRD_D=60
POLL_BOUND=4000

def stats_final(a,SUM,SQ,t,n,rout,nmrout):
    for k in range(1,len(SUM)): a('v_add_f32 v%d, v%d, v%d'%(SUM[0],SUM[0],SUM[k])); a('v_add_f32 v%d, v%d, v%d'%(SQ[0],SQ[0],SQ[k]))
    a('s_nop 1')
    a('v_add_f32_dpp v%d, v%d, v%d quad_perm:[1,0,3,2] row_mask:0xf bank_mask:0xf'%(t,SUM[0],SUM[0]))
    a('v_add_f32_dpp v%d, v%d, v%d quad_perm:[1,0,3,2] row_mask:0xf bank_mask:0xf'%(t+1,SQ[0],SQ[0]))
    a('v_mul_f32 v%d, 0x%x, v%d'%(t,f2u(1.0/n),t)); a('v_mul_f32 v%d, 0x%x, v%d'%(t+1,f2u(1.0/n),t+1))
    a('v_fma_f32 v%d, -v%d, v%d, v%d'%(t+1,t,t,t+1)); a('v_max_f32 v%d, 0, v%d'%(t+1,t+1)); a('v_add_f32 v%d, 0x%x, v%d'%(t+1,f2u(1e-5),t+1))
    a('v_rsq_f32 v%d, v%d'%(rout,t+1)); a('s_nop 0')
    a('v_mul_f32 v%d, v%d, v%d'%(nmrout,t,rout)); a('v_sub_f32 v%d, 0, v%d'%(nmrout,nmrout))

S_WSP=62
def ln1_row(a):
    a('s_lshl_b32 s%d, s2, 3'%S_T0); a('s_add_u32 s%d, s%d, s%d'%(S_T0,S_T0,S_WAVE)); a('s_mul_i32 s%d, s%d, 1280'%(S_T1,S_T0))
    a('v_lshlrev_b32 v56, 4, v0'); a('v_mov_b32 v57, 0x3f803f80')
    for k in range(4): a('v_mov_b32 v%d, 0'%(68+k))
    a('s_waitcnt lgkmcnt(0)')
    add64(a,S_T2,S_X,'s%d'%S_T1); srd(a,SRD_O,S_T2,S_T2+1,1280)
    a('buffer_load_dwordx4 v[60:63], v56, s[%d:%d], 0 offen'%(SRD_O,SRD_O+3)); a('buffer_load_dwordx4 v[64:67], v56, s[%d:%d], 0 offen offset:1024'%(SRD_O,SRD_O+3))
    add64(a,S_T2,S_WS,WS_LN1); srd(a,SRD_O2,S_T2,S_T2+1,16384)
    a('s_lshl_b32 s%d, s%d, 3'%(S_SO,S_T0))
def ln1_row_finish(a):
    a('s_waitcnt vmcnt(0)')
    for k in range(8):
        a('v_dot2_f32_bf16 v%d, v%d, v%d, v%d'%(68+(k&1),60+k,60+k,68+(k&1))); a('v_dot2_f32_bf16 v%d, v%d, v57, v%d'%(70+(k&1),60+k,70+(k&1)))
    a('s_nop 3')
    a('v_add_f32 v68, v68, v69'); a('v_add_f32 v70, v70, v71'); a('s_nop 1')
    for d in ('quad_perm:[1,0,3,2]','quad_perm:[2,3,0,1]','row_half_mirror','row_mirror'):
        a('v_add_f32_dpp v68, v68, v68 %s row_mask:0xf bank_mask:0xf'%d); a('v_add_f32_dpp v70, v70, v70 %s row_mask:0xf bank_mask:0xf'%d); a('s_nop 0')
    for sw in ('v_permlane16_swap_b32','v_permlane32_swap_b32'):
        a('v_mov_b32 v69, v68'); a('v_mov_b32 v71, v70'); a('s_nop 1')
        a('%s v68, v69'%sw); a('%s v70, v71'%sw); a('s_nop 1')
        a('v_add_f32 v68, v68, v69'); a('v_add_f32 v70, v70, v71')
    a('v_mul_f32 v70, 0x%x, v70'%f2u(1.0/640)); a('v_mul_f32 v68, 0x%x, v68'%f2u(1.0/640))
    a('v_fma_f32 v68, -v70, v70, v68'); a('v_max_f32 v68, 0, v68'); a('v_add_f32 v68, 0x%x, v68'%f2u(1e-5))
    a('v_rsq_f32 v72, v68'); a('s_nop 0'); a('v_mul_f32 v73, v70, v72'); a('v_sub_f32 v73, 0, v73')
    a('v_mov_b32 v74, 0'); a('v_cmp_eq_u32 vcc, 0, v0'); a('s_and_saveexec_b64 s[%d:%d], vcc'%(S_EX,S_EX+1))
    a('buffer_store_dwordx2 v[72:73], v74, s[%d:%d], s%d offen sc1'%(SRD_O2,SRD_O2+3,S_SO))
    a('s_mov_b64 exec, s[%d:%d]'%(S_EX,S_EX+1))
def ln1_hook(a):
    return lambda: a('s_waitcnt vmcnt(0)')

def worker(a,name,SL,isZ):
    n=NK1
    CA=14; VT=15; CF=[48,68]; CACC=88; ONES=108
    srd(a,SRD_D,S_DBG,S_DBG+1,256)
    add64(a,S_T2,S_WS,WS_GR); srd(a,SRD_G,S_T2,S_T2+1,16*12288)
    if isZ:
        a('s_cmp_eq_u32 s%d, 0'%S_PW); a('s_cbranch_scc0 %s_nojob'%name)
        a('s_mul_i32 s%d, s%d, 12288'%(S_SO,S_RB)); a('s_lshl_b32 s%d, s%d, 1'%(S_T0,S_CT)); a('s_add_u32 s%d, s%d, s%d'%(S_T0,S_T0,S_PAR)); a('s_lshl_b32 s%d, s%d, 10'%(S_T0,S_T0))
        a('s_add_u32 s%d, s%d, s%d'%(S_SO,S_SO,S_T0))
        for k in range(4): a('v_mov_b32 v%d, -1'%(8+k))
        a('v_lshlrev_b32 v3, 4, v0')
        a('buffer_store_dwordx4 v[8:11], v3, s[%d:%d], s%d offen sc1'%(SRD_G,SRD_G+3,S_SO))
        if not EXP.get('oldpoll'):
            add64(a,S_T2,S_WS,WS_FG); srd(a,SRD_O2,S_T2,S_T2+1,4096)
            a('s_lshl_b32 s%d, s%d, 8'%(S_T0,S_RB)); a('s_lshl_b32 s%d, s%d, 1'%(S_T1,S_CT)); a('s_add_u32 s%d, s%d, s%d'%(S_T1,S_T1,S_PAR)); a('s_lshl_b32 s%d, s%d, 2'%(S_T1,S_T1)); a('s_add_u32 s%d, s%d, s%d'%(S_T0,S_T0,S_T1))
            a('v_mov_b32 v12, 0'); a('v_lshlrev_b32 v13, 6, v0'); a('s_mov_b32 exec_lo, 15'); a('s_mov_b32 exec_hi, 0')
            a('buffer_store_dword v12, v13, s[%d:%d], s%d offen sc1'%(SRD_O2,SRD_O2+3,S_T0)); a('s_mov_b64 exec, -1')
        a.lab(name+'_nojob')
    if g2.FUSED[0]:
        lf=a.newlab(name+'_cf'); a('s_cmp_eq_u32 s%d, 0'%S_PW); a('s_cbranch_scc0 %s'%lf)
        add64(a,S_T2,S_WS,WS_FL); srd(a,SRD_O,S_T2,S_T2+1,0x4000)
        a('s_lshl_b32 s%d, s2, 5'%S_T0); a('v_mov_b32 v12, 0'); a('v_lshlrev_b32 v13, 13, v0'); a('s_mov_b32 exec_lo, 3'); a('s_mov_b32 exec_hi, 0')
        a('buffer_store_dword v12, v13, s[%d:%d], s%d offen sc1'%(SRD_O,SRD_O+3,S_T0)); a('s_mov_b64 exec, -1')
        a.lab(lf)
    a('s_load_dwordx2 s[86:87], s[0:1], 56'); a('s_load_dwordx4 s[96:99], s[0:1], 8'); a('s_load_dwordx2 s[88:89], s[0:1], 72')
    a('v_lshrrev_b32 v4, 4, v0'); a('v_and_b32 v5, 15, v0'); a('v_lshlrev_b32 v5, 7, v5')
    a('s_lshl_b32 s%d, s%d, 9'%(S_T0,S_G)); a('s_lshl_b32 s%d, s%d, 4'%(S_T1,S_J)); a('s_add_u32 s%d, s%d, s%d'%(S_T0,S_T0,S_T1)); a('v_add_u32 v6, s%d, v4'%S_T0)
    a('v_lshlrev_b32 v6, 12, v6'); a('v_add_u32 v6, v6, v5'); a('s_lshl_b32 s%d, s%d, 11'%(S_T0,S_HALF)); a('v_add_u32 v6, s%d, v6'%S_T0)
    a('s_mul_i32 s%d, s%d, 288'%(S_T0,S_G)); a('s_mul_i32 s%d, s%d, 9'%(S_T1,S_J)); a('s_add_u32 s%d, s%d, s%d'%(S_T0,S_T0,S_T1)); a('v_add_u32 v7, s%d, v4'%S_T0)
    a('v_lshlrev_b32 v7, 12, v7'); a('v_add_u32 v7, v7, v5')
    a('v_and_b32 v21, 15, v0'); a('v_lshlrev_b32 v21, 4, v21'); a('v_mov_b32 v20, 0')
    for r in (16,17,18,19): a('v_mov_b32 v%d, 0'%r)
    a('s_waitcnt lgkmcnt(0)')
    srd(a,SRD_W,86,87,2048*4096)
    a('s_cmp_eq_u32 s%d, 0'%S_HALF); a('s_cselect_b32 s%d, s96, s98'%S_T2); a('s_cselect_b32 s%d, s97, s99'%S_T3); srd(a,SRD_O2,S_T2,S_T3,2048*4096)
    if EXP.get('cpf'):
        l=a.newlab(name+'_cp'); a('s_cmp_eq_u32 s%d, 2'%S_PW); a('s_cbranch_scc0 %s'%l)
        lb=a.newlab(name+'_pc')
        a('s_getpc_b64 s[90:91]'); a.lab(lb)
        a('s_sub_u32 s90, s90, %s-KSTART'%lb); a('s_subb_u32 s91, s91, 0')
        srd(a,SRD_O,90,91,'KEND-KSTART')
        a('s_lshl_b32 s%d, s%d, 11'%(S_SO,S_J)); a('v_lshlrev_b32 v11, 7, v0'); a('s_mov_b32 exec_hi, 0'); a('s_mov_b32 exec_lo, 0xffff')
        a('buffer_load_dword v10, v11, s[%d:%d], s%d offen'%(SRD_O,SRD_O+3,S_SO)); a('s_mov_b64 exec, -1')
        a.lab(l)
    if EXP.get('tlbw'):
        l=a.newlab(name+'_tw'); a('s_cmp_eq_u32 s%d, 1'%S_PW); a('s_cbranch_scc0 %s'%l)
        a('s_load_dwordx2 s[90:91], s[0:1], 80'); a('v_lshlrev_b32 v11, 21, v0'); a('s_lshl_b32 s%d, s2, 7'%S_SO); a('s_and_b32 s%d, s%d, 0xffff'%(S_SO,S_SO))
        srd(a,SRD_O,S_WS,S_WS+1,0x1400000)
        a('s_mov_b32 exec_hi, 0'); a('s_mov_b32 exec_lo, 0x3ff')
        a('buffer_load_dword v10, v11, s[%d:%d], s%d offen'%(SRD_O,SRD_O+3,S_SO))
        a('s_waitcnt lgkmcnt(0)')
        srd(a,SRD_O,90,91,2048*1280)
        a('v_lshlrev_b32 v11, 20, v0'); a('s_mov_b32 exec_lo, 7')
        a('buffer_load_dword v10, v11, s[%d:%d], s%d offen'%(SRD_O,SRD_O+3,S_SO)); a('s_mov_b64 exec, -1')
        a.lab(l)
    if EXP.get('epf'):
        l=a.newlab(name+'_e3'); a('s_cmp_eq_u32 s%d, 3'%S_PW); a('s_cbranch_scc0 %s'%l)
        srd(a,SRD_O,S_WIN,S_WIN+1,640*3456)
        a('s_mul_i32 s%d, s2, %d'%(S_SO,68*128)); a('v_lshlrev_b32 v11, 7, v0')
        a('buffer_load_dword v10, v11, s[%d:%d], s%d offen'%(SRD_O,SRD_O+3,S_SO))
        a('s_add_u32 s%d, s%d, 8192'%(S_SO,S_SO)); a('s_mov_b32 exec_hi, 0'); a('s_mov_b32 exec_lo, 15')
        a('buffer_load_dword v10, v11, s[%d:%d], s%d offen'%(SRD_O,SRD_O+3,S_SO)); a('s_mov_b64 exec, -1')
        a.lab(l)
        l=a.newlab(name+'_e2'); a('s_cmp_eq_u32 s%d, 2'%S_PW); a('s_cbranch_scc0 %s'%l)
        a('s_cmp_lt_u32 s2, 128'); a('s_cselect_b32 s%d, s%d, s%d'%(S_T2,S_WDRE,S_WDIM)); a('s_cselect_b32 s%d, s%d, s%d'%(S_T3,S_WDRE+1,S_WDIM+1))
        srd(a,SRD_O,S_T2,S_T3,321*1280)
        a('s_and_b32 s%d, s2, 127'%S_SO); a('s_mul_i32 s%d, s%d, %d'%(S_SO,S_SO,25*128)); a('s_add_u32 s%d, s%d, 1280'%(S_SO,S_SO)); a('v_lshlrev_b32 v11, 7, v0')
        a('s_mov_b32 exec_hi, 0'); a('s_mov_b32 exec_lo, 0x1ffffff')
        a('buffer_load_dword v10, v11, s[%d:%d], s%d offen'%(SRD_O,SRD_O+3,S_SO)); a('s_mov_b64 exec, -1')
        a.lab(l)
    if isZ:
        a('v_and_b32 v120, 15, v0'); a('v_lshrrev_b32 v121, 4, v0'); a('v_lshrrev_b32 v122, 2, v120'); a('v_lshl_add_u32 v122, v121, 2, v122')
        a('v_mul_u32_u24 v122, 288, v122'); a('v_and_b32 v120, 3, v120'); a('v_lshl_add_u32 v122, v120, 3, v122')
        a('s_and_b32 s%d, s%d, 1'%(S_T0,S_PW)); a('s_mul_i32 s%d, s%d, 9216'%(S_T0,S_T0)); a('s_cmp_lt_u32 s%d, 2'%S_PW); a('s_cselect_b32 s%d, 160, 0'%S_T1)
        a('s_add_u32 s%d, s%d, s%d'%(S_T0,S_T0,S_T1)); a('s_add_u32 s%d, s%d, 16384'%(S_T0,S_T0)); a('v_add_u32 v%d, s%d, v122'%(CA,S_T0))
        for k in range(4): a('v_mov_b32 v%d, 0x3f803f80'%(ONES+k))
        for k in range(20): a('v_mov_b32 v%d, 0'%(CACC+k))
        for k in range(40): a('v_mov_b32 v%d, 0'%(CF[0]+k))
    def reads(st):
        a('v_add_u32 v%d, s%d, v%d'%(VT,S_SLC,CA))
        lab=a.newlab(name+'_c')
        for j in range(5):
            if j==4: a('s_cmp_lt_u32 s%d, 2'%S_PW); a('s_cbranch_scc1 %s'%lab)
            for b in range(2): a('ds_read_b64_tr_b16 %s, v%d offset:%d'%(vr(CF[st]+4*j+2*b,2),VT,b*4608+j*32))
        a.lab(lab)
    def compute(st):
        for j in range(5):
            a('v_mfma_f32_16x16x32_bf16 %s, %s, %s, %s'%(vr(CACC+4*j,4),vr(ONES,4),vr(CF[st]+4*j,4),vr(CACC+4*j,4)))
    def xpf(k,pol):
        if k<4:
            a('s_mov_b32 s%d, %d'%(S_SO,k*4*4096)); a('buffer_load_dword v10, v6, s[%d:%d], s%d offen%s'%(SRD_W,SRD_W+3,S_SO,pol))
        else:
            k-=4
            a('s_mov_b32 s%d, %d'%(S_SO,k*4*4096))
            if k==2: a('s_mov_b32 exec_hi, 0'); a('s_mov_b32 exec_lo, 0xffff')
            a('buffer_load_dword v10, v7, s[%d:%d], s%d offen%s'%(SRD_O2,SRD_O2+3,S_SO,pol))
            if k==2: a('s_mov_b64 exec, -1')
    def wout_pf():
        srd(a,SRD_O,88,89,864*1280)
        a('s_mul_i32 s%d, s2, %d'%(S_SO,34*128)); a('v_lshlrev_b32 v11, 7, v0'); a('s_mov_b32 exec_hi, 3')
        a('buffer_load_dword v10, v11, s[%d:%d], s%d offen'%(SRD_O,SRD_O+3,S_SO)); a('s_mov_b32 exec_hi, -1')
    TBL=16
    def side(i):
        pol=' nt' if not EXP.get('xpfdef') else ''
        if not (EXP.get('noxpf') or EXP.get('noxpf1')) and EXP.get('pfmid') and EXP.get('pf0',2)<=i<=EXP.get('pf0',2)+6:
            l=a.newlab(name+'_p'); a('s_cmp_eq_u32 s%d, 1'%S_PW); a('s_cbranch_scc0 %s'%l)
            kk=i-EXP.get('pf0',2)
            if not ((EXP.get('pfwonly') or EXP.get('pfsplit')==1) and kk>=4) and not (EXP.get('pfsplit')==2 and kk<4): xpf(kk,pol)
            a.lab(l)
        if EXP.get('wo1') and i==EXP.get('wo1'):
            l=a.newlab(name+'_wo'); a('s_cmp_eq_u32 s%d, 2'%S_PW); a('s_cbranch_scc0 %s'%l); wout_pf(); a.lab(l)
        if i==2:
            l=a.newlab(name+'_a'); a('s_cmp_eq_u32 s%d, 0'%S_PW); a('s_cbranch_scc0 %s'%l)
            a('s_waitcnt vmcnt(0)')
            a('v_mov_b32 v4, 1'); a('s_and_b32 s%d, s2, 15'%S_T0); a('s_lshl_b32 s%d, s%d, 4'%(S_T0,S_T0)); a('v_mov_b32 v3, s%d'%S_T0)
            a('v_cmp_eq_u32 vcc, 0, v0'); a('s_and_saveexec_b64 s[%d:%d], vcc'%(S_EX,S_EX+1))
            a('buffer_atomic_add v4, v3, s[%d:%d], 0 offen sc1'%(SRD_D,SRD_D+3))
            a('s_mov_b64 exec, s[%d:%d]'%(S_EX,S_EX+1))
            a.lab(l)
        if i==5:
            l=a.newlab(name+'_q'); a('s_cmp_eq_u32 s%d, 0'%S_PW); a('s_cbranch_scc0 %s'%l)
            a('buffer_load_dword v20, v21, s[%d:%d], 0 offen sc1'%(SRD_D,SRD_D+3))
            a.lab(l)
        if i==7:
            l=a.newlab(name+'_r'); a('s_cmp_eq_u32 s%d, 0'%S_PW); a('s_cbranch_scc0 %s'%l)
            a('s_mov_b32 s%d, 0'%S_SO2)
            lp=a.newlab(name+'_pl'); ok=a.newlab(name+'_ok')
            a.lab(lp)
            a('s_waitcnt vmcnt(0)'); a('v_cmp_gt_u32 vcc, 16, v20'); a('s_nop 1'); a('s_cmp_eq_u64 vcc, 0'); a('s_cbranch_scc1 %s'%ok)
            a('buffer_load_dword v20, v21, s[%d:%d], 0 offen sc1'%(SRD_D,SRD_D+3))
            a('s_add_u32 s%d, s%d, 1'%(S_SO2,S_SO2)); a('s_cmp_lt_u32 s%d, %d'%(S_SO2,POLL_BOUND)); a('s_cbranch_scc1 %s'%lp)
            a.lab(ok)
            add64(a,S_T2,S_WS,WS_LN1); srd(a,SRD_O,S_T2,S_T2+1,16384)
            if isZ:
                a('s_lshl_b32 s%d, s%d, 7'%(S_T0,S_RB)); a('v_add_u32 v22, s%d, v0'%S_T0); a('v_add_u32 v23, 64, v22')
            else:
                a('s_lshl_b32 s%d, s%d, 6'%(S_T0,S_RB)); a('v_add_u32 v22, s%d, v0'%S_T0); a('v_sub_u32 v23, 2048, v22')
                a('v_cmp_eq_u32 vcc, 2048, v23'); a('v_mov_b32 v24, 1024'); a('s_nop 0'); a('v_cndmask_b32 v23, v23, v24, vcc')
            a('v_lshlrev_b32 v22, 3, v22'); a('v_lshlrev_b32 v23, 3, v23')
            a('buffer_load_dwordx2 v[16:17], v22, s[%d:%d], 0 offen sc1'%(SRD_O,SRD_O+3)); a('buffer_load_dwordx2 v[18:19], v23, s[%d:%d], 0 offen sc1'%(SRD_O,SRD_O+3))
            a.lab(l)
    a('s_mov_b32 s%d, 0'%S_SLC)
    for i in range(n):
        a('s_barrier')
        if isZ and not EXP.get('nocs'): reads(i&1)
        side(i)
        if isZ and not EXP.get('nocs'):
            compute((i&1)^1); a('s_waitcnt lgkmcnt(0)'); slot_advance(a,S_SLC,SL)
    if isZ: compute((n-1)&1)
    if not (EXP.get('noxpf') or EXP.get('noxpf1') or EXP.get('pflate') or (EXP.get('pfmid') and not EXP.get('pfsplit'))):
        l=a.newlab(name+'_pe'); a('s_cmp_eq_u32 s%d, 1'%S_PW); a('s_cbranch_scc0 %s'%l)
        ks=range(4 if EXP.get('pfwonly') else 7)
        if EXP.get('pfsplit')==1: ks=range(4,7)
        if EXP.get('pfsplit')==2: ks=range(0,4)
        for k in ks: xpf(k,' nt' if not EXP.get('xpfdef') else '')
        a.lab(l)
    gc.stamp(a,3)
    l=a.newlab(name+'_w'); a('s_cmp_eq_u32 s%d, 0'%S_PW); a('s_cbranch_scc0 %s'%l)
    a('s_waitcnt vmcnt(0)'); a('v_lshlrev_b32 v26, 2, v0'); a('v_add_u32 v26, %d, v26'%T_R)
    a('ds_write_b32 v26, v16'); a('ds_write_b32 v26, v17 offset:512'); a('ds_write_b32 v26, v18 offset:256'); a('ds_write_b32 v26, v19 offset:768')
    a.lab(l)
    if isZ:
        a('s_and_b32 s%d, s%d, 1'%(S_T0,S_PW)); a('s_mul_i32 s%d, s%d, 640'%(S_T0,S_T0)); a('s_cmp_lt_u32 s%d, 2'%S_PW); a('s_cselect_b32 s%d, 320, 0'%S_T1)
        a('s_add_u32 s%d, s%d, s%d'%(S_T0,S_T0,S_T1)); a('v_and_b32 v26, 15, v0'); a('v_lshlrev_b32 v26, 2, v26'); a('v_add_u32 v26, s%d, v26'%S_T0); a('v_add_u32 v26, %d, v26'%T_CS0)
        a('s_nop 7')
        lab=a.newlab(name+'_f')
        for j in range(5):
            if j==4: a('s_cmp_lt_u32 s%d, 2'%S_PW); a('s_cbranch_scc1 %s'%lab)
            a('ds_write_b32 v26, v%d offset:%d'%(CACC+4*j,j*64))
        a.lab(lab)

    def late():
        if EXP.get('pflate') and not (EXP.get('noxpf') or EXP.get('noxpf1')):
            l=a.newlab(name+'_pl8'); a('s_cmp_eq_u32 s%d, 1'%S_PW); a('s_cbranch_scc0 %s'%l)
            ks=range(7)
            if EXP.get('pfsplit')==1: ks=range(4,7)
            if EXP.get('pfsplit')==2: ks=range(0,4)
            for k in ks: xpf(k,' nt' if not EXP.get('xpfdef') else '')
            a.lab(l)
    return late

def worker2(a):
    import g3_z as z
    name='Z2w'; n=NK1; SL=z.SL2; NSz=z.NS2
    CA=14; VT=15; CF=[48,60]; CACC=72; ONES=84
    srd(a,SRD_D,S_DBG,S_DBG+1,256)
    add64(a,S_T2,S_WS,WS_GR); srd(a,SRD_G,S_T2,S_T2+1,16*12288)
    a('s_cmp_eq_u32 s%d, 0'%S_PW); a('s_cbranch_scc0 %s_nojob'%name)
    a('s_mul_i32 s%d, s%d, 12288'%(S_SO,S_RB)); a('s_lshl_b32 s%d, s%d, 1'%(S_T0,S_CT)); a('s_add_u32 s%d, s%d, s%d'%(S_T0,S_T0,S_PAR)); a('s_lshl_b32 s%d, s%d, 10'%(S_T0,S_T0))
    a('s_add_u32 s%d, s%d, s%d'%(S_SO,S_SO,S_T0))
    for k in range(4): a('v_mov_b32 v%d, -1'%(8+k))
    a('v_lshlrev_b32 v3, 4, v0')
    a('buffer_store_dwordx4 v[8:11], v3, s[%d:%d], s%d offen sc1'%(SRD_G,SRD_G+3,S_SO))
    if g2.FUSED[0]:
        add64(a,S_T2,S_WS,WS_FL); srd(a,SRD_O,S_T2,S_T2+1,0x4000)
        a('s_lshl_b32 s%d, s2, 5'%S_T0); a('v_mov_b32 v12, 0'); a('v_lshlrev_b32 v13, 13, v0'); a('s_mov_b32 exec_lo, 3'); a('s_mov_b32 exec_hi, 0')
        a('buffer_store_dword v12, v13, s[%d:%d], s%d offen sc1'%(SRD_O,SRD_O+3,S_T0)); a('s_mov_b64 exec, -1')
    a.lab(name+'_nojob')
    a('s_load_dwordx2 s[86:87], s[0:1], 56'); a('s_load_dwordx4 s[96:99], s[0:1], 8'); a('s_load_dwordx2 s[88:89], s[0:1], 72')
    a('v_lshrrev_b32 v4, 4, v0'); a('v_and_b32 v5, 15, v0'); a('v_lshlrev_b32 v5, 7, v5')
    a('s_lshl_b32 s%d, s%d, 9'%(S_T0,S_G)); a('s_lshl_b32 s%d, s%d, 4'%(S_T1,S_J)); a('s_add_u32 s%d, s%d, s%d'%(S_T0,S_T0,S_T1)); a('v_add_u32 v6, s%d, v4'%S_T0)
    a('v_lshlrev_b32 v6, 12, v6'); a('v_add_u32 v6, v6, v5'); a('s_lshl_b32 s%d, s%d, 11'%(S_T0,S_HALF)); a('v_add_u32 v6, s%d, v6'%S_T0)
    a('s_mul_i32 s%d, s%d, 288'%(S_T0,S_G)); a('s_mul_i32 s%d, s%d, 9'%(S_T1,S_J)); a('s_add_u32 s%d, s%d, s%d'%(S_T0,S_T0,S_T1)); a('v_add_u32 v7, s%d, v4'%S_T0)
    a('v_lshlrev_b32 v7, 12, v7'); a('v_add_u32 v7, v7, v5')
    a('v_and_b32 v21, 15, v0'); a('v_lshlrev_b32 v21, 4, v21'); a('v_mov_b32 v20, 0')
    for r in (16,17,18,19): a('v_mov_b32 v%d, 0'%r)
    a('s_waitcnt lgkmcnt(0)')
    srd(a,SRD_W,86,87,2048*4096)
    a('s_cmp_eq_u32 s%d, 0'%S_HALF); a('s_cselect_b32 s%d, s96, s98'%S_T2); a('s_cselect_b32 s%d, s97, s99'%S_T3); srd(a,SRD_O2,S_T2,S_T3,2048*4096)
    a('v_and_b32 v120, 15, v0'); a('v_lshrrev_b32 v121, 4, v0'); a('v_lshrrev_b32 v122, 2, v120'); a('v_lshl_add_u32 v122, v121, 2, v122')
    a('v_mul_u32_u24 v122, 160, v122'); a('v_and_b32 v120, 3, v120'); a('v_lshl_add_u32 v122, v120, 3, v122')
    a('s_and_b32 s%d, s%d, 1'%(S_T0,S_PW)); a('s_mul_i32 s%d, s%d, 5120'%(S_T0,S_T0)); a('s_cmp_lt_u32 s%d, 2'%S_PW); a('s_cselect_b32 s%d, 0, 96'%S_T1)
    a('s_add_u32 s%d, s%d, s%d'%(S_T0,S_T0,S_T1)); a('s_add_u32 s%d, s%d, 16384'%(S_T0,S_T0)); a('v_add_u32 v%d, s%d, v122'%(CA,S_T0))
    for k in range(4): a('v_mov_b32 v%d, 0x3f803f80'%(ONES+k))
    for k in range(12): a('v_mov_b32 v%d, 0'%(CACC+k))
    for k in range(24): a('v_mov_b32 v%d, 0'%(CF[0]+k))
    def reads(st):
        a('v_add_u32 v%d, s%d, v%d'%(VT,S_SLC,CA))
        lab=a.newlab(name+'_c')
        for j in range(3):
            if j==2: a('s_cmp_lt_u32 s%d, 2'%S_PW); a('s_cbranch_scc0 %s'%lab)
            for b in range(2): a('ds_read_b64_tr_b16 %s, v%d offset:%d'%(vr(CF[st]+4*j+2*b,2),VT,b*2560+j*32))
        a.lab(lab)
    def compute(st):
        for j in range(3): a('v_mfma_f32_16x16x32_bf16 %s, %s, %s, %s'%(vr(CACC+4*j,4),vr(ONES,4),vr(CF[st]+4*j,4),vr(CACC+4*j,4)))
    def cs_write(T):
        a('s_and_b32 s%d, s%d, 1'%(S_T0,S_PW)); a('s_mul_i32 s%d, s%d, 320'%(S_T0,S_T0)); a('s_cmp_lt_u32 s%d, 2'%S_PW); a('s_cselect_b32 s%d, 0, 192'%S_T1)
        a('s_add_u32 s%d, s%d, s%d'%(S_T0,S_T0,S_T1)); a('v_and_b32 v26, 15, v0'); a('v_lshlrev_b32 v26, 2, v26'); a('v_add_u32 v26, s%d, v26'%S_T0); a('v_add_u32 v26, %d, v26'%T)
        a('s_nop 7')
        lab=a.newlab(name+'_f')
        for j in range(3):
            if j==2: a('s_cmp_lt_u32 s%d, 2'%S_PW); a('s_cbranch_scc0 %s'%lab)
            a('ds_write_b32 v26, v%d offset:%d'%(CACC+4*j,j*64))
        a.lab(lab)
    def xpf(k,pol):
        if k<4:
            a('s_mov_b32 s%d, %d'%(S_SO,k*4*4096)); a('buffer_load_dword v10, v6, s[%d:%d], s%d offen%s'%(SRD_W,SRD_W+3,S_SO,pol))
        else:
            k-=4
            a('s_mov_b32 s%d, %d'%(S_SO,k*4*4096))
            if k==2: a('s_mov_b32 exec_hi, 0'); a('s_mov_b32 exec_lo, 0xffff')
            a('buffer_load_dword v10, v7, s[%d:%d], s%d offen%s'%(SRD_O2,SRD_O2+3,S_SO,pol))
            if k==2: a('s_mov_b64 exec, -1')
    def only(w,fn):
        l=a.newlab(name+'_o'); a('s_cmp_eq_u32 s%d, %d'%(S_PW,w)); a('s_cbranch_scc0 %s'%l); fn(); a.lab(l)
    pol='' if EXP.get('xpfdef') else ' nt'
    PG=88
    def side(i):
        if not EXP.get('noxpf'):
            ws0=EXP.get('z2ws',2); wp0=EXP.get('z2wp',12)
            if ws0<=i<ws0+3: only(3,lambda: xpf(4+i-ws0,pol))
            if wp0<=i<wp0+4: only(3,lambda: xpf(i-wp0,pol))
            if EXP.get('wo1') and i==EXP.get('wo1'):
                def wo():
                    srd(a,SRD_O,88,89,864*1280)
                    a('s_mul_i32 s%d, s2, %d'%(S_SO,34*128)); a('v_lshlrev_b32 v11, 7, v0'); a('s_mov_b32 exec_hi, 3')
                    a('buffer_load_dword v10, v11, s[%d:%d], s%d offen'%(SRD_O,SRD_O+3,S_SO)); a('s_mov_b32 exec_hi, -1')
                only(3,wo)
        if i==2:
            def cnt():
                a('s_waitcnt vmcnt(0)')
                a('v_mov_b32 v4, 1'); a('s_and_b32 s%d, s2, 15'%S_T0); a('s_lshl_b32 s%d, s%d, 4'%(S_T0,S_T0)); a('v_mov_b32 v3, s%d'%S_T0)
                a('v_cmp_eq_u32 vcc, 0, v0'); a('s_and_saveexec_b64 s[%d:%d], vcc'%(S_EX,S_EX+1))
                a('buffer_atomic_add v4, v3, s[%d:%d], 0 offen sc1'%(SRD_D,SRD_D+3)); a('s_mov_b64 exec, s[%d:%d]'%(S_EX,S_EX+1))
            only(0,cnt)
        if i==5: only(0,lambda: a('buffer_load_dword v20, v21, s[%d:%d], 0 offen sc1'%(SRD_D,SRD_D+3)))
        if i==7:
            def tab():
                a('s_mov_b32 s%d, 0'%S_SO2)
                lp=a.newlab(name+'_pl'); ok=a.newlab(name+'_ok')
                a.lab(lp)
                a('s_waitcnt vmcnt(0)'); a('v_cmp_gt_u32 vcc, 16, v20'); a('s_nop 1'); a('s_cmp_eq_u64 vcc, 0'); a('s_cbranch_scc1 %s'%ok)
                a('buffer_load_dword v20, v21, s[%d:%d], 0 offen sc1'%(SRD_D,SRD_D+3))
                a('s_add_u32 s%d, s%d, 1'%(S_SO2,S_SO2)); a('s_cmp_lt_u32 s%d, %d'%(S_SO2,POLL_BOUND)); a('s_cbranch_scc1 %s'%lp)
                a.lab(ok)
                add64(a,S_T2,S_WS,WS_LN1); srd(a,SRD_O,S_T2,S_T2+1,16384)
                a('s_lshl_b32 s%d, s%d, 7'%(S_T0,S_RB)); a('v_add_u32 v22, s%d, v0'%S_T0); a('v_add_u32 v23, 64, v22')
                a('v_lshlrev_b32 v22, 3, v22'); a('v_lshlrev_b32 v23, 3, v23')
                a('buffer_load_dwordx2 v[16:17], v22, s[%d:%d], 0 offen sc1'%(SRD_O,SRD_O+3)); a('buffer_load_dwordx2 v[18:19], v23, s[%d:%d], 0 offen sc1'%(SRD_O,SRD_O+3))
            only(0,tab)
        if i==10:
            def pub(r0):
                a('v_lshlrev_b32 v26, 2, v0'); a('v_add_u32 v26, %d, v26'%(z.T_PS+r0*4))
                a('ds_read_b32 v28, v26'); a('ds_read_b32 v29, v26 offset:512'); a('ds_read_b32 v30, v26 offset:1024'); a('ds_read_b32 v31, v26 offset:1536')
                a('s_mul_i32 s%d, s%d, 12288'%(S_SO,S_RB)); a('s_lshl_b32 s%d, s%d, 1'%(S_T0,S_CT)); a('s_add_u32 s%d, s%d, s%d'%(S_T0,S_T0,S_PAR)); a('s_lshl_b32 s%d, s%d, 10'%(S_T0,S_T0))
                a('s_add_u32 s%d, s%d, s%d'%(S_T0,S_T0,S_SO)); a('s_add_u32 s%d, s%d, %d'%(S_T0,S_T0,r0*8))
                a('v_lshlrev_b32 v27, 3, v0'); a('s_waitcnt lgkmcnt(0)')
                a('v_add_f32 v32, v28, v29'); a('v_add_f32 v33, v30, v31')
                a('buffer_store_dwordx2 v[32:33], v27, s[%d:%d], s%d offen sc1'%(SRD_G,SRD_G+3,S_T0))
            only(1,lambda: pub(0)); only(2,lambda: pub(64))
        def gr_issue(r0):
            a('s_mul_i32 s%d, s%d, 12288'%(S_SO,S_RB)); a('s_add_u32 s%d, s%d, %d'%(S_SO,S_SO,r0*8)); a('v_lshlrev_b32 v27, 3, v0'); a('v_add_u32 v34, 4096, v27'); a('v_add_u32 v35, 8192, v27')
            for k in range(12): a('buffer_load_dwordx2 %s, v%d, s[%d:%d], s%d offen offset:%d sc1'%(vr(PG+2*k,2),(27,34,35)[k//4],SRD_G,SRD_G+3,S_SO,(k%4)*1024))
        if i==EXP.get('z2pi',13):
            only(1,lambda: gr_issue(0)); only(2,lambda: gr_issue(64))
        if i==15:
            def fin(r0):
                lp=a.newlab(name+'_gp'); ok=a.newlab(name+'_gk')
                a('s_mov_b32 s%d, 0'%S_SO2)
                a.lab(lp)
                a('s_waitcnt vmcnt(0)')
                a('v_max3_u32 v36, v%d, v%d, v%d'%(PG,PG+1,PG+2))
                for k in range(3,24,2):
                    a('v_max3_u32 v36, v36, v%d, v%d'%(PG+k,PG+k+1) if k+1<24 else 'v_max_u32 v36, v36, v%d'%(PG+k))
                a('v_cmp_eq_u32 vcc, -1, v36'); a('s_nop 1'); a('s_cmp_eq_u64 vcc, 0'); a('s_cbranch_scc1 %s'%ok)
                gr_issue(r0)
                a('s_add_u32 s%d, s%d, 1'%(S_SO2,S_SO2)); a('s_cmp_lt_u32 s%d, %d'%(S_SO2,POLL_BOUND)); a('s_cbranch_scc1 %s'%lp)
                a('s_waitcnt vmcnt(0)')
                a.lab(ok)
                for k in range(1,12): a('v_add_f32 v%d, v%d, v%d'%(PG,PG,PG+2*k)); a('v_add_f32 v%d, v%d, v%d'%(PG+1,PG+1,PG+2*k+1))
                a('v_mul_f32 v%d, 0x%x, v%d'%(PG,f2u(1.0/864),PG)); a('v_mul_f32 v%d, 0x%x, v%d'%(PG+1,f2u(1.0/864),PG+1))
                a('v_fma_f32 v%d, -v%d, v%d, v%d'%(PG+1,PG,PG,PG+1)); a('v_max_f32 v%d, 0, v%d'%(PG+1,PG+1)); a('v_add_f32 v%d, 0x%x, v%d'%(PG+1,f2u(1e-5),PG+1))
                a('v_rsq_f32 v%d, v%d'%(PG+2,PG+1)); a('s_nop 0'); a('v_mul_f32 v%d, v%d, v%d'%(PG+3,PG,PG+2)); a('v_sub_f32 v%d, 0, v%d'%(PG+3,PG+3))
                a('v_lshlrev_b32 v26, 2, v0'); a('v_add_u32 v26, %d, v26'%(z.T_R2+r0*4))
                a('ds_write_b32 v26, v%d'%(PG+2)); a('ds_write_b32 v26, v%d offset:512'%(PG+3))
            only(1,lambda: fin(0)); only(2,lambda: fin(64))
    a('s_mov_b32 s%d, 0'%S_SLC)
    for i in range(2*n):
        if i==n:
            compute((n-1)&1); cs_write(z.T_CS1)
            def tw():
                a('s_waitcnt vmcnt(0)'); a('v_lshlrev_b32 v26, 2, v0'); a('v_add_u32 v26, %d, v26'%T_R)
                a('ds_write_b32 v26, v16'); a('ds_write_b32 v26, v17 offset:512'); a('ds_write_b32 v26, v18 offset:256'); a('ds_write_b32 v26, v19 offset:768')
            only(0,tw)
            a('s_waitcnt lgkmcnt(0)')
            for k in range(12): a('v_mov_b32 v%d, 0'%(CACC+k))
            for k in range(24): a('v_mov_b32 v%d, 0'%(CF[0]+k))
            a('s_barrier')
        a('s_barrier')
        reads(i&1)
        side(i)
        compute((i&1)^1); a('s_waitcnt lgkmcnt(0)'); slot_advance(a,S_SLC,SL,NSz)
    compute((2*n-1)&1); cs_write(z.T_CS2)
    gc.stamp(a,3)
    a('s_waitcnt lgkmcnt(0)'); a('s_barrier')

def krot(a):
    if EXP.get('norot'): a('s_mov_b32 s%d, 0'%S_T0); return
    a('s_mul_i32 s%d, s%d, 5'%(S_T0,S_G)); a('s_lshr_b32 s%d, s%d, 1'%(S_T0,S_T0))
    a('s_mul_i32 s%d, s%d, %d'%(S_T1,S_HALF,EXP.get('rothalf',4))); a('s_add_u32 s%d, s%d, s%d'%(S_T0,S_T0,S_T1))
    a('s_cmp_ge_u32 s%d, 10'%S_T0); a('s_cselect_b32 s%d, 10, 0'%S_T1); a('s_sub_u32 s%d, s%d, s%d'%(S_T0,S_T0,S_T1))

def gen_k1(a,kname):
    kernel_head(a,kname,'K1')
    a('s_load_dwordx2 s[%d:%d], s[0:1], 0'%(S_X,S_X+1))
    a('s_load_dwordx4 s[%d:%d], s[0:1], 24'%(S_WDRE,S_WDRE+3))
    a('s_load_dwordx2 s[%d:%d], s[0:1], 48'%(S_WIN,S_WIN+1))
    a('s_load_dwordx2 s[%d:%d], s[0:1], 88'%(S_DBG,S_DBG+1))
    a('s_load_dwordx2 s[%d:%d], s[0:1], 96'%(S_WS,S_WS+1))
    wave_setup(a,'K1')
    a('s_and_b32 s%d, s2, 7'%S_XCD); a('s_lshr_b32 s%d, s2, 3'%S_J)
    a('s_lshr_b32 s%d, s%d, 1'%(S_G,S_XCD)); a('s_and_b32 s%d, s%d, 1'%(S_HALF,S_XCD))
    a('s_cmp_ge_u32 s%d, 24'%S_J); a('s_cbranch_scc1 K1A_entry')
    a('s_mul_i32 s%d, s%d, 43'%(S_T0,S_J)); a('s_lshr_b32 s%d, s%d, 8'%(S_T0,S_T0))
    a('s_mul_i32 s%d, s%d, 6'%(S_T1,S_T0)); a('s_sub_u32 s%d, s%d, s%d'%(S_T1,S_J,S_T1))
    a('s_and_b32 s%d, s%d, 1'%(S_PAR,S_T1)); a('s_lshr_b32 s%d, s%d, 1'%(S_T1,S_T1)); a('s_mul_i32 s%d, s%d, 3'%(S_CT,S_HALF)); a('s_add_u32 s%d, s%d, s%d'%(S_CT,S_CT,S_T1))
    a('s_lshl_b32 s%d, s%d, 1'%(S_T1,S_G)); a('s_add_u32 s%d, s%d, s%d'%(S_T2,S_T1,S_T0))
    a('s_sub_u32 s%d, s%d, s%d'%(S_T3,S_T0,S_T1)); a('s_add_u32 s%d, s%d, 12'%(S_T3,S_T3))
    a('s_cmp_lt_u32 s%d, 2'%S_T0); a('s_cselect_b32 s%d, s%d, s%d'%(S_RB,S_T2,S_T3))
    if EXP.get('two'):
        import g3_z
        g3_z.gen_z(a)
    a('s_cmp_ge_u32 s%d, 12'%S_WAVE); a('s_cbranch_scc1 K1Z_work')
    a('s_cmp_ge_u32 s%d, 8'%S_WAVE); a('s_cbranch_scc1 K1Z_prod')
    ACC=16; FA=56; FB=84; XA=[112,113]; WA=116
    a('s_and_b32 s%d, s%d, 3'%(S_PW,S_WAVE)); a('s_lshr_b32 s%d, s%d, 2'%(S_H,S_WAVE))
    a('v_and_b32 v1, 15, v0'); a('v_lshrrev_b32 v2, 4, v0')
    a('v_and_b32 v3, 7, v0'); a('v_xor_b32 v3, v3, v2'); a('v_lshlrev_b32 v3, 4, v3'); a('v_lshl_add_u32 v3, v1, 7, v3')
    a('s_lshl_b32 s%d, s%d, 12'%(S_T0,S_PW)); a('v_add_u32 v%d, s%d, v3'%(XA[0],S_T0)); a('v_xor_b32 v%d, 64, v%d'%(XA[1],XA[0]))
    a('v_lshrrev_b32 v3, 2, v1'); a('v_lshl_add_u32 v3, v2, 2, v3'); a('v_mul_u32_u24 v3, 288, v3'); a('v_and_b32 v4, 3, v1'); a('v_lshl_add_u32 v3, v4, 3, v3')
    a('s_mul_i32 s%d, s%d, 160'%(S_T0,S_H)); a('v_add_u32 v%d, s%d, v3'%(WA,S_T0))
    ln1_row(a)
    for k in range(40): a('v_mov_b32 v%d, 0'%(ACC+k))
    ln1_row_finish(a)
    def acc(i,j): return ACC+(j*2+i)*4
    a('s_cmp_eq_u32 s%d, s%d'%(S_H,S_PAR)); a('s_cselect_b32 s%d, 0, 2'%S_T0); a('s_add_u32 s%d, s%d, s%d'%(S_T0,S_T0,S_H))
    for t,lab in ((1,'K1c_z2_1'),(2,'K1c_z1_0'),(3,'K1c_z1_1')):
        a('s_cmp_eq_u32 s%d, %d'%(S_T0,t)); a('s_cbranch_scc1 %s'%lab)
    for role in ('z2','z1'):
      for h in range(2):
        nj=5-h; nm='K1c_%s_%d'%(role,h)
        a.lab(nm)
        def rd(st,sub,nj=nj):
            F=FA if st==0 else FB; m=[]
            for i in range(2): m.append('ds_read_b128 %s, v%d offset:%d'%(vr(F+i*4,4),XA[sub],i*2048))
            for j in range(nj):
                for b in range(2): m.append('ds_read_b64_tr_b16 %s, v%d offset:%d'%(vr(F+8+j*4+b*2,2),WA,16384+sub*9216+b*4608+j*32))
            return m
        def mf(st,role=role,nj=nj):
            F=FA if st==0 else FB; m=[]
            for j in range(nj):
                for i in range(2):
                    x=vr(F+i*4,4); w=vr(F+8+j*4,4); c=vr(acc(i,j),4)
                    m.append('v_mfma_f32_16x16x32_bf16 %s, %s, %s, %s'%((c,x,w,c) if role=='z2' else (c,w,x,c)))
            return m
        consumer_loop(a,nm+'L',SLZ,NK1,XA+[WA],rd,mf,lag=(h==0),hook=ln1_hook(a),hook_at=2,per=EXP.get('k1per',2),dly=EXP.get('k1dly',12))
        a('s_barrier')
        if EXP.get('fine') is None: gc.stamp(a,4)
        C0=112;C1=114;ONE=116
        a('v_mov_b32 v%d, 0x%x'%(C0,f2u(GC0))); a('v_mov_b32 v%d, 0x%x'%(C0+1,f2u(GC0)))
        a('v_mov_b32 v%d, 0x%x'%(C1,f2u(GC1))); a('v_mov_b32 v%d, 0x%x'%(C1+1,f2u(GC1)))
        a('v_mov_b32 v%d, 1.0'%ONE); a('v_mov_b32 v%d, 1.0'%(ONE+1))
        TMP=[56,58,60,62]; prs=[(i,p) for i in range(2) for p in range(2)]
        if role=='z2':
            if not EXP.get('noz2prio'): a('s_setprio 3')
            RR=64; NM=72; CS=80; CSb=86; SUM=92; SQ=100; GRN=56; VO=118; PK=108
            a('s_lshl_b32 s%d, s%d, 7'%(S_T0,S_PW)); a('v_lshlrev_b32 v3, 4, v2'); a('v_add_u32 v3, s%d, v3'%S_T0); a('v_add_u32 v3, %d, v3'%T_R)
            for i in range(2):
                a('ds_read_b128 %s, v3 offset:%d'%(vr(RR+4*i,4),i*64)); a('ds_read_b128 %s, v3 offset:%d'%(vr(NM+4*i,4),512+i*64))
            a('v_lshlrev_b32 v4, 2, v1'); a('v_add_u32 v4, %d, v4'%(T_CS0+h*320))
            for j in range(nj):
                a('ds_read_b32 v%d, v4 offset:%d'%(CS+j,j*64)); a('ds_read_b32 v%d, v4 offset:%d'%(CSb+j,640+j*64))
            for k in range(8): a('v_mov_b32 v%d, 0'%(SUM+k)); a('v_mov_b32 v%d, 0'%(SQ+k))
            add64(a,S_T2,S_WS,WS_GR); srd(a,SRD_G,S_T2,S_T2+1,16*12288)
            a('s_mul_i32 s%d, s%d, 12288'%(S_SO,S_RB))
            a('s_lshl_b32 s%d, s%d, 1'%(S_T0,S_CT)); a('s_add_u32 s%d, s%d, %d'%(S_T0,S_T0,h)); a('s_lshl_b32 s%d, s%d, 10'%(S_T0,S_T0))
            a('s_lshl_b32 s%d, s%d, 8'%(S_T1,S_PW)); a('s_add_u32 s%d, s%d, s%d'%(S_T0,S_T0,S_T1)); a('s_add_u32 s%d, s%d, s%d'%(S_SO2,S_SO,S_T0))
            a('s_waitcnt lgkmcnt(0)')
            for j in range(nj): a('v_add_f32 v%d, v%d, v%d'%(CS+j,CS+j,CSb+j))
            for j in range(nj):
                csr=CS+j; cspair=vr(csr&~1,2); sel=csr&1
                for k,(i,p) in enumerate(prs): a('v_pk_mul_f32 %s, %s, %s op_sel:[0,%d] op_sel_hi:[1,%d]'%(vr(TMP[k],2),vr(NM+4*i+2*p,2),cspair,sel,sel))
                for k,(i,p) in enumerate(prs):
                    r=acc(i,j)+2*p; a('v_pk_fma_f32 %s, %s, %s, %s'%(vr(r,2),vr(r,2),vr(RR+4*i+2*p,2),vr(TMP[k],2)))
                gelu_pairs(a,[acc(i,j)+2*p for (i,p) in prs],TMP,C0,C1,ONE)
                for k,(i,p) in enumerate(prs):
                    r=acc(i,j)+2*p
                    a('v_pk_add_f32 %s, %s, %s'%(vr(SUM+4*i+2*p,2),vr(SUM+4*i+2*p,2),vr(r,2)))
                    a('v_pk_fma_f32 %s, %s, %s, %s'%(vr(SQ+4*i+2*p,2),vr(r,2),vr(r,2),vr(SQ+4*i+2*p,2)))
            if EXP.get('z2st'): gc.stamp(a,1)
            for sh in (8,4,2):
                for k in range(8): a('v_add_f32_dpp v%d, v%d, v%d row_ror:%d row_mask:0xf bank_mask:0xf'%(SUM+k,SUM+k,SUM+k,sh))
                for k in range(8): a('v_add_f32_dpp v%d, v%d, v%d row_ror:%d row_mask:0xf bank_mask:0xf'%(SQ+k,SQ+k,SQ+k,sh))
            for k in range(8): a('v_add_f32_dpp v%d, v%d, v%d row_ror:1 row_mask:0xf bank_mask:0xf'%(GRN+2*k,SUM+k,SUM+k))
            for k in range(8): a('v_add_f32_dpp v%d, v%d, v%d row_ror:1 row_mask:0xf bank_mask:0xf'%(GRN+2*k+1,SQ+k,SQ+k))
            a('v_lshlrev_b32 v3, 5, v2'); a('v_cmp_eq_u32 vcc, 0, v1'); a('s_and_saveexec_b64 s[%d:%d], vcc'%(S_EX,S_EX+1))
            for i in range(2):
                for p in range(2): a('buffer_store_dwordx4 %s, v3, s[%d:%d], s%d offen offset:%d sc1'%(vr(GRN+8*i+4*p,4),SRD_G,SRD_G+3,S_SO2,i*128+p*16))
            a('s_mov_b64 exec, s[%d:%d]'%(S_EX,S_EX+1))
            if EXP.get('z2st'): gc.stamp(a,2)
            PL=72
            if not EXP.get('oldpoll'):
                add64(a,S_T2,S_WS,WS_FG); srd(a,SRD_O2,S_T2,S_T2+1,4096)
                a('s_lshl_b32 s%d, s%d, 8'%(S_T0,S_RB)); a('s_lshl_b32 s%d, s%d, 6'%(S_T1,S_PW)); a('s_add_u32 s%d, s%d, s%d'%(S_T0,S_T0,S_T1))
                a('s_lshl_b32 s%d, s%d, 1'%(S_T1,S_CT)); a('s_add_u32 s%d, s%d, %d'%(S_T1,S_T1,h)); a('s_lshl_b32 s%d, s%d, 2'%(S_T1,S_T1)); a('s_add_u32 s%d, s%d, s%d'%(S_T1,S_T1,S_T0))
                a('v_mov_b32 v6, 1'); a('v_mov_b32 v7, 0'); a('s_mov_b32 exec_lo, 1'); a('s_mov_b32 exec_hi, 0')
                a('buffer_store_dword v6, v7, s[%d:%d], s%d offen sc1'%(SRD_O2,SRD_O2+3,S_T1)); a('s_mov_b64 exec, -1')
                a('v_lshlrev_b32 v7, 2, v0'); a('v_mov_b32 v8, 0x7fffff00'); a('v_cmp_gt_u32 vcc, 12, v0'); a('s_nop 1'); a('v_cndmask_b32 v7, v8, v7, vcc'); a('v_cndmask_b32_e64 v8, 1, 0, vcc')
                a('s_mov_b32 s%d, 0'%S_I)
                a('buffer_load_dword v9, v7, s[%d:%d], s%d offen sc1'%(SRD_O2,SRD_O2+3,S_T0))
                a.lab(nm+'_hp')
                for r0,r1 in ((9,10),(10,9)):
                    a('buffer_load_dword v%d, v7, s[%d:%d], s%d offen sc1'%(r1,SRD_O2,SRD_O2+3,S_T0)); a('s_waitcnt vmcnt(1)')
                    a('v_or_b32 v11, v%d, v8'%r0); a('v_cmp_ne_u32 vcc, 1, v11'); a('s_nop 1'); a('s_cmp_eq_u64 vcc, 0'); a('s_cbranch_scc1 %s_hok'%nm)
                a('s_add_u32 s%d, s%d, 1'%(S_I,S_I)); a('s_cmp_lt_u32 s%d, %d'%(S_I,POLL_BOUND)); a('s_cbranch_scc1 %s_hp'%nm)
                a.lab(nm+'_hok')
            a('v_and_b32 v4, 31, v0'); a('v_lshrrev_b32 v5, 5, v0'); a('v_mul_u32_u24 v5, 6144, v5'); a('v_lshl_add_u32 v4, v4, 3, v5')
            a('s_lshl_b32 s%d, s%d, 8'%(S_T1,S_PW)); a('v_add_u32 v4, s%d, v4'%S_T1); a('v_add_u32 v5, 4096, v4')
            a('s_mov_b32 s%d, 0'%S_I)
            a.lab(nm+'_poll')
            for k in range(6): a('buffer_load_dwordx2 %s, v%d, s[%d:%d], s%d offen offset:%d sc1'%(vr(PL+2*k,2),4 if k<4 else 5,SRD_G,SRD_G+3,S_SO,(k%4)*1024))
            a('s_waitcnt vmcnt(0)')
            a('v_max3_u32 v6, v%d, v%d, v%d'%(PL,PL+1,PL+2))
            for k in range(3,12,2):
                a('v_max3_u32 v6, v6, v%d, v%d'%(PL+k,PL+k+1) if k+1<12 else 'v_max_u32 v6, v6, v%d'%(PL+k))
            a('v_cmp_eq_u32 s[%d:%d], -1, v6'%(S_EX,S_EX+1)); a('s_nop 1'); a('s_cmp_eq_u64 s[%d:%d], 0'%(S_EX,S_EX+1)); a('s_cbranch_scc1 %s_rdy'%nm)
            a('s_add_u32 s%d, s%d, 1'%(S_I,S_I)); a('s_cmp_lt_u32 s%d, %d'%(S_I,POLL_BOUND)); a('s_cbranch_scc1 %s_poll'%nm)
            a.lab(nm+'_rdy')
            if EXP.get('z2st'): gc.stamp(a,3)
            a('v_pk_add_f32 %s, %s, %s'%(vr(PL,2),vr(PL,2),vr(PL+2,2))); a('v_pk_add_f32 %s, %s, %s'%(vr(PL+4,2),vr(PL+4,2),vr(PL+6,2))); a('v_pk_add_f32 %s, %s, %s'%(vr(PL+8,2),vr(PL+8,2),vr(PL+10,2)))
            a('v_pk_add_f32 %s, %s, %s'%(vr(PL,2),vr(PL,2),vr(PL+4,2))); a('v_pk_add_f32 %s, %s, %s'%(vr(PL,2),vr(PL,2),vr(PL+8,2)))
            a('v_mov_b32 v%d, v%d'%(PL+2,PL)); a('v_mov_b32 v%d, v%d'%(PL+3,PL+1)); a('s_nop 1')
            a('v_permlane32_swap_b32 v%d, v%d'%(PL,PL+2)); a('v_permlane32_swap_b32 v%d, v%d'%(PL+1,PL+3)); a('s_nop 1')
            a('v_pk_add_f32 %s, %s, %s'%(vr(PL,2),vr(PL,2),vr(PL+2,2)))
            a('v_mul_f32 v%d, 0x%x, v%d'%(PL,f2u(1.0/864),PL)); a('v_mul_f32 v%d, 0x%x, v%d'%(PL+1,f2u(1.0/864),PL+1))
            a('v_fma_f32 v%d, -v%d, v%d, v%d'%(PL+1,PL,PL,PL+1)); a('v_max_f32 v%d, 0, v%d'%(PL+1,PL+1)); a('v_add_f32 v%d, 0x%x, v%d'%(PL+1,f2u(1e-5),PL+1))
            a('v_rsq_f32 v%d, v%d'%(PL+2,PL+1)); a('s_nop 0'); a('v_mul_f32 v%d, v%d, v%d'%(PL+3,PL,PL+2)); a('v_sub_f32 v%d, 0, v%d'%(PL+3,PL+3))
            a('s_lshl_b32 s%d, s%d, 8'%(S_T0,S_WAVE)); a('s_add_u32 s%d, s%d, %d'%(S_T0,S_T0,T_W2))
            a('v_and_b32 v4, 31, v0'); a('v_lshlrev_b32 v4, 2, v4'); a('v_add_u32 v4, s%d, v4'%S_T0)
            a('ds_write_b32 v4, v%d'%(PL+2)); a('ds_write_b32 v4, v%d offset:128'%(PL+3))
            a('v_lshlrev_b32 v5, 4, v2'); a('v_add_u32 v5, s%d, v5'%S_T0)
            a('s_waitcnt lgkmcnt(0)')
            for i in range(2):
                a('ds_read_b128 %s, v5 offset:%d'%(vr(RR+4*i,4),i*64)); a('ds_read_b128 %s, v5 offset:%d'%(vr(84+4*i,4),128+i*64))
            NM2=84
            a('s_mul_i32 s%d, s%d, %d'%(S_T0,S_CT,Z2_CT)); a('s_lshl_b32 s%d, s%d, 1'%(S_T1,S_RB)); a('s_lshr_b32 s%d, s%d, 1'%(S_T2,S_PW))
            a('s_add_u32 s%d, s%d, s%d'%(S_T1,S_T1,S_T2)); a('s_mul_i32 s%d, s%d, 18432'%(S_T1,S_T1)); a('s_add_u32 s%d, s%d, s%d'%(S_T0,S_T0,S_T1))
            a('s_and_b32 s%d, s%d, 1'%(S_T1,S_PW)); a('s_mul_i32 s%d, s%d, 9216'%(S_T1,S_T1)); a('s_add_u32 s%d, s%d, s%d'%(S_T0,S_T0,S_T1))
            a('s_add_u32 s%d, s%d, %d'%(S_SO,S_T0,5120*h))
            srd(a,SRD_O,S_WS,S_WS+1,6*Z2_CT)
            a('v_lshlrev_b32 v%d, 4, v0'%VO)
            a('s_waitcnt lgkmcnt(0)')
            for j in range(nj):
                for k,(i,p) in enumerate(prs):
                    r=acc(i,j)+2*p; a('v_pk_fma_f32 %s, %s, %s, %s'%(vr(r,2),vr(r,2),vr(RR+4*i+2*p,2),vr(NM2+4*i+2*p,2)))
                o=PK+4*(j&1)
                for k,(i,p) in enumerate(prs):
                    r=acc(i,j)+2*p; a('v_cvt_pk_bf16_f32 v%d, v%d, v%d'%(o+k,r,r+1))
                a('s_nop 1')
                a('v_permlane32_swap_b32 v%d, v%d'%(o,o+2)); a('v_permlane32_swap_b32 v%d, v%d'%(o+1,o+3)); a('s_nop 1')
                a('v_permlane16_swap_b32 v%d, v%d'%(o,o+2)); a('v_permlane16_swap_b32 v%d, v%d'%(o+1,o+3))
                if j<4: a('buffer_store_dwordx4 %s, v%d, s[%d:%d], s%d offen offset:%d%s'%(vr(o,4),VO,SRD_O,SRD_O+3,S_SO,j*1024,g2.STF))
                else:
                    a('s_add_u32 s%d, s%d, 4096'%(S_SO,S_SO)); a('buffer_store_dwordx4 %s, v%d, s[%d:%d], s%d offen%s'%(vr(o,4),VO,SRD_O,SRD_O+3,S_SO,g2.STF))
            a('s_branch K1_end')
        else:
            RR=64; NM=66; CS=68; CSb=88; PK=100; VO=118
            a('s_lshl_b32 s%d, s%d, 7'%(S_T0,S_PW)); a('v_lshlrev_b32 v3, 2, v1'); a('v_add_u32 v3, s%d, v3'%S_T0); a('v_add_u32 v3, %d, v3'%T_R)
            for i in range(2):
                a('ds_read_b32 v%d, v3 offset:%d'%(RR+i,i*64)); a('ds_read_b32 v%d, v3 offset:%d'%(NM+i,512+i*64))
            a('v_lshlrev_b32 v4, 4, v2'); a('v_add_u32 v4, %d, v4'%(T_CS0+320*h))
            for j in range(nj):
                a('ds_read_b128 %s, v4 offset:%d'%(vr(CS+4*j,4),j*64)); a('ds_read_b128 %s, v4 offset:%d'%(vr(CSb+4*j,4),640+j*64))
            a('s_mul_i32 s%d, s%d, 6'%(S_T0,S_RB)); a('s_add_u32 s%d, s%d, s%d'%(S_T0,S_T0,S_CT)); a('s_lshl_b32 s%d, s%d, 3'%(S_T0,S_T0))
            a('s_add_u32 s%d, s%d, s%d'%(S_T0,S_T0,S_WAVE)); a('s_mul_i32 s%d, s%d, 5120'%(S_SO,S_T0))
            add64(a,S_T2,S_WS,WS_Z1); srd(a,SRD_O,S_T2,S_T2+1,96*40960)
            a('v_lshlrev_b32 v%d, 4, v0'%VO)
            a('s_waitcnt lgkmcnt(0)')
            for j in range(nj):
                for p in range(2): a('v_pk_add_f32 %s, %s, %s'%(vr(CS+4*j+2*p,2),vr(CS+4*j+2*p,2),vr(CSb+4*j+2*p,2)))
            for j in range(nj):
                for k,(i,p) in enumerate(prs): a('v_pk_mul_f32 %s, %s, %s op_sel:[0,%d] op_sel_hi:[1,%d]'%(vr(TMP[k],2),vr(CS+4*j+2*p,2),vr(NM,2),i,i))
                for k,(i,p) in enumerate(prs):
                    r=acc(i,j)+2*p; a('v_pk_fma_f32 %s, %s, %s, %s op_sel:[0,%d,0] op_sel_hi:[1,%d,1]'%(vr(r,2),vr(r,2),vr(RR,2),vr(TMP[k],2),i,i))
                gelu_pairs(a,[acc(i,j)+2*p for (i,p) in prs],TMP,C0,C1,ONE)
                o=acc(0,j) if not EXP.get('z1early') else PK+4*(j&1)
                for k,(i,p) in enumerate(prs):
                    r=acc(i,j)+2*p; a('v_cvt_pk_bf16_f32 v%d, v%d, v%d'%(o+k,r,r+1))
                if EXP.get('z1early'):
                    if j<4: a('buffer_store_dwordx4 %s, v%d, s[%d:%d], s%d offen offset:%d%s'%(vr(o,4),VO,SRD_O,SRD_O+3,S_SO,j*1024,g2.STF))
                    else:
                        a('s_add_u32 s%d, s%d, 4096'%(S_SO,S_SO)); a('buffer_store_dwordx4 %s, v%d, s[%d:%d], s%d offen%s'%(vr(o,4),VO,SRD_O,SRD_O+3,S_SO,g2.STF))
            if not EXP.get('z1early'):
                for j in range(nj):
                    if j<4: a('buffer_store_dwordx4 %s, v%d, s[%d:%d], s%d offen offset:%d%s'%(vr(acc(0,j),4),VO,SRD_O,SRD_O+3,S_SO,j*1024,g2.STF))
                    else:
                        a('s_add_u32 s%d, s%d, 4096'%(S_SO,S_SO)); a('buffer_store_dwordx4 %s, v%d, s[%d:%d], s%d offen%s'%(vr(acc(0,j),4),VO,SRD_O,SRD_O+3,S_SO,g2.STF))
            a('s_branch K1_end')
    a.lab('K1Z_prod')
    XO=[2,3]; WO=[4,5,6,7,8]
    if EXP.get('same'): a('s_mov_b32 s%d, 0'%S_RB); a('s_mov_b32 s%d, 0'%S_CT)
    a('s_sub_u32 s%d, s%d, 8'%(S_PW,S_WAVE))
    a('v_lshrrev_b32 v20, 3, v0'); a('s_lshl_b32 s%d, s%d, 5'%(S_T0,S_PW)); a('v_add_u32 v21, s%d, v20'%S_T0); a('v_mul_u32_u24 v21, 1280, v21')
    a('v_and_b32 v22, 7, v0'); a('v_xor_b32 v22, v22, v20')
    a('v_lshl_add_u32 v%d, v22, 4, v21'%XO[0]); a('v_mov_b32 v%d, v%d'%(XO[1],XO[0]))
    a('s_mul_i32 s%d, s%d, 288'%(S_T0,S_CT)); a('s_cmp_eq_u32 s%d, 0'%S_PAR); a('s_cselect_b32 s%d, 1728, 0'%S_T1); a('s_cselect_b32 s%d, 0, 1728'%S_T2)
    a('s_add_u32 s%d, s%d, s%d'%(S_T1,S_T1,S_T0)); a('s_add_u32 s%d, s%d, s%d'%(S_T2,S_T2,S_T0))
    a('v_mov_b32 v24, s%d'%S_T1); a('v_mov_b32 v25, s%d'%S_T2)
    for i in range(5):
        a('s_lshl_b32 s%d, s%d, 6'%(S_T0,S_PW)); a('s_add_u32 s%d, s%d, %d'%(S_T0,S_T0,256*i)); a('v_add_u32 v20, s%d, v0'%S_T0)
        a('v_mul_u32_u24 v21, 3641, v20'); a('v_lshrrev_b32 v21, 16, v21')
        a('v_mul_u32_u24 v22, 18, v21'); a('v_sub_u32 v22, v20, v22'); a('v_cmp_gt_u32 vcc, 10, v22')
        a('v_and_b32 v26, 0x23, v21'); a('v_bfe_u32 v27, v21, 2, 2'); a('v_lshl_or_b32 v26, v27, 3, v26'); a('v_bfe_u32 v27, v21, 4, 1'); a('v_lshl_or_b32 v21, v27, 2, v26')
        a('v_mul_u32_u24 v21, 3456, v21'); a('v_lshl_add_u32 v21, v22, 4, v21')
        a('v_cndmask_b32 v23, v25, v24, vcc'); a('v_add_u32 v%d, v21, v23'%WO[i])
    a('s_mov_b32 s%d, 0'%S_SLI)
    krot(a); a('s_lshl_b32 s%d, s%d, 7'%(S_KX,S_T0)); a('s_mul_i32 s%d, s%d, %d'%(S_KW,S_T0,64*3456))
    a('s_waitcnt lgkmcnt(0)')
    a('s_mul_i32 s%d, s%d, %d'%(S_T0,S_RB,128*1280)); add64(a,S_X,S_X,'s%d'%S_T0); srd(a,SRD_X,S_X,S_X+1,128*1280)
    srd(a,SRD_W,S_WIN,S_WIN+1,640*3456)
    def issueZ():
        a('s_lshl_b32 s%d, s%d, 12'%(S_T,S_PW)); a('s_add_u32 s%d, s%d, s%d'%(S_T,S_T,S_SLI))
        for j in range(4):
            a('s_add_u32 m0, s%d, %d'%(S_T,j*1024)); a('s_add_u32 s%d, s%d, %d'%(S_SO,S_KX,j*10240))
            a(ld('buffer_load_dwordx4 v%d, s[%d:%d], s%d offen lds'%(XO[j&1],SRD_X,SRD_X+3,S_SO)))
        a('s_lshl_b32 s%d, s%d, 10'%(S_T,S_PW)); a('s_add_u32 s%d, s%d, s%d'%(S_T,S_T,S_SLI))
        lab=a.newlab('K1Zp_s')
        for i in range(5):
            if i==4: a('s_cmp_lt_u32 s%d, 2'%S_PW); a('s_cbranch_scc0 %s'%lab)
            a('s_add_u32 m0, s%d, %d'%(S_T,16384+i*4096)); a('s_nop 0')
            a(ld('buffer_load_dwordx4 v%d, s[%d:%d], s%d offen lds'%(WO[i],SRD_W,SRD_W+3,S_KW)))
        a.lab(lab)
        slot_advance(a,S_SLI,SLZ); a('s_add_u32 s%d, s%d, 128'%(S_KX,S_KX)); a('s_add_u32 s%d, s%d, %d'%(S_KW,S_KW,64*3456))
        a('s_cmp_eq_u32 s%d, 1280'%S_KX); a('s_cselect_b32 s%d, 0, s%d'%(S_KX,S_KX)); a('s_cselect_b32 s%d, 0, s%d'%(S_KW,S_KW))
    dma_producer(a,'K1Zp',NK1,8,issueZ,post=1)
    a('s_branch K1_end')
    a.lab('K1Z_work')
    a('s_sub_u32 s%d, s%d, 12'%(S_PW,S_WAVE))
    a('s_waitcnt lgkmcnt(0)')
    late=worker(a,'K1Zw',SLZ,True)
    a('s_waitcnt lgkmcnt(0)'); a('s_barrier'); late(); a('s_branch K1_end')

    a.lab('K1A_entry')
    a('s_sub_u32 s%d, s%d, 24'%(S_T0,S_J)); a('s_lshr_b32 s%d, s%d, 1'%(S_T1,S_T0)); a('s_and_b32 s%d, s%d, 1'%(S_CT,S_T0))
    a('s_lshl_b32 s%d, s%d, 2'%(S_RB,S_G)); a('s_add_u32 s%d, s%d, s%d'%(S_RB,S_RB,S_T1))
    a('s_cmp_ge_u32 s%d, 12'%S_WAVE); a('s_cbranch_scc1 K1A_work')
    a('s_cmp_ge_u32 s%d, 8'%S_WAVE); a('s_cbranch_scc1 K1A_prod')
    ACC=16; FA=56; FB=84; XA=[112,113]; WA2=[114,115]
    a('s_and_b32 s%d, s%d, 3'%(S_PW,S_WAVE)); a('s_lshr_b32 s%d, s%d, 2'%(S_H,S_WAVE))
    a('v_and_b32 v1, 15, v0'); a('v_lshrrev_b32 v2, 4, v0'); a('v_and_b32 v3, 7, v0'); a('v_xor_b32 v3, v3, v2'); a('v_lshlrev_b32 v3, 4, v3')
    a('v_lshl_add_u32 v3, v1, 7, v3')
    a('s_lshl_b32 s%d, s%d, 11'%(S_T0,S_PW)); a('v_add_u32 v%d, s%d, v3'%(XA[0],S_T0)); a('v_xor_b32 v%d, 64, v%d'%(XA[1],XA[0]))
    a('s_mul_i32 s%d, s%d, %d'%(S_T0,S_H,80*128)); a('s_add_u32 s%d, s%d, 16384'%(S_T0,S_T0)); a('v_add_u32 v%d, s%d, v3'%(WA2[0],S_T0)); a('v_xor_b32 v%d, 64, v%d'%(WA2[1],WA2[0]))
    ln1_row(a)
    for k in range(40): a('v_mov_b32 v%d, 0'%(ACC+k))
    ln1_row_finish(a)
    def accA(tb,j): return ACC+(j*2+tb)*4
    def rdA(st,sub):
        F=FA if st==0 else FB; m=[]
        for tb in range(2): m.append('ds_read_b128 %s, v%d offset:%d'%(vr(F+tb*4,4),XA[sub],tb*8192))
        for j in range(5): m.append('ds_read_b128 %s, v%d offset:%d'%(vr(F+8+j*4,4),WA2[sub],j*2048))
        return m
    def mfA(st):
        F=FA if st==0 else FB; m=[]
        for j in range(5):
            for tb in range(2):
                c=vr(accA(tb,j),4); m.append('v_mfma_f32_16x16x32_bf16 %s, %s, %s, %s'%(c,vr(F+tb*4,4),vr(F+8+j*4,4),c))
        return m
    a('s_cmp_eq_u32 s%d, 0'%S_H); a('s_cbranch_scc0 K1A_c1')
    consumer_loop(a,'K1A0',SLA,NK1,XA+WA2,rdA,mfA,lag=True,hook=ln1_hook(a),hook_at=2)
    a('s_branch K1A_cd')
    a.lab('K1A_c1')
    consumer_loop(a,'K1A1',SLA,NK1,XA+WA2,rdA,mfA,lag=False,hook=ln1_hook(a),hook_at=2)
    a.lab('K1A_cd')
    a('s_barrier')
    if EXP.get('fine') is None: gc.stamp(a,4)
    RT=56; RB_=60; RO=64; T4=[66,68]; PK=70; VO=76
    a('s_lshl_b32 s%d, s%d, 6'%(S_T0,S_PW)); a('v_lshlrev_b32 v3, 4, v2'); a('v_add_u32 v3, s%d, v3'%S_T0); a('v_add_u32 v3, %d, v3'%T_R)
    a('ds_read_b128 %s, v3'%vr(RT,4)); a('ds_read_b128 %s, v3 offset:256'%vr(RB_,4))
    a('s_mul_i32 s%d, s%d, %d'%(S_T0,S_HALF,AE_MAT)); a('s_lshl_b32 s%d, s%d, 1'%(S_T1,S_CT)); a('s_add_u32 s%d, s%d, s%d'%(S_T1,S_T1,S_H))
    a('s_mul_i32 s%d, s%d, 163840'%(S_T1,S_T1)); a('s_add_u32 s%d, s%d, s%d'%(S_T0,S_T0,S_T1)); a('s_mul_i32 s%d, s%d, 10240'%(S_T1,S_RB))
    a('s_add_u32 s%d, s%d, s%d'%(S_T0,S_T0,S_T1)); a('s_lshr_b32 s%d, s%d, 1'%(S_T1,S_PW)); a('s_mul_i32 s%d, s%d, 5120'%(S_T1,S_T1)); a('s_add_u32 s%d, s%d, s%d'%(S_SO,S_T0,S_T1))
    add64(a,S_T2,S_WS,WS_AE); srd(a,SRD_O,S_T2,S_T2+1,2*AE_MAT)
    a('s_and_b32 s%d, s%d, 1'%(S_T0,S_PW)); a('s_lshl_b32 s%d, s%d, 9'%(S_T0,S_T0))
    a('v_lshrrev_b32 v3, 1, v2'); a('v_lshlrev_b32 v3, 8, v3'); a('v_lshl_add_u32 v3, v1, 4, v3'); a('v_and_b32 v4, 1, v2'); a('v_lshl_add_u32 v3, v4, 3, v3')
    a('v_add_u32 v%d, s%d, v3'%(VO,S_T0))
    a('s_waitcnt lgkmcnt(0)')
    a('s_or_b32 s%d, s%d, s%d'%(S_T0,S_RB,S_PW)); a('s_or_b32 s%d, s%d, s%d'%(S_T0,S_T0,S_HALF)); a('s_cmp_eq_u32 s%d, 0'%S_T0); a('s_cbranch_scc0 K1A_nosp')
    add64(a,S_T2,S_WS,WS_A1024); srd(a,SRD_O2,S_T2,S_T2+1,1280)
    a('s_mul_i32 s%d, s%d, 640'%(S_T0,S_CT)); a('s_mul_i32 s%d, s%d, 320'%(S_T1,S_H)); a('s_add_u32 s%d, s%d, s%d'%(S_T0,S_T0,S_T1))
    a('v_lshlrev_b32 v5, 2, v1')
    a('v_cmp_gt_u32 vcc, 16, v0'); a('s_and_saveexec_b64 s[%d:%d], vcc'%(S_EX,S_EX+1))
    for j in range(5):
        a('v_mul_f32 v%d, v%d, v%d'%(RO,accA(1,j),RB_))
        a('buffer_store_dword v%d, v5, s[%d:%d], s%d offen offset:%d%s'%(RO,SRD_O2,SRD_O2+3,S_T0,j*64,g2.STF)); a('s_nop 0')
    a('v_mov_b32 v%d, 0'%RB_)
    a('s_mov_b64 exec, s[%d:%d]'%(S_EX,S_EX+1))
    a.lab('K1A_nosp')
    a('s_cmp_eq_u32 s%d, 0'%S_HALF); a('s_cselect_b32 s%d, 1.0, -1.0'%S_T0)
    for k in range(4): a('v_mul_f32 v%d, s%d, v%d'%(RB_+k,S_T0,RB_+k))
    for j in range(5):
        for p in range(2): a('v_pk_mul_f32 %s, %s, %s'%(vr(T4[p],2),vr(accA(1,j)+2*p,2),vr(RB_+2*p,2)))
        for p in range(2): a('v_pk_fma_f32 %s, %s, %s, %s'%(vr(T4[p],2),vr(accA(0,j)+2*p,2),vr(RT+2*p,2),vr(T4[p],2)))
        for p in range(2): a('v_cvt_pk_bf16_f32 v%d, v%d, v%d'%(PK+p+2*(j&1),T4[p],T4[p]+1))
        if j<4: a('buffer_store_dwordx2 %s, v%d, s[%d:%d], s%d offen offset:%d%s'%(vr(PK+2*(j&1),2),VO,SRD_O,SRD_O+3,S_SO,j*1024,g2.STF))
        else:
            a('s_add_u32 s%d, s%d, 4096'%(S_SO,S_SO)); a('buffer_store_dwordx2 %s, v%d, s[%d:%d], s%d offen%s'%(vr(PK+2*(j&1),2),VO,SRD_O,SRD_O+3,S_SO,g2.STF))
    a('s_branch K1_end')
    a.lab('K1A_prod')
    XO4=[2,3,4,5]; WO1=6
    if EXP.get('same'): a('s_mov_b32 s%d, 0'%S_RB); a('s_mov_b32 s%d, 0'%S_CT)
    a('s_sub_u32 s%d, s%d, 8'%(S_PW,S_WAVE))
    a('v_lshrrev_b32 v20, 3, v0'); a('v_and_b32 v22, 7, v0'); a('v_xor_b32 v22, v22, v20'); a('v_lshlrev_b32 v22, 4, v22')
    a('s_lshl_b32 s%d, s%d, 6'%(S_T0,S_RB))
    a('s_cmp_lt_u32 s%d, 2'%S_PW); a('s_cbranch_scc0 K1Ap_bot')
    a('s_lshl_b32 s%d, s%d, 5'%(S_T1,S_PW)); a('s_add_u32 s%d, s%d, s%d'%(S_T1,S_T1,S_T0))
    for j in range(4):
        a('v_add_u32 v21, s%d, v20'%S_T1); a('v_add_u32 v21, %d, v21'%(8*j)); a('v_mul_u32_u24 v21, 1280, v21'); a('v_add_u32 v%d, v21, v22'%XO4[j])
    a('s_branch K1Ap_xd')
    a.lab('K1Ap_bot')
    a('s_sub_u32 s%d, s%d, 2'%(S_T1,S_PW)); a('s_lshl_b32 s%d, s%d, 5'%(S_T1,S_T1)); a('s_add_u32 s%d, s%d, s%d'%(S_T1,S_T1,S_T0)); a('s_sub_u32 s%d, 2048, s%d'%(S_T1,S_T1))
    for j in range(4):
        a('v_sub_u32 v21, s%d, v20'%S_T1); a('v_subrev_u32 v21, %d, v21'%(8*j))
        if j==0:
            a('v_cmp_eq_u32 vcc, 2048, v21'); a('v_mov_b32 v23, 1024'); a('s_nop 0'); a('v_cndmask_b32 v21, v21, v23, vcc')
        a('v_mul_u32_u24 v21, 1280, v21'); a('v_add_u32 v%d, v21, v22'%XO4[j])
    a.lab('K1Ap_xd')
    a('s_mul_i32 s%d, s%d, 40'%(S_T0,S_PW)); a('v_add_u32 v21, s%d, v20'%S_T0); a('v_mul_u32_u24 v21, 1280, v21'); a('v_add_u32 v%d, v21, v22'%WO1)
    a('s_mov_b32 s%d, 0'%S_SLI)
    krot(a); a('s_lshl_b32 s%d, s%d, 7'%(S_KX,S_T0))
    a('s_waitcnt lgkmcnt(0)')
    srd(a,SRD_X,S_X,S_X+1,2048*1280)
    a('s_cmp_eq_u32 s%d, 0'%S_HALF); a('s_cselect_b32 s%d, s%d, s%d'%(S_T2,S_WDRE,S_WDIM)); a('s_cselect_b32 s%d, s%d, s%d'%(S_T3,S_WDRE+1,S_WDIM+1))
    a('s_mul_i32 s%d, s%d, %d'%(S_T0,S_CT,160*1280)); a('s_add_u32 s%d, s%d, 1280'%(S_T0,S_T0)); add64(a,S_T2,S_T2,'s%d'%S_T0)
    srd(a,SRD_W,S_T2,S_T2+1,160*1280)
    def issueA():
        a('s_lshl_b32 s%d, s%d, 12'%(S_T,S_PW)); a('s_add_u32 s%d, s%d, s%d'%(S_T,S_T,S_SLI))
        for j in range(4):
            a('s_add_u32 m0, s%d, %d'%(S_T,j*1024)); a('s_nop 0')
            a(ld('buffer_load_dwordx4 v%d, s[%d:%d], s%d offen lds'%(XO4[j],SRD_X,SRD_X+3,S_KX)))
        a('s_mul_i32 s%d, s%d, 5120'%(S_T,S_PW)); a('s_add_u32 s%d, s%d, s%d'%(S_T,S_T,S_SLI))
        for j in range(5):
            a('s_add_u32 m0, s%d, %d'%(S_T,16384+j*1024)); a('s_add_u32 s%d, s%d, %d'%(S_SO,S_KX,j*10240))
            a(ld('buffer_load_dwordx4 v%d, s[%d:%d], s%d offen lds'%(WO1,SRD_W,SRD_W+3,S_SO)))
        slot_advance(a,S_SLI,SLA); a('s_add_u32 s%d, s%d, 128'%(S_KX,S_KX))
        a('s_cmp_eq_u32 s%d, 1280'%S_KX); a('s_cselect_b32 s%d, 0, s%d'%(S_KX,S_KX))
    dma_producer(a,'K1Ap',NK1,9,issueA,post=1)
    a('s_branch K1_end')
    a.lab('K1A_work')
    a('s_sub_u32 s%d, s%d, 12'%(S_PW,S_WAVE))
    a('s_waitcnt lgkmcnt(0)')
    late=worker(a,'K1Aw',SLA,False)
    a('s_waitcnt lgkmcnt(0)'); a('s_barrier'); late()
    kernel_tail(a,'K1',0,S_WS)
```

```python
from g2_common import *
import g2_common as g2
SLG=34816; SLT=28672
K2_LDS=NS*SLG
NK2=16
S_WSP=4; S_WS=6; S_WSRE=8; S_WSIM=10; S_BSP=12; S_WOUT=14
SRD_A=16; SRD_B=20; SRD_O=24; SRD_O2=28; SRD_C=56; SRD_D=60
S_KH=36; S_TB=37

def gen_k2(a,kname):
    kernel_head(a,kname,'K2')
    a('s_load_dwordx4 s[%d:%d], s[0:1], 8'%(S_WSRE,S_WSRE+3))
    a('s_load_dwordx2 s[%d:%d], s[0:1], 56'%(S_WSP,S_WSP+1))
    a('s_load_dwordx2 s[%d:%d], s[0:1], 64'%(S_BSP,S_BSP+1))
    a('s_load_dwordx2 s[%d:%d], s[0:1], 96'%(S_WS,S_WS+1))
    a('s_load_dwordx2 s[%d:%d], s[0:1], 72'%(S_WOUT,S_WOUT+1))
    wave_setup(a,'K2')
    a('s_and_b32 s%d, s2, 7'%S_XCD); a('s_lshr_b32 s%d, s2, 3'%S_J)
    a('s_and_b32 s%d, s%d, 1'%(S_KH,S_XCD))
    a('s_cmp_ge_u32 s%d, 24'%S_J); a('s_cbranch_scc1 K2T_entry')
    a('s_mul_i32 s%d, s%d, 43'%(S_T0,S_J)); a('s_lshr_b32 s%d, s%d, 8'%(S_T0,S_T0))
    a('s_mul_i32 s%d, s%d, 6'%(S_T1,S_T0)); a('s_sub_u32 s%d, s%d, s%d'%(S_CT,S_J,S_T1))
    a('s_lshr_b32 s%d, s%d, 1'%(S_T1,S_XCD)); a('s_lshl_b32 s%d, s%d, 2'%(S_T1,S_T1)); a('s_add_u32 s%d, s%d, s%d'%(S_TB,S_T1,S_T0))
    a('s_cmp_ge_u32 s%d, 8'%S_WAVE); a('s_cbranch_scc1 K2G_prod')
    ACC=16; FA=56; FB=84; WA=[112,113]; ZA=114; Z1L=[2,6,10,116,120]; BB=124
    a('s_and_b32 s%d, s%d, 3'%(S_PW,S_WAVE)); a('s_lshr_b32 s%d, s%d, 2'%(S_H,S_WAVE))
    a('v_and_b32 v6, 15, v0'); a('v_lshrrev_b32 v7, 4, v0'); a('v_and_b32 v8, 7, v0'); a('v_xor_b32 v8, v8, v7'); a('v_lshlrev_b32 v8, 4, v8')
    a('v_lshl_add_u32 v8, v6, 7, v8'); a('s_lshl_b32 s%d, s%d, 12'%(S_T0,S_PW)); a('v_add_u32 v%d, s%d, v8'%(WA[0],S_T0)); a('v_xor_b32 v%d, 64, v%d'%(WA[1],WA[0]))
    a('s_mul_i32 s%d, s%d, 5120'%(S_T0,S_H)); a('s_add_u32 s%d, s%d, 16384'%(S_T0,S_T0)); a('v_lshlrev_b32 v14, 4, v0'); a('v_add_u32 v%d, s%d, v14'%(ZA,S_T0))
    for k in range(40): a('v_mov_b32 v%d, 0'%(ACC+k))
    a('s_mul_i32 s%d, s%d, 6'%(S_T0,S_TB)); a('s_add_u32 s%d, s%d, s%d'%(S_T0,S_T0,S_CT)); a('s_lshl_b32 s%d, s%d, 3'%(S_T0,S_T0))
    a('s_add_u32 s%d, s%d, s%d'%(S_T0,S_T0,S_WAVE)); a('s_mul_i32 s%d, s%d, 5120'%(S_SO,S_T0))
    a('s_lshl_b32 s%d, s%d, 7'%(S_T0,S_TB)); a('s_lshl_b32 s%d, s%d, 5'%(S_T1,S_PW)); a('s_add_u32 s%d, s%d, s%d'%(S_T0,S_T0,S_T1))
    a('v_add_u32 v15, s%d, v6'%S_T0); a('v_lshlrev_b32 v15, 1, v15')
    a('s_waitcnt lgkmcnt(0)')
    add64(a,S_T2,S_WS,WS_Z1); srd(a,SRD_C,S_T2,S_T2+1,96*40960)
    srd(a,SRD_O2,S_BSP,S_BSP+1,4096)
    if EXP.get('stg'):
        for r in range(2,10): a('v_mov_b32 v%d, 0x7fffff00'%r) if r==6 else None
    def pfz_g(tag):
        a('buffer_load_dword v127, v126, s[%d:%d], s%d offen'%(SRD_D,SRD_D+3,S_G))
        l=a.newlab('K2G_pfz')
        a('s_cmp_eq_u32 s%d, 7'%S_WAVE); a('s_cbranch_scc0 %s'%l); a('buffer_load_dword v127, v1, s[%d:%d], s%d offen'%(SRD_D,SRD_D+3,S_G)); a.lab(l)
    if EXP.get('pfz'):
        a('s_mul_i32 s%d, s%d, %d'%(S_T2,S_CT,Z2_CT)); a('s_mul_i32 s%d, s%d, %d'%(S_T3,S_KH,16*18432)); a('s_add_u32 s%d, s%d, s%d'%(S_T1,S_T2,S_T3))
        add64(a,S_T2,S_WS,'s%d'%S_T1); srd(a,SRD_D,S_T2,S_T2+1,16*18432)
        a('s_and_b32 s%d, s%d, 3'%(S_G,S_TB)); a('s_mul_i32 s%d, s%d, %d'%(S_G,S_G,36*128))
        for rep_,dst in ((0,126),(1,1)):
            a('s_lshl_b32 s%d, s%d, 6'%(S_T0,S_WAVE))
            if rep_==1: a('s_mov_b32 s%d, 512'%S_T0)
            a('v_add_u32 v9, s%d, v0'%S_T0); a('v_mul_u32_u24 v10, 1821, v9'); a('v_lshrrev_b32 v10, 16, v10')
            a('v_mul_u32_u24 v11, 36, v10'); a('v_sub_u32 v11, v9, v11'); a('v_mul_u32_u24 v10, 18432, v10'); a('v_lshl_add_u32 v%d, v11, 7, v10'%dst)
    def acc(i,j): return ACC+(j*2+i)*4
    a('s_cmp_eq_u32 s%d, 0'%S_H); a('s_cbranch_scc0 K2Gc_1')
    for h in range(2):
        nj=5-h; nm='K2Gc_%d'%h
        a.lab(nm)
        def hk(nj=nj):
            for j in range(min(nj,4)): a('buffer_load_dwordx4 %s, v14, s[%d:%d], s%d offen offset:%d'%(vr(Z1L[j],4),SRD_C,SRD_C+3,S_SO,j*1024))
            if nj==5:
                a('s_add_u32 s%d, s%d, 4096'%(S_SO,S_SO)); a('buffer_load_dwordx4 %s, v14, s[%d:%d], s%d offen'%(vr(Z1L[4],4),SRD_C,SRD_C+3,S_SO))
            a('buffer_load_ushort v%d, v15, s[%d:%d], 0 offen'%(BB,SRD_O2,SRD_O2+3)); a('buffer_load_ushort v%d, v15, s[%d:%d], 0 offen offset:32'%(BB+1,SRD_O2,SRD_O2+3))
        def rd(st,sub,nj=nj):
            F=FA if st==0 else FB; m=[]
            for i in range(2): m.append('ds_read_b128 %s, v%d offset:%d'%(vr(F+i*4,4),WA[sub],i*2048))
            for j in range(nj): m.append('ds_read_b128 %s, v%d offset:%d'%(vr(F+8+j*4,4),ZA,sub*9216+j*1024))
            return m
        def mf(st,nj=nj):
            F=FA if st==0 else FB; m=[]
            for j in range(nj):
                for i in range(2):
                    c=vr(acc(i,j),4); m.append('v_mfma_f32_16x16x32_bf16 %s, %s, %s, %s'%(c,vr(F+8+j*4,4),vr(F+i*4,4),c))
            return m
        if g2.FUSED[0] and EXP.get('stg'):
            def pk(grp,part,h=h):
                def f():
                    l=a.newlab('K2G_sp'); a('s_cmp_eq_u32 s%d, 4'%S_WAVE); a('s_cbranch_scc0 %s'%l)
                    poll_rbs(a,a.newlab('K2G_spp'),S_WS,S_CT,S_KH,S_TB,grp,R=2,part=part); a.lab(l)
                return f
            HK={EXP.get('z1at',11):hk}
            if EXP.get('z1sp'):
                def part(js,last,nj=nj):
                    def f():
                        for j in js:
                            if j<4: a('buffer_load_dwordx4 %s, v14, s[%d:%d], s%d offen offset:%d'%(vr(Z1L[j],4),SRD_C,SRD_C+3,S_SO,j*1024))
                            else:
                                a('s_add_u32 s%d, s%d, 4096'%(S_SO,S_SO)); a('buffer_load_dwordx4 %s, v14, s[%d:%d], s%d offen'%(vr(Z1L[4],4),SRD_C,SRD_C+3,S_SO))
                        if last:
                            a('buffer_load_ushort v%d, v15, s[%d:%d], 0 offen'%(BB,SRD_O2,SRD_O2+3)); a('buffer_load_ushort v%d, v15, s[%d:%d], 0 offen offset:32'%(BB+1,SRD_O2,SRD_O2+3))
                    return f
                b0=EXP['z1sp']
                HK={b0:part([0,1],False),b0+1:part([2,3],False),b0+2:part(list(range(4,nj)),True)}
            if h==1: HK.update({3:pk(2,'issue'),5:pk(2,'check'),7:pk(3,'issue'),9:pk(3,'check')})
            consumer_loop(a,nm+'L',SLG,NK2,WA+[ZA],rd,mf,hook=HK,lag=(h==0),phase=2)
        else:
          consumer_loop(a,nm+'L',SLG,NK2,WA+[ZA],rd,mf,hook=({EXP.get('z1at',9):hk,EXP.get('pfzat',1):(lambda h=h:pfz_g('%d'%h))} if EXP.get('pfz') else hk),hook_at=EXP.get('z1at',9),lag=(h==0),phase=2)
        a('s_barrier')
        a('s_waitcnt vmcnt(0)')
        a('s_cmp_eq_u32 s%d, 0'%S_KH); a('s_cselect_b32 s%d, 1.0, 0'%S_T0)
        a('v_lshlrev_b32 v%d, 16, v%d'%(BB,BB)); a('v_lshlrev_b32 v%d, 16, v%d'%(BB+1,BB+1))
        a('v_mul_f32 v%d, s%d, v%d'%(BB,S_T0,BB)); a('v_mul_f32 v%d, s%d, v%d'%(BB+1,S_T0,BB+1))
        a('s_mul_i32 s%d, s%d, %d'%(S_T0,S_KH,H_VER)); add64(a,S_T2,S_WS,WS_H); add64(a,S_T2,S_T2,'s%d'%S_T0); srd(a,SRD_O,S_T2,S_T2+1,H_VER)
        a('s_lshl_b32 s%d, s%d, 3'%(S_T0,S_TB)); a('s_lshl_b32 s%d, s%d, 1'%(S_T1,S_PW)); a('s_add_u32 s%d, s%d, s%d'%(S_T0,S_T0,S_T1)); a('s_mul_i32 s%d, s%d, 27648'%(S_T0,S_T0))
        a('s_mul_i32 s%d, s%d, 9'%(S_T1,S_CT)); a('s_add_u32 s%d, s%d, %d'%(S_T1,S_T1,5*h)); a('s_lshl_b32 s%d, s%d, 9'%(S_T1,S_T1))
        a('s_add_u32 s%d, s%d, s%d'%(S_SO,S_T0,S_T1)); a('s_add_u32 s%d, s%d, 27648'%(S_SO2,S_SO))
        a('v_lshlrev_b32 v14, 3, v0')
        TZ=[56,58,60,62]; PK=64
        for j in range(nj):
            prs=[(i,p) for i in range(2) for p in range(2)]
            for k,(i,p) in enumerate(prs):
                z=Z1L[j]+2*i+p
                a('v_lshlrev_b32 v%d, 16, v%d'%(TZ[k],z)); a('v_and_b32 v%d, 0xffff0000, v%d'%(TZ[k]+1,z))
            for k,(i,p) in enumerate(prs):
                r=acc(i,j)+2*p; a('v_pk_add_f32 %s, %s, %s op_sel:[0,%d] op_sel_hi:[1,%d]'%(vr(r,2),vr(r,2),vr(BB,2),i,i))
            for k,(i,p) in enumerate(prs):
                r=acc(i,j)+2*p; a('v_pk_mul_f32 %s, %s, %s'%(vr(r,2),vr(r,2),vr(TZ[k],2)))
            o=PK+4*(j&1)
            for k,(i,p) in enumerate(prs):
                r=acc(i,j)+2*p; a('v_cvt_pk_bf16_f32 v%d, v%d, v%d'%(o+k,r,r+1))
            a('buffer_store_dwordx2 %s, v14, s[%d:%d], s%d offen offset:%d%s'%(vr(o,2),SRD_O,SRD_O+3,S_SO,j*512,g2.STF))
            a('buffer_store_dwordx2 %s, v14, s[%d:%d], s%d offen offset:%d%s'%(vr(o+2,2),SRD_O,SRD_O+3,S_SO2,j*512,g2.STF))
        a('s_branch K2_end')
    a.lab('K2G_prod')
    WO=2; ZO=3; S_ZO=S_PAR
    if EXP.get('same'): a('s_mov_b32 s%d, 0'%S_TB); a('s_mov_b32 s%d, 0'%S_CT); a('s_mov_b32 s%d, 0'%S_KH)
    a('s_sub_u32 s%d, s%d, 8'%(S_PW,S_WAVE))
    a('v_lshrrev_b32 v20, 3, v0'); a('v_and_b32 v22, 7, v0'); a('v_xor_b32 v22, v22, v20'); a('v_lshlrev_b32 v22, 4, v22')
    a('s_lshl_b32 s%d, s%d, 4'%(S_T0,S_PW)); a('v_add_u32 v21, s%d, v20'%S_T0); a('v_lshlrev_b32 v21, 12, v21'); a('v_add_u32 v%d, v21, v22'%WO)
    a('s_mul_i32 s%d, s%d, 3'%(S_T0,S_PW)); a('s_lshl_b32 s%d, s%d, 1'%(S_T1,S_PW)); a('s_add_u32 s%d, s%d, 2'%(S_T1,S_T1))
    a('s_cmp_lt_u32 s%d, 2'%S_PW); a('s_cselect_b32 s%d, s%d, s%d'%(S_ZO,S_T0,S_T1)); a('s_lshl_b32 s%d, s%d, 10'%(S_ZO,S_ZO))
    a('v_lshlrev_b32 v20, 4, v0'); a('v_add_u32 v%d, s%d, v20'%(ZO,S_ZO))
    a('s_mov_b32 s%d, 0'%S_SLI)
    a('s_mul_i32 s%d, s%d, %d'%(S_T0,S_CT,EXP.get('ra',0))); a('s_and_b32 s%d, s%d, 3'%(S_T1,S_TB)); a('s_mul_i32 s%d, s%d, %d'%(S_T1,S_T1,EXP.get('rb',0)))
    a('s_add_u32 s%d, s%d, s%d'%(S_T0,S_T0,S_T1)); a('s_and_b32 s%d, s%d, 15'%(S_T0,S_T0)); a('s_lshl_b32 s%d, s%d, 7'%(S_KX,S_T0)); a('s_mul_i32 s%d, s%d, 18432'%(S_KW,S_T0))
    a('s_mul_i32 s%d, s%d, %d'%(S_T0,S_TB,128*4096)); a('s_lshl_b32 s%d, s%d, 11'%(S_T1,S_KH)); a('s_add_u32 s%d, s%d, s%d'%(S_T0,S_T0,S_T1))
    a('s_sub_u32 s%d, %d, s%d'%(S_T1,128*4096,S_T1))
    a('s_mul_i32 s%d, s%d, %d'%(S_T2,S_CT,Z2_CT)); a('s_mul_i32 s%d, s%d, %d'%(S_T3,S_KH,16*18432)); a('s_add_u32 s%d, s%d, s%d'%(S_SO2,S_T2,S_T3))
    a('s_waitcnt lgkmcnt(0)')
    add64(a,S_WSP,S_WSP,'s%d'%S_T0); srd(a,SRD_A,S_WSP,S_WSP+1,'s%d'%S_T1)
    add64(a,S_T2,S_WS,'s%d'%S_SO2); srd(a,SRD_B,S_T2,S_T2+1,16*18432)
    def issue():
        a('s_lshl_b32 s%d, s%d, 11'%(S_T,S_PW)); a('s_add_u32 s%d, s%d, s%d'%(S_T,S_T,S_SLI))
        for j in range(2):
            a('s_add_u32 m0, s%d, %d'%(S_T,j*1024)); a('s_add_u32 s%d, s%d, %d'%(S_SO,S_KX,j*32768))
            a(ld('buffer_load_dwordx4 v%d, s[%d:%d], s%d offen lds'%(WO,SRD_A,SRD_A+3,S_SO)))
        a('s_add_u32 s%d, s%d, s%d'%(S_T,S_SLI,S_ZO)); a('s_add_u32 m0, s%d, 16384'%S_T); a('s_nop 0')
        for j in range(2): a('buffer_load_dwordx4 v%d, s[%d:%d], s%d offen offset:%d lds'%(ZO,SRD_B,SRD_B+3,S_KW,j*1024))
        lab=a.newlab('K2Gp_t')
        a('s_cmp_lt_u32 s%d, 2'%S_PW); a('s_cbranch_scc0 %s'%lab)
        a('buffer_load_dwordx4 v%d, s[%d:%d], s%d offen offset:2048 lds'%(ZO,SRD_B,SRD_B+3,S_KW))
        a.lab(lab)
        slot_advance(a,S_SLI,SLG); a('s_add_u32 s%d, s%d, 128'%(S_KX,S_KX)); a('s_add_u32 s%d, s%d, 18432'%(S_KW,S_KW))
        a('s_cmp_eq_u32 s%d, 2048'%S_KX); a('s_cselect_b32 s%d, 0, s%d'%(S_KX,S_KX)); a('s_cselect_b32 s%d, 0, s%d'%(S_KW,S_KW))
    if g2.FUSED[0] and EXP.get('stg'):
        c=4
        def setk(k0,k1):
            a('s_cmp_eq_u32 s%d, 0'%S_KH); a('s_cselect_b32 s%d, %d, %d'%(S_T0,k0,k1)); a('s_lshl_b32 s%d, s%d, 7'%(S_KX,S_T0)); a('s_mul_i32 s%d, s%d, 18432'%(S_KW,S_T0))
        def poll(grp):
            l='K2Gp_g%d'%grp; a('s_cmp_eq_u32 s%d, 8'%S_WAVE); a('s_cbranch_scc0 %s'%l); poll_rbs(a,l+'p',S_WS,S_CT,S_KH,S_TB,grp); a.lab(l)
        setk(0,8)
        def issue_w(slot):
            a('s_lshl_b32 s%d, s%d, 11'%(S_T,S_PW)); a('s_add_u32 s%d, s%d, %d'%(S_T,S_T,slot*SLG))
            for j in range(2):
                a('s_add_u32 m0, s%d, %d'%(S_T,j*1024)); a('s_add_u32 s%d, s%d, %d'%(S_SO,S_KX,j*32768))
                a(ld('buffer_load_dwordx4 v%d, s[%d:%d], s%d offen lds'%(WO,SRD_A,SRD_A+3,S_SO)))
            a('s_add_u32 s%d, s%d, 128'%(S_KX,S_KX))
        def issue_z(slot):
            a('s_add_u32 m0, s%d, %d'%(S_ZO,slot*SLG+16384)); a('s_cmp_lt_u32 s%d, 2'%S_PW)
            for j in range(2): a('buffer_load_dwordx4 v%d, s[%d:%d], s%d offen offset:%d lds'%(ZO,SRD_B,SRD_B+3,S_KW,j*1024))
            lab=a.newlab('K2Gp_z'); a('s_cbranch_scc0 %s'%lab)
            a('buffer_load_dwordx4 v%d, s[%d:%d], s%d offen offset:2048 lds'%(ZO,SRD_B,SRD_B+3,S_KW)); a.lab(lab)
            a('s_add_u32 s%d, s%d, 18432'%(S_KW,S_KW))
        W=[2*c]*4
        if EXP.get('prew'):
            for st in range(4): issue_w(st)
            poll(1); a('s_barrier')
            gc.stamp(a,1)
            issue_z(0); issue_z(1)
            gc.stamp(a,2)
            a('s_waitcnt vmcnt(2)'); gc.stamp(a,3); a('s_barrier')
            issue_z(2); issue_z(3)
            W=[4,6,8,8]
        else:
            poll(1); a('s_barrier')
            gc.stamp(a,1)
            issue(); issue()
            gc.stamp(a,2)
            a('s_waitcnt vmcnt(%d)'%c); gc.stamp(a,3); a('s_barrier')
            issue(); issue()
        def seg(i0,i1,nm,first_poll=None,k=None):
            for i in range(i0,i1):
                if i==i0 and first_poll:
                    a('s_waitcnt vmcnt(%d)'%(2*c)); a('s_barrier'); setk(*k); issue()
                else:
                    a('s_waitcnt vmcnt(%d)'%(W[i-1] if i<=4 else 2*c)); a('s_barrier'); issue()
        seg(1,5,'a'); seg(5,9,'b',2,(12,0)); seg(9,13,'c',3,(8,4))
        for r in (2,1,0):
            a('s_waitcnt vmcnt(%d)'%(r*c)); a('s_barrier')
        gc.stamp(a,4)
        a('s_barrier')
    else:
        dma_producer(a,'K2Gp',NK2,4,issue,phase=2,s_ws=S_WS,post=1)
    a('s_branch K2_end')

    a.lab('K2T_entry')
    a('s_sub_u32 s%d, s%d, 24'%(S_T0,S_J)); a('s_and_b32 s%d, s%d, 3'%(S_CT,S_T0)); a('s_lshr_b32 s%d, s%d, 2'%(S_T0,S_T0))
    a('s_lshr_b32 s%d, s%d, 1'%(S_T1,S_XCD)); a('s_lshl_b32 s%d, s%d, 1'%(S_T1,S_T1)); a('s_add_u32 s%d, s%d, s%d'%(S_TB,S_T1,S_T0))
    a('s_cmp_ge_u32 s%d, 8'%S_WAVE); a('s_cbranch_scc1 K2T_prod')
    a('s_and_b32 s%d, s%d, 3'%(S_PW,S_WAVE)); a('s_lshr_b32 s%d, s%d, 2'%(S_H,S_WAVE))
    a('s_cmp_eq_u32 s%d, 3'%S_PW); a('s_cbranch_scc1 K2T_xpf')
    ACC=16; FA=56; FB=80; WA=[112,113]; AA=114; A1=116
    a('v_lshrrev_b32 v7, 4, v0'); a('v_lshlrev_b32 v5, 4, v7')
    a('v_and_b32 v6, 15, v0'); a('v_and_b32 v8, 7, v0'); a('v_xor_b32 v8, v8, v7'); a('v_lshlrev_b32 v8, 4, v8'); a('v_lshl_add_u32 v8, v6, 7, v8')
    a('s_mul_i32 s%d, s%d, %d'%(S_T0,S_PW,48*128)); a('v_add_u32 v%d, s%d, v8'%(WA[0],S_T0)); a('v_xor_b32 v%d, 64, v%d'%(WA[1],WA[0]))
    a('s_mul_i32 s%d, s%d, 3072'%(S_T0,S_H)); a('s_add_u32 s%d, s%d, 18432'%(S_T0,S_T0)); a('v_lshlrev_b32 v9, 4, v0'); a('v_add_u32 v%d, s%d, v9'%(AA,S_T0))
    for k in range(36): a('v_mov_b32 v%d, 0'%(ACC+k))
    a('s_mul_i32 s%d, s%d, 320'%(S_T0,S_CT)); a('s_mul_i32 s%d, s%d, 192'%(S_T1,S_H)); a('s_add_u32 s%d, s%d, s%d'%(S_SO,S_T0,S_T1))
    a('s_waitcnt lgkmcnt(0)')
    add64(a,S_T2,S_WS,WS_A1024); srd(a,SRD_C,S_T2,S_T2+1,1280)
    def pfz_t(tag):
        a('buffer_load_dword v2, v10, s[%d:%d], s%d offen'%(SRD_D,SRD_D+3,S_G))
        l=a.newlab('K2T_pfz')
        a('s_cmp_lt_u32 s%d, 4'%S_PAR); a('s_cbranch_scc0 %s'%l); a('buffer_load_dword v2, v11, s[%d:%d], s%d offen'%(SRD_D,SRD_D+3,S_G)); a.lab(l)
    if EXP.get('pfz'):
        a('s_mul_i32 s%d, s%d, %d'%(S_T0,S_KH,AE_MAT)); a('s_mul_i32 s%d, s%d, 163840'%(S_T1,S_CT)); a('s_add_u32 s%d, s%d, s%d'%(S_T1,S_T0,S_T1))
        add64(a,S_T2,S_WS,WS_AE); add64(a,S_T2,S_T2,'s%d'%S_T1); srd(a,SRD_D,S_T2,S_T2+1,163840)
        a('s_and_b32 s%d, s%d, 1'%(S_G,S_TB)); a('s_mul_i32 s%d, s%d, %d'%(S_G,S_G,40*128))
        a('s_mul_i32 s%d, s%d, 3'%(S_PAR,S_H)); a('s_add_u32 s%d, s%d, s%d'%(S_PAR,S_PAR,S_PW))
        for rep_,dst in ((0,10),(1,11)):
            a('s_add_u32 s%d, s%d, %d'%(S_T0,S_PAR,6*rep_)); a('s_lshl_b32 s%d, s%d, 6'%(S_T0,S_T0))
            a('v_add_u32 v1, s%d, v0'%S_T0); a('v_mul_u32_u24 v12, 1639, v1'); a('v_lshrrev_b32 v12, 16, v12')
            a('v_mul_u32_u24 v13, 40, v12'); a('v_sub_u32 v13, v1, v13'); a('v_mul_u32_u24 v12, 10240, v12'); a('v_lshl_add_u32 v%d, v13, 7, v12'%dst)
    def accT(i,j): return ACC+(j*3+i)*4
    a('s_cmp_eq_u32 s%d, 0'%S_H); a('s_cbranch_scc0 K2Tc_1')
    for h in range(2):
        nj=3-h; nm='K2Tc_%d'%h
        a.lab(nm)
        def hkT(nj=nj):
            for j in range(nj): a('buffer_load_dwordx4 %s, v5, s[%d:%d], s%d offen offset:%d'%(vr(A1+4*j,4),SRD_C,SRD_C+3,S_SO,j*64))
        def rdT(st,sub,nj=nj):
            F=FA if st==0 else FB; m=[]
            for i in range(3): m.append('ds_read_b128 %s, v%d offset:%d'%(vr(F+i*4,4),WA[sub],i*2048))
            for j in range(nj): m.append('ds_read_b128 %s, v%d offset:%d'%(vr(F+12+j*4,4),AA,sub*5120+j*1024))
            return m
        def mfT(st,nj=nj):
            F=FA if st==0 else FB; m=[]
            for j in range(nj):
                for i in range(3):
                    c=vr(accT(i,j),4); m.append('v_mfma_f32_16x16x32_bf16 %s, %s, %s, %s'%(c,vr(F+12+j*4,4),vr(F+i*4,4),c))
            return m
        consumer_loop(a,nm+'L',SLT,NK2,WA+[AA],rdT,mfT,hook=({4:hkT,EXP.get('pfzat',1):(lambda h=h:pfz_t('%d'%h))} if EXP.get('pfz') else hkT),hook_at=4,lag=(h==0),phase=2)
        a('s_barrier')
        a('s_waitcnt vmcnt(0)')
        a('s_cmp_eq_u32 s%d, 0'%S_KH); a('s_cselect_b32 s%d, 1.0, 0'%S_T0)
        a('v_and_b32 v5, 1, v0'); a('v_lshlrev_b32 v5, 31, v5'); a('v_xor_b32 v5, s%d, v5'%S_T0)
        a('s_mul_i32 s%d, s%d, %d'%(S_T0,S_KH,PQ_MAT)); add64(a,S_T2,S_WS,WS_PQ); add64(a,S_T2,S_T2,'s%d'%S_T0); srd(a,SRD_O,S_T2,S_T2+1,PQ_MAT)
        a('s_mul_i32 s%d, s%d, 144'%(S_T0,S_TB)); a('s_mul_i32 s%d, s%d, 48'%(S_T1,S_PW)); a('s_add_u32 s%d, s%d, s%d'%(S_T0,S_T0,S_T1)); a('s_mul_i32 s%d, s%d, 1280'%(S_T0,S_T0))
        a('s_mul_i32 s%d, s%d, 320'%(S_T1,S_CT)); a('s_add_u32 s%d, s%d, s%d'%(S_T0,S_T0,S_T1)); a('s_add_u32 s%d, s%d, %d'%(S_SO,S_T0,192*h))
        a('v_mul_u32_u24 v6, 1280, v6'); a('v_lshl_add_u32 v6, v7, 4, v6')
        if EXP.get('nopA'):
            for _ in range(EXP['nopA']): a('s_nop 15')
        for j in range(nj):
            for i in range(3):
                r=accT(i,j)
                if EXP.get('plain'):
                    for p in range(4): a('v_fma_f32 v%d, v%d, v5, v%d'%(r+p,A1+4*j+p,r+p))
                else:
                    for p in range(2): a('v_pk_fma_f32 %s, %s, %s, %s op_sel:[0,1,0] op_sel_hi:[1,1,1]'%(vr(r+2*p,2),vr(A1+4*j+2*p,2),vr(4,2),vr(r+2*p,2)))
            if EXP.get('nopB'): a('s_nop 7')
            for i in range(3):
                a('s_add_u32 s%d, s%d, %d'%(S_SO2,S_SO,i*16*1280))
                a('buffer_store_dwordx4 %s, v6, s[%d:%d], s%d offen offset:%d%s'%(vr(accT(i,j),4),SRD_O,SRD_O+3,S_SO2,j*64,g2.STF))
        a('s_branch K2_end')
    a.lab('K2T_xpf')
    if g2.FUSED[0]:
        if EXP.get('t2pf'):
            a('s_waitcnt lgkmcnt(0)')
            a('s_cmp_eq_u32 s%d, 0'%S_H); a('s_cbranch_scc0 K2T_xpf7')
            a('s_lshr_b32 s%d, s%d, 1'%(S_T0,S_XCD)); a('s_lshl_b32 s%d, s%d, 9'%(S_T0,S_T0)); a('s_sub_u32 s%d, s%d, 24'%(S_T1,S_J)); a('s_lshl_b32 s%d, s%d, 6'%(S_T1,S_T1))
            a('s_add_u32 s%d, s%d, s%d'%(S_T0,S_T0,S_T1)); a('v_add_u32 v1, s%d, v0'%S_T0); a('v_lshlrev_b32 v1, 12, v1')
            a('s_lshl_b32 s%d, s%d, 11'%(S_SO,S_KH))
            srd(a,SRD_D,S_WSP,S_WSP+1,2048*4096)
            lead=EXP.get('t2lead',2)
            for k in range(lead):
                a('buffer_load_dword v2, v1, s[%d:%d], s%d offen'%(SRD_D,SRD_D+3,S_SO)); a('s_add_u32 s%d, s%d, 128'%(S_SO,S_SO))
            a('s_barrier')
            for i in range(NK2):
                a('s_barrier')
                if i+lead<NK2:
                    a('buffer_load_dword v2, v1, s[%d:%d], s%d offen'%(SRD_D,SRD_D+3,S_SO)); a('s_add_u32 s%d, s%d, 128'%(S_SO,S_SO))
            a('s_barrier')
            a('s_branch K2_end')
            a.lab('K2T_xpf7')
            a('s_sub_u32 s%d, s%d, 24'%(S_T1,S_J)); a('s_lshl_b32 s%d, s%d, 3'%(S_T1,S_T1)); a('s_add_u32 s%d, s%d, s%d'%(S_T1,S_T1,S_XCD)); a('s_mul_i32 s%d, s%d, %d'%(S_SO,S_T1,135*128))
            a('v_lshlrev_b32 v1, 7, v0')
            srd(a,SRD_D,S_WOUT,S_WOUT+1,864*1280)
            a('s_barrier')
            for i in range(NK2):
                a('s_barrier')
                if 8<=i<11:
                    a('s_mov_b32 exec_hi, 0x1fff'); a('buffer_load_dword v2, v1, s[%d:%d], s%d offen'%(SRD_D,SRD_D+3,S_SO)); a('s_mov_b32 exec_hi, -1'); a('s_add_u32 s%d, s%d, %d'%(S_SO,S_SO,45*128))
            a('s_barrier')
            a('s_branch K2_end')
        else:
            for _ in range(NK2+2): a('s_barrier')
            a('s_branch K2_end')
    else:
        if EXP.get('noxpf') or EXP.get('noxpf2'): a('s_endpgm')
        a('s_sub_u32 s%d, s%d, 24'%(S_T0,S_J)); a('s_lshl_b32 s%d, s%d, 1'%(S_T0,S_T0)); a('s_add_u32 s%d, s%d, s%d'%(S_T0,S_T0,S_H)); a('s_mul_i32 s%d, s%d, %d'%(S_SO,S_T0,540*128))
        a('v_lshlrev_b32 v1, 7, v0')
        a('s_waitcnt lgkmcnt(0)')
        srd(a,SRD_D,S_WOUT,S_WOUT+1,864*1280)
        st0=EXP.get('wpfat',13)
        for i in range(NK2):
            a('s_barrier')
            if i==st0:
                for k in range(9):
                    if k==8: a('s_mov_b32 exec_hi, 0'); a('s_mov_b32 exec_lo, 0xfffffff')
                    a('buffer_load_dword v2, v1, s[%d:%d], s%d offen'%(SRD_D,SRD_D+3,S_SO)); a('s_add_u32 s%d, s%d, 8192'%(S_SO,S_SO))
        a('s_barrier')
        a('s_endpgm')
    a.lab('K2T_prod')
    WO=2; AO=3; S_U0=S_PAR
    if EXP.get('same'): a('s_mov_b32 s%d, 0'%S_TB); a('s_mov_b32 s%d, 0'%S_CT); a('s_mov_b32 s%d, 0'%S_KH)
    a('s_sub_u32 s%d, s%d, 8'%(S_PW,S_WAVE))
    a('v_lshrrev_b32 v20, 3, v0'); a('v_and_b32 v22, 7, v0'); a('v_xor_b32 v22, v22, v20'); a('v_lshlrev_b32 v22, 4, v22'); a('v_lshl_add_u32 v%d, v20, 12, v22'%WO)
    a('s_lshl_b32 s%d, s%d, 1'%(S_T0,S_PW)); a('s_sub_u32 s%d, s%d, 2'%(S_T0,S_T0)); a('s_add_u32 s%d, s%d, 2'%(S_T1,S_PW))
    a('s_cmp_lt_u32 s%d, 4'%S_PW); a('s_cselect_b32 s%d, s%d, s%d'%(S_U0,S_T0,S_T1)); a('s_cmp_lt_u32 s%d, 2'%S_PW); a('s_cselect_b32 s%d, s%d, s%d'%(S_U0,S_PW,S_U0)); a('s_lshl_b32 s%d, s%d, 10'%(S_U0,S_U0))
    a('v_lshlrev_b32 v20, 4, v0'); a('v_add_u32 v%d, s%d, v20'%(AO,S_U0))
    a('s_mov_b32 s%d, 0'%S_SLI)
    a('s_mul_i32 s%d, s%d, %d'%(S_T0,S_CT,EXP.get('rta',0))); a('s_and_b32 s%d, s%d, 1'%(S_T1,S_TB)); a('s_mul_i32 s%d, s%d, %d'%(S_T1,S_T1,EXP.get('rtb',0)))
    a('s_add_u32 s%d, s%d, s%d'%(S_T0,S_T0,S_T1)); a('s_and_b32 s%d, s%d, 15'%(S_T0,S_T0)); a('s_lshl_b32 s%d, s%d, 7'%(S_KX,S_T0)); a('s_mul_i32 s%d, s%d, 10240'%(S_KW,S_T0))
    a('s_mul_i32 s%d, s%d, %d'%(S_T0,S_KH,AE_MAT)); a('s_mul_i32 s%d, s%d, 163840'%(S_T1,S_CT)); a('s_add_u32 s%d, s%d, s%d'%(S_SO2,S_T0,S_T1))
    a('s_mul_i32 s%d, s%d, %d'%(S_T0,S_TB,144*4096))
    a('s_waitcnt lgkmcnt(0)')
    a('s_cmp_eq_u32 s%d, 0'%S_KH); a('s_cselect_b32 s%d, s%d, s%d'%(S_T2,S_WSRE,S_WSIM)); a('s_cselect_b32 s%d, s%d, s%d'%(S_T3,S_WSRE+1,S_WSIM+1))
    add64(a,S_T2,S_T2,'s%d'%S_T0); srd(a,SRD_A,S_T2,S_T2+1,144*4096)
    add64(a,S_T2,S_WS,WS_AE); add64(a,S_T2,S_T2,'s%d'%S_SO2); srd(a,SRD_B,S_T2,S_T2+1,163840)
    def issueT():
        a('s_lshl_b32 s%d, s%d, 10'%(S_T,S_PW)); a('s_add_u32 s%d, s%d, s%d'%(S_T,S_T,S_SLI))
        a('s_lshl_b32 s%d, s%d, 15'%(S_T0,S_PW)); a('s_add_u32 s%d, s%d, s%d'%(S_T0,S_T0,S_KX))
        for i in range(2):
            a('s_add_u32 m0, s%d, %d'%(S_T,i*8192)); a('s_add_u32 s%d, s%d, %d'%(S_SO,S_T0,i*8*32768))
            a(('buffer_load_dwordx4 v%d, s[%d:%d], s%d offen lds'%(WO,SRD_A,SRD_A+3,S_SO)).replace(' lds',(' nt' if EXP.get('t2nt') else LDK[2])+' lds'))
        a('s_add_u32 s%d, s%d, s%d'%(S_T1,S_SLI,S_U0)); a('s_add_u32 m0, s%d, 18432'%S_T1); a('s_nop 0')
        a('buffer_load_dwordx4 v%d, s[%d:%d], s%d offen lds'%(AO,SRD_B,SRD_B+3,S_KW))
        l1=a.newlab('K2Tp_a'); l2=a.newlab('K2Tp_b')
        a('s_cmp_lt_u32 s%d, 2'%S_PW); a('s_cbranch_scc1 %s'%l1)
        a('s_cmp_lt_u32 s%d, 4'%S_PW); a('s_cbranch_scc0 %s'%l2)
        a('buffer_load_dwordx4 v%d, s[%d:%d], s%d offen offset:1024 lds'%(AO,SRD_B,SRD_B+3,S_KW)); a('s_branch %s'%l2)
        a.lab(l1)
        a('s_add_u32 m0, s%d, %d'%(S_T,2*8192)); a('s_add_u32 s%d, s%d, %d'%(S_SO,S_T0,2*8*32768))
        a(('buffer_load_dwordx4 v%d, s[%d:%d], s%d offen lds'%(WO,SRD_A,SRD_A+3,S_SO)).replace(' lds',(' nt' if EXP.get('t2nt') else LDK[2])+' lds'))
        a.lab(l2)
        slot_advance(a,S_SLI,SLT); a('s_add_u32 s%d, s%d, 128'%(S_KX,S_KX)); a('s_add_u32 s%d, s%d, 10240'%(S_KW,S_KW))
        a('s_cmp_eq_u32 s%d, 2048'%S_KX); a('s_cselect_b32 s%d, 0, s%d'%(S_KX,S_KX)); a('s_cselect_b32 s%d, 0, s%d'%(S_KW,S_KW))
    if g2.FUSED[0] and EXP.get('prewt'):
        c=3; n=NK2
        t2f=(' nt' if EXP.get('t2nt') else LDK[2])
        def issue_ws(slot):
            a('s_lshl_b32 s%d, s%d, 10'%(S_T,S_PW)); a('s_add_u32 s%d, s%d, %d'%(S_T,S_T,slot*SLT))
            a('s_lshl_b32 s%d, s%d, 15'%(S_T0,S_PW)); a('s_add_u32 s%d, s%d, s%d'%(S_T0,S_T0,S_KX))
            lab=a.newlab('K2Tp_w')
            for i in range(3):
                if i==2: a('s_cmp_lt_u32 s%d, 2'%S_PW); a('s_cbranch_scc0 %s'%lab)
                a('s_add_u32 m0, s%d, %d'%(S_T,i*8192)); a('s_add_u32 s%d, s%d, %d'%(S_SO,S_T0,i*8*32768))
                a('buffer_load_dwordx4 v%d, s[%d:%d], s%d offen%s lds'%(WO,SRD_A,SRD_A+3,S_SO,t2f))
            a.lab(lab)
            a('s_add_u32 s%d, s%d, 128'%(S_KX,S_KX))
        def issue_ae(slot):
            a('s_add_u32 m0, s%d, %d'%(S_U0,slot*SLT+18432)); a('s_nop 0')
            a('buffer_load_dwordx4 v%d, s[%d:%d], s%d offen lds'%(AO,SRD_B,SRD_B+3,S_KW))
            lab=a.newlab('K2Tp_e'); a('s_cmp_lt_u32 s%d, 2'%S_PW); a('s_cbranch_scc1 %s'%lab); a('s_cmp_lt_u32 s%d, 4'%S_PW); a('s_cbranch_scc0 %s'%lab)
            a('buffer_load_dwordx4 v%d, s[%d:%d], s%d offen offset:1024 lds'%(AO,SRD_B,SRD_B+3,S_KW)); a.lab(lab)
            a('s_add_u32 s%d, s%d, 10240'%(S_KW,S_KW))
        for st in range(4): issue_ws(st)
        dep_barrier(a,'K2Tp',2,S_WS,poller=True)
        gc.stamp(a,1)
        issue_ae(0); issue_ae(1)
        gc.stamp(a,2)
        a('s_waitcnt vmcnt(1)'); gc.stamp(a,3); a('s_barrier')
        issue_ae(2); issue_ae(3)
        for wv in (2,4,6):
            a('s_waitcnt vmcnt(%d)'%wv); a('s_barrier'); issueT()
        a('s_mov_b32 s%d, %d'%(S_I,n-4-3)); a.lab('K2Tp_loop')
        a('s_waitcnt vmcnt(%d)'%(2*c)); a('s_barrier'); issueT()
        a('s_sub_u32 s%d, s%d, 1'%(S_I,S_I)); a('s_cmp_lg_u32 s%d, 0'%S_I); a('s_cbranch_scc1 K2Tp_loop')
        for r in (2,1,0):
            a('s_waitcnt vmcnt(%d)'%(r*c)); a('s_barrier')
        gc.stamp(a,4)
        a('s_barrier')
    else:
        dma_producer(a,'K2Tp',NK2,3,issueT,phase=2,s_ws=S_WS,post=1)
    a('s_branch K2_end')
    kernel_tail(a,'K2',1,S_WS)
```

```python
from gen_common import *
import gen_common as gc
import struct
def f2u(f): return struct.unpack('<I',struct.pack('<f',f))[0]
WS_GR = 0x08D0000
WS_FG  = 0x08C4000
WS_FL  = 0x08CC000
FUSED=[False]
WS_LN1 = 0x08C8000
NS=4
S_WAVE=32; S_XCD=33; S_J=34; S_G=35; S_HALF=36; S_RB=37; S_CT=38; S_PW=39; S_H=40
S_I=41; S_SLI=42; S_SLC=43; S_KX=44; S_KW=45; S_T=46; S_SO=47; S_T0=48; S_T1=49; S_T2=50; S_T3=51; S_SO2=52; S_PAR=53
S_EX=54
EXP={}
LDF=''
STF=''

def srd(a,d,lo,hi,size):
    a('s_mov_b32 s%d, s%d'%(d,lo)); a('s_mov_b32 s%d, s%d'%(d+1,hi))
    if isinstance(size,int): a('s_mov_b32 s%d, 0x%x'%(d+2,size))
    else: a('s_mov_b32 s%d, %s'%(d+2,size))
    a('s_mov_b32 s%d, 0x00020000'%(d+3))
def add64(a,dlo,slo,off):
    o = off if isinstance(off,str) else '0x%x'%off
    a('s_add_u32 s%d, s%d, %s'%(dlo,slo,o)); a('s_addc_u32 s%d, s%d, 0'%(dlo+1,slo+1))
def slot_advance(a,s,SL,ns=NS):
    a('s_add_u32 s%d, s%d, %d'%(s,s,SL)); a('s_cmp_eq_u32 s%d, %d'%(s,ns*SL)); a('s_cselect_b32 s%d, 0, s%d'%(s,s))

def dma_producer(a,name,n,c,issue,tail=None,phase=1,s_ws=6,post=0):
    if EXP.get('pprio'): a('s_setprio %d'%EXP['pprio'])
    D=EXP.get('depth_'+name,EXP.get('depth',3))
    dep_barrier(a,name,phase,s_ws,poller=True)
    gc.stamp(a,1)
    P=min(EXP.get('pro%d'%phase,EXP.get('pro',2)),D+1)
    for _ in range(P): issue()
    gc.stamp(a,2)
    a('s_waitcnt vmcnt(%d)'%min(63,(P-1)*c)); gc.stamp(a,3); a('s_barrier')
    for _ in range(D+1-P): issue()
    a('s_mov_b32 s%d, %d'%(S_I,n-1-D))
    a.lab(name+'_loop')
    a('s_waitcnt vmcnt(%d)'%min(63,(D-1)*c)); a('s_barrier')
    issue()
    a('s_sub_u32 s%d, s%d, 1'%(S_I,S_I)); a('s_cmp_lg_u32 s%d, 0'%S_I); a('s_cbranch_scc1 %s_loop'%name)
    for r in range(D-1,-1,-1):
        a('s_waitcnt vmcnt(%d)'%min(63,r*c)); a('s_barrier')
    gc.stamp(a,4)
    if FUSED[0]:
        for _ in range(post): a('s_barrier')

def consumer_loop(a,name,SL,n,addr_regs,reads,mfmas,ns=NS,hook=None,hook_at=2,lag=False,nsub=2,per=1,dly=None,phase=1):
    def R(s): return [] if EXP.get('noread') else reads(s,s)
    def M(s): return [] if EXP.get('nomfma') else mfmas(s)
    book=['s_mov_b32 s%d, s%d'%(S_T0,S_SLC),'s_add_u32 s%d, s%d, %d'%(S_SLC,S_SLC,SL),'s_cmp_eq_u32 s%d, %d'%(S_SLC,ns*SL),'s_cselect_b32 s%d, 0, s%d'%(S_SLC,S_SLC),
          's_sub_u32 s%d, s%d, s%d'%(S_T0,S_SLC,S_T0),'s_add_u32 s%d, s%d, 1'%(S_I,S_I)]
    upd=['v_add_u32 v%d, s%d, v%d'%(r,S_T0,r) for r in addr_regs]
    a('s_mov_b32 s%d, 0'%S_I); a('s_mov_b32 s%d, 0'%S_SLC)
    dep_barrier(a,name,phase,6)
    if EXP.get('fine') is None: gc.stamp(a,1)
    if not lag:
        a('s_barrier')
        if EXP.get('fine') is None: gc.stamp(a,2)
        a.lab(name+'_loop')
        fine(a,1,name)
        if not EXP.get('noprio'): a('s_setprio 1')
        for s_ in range(nsub):
            for x in R(s_): a(x)
        if not EXP.get('noprio'): a('s_setprio 0')
        fine(a,2,name)
        for x in book: a(x)
        for x in upd: a(x)
        emit_hooks(a,name,hook,hook_at)
        if EXP.get('fine') is not None: a('s_sub_u32 s%d, s%d, 1'%(S_I,S_I))
        for s_ in range(nsub):
            later=sum(len(R(t)) for t in range(s_+1,nsub))
            a('s_waitcnt lgkmcnt(%d)'%(0 if EXP.get('fine') is not None else min(later,14)))
            if s_==0: fine(a,3,name)
            for x in M(s_): a(x)
        fine(a,4,name)
        if EXP.get('fine') is not None: a('s_add_u32 s%d, s%d, 1'%(S_I,S_I))
        a('s_cmp_lt_u32 s%d, %d'%(S_I,n))
        a('s_cbranch_scc0 %s_done'%name)
        a('s_barrier')
        a('s_branch %s_loop'%name)
        a.lab(name+'_done')
    else:
        a('s_barrier')
        if EXP.get('fine') is None: gc.stamp(a,2)
        for s_ in range(nsub):
            for x in R(s_): a(x)
        for x in book: a(x)
        for x in upd: a(x)
        if isinstance(hook,dict) and 1 in hook: hook[1]()
        a('s_waitcnt lgkmcnt(0)')
        a.lab(name+'_loop')
        a('s_barrier')
        fine(a,1,name)
        if EXP.get('noilv'):
            for s_ in range(nsub):
                for x in M(s_): a(x)
            fine(a,2,name)
            for s_ in range(nsub):
                for x in R(s_): a(x)
            fine(a,3,name)
        else:
            Ms=[M(s_) for s_ in range(nsub)]; allM=[m for x in Ms for m in x]
            ends=[sum(len(Ms[t]) for t in range(s_+1)) for s_ in range(nsub)]
            pend=[]
            if dly is None: dly=max(ends[0],len(allM)-len(R(0))) if allM else 0
            nxt=0
            for k_,m in enumerate(allM):
                a(m)
                while nxt<nsub-1 and k_+1>=ends[nxt]:
                    pend+=R(nxt); nxt+=1
                if k_+1>=dly:
                    for _ in range(min(per,len(pend))): a(pend.pop(0))
            fine(a,2,name)
            for x in pend: a(x)
            for x in R(nsub-1): a(x)
            fine(a,3,name)
        for x in book: a(x)
        for x in upd: a(x)
        emit_hooks(a,name,({k_:v_ for k_,v_ in hook.items() if k_!=1} if isinstance(hook,dict) else hook),hook_at)
        a('s_waitcnt lgkmcnt(0)')
        if EXP.get('fine') is not None:
            a('s_sub_u32 s%d, s%d, 1'%(S_I,S_I)); fine(a,4,name); a('s_add_u32 s%d, s%d, 1'%(S_I,S_I))
        a('s_cmp_lt_u32 s%d, %d'%(S_I,n))
        a('s_cbranch_scc1 %s_loop'%name)
        for s_ in range(nsub):
            for x in M(s_): a(x)
    if EXP.get('fine') is None: gc.stamp(a,3)

def emit_hooks(a,name,hook,hook_at):
    if hook is None: return
    H=hook if isinstance(hook,dict) else {hook_at:hook}
    for k,(at,fn) in enumerate(sorted(H.items())):
        a('s_cmp_eq_u32 s%d, %d'%(S_I,at)); a('s_cbranch_scc0 %s_nh%d'%(name,k)); fn(); a.lab('%s_nh%d'%(name,k))
def fine(a,k,name):
    if EXP.get('fine') is not None and gc.STAMPS:
        l='%s_f%d'%(name,k)
        a('s_cmp_eq_u32 s%d, %d'%(S_I,EXP['fine'])); a('s_cbranch_scc0 %s'%l); a('s_memtime s[%d:%d]'%(64+2*k,65+2*k)); a.lab(l)
def mix(a,M,F,per=2,lead=0):
    F=list(F)
    for _ in range(min(lead,len(F))): a(F.pop(0))
    for m in M:
        a(m)
        for _ in range(min(per,len(F))): a(F.pop(0))
    for x in F: a(x)

GC0=-2.0*0.7978845608028654*1.4426950408889634
GC1=GC0*0.044715
def gelu_pairs(a,pre,tmp,C0,C1,ONE):
    n=len(pre)
    for k in range(n): a('v_pk_mul_f32 %s, %s, %s'%(vr(tmp[k],2),vr(pre[k],2),vr(pre[k],2)))
    for k in range(n): a('v_pk_fma_f32 %s, %s, %s, %s'%(vr(tmp[k],2),vr(tmp[k],2),vr(C1,2),vr(C0,2)))
    for k in range(n): a('v_pk_mul_f32 %s, %s, %s'%(vr(tmp[k],2),vr(tmp[k],2),vr(pre[k],2)))
    for k in range(n):
        a('v_exp_f32 v%d, v%d'%(tmp[k],tmp[k])); a('v_exp_f32 v%d, v%d'%(tmp[k]+1,tmp[k]+1))
    for k in range(n): a('v_pk_add_f32 %s, %s, %s'%(vr(tmp[k],2),vr(tmp[k],2),vr(ONE,2)))
    for k in range(n):
        a('v_rcp_f32 v%d, v%d'%(tmp[k],tmp[k])); a('v_rcp_f32 v%d, v%d'%(tmp[k]+1,tmp[k]+1))
    for k in range(n): a('v_pk_mul_f32 %s, %s, %s'%(vr(pre[k],2),vr(pre[k],2),vr(tmp[k],2)))
def kernel_head(a,kname,pre,nwg=256):
    KCUR[0]=int(pre[1])
    if FUSED[0] and pre!='K1':
        a.lab(pre+'_entry')
        if not gc.LIGHT: gc.stamp_init(a)
        return
    a.raw('.p2align 8'); a.raw('.type %s,@function'%kname); a.lab(kname)
    if FUSED[0]: a.lab('KSTART')
    a('s_cmp_ge_u32 s2, %d'%nwg); a('s_cbranch_scc1 %s_exit'%('K3' if FUSED[0] else pre)); gc.stamp_init(a)
def wave_setup(a,pre):
    if FUSED[0] and pre!='K1': return
    a('v_lshrrev_b32 v1, 6, v0'); a('v_and_b32 v0, 63, v0'); a('s_nop 0')
    a('v_readfirstlane_b32 s%d, v1'%S_WAVE)
def kernel_tail(a,pre,kidx,s_ws):
    a.lab(pre+'_end')
    if FUSED[0] and pre!='K3':
        if pre=='K1' and not EXP.get('wwait'):
            a('s_cmp_ge_u32 s%d, 12'%S_WAVE); a('s_cbranch_scc1 K1_nw'); a('s_waitcnt vmcnt(0)'); a.lab('K1_nw'); a('s_waitcnt lgkmcnt(0)'); a('s_barrier')
        else:
            a('s_waitcnt vmcnt(0) lgkmcnt(0)'); a('s_barrier')
        l='%s_fl'%pre
        a('s_cmp_eq_u32 s%d, 0'%S_WAVE); a('s_cbranch_scc0 %s'%l)
        add64(a,88,s_ws,WS_FL+(0x2000 if pre=='K2' else 0)); srd(a,92,88,89,0x2000)
        a('s_lshl_b32 s88, s2, 5'); a('v_mov_b32 v2, 1'); a('v_mov_b32 v3, 0'); a('s_mov_b32 exec_lo, 1'); a('s_mov_b32 exec_hi, 0')
        a('buffer_store_dword v2, v3, s[92:95], s88 offen sc1'); a('s_mov_b64 exec, -1')
        a.lab(l)
        if not gc.LIGHT: gc.stamp_dump(a,kidx,s_ws,S_WAVE)
        a('s_setprio 0')
        return
    gc.stamp_dump(a,kidx,s_ws,S_WAVE); a.lab(pre+'_exit'); a('s_endpgm')
    if FUSED[0]: a.lab('KEND')
def dep_poll(a,name,phase,s_ws):
    add64(a,88,s_ws,WS_FL+(0x2000 if phase==3 else 0)); srd(a,92,88,89,0x2000)
    a('s_and_b32 s88, s2, 7'); a('s_lshr_b32 s89, s2, 3')
    a('v_mov_b32 v31, 0x7fffff00')
    if phase==2:
        a('s_cmp_ge_u32 s89, 24'); a('s_cbranch_scc1 %s_t'%name)
        a('s_mul_i32 s90, s89, 43'); a('s_lshr_b32 s90, s90, 8'); a('s_mul_i32 s90, s90, 6'); a('s_sub_u32 s90, s89, s90')
        a('s_cmp_ge_u32 s90, 3'); a('s_cselect_b32 s91, 1, 0'); a('s_cselect_b32 s89, 3, 0'); a('s_sub_u32 s90, s90, s89'); a('s_lshl_b32 s90, s90, 1')
        a('v_lshrrev_b32 v28, 3, v0'); a('v_lshlrev_b32 v28, 1, v28'); a('v_add_u32 v28, s91, v28')
        a('v_bfe_u32 v29, v0, 1, 2'); a('v_mul_u32_u24 v29, 6, v29'); a('v_and_b32 v30, 1, v0'); a('v_add_u32 v29, v29, v30'); a('v_add_u32 v29, s90, v29')
        a('v_lshl_add_u32 v28, v29, 3, v28'); a('v_cmp_gt_u32 vcc, 32, v0'); a('s_branch %s_go'%name)
        a.lab(name+'_t')
        a('s_sub_u32 s89, s89, 24'); a('s_and_b32 s89, s89, 3'); a('s_lshr_b32 s89, s89, 1'); a('s_add_u32 s89, s89, 24'); a('s_and_b32 s88, s88, 1')
        a('v_lshrrev_b32 v28, 2, v0'); a('v_lshlrev_b32 v28, 1, v28'); a('v_add_u32 v28, s88, v28')
        a('v_and_b32 v29, 3, v0'); a('v_lshlrev_b32 v29, 1, v29'); a('v_add_u32 v29, s89, v29')
        a('v_lshl_add_u32 v28, v29, 3, v28'); a('v_cmp_gt_u32 vcc, 16, v0')
        a.lab(name+'_go')
        a('v_lshlrev_b32 v28, 5, v28'); a('s_nop 1'); a('v_cndmask_b32 v28, v31, v28, vcc'); a('v_cndmask_b32_e64 v27, 1, 0, vcc')
        nset=1
    else:
        a('s_lshl_b32 s88, s88, 2'); a('s_lshr_b32 s89, s89, 3'); a('s_add_u32 s88, s88, s89'); a('s_lshr_b32 s88, s88, 1')
        a('s_lshr_b32 s89, s88, 2'); a('s_lshl_b32 s89, s89, 1'); a('s_and_b32 s88, s88, 3'); a('s_mul_i32 s88, s88, 6')
        a('v_and_b32 v28, 1, v0'); a('v_add_u32 v28, s89, v28'); a('v_lshrrev_b32 v29, 1, v0'); a('v_add_u32 v29, s88, v29'); a('v_lshl_add_u32 v28, v29, 3, v28')
        a('v_cmp_gt_u32 vcc, 12, v0'); a('v_lshlrev_b32 v28, 5, v28'); a('s_nop 0'); a('v_cndmask_b32 v28, v31, v28, vcc'); a('v_cndmask_b32_e64 v27, 1, 0, vcc')
        a('v_and_b32 v26, 7, v0'); a('v_lshrrev_b32 v29, 3, v0'); a('v_add_u32 v29, 24, v29'); a('v_lshl_add_u32 v26, v29, 3, v26'); a('v_lshlrev_b32 v26, 5, v26')
        nset=2
    a('s_mov_b32 s90, 0')
    def iss(r0,r1):
        a('buffer_load_dword v%d, v28, s[92:95], 0 offen sc1'%r0)
        if nset==2: a('buffer_load_dword v%d, v26, s[92:95], 0 offen sc1'%r1)
    def chk(r0,r1):
        a('v_or_b32 v%d, v%d, v27'%(r0,r0))
        if nset==2: a('v_min_u32 v%d, v%d, v%d'%(r0,r0,r1))
        a('v_cmp_ne_u32 vcc, 1, v%d'%r0); a('s_nop 1'); a('s_cmp_eq_u64 vcc, 0'); a('s_cbranch_scc1 %s_ok'%name)
    iss(25,24)
    a.lab(name+'_lp')
    iss(23,22); a('s_waitcnt vmcnt(%d)'%nset); chk(25,24)
    iss(21,20); a('s_waitcnt vmcnt(%d)'%nset); chk(23,22)
    iss(25,24); a('s_waitcnt vmcnt(%d)'%nset); chk(21,20)
    a('s_add_u32 s90, s90, 1'); a('s_cmp_lt_u32 s90, 2000'); a('s_cbranch_scc1 %s_lp'%name)
    a.lab(name+'_ok')
    a('s_waitcnt vmcnt(0)')
def dep_barrier(a,name,phase,s_ws,poller=False):
    if not FUSED[0] or phase==1: return
    if poller:
        l=name+'_np'; a('s_cmp_eq_u32 s%d, 8'%S_WAVE); a('s_cbranch_scc0 %s'%l); dep_poll(a,name+'_dp',phase,s_ws); a.lab(l)
    a('s_barrier')

KCUR=[1]
LDK={1:'',2:'',3:''}
class AsmF(Asm):
    def __call__(s,txt):
        import g2_common as g
        if g.EXP.get('nodma') and txt.startswith('buffer_load') and txt.rstrip().endswith('lds'): return
        Asm.__call__(s,txt)
def ld(txt):
    import g2_common as g
    return txt.replace(' lds', g.LDK[g.KCUR[0]]+' lds')

def pf_loop(a,name,n,pf,d1,d2,extra_barriers=0):
    D=EXP.get('pfd',7); pol=LDK[KCUR[0]]
    a('s_mov_b32 s%d, %d'%(S_KX,d1)); a('s_mov_b32 s%d, %d'%(S_KW,d2))
    for _ in range(min(D,n)-1): pf(pol)
    m=max(n-D,0)
    if m>0:
        a('s_mov_b32 s%d, %d'%(S_I,m))
        a.lab(name+'_loop')
        a('s_barrier'); pf(pol)
        a('s_sub_u32 s%d, s%d, 1'%(S_I,S_I)); a('s_cmp_lg_u32 s%d, 0'%S_I); a('s_cbranch_scc1 %s_loop'%name)
    for _ in range(n-m+extra_barriers): a('s_barrier')

def poll_rbs(a,name,s_ws,s_ct,s_kh,s_tb,grp,R=24,part='both'):
    AD,T1,T2,MK,OB,DT=R+4,R+5,R+6,R+3,R+7,R+1
    if part in ('both','issue'):
        add64(a,88,s_ws,WS_FL); srd(a,92,88,89,0x2000)
        base0={1:0,2:6,3:4}[grp]; base1={1:12,2:8,3:10}[grp]; nrb={1:4,2:2,3:2}[grp]; n=2*nrb
        a('s_cmp_eq_u32 s%d, 0'%s_kh); a('s_cselect_b32 s88, %d, %d'%(base0,base1))
        a('v_lshrrev_b32 v%d, 1, v0'%AD); a('v_add_u32 v%d, s88, v%d'%(AD,AD))
        if grp==3:
            a('v_mov_b32 v%d, s%d'%(T1,s_tb)); a('v_cmp_le_u32 vcc, %d, v0'%n); a('s_nop 1'); a('v_cndmask_b32 v%d, v%d, v%d, vcc'%(AD,AD,T1)); n+=2
        a('v_sub_u32 v%d, 15, v%d'%(T1,AD)); a('v_cmp_gt_u32 vcc, 8, v%d'%AD); a('v_and_b32 v%d, 1, v%d'%(T2,AD)); a('s_nop 0'); a('v_cndmask_b32 v%d, v%d, v%d, vcc'%(T1,T1,AD)); a('v_lshrrev_b32 v%d, 1, v%d'%(T1,T1))
        a('v_cndmask_b32_e64 v%d, 2, 0, vcc'%MK); a('v_add_u32 v%d, v%d, v%d'%(T2,T2,MK))
        a('s_cmp_ge_u32 s%d, 3'%s_ct); a('s_cselect_b32 s89, 1, 0'); a('s_cselect_b32 s90, 3, 0'); a('s_sub_u32 s90, s%d, s90'%s_ct); a('s_lshl_b32 s90, s90, 1')
        a('v_mul_u32_u24 v%d, 6, v%d'%(T2,T2)); a('v_and_b32 v%d, 1, v0'%MK); a('v_add_u32 v%d, v%d, v%d'%(T2,T2,MK)); a('v_add_u32 v%d, s90, v%d'%(T2,T2))
        a('v_lshlrev_b32 v%d, 1, v%d'%(T1,T1)); a('v_add_u32 v%d, s89, v%d'%(T1,T1)); a('v_lshl_add_u32 v%d, v%d, 3, v%d'%(AD,T2,T1)); a('v_lshlrev_b32 v%d, 5, v%d'%(AD,AD))
        a('v_mov_b32 v%d, 0x7fffff00'%OB); a('v_cmp_gt_u32 vcc, %d, v0'%n); a('s_nop 1'); a('v_cndmask_b32 v%d, v%d, v%d, vcc'%(AD,OB,AD)); a('v_cndmask_b32_e64 v%d, 1, 0, vcc'%MK)
        if part=='issue': a('buffer_load_dword v%d, v%d, s[92:95], 0 offen sc1'%(DT,AD))
    if part=='both' and not EXP.get('poll1'):
        D2,D3=R+2,R
        a('s_mov_b32 s90, 0')
        def iss(r): a('buffer_load_dword v%d, v%d, s[92:95], 0 offen sc1'%(r,AD))
        def chk(r):
            a('v_or_b32 v%d, v%d, v%d'%(r,r,MK)); a('v_cmp_ne_u32 vcc, 1, v%d'%r); a('s_nop 1'); a('s_cmp_eq_u64 vcc, 0'); a('s_cbranch_scc1 %s_ok'%name)
        iss(DT); iss(D2)
        a.lab(name+'_lp')
        iss(D3); a('s_waitcnt vmcnt(2)'); chk(DT)
        iss(DT); a('s_waitcnt vmcnt(2)'); chk(D2)
        iss(D2); a('s_waitcnt vmcnt(2)'); chk(D3)
        a('s_add_u32 s90, s90, 1'); a('s_cmp_lt_u32 s90, 2000'); a('s_cbranch_scc1 %s_lp'%name)
        a.lab(name+'_ok')
        a('s_waitcnt vmcnt(0)')
        return
    if part in ('both','check'):
        if part=='check': add64(a,88,s_ws,WS_FL); srd(a,92,88,89,0x2000)
        a('s_mov_b32 s90, 0')
        if part=='both': a('buffer_load_dword v%d, v%d, s[92:95], 0 offen sc1'%(DT,AD))
        a.lab(name+'_lp')
        a('s_waitcnt vmcnt(0)')
        a('v_or_b32 v%d, v%d, v%d'%(DT,DT,MK)); a('v_cmp_ne_u32 vcc, 1, v%d'%DT); a('s_nop 1'); a('s_cmp_eq_u64 vcc, 0'); a('s_cbranch_scc1 %s_ok'%name)
        a('buffer_load_dword v%d, v%d, s[92:95], 0 offen sc1'%(DT,AD))
        a('s_add_u32 s90, s90, 1'); a('s_cmp_lt_u32 s90, 4000'); a('s_cbranch_scc1 %s_lp'%name)
        a('s_waitcnt vmcnt(0)')
        a.lab(name+'_ok')
```

```python
from g2_common import *
import g2_common as g2
SLZ=34816; SLA=36864
TB=NS*SLA
T_R=TB; T_NMR=TB+512; T_CS0=TB+1024; T_CS1=TB+1664; T_W2=TB+2304
K1_LDS=TB+2304+2048
NK1=10
S_X=4; S_WS=6; S_WDRE=8; S_WDIM=10; S_WIN=12; S_DBG=14
SRD_X=16; SRD_W=20; SRD_O=24; SRD_O2=28; SRD_G=56; SRD_D=60
POLL_BOUND=4000

def stats_final(a,SUM,SQ,t,n,rout,nmrout):
    for k in range(1,len(SUM)): a('v_add_f32 v%d, v%d, v%d'%(SUM[0],SUM[0],SUM[k])); a('v_add_f32 v%d, v%d, v%d'%(SQ[0],SQ[0],SQ[k]))
    a('s_nop 1')
    a('v_add_f32_dpp v%d, v%d, v%d quad_perm:[1,0,3,2] row_mask:0xf bank_mask:0xf'%(t,SUM[0],SUM[0]))
    a('v_add_f32_dpp v%d, v%d, v%d quad_perm:[1,0,3,2] row_mask:0xf bank_mask:0xf'%(t+1,SQ[0],SQ[0]))
    a('v_mul_f32 v%d, 0x%x, v%d'%(t,f2u(1.0/n),t)); a('v_mul_f32 v%d, 0x%x, v%d'%(t+1,f2u(1.0/n),t+1))
    a('v_fma_f32 v%d, -v%d, v%d, v%d'%(t+1,t,t,t+1)); a('v_max_f32 v%d, 0, v%d'%(t+1,t+1)); a('v_add_f32 v%d, 0x%x, v%d'%(t+1,f2u(1e-5),t+1))
    a('v_rsq_f32 v%d, v%d'%(rout,t+1)); a('s_nop 0')
    a('v_mul_f32 v%d, v%d, v%d'%(nmrout,t,rout)); a('v_sub_f32 v%d, 0, v%d'%(nmrout,nmrout))

S_WSP=62
def ln1_row(a):
    a('s_lshl_b32 s%d, s2, 3'%S_T0); a('s_add_u32 s%d, s%d, s%d'%(S_T0,S_T0,S_WAVE)); a('s_mul_i32 s%d, s%d, 1280'%(S_T1,S_T0))
    a('v_lshlrev_b32 v56, 4, v0'); a('v_mov_b32 v57, 0x3f803f80')
    for k in range(4): a('v_mov_b32 v%d, 0'%(68+k))
    a('s_waitcnt lgkmcnt(0)')
    add64(a,S_T2,S_X,'s%d'%S_T1); srd(a,SRD_O,S_T2,S_T2+1,1280)
    a('buffer_load_dwordx4 v[60:63], v56, s[%d:%d], 0 offen'%(SRD_O,SRD_O+3)); a('buffer_load_dwordx4 v[64:67], v56, s[%d:%d], 0 offen offset:1024'%(SRD_O,SRD_O+3))
    add64(a,S_T2,S_WS,WS_LN1); srd(a,SRD_O2,S_T2,S_T2+1,16384)
    a('s_lshl_b32 s%d, s%d, 3'%(S_SO,S_T0))
def ln1_row_finish(a):
    a('s_waitcnt vmcnt(0)')
    for k in range(8):
        a('v_dot2_f32_bf16 v%d, v%d, v%d, v%d'%(68+(k&1),60+k,60+k,68+(k&1))); a('v_dot2_f32_bf16 v%d, v%d, v57, v%d'%(70+(k&1),60+k,70+(k&1)))
    a('s_nop 3')
    a('v_add_f32 v68, v68, v69'); a('v_add_f32 v70, v70, v71'); a('s_nop 1')
    for d in ('quad_perm:[1,0,3,2]','quad_perm:[2,3,0,1]','row_half_mirror','row_mirror'):
        a('v_add_f32_dpp v68, v68, v68 %s row_mask:0xf bank_mask:0xf'%d); a('v_add_f32_dpp v70, v70, v70 %s row_mask:0xf bank_mask:0xf'%d); a('s_nop 0')
    for sw in ('v_permlane16_swap_b32','v_permlane32_swap_b32'):
        a('v_mov_b32 v69, v68'); a('v_mov_b32 v71, v70'); a('s_nop 1')
        a('%s v68, v69'%sw); a('%s v70, v71'%sw); a('s_nop 1')
        a('v_add_f32 v68, v68, v69'); a('v_add_f32 v70, v70, v71')
    a('v_mul_f32 v70, 0x%x, v70'%f2u(1.0/640)); a('v_mul_f32 v68, 0x%x, v68'%f2u(1.0/640))
    a('v_fma_f32 v68, -v70, v70, v68'); a('v_max_f32 v68, 0, v68'); a('v_add_f32 v68, 0x%x, v68'%f2u(1e-5))
    a('v_rsq_f32 v72, v68'); a('s_nop 0'); a('v_mul_f32 v73, v70, v72'); a('v_sub_f32 v73, 0, v73')
    a('v_mov_b32 v74, 0'); a('v_cmp_eq_u32 vcc, 0, v0'); a('s_and_saveexec_b64 s[%d:%d], vcc'%(S_EX,S_EX+1))
    a('buffer_store_dwordx2 v[72:73], v74, s[%d:%d], s%d offen sc1'%(SRD_O2,SRD_O2+3,S_SO))
    a('s_mov_b64 exec, s[%d:%d]'%(S_EX,S_EX+1))
def ln1_hook(a):
    return lambda: a('s_waitcnt vmcnt(0)')

def worker(a,name,SL,isZ):
    n=NK1
    CA=14; VT=15; CF=[48,68]; CACC=88; ONES=108
    srd(a,SRD_D,S_DBG,S_DBG+1,256)
    add64(a,S_T2,S_WS,WS_GR); srd(a,SRD_G,S_T2,S_T2+1,16*12288)
    if isZ:
        a('s_cmp_eq_u32 s%d, 0'%S_PW); a('s_cbranch_scc0 %s_nojob'%name)
        a('s_mul_i32 s%d, s%d, 12288'%(S_SO,S_RB)); a('s_lshl_b32 s%d, s%d, 1'%(S_T0,S_CT)); a('s_add_u32 s%d, s%d, s%d'%(S_T0,S_T0,S_PAR)); a('s_lshl_b32 s%d, s%d, 10'%(S_T0,S_T0))
        a('s_add_u32 s%d, s%d, s%d'%(S_SO,S_SO,S_T0))
        for k in range(4): a('v_mov_b32 v%d, -1'%(8+k))
        a('v_lshlrev_b32 v3, 4, v0')
        a('buffer_store_dwordx4 v[8:11], v3, s[%d:%d], s%d offen sc1'%(SRD_G,SRD_G+3,S_SO))
        if not EXP.get('oldpoll'):
            add64(a,S_T2,S_WS,WS_FG); srd(a,SRD_O2,S_T2,S_T2+1,4096)
            a('s_lshl_b32 s%d, s%d, 8'%(S_T0,S_RB)); a('s_lshl_b32 s%d, s%d, 1'%(S_T1,S_CT)); a('s_add_u32 s%d, s%d, s%d'%(S_T1,S_T1,S_PAR)); a('s_lshl_b32 s%d, s%d, 2'%(S_T1,S_T1)); a('s_add_u32 s%d, s%d, s%d'%(S_T0,S_T0,S_T1))
            a('v_mov_b32 v12, 0'); a('v_lshlrev_b32 v13, 6, v0'); a('s_mov_b32 exec_lo, 15'); a('s_mov_b32 exec_hi, 0')
            a('buffer_store_dword v12, v13, s[%d:%d], s%d offen sc1'%(SRD_O2,SRD_O2+3,S_T0)); a('s_mov_b64 exec, -1')
        a.lab(name+'_nojob')
    if g2.FUSED[0]:
        lf=a.newlab(name+'_cf'); a('s_cmp_eq_u32 s%d, 0'%S_PW); a('s_cbranch_scc0 %s'%lf)
        add64(a,S_T2,S_WS,WS_FL); srd(a,SRD_O,S_T2,S_T2+1,0x4000)
        a('s_lshl_b32 s%d, s2, 5'%S_T0); a('v_mov_b32 v12, 0'); a('v_lshlrev_b32 v13, 13, v0'); a('s_mov_b32 exec_lo, 3'); a('s_mov_b32 exec_hi, 0')
        a('buffer_store_dword v12, v13, s[%d:%d], s%d offen sc1'%(SRD_O,SRD_O+3,S_T0)); a('s_mov_b64 exec, -1')
        a.lab(lf)
    a('s_load_dwordx2 s[86:87], s[0:1], 56'); a('s_load_dwordx4 s[96:99], s[0:1], 8'); a('s_load_dwordx2 s[88:89], s[0:1], 72')
    a('v_lshrrev_b32 v4, 4, v0'); a('v_and_b32 v5, 15, v0'); a('v_lshlrev_b32 v5, 7, v5')
    a('s_lshl_b32 s%d, s%d, 9'%(S_T0,S_G)); a('s_lshl_b32 s%d, s%d, 4'%(S_T1,S_J)); a('s_add_u32 s%d, s%d, s%d'%(S_T0,S_T0,S_T1)); a('v_add_u32 v6, s%d, v4'%S_T0)
    a('v_lshlrev_b32 v6, 12, v6'); a('v_add_u32 v6, v6, v5'); a('s_lshl_b32 s%d, s%d, 11'%(S_T0,S_HALF)); a('v_add_u32 v6, s%d, v6'%S_T0)
    a('s_mul_i32 s%d, s%d, 288'%(S_T0,S_G)); a('s_mul_i32 s%d, s%d, 9'%(S_T1,S_J)); a('s_add_u32 s%d, s%d, s%d'%(S_T0,S_T0,S_T1)); a('v_add_u32 v7, s%d, v4'%S_T0)
    a('v_lshlrev_b32 v7, 12, v7'); a('v_add_u32 v7, v7, v5')
    a('v_and_b32 v21, 15, v0'); a('v_lshlrev_b32 v21, 4, v21'); a('v_mov_b32 v20, 0')
    for r in (16,17,18,19): a('v_mov_b32 v%d, 0'%r)
    a('s_waitcnt lgkmcnt(0)')
    srd(a,SRD_W,86,87,2048*4096)
    a('s_cmp_eq_u32 s%d, 0'%S_HALF); a('s_cselect_b32 s%d, s96, s98'%S_T2); a('s_cselect_b32 s%d, s97, s99'%S_T3); srd(a,SRD_O2,S_T2,S_T3,2048*4096)
    if EXP.get('cpf'):
        l=a.newlab(name+'_cp'); a('s_cmp_eq_u32 s%d, 2'%S_PW); a('s_cbranch_scc0 %s'%l)
        lb=a.newlab(name+'_pc')
        a('s_getpc_b64 s[90:91]'); a.lab(lb)
        a('s_sub_u32 s90, s90, %s-KSTART'%lb); a('s_subb_u32 s91, s91, 0')
        srd(a,SRD_O,90,91,'KEND-KSTART')
        a('s_lshl_b32 s%d, s%d, 11'%(S_SO,S_J)); a('v_lshlrev_b32 v11, 7, v0'); a('s_mov_b32 exec_hi, 0'); a('s_mov_b32 exec_lo, 0xffff')
        a('buffer_load_dword v10, v11, s[%d:%d], s%d offen'%(SRD_O,SRD_O+3,S_SO)); a('s_mov_b64 exec, -1')
        a.lab(l)
    if EXP.get('tlbw'):
        l=a.newlab(name+'_tw'); a('s_cmp_eq_u32 s%d, 1'%S_PW); a('s_cbranch_scc0 %s'%l)
        a('s_load_dwordx2 s[90:91], s[0:1], 80'); a('v_lshlrev_b32 v11, 21, v0'); a('s_lshl_b32 s%d, s2, 7'%S_SO); a('s_and_b32 s%d, s%d, 0xffff'%(S_SO,S_SO))
        srd(a,SRD_O,S_WS,S_WS+1,0x1400000)
        a('s_mov_b32 exec_hi, 0'); a('s_mov_b32 exec_lo, 0x3ff')
        a('buffer_load_dword v10, v11, s[%d:%d], s%d offen'%(SRD_O,SRD_O+3,S_SO))
        a('s_waitcnt lgkmcnt(0)')
        srd(a,SRD_O,90,91,2048*1280)
        a('v_lshlrev_b32 v11, 20, v0'); a('s_mov_b32 exec_lo, 7')
        a('buffer_load_dword v10, v11, s[%d:%d], s%d offen'%(SRD_O,SRD_O+3,S_SO)); a('s_mov_b64 exec, -1')
        a.lab(l)
    if EXP.get('epf'):
        l=a.newlab(name+'_e3'); a('s_cmp_eq_u32 s%d, 3'%S_PW); a('s_cbranch_scc0 %s'%l)
        srd(a,SRD_O,S_WIN,S_WIN+1,640*3456)
        a('s_mul_i32 s%d, s2, %d'%(S_SO,68*128)); a('v_lshlrev_b32 v11, 7, v0')
        a('buffer_load_dword v10, v11, s[%d:%d], s%d offen'%(SRD_O,SRD_O+3,S_SO))
        a('s_add_u32 s%d, s%d, 8192'%(S_SO,S_SO)); a('s_mov_b32 exec_hi, 0'); a('s_mov_b32 exec_lo, 15')
        a('buffer_load_dword v10, v11, s[%d:%d], s%d offen'%(SRD_O,SRD_O+3,S_SO)); a('s_mov_b64 exec, -1')
        a.lab(l)
        l=a.newlab(name+'_e2'); a('s_cmp_eq_u32 s%d, 2'%S_PW); a('s_cbranch_scc0 %s'%l)
        a('s_cmp_lt_u32 s2, 128'); a('s_cselect_b32 s%d, s%d, s%d'%(S_T2,S_WDRE,S_WDIM)); a('s_cselect_b32 s%d, s%d, s%d'%(S_T3,S_WDRE+1,S_WDIM+1))
        srd(a,SRD_O,S_T2,S_T3,321*1280)
        a('s_and_b32 s%d, s2, 127'%S_SO); a('s_mul_i32 s%d, s%d, %d'%(S_SO,S_SO,25*128)); a('s_add_u32 s%d, s%d, 1280'%(S_SO,S_SO)); a('v_lshlrev_b32 v11, 7, v0')
        a('s_mov_b32 exec_hi, 0'); a('s_mov_b32 exec_lo, 0x1ffffff')
        a('buffer_load_dword v10, v11, s[%d:%d], s%d offen'%(SRD_O,SRD_O+3,S_SO)); a('s_mov_b64 exec, -1')
        a.lab(l)
    if isZ:
        a('v_and_b32 v120, 15, v0'); a('v_lshrrev_b32 v121, 4, v0'); a('v_lshrrev_b32 v122, 2, v120'); a('v_lshl_add_u32 v122, v121, 2, v122')
        a('v_mul_u32_u24 v122, 288, v122'); a('v_and_b32 v120, 3, v120'); a('v_lshl_add_u32 v122, v120, 3, v122')
        a('s_and_b32 s%d, s%d, 1'%(S_T0,S_PW)); a('s_mul_i32 s%d, s%d, 9216'%(S_T0,S_T0)); a('s_cmp_lt_u32 s%d, 2'%S_PW); a('s_cselect_b32 s%d, 160, 0'%S_T1)
        a('s_add_u32 s%d, s%d, s%d'%(S_T0,S_T0,S_T1)); a('s_add_u32 s%d, s%d, 16384'%(S_T0,S_T0)); a('v_add_u32 v%d, s%d, v122'%(CA,S_T0))
        for k in range(4): a('v_mov_b32 v%d, 0x3f803f80'%(ONES+k))
        for k in range(20): a('v_mov_b32 v%d, 0'%(CACC+k))
        for k in range(40): a('v_mov_b32 v%d, 0'%(CF[0]+k))
    def reads(st):
        a('v_add_u32 v%d, s%d, v%d'%(VT,S_SLC,CA))
        lab=a.newlab(name+'_c')
        for j in range(5):
            if j==4: a('s_cmp_lt_u32 s%d, 2'%S_PW); a('s_cbranch_scc1 %s'%lab)
            for b in range(2): a('ds_read_b64_tr_b16 %s, v%d offset:%d'%(vr(CF[st]+4*j+2*b,2),VT,b*4608+j*32))
        a.lab(lab)
    def compute(st):
        for j in range(5):
            a('v_mfma_f32_16x16x32_bf16 %s, %s, %s, %s'%(vr(CACC+4*j,4),vr(ONES,4),vr(CF[st]+4*j,4),vr(CACC+4*j,4)))
    def xpf(k,pol):
        if k<4:
            a('s_mov_b32 s%d, %d'%(S_SO,k*4*4096)); a('buffer_load_dword v10, v6, s[%d:%d], s%d offen%s'%(SRD_W,SRD_W+3,S_SO,pol))
        else:
            k-=4
            a('s_mov_b32 s%d, %d'%(S_SO,k*4*4096))
            if k==2: a('s_mov_b32 exec_hi, 0'); a('s_mov_b32 exec_lo, 0xffff')
            a('buffer_load_dword v10, v7, s[%d:%d], s%d offen%s'%(SRD_O2,SRD_O2+3,S_SO,pol))
            if k==2: a('s_mov_b64 exec, -1')
    def wout_pf():
        srd(a,SRD_O,88,89,864*1280)
        a('s_mul_i32 s%d, s2, %d'%(S_SO,34*128)); a('v_lshlrev_b32 v11, 7, v0'); a('s_mov_b32 exec_hi, 3')
        a('buffer_load_dword v10, v11, s[%d:%d], s%d offen'%(SRD_O,SRD_O+3,S_SO)); a('s_mov_b32 exec_hi, -1')
    TBL=16
    def side(i):
        pol=' nt' if not EXP.get('xpfdef') else ''
        if not (EXP.get('noxpf') or EXP.get('noxpf1')) and EXP.get('pfmid') and EXP.get('pf0',2)<=i<=EXP.get('pf0',2)+6:
            l=a.newlab(name+'_p'); a('s_cmp_eq_u32 s%d, 1'%S_PW); a('s_cbranch_scc0 %s'%l)
            kk=i-EXP.get('pf0',2)
            if not ((EXP.get('pfwonly') or EXP.get('pfsplit')==1) and kk>=4) and not (EXP.get('pfsplit')==2 and kk<4): xpf(kk,pol)
            a.lab(l)
        if EXP.get('wo1') and i==EXP.get('wo1'):
            l=a.newlab(name+'_wo'); a('s_cmp_eq_u32 s%d, 2'%S_PW); a('s_cbranch_scc0 %s'%l); wout_pf(); a.lab(l)
        if i==2:
            l=a.newlab(name+'_a'); a('s_cmp_eq_u32 s%d, 0'%S_PW); a('s_cbranch_scc0 %s'%l)
            a('s_waitcnt vmcnt(0)')
            a('v_mov_b32 v4, 1'); a('s_and_b32 s%d, s2, 15'%S_T0); a('s_lshl_b32 s%d, s%d, 4'%(S_T0,S_T0)); a('v_mov_b32 v3, s%d'%S_T0)
            a('v_cmp_eq_u32 vcc, 0, v0'); a('s_and_saveexec_b64 s[%d:%d], vcc'%(S_EX,S_EX+1))
            a('buffer_atomic_add v4, v3, s[%d:%d], 0 offen sc1'%(SRD_D,SRD_D+3))
            a('s_mov_b64 exec, s[%d:%d]'%(S_EX,S_EX+1))
            a.lab(l)
        if i==5:
            l=a.newlab(name+'_q'); a('s_cmp_eq_u32 s%d, 0'%S_PW); a('s_cbranch_scc0 %s'%l)
            a('buffer_load_dword v20, v21, s[%d:%d], 0 offen sc1'%(SRD_D,SRD_D+3))
            a.lab(l)
        if i==7:
            l=a.newlab(name+'_r'); a('s_cmp_eq_u32 s%d, 0'%S_PW); a('s_cbranch_scc0 %s'%l)
            a('s_mov_b32 s%d, 0'%S_SO2)
            lp=a.newlab(name+'_pl'); ok=a.newlab(name+'_ok')
            a.lab(lp)
            a('s_waitcnt vmcnt(0)'); a('v_cmp_gt_u32 vcc, 16, v20'); a('s_nop 1'); a('s_cmp_eq_u64 vcc, 0'); a('s_cbranch_scc1 %s'%ok)
            a('buffer_load_dword v20, v21, s[%d:%d], 0 offen sc1'%(SRD_D,SRD_D+3))
            a('s_add_u32 s%d, s%d, 1'%(S_SO2,S_SO2)); a('s_cmp_lt_u32 s%d, %d'%(S_SO2,POLL_BOUND)); a('s_cbranch_scc1 %s'%lp)
            a.lab(ok)
            add64(a,S_T2,S_WS,WS_LN1); srd(a,SRD_O,S_T2,S_T2+1,16384)
            if isZ:
                a('s_lshl_b32 s%d, s%d, 7'%(S_T0,S_RB)); a('v_add_u32 v22, s%d, v0'%S_T0); a('v_add_u32 v23, 64, v22')
            else:
                a('s_lshl_b32 s%d, s%d, 6'%(S_T0,S_RB)); a('v_add_u32 v22, s%d, v0'%S_T0); a('v_sub_u32 v23, 2048, v22')
                a('v_cmp_eq_u32 vcc, 2048, v23'); a('v_mov_b32 v24, 1024'); a('s_nop 0'); a('v_cndmask_b32 v23, v23, v24, vcc')
            a('v_lshlrev_b32 v22, 3, v22'); a('v_lshlrev_b32 v23, 3, v23')
            a('buffer_load_dwordx2 v[16:17], v22, s[%d:%d], 0 offen sc1'%(SRD_O,SRD_O+3)); a('buffer_load_dwordx2 v[18:19], v23, s[%d:%d], 0 offen sc1'%(SRD_O,SRD_O+3))
            a.lab(l)
    a('s_mov_b32 s%d, 0'%S_SLC)
    for i in range(n):
        a('s_barrier')
        if isZ and not EXP.get('nocs'): reads(i&1)
        side(i)
        if isZ and not EXP.get('nocs'):
            compute((i&1)^1); a('s_waitcnt lgkmcnt(0)'); slot_advance(a,S_SLC,SL)
    if isZ: compute((n-1)&1)
    if not (EXP.get('noxpf') or EXP.get('noxpf1') or EXP.get('pflate') or (EXP.get('pfmid') and not EXP.get('pfsplit'))):
        l=a.newlab(name+'_pe'); a('s_cmp_eq_u32 s%d, 1'%S_PW); a('s_cbranch_scc0 %s'%l)
        ks=range(4 if EXP.get('pfwonly') else 7)
        if EXP.get('pfsplit')==1: ks=range(4,7)
        if EXP.get('pfsplit')==2: ks=range(0,4)
        for k in ks: xpf(k,' nt' if not EXP.get('xpfdef') else '')
        a.lab(l)
    gc.stamp(a,3)
    l=a.newlab(name+'_w'); a('s_cmp_eq_u32 s%d, 0'%S_PW); a('s_cbranch_scc0 %s'%l)
    a('s_waitcnt vmcnt(0)'); a('v_lshlrev_b32 v26, 2, v0'); a('v_add_u32 v26, %d, v26'%T_R)
    a('ds_write_b32 v26, v16'); a('ds_write_b32 v26, v17 offset:512'); a('ds_write_b32 v26, v18 offset:256'); a('ds_write_b32 v26, v19 offset:768')
    a.lab(l)
    if isZ:
        a('s_and_b32 s%d, s%d, 1'%(S_T0,S_PW)); a('s_mul_i32 s%d, s%d, 640'%(S_T0,S_T0)); a('s_cmp_lt_u32 s%d, 2'%S_PW); a('s_cselect_b32 s%d, 320, 0'%S_T1)
        a('s_add_u32 s%d, s%d, s%d'%(S_T0,S_T0,S_T1)); a('v_and_b32 v26, 15, v0'); a('v_lshlrev_b32 v26, 2, v26'); a('v_add_u32 v26, s%d, v26'%S_T0); a('v_add_u32 v26, %d, v26'%T_CS0)
        a('s_nop 7')
        lab=a.newlab(name+'_f')
        for j in range(5):
            if j==4: a('s_cmp_lt_u32 s%d, 2'%S_PW); a('s_cbranch_scc1 %s'%lab)
            a('ds_write_b32 v26, v%d offset:%d'%(CACC+4*j,j*64))
        a.lab(lab)

    def late():
        if EXP.get('pflate') and not (EXP.get('noxpf') or EXP.get('noxpf1')):
            l=a.newlab(name+'_pl8'); a('s_cmp_eq_u32 s%d, 1'%S_PW); a('s_cbranch_scc0 %s'%l)
            ks=range(7)
            if EXP.get('pfsplit')==1: ks=range(4,7)
            if EXP.get('pfsplit')==2: ks=range(0,4)
            for k in ks: xpf(k,' nt' if not EXP.get('xpfdef') else '')
            a.lab(l)
    return late

def worker2(a):
    import g3_z as z
    name='Z2w'; n=NK1; SL=z.SL2; NSz=z.NS2
    CA=14; VT=15; CF=[48,60]; CACC=72; ONES=84
    srd(a,SRD_D,S_DBG,S_DBG+1,256)
    add64(a,S_T2,S_WS,WS_GR); srd(a,SRD_G,S_T2,S_T2+1,16*12288)
    a('s_cmp_eq_u32 s%d, 0'%S_PW); a('s_cbranch_scc0 %s_nojob'%name)
    a('s_mul_i32 s%d, s%d, 12288'%(S_SO,S_RB)); a('s_lshl_b32 s%d, s%d, 1'%(S_T0,S_CT)); a('s_add_u32 s%d, s%d, s%d'%(S_T0,S_T0,S_PAR)); a('s_lshl_b32 s%d, s%d, 10'%(S_T0,S_T0))
    a('s_add_u32 s%d, s%d, s%d'%(S_SO,S_SO,S_T0))
    for k in range(4): a('v_mov_b32 v%d, -1'%(8+k))
    a('v_lshlrev_b32 v3, 4, v0')
    a('buffer_store_dwordx4 v[8:11], v3, s[%d:%d], s%d offen sc1'%(SRD_G,SRD_G+3,S_SO))
    if g2.FUSED[0]:
        add64(a,S_T2,S_WS,WS_FL); srd(a,SRD_O,S_T2,S_T2+1,0x4000)
        a('s_lshl_b32 s%d, s2, 5'%S_T0); a('v_mov_b32 v12, 0'); a('v_lshlrev_b32 v13, 13, v0'); a('s_mov_b32 exec_lo, 3'); a('s_mov_b32 exec_hi, 0')
        a('buffer_store_dword v12, v13, s[%d:%d], s%d offen sc1'%(SRD_O,SRD_O+3,S_T0)); a('s_mov_b64 exec, -1')
    a.lab(name+'_nojob')
    a('s_load_dwordx2 s[86:87], s[0:1], 56'); a('s_load_dwordx4 s[96:99], s[0:1], 8'); a('s_load_dwordx2 s[88:89], s[0:1], 72')
    a('v_lshrrev_b32 v4, 4, v0'); a('v_and_b32 v5, 15, v0'); a('v_lshlrev_b32 v5, 7, v5')
    a('s_lshl_b32 s%d, s%d, 9'%(S_T0,S_G)); a('s_lshl_b32 s%d, s%d, 4'%(S_T1,S_J)); a('s_add_u32 s%d, s%d, s%d'%(S_T0,S_T0,S_T1)); a('v_add_u32 v6, s%d, v4'%S_T0)
    a('v_lshlrev_b32 v6, 12, v6'); a('v_add_u32 v6, v6, v5'); a('s_lshl_b32 s%d, s%d, 11'%(S_T0,S_HALF)); a('v_add_u32 v6, s%d, v6'%S_T0)
    a('s_mul_i32 s%d, s%d, 288'%(S_T0,S_G)); a('s_mul_i32 s%d, s%d, 9'%(S_T1,S_J)); a('s_add_u32 s%d, s%d, s%d'%(S_T0,S_T0,S_T1)); a('v_add_u32 v7, s%d, v4'%S_T0)
    a('v_lshlrev_b32 v7, 12, v7'); a('v_add_u32 v7, v7, v5')
    a('v_and_b32 v21, 15, v0'); a('v_lshlrev_b32 v21, 4, v21'); a('v_mov_b32 v20, 0')
    for r in (16,17,18,19): a('v_mov_b32 v%d, 0'%r)
    a('s_waitcnt lgkmcnt(0)')
    srd(a,SRD_W,86,87,2048*4096)
    a('s_cmp_eq_u32 s%d, 0'%S_HALF); a('s_cselect_b32 s%d, s96, s98'%S_T2); a('s_cselect_b32 s%d, s97, s99'%S_T3); srd(a,SRD_O2,S_T2,S_T3,2048*4096)
    a('v_and_b32 v120, 15, v0'); a('v_lshrrev_b32 v121, 4, v0'); a('v_lshrrev_b32 v122, 2, v120'); a('v_lshl_add_u32 v122, v121, 2, v122')
    a('v_mul_u32_u24 v122, 160, v122'); a('v_and_b32 v120, 3, v120'); a('v_lshl_add_u32 v122, v120, 3, v122')
    a('s_and_b32 s%d, s%d, 1'%(S_T0,S_PW)); a('s_mul_i32 s%d, s%d, 5120'%(S_T0,S_T0)); a('s_cmp_lt_u32 s%d, 2'%S_PW); a('s_cselect_b32 s%d, 0, 96'%S_T1)
    a('s_add_u32 s%d, s%d, s%d'%(S_T0,S_T0,S_T1)); a('s_add_u32 s%d, s%d, 16384'%(S_T0,S_T0)); a('v_add_u32 v%d, s%d, v122'%(CA,S_T0))
    for k in range(4): a('v_mov_b32 v%d, 0x3f803f80'%(ONES+k))
    for k in range(12): a('v_mov_b32 v%d, 0'%(CACC+k))
    for k in range(24): a('v_mov_b32 v%d, 0'%(CF[0]+k))
    def reads(st):
        a('v_add_u32 v%d, s%d, v%d'%(VT,S_SLC,CA))
        lab=a.newlab(name+'_c')
        for j in range(3):
            if j==2: a('s_cmp_lt_u32 s%d, 2'%S_PW); a('s_cbranch_scc0 %s'%lab)
            for b in range(2): a('ds_read_b64_tr_b16 %s, v%d offset:%d'%(vr(CF[st]+4*j+2*b,2),VT,b*2560+j*32))
        a.lab(lab)
    def compute(st):
        for j in range(3): a('v_mfma_f32_16x16x32_bf16 %s, %s, %s, %s'%(vr(CACC+4*j,4),vr(ONES,4),vr(CF[st]+4*j,4),vr(CACC+4*j,4)))
    def cs_write(T):
        a('s_and_b32 s%d, s%d, 1'%(S_T0,S_PW)); a('s_mul_i32 s%d, s%d, 320'%(S_T0,S_T0)); a('s_cmp_lt_u32 s%d, 2'%S_PW); a('s_cselect_b32 s%d, 0, 192'%S_T1)
        a('s_add_u32 s%d, s%d, s%d'%(S_T0,S_T0,S_T1)); a('v_and_b32 v26, 15, v0'); a('v_lshlrev_b32 v26, 2, v26'); a('v_add_u32 v26, s%d, v26'%S_T0); a('v_add_u32 v26, %d, v26'%T)
        a('s_nop 7')
        lab=a.newlab(name+'_f')
        for j in range(3):
            if j==2: a('s_cmp_lt_u32 s%d, 2'%S_PW); a('s_cbranch_scc0 %s'%lab)
            a('ds_write_b32 v26, v%d offset:%d'%(CACC+4*j,j*64))
        a.lab(lab)
    def xpf(k,pol):
        if k<4:
            a('s_mov_b32 s%d, %d'%(S_SO,k*4*4096)); a('buffer_load_dword v10, v6, s[%d:%d], s%d offen%s'%(SRD_W,SRD_W+3,S_SO,pol))
        else:
            k-=4
            a('s_mov_b32 s%d, %d'%(S_SO,k*4*4096))
            if k==2: a('s_mov_b32 exec_hi, 0'); a('s_mov_b32 exec_lo, 0xffff')
            a('buffer_load_dword v10, v7, s[%d:%d], s%d offen%s'%(SRD_O2,SRD_O2+3,S_SO,pol))
            if k==2: a('s_mov_b64 exec, -1')
    def only(w,fn):
        l=a.newlab(name+'_o'); a('s_cmp_eq_u32 s%d, %d'%(S_PW,w)); a('s_cbranch_scc0 %s'%l); fn(); a.lab(l)
    pol='' if EXP.get('xpfdef') else ' nt'
    PG=88
    def side(i):
        if not EXP.get('noxpf'):
            ws0=EXP.get('z2ws',2); wp0=EXP.get('z2wp',12)
            if ws0<=i<ws0+3: only(3,lambda: xpf(4+i-ws0,pol))
            if wp0<=i<wp0+4: only(3,lambda: xpf(i-wp0,pol))
            if EXP.get('wo1') and i==EXP.get('wo1'):
                def wo():
                    srd(a,SRD_O,88,89,864*1280)
                    a('s_mul_i32 s%d, s2, %d'%(S_SO,34*128)); a('v_lshlrev_b32 v11, 7, v0'); a('s_mov_b32 exec_hi, 3')
                    a('buffer_load_dword v10, v11, s[%d:%d], s%d offen'%(SRD_O,SRD_O+3,S_SO)); a('s_mov_b32 exec_hi, -1')
                only(3,wo)
        if i==2:
            def cnt():
                a('s_waitcnt vmcnt(0)')
                a('v_mov_b32 v4, 1'); a('s_and_b32 s%d, s2, 15'%S_T0); a('s_lshl_b32 s%d, s%d, 4'%(S_T0,S_T0)); a('v_mov_b32 v3, s%d'%S_T0)
                a('v_cmp_eq_u32 vcc, 0, v0'); a('s_and_saveexec_b64 s[%d:%d], vcc'%(S_EX,S_EX+1))
                a('buffer_atomic_add v4, v3, s[%d:%d], 0 offen sc1'%(SRD_D,SRD_D+3)); a('s_mov_b64 exec, s[%d:%d]'%(S_EX,S_EX+1))
            only(0,cnt)
        if i==5: only(0,lambda: a('buffer_load_dword v20, v21, s[%d:%d], 0 offen sc1'%(SRD_D,SRD_D+3)))
        if i==7:
            def tab():
                a('s_mov_b32 s%d, 0'%S_SO2)
                lp=a.newlab(name+'_pl'); ok=a.newlab(name+'_ok')
                a.lab(lp)
                a('s_waitcnt vmcnt(0)'); a('v_cmp_gt_u32 vcc, 16, v20'); a('s_nop 1'); a('s_cmp_eq_u64 vcc, 0'); a('s_cbranch_scc1 %s'%ok)
                a('buffer_load_dword v20, v21, s[%d:%d], 0 offen sc1'%(SRD_D,SRD_D+3))
                a('s_add_u32 s%d, s%d, 1'%(S_SO2,S_SO2)); a('s_cmp_lt_u32 s%d, %d'%(S_SO2,POLL_BOUND)); a('s_cbranch_scc1 %s'%lp)
                a.lab(ok)
                add64(a,S_T2,S_WS,WS_LN1); srd(a,SRD_O,S_T2,S_T2+1,16384)
                a('s_lshl_b32 s%d, s%d, 7'%(S_T0,S_RB)); a('v_add_u32 v22, s%d, v0'%S_T0); a('v_add_u32 v23, 64, v22')
                a('v_lshlrev_b32 v22, 3, v22'); a('v_lshlrev_b32 v23, 3, v23')
                a('buffer_load_dwordx2 v[16:17], v22, s[%d:%d], 0 offen sc1'%(SRD_O,SRD_O+3)); a('buffer_load_dwordx2 v[18:19], v23, s[%d:%d], 0 offen sc1'%(SRD_O,SRD_O+3))
            only(0,tab)
        if i==10:
            def pub(r0):
                a('v_lshlrev_b32 v26, 2, v0'); a('v_add_u32 v26, %d, v26'%(z.T_PS+r0*4))
                a('ds_read_b32 v28, v26'); a('ds_read_b32 v29, v26 offset:512'); a('ds_read_b32 v30, v26 offset:1024'); a('ds_read_b32 v31, v26 offset:1536')
                a('s_mul_i32 s%d, s%d, 12288'%(S_SO,S_RB)); a('s_lshl_b32 s%d, s%d, 1'%(S_T0,S_CT)); a('s_add_u32 s%d, s%d, s%d'%(S_T0,S_T0,S_PAR)); a('s_lshl_b32 s%d, s%d, 10'%(S_T0,S_T0))
                a('s_add_u32 s%d, s%d, s%d'%(S_T0,S_T0,S_SO)); a('s_add_u32 s%d, s%d, %d'%(S_T0,S_T0,r0*8))
                a('v_lshlrev_b32 v27, 3, v0'); a('s_waitcnt lgkmcnt(0)')
                a('v_add_f32 v32, v28, v29'); a('v_add_f32 v33, v30, v31')
                a('buffer_store_dwordx2 v[32:33], v27, s[%d:%d], s%d offen sc1'%(SRD_G,SRD_G+3,S_T0))
            only(1,lambda: pub(0)); only(2,lambda: pub(64))
        def gr_issue(r0):
            a('s_mul_i32 s%d, s%d, 12288'%(S_SO,S_RB)); a('s_add_u32 s%d, s%d, %d'%(S_SO,S_SO,r0*8)); a('v_lshlrev_b32 v27, 3, v0'); a('v_add_u32 v34, 4096, v27'); a('v_add_u32 v35, 8192, v27')
            for k in range(12): a('buffer_load_dwordx2 %s, v%d, s[%d:%d], s%d offen offset:%d sc1'%(vr(PG+2*k,2),(27,34,35)[k//4],SRD_G,SRD_G+3,S_SO,(k%4)*1024))
        if i==EXP.get('z2pi',13):
            only(1,lambda: gr_issue(0)); only(2,lambda: gr_issue(64))
        if i==15:
            def fin(r0):
                lp=a.newlab(name+'_gp'); ok=a.newlab(name+'_gk')
                a('s_mov_b32 s%d, 0'%S_SO2)
                a.lab(lp)
                a('s_waitcnt vmcnt(0)')
                a('v_max3_u32 v36, v%d, v%d, v%d'%(PG,PG+1,PG+2))
                for k in range(3,24,2):
                    a('v_max3_u32 v36, v36, v%d, v%d'%(PG+k,PG+k+1) if k+1<24 else 'v_max_u32 v36, v36, v%d'%(PG+k))
                a('v_cmp_eq_u32 vcc, -1, v36'); a('s_nop 1'); a('s_cmp_eq_u64 vcc, 0'); a('s_cbranch_scc1 %s'%ok)
                gr_issue(r0)
                a('s_add_u32 s%d, s%d, 1'%(S_SO2,S_SO2)); a('s_cmp_lt_u32 s%d, %d'%(S_SO2,POLL_BOUND)); a('s_cbranch_scc1 %s'%lp)
                a('s_waitcnt vmcnt(0)')
                a.lab(ok)
                for k in range(1,12): a('v_add_f32 v%d, v%d, v%d'%(PG,PG,PG+2*k)); a('v_add_f32 v%d, v%d, v%d'%(PG+1,PG+1,PG+2*k+1))
                a('v_mul_f32 v%d, 0x%x, v%d'%(PG,f2u(1.0/864),PG)); a('v_mul_f32 v%d, 0x%x, v%d'%(PG+1,f2u(1.0/864),PG+1))
                a('v_fma_f32 v%d, -v%d, v%d, v%d'%(PG+1,PG,PG,PG+1)); a('v_max_f32 v%d, 0, v%d'%(PG+1,PG+1)); a('v_add_f32 v%d, 0x%x, v%d'%(PG+1,f2u(1e-5),PG+1))
                a('v_rsq_f32 v%d, v%d'%(PG+2,PG+1)); a('s_nop 0'); a('v_mul_f32 v%d, v%d, v%d'%(PG+3,PG,PG+2)); a('v_sub_f32 v%d, 0, v%d'%(PG+3,PG+3))
                a('v_lshlrev_b32 v26, 2, v0'); a('v_add_u32 v26, %d, v26'%(z.T_R2+r0*4))
                a('ds_write_b32 v26, v%d'%(PG+2)); a('ds_write_b32 v26, v%d offset:512'%(PG+3))
            only(1,lambda: fin(0)); only(2,lambda: fin(64))
    a('s_mov_b32 s%d, 0'%S_SLC)
    for i in range(2*n):
        if i==n:
            compute((n-1)&1); cs_write(z.T_CS1)
            def tw():
                a('s_waitcnt vmcnt(0)'); a('v_lshlrev_b32 v26, 2, v0'); a('v_add_u32 v26, %d, v26'%T_R)
                a('ds_write_b32 v26, v16'); a('ds_write_b32 v26, v17 offset:512'); a('ds_write_b32 v26, v18 offset:256'); a('ds_write_b32 v26, v19 offset:768')
            only(0,tw)
            a('s_waitcnt lgkmcnt(0)')
            for k in range(12): a('v_mov_b32 v%d, 0'%(CACC+k))
            for k in range(24): a('v_mov_b32 v%d, 0'%(CF[0]+k))
            a('s_barrier')
        a('s_barrier')
        reads(i&1)
        side(i)
        compute((i&1)^1); a('s_waitcnt lgkmcnt(0)'); slot_advance(a,S_SLC,SL,NSz)
    compute((2*n-1)&1); cs_write(z.T_CS2)
    gc.stamp(a,3)
    a('s_waitcnt lgkmcnt(0)'); a('s_barrier')

def krot(a):
    if EXP.get('norot'): a('s_mov_b32 s%d, 0'%S_T0); return
    a('s_mul_i32 s%d, s%d, 5'%(S_T0,S_G)); a('s_lshr_b32 s%d, s%d, 1'%(S_T0,S_T0))
    a('s_mul_i32 s%d, s%d, %d'%(S_T1,S_HALF,EXP.get('rothalf',4))); a('s_add_u32 s%d, s%d, s%d'%(S_T0,S_T0,S_T1))
    a('s_cmp_ge_u32 s%d, 10'%S_T0); a('s_cselect_b32 s%d, 10, 0'%S_T1); a('s_sub_u32 s%d, s%d, s%d'%(S_T0,S_T0,S_T1))

def gen_k1(a,kname):
    kernel_head(a,kname,'K1')
    a('s_load_dwordx2 s[%d:%d], s[0:1], 0'%(S_X,S_X+1))
    a('s_load_dwordx4 s[%d:%d], s[0:1], 24'%(S_WDRE,S_WDRE+3))
    a('s_load_dwordx2 s[%d:%d], s[0:1], 48'%(S_WIN,S_WIN+1))
    a('s_load_dwordx2 s[%d:%d], s[0:1], 88'%(S_DBG,S_DBG+1))
    a('s_load_dwordx2 s[%d:%d], s[0:1], 96'%(S_WS,S_WS+1))
    wave_setup(a,'K1')
    a('s_and_b32 s%d, s2, 7'%S_XCD); a('s_lshr_b32 s%d, s2, 3'%S_J)
    a('s_lshr_b32 s%d, s%d, 1'%(S_G,S_XCD)); a('s_and_b32 s%d, s%d, 1'%(S_HALF,S_XCD))
    a('s_cmp_ge_u32 s%d, 24'%S_J); a('s_cbranch_scc1 K1A_entry')
    a('s_mul_i32 s%d, s%d, 43'%(S_T0,S_J)); a('s_lshr_b32 s%d, s%d, 8'%(S_T0,S_T0))
    a('s_mul_i32 s%d, s%d, 6'%(S_T1,S_T0)); a('s_sub_u32 s%d, s%d, s%d'%(S_T1,S_J,S_T1))
    a('s_and_b32 s%d, s%d, 1'%(S_PAR,S_T1)); a('s_lshr_b32 s%d, s%d, 1'%(S_T1,S_T1)); a('s_mul_i32 s%d, s%d, 3'%(S_CT,S_HALF)); a('s_add_u32 s%d, s%d, s%d'%(S_CT,S_CT,S_T1))
    a('s_lshl_b32 s%d, s%d, 1'%(S_T1,S_G)); a('s_add_u32 s%d, s%d, s%d'%(S_T2,S_T1,S_T0))
    a('s_sub_u32 s%d, s%d, s%d'%(S_T3,S_T0,S_T1)); a('s_add_u32 s%d, s%d, 12'%(S_T3,S_T3))
    a('s_cmp_lt_u32 s%d, 2'%S_T0); a('s_cselect_b32 s%d, s%d, s%d'%(S_RB,S_T2,S_T3))
    if EXP.get('two'):
        import g3_z
        g3_z.gen_z(a)
    if EXP.get('dma7'): a('s_cmp_ge_u32 s%d, 13'%S_WAVE); a('s_cbranch_scc1 K1Z_prod7')
    a('s_cmp_ge_u32 s%d, 12'%S_WAVE); a('s_cbranch_scc1 K1Z_work')
    a('s_cmp_ge_u32 s%d, 8'%S_WAVE); a('s_cbranch_scc1 K1Z_prod')
    ACC=16; FA=56; FB=84; XA=[112,113]; WA=116
    a('s_and_b32 s%d, s%d, 3'%(S_PW,S_WAVE)); a('s_lshr_b32 s%d, s%d, 2'%(S_H,S_WAVE))
    a('v_and_b32 v1, 15, v0'); a('v_lshrrev_b32 v2, 4, v0')
    a('v_and_b32 v3, 7, v0'); a('v_xor_b32 v3, v3, v2'); a('v_lshlrev_b32 v3, 4, v3'); a('v_lshl_add_u32 v3, v1, 7, v3')
    a('s_lshl_b32 s%d, s%d, 12'%(S_T0,S_PW)); a('v_add_u32 v%d, s%d, v3'%(XA[0],S_T0)); a('v_xor_b32 v%d, 64, v%d'%(XA[1],XA[0]))
    a('v_lshrrev_b32 v3, 2, v1'); a('v_lshl_add_u32 v3, v2, 2, v3'); a('v_mul_u32_u24 v3, 288, v3'); a('v_and_b32 v4, 3, v1'); a('v_lshl_add_u32 v3, v4, 3, v3')
    a('s_mul_i32 s%d, s%d, 160'%(S_T0,S_H)); a('v_add_u32 v%d, s%d, v3'%(WA,S_T0))
    ln1_row(a)
    for k in range(40): a('v_mov_b32 v%d, 0'%(ACC+k))
    ln1_row_finish(a)
    def acc(i,j): return ACC+(j*2+i)*4
    a('s_cmp_eq_u32 s%d, s%d'%(S_H,S_PAR)); a('s_cselect_b32 s%d, 0, 2'%S_T0); a('s_add_u32 s%d, s%d, s%d'%(S_T0,S_T0,S_H))
    for t,lab in ((1,'K1c_z2_1'),(2,'K1c_z1_0'),(3,'K1c_z1_1')):
        a('s_cmp_eq_u32 s%d, %d'%(S_T0,t)); a('s_cbranch_scc1 %s'%lab)
    for role in ('z2','z1'):
      for h in range(2):
        nj=5-h; nm='K1c_%s_%d'%(role,h)
        a.lab(nm)
        def rd(st,sub,nj=nj):
            F=FA if st==0 else FB; m=[]
            for i in range(2): m.append('ds_read_b128 %s, v%d offset:%d'%(vr(F+i*4,4),XA[sub],i*2048))
            for j in range(nj):
                for b in range(2): m.append('ds_read_b64_tr_b16 %s, v%d offset:%d'%(vr(F+8+j*4+b*2,2),WA,16384+sub*9216+b*4608+j*32))
            return m
        def mf(st,role=role,nj=nj):
            F=FA if st==0 else FB; m=[]
            for j in range(nj):
                for i in range(2):
                    x=vr(F+i*4,4); w=vr(F+8+j*4,4); c=vr(acc(i,j),4)
                    m.append('v_mfma_f32_16x16x32_bf16 %s, %s, %s, %s'%((c,x,w,c) if role=='z2' else (c,w,x,c)))
            return m
        consumer_loop(a,nm+'L',SLZ,NK1,XA+[WA],rd,mf,lag=(h==0),hook=ln1_hook(a),hook_at=2,per=EXP.get('k1per',2),dly=EXP.get('k1dly',12))
        a('s_barrier')
        if EXP.get('fine') is None: gc.stamp(a,4)
        C0=112;C1=114;ONE=116
        a('v_mov_b32 v%d, 0x%x'%(C0,f2u(GC0))); a('v_mov_b32 v%d, 0x%x'%(C0+1,f2u(GC0)))
        a('v_mov_b32 v%d, 0x%x'%(C1,f2u(GC1))); a('v_mov_b32 v%d, 0x%x'%(C1+1,f2u(GC1)))
        a('v_mov_b32 v%d, 1.0'%ONE); a('v_mov_b32 v%d, 1.0'%(ONE+1))
        TMP=[56,58,60,62]; prs=[(i,p) for i in range(2) for p in range(2)]
        if role=='z2':
            if not EXP.get('noz2prio'): a('s_setprio 3')
            RR=64; NM=72; CS=80; CSb=86; SUM=92; SQ=100; GRN=56; VO=118; PK=108
            a('s_lshl_b32 s%d, s%d, 7'%(S_T0,S_PW)); a('v_lshlrev_b32 v3, 4, v2'); a('v_add_u32 v3, s%d, v3'%S_T0); a('v_add_u32 v3, %d, v3'%T_R)
            for i in range(2):
                a('ds_read_b128 %s, v3 offset:%d'%(vr(RR+4*i,4),i*64)); a('ds_read_b128 %s, v3 offset:%d'%(vr(NM+4*i,4),512+i*64))
            a('v_lshlrev_b32 v4, 2, v1'); a('v_add_u32 v4, %d, v4'%(T_CS0+h*320))
            for j in range(nj):
                a('ds_read_b32 v%d, v4 offset:%d'%(CS+j,j*64)); a('ds_read_b32 v%d, v4 offset:%d'%(CSb+j,640+j*64))
            for k in range(8): a('v_mov_b32 v%d, 0'%(SUM+k)); a('v_mov_b32 v%d, 0'%(SQ+k))
            add64(a,S_T2,S_WS,WS_GR); srd(a,SRD_G,S_T2,S_T2+1,16*12288)
            a('s_mul_i32 s%d, s%d, 12288'%(S_SO,S_RB))
            a('s_lshl_b32 s%d, s%d, 1'%(S_T0,S_CT)); a('s_add_u32 s%d, s%d, %d'%(S_T0,S_T0,h)); a('s_lshl_b32 s%d, s%d, 10'%(S_T0,S_T0))
            a('s_lshl_b32 s%d, s%d, 8'%(S_T1,S_PW)); a('s_add_u32 s%d, s%d, s%d'%(S_T0,S_T0,S_T1)); a('s_add_u32 s%d, s%d, s%d'%(S_SO2,S_SO,S_T0))
            a('s_waitcnt lgkmcnt(0)')
            for j in range(nj): a('v_add_f32 v%d, v%d, v%d'%(CS+j,CS+j,CSb+j))
            for j in range(nj):
                csr=CS+j; cspair=vr(csr&~1,2); sel=csr&1
                for k,(i,p) in enumerate(prs): a('v_pk_mul_f32 %s, %s, %s op_sel:[0,%d] op_sel_hi:[1,%d]'%(vr(TMP[k],2),vr(NM+4*i+2*p,2),cspair,sel,sel))
                for k,(i,p) in enumerate(prs):
                    r=acc(i,j)+2*p; a('v_pk_fma_f32 %s, %s, %s, %s'%(vr(r,2),vr(r,2),vr(RR+4*i+2*p,2),vr(TMP[k],2)))
                gelu_pairs(a,[acc(i,j)+2*p for (i,p) in prs],TMP,C0,C1,ONE)
                for k,(i,p) in enumerate(prs):
                    r=acc(i,j)+2*p
                    a('v_pk_add_f32 %s, %s, %s'%(vr(SUM+4*i+2*p,2),vr(SUM+4*i+2*p,2),vr(r,2)))
                    a('v_pk_fma_f32 %s, %s, %s, %s'%(vr(SQ+4*i+2*p,2),vr(r,2),vr(r,2),vr(SQ+4*i+2*p,2)))
            if EXP.get('z2st'): gc.stamp(a,1)
            for sh in (8,4,2):
                for k in range(8): a('v_add_f32_dpp v%d, v%d, v%d row_ror:%d row_mask:0xf bank_mask:0xf'%(SUM+k,SUM+k,SUM+k,sh))
                for k in range(8): a('v_add_f32_dpp v%d, v%d, v%d row_ror:%d row_mask:0xf bank_mask:0xf'%(SQ+k,SQ+k,SQ+k,sh))
            for k in range(8): a('v_add_f32_dpp v%d, v%d, v%d row_ror:1 row_mask:0xf bank_mask:0xf'%(GRN+2*k,SUM+k,SUM+k))
            for k in range(8): a('v_add_f32_dpp v%d, v%d, v%d row_ror:1 row_mask:0xf bank_mask:0xf'%(GRN+2*k+1,SQ+k,SQ+k))
            a('v_lshlrev_b32 v3, 5, v2'); a('v_cmp_eq_u32 vcc, 0, v1'); a('s_and_saveexec_b64 s[%d:%d], vcc'%(S_EX,S_EX+1))
            for i in range(2):
                for p in range(2): a('buffer_store_dwordx4 %s, v3, s[%d:%d], s%d offen offset:%d sc1'%(vr(GRN+8*i+4*p,4),SRD_G,SRD_G+3,S_SO2,i*128+p*16))
            a('s_mov_b64 exec, s[%d:%d]'%(S_EX,S_EX+1))
            if EXP.get('z2st'): gc.stamp(a,2)
            PL=72
            if not EXP.get('oldpoll'):
                add64(a,S_T2,S_WS,WS_FG); srd(a,SRD_O2,S_T2,S_T2+1,4096)
                a('s_lshl_b32 s%d, s%d, 8'%(S_T0,S_RB)); a('s_lshl_b32 s%d, s%d, 6'%(S_T1,S_PW)); a('s_add_u32 s%d, s%d, s%d'%(S_T0,S_T0,S_T1))
                a('s_lshl_b32 s%d, s%d, 1'%(S_T1,S_CT)); a('s_add_u32 s%d, s%d, %d'%(S_T1,S_T1,h)); a('s_lshl_b32 s%d, s%d, 2'%(S_T1,S_T1)); a('s_add_u32 s%d, s%d, s%d'%(S_T1,S_T1,S_T0))
                a('v_mov_b32 v6, 1'); a('v_mov_b32 v7, 0'); a('s_mov_b32 exec_lo, 1'); a('s_mov_b32 exec_hi, 0')
                a('buffer_store_dword v6, v7, s[%d:%d], s%d offen sc1'%(SRD_O2,SRD_O2+3,S_T1)); a('s_mov_b64 exec, -1')
                a('v_lshlrev_b32 v7, 2, v0'); a('v_mov_b32 v8, 0x7fffff00'); a('v_cmp_gt_u32 vcc, 12, v0'); a('s_nop 1'); a('v_cndmask_b32 v7, v8, v7, vcc'); a('v_cndmask_b32_e64 v8, 1, 0, vcc')
                a('s_mov_b32 s%d, 0'%S_I)
                a('buffer_load_dword v9, v7, s[%d:%d], s%d offen sc1'%(SRD_O2,SRD_O2+3,S_T0))
                a.lab(nm+'_hp')
                for r0,r1 in ((9,10),(10,9)):
                    a('buffer_load_dword v%d, v7, s[%d:%d], s%d offen sc1'%(r1,SRD_O2,SRD_O2+3,S_T0)); a('s_waitcnt vmcnt(1)')
                    a('v_or_b32 v11, v%d, v8'%r0); a('v_cmp_ne_u32 vcc, 1, v11'); a('s_nop 1'); a('s_cmp_eq_u64 vcc, 0'); a('s_cbranch_scc1 %s_hok'%nm)
                a('s_add_u32 s%d, s%d, 1'%(S_I,S_I)); a('s_cmp_lt_u32 s%d, %d'%(S_I,POLL_BOUND)); a('s_cbranch_scc1 %s_hp'%nm)
                a.lab(nm+'_hok')
            a('v_and_b32 v4, 31, v0'); a('v_lshrrev_b32 v5, 5, v0'); a('v_mul_u32_u24 v5, 6144, v5'); a('v_lshl_add_u32 v4, v4, 3, v5')
            a('s_lshl_b32 s%d, s%d, 8'%(S_T1,S_PW)); a('v_add_u32 v4, s%d, v4'%S_T1); a('v_add_u32 v5, 4096, v4')
            a('s_mov_b32 s%d, 0'%S_I)
            a.lab(nm+'_poll')
            for k in range(6): a('buffer_load_dwordx2 %s, v%d, s[%d:%d], s%d offen offset:%d sc1'%(vr(PL+2*k,2),4 if k<4 else 5,SRD_G,SRD_G+3,S_SO,(k%4)*1024))
            a('s_waitcnt vmcnt(0)')
            a('v_max3_u32 v6, v%d, v%d, v%d'%(PL,PL+1,PL+2))
            for k in range(3,12,2):
                a('v_max3_u32 v6, v6, v%d, v%d'%(PL+k,PL+k+1) if k+1<12 else 'v_max_u32 v6, v6, v%d'%(PL+k))
            a('v_cmp_eq_u32 s[%d:%d], -1, v6'%(S_EX,S_EX+1)); a('s_nop 1'); a('s_cmp_eq_u64 s[%d:%d], 0'%(S_EX,S_EX+1)); a('s_cbranch_scc1 %s_rdy'%nm)
            a('s_add_u32 s%d, s%d, 1'%(S_I,S_I)); a('s_cmp_lt_u32 s%d, %d'%(S_I,POLL_BOUND)); a('s_cbranch_scc1 %s_poll'%nm)
            a.lab(nm+'_rdy')
            if EXP.get('z2st'): gc.stamp(a,3)
            a('v_pk_add_f32 %s, %s, %s'%(vr(PL,2),vr(PL,2),vr(PL+2,2))); a('v_pk_add_f32 %s, %s, %s'%(vr(PL+4,2),vr(PL+4,2),vr(PL+6,2))); a('v_pk_add_f32 %s, %s, %s'%(vr(PL+8,2),vr(PL+8,2),vr(PL+10,2)))
            a('v_pk_add_f32 %s, %s, %s'%(vr(PL,2),vr(PL,2),vr(PL+4,2))); a('v_pk_add_f32 %s, %s, %s'%(vr(PL,2),vr(PL,2),vr(PL+8,2)))
            a('v_mov_b32 v%d, v%d'%(PL+2,PL)); a('v_mov_b32 v%d, v%d'%(PL+3,PL+1)); a('s_nop 1')
            a('v_permlane32_swap_b32 v%d, v%d'%(PL,PL+2)); a('v_permlane32_swap_b32 v%d, v%d'%(PL+1,PL+3)); a('s_nop 1')
            a('v_pk_add_f32 %s, %s, %s'%(vr(PL,2),vr(PL,2),vr(PL+2,2)))
            a('v_mul_f32 v%d, 0x%x, v%d'%(PL,f2u(1.0/864),PL)); a('v_mul_f32 v%d, 0x%x, v%d'%(PL+1,f2u(1.0/864),PL+1))
            a('v_fma_f32 v%d, -v%d, v%d, v%d'%(PL+1,PL,PL,PL+1)); a('v_max_f32 v%d, 0, v%d'%(PL+1,PL+1)); a('v_add_f32 v%d, 0x%x, v%d'%(PL+1,f2u(1e-5),PL+1))
            a('v_rsq_f32 v%d, v%d'%(PL+2,PL+1)); a('s_nop 0'); a('v_mul_f32 v%d, v%d, v%d'%(PL+3,PL,PL+2)); a('v_sub_f32 v%d, 0, v%d'%(PL+3,PL+3))
            a('s_lshl_b32 s%d, s%d, 8'%(S_T0,S_WAVE)); a('s_add_u32 s%d, s%d, %d'%(S_T0,S_T0,T_W2))
            a('v_and_b32 v4, 31, v0'); a('v_lshlrev_b32 v4, 2, v4'); a('v_add_u32 v4, s%d, v4'%S_T0)
            a('ds_write_b32 v4, v%d'%(PL+2)); a('ds_write_b32 v4, v%d offset:128'%(PL+3))
            a('v_lshlrev_b32 v5, 4, v2'); a('v_add_u32 v5, s%d, v5'%S_T0)
            a('s_waitcnt lgkmcnt(0)')
            for i in range(2):
                a('ds_read_b128 %s, v5 offset:%d'%(vr(RR+4*i,4),i*64)); a('ds_read_b128 %s, v5 offset:%d'%(vr(84+4*i,4),128+i*64))
            NM2=84
            a('s_mul_i32 s%d, s%d, %d'%(S_T0,S_CT,Z2_CT)); a('s_lshl_b32 s%d, s%d, 1'%(S_T1,S_RB)); a('s_lshr_b32 s%d, s%d, 1'%(S_T2,S_PW))
            a('s_add_u32 s%d, s%d, s%d'%(S_T1,S_T1,S_T2)); a('s_mul_i32 s%d, s%d, 18432'%(S_T1,S_T1)); a('s_add_u32 s%d, s%d, s%d'%(S_T0,S_T0,S_T1))
            a('s_and_b32 s%d, s%d, 1'%(S_T1,S_PW)); a('s_mul_i32 s%d, s%d, 9216'%(S_T1,S_T1)); a('s_add_u32 s%d, s%d, s%d'%(S_T0,S_T0,S_T1))
            a('s_add_u32 s%d, s%d, %d'%(S_SO,S_T0,5120*h))
            srd(a,SRD_O,S_WS,S_WS+1,6*Z2_CT)
            a('v_lshlrev_b32 v%d, 4, v0'%VO)
            a('s_waitcnt lgkmcnt(0)')
            for j in range(nj):
                for k,(i,p) in enumerate(prs):
                    r=acc(i,j)+2*p; a('v_pk_fma_f32 %s, %s, %s, %s'%(vr(r,2),vr(r,2),vr(RR+4*i+2*p,2),vr(NM2+4*i+2*p,2)))
                o=PK+4*(j&1)
                for k,(i,p) in enumerate(prs):
                    r=acc(i,j)+2*p; a('v_cvt_pk_bf16_f32 v%d, v%d, v%d'%(o+k,r,r+1))
                a('s_nop 1')
                a('v_permlane32_swap_b32 v%d, v%d'%(o,o+2)); a('v_permlane32_swap_b32 v%d, v%d'%(o+1,o+3)); a('s_nop 1')
                a('v_permlane16_swap_b32 v%d, v%d'%(o,o+2)); a('v_permlane16_swap_b32 v%d, v%d'%(o+1,o+3))
                if j<4: a('buffer_store_dwordx4 %s, v%d, s[%d:%d], s%d offen offset:%d%s'%(vr(o,4),VO,SRD_O,SRD_O+3,S_SO,j*1024,g2.STF))
                else:
                    a('s_add_u32 s%d, s%d, 4096'%(S_SO,S_SO)); a('buffer_store_dwordx4 %s, v%d, s[%d:%d], s%d offen%s'%(vr(o,4),VO,SRD_O,SRD_O+3,S_SO,g2.STF))
            a('s_branch K1_end')
        else:
            RR=64; NM=66; CS=68; CSb=88; PK=100; VO=118
            a('s_lshl_b32 s%d, s%d, 7'%(S_T0,S_PW)); a('v_lshlrev_b32 v3, 2, v1'); a('v_add_u32 v3, s%d, v3'%S_T0); a('v_add_u32 v3, %d, v3'%T_R)
            for i in range(2):
                a('ds_read_b32 v%d, v3 offset:%d'%(RR+i,i*64)); a('ds_read_b32 v%d, v3 offset:%d'%(NM+i,512+i*64))
            a('v_lshlrev_b32 v4, 4, v2'); a('v_add_u32 v4, %d, v4'%(T_CS0+320*h))
            for j in range(nj):
                a('ds_read_b128 %s, v4 offset:%d'%(vr(CS+4*j,4),j*64)); a('ds_read_b128 %s, v4 offset:%d'%(vr(CSb+4*j,4),640+j*64))
            a('s_mul_i32 s%d, s%d, 6'%(S_T0,S_RB)); a('s_add_u32 s%d, s%d, s%d'%(S_T0,S_T0,S_CT)); a('s_lshl_b32 s%d, s%d, 3'%(S_T0,S_T0))
            a('s_add_u32 s%d, s%d, s%d'%(S_T0,S_T0,S_WAVE)); a('s_mul_i32 s%d, s%d, 5120'%(S_SO,S_T0))
            add64(a,S_T2,S_WS,WS_Z1); srd(a,SRD_O,S_T2,S_T2+1,96*40960)
            a('v_lshlrev_b32 v%d, 4, v0'%VO)
            a('s_waitcnt lgkmcnt(0)')
            for j in range(nj):
                for p in range(2): a('v_pk_add_f32 %s, %s, %s'%(vr(CS+4*j+2*p,2),vr(CS+4*j+2*p,2),vr(CSb+4*j+2*p,2)))
            for j in range(nj):
                for k,(i,p) in enumerate(prs): a('v_pk_mul_f32 %s, %s, %s op_sel:[0,%d] op_sel_hi:[1,%d]'%(vr(TMP[k],2),vr(CS+4*j+2*p,2),vr(NM,2),i,i))
                for k,(i,p) in enumerate(prs):
                    r=acc(i,j)+2*p; a('v_pk_fma_f32 %s, %s, %s, %s op_sel:[0,%d,0] op_sel_hi:[1,%d,1]'%(vr(r,2),vr(r,2),vr(RR,2),vr(TMP[k],2),i,i))
                gelu_pairs(a,[acc(i,j)+2*p for (i,p) in prs],TMP,C0,C1,ONE)
                o=acc(0,j) if not EXP.get('z1early') else PK+4*(j&1)
                for k,(i,p) in enumerate(prs):
                    r=acc(i,j)+2*p; a('v_cvt_pk_bf16_f32 v%d, v%d, v%d'%(o+k,r,r+1))
                if EXP.get('z1early'):
                    if j<4: a('buffer_store_dwordx4 %s, v%d, s[%d:%d], s%d offen offset:%d%s'%(vr(o,4),VO,SRD_O,SRD_O+3,S_SO,j*1024,g2.STF))
                    else:
                        a('s_add_u32 s%d, s%d, 4096'%(S_SO,S_SO)); a('buffer_store_dwordx4 %s, v%d, s[%d:%d], s%d offen%s'%(vr(o,4),VO,SRD_O,SRD_O+3,S_SO,g2.STF))
            if not EXP.get('z1early'):
                for j in range(nj):
                    if j<4: a('buffer_store_dwordx4 %s, v%d, s[%d:%d], s%d offen offset:%d%s'%(vr(acc(0,j),4),VO,SRD_O,SRD_O+3,S_SO,j*1024,g2.STF))
                    else:
                        a('s_add_u32 s%d, s%d, 4096'%(S_SO,S_SO)); a('buffer_store_dwordx4 %s, v%d, s[%d:%d], s%d offen%s'%(vr(acc(0,j),4),VO,SRD_O,SRD_O+3,S_SO,g2.STF))
            a('s_branch K1_end')
    a.lab('K1Z_prod')
    XO=[2,3]; WO=[4,5,6,7,8]
    if EXP.get('same'): a('s_mov_b32 s%d, 0'%S_RB); a('s_mov_b32 s%d, 0'%S_CT)
    a('s_sub_u32 s%d, s%d, 8'%(S_PW,S_WAVE))
    a('v_lshrrev_b32 v20, 3, v0'); a('s_lshl_b32 s%d, s%d, 5'%(S_T0,S_PW)); a('v_add_u32 v21, s%d, v20'%S_T0); a('v_mul_u32_u24 v21, 1280, v21')
    a('v_and_b32 v22, 7, v0'); a('v_xor_b32 v22, v22, v20')
    a('v_lshl_add_u32 v%d, v22, 4, v21'%XO[0]); a('v_mov_b32 v%d, v%d'%(XO[1],XO[0]))
    a('s_mul_i32 s%d, s%d, 288'%(S_T0,S_CT)); a('s_cmp_eq_u32 s%d, 0'%S_PAR); a('s_cselect_b32 s%d, 1728, 0'%S_T1); a('s_cselect_b32 s%d, 0, 1728'%S_T2)
    a('s_add_u32 s%d, s%d, s%d'%(S_T1,S_T1,S_T0)); a('s_add_u32 s%d, s%d, s%d'%(S_T2,S_T2,S_T0))
    a('v_mov_b32 v24, s%d'%S_T1); a('v_mov_b32 v25, s%d'%S_T2)
    for i in range(5):
        a('s_lshl_b32 s%d, s%d, 6'%(S_T0,S_PW)); a('s_add_u32 s%d, s%d, %d'%(S_T0,S_T0,256*i)); a('v_add_u32 v20, s%d, v0'%S_T0)
        a('v_mul_u32_u24 v21, 3641, v20'); a('v_lshrrev_b32 v21, 16, v21')
        a('v_mul_u32_u24 v22, 18, v21'); a('v_sub_u32 v22, v20, v22'); a('v_cmp_gt_u32 vcc, 10, v22')
        a('v_and_b32 v26, 0x23, v21'); a('v_bfe_u32 v27, v21, 2, 2'); a('v_lshl_or_b32 v26, v27, 3, v26'); a('v_bfe_u32 v27, v21, 4, 1'); a('v_lshl_or_b32 v21, v27, 2, v26')
        a('v_mul_u32_u24 v21, 3456, v21'); a('v_lshl_add_u32 v21, v22, 4, v21')
        a('v_cndmask_b32 v23, v25, v24, vcc'); a('v_add_u32 v%d, v21, v23'%WO[i])
    a('s_mov_b32 s%d, 0'%S_SLI)
    krot(a); a('s_lshl_b32 s%d, s%d, 7'%(S_KX,S_T0)); a('s_mul_i32 s%d, s%d, %d'%(S_KW,S_T0,64*3456))
    a('s_waitcnt lgkmcnt(0)')
    a('s_mul_i32 s%d, s%d, %d'%(S_T0,S_RB,128*1280)); add64(a,S_X,S_X,'s%d'%S_T0); srd(a,SRD_X,S_X,S_X+1,128*1280)
    srd(a,SRD_W,S_WIN,S_WIN+1,640*3456)
    def issueZ():
        a('s_lshl_b32 s%d, s%d, 12'%(S_T,S_PW)); a('s_add_u32 s%d, s%d, s%d'%(S_T,S_T,S_SLI))
        for j in range(4):
            a('s_add_u32 m0, s%d, %d'%(S_T,j*1024)); a('s_add_u32 s%d, s%d, %d'%(S_SO,S_KX,j*10240))
            a(ld('buffer_load_dwordx4 v%d, s[%d:%d], s%d offen lds'%(XO[j&1],SRD_X,SRD_X+3,S_SO)))
        a('s_lshl_b32 s%d, s%d, 10'%(S_T,S_PW)); a('s_add_u32 s%d, s%d, s%d'%(S_T,S_T,S_SLI))
        lab=a.newlab('K1Zp_s')
        for i in range(2 if EXP.get('dma7') else 5):
            if i==4: a('s_cmp_lt_u32 s%d, 2'%S_PW); a('s_cbranch_scc0 %s'%lab)
            a('s_add_u32 m0, s%d, %d'%(S_T,16384+i*4096)); a('s_nop 0')
            a(ld('buffer_load_dwordx4 v%d, s[%d:%d], s%d offen lds'%(WO[i],SRD_W,SRD_W+3,S_KW)))
        a.lab(lab)
        slot_advance(a,S_SLI,SLZ); a('s_add_u32 s%d, s%d, 128'%(S_KX,S_KX)); a('s_add_u32 s%d, s%d, %d'%(S_KW,S_KW,64*3456))
        a('s_cmp_eq_u32 s%d, 1280'%S_KX); a('s_cselect_b32 s%d, 0, s%d'%(S_KX,S_KX)); a('s_cselect_b32 s%d, 0, s%d'%(S_KW,S_KW))
    dma_producer(a,'K1Zp',NK1,(6 if EXP.get('dma7') else 8),issueZ,post=1)
    a('s_branch K1_end')
    if EXP.get('dma7'):
        a.lab('K1Z_prod7')
        WO=[4,5,6,7]
        a('s_sub_u32 s%d, s%d, 13'%(S_PW,S_WAVE))
        a('s_mul_i32 s%d, s%d, 4'%(S_T3,S_PW)); a('s_cmp_eq_u32 s%d, 2'%S_PW); a('s_cselect_b32 s%d, 7, s%d'%(S_T3,S_T3)); a('s_add_u32 s%d, s%d, 8'%(S_J,S_T3))
        a('s_mul_i32 s%d, s%d, 288'%(S_T0,S_CT)); a('s_cmp_eq_u32 s%d, 0'%S_PAR); a('s_cselect_b32 s%d, 1728, 0'%S_T1); a('s_cselect_b32 s%d, 0, 1728'%S_T2)
        a('s_add_u32 s%d, s%d, s%d'%(S_T1,S_T1,S_T0)); a('s_add_u32 s%d, s%d, s%d'%(S_T2,S_T2,S_T0))
        a('v_mov_b32 v24, s%d'%S_T1); a('v_mov_b32 v25, s%d'%S_T2)
        for i in range(4):
            a('s_add_u32 s%d, s%d, %d'%(S_T0,S_J,i)); a('s_lshl_b32 s%d, s%d, 6'%(S_T0,S_T0)); a('v_add_u32 v20, s%d, v0'%S_T0)
            a('v_mul_u32_u24 v21, 3641, v20'); a('v_lshrrev_b32 v21, 16, v21')
            a('v_mul_u32_u24 v22, 18, v21'); a('v_sub_u32 v22, v20, v22'); a('v_cmp_gt_u32 vcc, 10, v22')
            a('v_and_b32 v26, 0x23, v21'); a('v_bfe_u32 v27, v21, 2, 2'); a('v_lshl_or_b32 v26, v27, 3, v26'); a('v_bfe_u32 v27, v21, 4, 1'); a('v_lshl_or_b32 v21, v27, 2, v26')
            a('v_mul_u32_u24 v21, 3456, v21'); a('v_lshl_add_u32 v21, v22, 4, v21')
            a('v_cndmask_b32 v23, v25, v24, vcc'); a('v_add_u32 v%d, v21, v23'%WO[i])
        a('s_mov_b32 s%d, 0'%S_SLI)
        krot(a); a('s_lshl_b32 s%d, s%d, 7'%(S_KX,S_T0)); a('s_mul_i32 s%d, s%d, %d'%(S_KW,S_T0,64*3456))
        a('s_waitcnt lgkmcnt(0)')
        srd(a,SRD_W,S_WIN,S_WIN+1,640*3456)
        a('s_lshl_b32 s%d, s%d, 10'%(S_J,S_J))
        def issue7():
            a('s_add_u32 s%d, s%d, s%d'%(S_T,S_J,S_SLI))
            lab=a.newlab('K1Z7_s')
            for i in range(4):
                if i==3: a('s_cmp_eq_u32 s%d, 0'%S_PW); a('s_cbranch_scc0 %s'%lab)
                a('s_add_u32 m0, s%d, %d'%(S_T,16384+i*1024)); a('s_nop 0')
                a('buffer_load_dwordx4 v%d, s[%d:%d], s%d offen lds'%(WO[i],SRD_W,SRD_W+3,S_KW))
            a.lab(lab)
            slot_advance(a,S_SLI,SLZ); a('s_add_u32 s%d, s%d, 128'%(S_KX,S_KX)); a('s_add_u32 s%d, s%d, %d'%(S_KW,S_KW,64*3456))
            a('s_cmp_eq_u32 s%d, 1280'%S_KX); a('s_cselect_b32 s%d, 0, s%d'%(S_KX,S_KX)); a('s_cselect_b32 s%d, 0, s%d'%(S_KW,S_KW))
        dma_producer(a,'K1Zp7',NK1,3,issue7,post=1)
        a('s_branch K1_end')
    a.lab('K1Z_work')
    a('s_sub_u32 s%d, s%d, 12'%(S_PW,S_WAVE))
    a('s_waitcnt lgkmcnt(0)')
    late=worker(a,'K1Zw',SLZ,True)
    a('s_waitcnt lgkmcnt(0)'); a('s_barrier'); late(); a('s_branch K1_end')

    a.lab('K1A_entry')
    a('s_sub_u32 s%d, s%d, 24'%(S_T0,S_J)); a('s_lshr_b32 s%d, s%d, 1'%(S_T1,S_T0)); a('s_and_b32 s%d, s%d, 1'%(S_CT,S_T0))
    a('s_lshl_b32 s%d, s%d, 2'%(S_RB,S_G)); a('s_add_u32 s%d, s%d, s%d'%(S_RB,S_RB,S_T1))
    a('s_cmp_ge_u32 s%d, 12'%S_WAVE); a('s_cbranch_scc1 K1A_work')
    a('s_cmp_ge_u32 s%d, 8'%S_WAVE); a('s_cbranch_scc1 K1A_prod')
    ACC=16; FA=56; FB=84; XA=[112,113]; WA2=[114,115]
    a('s_and_b32 s%d, s%d, 3'%(S_PW,S_WAVE)); a('s_lshr_b32 s%d, s%d, 2'%(S_H,S_WAVE))
    a('v_and_b32 v1, 15, v0'); a('v_lshrrev_b32 v2, 4, v0'); a('v_and_b32 v3, 7, v0'); a('v_xor_b32 v3, v3, v2'); a('v_lshlrev_b32 v3, 4, v3')
    a('v_lshl_add_u32 v3, v1, 7, v3')
    a('s_lshl_b32 s%d, s%d, 11'%(S_T0,S_PW)); a('v_add_u32 v%d, s%d, v3'%(XA[0],S_T0)); a('v_xor_b32 v%d, 64, v%d'%(XA[1],XA[0]))
    a('s_mul_i32 s%d, s%d, %d'%(S_T0,S_H,80*128)); a('s_add_u32 s%d, s%d, 16384'%(S_T0,S_T0)); a('v_add_u32 v%d, s%d, v3'%(WA2[0],S_T0)); a('v_xor_b32 v%d, 64, v%d'%(WA2[1],WA2[0]))
    ln1_row(a)
    for k in range(40): a('v_mov_b32 v%d, 0'%(ACC+k))
    ln1_row_finish(a)
    def accA(tb,j): return ACC+(j*2+tb)*4
    def rdA(st,sub):
        F=FA if st==0 else FB; m=[]
        for tb in range(2): m.append('ds_read_b128 %s, v%d offset:%d'%(vr(F+tb*4,4),XA[sub],tb*8192))
        for j in range(5): m.append('ds_read_b128 %s, v%d offset:%d'%(vr(F+8+j*4,4),WA2[sub],j*2048))
        return m
    def mfA(st):
        F=FA if st==0 else FB; m=[]
        for j in range(5):
            for tb in range(2):
                c=vr(accA(tb,j),4); m.append('v_mfma_f32_16x16x32_bf16 %s, %s, %s, %s'%(c,vr(F+tb*4,4),vr(F+8+j*4,4),c))
        return m
    a('s_cmp_eq_u32 s%d, 0'%S_H); a('s_cbranch_scc0 K1A_c1')
    consumer_loop(a,'K1A0',SLA,NK1,XA+WA2,rdA,mfA,lag=True,hook=ln1_hook(a),hook_at=2)
    a('s_branch K1A_cd')
    a.lab('K1A_c1')
    consumer_loop(a,'K1A1',SLA,NK1,XA+WA2,rdA,mfA,lag=False,hook=ln1_hook(a),hook_at=2)
    a.lab('K1A_cd')
    a('s_barrier')
    if EXP.get('fine') is None: gc.stamp(a,4)
    RT=56; RB_=60; RO=64; T4=[66,68]; PK=70; VO=76
    a('s_lshl_b32 s%d, s%d, 6'%(S_T0,S_PW)); a('v_lshlrev_b32 v3, 4, v2'); a('v_add_u32 v3, s%d, v3'%S_T0); a('v_add_u32 v3, %d, v3'%T_R)
    a('ds_read_b128 %s, v3'%vr(RT,4)); a('ds_read_b128 %s, v3 offset:256'%vr(RB_,4))
    a('s_mul_i32 s%d, s%d, %d'%(S_T0,S_HALF,AE_MAT)); a('s_lshl_b32 s%d, s%d, 1'%(S_T1,S_CT)); a('s_add_u32 s%d, s%d, s%d'%(S_T1,S_T1,S_H))
    a('s_mul_i32 s%d, s%d, 163840'%(S_T1,S_T1)); a('s_add_u32 s%d, s%d, s%d'%(S_T0,S_T0,S_T1)); a('s_mul_i32 s%d, s%d, 10240'%(S_T1,S_RB))
    a('s_add_u32 s%d, s%d, s%d'%(S_T0,S_T0,S_T1)); a('s_lshr_b32 s%d, s%d, 1'%(S_T1,S_PW)); a('s_mul_i32 s%d, s%d, 5120'%(S_T1,S_T1)); a('s_add_u32 s%d, s%d, s%d'%(S_SO,S_T0,S_T1))
    add64(a,S_T2,S_WS,WS_AE); srd(a,SRD_O,S_T2,S_T2+1,2*AE_MAT)
    a('s_and_b32 s%d, s%d, 1'%(S_T0,S_PW)); a('s_lshl_b32 s%d, s%d, 9'%(S_T0,S_T0))
    a('v_lshrrev_b32 v3, 1, v2'); a('v_lshlrev_b32 v3, 8, v3'); a('v_lshl_add_u32 v3, v1, 4, v3'); a('v_and_b32 v4, 1, v2'); a('v_lshl_add_u32 v3, v4, 3, v3')
    a('v_add_u32 v%d, s%d, v3'%(VO,S_T0))
    a('s_waitcnt lgkmcnt(0)')
    a('s_or_b32 s%d, s%d, s%d'%(S_T0,S_RB,S_PW)); a('s_or_b32 s%d, s%d, s%d'%(S_T0,S_T0,S_HALF)); a('s_cmp_eq_u32 s%d, 0'%S_T0); a('s_cbranch_scc0 K1A_nosp')
    add64(a,S_T2,S_WS,WS_A1024); srd(a,SRD_O2,S_T2,S_T2+1,1280)
    a('s_mul_i32 s%d, s%d, 640'%(S_T0,S_CT)); a('s_mul_i32 s%d, s%d, 320'%(S_T1,S_H)); a('s_add_u32 s%d, s%d, s%d'%(S_T0,S_T0,S_T1))
    a('v_lshlrev_b32 v5, 2, v1')
    a('v_cmp_gt_u32 vcc, 16, v0'); a('s_and_saveexec_b64 s[%d:%d], vcc'%(S_EX,S_EX+1))
    for j in range(5):
        a('v_mul_f32 v%d, v%d, v%d'%(RO,accA(1,j),RB_))
        a('buffer_store_dword v%d, v5, s[%d:%d], s%d offen offset:%d%s'%(RO,SRD_O2,SRD_O2+3,S_T0,j*64,g2.STF)); a('s_nop 0')
    a('v_mov_b32 v%d, 0'%RB_)
    a('s_mov_b64 exec, s[%d:%d]'%(S_EX,S_EX+1))
    a.lab('K1A_nosp')
    a('s_cmp_eq_u32 s%d, 0'%S_HALF); a('s_cselect_b32 s%d, 1.0, -1.0'%S_T0)
    for k in range(4): a('v_mul_f32 v%d, s%d, v%d'%(RB_+k,S_T0,RB_+k))
    for j in range(5):
        for p in range(2): a('v_pk_mul_f32 %s, %s, %s'%(vr(T4[p],2),vr(accA(1,j)+2*p,2),vr(RB_+2*p,2)))
        for p in range(2): a('v_pk_fma_f32 %s, %s, %s, %s'%(vr(T4[p],2),vr(accA(0,j)+2*p,2),vr(RT+2*p,2),vr(T4[p],2)))
        for p in range(2): a('v_cvt_pk_bf16_f32 v%d, v%d, v%d'%(PK+p+2*(j&1),T4[p],T4[p]+1))
        if j<4: a('buffer_store_dwordx2 %s, v%d, s[%d:%d], s%d offen offset:%d%s'%(vr(PK+2*(j&1),2),VO,SRD_O,SRD_O+3,S_SO,j*1024,g2.STF))
        else:
            a('s_add_u32 s%d, s%d, 4096'%(S_SO,S_SO)); a('buffer_store_dwordx2 %s, v%d, s[%d:%d], s%d offen%s'%(vr(PK+2*(j&1),2),VO,SRD_O,SRD_O+3,S_SO,g2.STF))
    a('s_branch K1_end')
    a.lab('K1A_prod')
    XO4=[2,3,4,5]; WO1=6
    if EXP.get('same'): a('s_mov_b32 s%d, 0'%S_RB); a('s_mov_b32 s%d, 0'%S_CT)
    a('s_sub_u32 s%d, s%d, 8'%(S_PW,S_WAVE))
    a('v_lshrrev_b32 v20, 3, v0'); a('v_and_b32 v22, 7, v0'); a('v_xor_b32 v22, v22, v20'); a('v_lshlrev_b32 v22, 4, v22')
    a('s_lshl_b32 s%d, s%d, 6'%(S_T0,S_RB))
    a('s_cmp_lt_u32 s%d, 2'%S_PW); a('s_cbranch_scc0 K1Ap_bot')
    a('s_lshl_b32 s%d, s%d, 5'%(S_T1,S_PW)); a('s_add_u32 s%d, s%d, s%d'%(S_T1,S_T1,S_T0))
    for j in range(4):
        a('v_add_u32 v21, s%d, v20'%S_T1); a('v_add_u32 v21, %d, v21'%(8*j)); a('v_mul_u32_u24 v21, 1280, v21'); a('v_add_u32 v%d, v21, v22'%XO4[j])
    a('s_branch K1Ap_xd')
    a.lab('K1Ap_bot')
    a('s_sub_u32 s%d, s%d, 2'%(S_T1,S_PW)); a('s_lshl_b32 s%d, s%d, 5'%(S_T1,S_T1)); a('s_add_u32 s%d, s%d, s%d'%(S_T1,S_T1,S_T0)); a('s_sub_u32 s%d, 2048, s%d'%(S_T1,S_T1))
    for j in range(4):
        a('v_sub_u32 v21, s%d, v20'%S_T1); a('v_subrev_u32 v21, %d, v21'%(8*j))
        if j==0:
            a('v_cmp_eq_u32 vcc, 2048, v21'); a('v_mov_b32 v23, 1024'); a('s_nop 0'); a('v_cndmask_b32 v21, v21, v23, vcc')
        a('v_mul_u32_u24 v21, 1280, v21'); a('v_add_u32 v%d, v21, v22'%XO4[j])
    a.lab('K1Ap_xd')
    a('s_mul_i32 s%d, s%d, 40'%(S_T0,S_PW)); a('v_add_u32 v21, s%d, v20'%S_T0); a('v_mul_u32_u24 v21, 1280, v21'); a('v_add_u32 v%d, v21, v22'%WO1)
    a('s_mov_b32 s%d, 0'%S_SLI)
    krot(a); a('s_lshl_b32 s%d, s%d, 7'%(S_KX,S_T0))
    a('s_waitcnt lgkmcnt(0)')
    srd(a,SRD_X,S_X,S_X+1,2048*1280)
    a('s_cmp_eq_u32 s%d, 0'%S_HALF); a('s_cselect_b32 s%d, s%d, s%d'%(S_T2,S_WDRE,S_WDIM)); a('s_cselect_b32 s%d, s%d, s%d'%(S_T3,S_WDRE+1,S_WDIM+1))
    a('s_mul_i32 s%d, s%d, %d'%(S_T0,S_CT,160*1280)); a('s_add_u32 s%d, s%d, 1280'%(S_T0,S_T0)); add64(a,S_T2,S_T2,'s%d'%S_T0)
    srd(a,SRD_W,S_T2,S_T2+1,160*1280)
    def issueA():
        a('s_lshl_b32 s%d, s%d, 12'%(S_T,S_PW)); a('s_add_u32 s%d, s%d, s%d'%(S_T,S_T,S_SLI))
        for j in range(4):
            a('s_add_u32 m0, s%d, %d'%(S_T,j*1024)); a('s_nop 0')
            a(ld('buffer_load_dwordx4 v%d, s[%d:%d], s%d offen lds'%(XO4[j],SRD_X,SRD_X+3,S_KX)))
        a('s_mul_i32 s%d, s%d, 5120'%(S_T,S_PW)); a('s_add_u32 s%d, s%d, s%d'%(S_T,S_T,S_SLI))
        for j in range(5):
            a('s_add_u32 m0, s%d, %d'%(S_T,16384+j*1024)); a('s_add_u32 s%d, s%d, %d'%(S_SO,S_KX,j*10240))
            a(ld('buffer_load_dwordx4 v%d, s[%d:%d], s%d offen lds'%(WO1,SRD_W,SRD_W+3,S_SO)))
        slot_advance(a,S_SLI,SLA); a('s_add_u32 s%d, s%d, 128'%(S_KX,S_KX))
        a('s_cmp_eq_u32 s%d, 1280'%S_KX); a('s_cselect_b32 s%d, 0, s%d'%(S_KX,S_KX))
    dma_producer(a,'K1Ap',NK1,9,issueA,post=1)
    a('s_branch K1_end')
    a.lab('K1A_work')
    a('s_sub_u32 s%d, s%d, 12'%(S_PW,S_WAVE))
    a('s_waitcnt lgkmcnt(0)')
    late=worker(a,'K1Aw',SLA,False)
    a('s_waitcnt lgkmcnt(0)'); a('s_barrier'); late()
    kernel_tail(a,'K1',0,S_WS)
```

```python
from g2_common import *
import g2_common as g2
SLG=34816; SLT=28672
K2_LDS=NS*SLG
NK2=16
S_WSP=4; S_WS=6; S_WSRE=8; S_WSIM=10; S_BSP=12; S_WOUT=14
SRD_A=16; SRD_B=20; SRD_O=24; SRD_O2=28; SRD_C=56; SRD_D=60
S_KH=36; S_TB=37

def gen_k2(a,kname):
    kernel_head(a,kname,'K2')
    a('s_load_dwordx4 s[%d:%d], s[0:1], 8'%(S_WSRE,S_WSRE+3))
    a('s_load_dwordx2 s[%d:%d], s[0:1], 56'%(S_WSP,S_WSP+1))
    a('s_load_dwordx2 s[%d:%d], s[0:1], 64'%(S_BSP,S_BSP+1))
    a('s_load_dwordx2 s[%d:%d], s[0:1], 96'%(S_WS,S_WS+1))
    a('s_load_dwordx2 s[%d:%d], s[0:1], 72'%(S_WOUT,S_WOUT+1))
    wave_setup(a,'K2')
    a('s_and_b32 s%d, s2, 7'%S_XCD); a('s_lshr_b32 s%d, s2, 3'%S_J)
    a('s_and_b32 s%d, s%d, 1'%(S_KH,S_XCD))
    a('s_cmp_ge_u32 s%d, 24'%S_J); a('s_cbranch_scc1 K2T_entry')
    a('s_mul_i32 s%d, s%d, 43'%(S_T0,S_J)); a('s_lshr_b32 s%d, s%d, 8'%(S_T0,S_T0))
    a('s_mul_i32 s%d, s%d, 6'%(S_T1,S_T0)); a('s_sub_u32 s%d, s%d, s%d'%(S_CT,S_J,S_T1))
    a('s_lshr_b32 s%d, s%d, 1'%(S_T1,S_XCD)); a('s_lshl_b32 s%d, s%d, 2'%(S_T1,S_T1)); a('s_add_u32 s%d, s%d, s%d'%(S_TB,S_T1,S_T0))
    a('s_cmp_ge_u32 s%d, 8'%S_WAVE); a('s_cbranch_scc1 K2G_prod')
    ACC=16; FA=56; FB=84; WA=[112,113]; ZA=114; Z1L=[2,6,10,116,120]; BB=124
    a('s_and_b32 s%d, s%d, 3'%(S_PW,S_WAVE)); a('s_lshr_b32 s%d, s%d, 2'%(S_H,S_WAVE))
    a('v_and_b32 v6, 15, v0'); a('v_lshrrev_b32 v7, 4, v0'); a('v_and_b32 v8, 7, v0'); a('v_xor_b32 v8, v8, v7'); a('v_lshlrev_b32 v8, 4, v8')
    a('v_lshl_add_u32 v8, v6, 7, v8'); a('s_lshl_b32 s%d, s%d, 12'%(S_T0,S_PW)); a('v_add_u32 v%d, s%d, v8'%(WA[0],S_T0)); a('v_xor_b32 v%d, 64, v%d'%(WA[1],WA[0]))
    a('s_mul_i32 s%d, s%d, 5120'%(S_T0,S_H)); a('s_add_u32 s%d, s%d, 16384'%(S_T0,S_T0)); a('v_lshlrev_b32 v14, 4, v0'); a('v_add_u32 v%d, s%d, v14'%(ZA,S_T0))
    for k in range(40): a('v_mov_b32 v%d, 0'%(ACC+k))
    a('s_mul_i32 s%d, s%d, 6'%(S_T0,S_TB)); a('s_add_u32 s%d, s%d, s%d'%(S_T0,S_T0,S_CT)); a('s_lshl_b32 s%d, s%d, 3'%(S_T0,S_T0))
    a('s_add_u32 s%d, s%d, s%d'%(S_T0,S_T0,S_WAVE)); a('s_mul_i32 s%d, s%d, 5120'%(S_SO,S_T0))
    a('s_lshl_b32 s%d, s%d, 7'%(S_T0,S_TB)); a('s_lshl_b32 s%d, s%d, 5'%(S_T1,S_PW)); a('s_add_u32 s%d, s%d, s%d'%(S_T0,S_T0,S_T1))
    a('v_add_u32 v15, s%d, v6'%S_T0); a('v_lshlrev_b32 v15, 1, v15')
    a('s_waitcnt lgkmcnt(0)')
    add64(a,S_T2,S_WS,WS_Z1); srd(a,SRD_C,S_T2,S_T2+1,96*40960)
    srd(a,SRD_O2,S_BSP,S_BSP+1,4096)
    if EXP.get('stg'):
        for r in range(2,10): a('v_mov_b32 v%d, 0x7fffff00'%r) if r==6 else None
    def pfz_g(tag):
        a('buffer_load_dword v127, v126, s[%d:%d], s%d offen'%(SRD_D,SRD_D+3,S_G))
        l=a.newlab('K2G_pfz')
        a('s_cmp_eq_u32 s%d, 7'%S_WAVE); a('s_cbranch_scc0 %s'%l); a('buffer_load_dword v127, v1, s[%d:%d], s%d offen'%(SRD_D,SRD_D+3,S_G)); a.lab(l)
    if EXP.get('pfz'):
        a('s_mul_i32 s%d, s%d, %d'%(S_T2,S_CT,Z2_CT)); a('s_mul_i32 s%d, s%d, %d'%(S_T3,S_KH,16*18432)); a('s_add_u32 s%d, s%d, s%d'%(S_T1,S_T2,S_T3))
        add64(a,S_T2,S_WS,'s%d'%S_T1); srd(a,SRD_D,S_T2,S_T2+1,16*18432)
        a('s_and_b32 s%d, s%d, 3'%(S_G,S_TB)); a('s_mul_i32 s%d, s%d, %d'%(S_G,S_G,36*128))
        for rep_,dst in ((0,126),(1,1)):
            a('s_lshl_b32 s%d, s%d, 6'%(S_T0,S_WAVE))
            if rep_==1: a('s_mov_b32 s%d, 512'%S_T0)
            a('v_add_u32 v9, s%d, v0'%S_T0); a('v_mul_u32_u24 v10, 1821, v9'); a('v_lshrrev_b32 v10, 16, v10')
            a('v_mul_u32_u24 v11, 36, v10'); a('v_sub_u32 v11, v9, v11'); a('v_mul_u32_u24 v10, 18432, v10'); a('v_lshl_add_u32 v%d, v11, 7, v10'%dst)
    def acc(i,j): return ACC+(j*2+i)*4
    a('s_cmp_eq_u32 s%d, 0'%S_H); a('s_cbranch_scc0 K2Gc_1')
    for h in range(2):
        nj=5-h; nm='K2Gc_%d'%h
        a.lab(nm)
        def hk(nj=nj):
            for j in range(min(nj,4)): a('buffer_load_dwordx4 %s, v14, s[%d:%d], s%d offen offset:%d'%(vr(Z1L[j],4),SRD_C,SRD_C+3,S_SO,j*1024))
            if nj==5:
                a('s_add_u32 s%d, s%d, 4096'%(S_SO,S_SO)); a('buffer_load_dwordx4 %s, v14, s[%d:%d], s%d offen'%(vr(Z1L[4],4),SRD_C,SRD_C+3,S_SO))
            a('buffer_load_ushort v%d, v15, s[%d:%d], 0 offen'%(BB,SRD_O2,SRD_O2+3)); a('buffer_load_ushort v%d, v15, s[%d:%d], 0 offen offset:32'%(BB+1,SRD_O2,SRD_O2+3))
        def rd(st,sub,nj=nj):
            F=FA if st==0 else FB; m=[]
            for i in range(2): m.append('ds_read_b128 %s, v%d offset:%d'%(vr(F+i*4,4),WA[sub],i*2048))
            for j in range(nj): m.append('ds_read_b128 %s, v%d offset:%d'%(vr(F+8+j*4,4),ZA,sub*9216+j*1024))
            return m
        def mf(st,nj=nj):
            F=FA if st==0 else FB; m=[]
            for j in range(nj):
                for i in range(2):
                    c=vr(acc(i,j),4); m.append('v_mfma_f32_16x16x32_bf16 %s, %s, %s, %s'%(c,vr(F+8+j*4,4),vr(F+i*4,4),c))
            return m
        if g2.FUSED[0] and EXP.get('stg'):
            def pk(grp,part,h=h):
                def f():
                    l=a.newlab('K2G_sp'); a('s_cmp_eq_u32 s%d, 4'%S_WAVE); a('s_cbranch_scc0 %s'%l)
                    poll_rbs(a,a.newlab('K2G_spp'),S_WS,S_CT,S_KH,S_TB,grp,R=2,part=part); a.lab(l)
                return f
            HK={EXP.get('z1at',11):hk}
            if EXP.get('z1sp'):
                def part(js,last,nj=nj):
                    def f():
                        for j in js:
                            if j<4: a('buffer_load_dwordx4 %s, v14, s[%d:%d], s%d offen offset:%d'%(vr(Z1L[j],4),SRD_C,SRD_C+3,S_SO,j*1024))
                            else:
                                a('s_add_u32 s%d, s%d, 4096'%(S_SO,S_SO)); a('buffer_load_dwordx4 %s, v14, s[%d:%d], s%d offen'%(vr(Z1L[4],4),SRD_C,SRD_C+3,S_SO))
                        if last:
                            a('buffer_load_ushort v%d, v15, s[%d:%d], 0 offen'%(BB,SRD_O2,SRD_O2+3)); a('buffer_load_ushort v%d, v15, s[%d:%d], 0 offen offset:32'%(BB+1,SRD_O2,SRD_O2+3))
                    return f
                b0=EXP['z1sp']
                HK={b0:part([0,1],False),b0+1:part([2,3],False),b0+2:part(list(range(4,nj)),True)}
            if h==1: HK.update({3:pk(2,'issue'),5:pk(2,'check'),7:pk(3,'issue'),9:pk(3,'check')})
            consumer_loop(a,nm+'L',SLG,NK2,WA+[ZA],rd,mf,hook=HK,lag=(h==0),phase=2)
        else:
          consumer_loop(a,nm+'L',SLG,NK2,WA+[ZA],rd,mf,hook=({EXP.get('z1at',9):hk,EXP.get('pfzat',1):(lambda h=h:pfz_g('%d'%h))} if EXP.get('pfz') else hk),hook_at=EXP.get('z1at',9),lag=(h==0),phase=2)
        if not EXP.get('g2plain'): a('s_barrier')
        else: a('s_nop 7')
        a('s_waitcnt vmcnt(0)')
        a('s_cmp_eq_u32 s%d, 0'%S_KH); a('s_cselect_b32 s%d, 1.0, 0'%S_T0)
        a('v_lshlrev_b32 v%d, 16, v%d'%(BB,BB)); a('v_lshlrev_b32 v%d, 16, v%d'%(BB+1,BB+1))
        a('v_mul_f32 v%d, s%d, v%d'%(BB,S_T0,BB)); a('v_mul_f32 v%d, s%d, v%d'%(BB+1,S_T0,BB+1))
        a('s_mul_i32 s%d, s%d, %d'%(S_T0,S_KH,H_VER)); add64(a,S_T2,S_WS,WS_H); add64(a,S_T2,S_T2,'s%d'%S_T0); srd(a,SRD_O,S_T2,S_T2+1,H_VER)
        a('s_lshl_b32 s%d, s%d, 3'%(S_T0,S_TB)); a('s_lshl_b32 s%d, s%d, 1'%(S_T1,S_PW)); a('s_add_u32 s%d, s%d, s%d'%(S_T0,S_T0,S_T1)); a('s_mul_i32 s%d, s%d, 27648'%(S_T0,S_T0))
        a('s_mul_i32 s%d, s%d, 9'%(S_T1,S_CT)); a('s_add_u32 s%d, s%d, %d'%(S_T1,S_T1,5*h)); a('s_lshl_b32 s%d, s%d, 9'%(S_T1,S_T1))
        a('s_add_u32 s%d, s%d, s%d'%(S_SO,S_T0,S_T1)); a('s_add_u32 s%d, s%d, 27648'%(S_SO2,S_SO))
        a('v_lshlrev_b32 v14, 3, v0')
        TZ=[56,58,60,62]; PK=64
        for j in range(nj):
            prs=[(i,p) for i in range(2) for p in range(2)]
            for k,(i,p) in enumerate(prs):
                z=Z1L[j]+2*i+p
                a('v_lshlrev_b32 v%d, 16, v%d'%(TZ[k],z)); a('v_and_b32 v%d, 0xffff0000, v%d'%(TZ[k]+1,z))
            if EXP.get('g2plain'):
                for k,(i,p) in enumerate(prs):
                    r=acc(i,j)+2*p; a('v_add_f32 v%d, v%d, v%d'%(r,r,BB+i)); a('v_add_f32 v%d, v%d, v%d'%(r+1,r+1,BB+i))
                for k,(i,p) in enumerate(prs):
                    r=acc(i,j)+2*p; a('v_mul_f32 v%d, v%d, v%d'%(r,r,TZ[k])); a('v_mul_f32 v%d, v%d, v%d'%(r+1,r+1,TZ[k]+1))
            else:
                for k,(i,p) in enumerate(prs):
                    r=acc(i,j)+2*p; a('v_pk_add_f32 %s, %s, %s op_sel:[0,%d] op_sel_hi:[1,%d]'%(vr(r,2),vr(r,2),vr(BB,2),i,i))
                for k,(i,p) in enumerate(prs):
                    r=acc(i,j)+2*p; a('v_pk_mul_f32 %s, %s, %s'%(vr(r,2),vr(r,2),vr(TZ[k],2)))
            o=PK+4*(j&1)
            for k,(i,p) in enumerate(prs):
                r=acc(i,j)+2*p; a('v_cvt_pk_bf16_f32 v%d, v%d, v%d'%(o+k,r,r+1))
            a('buffer_store_dwordx2 %s, v14, s[%d:%d], s%d offen offset:%d%s'%(vr(o,2),SRD_O,SRD_O+3,S_SO,j*512,g2.STF))
            a('buffer_store_dwordx2 %s, v14, s[%d:%d], s%d offen offset:%d%s'%(vr(o+2,2),SRD_O,SRD_O+3,S_SO2,j*512,g2.STF))
        a('s_branch K2_end')
    a.lab('K2G_prod')
    WO=2; ZO=3; S_ZO=S_PAR
    if EXP.get('same'): a('s_mov_b32 s%d, 0'%S_TB); a('s_mov_b32 s%d, 0'%S_CT); a('s_mov_b32 s%d, 0'%S_KH)
    a('s_sub_u32 s%d, s%d, 8'%(S_PW,S_WAVE))
    a('v_lshrrev_b32 v20, 3, v0'); a('v_and_b32 v22, 7, v0'); a('v_xor_b32 v22, v22, v20'); a('v_lshlrev_b32 v22, 4, v22')
    a('s_lshl_b32 s%d, s%d, 4'%(S_T0,S_PW)); a('v_add_u32 v21, s%d, v20'%S_T0); a('v_lshlrev_b32 v21, 12, v21'); a('v_add_u32 v%d, v21, v22'%WO)
    a('s_mul_i32 s%d, s%d, 3'%(S_T0,S_PW)); a('s_lshl_b32 s%d, s%d, 1'%(S_T1,S_PW)); a('s_add_u32 s%d, s%d, 2'%(S_T1,S_T1))
    a('s_cmp_lt_u32 s%d, 2'%S_PW); a('s_cselect_b32 s%d, s%d, s%d'%(S_ZO,S_T0,S_T1)); a('s_lshl_b32 s%d, s%d, 10'%(S_ZO,S_ZO))
    a('v_lshlrev_b32 v20, 4, v0'); a('v_add_u32 v%d, s%d, v20'%(ZO,S_ZO))
    a('s_mov_b32 s%d, 0'%S_SLI)
    a('s_mul_i32 s%d, s%d, %d'%(S_T0,S_CT,EXP.get('ra',0))); a('s_and_b32 s%d, s%d, 3'%(S_T1,S_TB)); a('s_mul_i32 s%d, s%d, %d'%(S_T1,S_T1,EXP.get('rb',0)))
    a('s_add_u32 s%d, s%d, s%d'%(S_T0,S_T0,S_T1)); a('s_and_b32 s%d, s%d, 15'%(S_T0,S_T0)); a('s_lshl_b32 s%d, s%d, 7'%(S_KX,S_T0)); a('s_mul_i32 s%d, s%d, 18432'%(S_KW,S_T0))
    a('s_mul_i32 s%d, s%d, %d'%(S_T0,S_TB,128*4096)); a('s_lshl_b32 s%d, s%d, 11'%(S_T1,S_KH)); a('s_add_u32 s%d, s%d, s%d'%(S_T0,S_T0,S_T1))
    a('s_sub_u32 s%d, %d, s%d'%(S_T1,128*4096,S_T1))
    a('s_mul_i32 s%d, s%d, %d'%(S_T2,S_CT,Z2_CT)); a('s_mul_i32 s%d, s%d, %d'%(S_T3,S_KH,16*18432)); a('s_add_u32 s%d, s%d, s%d'%(S_SO2,S_T2,S_T3))
    a('s_waitcnt lgkmcnt(0)')
    add64(a,S_WSP,S_WSP,'s%d'%S_T0); srd(a,SRD_A,S_WSP,S_WSP+1,'s%d'%S_T1)
    add64(a,S_T2,S_WS,'s%d'%S_SO2); srd(a,SRD_B,S_T2,S_T2+1,16*18432)
    def issue():
        a('s_lshl_b32 s%d, s%d, 11'%(S_T,S_PW)); a('s_add_u32 s%d, s%d, s%d'%(S_T,S_T,S_SLI))
        for j in range(2):
            a('s_add_u32 m0, s%d, %d'%(S_T,j*1024)); a('s_add_u32 s%d, s%d, %d'%(S_SO,S_KX,j*32768))
            a(ld('buffer_load_dwordx4 v%d, s[%d:%d], s%d offen lds'%(WO,SRD_A,SRD_A+3,S_SO)))
        a('s_add_u32 s%d, s%d, s%d'%(S_T,S_SLI,S_ZO)); a('s_add_u32 m0, s%d, 16384'%S_T); a('s_nop 0')
        for j in range(2): a('buffer_load_dwordx4 v%d, s[%d:%d], s%d offen offset:%d lds'%(ZO,SRD_B,SRD_B+3,S_KW,j*1024))
        lab=a.newlab('K2Gp_t')
        a('s_cmp_lt_u32 s%d, 2'%S_PW); a('s_cbranch_scc0 %s'%lab)
        a('buffer_load_dwordx4 v%d, s[%d:%d], s%d offen offset:2048 lds'%(ZO,SRD_B,SRD_B+3,S_KW))
        a.lab(lab)
        slot_advance(a,S_SLI,SLG); a('s_add_u32 s%d, s%d, 128'%(S_KX,S_KX)); a('s_add_u32 s%d, s%d, 18432'%(S_KW,S_KW))
        a('s_cmp_eq_u32 s%d, 2048'%S_KX); a('s_cselect_b32 s%d, 0, s%d'%(S_KX,S_KX)); a('s_cselect_b32 s%d, 0, s%d'%(S_KW,S_KW))
    if g2.FUSED[0] and EXP.get('stg'):
        c=4
        def setk(k0,k1):
            a('s_cmp_eq_u32 s%d, 0'%S_KH); a('s_cselect_b32 s%d, %d, %d'%(S_T0,k0,k1)); a('s_lshl_b32 s%d, s%d, 7'%(S_KX,S_T0)); a('s_mul_i32 s%d, s%d, 18432'%(S_KW,S_T0))
        def poll(grp):
            l='K2Gp_g%d'%grp; a('s_cmp_eq_u32 s%d, 8'%S_WAVE); a('s_cbranch_scc0 %s'%l); poll_rbs(a,l+'p',S_WS,S_CT,S_KH,S_TB,grp); a.lab(l)
        setk(0,8)
        def issue_w(slot):
            a('s_lshl_b32 s%d, s%d, 11'%(S_T,S_PW)); a('s_add_u32 s%d, s%d, %d'%(S_T,S_T,slot*SLG))
            for j in range(2):
                a('s_add_u32 m0, s%d, %d'%(S_T,j*1024)); a('s_add_u32 s%d, s%d, %d'%(S_SO,S_KX,j*32768))
                a(ld('buffer_load_dwordx4 v%d, s[%d:%d], s%d offen lds'%(WO,SRD_A,SRD_A+3,S_SO)))
            a('s_add_u32 s%d, s%d, 128'%(S_KX,S_KX))
        def issue_z(slot):
            a('s_add_u32 m0, s%d, %d'%(S_ZO,slot*SLG+16384)); a('s_cmp_lt_u32 s%d, 2'%S_PW)
            for j in range(2): a('buffer_load_dwordx4 v%d, s[%d:%d], s%d offen offset:%d lds'%(ZO,SRD_B,SRD_B+3,S_KW,j*1024))
            lab=a.newlab('K2Gp_z'); a('s_cbranch_scc0 %s'%lab)
            a('buffer_load_dwordx4 v%d, s[%d:%d], s%d offen offset:2048 lds'%(ZO,SRD_B,SRD_B+3,S_KW)); a.lab(lab)
            a('s_add_u32 s%d, s%d, 18432'%(S_KW,S_KW))
        W=[2*c]*4
        if EXP.get('prew'):
            for st in range(4): issue_w(st)
            poll(1); a('s_barrier')
            gc.stamp(a,1)
            issue_z(0); issue_z(1)
            gc.stamp(a,2)
            a('s_waitcnt vmcnt(2)'); gc.stamp(a,3); a('s_barrier')
            issue_z(2); issue_z(3)
            W=[4,6,8,8]
        else:
            poll(1); a('s_barrier')
            gc.stamp(a,1)
            issue(); issue()
            gc.stamp(a,2)
            a('s_waitcnt vmcnt(%d)'%c); gc.stamp(a,3); a('s_barrier')
            issue(); issue()
        def seg(i0,i1,nm,first_poll=None,k=None):
            for i in range(i0,i1):
                if i==i0 and first_poll:
                    a('s_waitcnt vmcnt(%d)'%(2*c)); a('s_barrier'); setk(*k); issue()
                else:
                    a('s_waitcnt vmcnt(%d)'%(W[i-1] if i<=4 else 2*c)); a('s_barrier'); issue()
        seg(1,5,'a'); seg(5,9,'b',2,(12,0)); seg(9,13,'c',3,(8,4))
        for r in (2,1,0):
            a('s_waitcnt vmcnt(%d)'%(r*c)); a('s_barrier')
        gc.stamp(a,4)
        if not EXP.get('g2plain'): a('s_barrier')
    else:
        dma_producer(a,'K2Gp',NK2,4,issue,phase=2,s_ws=S_WS,post=(0 if EXP.get('g2plain') else 1))
    a('s_branch K2_end')

    a.lab('K2T_entry')
    a('s_sub_u32 s%d, s%d, 24'%(S_T0,S_J)); a('s_and_b32 s%d, s%d, 3'%(S_CT,S_T0)); a('s_lshr_b32 s%d, s%d, 2'%(S_T0,S_T0))
    a('s_lshr_b32 s%d, s%d, 1'%(S_T1,S_XCD)); a('s_lshl_b32 s%d, s%d, 1'%(S_T1,S_T1)); a('s_add_u32 s%d, s%d, s%d'%(S_TB,S_T1,S_T0))
    a('s_cmp_ge_u32 s%d, 8'%S_WAVE); a('s_cbranch_scc1 K2T_prod')
    a('s_and_b32 s%d, s%d, 3'%(S_PW,S_WAVE)); a('s_lshr_b32 s%d, s%d, 2'%(S_H,S_WAVE))
    a('s_cmp_eq_u32 s%d, 3'%S_PW); a('s_cbranch_scc1 K2T_xpf')
    ACC=16; FA=56; FB=80; WA=[112,113]; AA=114; A1=116
    a('v_lshrrev_b32 v7, 4, v0'); a('v_lshlrev_b32 v5, 4, v7')
    a('v_and_b32 v6, 15, v0'); a('v_and_b32 v8, 7, v0'); a('v_xor_b32 v8, v8, v7'); a('v_lshlrev_b32 v8, 4, v8'); a('v_lshl_add_u32 v8, v6, 7, v8')
    a('s_mul_i32 s%d, s%d, %d'%(S_T0,S_PW,48*128)); a('v_add_u32 v%d, s%d, v8'%(WA[0],S_T0)); a('v_xor_b32 v%d, 64, v%d'%(WA[1],WA[0]))
    a('s_mul_i32 s%d, s%d, 3072'%(S_T0,S_H)); a('s_add_u32 s%d, s%d, 18432'%(S_T0,S_T0)); a('v_lshlrev_b32 v9, 4, v0'); a('v_add_u32 v%d, s%d, v9'%(AA,S_T0))
    for k in range(36): a('v_mov_b32 v%d, 0'%(ACC+k))
    a('s_mul_i32 s%d, s%d, 320'%(S_T0,S_CT)); a('s_mul_i32 s%d, s%d, 192'%(S_T1,S_H)); a('s_add_u32 s%d, s%d, s%d'%(S_SO,S_T0,S_T1))
    a('s_waitcnt lgkmcnt(0)')
    add64(a,S_T2,S_WS,WS_A1024); srd(a,SRD_C,S_T2,S_T2+1,1280)
    def pfz_t(tag):
        a('buffer_load_dword v2, v10, s[%d:%d], s%d offen'%(SRD_D,SRD_D+3,S_G))
        l=a.newlab('K2T_pfz')
        a('s_cmp_lt_u32 s%d, 4'%S_PAR); a('s_cbranch_scc0 %s'%l); a('buffer_load_dword v2, v11, s[%d:%d], s%d offen'%(SRD_D,SRD_D+3,S_G)); a.lab(l)
    if EXP.get('pfz'):
        a('s_mul_i32 s%d, s%d, %d'%(S_T0,S_KH,AE_MAT)); a('s_mul_i32 s%d, s%d, 163840'%(S_T1,S_CT)); a('s_add_u32 s%d, s%d, s%d'%(S_T1,S_T0,S_T1))
        add64(a,S_T2,S_WS,WS_AE); add64(a,S_T2,S_T2,'s%d'%S_T1); srd(a,SRD_D,S_T2,S_T2+1,163840)
        a('s_and_b32 s%d, s%d, 1'%(S_G,S_TB)); a('s_mul_i32 s%d, s%d, %d'%(S_G,S_G,40*128))
        a('s_mul_i32 s%d, s%d, 3'%(S_PAR,S_H)); a('s_add_u32 s%d, s%d, s%d'%(S_PAR,S_PAR,S_PW))
        for rep_,dst in ((0,10),(1,11)):
            a('s_add_u32 s%d, s%d, %d'%(S_T0,S_PAR,6*rep_)); a('s_lshl_b32 s%d, s%d, 6'%(S_T0,S_T0))
            a('v_add_u32 v1, s%d, v0'%S_T0); a('v_mul_u32_u24 v12, 1639, v1'); a('v_lshrrev_b32 v12, 16, v12')
            a('v_mul_u32_u24 v13, 40, v12'); a('v_sub_u32 v13, v1, v13'); a('v_mul_u32_u24 v12, 10240, v12'); a('v_lshl_add_u32 v%d, v13, 7, v12'%dst)
    def accT(i,j): return ACC+(j*3+i)*4
    a('s_cmp_eq_u32 s%d, 0'%S_H); a('s_cbranch_scc0 K2Tc_1')
    for h in range(2):
        nj=3-h; nm='K2Tc_%d'%h
        a.lab(nm)
        def hkT(nj=nj):
            for j in range(nj): a('buffer_load_dwordx4 %s, v5, s[%d:%d], s%d offen offset:%d'%(vr(A1+4*j,4),SRD_C,SRD_C+3,S_SO,j*64))
        def rdT(st,sub,nj=nj):
            F=FA if st==0 else FB; m=[]
            for i in range(3): m.append('ds_read_b128 %s, v%d offset:%d'%(vr(F+i*4,4),WA[sub],i*2048))
            for j in range(nj): m.append('ds_read_b128 %s, v%d offset:%d'%(vr(F+12+j*4,4),AA,sub*5120+j*1024))
            return m
        def mfT(st,nj=nj):
            F=FA if st==0 else FB; m=[]
            for j in range(nj):
                for i in range(3):
                    c=vr(accT(i,j),4); m.append('v_mfma_f32_16x16x32_bf16 %s, %s, %s, %s'%(c,vr(F+12+j*4,4),vr(F+i*4,4),c))
            return m
        consumer_loop(a,nm+'L',SLT,NK2,WA+[AA],rdT,mfT,hook=({4:hkT,EXP.get('pfzat',1):(lambda h=h:pfz_t('%d'%h))} if EXP.get('pfz') else hkT),hook_at=4,lag=(h==0),phase=2)
        a('s_barrier')
        a('s_waitcnt vmcnt(0)')
        a('s_cmp_eq_u32 s%d, 0'%S_KH); a('s_cselect_b32 s%d, 1.0, 0'%S_T0)
        a('v_and_b32 v5, 1, v0'); a('v_lshlrev_b32 v5, 31, v5'); a('v_xor_b32 v5, s%d, v5'%S_T0)
        a('s_mul_i32 s%d, s%d, %d'%(S_T0,S_KH,PQ_MAT)); add64(a,S_T2,S_WS,WS_PQ); add64(a,S_T2,S_T2,'s%d'%S_T0); srd(a,SRD_O,S_T2,S_T2+1,PQ_MAT)
        a('s_mul_i32 s%d, s%d, 144'%(S_T0,S_TB)); a('s_mul_i32 s%d, s%d, 48'%(S_T1,S_PW)); a('s_add_u32 s%d, s%d, s%d'%(S_T0,S_T0,S_T1)); a('s_mul_i32 s%d, s%d, 1280'%(S_T0,S_T0))
        a('s_mul_i32 s%d, s%d, 320'%(S_T1,S_CT)); a('s_add_u32 s%d, s%d, s%d'%(S_T0,S_T0,S_T1)); a('s_add_u32 s%d, s%d, %d'%(S_SO,S_T0,192*h))
        a('v_mul_u32_u24 v6, 1280, v6'); a('v_lshl_add_u32 v6, v7, 4, v6')
        if EXP.get('nopA'):
            for _ in range(EXP['nopA']): a('s_nop 15')
        for j in range(nj):
            for i in range(3):
                r=accT(i,j)
                if EXP.get('plain'):
                    for p in range(4): a('v_fma_f32 v%d, v%d, v5, v%d'%(r+p,A1+4*j+p,r+p))
                else:
                    for p in range(2): a('v_pk_fma_f32 %s, %s, %s, %s op_sel:[0,1,0] op_sel_hi:[1,1,1]'%(vr(r+2*p,2),vr(A1+4*j+2*p,2),vr(4,2),vr(r+2*p,2)))
            if EXP.get('nopB'): a('s_nop 7')
            for i in range(3):
                a('s_add_u32 s%d, s%d, %d'%(S_SO2,S_SO,i*16*1280))
                a('buffer_store_dwordx4 %s, v6, s[%d:%d], s%d offen offset:%d%s'%(vr(accT(i,j),4),SRD_O,SRD_O+3,S_SO2,j*64,g2.STF))
        a('s_branch K2_end')
    a.lab('K2T_xpf')
    if g2.FUSED[0]:
        if EXP.get('t2pf'):
            a('s_waitcnt lgkmcnt(0)')
            a('s_cmp_eq_u32 s%d, 0'%S_H); a('s_cbranch_scc0 K2T_xpf7')
            a('s_lshr_b32 s%d, s%d, 1'%(S_T0,S_XCD)); a('s_lshl_b32 s%d, s%d, 9'%(S_T0,S_T0)); a('s_sub_u32 s%d, s%d, 24'%(S_T1,S_J)); a('s_lshl_b32 s%d, s%d, 6'%(S_T1,S_T1))
            a('s_add_u32 s%d, s%d, s%d'%(S_T0,S_T0,S_T1)); a('v_add_u32 v1, s%d, v0'%S_T0); a('v_lshlrev_b32 v1, 12, v1')
            a('s_lshl_b32 s%d, s%d, 11'%(S_SO,S_KH))
            srd(a,SRD_D,S_WSP,S_WSP+1,2048*4096)
            lead=EXP.get('t2lead',2)
            for k in range(lead):
                a('buffer_load_dword v2, v1, s[%d:%d], s%d offen'%(SRD_D,SRD_D+3,S_SO)); a('s_add_u32 s%d, s%d, 128'%(S_SO,S_SO))
            a('s_barrier')
            for i in range(NK2):
                a('s_barrier')
                if i+lead<NK2:
                    a('buffer_load_dword v2, v1, s[%d:%d], s%d offen'%(SRD_D,SRD_D+3,S_SO)); a('s_add_u32 s%d, s%d, 128'%(S_SO,S_SO))
            a('s_barrier')
            a('s_branch K2_end')
            a.lab('K2T_xpf7')
            a('s_sub_u32 s%d, s%d, 24'%(S_T1,S_J)); a('s_lshl_b32 s%d, s%d, 3'%(S_T1,S_T1)); a('s_add_u32 s%d, s%d, s%d'%(S_T1,S_T1,S_XCD)); a('s_mul_i32 s%d, s%d, %d'%(S_SO,S_T1,135*128))
            a('v_lshlrev_b32 v1, 7, v0')
            srd(a,SRD_D,S_WOUT,S_WOUT+1,864*1280)
            a('s_barrier')
            for i in range(NK2):
                a('s_barrier')
                if 8<=i<11:
                    a('s_mov_b32 exec_hi, 0x1fff'); a('buffer_load_dword v2, v1, s[%d:%d], s%d offen'%(SRD_D,SRD_D+3,S_SO)); a('s_mov_b32 exec_hi, -1'); a('s_add_u32 s%d, s%d, %d'%(S_SO,S_SO,45*128))
            a('s_barrier')
            a('s_branch K2_end')
        else:
            for _ in range(NK2+2): a('s_barrier')
            a('s_branch K2_end')
    else:
        if EXP.get('noxpf') or EXP.get('noxpf2'): a('s_endpgm')
        a('s_sub_u32 s%d, s%d, 24'%(S_T0,S_J)); a('s_lshl_b32 s%d, s%d, 1'%(S_T0,S_T0)); a('s_add_u32 s%d, s%d, s%d'%(S_T0,S_T0,S_H)); a('s_mul_i32 s%d, s%d, %d'%(S_SO,S_T0,540*128))
        a('v_lshlrev_b32 v1, 7, v0')
        a('s_waitcnt lgkmcnt(0)')
        srd(a,SRD_D,S_WOUT,S_WOUT+1,864*1280)
        st0=EXP.get('wpfat',13)
        for i in range(NK2):
            a('s_barrier')
            if i==st0:
                for k in range(9):
                    if k==8: a('s_mov_b32 exec_hi, 0'); a('s_mov_b32 exec_lo, 0xfffffff')
                    a('buffer_load_dword v2, v1, s[%d:%d], s%d offen'%(SRD_D,SRD_D+3,S_SO)); a('s_add_u32 s%d, s%d, 8192'%(S_SO,S_SO))
        a('s_barrier')
        a('s_endpgm')
    a.lab('K2T_prod')
    WO=2; AO=3; S_U0=S_PAR
    if EXP.get('same'): a('s_mov_b32 s%d, 0'%S_TB); a('s_mov_b32 s%d, 0'%S_CT); a('s_mov_b32 s%d, 0'%S_KH)
    a('s_sub_u32 s%d, s%d, 8'%(S_PW,S_WAVE))
    a('v_lshrrev_b32 v20, 3, v0'); a('v_and_b32 v22, 7, v0'); a('v_xor_b32 v22, v22, v20'); a('v_lshlrev_b32 v22, 4, v22'); a('v_lshl_add_u32 v%d, v20, 12, v22'%WO)
    a('s_lshl_b32 s%d, s%d, 1'%(S_T0,S_PW)); a('s_sub_u32 s%d, s%d, 2'%(S_T0,S_T0)); a('s_add_u32 s%d, s%d, 2'%(S_T1,S_PW))
    a('s_cmp_lt_u32 s%d, 4'%S_PW); a('s_cselect_b32 s%d, s%d, s%d'%(S_U0,S_T0,S_T1)); a('s_cmp_lt_u32 s%d, 2'%S_PW); a('s_cselect_b32 s%d, s%d, s%d'%(S_U0,S_PW,S_U0)); a('s_lshl_b32 s%d, s%d, 10'%(S_U0,S_U0))
    a('v_lshlrev_b32 v20, 4, v0'); a('v_add_u32 v%d, s%d, v20'%(AO,S_U0))
    a('s_mov_b32 s%d, 0'%S_SLI)
    a('s_mul_i32 s%d, s%d, %d'%(S_T0,S_CT,EXP.get('rta',0))); a('s_and_b32 s%d, s%d, 1'%(S_T1,S_TB)); a('s_mul_i32 s%d, s%d, %d'%(S_T1,S_T1,EXP.get('rtb',0)))
    a('s_add_u32 s%d, s%d, s%d'%(S_T0,S_T0,S_T1)); a('s_and_b32 s%d, s%d, 15'%(S_T0,S_T0)); a('s_lshl_b32 s%d, s%d, 7'%(S_KX,S_T0)); a('s_mul_i32 s%d, s%d, 10240'%(S_KW,S_T0))
    a('s_mul_i32 s%d, s%d, %d'%(S_T0,S_KH,AE_MAT)); a('s_mul_i32 s%d, s%d, 163840'%(S_T1,S_CT)); a('s_add_u32 s%d, s%d, s%d'%(S_SO2,S_T0,S_T1))
    a('s_mul_i32 s%d, s%d, %d'%(S_T0,S_TB,144*4096))
    a('s_waitcnt lgkmcnt(0)')
    a('s_cmp_eq_u32 s%d, 0'%S_KH); a('s_cselect_b32 s%d, s%d, s%d'%(S_T2,S_WSRE,S_WSIM)); a('s_cselect_b32 s%d, s%d, s%d'%(S_T3,S_WSRE+1,S_WSIM+1))
    add64(a,S_T2,S_T2,'s%d'%S_T0); srd(a,SRD_A,S_T2,S_T2+1,144*4096)
    add64(a,S_T2,S_WS,WS_AE); add64(a,S_T2,S_T2,'s%d'%S_SO2); srd(a,SRD_B,S_T2,S_T2+1,163840)
    def issueT():
        a('s_lshl_b32 s%d, s%d, 10'%(S_T,S_PW)); a('s_add_u32 s%d, s%d, s%d'%(S_T,S_T,S_SLI))
        a('s_lshl_b32 s%d, s%d, 15'%(S_T0,S_PW)); a('s_add_u32 s%d, s%d, s%d'%(S_T0,S_T0,S_KX))
        for i in range(2):
            a('s_add_u32 m0, s%d, %d'%(S_T,i*8192)); a('s_add_u32 s%d, s%d, %d'%(S_SO,S_T0,i*8*32768))
            a(('buffer_load_dwordx4 v%d, s[%d:%d], s%d offen lds'%(WO,SRD_A,SRD_A+3,S_SO)).replace(' lds',(' nt' if EXP.get('t2nt') else LDK[2])+' lds'))
        a('s_add_u32 s%d, s%d, s%d'%(S_T1,S_SLI,S_U0)); a('s_add_u32 m0, s%d, 18432'%S_T1); a('s_nop 0')
        a('buffer_load_dwordx4 v%d, s[%d:%d], s%d offen lds'%(AO,SRD_B,SRD_B+3,S_KW))
        l1=a.newlab('K2Tp_a'); l2=a.newlab('K2Tp_b')
        a('s_cmp_lt_u32 s%d, 2'%S_PW); a('s_cbranch_scc1 %s'%l1)
        a('s_cmp_lt_u32 s%d, 4'%S_PW); a('s_cbranch_scc0 %s'%l2)
        a('buffer_load_dwordx4 v%d, s[%d:%d], s%d offen offset:1024 lds'%(AO,SRD_B,SRD_B+3,S_KW)); a('s_branch %s'%l2)
        a.lab(l1)
        a('s_add_u32 m0, s%d, %d'%(S_T,2*8192)); a('s_add_u32 s%d, s%d, %d'%(S_SO,S_T0,2*8*32768))
        a(('buffer_load_dwordx4 v%d, s[%d:%d], s%d offen lds'%(WO,SRD_A,SRD_A+3,S_SO)).replace(' lds',(' nt' if EXP.get('t2nt') else LDK[2])+' lds'))
        a.lab(l2)
        slot_advance(a,S_SLI,SLT); a('s_add_u32 s%d, s%d, 128'%(S_KX,S_KX)); a('s_add_u32 s%d, s%d, 10240'%(S_KW,S_KW))
        a('s_cmp_eq_u32 s%d, 2048'%S_KX); a('s_cselect_b32 s%d, 0, s%d'%(S_KX,S_KX)); a('s_cselect_b32 s%d, 0, s%d'%(S_KW,S_KW))
    if g2.FUSED[0] and EXP.get('prewt'):
        c=3; n=NK2
        t2f=(' nt' if EXP.get('t2nt') else LDK[2])
        def issue_ws(slot):
            a('s_lshl_b32 s%d, s%d, 10'%(S_T,S_PW)); a('s_add_u32 s%d, s%d, %d'%(S_T,S_T,slot*SLT))
            a('s_lshl_b32 s%d, s%d, 15'%(S_T0,S_PW)); a('s_add_u32 s%d, s%d, s%d'%(S_T0,S_T0,S_KX))
            lab=a.newlab('K2Tp_w')
            for i in range(3):
                if i==2: a('s_cmp_lt_u32 s%d, 2'%S_PW); a('s_cbranch_scc0 %s'%lab)
                a('s_add_u32 m0, s%d, %d'%(S_T,i*8192)); a('s_add_u32 s%d, s%d, %d'%(S_SO,S_T0,i*8*32768))
                a('buffer_load_dwordx4 v%d, s[%d:%d], s%d offen%s lds'%(WO,SRD_A,SRD_A+3,S_SO,t2f))
            a.lab(lab)
            a('s_add_u32 s%d, s%d, 128'%(S_KX,S_KX))
        def issue_ae(slot):
            a('s_add_u32 m0, s%d, %d'%(S_U0,slot*SLT+18432)); a('s_nop 0')
            a('buffer_load_dwordx4 v%d, s[%d:%d], s%d offen lds'%(AO,SRD_B,SRD_B+3,S_KW))
            lab=a.newlab('K2Tp_e'); a('s_cmp_lt_u32 s%d, 2'%S_PW); a('s_cbranch_scc1 %s'%lab); a('s_cmp_lt_u32 s%d, 4'%S_PW); a('s_cbranch_scc0 %s'%lab)
            a('buffer_load_dwordx4 v%d, s[%d:%d], s%d offen offset:1024 lds'%(AO,SRD_B,SRD_B+3,S_KW)); a.lab(lab)
            a('s_add_u32 s%d, s%d, 10240'%(S_KW,S_KW))
        for st in range(4): issue_ws(st)
        dep_barrier(a,'K2Tp',2,S_WS,poller=True)
        gc.stamp(a,1)
        issue_ae(0); issue_ae(1)
        gc.stamp(a,2)
        a('s_waitcnt vmcnt(1)'); gc.stamp(a,3); a('s_barrier')
        issue_ae(2); issue_ae(3)
        for wv in (2,4,6):
            a('s_waitcnt vmcnt(%d)'%wv); a('s_barrier'); issueT()
        a('s_mov_b32 s%d, %d'%(S_I,n-4-3)); a.lab('K2Tp_loop')
        a('s_waitcnt vmcnt(%d)'%(2*c)); a('s_barrier'); issueT()
        a('s_sub_u32 s%d, s%d, 1'%(S_I,S_I)); a('s_cmp_lg_u32 s%d, 0'%S_I); a('s_cbranch_scc1 K2Tp_loop')
        for r in (2,1,0):
            a('s_waitcnt vmcnt(%d)'%(r*c)); a('s_barrier')
        gc.stamp(a,4)
        a('s_barrier')
    else:
        dma_producer(a,'K2Tp',NK2,3,issueT,phase=2,s_ws=S_WS,post=1)
    a('s_branch K2_end')
    kernel_tail(a,'K2',1,S_WS)
```

```python
from g2_common import *
import g2_common as g2
SL3=39936
K3_LDS=NS*SL3
NK3=9
S_X=4; S_WS=6; S_WOUT=8; S_OUT=10
SRD_A=16; SRD_B=20; SRD_O=24; SRD_C=56; SRD_D=60
S_TB=37; S_DT=38
AREA_P=1*SL3; AREA_X=1*SL3+20480; AREA_DUM=1*SL3+32768; AREA_Q=2*SL3

def gen_k3(a,kname):
    kernel_head(a,kname,'K3')
    a('s_load_dwordx2 s[%d:%d], s[0:1], 0'%(S_X,S_X+1))
    a('s_load_dwordx4 s[%d:%d], s[0:1], 72'%(S_WOUT,S_WOUT+3))
    a('s_load_dwordx2 s[%d:%d], s[0:1], 96'%(S_WS,S_WS+1))
    wave_setup(a,'K3')
    a('s_and_b32 s%d, s2, 7'%S_XCD); a('s_lshr_b32 s%d, s2, 3'%S_J)
    a('s_lshr_b32 s%d, s%d, 3'%(S_T0,S_J)); a('s_lshl_b32 s%d, s%d, 2'%(S_TB,S_XCD)); a('s_add_u32 s%d, s%d, s%d'%(S_TB,S_TB,S_T0))
    a('s_and_b32 s%d, s%d, 7'%(S_DT,S_J))
    a('s_cmp_ge_u32 s%d, 8'%S_WAVE); a('s_cbranch_scc1 K3_prod')
    ACC=16; FS=[32,52,72]; WA=92; HA=93; PP=96; QQ=108; XX=120
    a('s_and_b32 s%d, s%d, 3'%(S_PW,S_WAVE)); a('s_lshr_b32 s%d, s%d, 2'%(S_H,S_WAVE))
    a('v_and_b32 v6, 15, v0'); a('v_lshrrev_b32 v7, 4, v0')
    a('s_lshl_b32 s%d, s%d, 6'%(S_T0,S_TB)); a('s_lshl_b32 s%d, s%d, 4'%(S_T1,S_PW)); a('s_add_u32 s%d, s%d, s%d'%(S_T0,S_T0,S_T1)); a('v_add_u32 v8, s%d, v6'%S_T0)
    a('s_mul_i32 s%d, s%d, 80'%(S_T0,S_DT)); a('s_mul_i32 s%d, s%d, 48'%(S_T1,S_H)); a('s_add_u32 s%d, s%d, s%d'%(S_T3,S_T0,S_T1))
    a('v_lshlrev_b32 v9, 2, v7'); a('v_add_u32 v9, s%d, v9'%S_T3)
    a('v_mul_u32_u24 v10, 1280, v8'); a('v_lshl_add_u32 v10, v9, 1, v10')
    a('s_mul_i32 s%d, s%d, 3072'%(S_T0,S_PW)); a('v_lshlrev_b32 v12, 3, v0'); a('v_add_u32 v%d, s%d, v12'%(HA,S_T0))
    a('v_lshrrev_b32 v12, 2, v6'); a('v_lshl_add_u32 v12, v7, 2, v12'); a('v_mul_u32_u24 v12, 160, v12'); a('v_and_b32 v13, 3, v6'); a('v_lshl_add_u32 v12, v13, 3, v12')
    a('s_mul_i32 s%d, s%d, 96'%(S_T0,S_H)); a('s_add_u32 s%d, s%d, 24576'%(S_T0,S_T0)); a('v_add_u32 v%d, s%d, v12'%(WA,S_T0))
    for k in range(12): a('v_mov_b32 v%d, 0'%(ACC+k))
    a('s_waitcnt lgkmcnt(0)')
    a('s_cmp_eq_u32 s%d, 0'%S_H); a('s_cbranch_scc0 K3c_1')
    for h in range(2):
        nj=3-h; nm='K3c_%d'%h
        a.lab(nm)
        def rd(st,sub,nj=nj):
            F=FS[st]; m=[]
            for ver in range(2):
                for b in range(2): m.append('ds_read_b64 %s, v%d offset:%d'%(vr(F+ver*4+b*2,2),HA,ver*12288+(sub*2+b)*512))
            for j in range(nj):
                for b in range(2): m.append('ds_read_b64_tr_b16 %s, v%d offset:%d'%(vr(F+8+j*4+b*2,2),WA,sub*32*160+b*16*160+j*32))
            return m
        def mf(st,nj=nj):
            F=FS[st]; m=[]
            for ver in range(2):
                for j in range(nj):
                    c=vr(ACC+4*j,4); m.append('v_mfma_f32_16x16x32_bf16 %s, %s, %s, %s'%(c,vr(F+8+j*4,4),vr(F+ver*4,4),c))
            return m
        consumer_loop(a,nm+'L',SL3,NK3,[WA,HA],rd,mf,lag=(h==0),nsub=3,per=EXP.get('k3per',2),dly=EXP.get('k3dly',6),phase=3)
        a('s_barrier')
        a('s_lshl_b32 s%d, s%d, 4'%(S_T0,S_PW)); a('v_add_u32 v11, s%d, v6'%S_T0)
        a('v_mul_u32_u24 v12, 320, v11'); a('v_mul_u32_u24 v13, 160, v11')
        a('v_lshlrev_b32 v14, 2, v7'); a('v_add_u32 v14, %d, v14'%(48*h))
        a('v_lshl_add_u32 v13, v14, 1, v13'); a('v_add_u32 v13, %d, v13'%(AREA_X))
        a('s_cmp_lt_u32 s%d, 4'%S_DT); a('s_cbranch_scc1 %s_rdir'%nm)
        a('v_sub_u32 v14, %d, v14'%(76-32))
        a('v_lshl_add_u32 v12, v14, 2, v12'); a('v_add_u32 v12, %d, v12'%(AREA_P))
        for j in range(nj):
            a('ds_read_b128 %s, v12 offset:%d'%(vr(PP+4*j,4),(2-j)*64)); a('ds_read_b128 %s, v12 offset:%d'%(vr(QQ+4*j,4),AREA_Q-AREA_P+(2-j)*64))
        a('s_branch %s_rdone'%nm)
        a.lab(nm+'_rdir')
        a('v_lshl_add_u32 v12, v14, 2, v12'); a('v_add_u32 v12, %d, v12'%(AREA_P))
        for j in range(nj):
            a('ds_read_b128 %s, v12 offset:%d'%(vr(PP+4*j,4),j*64)); a('ds_read_b128 %s, v12 offset:%d'%(vr(QQ+4*j,4),AREA_Q-AREA_P+j*64))
        a.lab(nm+'_rdone')
        for j in range(nj): a('ds_read_b64 %s, v13 offset:%d'%(vr(XX+2*j,2),j*32))
        srd(a,SRD_O,S_OUT,S_OUT+1,2048*1280)
        a('s_waitcnt lgkmcnt(0)')
        a('s_cmp_lt_u32 s%d, 16'%S_TB); a('s_cselect_b32 s%d, 1, 0'%S_T0); a('s_cmp_lt_u32 s%d, 4'%S_DT); a('s_cselect_b32 s%d, 1, 0'%S_T1)
        a('s_cmp_eq_u32 s%d, s%d'%(S_T0,S_T1)); a('s_cselect_b32 s%d, -1.0, 1.0'%S_T0)
        a('v_mov_b32 v2, s%d'%S_T0); a('v_mov_b32 v3, s%d'%S_T0)
        for j in range(nj):
            for p in range(2): a('v_pk_fma_f32 %s, %s, %s, %s'%(vr(PP+4*j+2*p,2),vr(QQ+4*j+2*p,2),vr(2,2),vr(PP+4*j+2*p,2)))
        if h==0:
            a('s_cmp_eq_u32 s%d, 0'%S_DT); a('s_cbranch_scc0 K3_noz')
            a('v_cmp_gt_u32 vcc, 16, v0'); a('v_mov_b32 v4, 0'); a('s_nop 0'); a('v_cndmask_b32 v%d, v%d, v4, vcc'%(PP,PP))
            a.lab('K3_noz')
        if EXP.get('wide'):
            a('v_lshlrev_b32 v8, 3, v7'); a('v_sub_u32 v11, v10, v8'); a('v_and_b32 v8, 1, v7'); a('v_lshl_add_u32 v11, v8, 5, v11'); a('v_lshrrev_b32 v8, 1, v7'); a('v_lshl_add_u32 v11, v8, 4, v11')
        a('s_cmp_lt_u32 s%d, 4'%S_DT); a('s_cbranch_scc0 %s_epm'%nm)
        for role in ('dir','mir'):
            if role=='mir': a.lab(nm+'_epm')
            for j in range(nj):
                c=ACC+4*j
                for r in range(4):
                    y=PP+4*j+(r if role=='dir' else 3-r)
                    a('v_add_f32 v%d, v%d, v%d'%(c+r,c+r,y))
                for p in range(2):
                    x=XX+2*j+p
                    a('v_lshlrev_b32 v%d, 16, v%d'%(4,x)); a('v_and_b32 v%d, 0xffff0000, v%d'%(5,x))
                    a('v_pk_add_f32 %s, %s, %s'%(vr(c+2*p,2),vr(c+2*p,2),vr(4,2)))
                fl={0:'',1:' sc1',2:' nt',3:' sc0 sc1'}[EXP.get('outst',0)]
                if EXP.get('wide') and j<2:
                    o=(12,14)[j]
                    a('v_cvt_pk_bf16_f32 v%d, v%d, v%d'%(o,c,c+1)); a('v_cvt_pk_bf16_f32 v%d, v%d, v%d'%(o+1,c+2,c+3))
                    if j==1:
                        a('s_nop 1')
                        a('v_permlane16_swap_b32 v12, v14'); a('v_permlane16_swap_b32 v13, v15')
                        a('buffer_store_dwordx4 v[12:15], v11, s[%d:%d], 0 offen%s'%(SRD_O,SRD_O+3,fl))
                else:
                    o=16+2*(j&1) if EXP.get('wide') else 12+2*(j&1)
                    if EXP.get('wide'): o=2
                    a('v_cvt_pk_bf16_f32 v%d, v%d, v%d'%(o,c,c+1)); a('v_cvt_pk_bf16_f32 v%d, v%d, v%d'%(o+1,c+2,c+3))
                    a('buffer_store_dwordx2 %s, v10, s[%d:%d], 0 offen offset:%d%s'%(vr(o,2),SRD_O,SRD_O+3,j*32,fl))
            a('s_branch K3_end')
    a.lab('K3_prod')
    HO=2; WO=[3,4]
    if EXP.get('same'): a('s_mov_b32 s%d, 0'%S_TB); a('s_mov_b32 s%d, 0'%S_DT)
    a('s_sub_u32 s%d, s%d, 8'%(S_PW,S_WAVE))
    a('s_and_b32 s%d, s%d, 3'%(S_T1,S_PW)); a('s_lshr_b32 s%d, s%d, 2'%(S_T2,S_PW))
    a('s_lshl_b32 s%d, s%d, 2'%(S_T0,S_TB)); a('s_add_u32 s%d, s%d, s%d'%(S_T0,S_T0,S_T1)); a('s_mul_i32 s%d, s%d, 27648'%(S_KX,S_T0))
    a('s_mul_i32 s%d, s%d, %d'%(S_T0,S_T2,H_VER)); a('s_add_u32 s%d, s%d, s%d'%(S_KX,S_KX,S_T0))
    a('s_mul_i32 s%d, s%d, 3072'%(S_T1,S_T1)); a('s_mul_i32 s%d, s%d, 12288'%(S_T2,S_T2)); a('s_add_u32 s%d, s%d, s%d'%(S_PAR,S_T1,S_T2))
    a('v_lshlrev_b32 v%d, 4, v0'%HO)
    for i in range(2):
        a('s_lshl_b32 s%d, s%d, 6'%(S_T0,S_PW)); a('s_add_u32 s%d, s%d, %d'%(S_T0,S_T0,512*i)); a('v_add_u32 v20, s%d, v0'%S_T0)
        a('v_mul_u32_u24 v21, 6554, v20'); a('v_lshrrev_b32 v21, 16, v21')
        a('v_mul_u32_u24 v22, 10, v21'); a('v_sub_u32 v22, v20, v22'); a('v_mul_u32_u24 v21, 1280, v21'); a('v_lshl_add_u32 v%d, v22, 4, v21'%WO[i])
    PO=[6,7,8]; XO=[9,10]
    a('s_mul_i32 s%d, s%d, 80'%(S_T0,S_DT)); a('s_sub_u32 s%d, s%d, 1'%(S_T1,S_T0)); a('s_sub_u32 s%d, 560, s%d'%(S_T2,S_T0))
    a('s_cmp_lt_u32 s%d, 4'%S_DT); a('s_cselect_b32 s%d, s%d, s%d'%(S_T0,S_T1,S_T2)); a('s_lshl_b32 s%d, s%d, 2'%(S_T0,S_T0)); a('s_add_u32 s%d, s%d, 64'%(S_SO2,S_T0))
    a('s_lshl_b32 s%d, s%d, 6'%(S_T3,S_TB))
    for i in range(3):
        a('s_lshl_b32 s%d, s%d, 6'%(S_T0,S_PW)); a('s_add_u32 s%d, s%d, %d'%(S_T0,S_T0,512*i)); a('v_add_u32 v20, s%d, v0'%S_T0)
        a('v_mul_u32_u24 v21, 3277, v20'); a('v_lshrrev_b32 v21, 16, v21')
        a('v_mul_u32_u24 v22, 20, v21'); a('v_sub_u32 v22, v20, v22')
        a('v_add_u32 v21, s%d, v21'%S_T3)
        a('s_cmp_lt_u32 s%d, 16'%S_TB); l=a.newlab('K3p_m'); a('s_cbranch_scc1 %s'%l); a('v_sub_u32 v21, 2048, v21'); a.lab(l)
        a('v_mul_u32_u24 v21, 1280, v21'); a('v_lshl_add_u32 v21, v22, 4, v21'); a('v_add_u32 v%d, s%d, v21'%(PO[i],S_SO2))
    a('s_cmp_lt_u32 s%d, 4'%S_PW); l=a.newlab('K3p_d'); a('s_cbranch_scc1 %s'%l); a('v_mov_b32 v%d, 0x7fffff00'%PO[2]); a.lab(l)
    a('s_sub_u32 s%d, s%d, 4'%(S_T0,S_PW)); a('s_lshl_b32 s%d, s%d, 1'%(S_T0,S_T0)); a('s_add_u32 s%d, s%d, 8'%(S_T1,S_PW))
    a('s_cmp_lt_u32 s%d, 4'%S_PW); a('s_cselect_b32 s%d, s%d, s%d'%(S_G,S_T1,S_T0))
    for i in range(2):
        a('s_add_u32 s%d, s%d, %d'%(S_T0,S_G,i)); a('s_lshl_b32 s%d, s%d, 6'%(S_T0,S_T0)); a('v_add_u32 v20, s%d, v0'%S_T0)
        a('v_mul_u32_u24 v21, 6554, v20'); a('v_lshrrev_b32 v21, 16, v21'); a('v_mul_u32_u24 v22, 10, v21'); a('v_sub_u32 v22, v20, v22')
        a('v_add_u32 v21, s%d, v21'%S_T3); a('v_mul_u32_u24 v21, 1280, v21'); a('v_lshl_add_u32 v21, v22, 4, v21')
        a('s_mul_i32 s%d, s%d, 160'%(S_T0,S_DT)); a('v_add_u32 v%d, s%d, v21'%(XO[i],S_T0))
    a('s_mov_b32 s%d, 0'%S_SLI)
    if EXP.get('norot') or EXP.get('norot3'): a('s_mov_b32 s%d, 0'%S_KW); a('s_mov_b32 s%d, 0'%S_HALF)
    else:
        a('s_mov_b32 s%d, s%d'%(S_HALF,S_XCD)); a('s_mul_i32 s%d, s%d, %d'%(S_KW,S_XCD,96*1280)); a('s_mul_i32 s%d, s%d, 3072'%(S_T2,S_XCD)); a('s_add_u32 s%d, s%d, s%d'%(S_KX,S_KX,S_T2))
    a('s_mul_i32 s%d, s%d, 160'%(S_T2,S_DT)); a('s_sub_u32 s%d, %d, s%d'%(S_T3,864*1280,S_T2))
    a('s_waitcnt lgkmcnt(0)')
    add64(a,S_T0,S_WS,WS_H); srd(a,SRD_A,S_T0,S_T0+1,2*H_VER)
    add64(a,S_WOUT,S_WOUT,'s%d'%S_T2); srd(a,SRD_B,S_WOUT,S_WOUT+1,'s%d'%S_T3)
    srd(a,SRD_C,S_X,S_X+1,2048*1280)
    add64(a,S_T0,S_WS,WS_PQ-64); srd(a,SRD_D,S_T0,S_T0+1,2*PQ_MAT+64)
    def adv_h():
        a('s_add_u32 s%d, s%d, 3072'%(S_KX,S_KX))
    def issue_h(slot=None):
        if slot is None: a('s_add_u32 m0, s%d, s%d'%(S_SLI,S_PAR)); a('s_nop 0')
        else: a('s_add_u32 m0, s%d, %d'%(S_PAR,slot*SL3)); a('s_nop 0')
        for k in range(3): a('buffer_load_dwordx4 v%d, s[%d:%d], s%d offen offset:%d lds'%(HO,SRD_A,SRD_A+3,S_KX,k*1024))
    def issue_w(slot=None):
        a('s_lshl_b32 s%d, s%d, 10'%(S_T,S_PW))
        if slot is None: a('s_add_u32 s%d, s%d, s%d'%(S_T,S_T,S_SLI))
        else: a('s_add_u32 s%d, s%d, %d'%(S_T,S_T,slot*SL3))
        lab=a.newlab('K3p_s')
        for i in range(2):
            if i==1: a('s_cmp_lt_u32 s%d, 7'%S_PW); a('s_cbranch_scc0 %s'%lab)
            a('s_add_u32 m0, s%d, %d'%(S_T,24576+i*8192)); a('s_nop 0')
            a(ld('buffer_load_dwordx4 v%d, s[%d:%d], s%d offen lds'%(WO[i],SRD_B,SRD_B+3,S_KW)))
        a.lab(lab)
    def wrap(cnt,dow,doh):
        if dow: a('s_add_u32 s%d, s%d, %d'%(S_KW,S_KW,96*1280))
        if doh: a('s_add_u32 s%d, s%d, 3072'%(S_KX,S_KX))
        a('s_add_u32 s%d, s%d, 1'%(cnt,cnt)); a('s_cmp_eq_u32 s%d, 9'%cnt); lw=a.newlab('K3p_w'); a('s_cbranch_scc0 %s'%lw)
        a('s_mov_b32 s%d, 0'%cnt)
        if dow: a('s_mov_b32 s%d, 0'%S_KW)
        if doh: a('s_sub_u32 s%d, s%d, %d'%(S_KX,S_KX,9*3072))
        a.lab(lw)
    def issue():
        issue_h(); issue_w()
        slot_advance(a,S_SLI,SL3); wrap(S_HALF,True,True)
    n=NK3; c=4
    if EXP.get('pprio'): a('s_setprio %d'%EXP['pprio'])
    if g2.FUSED[0] and EXP.get('prew'):
        a('s_mov_b32 s%d, s%d'%(S_G+0,S_HALF)) if False else None
        a('s_mov_b32 s%d, s%d'%(S_EX,S_HALF))
        for st in range(4):
            issue_w(st); wrap(S_HALF,True,False)
        dep_barrier(a,'K3p',3,S_WS,poller=True)
        gc.stamp(a,1)
        for st in range(2):
            issue_h(st); wrap(S_EX,False,True)
        gc.stamp(a,2)
        a('s_waitcnt vmcnt(3)'); gc.stamp(a,3); a('s_barrier')
        for st in range(2,4):
            issue_h(st); wrap(S_EX,False,True)
        a('s_mov_b32 s%d, 0'%S_SLI)
        a('s_waitcnt vmcnt(6)'); a('s_barrier'); issue()
        a('s_waitcnt vmcnt(7)'); a('s_barrier'); issue()
        a('s_waitcnt vmcnt(8)'); a('s_barrier'); issue()
        a('s_mov_b32 s%d, 4'%S_I)
        a.lab('K3p_loop')
        a('s_waitcnt vmcnt(%d)'%(2*c)); a('s_barrier'); issue()
        a('s_add_u32 s%d, s%d, 1'%(S_I,S_I)); a('s_cmp_lt_u32 s%d, %d'%(S_I,n-3)); a('s_cbranch_scc1 K3p_loop')
        PRE=True
    else:
        PRE=False
        dep_barrier(a,'K3p',3,S_WS,poller=True)
        gc.stamp(a,1)
        P=EXP.get('pro3',EXP.get('pro',2))
        for _ in range(P): issue()
        gc.stamp(a,2)
        a('s_waitcnt vmcnt(%d)'%((P-1)*c)); gc.stamp(a,3); a('s_barrier')
        for _ in range(4-P): issue()
    if not PRE:
        a('s_mov_b32 s%d, 1'%S_I)
        a.lab('K3p_loop')
        a('s_waitcnt vmcnt(%d)'%(2*c)); a('s_barrier'); issue()
        a('s_add_u32 s%d, s%d, 1'%(S_I,S_I)); a('s_cmp_lt_u32 s%d, %d'%(S_I,n-3)); a('s_cbranch_scc1 K3p_loop')
    a('s_waitcnt vmcnt(%d)'%(2*c)); a('s_barrier')
    a('s_lshl_b32 s%d, s%d, 10'%(S_T,S_PW))
    for i in range(2):
        a('s_add_u32 m0, s%d, %d'%(S_T,AREA_P+i*8192)); a('s_nop 0'); a('buffer_load_dwordx4 v%d, s[%d:%d], 0 offen lds'%(PO[i],SRD_D,SRD_D+3))
    l4=a.newlab('K3p_t4'); ld_=a.newlab('K3p_td')
    a('s_cmp_lt_u32 s%d, 4'%S_PW); a('s_cbranch_scc0 %s'%l4)
    a('s_add_u32 m0, s%d, %d'%(S_T,AREA_P+2*8192)); a('s_nop 0'); a('buffer_load_dwordx4 v%d, s[%d:%d], 0 offen lds'%(PO[2],SRD_D,SRD_D+3))
    a('s_lshl_b32 s%d, s%d, 10'%(S_T0,S_G)); a('s_add_u32 s%d, s%d, %d'%(S_T0,S_T0,AREA_X)); a('s_cmp_lt_u32 s%d, 2'%S_PW); a('s_cselect_b32 s%d, s%d, %d'%(S_T0,S_T0,AREA_DUM))
    lq=a.newlab('K3p_tx'); a('s_cbranch_scc1 %s'%lq); a('v_mov_b32 v%d, 0x7fffff00'%XO[0]); a.lab(lq)
    a('s_mov_b32 m0, s%d'%S_T0); a('s_nop 0'); a('buffer_load_dwordx4 v%d, s[%d:%d], 0 offen lds'%(XO[0],SRD_C,SRD_C+3)); a('s_branch %s'%ld_)
    a.lab(l4)
    a('s_lshl_b32 s%d, s%d, 10'%(S_T0,S_G))
    for i in range(2):
        a('s_add_u32 m0, s%d, %d'%(S_T0,AREA_X+i*1024)); a('s_nop 0'); a('buffer_load_dwordx4 v%d, s[%d:%d], 0 offen lds'%(XO[i],SRD_C,SRD_C+3))
    a.lab(ld_)
    a('s_waitcnt vmcnt(%d)'%(c+4)); a('s_barrier')
    a('s_mov_b32 s%d, %d'%(S_SO,PQ_MAT))
    for i in range(3):
        a('s_add_u32 m0, s%d, %d'%(S_T,AREA_Q+i*8192)); a('s_nop 0'); a('buffer_load_dwordx4 v%d, s[%d:%d], s%d offen lds'%(PO[i],SRD_D,SRD_D+3,S_SO))
    a('s_waitcnt vmcnt(7)'); a('s_barrier')
    gc.stamp(a,4)
    a('s_waitcnt vmcnt(0)'); a('s_barrier')
    kernel_tail(a,'K3',2,S_WS)
```
